```python
import torch

def _softmax(x, axis=-1):
    return torch.softmax(x, dim=axis)
def _gelu(x):
    return torch.nn.functional.gelu(x, approximate="tanh")
def _silu(x):
    return torch.nn.functional.silu(x)
def _sigmoid(x):
    return torch.sigmoid(x)
def _layernorm(x, axis=-1, eps=1e-5):
    m = x.mean(dim=axis, keepdim=True)
    v = x.var(dim=axis, keepdim=True, unbiased=False)
    return (x - m) / torch.sqrt(v + eps)
def _scatter_add(tgt, idx, src, axis=0):
    return tgt.clone().index_add_(axis, idx, src)
def _segment_sum(src, seg, n):
    out = torch.zeros((n,) + src.shape[1:], dtype=src.dtype)
    return out.index_add_(0, seg, src)
def _pad(x, pw):
    flat = tuple(v for pair in reversed(pw) for v in pair)
    return torch.nn.functional.pad(x, flat)

kernel_name = 'parallel_sum__ssm_conv_s5__mixer_channel_mlp__prompt'

def setup_inputs():

    _w = (lambda a: (lambda t: t.to(torch.bfloat16) if t.is_floating_point() else t)(torch.as_tensor(a)))
    def _A_setup():
        B, S, D = 1, 2048, 640
        P = D
        Lambda_re = -0.5 * (lambda _x: torch.exp(torch.as_tensor(_x)))((lambda *s: torch.randn(*s, dtype=torch.bfloat16) * 0.2)(P))
        Lambda_im = (lambda *s: torch.randn(*s, dtype=torch.bfloat16) * 0.8)(P) * 1.0
        B_re = (lambda *s: torch.randn(*s, dtype=torch.bfloat16) * 0.2)(P, D) * (D ** -0.5)
        B_im = (lambda *s: torch.randn(*s, dtype=torch.bfloat16) * 0.2)(P, D) * (D ** -0.5)
        C_re = (lambda *s: torch.randn(*s, dtype=torch.bfloat16) * 0.2)(D, P) * (P ** -0.5)
        C_im = (lambda *s: torch.randn(*s, dtype=torch.bfloat16) * 0.2)(D, P) * (P ** -0.5)
        log_dt = (lambda *s: torch.randn(*s, dtype=torch.bfloat16) * 0.2)(P) * 0.3 - 2.0
        Dskip = (lambda *s: torch.randn(*s, dtype=torch.bfloat16) * 0.05)(D)
        return {
            "x": _w((lambda *s: torch.randn(*s, dtype=torch.bfloat16) * 0.05)(B, S, D)),
            "Lambda_re": _w(Lambda_re),
            "Lambda_im": _w(Lambda_im),
            "B_re": _w(B_re),
            "B_im": _w(B_im),
            "C_re": _w(C_re),
            "C_im": _w(C_im),
            "log_dt": _w(log_dt),
            "Dskip": _w(Dskip),
        }
    _A_in = _A_setup()

    def _B_setup():
        B, S, D, F = 1, 2048, 640, 1536
        return {
            "x": _w((lambda *s: torch.randn(*s, dtype=torch.bfloat16) * 0.05)(B, S, D)),
            "w1": _w((lambda *s: torch.randn(*s, dtype=torch.bfloat16) * 1.6)(D, F) * (D ** -0.5)),
            "b1": _w((lambda *s: torch.randn(*s, dtype=torch.bfloat16) * 0.8)(F)),
            "w2": _w((lambda *s: torch.randn(*s, dtype=torch.bfloat16) * 0.05)(F, D) * (F ** -0.5)),
            "b2": _w((lambda *s: torch.randn(*s, dtype=torch.bfloat16) * 0.05)(D)),
        }
    _B_in = _B_setup()

    return {
        "A_x": _A_in["x"],
        "A_Lambda_re": _A_in["Lambda_re"],
        "A_Lambda_im": _A_in["Lambda_im"],
        "A_B_re": _A_in["B_re"],
        "A_B_im": _A_in["B_im"],
        "A_C_re": _A_in["C_re"],
        "A_C_im": _A_in["C_im"],
        "A_log_dt": _A_in["log_dt"],
        "A_Dskip": _A_in["Dskip"],
        "B_x": _B_in["x"],
        "B_w1": _B_in["w1"],
        "B_b1": _B_in["b1"],
        "B_w2": _B_in["w2"],
        "B_b2": _B_in["b2"],
    }

def reference(A_x, A_Lambda_re, A_Lambda_im, A_B_re, A_B_im, A_C_re, A_C_im, A_log_dt, A_Dskip, B_x, B_w1, B_b1, B_w2, B_b2):
    def _A_ref(x, Lambda_re, Lambda_im, B_re, B_im, C_re, C_im, log_dt, Dskip):
        Bsz, L, H = x.shape
        Lam = Lambda_re + 1j * Lambda_im
        Bmat = B_re + 1j * B_im
        Cmat = C_re + 1j * C_im
        dt = torch.exp(log_dt)
        Lam_bar = torch.exp(dt * Lam)
        B_bar = ((Lam_bar - 1.0) / Lam)[:, None] * Bmat
        Bu = torch.einsum("bld,pd->blp", x + 0j, B_bar)
        h = torch.zeros_like(Bu[:, 0, :])
        hs = []
        for t in range(L):
            h = Lam_bar[None, :] * h + Bu[:, t, :]
            hs.append(h)
        hseq = torch.stack(hs, 1)
        y = 2.0 * torch.einsum("blp,dp->bld", hseq, Cmat).real + x * Dskip[None, None, :]
        return y

    def _B_ref(x, w1, b1, w2, b2):
        y = _layernorm(x, axis=-1)
        h = _gelu(torch.einsum("bsd,df->bsf", y, w1) + b1)
        return torch.einsum("bsf,fd->bsd", h, w2) + b2

    x = A_x
    xn = _layernorm(x, axis=-1)
    return x + _A_ref(xn, A_Lambda_re, A_Lambda_im, A_B_re, A_B_im, A_C_re, A_C_im, A_log_dt, A_Dskip) + _B_ref(xn, B_w1, B_b1, B_w2, B_b2)
```

```python
import re

def v(i, n=1):
    return f"v{i}" if n == 1 else f"v[{i}:{i+n-1}]"
def a(i, n=1):
    return f"a{i}" if n == 1 else f"a[{i}:{i+n-1}]"
def s(i, n=1):
    return f"s{i}" if n == 1 else f"s[{i}:{i+n-1}]"

_REG = re.compile(r"^-?\|?(?:abs\()?([vas])(?:(\d+)|\[(\d+):(\d+)\])\)?\|?$")
def regs_of(op):
    op = op.strip()
    if op == "vcc": return {("s", 106), ("s", 107)}
    if op == "vcc_lo": return {("s", 106)}
    if op == "vcc_hi": return {("s", 107)}
    if op == "exec": return {("s", 126), ("s", 127)}
    if op == "exec_lo": return {("s", 126)}
    if op == "exec_hi": return {("s", 127)}
    if op == "m0": return {("s", 124)}
    m = _REG.match(op)
    if not m: return set()
    k = m.group(1)
    if m.group(2) is not None:
        return {(k, int(m.group(2)))}
    return {(k, r) for r in range(int(m.group(3)), int(m.group(4)) + 1)}

TRANS = ("v_exp_f32", "v_log_f32", "v_rcp_f32", "v_rsq_f32", "v_sqrt_f32", "v_sin_f32", "v_cos_f32")
EXEC = {("s", 126), ("s", 127)}
VCC = {("s", 106), ("s", 107)}
M0 = {("s", 124)}

class Ins:
    __slots__ = ("text", "op", "kind", "wr", "rd", "passes", "srcc", "srcab", "dpp", "wide_data", "lds_dma", "states", "is_label", "target")
    def __init__(self, text):
        self.text = text
        t = text.split(";")[0].strip()
        self.is_label = t.endswith(":")
        self.target = None
        self.wr, self.rd = set(), set()
        self.passes = 0; self.srcc = set(); self.srcab = set()
        self.dpp = False; self.wide_data = set(); self.lds_dma = False
        self.states = 1
        if self.is_label or not t or t.startswith("."):
            self.op = ""; self.kind = "none"; self.states = 0
            return
        parts = t.split(None, 1)
        op = parts[0]; self.op = op
        rest = parts[1] if len(parts) > 1 else ""
        ops = []; depth = 0; cur = ""
        for ch in rest:
            if ch == "[": depth += 1
            if ch == "]": depth -= 1
            if ch == "," and depth == 0:
                ops.append(cur.strip()); cur = ""
            else:
                cur += ch
        if cur.strip(): ops.append(cur.strip())
        mods = ""
        if ops:
            last = ops[-1].split(None, 1)
            ops[-1] = last[0]
            mods = last[1] if len(last) > 1 else ""
        R = [regs_of(o) for o in ops]
        allr = lambda lst: set().union(*lst) if lst else set()
        if op == "s_nop":
            self.kind = "salu"; self.states = int(ops[0], 0) + 1
        elif op.startswith("v_mfma"):
            self.kind = "mfma"
            self.passes = 8 if "32x32x16" in op else 4 if "16x16x32" in op else 2 if "4x4x4" in op else None
            assert self.passes, op
            self.wr = R[0]; self.srcab = R[1] | R[2]; self.srcc = R[3]; self.rd = self.srcab | self.srcc
        elif op.startswith("v_"):
            self.kind = "trans" if op.startswith(TRANS) else "valu"
            self.dpp = "_dpp" in op or "quad_perm" in mods or "row_" in mods
            if op.startswith("v_cmp"):
                self.wr = R[0]; self.rd = allr(R[1:])
                if op.startswith("v_cmpx"): self.wr = self.wr | EXEC
            elif op.startswith("v_permlane") :
                self.wr = R[0] | R[1]; self.rd = R[0] | R[1]; self.kind = "permlane"
            elif op.startswith(("v_add_co", "v_sub_co", "v_addc_co", "v_subb_co")):
                self.wr = R[0] | R[1]; self.rd = allr(R[2:])
            else:
                self.wr = R[0]; self.rd = allr(R[1:])
                if op.startswith(("v_fmac", "v_dot2c", "v_pk_fmac")) or self.dpp: self.rd = self.rd | R[0]
                if op.startswith("v_cndmask") and len(ops) == 3: self.rd = self.rd | VCC
        elif op.startswith("ds_"):
            self.kind = "ds"
            if op.startswith(("ds_read", "ds_bpermute", "ds_permute", "ds_swizzle")):
                self.wr = R[0]; self.rd = allr(R[1:])
            else:
                self.rd = allr(R)
        elif op.startswith(("buffer_", "global_")):
            self.kind = "vmem"
            islds = " lds" in (" " + mods) or "load_lds" in op
            if op in ("buffer_inv", "buffer_wbl2"):
                pass
            elif "load" in op and not islds:
                self.wr = R[0]; self.rd = allr(R[1:])
            elif "atomic" in op and "sc0" in mods:
                self.wr = R[0]; self.rd = allr(R)
            else:
                self.rd = allr(R)
                if islds: self.lds_dma = True; self.rd = self.rd | M0
                if "store" in op and ("x4" in op or "x3" in op):
                    self.wide_data = R[0] if op.startswith("buffer_") else R[1]
        elif op.startswith("s_"):
            self.kind = "salu"
            if op.startswith(("s_cbranch", "s_branch")):
                self.target = ops[0]; self.kind = "branch"
            elif op.startswith(("s_cmp", "s_waitcnt", "s_barrier", "s_endpgm", "s_sleep", "s_setprio", "s_bitcmp")):
                self.rd = allr(R)
            elif op.startswith(("s_load", "s_memtime", "s_memrealtime")):
                self.kind = "smem"; self.wr = R[0]; self.rd = allr(R[1:])
            else:
                self.wr = R[0]; self.rd = allr(R[1:])
                if "saveexec" in op: self.wr = self.wr | EXEC
        else:
            raise ValueError("unknown instruction: " + text)

def need(p, c):
    n = 0
    isv = lambda x: x.kind in ("valu", "trans", "permlane")
    pv = {r for r in p.wr if r[0] in "va"}
    ps = {r for r in p.wr if r[0] == "s"}
    if p.kind == "mfma":
        P = p.passes
        idx = {2: 0, 4: 1, 8: 2, 16: 3}[P]
        if c.kind == "mfma":
            if c.srcc & pv:
                if c.srcc == p.wr and c.passes == P: n = max(n, [2, 0, 0, 0][idx])
                else: n = max(n, [4, 6, 10, 18][idx])
            if c.srcab & pv: n = max(n, [5, 8, 12, 20][idx])
            if (c.wr & pv) and not (c.srcc & pv): n = max(n, [5, 8, 12, 20][idx])
        elif isv(c) or c.kind in ("ds", "vmem"):
            if (c.rd | c.wr) & pv: n = max(n, [5, 8, 12, 20][idx])
        if isv(c) and (c.wr & p.srcc): n = max(n, [1, 3, 7, 15][idx])
    if p.op.startswith("v_dot") and ((c.rd | c.wr) & pv) and c.op != p.op: n = max(n, 3)
    if isv(p):
        if c.kind == "mfma" and (c.rd & pv): n = max(n, 2)
        if c.kind == "mfma" and (ps & EXEC): n = max(n, 4)
        if isv(c) and c.dpp and (c.rd & pv): n = max(n, 2)
        if isv(c) and c.dpp and (ps & EXEC): n = max(n, 5)
        if c.kind == "permlane" and (c.rd & pv): n = max(n, 2)
        if c.op.startswith(("v_readlane", "v_readfirstlane")) and (c.rd & pv): n = max(n, 1)
        if isv(c) and (c.rd & ps): n = max(n, 2)
        if c.op.startswith(("v_readlane", "v_writelane")) and (c.rd & ps): n = max(n, 4)
        if c.kind == "vmem" and (c.rd & ps): n = max(n, 5)
        if c.kind in ("salu", "branch") and (c.rd & ps): n = max(n, 1)
        if c.kind == "branch" and "vcc" in c.op and (ps & VCC): n = max(n, 2)
        if p.kind == "trans" and isv(c) and c.kind != "trans" and (c.rd & pv): n = max(n, 1)
        if p.kind == "trans" and c.kind in ("ds", "vmem") and (c.rd & pv): n = max(n, 1)
    if p.kind == "salu" and (p.wr & M0) and c.kind == "vmem" and c.lds_dma: n = max(n, 1)
    if p.kind == "vmem" and p.wide_data:
        if c.wr & p.wide_data: n = max(n, 2 if isv(c) else 1)
    return n

class Emit:
    def __init__(self):
        self.ins = []
        self.vm_issued = 0; self.vm_done = 0
        self.lg_issued = 0; self.lg_done = 0
        self._lab = 0
    def raw(self, text):
        self.ins.append(Ins("." if False else "; " + text) if False else Ins.__new__(Ins))
        x = self.ins[-1]
        x.text = text; x.op = ""; x.kind = "none"; x.wr = set(); x.rd = set(); x.passes = 0; x.srcc = set(); x.srcab = set()
        x.dpp = False; x.wide_data = set(); x.lds_dma = False; x.states = 0; x.is_label = False; x.target = None
    def __call__(self, text):
        last = None
        for line in text.strip("\n").split("\n"):
            line = line.strip()
            if not line: continue
            x = Ins(line)
            self.ins.append(x)
            if x.kind == "vmem":
                self.vm_issued += 1; last = self.vm_issued
            elif x.kind == "ds":
                self.lg_issued += 1; last = self.lg_issued
            elif x.op == "s_waitcnt":
                m = re.search(r"vmcnt\((\d+)\)", line)
                if m: self.vm_done = max(self.vm_done, self.vm_issued - int(m.group(1)))
                m = re.search(r"lgkmcnt\((\d+)\)", line)
                if m: self.lg_done = max(self.lg_done, self.lg_issued - int(m.group(1)))
        return last
    def label(self, name=None):
        if name is None:
            self._lab += 1; name = f"L{self._lab}"
        self.ins.append(Ins(name + ":"))
        return name
    def newlabel(self, base="L"):
        self._lab += 1
        return f"{base}{self._lab}"
    def c(self, text):
        self.raw("    ; " + text)
    def wait_vm(self, tok):
        if tok is None or tok <= self.vm_done: return
        n = min(self.vm_issued - tok, 63)
        self(f"s_waitcnt vmcnt({n})")
    def wait_lg(self, tok):
        if tok is None or tok <= self.lg_done: return
        n = min(self.lg_issued - tok, 15)
        self(f"s_waitcnt lgkmcnt({n})")
    def wait_both(self, vtok, ltok):
        p = []
        if vtok is not None and vtok > self.vm_done: p.append(f"vmcnt({min(self.vm_issued - vtok, 63)})")
        if ltok is not None and ltok > self.lg_done: p.append(f"lgkmcnt({min(self.lg_issued - ltok, 15)})")
        if p: self("s_waitcnt " + " ".join(p))
    def state(self):
        return (self.vm_issued, self.vm_done, self.lg_issued, self.lg_done)
    def set_state(self, st):
        self.vm_issued, self.vm_done, self.lg_issued, self.lg_done = st

    def finish(self):
        W = 24
        out = []
        hist = []
        saved = {}
        nops = 0
        back = {}
        for it in range(2):
            out = []; hist = []; saved = {k: list(vv) for k, vv in back.items()}; nops = 0
            seen = set()
            for x in self.ins:
                if x.is_label:
                    name = x.text.strip()[:-1]
                    seen.add(name)
                    for h in saved.get(name, []):
                        hist = hist + h
                    out.append(x)
                    continue
                if x.kind == "none":
                    out.append(x); continue
                req = 0
                for p, d in hist:
                    r = need(p, x) - d
                    if r > req: req = r
                while req > 0:
                    n = min(req, 16)
                    nop = Ins(f"s_nop {n-1}")
                    out.append(nop); nops += 1
                    hist = [(p, d + n) for p, d in hist if d + n < W]
                    req -= n
                out.append(x)
                hist = [(p, d + x.states) for p, d in hist if d + x.states < W]
                hist.append((x, 0))
                if x.kind == "branch":
                    if x.target in seen:
                        back.setdefault(x.target, [])
                        if it == 0: back[x.target].append(list(hist))
                    else:
                        saved.setdefault(x.target, []).append(list(hist))
                    if x.op == "s_branch": hist = []
                if x.op == "s_endpgm": hist = []
        self.nops = nops
        lines = []
        for x in out:
            if x.is_label or x.kind == "none": lines.append(x.text)
            else: lines.append("    " + x.text)
        return "\n".join(lines) + "\n"
```

```python
import sys, math
sys.path.insert(0, "gen")
from emit import *

NAME = "parallel_sum__ssm_conv_s5__mixer_channel_mlp__prompt_kernel"
WS_EPOCH = 0
WS_FB = 0x1000
WS_FA = 0x11000
WS_FP = 0x21000
WS_AGG = 0x31000
WS_B2S = [0x60000, 0x1F0000]
WS_A2 = [0x400000, 0x900000]
WS_PART = 0xF00000
WS_TS = 0x1400000
WS_SIZE = 0x1500000
FLS = 64
S_W = 3
SRD_X, SRD_W, SRD_WS, SRD_OUT, SRD_T1, SRD_T2 = 4, 8, 12, 16, 20, 24
S_TAG, S_TAG2, S_I, S_J, S_SIDE = 28, 29, 30, 31, 32
S_PW = 33
S_XO = 36
S_WO = 40
S_MX, S_MW = 45, 46
S_T = 48
P0 = 64
def ptr(n): return s(P0 + 2*n, 2)
S_TS = 98
LOG2E = 1.4426950408889634
EPS = 1e-5
import struct
def fbits(x): return "0x%08x" % struct.unpack("<I", struct.pack("<f", x))[0]

POLL_MAX = 20000
LDS_STAT = 160000
LDS_RED = 16384
RED_RS = 336
RED_W = 64 * RED_RS

class G:
    def __init__(self, stop=None, ts=False):
        self.k = Emit()
        self.stop = stop
        self.ts = ts
        self.nts = 0

    def stamp(self, idx):
        if not self.ts: return
        k = self.k
        k(f"s_memrealtime {s(S_TS,2)}")
        k("s_waitcnt lgkmcnt(0)")
        k(f"v_writelane_b32 v255, s{S_TS}, {idx}")

    def stamp_flush(self):
        if not self.ts: return
        k = self.k
        k(f"""s_lshl_b32 s{S_T}, s2, 2
        s_add_u32 s{S_T}, s{S_T}, s{S_W}
        s_lshl_b32 s{S_T}, s{S_T}, 6
        s_add_u32 s{S_T}, s{S_T}, {WS_TS}
        v_mbcnt_lo_u32_b32 v254, -1, 0
        v_mbcnt_hi_u32_b32 v254, -1, v254
        v_cmp_gt_u32 vcc, 16, v254
        v_lshlrev_b32 v254, 2, v254
        s_and_saveexec_b64 {s(S_T+2,2)}, vcc
        buffer_store_dword v255, v254, {s(SRD_WS,4)}, s{S_T} offen
        s_mov_b64 exec, {s(S_T+2,2)}""")

    def srd(self, base, pn, size):
        self.k(f"""s_mov_b32 s{base}, s{P0+2*pn}
        s_and_b32 s{base+1}, s{P0+2*pn+1}, 0xffff
        s_mov_b32 s{base+2}, {size}
        s_mov_b32 s{base+3}, 0x20000""")

    def poll(self, loads, check, name):
        k = self.k
        top = k.newlabel(name); done = k.newlabel(name + "d")
        k(f"s_mov_b32 s{S_T+15}, {POLL_MAX}")
        k.label(top)
        loads()
        k("s_waitcnt vmcnt(0)")
        check()
        k(f"""s_cbranch_vccz {done}
        s_sub_u32 s{S_T+15}, s{S_T+15}, 1
        s_cmp_lg_u32 s{S_T+15}, 0
        s_cbranch_scc1 {top}""")
        k.label(done)

    def set_flag(self, soff_sgpr, vtmp):
        k = self.k
        k(f"""v_mov_b32 v{vtmp}, s{S_TAG}
        v_mov_b32 v{vtmp+1}, 0
        s_mov_b64 exec, 1
        buffer_store_dword v{vtmp}, v{vtmp+1}, {s(SRD_WS,4)}, s{soff_sgpr} offen sc1
        s_mov_b64 exec, -1""")

    def prologue(self):
        k = self.k
        k(f"""s_cmp_ge_u32 s2, 256
        s_cbranch_scc1 L_end
        s_load_dwordx16 {s(P0,16)}, s[0:1], 0
        s_load_dwordx16 {s(P0+16,16)}, s[0:1], 64
        s_load_dwordx2 {s(P0+32,2)}, s[0:1], 128
        v_lshrrev_b32 v1, 6, v0
        v_and_b32 v0, 63, v0
        v_readfirstlane_b32 s{S_W}, v1
        s_and_b32 s{S_SIDE}, s2, 1
        s_bfe_u32 s{S_T}, s2, 0x20001
        s_lshr_b32 s{S_T+1}, s2, 6           ; c = id>>6
        s_lshl_b32 s{S_I}, s{S_T+1}, 2
        s_add_u32 s{S_I}, s{S_I}, s{S_T}
        s_bfe_u32 s{S_J}, s2, 0x30003        ; j = (id>>3)&7
        s_lshr_b32 s{S_PW}, s2, 1
        s_lshl_b32 s{S_PW}, s{S_PW}, 2
        s_add_u32 s{S_PW}, s{S_PW}, s{S_W}
        """)
        if self.ts:
            k("v_mov_b32 v255, 0")
        k("s_waitcnt lgkmcnt(0)")
        k(f"s_load_dword s{S_TAG}, {ptr(16)}, {WS_EPOCH}")
        self.srd(SRD_X, 0, 2621440)
        self.srd(SRD_WS, 16, WS_SIZE)
        self.srd(SRD_OUT, 14, 5242880)
        self.stamp(0)
        k(f"""s_cmp_eq_u32 s{S_SIDE}, 1
        s_cbranch_scc1 L_mlp""")

    def make_tag(self):
        k = self.k
        k(f"""s_waitcnt lgkmcnt(0)
        s_mul_i32 s{S_TAG}, s{S_TAG}, 0x9E3779B1
        s_add_u32 s{S_TAG}, s{S_TAG}, 0x7F4A7C15
        s_xor_b32 s{S_TAG2}, s{S_TAG}, 0x5bd1e995
        s_brev_b32 s{S_TAG2}, s{S_TAG2}""")

    def count_started(self, vt):
        k = self.k
        skip = k.newlabel("cs")
        k(f"""v_mov_b32 v{vt}, 0
        v_mov_b32 v{vt+1}, 1
        s_mov_b64 exec, 1
        global_atomic_add v{vt}, v{vt+1}, {ptr(15)} sc1
        s_mov_b64 exec, -1""")

    def ssm(self):
        k = self.k
        ACC = 16
        WSA = 96
        STA = 116
        ONE = 132
        FR = [136, 184]
        CN = 232
        XE, XO, WA, WB, RD0, RD1, RX0, RX1, RW0, RW1 = 1, 2, 3, 4, 5, 6, 7, 8, 9, 10
        T0 = 11
        STG0, STGS = 16384, 36864
        acc = lambda a_, tt: ACC + (a_*10 + tt)*4
        k.c("================ SSM side, phase 1")
        k(f"""s_cmp_lt_u32 s{S_W}, 2
        s_cselect_b32 s{SRD_W}, s{P0+6}, s{P0+8}
        s_cselect_b32 s{SRD_W+1}, s{P0+7}, s{P0+9}
        s_and_b32 s{SRD_W+1}, s{SRD_W+1}, 0xffff
        s_mov_b32 s{SRD_W+2}, 819200
        s_mov_b32 s{SRD_W+3}, 0x20000
        v_lshrrev_b32 v11, 4, v0                 ; g
        v_and_b32 v12, 7, v0
        v_xor_b32 v12, v12, v11
        v_lshlrev_b32 v12, 4, v12
        v_lshrrev_b32 v13, 3, v0                 ; l>>3
        v_mul_u32_u24 v{WA}, 1280, v13
        v_add_u32 v{WA}, v{WA}, v12
        v_and_b32 v13, 3, v13
        v_lshrrev_b32 v14, 5, v0
        v_lshl_add_u32 v13, v14, 3, v13
        v_mul_u32_u24 v{XE}, 1280, v13
        v_add_u32 v{XE}, v{XE}, v12
        v_xor_b32 v{XO}, 64, v{XE}
        s_and_b32 s{S_T}, s{S_W}, 1
        s_lshl_b32 s{S_T+1}, s{S_T}, 6
        v_xor_b32 v{WA}, s{S_T+1}, v{WA}
        v_xor_b32 v{WB}, 64, v{WA}
        s_lshl_b32 s{S_T+2}, s{S_I}, 7
        s_lshl_b32 s{S_T+3}, s{S_W}, 5
        s_add_u32 s{S_T+2}, s{S_T+2}, s{S_T+3}
        s_mul_i32 s{S_XO}, s{S_T+2}, 1280
        s_add_u32 s{S_XO+1}, s{S_XO}, {16*1280}
        s_add_u32 s{S_XO+2}, s{S_XO}, {4*1280}
        s_add_u32 s{S_XO+3}, s{S_XO}, {20*1280}
        s_mul_i32 s{S_T+2}, s{S_J}, 80
        s_mul_i32 s{S_T+3}, s{S_T}, 40
        s_add_u32 s{S_T+2}, s{S_T+2}, s{S_T+3}
        s_mul_i32 s{S_WO}, s{S_T+2}, 1280
        s_add_u32 s{S_WO+1}, s{S_WO}, {8*1280}
        s_add_u32 s{S_WO+2}, s{S_WO}, {16*1280}
        s_add_u32 s{S_WO+3}, s{S_WO}, {24*1280}
        s_add_u32 s{S_WO+4}, s{S_WO}, {32*1280}
        s_lshl_b32 s{S_MX}, s{S_W}, 12
        s_mul_i32 s{S_MW}, s{S_W}, 5120
        """)
        def dma_list(t):
            base = STG0 + (t % 4)*STGS
            L = []
            for e in range(4):
                L.append((f"s_add_u32 m0, s{S_MX}, {base + e*1024 - t*128}",
                          f"buffer_load_dwordx4 v{XE if e%2==0 else XO}, {s(SRD_X,4)}, s{S_XO+e} offen offset:{t*128} lds"))
            for e in range(5):
                L.append((f"s_add_u32 m0, s{S_MW}, {base + 16384 + e*1024 - t*128}",
                          f"buffer_load_dwordx4 v{WA if e%2==0 else WB}, {s(SRD_W,4)}, s{S_WO+e} offen offset:{t*128} lds"))
            return L
        stage_tok = {}
        def dma_stage(t):
            for m, ld in dma_list(t):
                k(m); stage_tok[t] = k(ld)
        dma_stage(0)
        k(f"""v_and_b32 v11, 15, v0
        s_mul_i32 s{S_T}, s{S_J}, 160
        v_lshl_add_u32 v11, v11, 1, s{S_T}""")
        for b in range(5):
            k(f"global_load_ushort v{CN+10+b}, v11, {ptr(1)} offset:{32*b}")
            k(f"global_load_ushort v{CN+15+b}, v11, {ptr(2)} offset:{32*b}")
            vec_tok = k(f"global_load_ushort v{CN+b}, v11, {ptr(7)} offset:{32*b}")
        self.srd(SRD_T1, 5, 819200)
        self.srd(SRD_T2, 6, 819200)
        SU, SC = 34, 35
        k(f"""s_sub_u32 s{S_T}, s{S_PW}, 400
        s_cmp_lt_u32 s{S_PW}, 400
        s_cselect_b32 s{SU}, s{S_PW}, s{S_T}
        s_mul_i32 s{SC}, s{SU}, 6554
        s_lshr_b32 s{SC}, s{SC}, 16              ; c' = unit/10
        s_mul_i32 s{S_T}, s{SC}, 10
        s_sub_u32 s{S_T}, s{SU}, s{S_T}          ; u
        s_mul_i32 s{S_T+1}, s{SC}, {16*1280}
        s_lshl_b32 s{S_T+2}, s{S_T}, 7
        s_add_u32 s{S_T+1}, s{S_T+1}, s{S_T+2}
        s_add_u32 s{S_T+2}, s{S_T+1}, {8*1280}
        s_mul_i32 s{S_T+3}, s{SC}, 40
        s_lshl_b32 s{S_T+4}, s{S_T}, 2
        s_add_u32 s{S_T+3}, s{S_T+3}, s{S_T+4}
        s_lshl_b32 s{S_T+3}, s{S_T+3}, 10
        s_add_u32 s47, s{S_T+3}, {WS_B2S[0]}
        v_lshrrev_b32 v12, 3, v0
        v_mul_u32_u24 v12, 1280, v12
        v_and_b32 v13, 7, v0
        v_lshl_add_u32 v12, v13, 4, v12
        s_mov_b32 m0, s{S_MX}
        """)
        k(f"buffer_load_dwordx4 v12, {s(SRD_T1,4)}, s{S_T+1} offen lds")
        k(f"s_add_u32 m0, s{S_MX}, 1024")
        k(f"buffer_load_dwordx4 v12, {s(SRD_T1,4)}, s{S_T+2} offen lds")
        k(f"s_add_u32 m0, s{S_MX}, 2048")
        k(f"buffer_load_dwordx4 v12, {s(SRD_T2,4)}, s{S_T+1} offen lds")
        k(f"s_add_u32 m0, s{S_MX}, 3072")
        swz_tok = k(f"buffer_load_dwordx4 v12, {s(SRD_T2,4)}, s{S_T+2} offen lds")
        for t in (1, 2, 3): dma_stage(t)
        self.make_tag()
        k(f"""v_and_b32 v11, 15, v0
        v_lshrrev_b32 v12, 4, v0
        v_lshrrev_b32 v13, 1, v11
        v_xor_b32 v13, v13, v12
        v_lshlrev_b32 v13, 4, v13
        v_lshl_add_u32 v{RD0}, v11, 7, v13
        v_xor_b32 v{RD1}, 64, v{RD0}
        """)
        for r in range(4): k(f"v_mov_b32 v{ONE+r}, 0x3f803f80")
        k.wait_vm(vec_tok)
        for b in range(5):
            k(f"""v_lshlrev_b32 v{CN+b}, 16, v{CN+b}
            v_lshlrev_b32 v{CN+10+b}, 16, v{CN+10+b}
            v_lshlrev_b32 v{CN+15+b}, 16, v{CN+15+b}
            v_mul_f32 v{CN+b}, {fbits(LOG2E)}, v{CN+b}""")
        for b in range(5): k(f"v_exp_f32 v{CN+b}, v{CN+b}")
        for b in range(5):
            k(f"""v_cvt_pk_bf16_f32 v{CN+b}, v{CN+b}, v{CN+b}
            v_and_b32 v{CN+b}, 0xffff0000, v{CN+b}
            v_mul_f32 v{CN+5+b}, v{CN+b}, v{CN+15+b}
            v_mul_f32 v{CN+b}, v{CN+b}, v{CN+10+b}
            v_mul_f32 v{CN+5+b}, 0.15915494, v{CN+5+b}
            v_mul_f32 v{CN+b}, {fbits(LOG2E)}, v{CN+b}""")
        def set_rd(t):
            base = STG0 + (t % 4)*STGS
            k(f"""v_add_u32 v{RW0}, {base}, v{RD0}
            v_add_u32 v{RW1}, {base}, v{RD1}
            v_add_u32 v{RX0}, s{S_MX}, v{RW0}
            v_add_u32 v{RX1}, s{S_MX}, v{RW1}""")
        def reads(n):
            st = FR[n % 2]; ks = n % 2
            L = []
            for a_ in range(2):
                L.append(f"ds_read_b128 {v(st+4*a_,4)}, v{RX0 if ks==0 else RX1} offset:{a_*2048}")
            for tt in range(10):
                L.append(f"ds_read_b128 {v(st+8+4*tt,4)}, v{RW0 if ks==0 else RW1} offset:{16384+tt*2048}")
            return L
        set_rd(0)
        k.wait_vm(stage_tok[0])
        k("s_barrier")
        self.stamp(1)
        for r in reads(0): k(r)
        st_tok = None
        for n in range(20):
            st = FR[n % 2]
            k.c(f"---- ssm k-step {n}")
            k("s_waitcnt lgkmcnt(0)")
            fill = []
            if n % 2 == 1 and n + 1 < 20:
                T = (n + 1)//2
                k.wait_vm(stage_tok[T])
                k("s_barrier")
                set_rd(T)
            if n + 1 < 20: fill += [(r,) for r in reads(n+1)]
            if n % 2 == 1 and (n+1)//2 + 3 < 10:
                Tn = (n+1)//2 + 3
                fill += [("dma", Tn, m, ld) for m, ld in dma_list(Tn)]
            mf = []
            c0 = lambda r, cnt: "0" if n == 0 else v(r, cnt)
            for tt in range(10):
                for a_ in range(2):
                    mf.append(f"v_mfma_f32_16x16x32_bf16 {v(acc(a_,tt),4)}, {v(st+4*a_,4)}, {v(st+8+4*tt,4)}, {c0(acc(a_,tt),4)}")
            for a_ in range(2):
                mf.append(f"v_mfma_f32_16x16x32_bf16 {v(STA+4*a_,4)}, {v(st+4*a_,4)}, {v(ONE,4)}, {c0(STA+4*a_,4)}")
                mf.append(f"v_mfma_f32_16x16x32_bf16 {v(STA+8+4*a_,4)}, {v(st+4*a_,4)}, {v(st+4*a_,4)}, {c0(STA+8+4*a_,4)}")
            for i_, m in enumerate(mf):
                k(m)
                if i_ < len(fill):
                    f = fill[i_]
                    if f[0] == "dma":
                        k(f[2]); stage_tok[f[1]] = k(f[3])
                    else: k(f[0])
            assert len(fill) <= len(mf)
            for half in range(2):
                sk = k.newlabel("ws")
                k(f"""s_cmp_lg_u32 s{S_W}, {2*(n%2)+half}
                s_cbranch_scc1 {sk}""")
                for q in range(5):
                    cc = "0" if n < 2 else v(WSA+4*q, 4)
                    k(f"v_mfma_f32_16x16x32_bf16 {v(WSA+4*q,4)}, {v(ONE,4)}, {v(st+8+4*(5*half+q),4)}, {cc}")
                k.label(sk)
            if n == 0:
                k.wait_vm(swz_tok)
                k(f"""v_and_b32 v11, 15, v0
                v_lshlrev_b32 v11, 7, v11
                v_lshrrev_b32 v12, 5, v0
                v_lshl_add_u32 v11, v12, 11, v11
                v_bfe_u32 v12, v0, 4, 1
                v_lshl_add_u32 v11, v12, 4, v11
                v_add_u32 v11, s{S_MX}, v11
                v_lshlrev_b32 v12, 4, v0""")
                for ss in range(4):
                    k(f"ds_read_b128 {a(200+4*ss,4)}, v11 offset:{32*ss}")
                k("s_waitcnt lgkmcnt(0)")
                for ss in range(4):
                    st_tok = k(f"buffer_store_dwordx4 {a(200+4*ss,4)}, v12, {s(SRD_WS,4)}, s47 offen offset:{1024*ss} sc1")
            if n == 5:
                k.wait_vm(st_tok)
                k(f"""s_lshl_b32 s{S_T}, s{SU}, 6
                s_add_u32 s{S_T}, s{S_T}, {WS_FB}""")
                self.set_flag(S_T, 11)
                k(f"""v_lshlrev_b32 v11, 3, v0
                v_mov_b32 v12, 0
                v_mov_b32 v13, 0
                ds_write_b64 v11, v[12:13]
                ds_write_b64 v11, v[12:13] offset:512
                ds_write_b64 v11, v[12:13] offset:1024""")
        self.stamp(2)
        self.ssm_epilogue(ACC, WSA, STA, CN)

    def cpow(self, dre, dim, n, zr, zi, t):
        k = self.k
        k(f"""v_mul_f32 v{t}, {n}, v{zi}
        v_mul_f32 v{dre}, {n}, v{zr}
        v_fract_f32 v{t}, v{t}
        v_exp_f32 v{dre}, v{dre}
        v_sin_f32 v{dim}, v{t}
        v_cos_f32 v{t}, v{t}
        v_mul_f32 v{dim}, v{dim}, v{dre}
        v_mul_f32 v{dre}, v{t}, v{dre}""")

    def ssm_epilogue(self, ACC, WSA, STA, CN):
        k = self.k
        acc = lambda a_, tt: ACC + (a_*10 + tt)*4
        tok = lambda r, tt: acc(r//4, tt) + r % 4
        L_AGG, L_CAR, L_WSP, L_ES = 0, 640, 2048, 4096
        AT, BT = 136, 144
        WSM = 152
        LR, LI = 172, 177
        ER, EI = 182, 187
        PR, PI = 192, 197
        TM = 202
        SEG = 15
        k.c("================ SSM epilogue")
        self.b2_prefetch(0)
        k(f"""v_and_b32 v11, 15, v0
        v_mul_u32_u24 v12, 80, v11
        s_mul_i32 s{S_T}, s{S_W}, 20
        v_add_u32 v13, s{S_T}, v12""")
        for q in range(5):
            k(f"ds_write_b32 v13, v{WSA+4*q} offset:{L_WSP+4*q}")
        k(f"""v_lshrrev_b32 v14, 4, v0
        v_mul_u32_u24 v13, 80, v14""")
        for a_ in range(2):
            for r in range(4):
                k(f"ds_bpermute_b32 v{BT+4*a_+r}, v13, v{STA+8+4*a_+r} offset:{4*r}")
        k(f"""s_lshl_b32 s{S_T}, s{S_W}, 2
        v_add_u32 v{SEG}, s{S_T}, v14            ; segment s = 4w+g
        v_sub_u32 v13, 15, v{SEG}
        v_lshlrev_b32 v13, 3, v13
        v_cvt_f32_u32 v13, v13""")
        for b in range(5): self.cpow(LR+b, LI+b, "1.0", CN+b, CN+5+b, TM)
        for b in range(5): self.cpow(PR+b, PI+b, "v13", CN+b, CN+5+b, TM)
        k("s_waitcnt lgkmcnt(0)")
        k("s_barrier")
        for q in range(5):
            k(f"ds_read_b128 {v(WSM+4*q,4)}, v12 offset:{L_WSP+16*q}")
        k(f"s_mov_b32 s{S_T}, {fbits(1.0/640)}")
        k(f"""s_lshl_b32 s{S_T+1}, s{S_W}, 8
        v_lshlrev_b32 v13, 6, v14
        v_add_u32 v13, s{S_T+1}, v13
        v_add_u32 v13, {LDS_STAT}, v13""")
        for r in range(8):
            sm = STA + r
            k(f"""v_mul_f32 v{sm}, s{S_T}, v{sm}
            v_mul_f32 v{TM}, v{sm}, v{sm}
            v_fma_f32 v{BT+r}, v{BT+r}, s{S_T}, -v{TM}
            v_max_f32 v{BT+r}, 0, v{BT+r}
            v_add_f32 v{BT+r}, {fbits(EPS)}, v{BT+r}
            v_rsq_f32 v{AT+r}, v{BT+r}""")
        for r in range(8):
            k(f"v_mul_f32 v{BT+r}, v{STA+r}, -v{AT+r}".replace("v_mul_f32", "v_mul_f32_e64"))
            k(f"ds_write2_b32 v13, v{STA+r}, v{AT+r} offset0:{2*r} offset1:{2*r+1}")
        k("s_waitcnt lgkmcnt(8)")
        for q in range(10):
            k(f"v_add_f32 v{WSM+q}, v{WSM+q}, v{WSM+10+q}")
        for tt in range(10):
            wr = WSM + tt
            pair = wr & ~1; hi = wr & 1
            for a_ in range(2):
                for h in range(2):
                    d = acc(a_, tt) + 2*h; t_ = TM + 2*((tt*4 + a_*2 + h) % 8)
                    k(f"v_pk_mul_f32 {v(t_,2)}, {v(BT+4*a_+2*h,2)}, {v(pair,2)} op_sel:[0,{hi}] op_sel_hi:[1,{hi}]")
                    k(f"v_pk_fma_f32 {v(d,2)}, {v(AT+4*a_+2*h,2)}, {v(d,2)}, {v(t_,2)}")
        for r in range(1, 8):
            for b in range(5):
                pr = tok(0, b) if r == 1 else ER+b
                pi = tok(0, 5+b) if r == 1 else EI+b
                k(f"""v_fma_f32 v{TM+b}, v{LR+b}, v{pr}, v{tok(r,b)}
                v_fma_f32 v{TM+5+b}, v{LR+b}, v{pi}, v{tok(r,5+b)}""")
            for b in range(5):
                pr = tok(0, b) if r == 1 else ER+b
                pi = tok(0, 5+b) if r == 1 else EI+b
                k(f"""v_fma_f32 v{TM+10+b}, -v{LI+b}, v{pi}, v{TM+b}
                v_fma_f32 v{EI+b}, v{LI+b}, v{pr}, v{TM+5+b}""")
            for b in range(5):
                k(f"v_mov_b32 v{ER+b}, v{TM+10+b}")
        k(f"""v_lshlrev_b32 v12, 3, v11            ; col*8
        v_mul_u32_u24 v13, 768, v{SEG}
        v_mul_u32_u24 v14, 48, v11
        v_add_u32 v13, v13, v14""")
        for b in range(5):
            k(f"""v_mul_f32 v{TM+b}, v{PR+b}, v{ER+b}
            v_mul_f32 v{TM+5+b}, v{PR+b}, v{EI+b}
            v_fma_f32 v{TM+b}, -v{PI+b}, v{EI+b}, v{TM+b}
            v_fma_f32 v{TM+5+b}, v{PI+b}, v{ER+b}, v{TM+5+b}
            ds_add_f32 v12, v{TM+b} offset:{L_AGG+128*b}
            ds_add_f32 v12, v{TM+5+b} offset:{L_AGG+128*b+4}
            ds_write2_b32 v13, v{ER+b}, v{EI+b} offset0:{(L_ES//4+2*b) % 256} offset1:{(L_ES//4+2*b+1) % 256}""".replace("v13,", "v14,") if False else
            f"""v_mul_f32 v{TM+b}, v{PR+b}, v{ER+b}
            v_mul_f32 v{TM+5+b}, v{PR+b}, v{EI+b}
            v_fma_f32 v{TM+b}, -v{PI+b}, v{EI+b}, v{TM+b}
            v_fma_f32 v{TM+5+b}, v{PI+b}, v{ER+b}, v{TM+5+b}
            ds_add_f32 v12, v{TM+b} offset:{L_AGG+128*b}
            ds_add_f32 v12, v{TM+5+b} offset:{L_AGG+128*b+4}
            ds_write_b32 v13, v{ER+b} offset:{L_ES+8*b}
            ds_write_b32 v13, v{EI+b} offset:{L_ES+8*b+4}""")
        k("s_waitcnt lgkmcnt(0)")
        k("s_barrier")
        k(f"""s_mul_i32 s{S_T}, s{S_W}, 20
        v_add_u32 v13, s{S_T}, v0
        v_lshlrev_b32 v{TM+4}, 3, v13
        ds_read_b32 v{TM}, v{TM+4} offset:{L_AGG}
        ds_read_b32 v{TM+2}, v{TM+4} offset:{L_AGG+4}
        v_mov_b32 v{TM+1}, s{S_TAG}
        v_mov_b32 v{TM+3}, s{S_TAG2}
        v_lshlrev_b32 v13, 4, v13
        s_lshl_b32 s{S_T}, s{S_J}, 4
        s_add_u32 s{S_T+1}, s{S_T}, s{S_I}
        s_mul_i32 s{S_T+1}, s{S_T+1}, 1280
        s_add_u32 s{S_T+1}, s{S_T+1}, {WS_AGG}
        s_mov_b64 exec, 0xfffff
        s_waitcnt lgkmcnt(0)
        buffer_store_dwordx4 {v(TM,4)}, v13, {s(SRD_WS,4)}, s{S_T+1} offen sc1
        s_mov_b64 exec, -1""")
        self.stamp(3)
        KR, KI = 152, 157
        CR, CI = 162, 167
        L8R, L8I = 136, 141
        for b in range(5):
            Lre, Lim = CN+10+b, CN+15+b
            k(f"""v_mul_f32 v{TM+4}, v{Lre}, v{Lre}
            v_fma_f32 v{TM+4}, v{Lim}, v{Lim}, v{TM+4}
            v_rcp_f32 v{TM+4}, v{TM+4}
            v_add_f32 v{TM+5}, -1.0, v{LR+b}
            v_mul_f32 v{TM+6}, v{TM+5}, v{Lre}
            v_fma_f32 v{TM+6}, v{LI+b}, v{Lim}, v{TM+6}
            v_mul_f32 v{TM+7}, v{LI+b}, v{Lre}
            v_fma_f32 v{TM+7}, -v{TM+5}, v{Lim}, v{TM+7}
            v_add_f32 v{TM+4}, v{TM+4}, v{TM+4}
            v_mul_f32 v{KR+b}, v{TM+6}, v{TM+4}
            v_mul_f32 v{KI+b}, v{TM+7}, v{TM+4}""")
        def bc(r):
            return v(r & ~1, 2), r & 1
        for b in range(5):
            (kr, sr), (ki, si) = bc(KR+b), bc(KI+b)
            for h in range(4):
                ur = tok(2*h, b); ui = tok(2*h, 5+b); t_ = TM + 4 + 4*(h % 2)
                k(f"""v_pk_mul_f32 {v(t_,2)}, {v(ur,2)}, {kr} op_sel:[0,{sr}] op_sel_hi:[1,{sr}]
                v_pk_mul_f32 {v(t_+2,2)}, {v(ur,2)}, {ki} op_sel:[0,{si}] op_sel_hi:[1,{si}]
                v_pk_fma_f32 {v(ur,2)}, {v(ui,2)}, {ki}, {v(t_,2)} op_sel:[0,{si},0] op_sel_hi:[1,{si},1] neg_lo:[1,0,0] neg_hi:[1,0,0]
                v_pk_fma_f32 {v(ui,2)}, {v(ui,2)}, {kr}, {v(t_+2,2)} op_sel:[0,{sr},0] op_sel_hi:[1,{sr},1]""")
        k(f"s_mov_b32 s{S_T}, {fbits(8.0)}")
        for b in range(5): self.cpow(L8R+b, L8I+b, f"s{S_T}", CN+b, CN+5+b, TM+4)
        for b in range(5):
            k(f"v_mov_b32 v{CR+b}, 0")
            k(f"v_mov_b32 v{CI+b}, 0")
        k(f"v_mul_u32_u24 v14, 48, v11")
        hdone = k.newlabel("hd")
        EB = 204
        for sp in range(15):
            if sp % 4 == 3:
                k(f"""s_cmp_le_u32 s{S_W}, {sp//4}
                s_cbranch_scc1 {hdone}""")
            k(f"""ds_read_b128 {v(EB,4)}, v14 offset:{L_ES+768*sp}
            ds_read_b128 {v(EB+4,4)}, v14 offset:{L_ES+768*sp+16}
            ds_read_b64 {v(EB+8,2)}, v14 offset:{L_ES+768*sp+32}
            v_cmp_lt_u32 vcc, {sp}, v{SEG}
            s_waitcnt lgkmcnt(0)
            s_mov_b64 exec, vcc""")
            for b in range(5):
                k(f"""v_fma_f32 v{EB+2*b}, v{L8R+b}, v{CR+b}, v{EB+2*b}
                v_fma_f32 v{EB+2*b+1}, v{L8R+b}, v{CI+b}, v{EB+2*b+1}
                v_fma_f32 v{EB+2*b+1}, v{L8I+b}, v{CR+b}, v{EB+2*b+1}
                v_fma_f32 v{CR+b}, -v{L8I+b}, v{CI+b}, v{EB+2*b}
                v_mov_b32 v{CI+b}, v{EB+2*b+1}""")
            k("s_mov_b64 exec, -1")
        k.label(hdone)
        VR, VI = 136, 141
        QR, QI = 182, 187
        k(f"""v_lshlrev_b32 v13, 3, v{SEG}
        v_cvt_f32_u32 v13, v13""")
        for b in range(5): self.cpow(PR+b, PI+b, "v13", CN+b, CN+5+b, TM)
        for b in range(5):
            k(f"""v_mul_f32 v{VR+b}, v{KR+b}, v{PR+b}
            v_mul_f32 v{VI+b}, v{KR+b}, v{PI+b}
            v_fma_f32 v{VR+b}, -v{KI+b}, v{PI+b}, v{VR+b}
            v_fma_f32 v{VI+b}, v{KI+b}, v{PR+b}, v{VI+b}
            v_mul_f32 v{TM}, v{KR+b}, v{CR+b}
            v_mul_f32 v{TM+1}, v{KR+b}, v{CI+b}
            v_fma_f32 v{TM}, -v{KI+b}, v{CI+b}, v{TM}
            v_fma_f32 v{CI+b}, v{KI+b}, v{CR+b}, v{TM+1}
            v_mov_b32 v{CR+b}, v{TM}""")
        k(f"""s_sub_u32 s{S_T}, s{S_I}, 1
        v_sub_u32 v13, s{S_T}, v{SEG}
        v_max_i32 v13, 0, v13
        v_lshlrev_b32 v13, 7, v13
        v_cvt_f32_u32 v13, v13""")
        for b in range(5): self.cpow(QR+b, QI+b, "v13", CN+b, CN+5+b, TM)
        GB = 204
        k(f"""v_mul_u32_u24 v13, 1280, v{SEG}
        v_lshl_add_u32 v13, v11, 4, v13
        s_mul_i32 s{S_T}, s{S_J}, {16*1280}
        s_add_u32 s{S_T}, s{S_T}, {WS_AGG}
        v_cmp_gt_u32 {s(S_T+2,2)}, s{S_I}, v{SEG}      ; valid = k < i""")
        self.stamp(4)
        def loads():
            for b in range(5):
                k(f"buffer_load_dwordx4 {v(GB+4*b,4)}, v13, {s(SRD_WS,4)}, s{S_T} offen offset:{256*b} sc1")
        def check():
            k(f"v_xor_b32 v14, s{S_TAG}, v{GB+1}")
            for b in range(5):
                if b: k(f"v_xor_b32 v{TM}, s{S_TAG}, v{GB+4*b+1}\nv_or_b32 v14, v14, v{TM}")
                k(f"v_xor_b32 v{TM}, s{S_TAG2}, v{GB+4*b+3}\nv_or_b32 v14, v14, v{TM}")
            k(f"v_cmp_ne_u32 vcc, 0, v14")
            k(f"s_and_b64 vcc, vcc, {s(S_T+2,2)}")
        self.poll(loads, check, "pg")
        self.stamp(5)
        k(f"s_mov_b64 exec, {s(S_T+2,2)}")
        for b in range(5):
            er, ei = GB+4*b, GB+4*b+2
            k(f"""v_mul_f32 v{er+1}, v{QR+b}, v{er}
            v_mul_f32 v{ei+1}, v{QR+b}, v{ei}
            v_fma_f32 v{er+1}, -v{QI+b}, v{ei}, v{er+1}
            v_fma_f32 v{ei+1}, v{QI+b}, v{er}, v{ei+1}
            ds_add_f32 v12, v{er+1} offset:{L_CAR+128*b}
            ds_add_f32 v12, v{ei+1} offset:{L_CAR+128*b+4}""")
        k("s_mov_b64 exec, -1")
        k("s_waitcnt lgkmcnt(0)")
        k("s_barrier")
        for b in range(5):
            k(f"ds_read_b64 {v(GB+2*b,2)}, v12 offset:{L_CAR+128*b}")
        L_T = 102400
        k(f"""s_mul_i32 s{S_T}, s{S_W}, 12800
        s_add_u32 s{S_T}, s{S_T}, {L_T}
        v_lshrrev_b32 v14, 4, v0
        v_mul_u32_u24 v13, 80, v11
        v_lshl_add_u32 v13, v14, 4, v13
        v_add_u32 v13, s{S_T}, v13
        v_lshrrev_b32 v{TM}, 2, v11
        v_lshl_add_u32 v{TM}, v14, 3, v{TM}
        v_mul_u32_u24 v{TM}, 80, v{TM}
        v_and_b32 v14, 3, v11
        v_lshl_add_u32 v14, v14, 3, v{TM}
        v_add_u32 v14, s{S_T}, v14
        v_lshlrev_b32 v12, 4, v0
        s_lshl_b32 s{S_T}, s{S_I}, 3
        s_lshl_b32 s{S_T+1}, s{S_W}, 1
        s_add_u32 s{S_T}, s{S_T}, s{S_T+1}
        s_mul_i32 s{S_T}, s{S_T}, 40
        s_mul_i32 s{S_T+1}, s{S_J}, 5
        s_add_u32 s{S_T}, s{S_T}, s{S_T+1}
        s_lshl_b32 s{S_T}, s{S_T}, 10
        s_add_u32 s{S_T}, s{S_T}, {WS_A2[0]}
        s_add_u32 s{S_T+1}, s{S_T}, 4096
        s_add_u32 s{S_T+2}, s{S_T}, {40*1024}
        s_add_u32 s{S_T+3}, s{S_T}, {40*1024+4096}
        s_waitcnt lgkmcnt(0)""")
        for b in range(5):
            cr, ci = GB+2*b, GB+2*b+1
            k(f"""v_fma_f32 v{CR+b}, v{VR+b}, v{cr}, v{CR+b}
            v_fma_f32 v{CI+b}, v{VR+b}, v{ci}, v{CI+b}
            v_fma_f32 v{CR+b}, -v{VI+b}, v{ci}, v{CR+b}
            v_fma_f32 v{CI+b}, v{VI+b}, v{cr}, v{CI+b}""")
        for r in range(8):
            for b in range(5):
                pr = CR+b if r == 0 else tok(r-1, b)
                pi = CI+b if r == 0 else tok(r-1, 5+b)
                k(f"""v_fmac_f32 v{tok(r,b)}, v{LR+b}, v{pr}
                v_fmac_f32 v{tok(r,5+b)}, v{LR+b}, v{pi}""")
            for b in range(5):
                pr = CR+b if r == 0 else tok(r-1, b)
                pi = CI+b if r == 0 else tok(r-1, 5+b)
                k(f"""v_fma_f32 v{tok(r,b)}, -v{LI+b}, v{pi}, v{tok(r,b)}
                v_fmac_f32 v{tok(r,5+b)}, v{LI+b}, v{pr}""")
        PK = 136
        for b in range(5):
            for comp in range(2):
                d = PK + 4*(2*b + comp); ng = "-" if comp else ""
                for h in range(4):
                    k(f"v_cvt_pk_bf16_f32 v{d+h}, {ng}v{tok(2*h,5*comp+b)}, {ng}v{tok(2*h+1,5*comp+b)}")
                k(f"ds_write_b128 v13, {v(d,4)} offset:{(32*b+16*comp)*80}")
        k("s_waitcnt lgkmcnt(0)")
        FRG = 16
        last = None
        toks = []
        for tt2 in range(2):
            for b in range(5):
                d = FRG + 4*(5*tt2 + b)
                k(f"ds_read_b64_tr_b16 {v(d,2)}, v14 offset:{(32*b)*80+32*tt2}")
                toks.append(k(f"ds_read_b64_tr_b16 {v(d+2,2)}, v14 offset:{(32*b+4)*80+32*tt2}"))
        for tt2 in range(2):
            for b in range(5):
                d = FRG + 4*(5*tt2 + b)
                k.wait_lg(toks[5*tt2+b])
                so = S_T + 2*tt2 + (1 if b == 4 else 0)
                last = k(f"buffer_store_dwordx4 {v(d,4)}, v12, {s(SRD_WS,4)}, s{so} offen offset:{1024*(b%4)} sc1")
        self.stamp(6)
        self.flag_a2(0, last)
        self.phase2(0)

    def flag_a2(self, side, last):
        k = self.k
        k(f"""s_lshl_b32 s{S_T}, s{S_I}, 3
        s_add_u32 s{S_T}, s{S_T}, s{S_J}
        s_lshl_b32 s{S_T}, s{S_T}, 2
        s_add_u32 s{S_T}, s{S_T}, s{S_W}
        s_lshl_b32 s34, s{S_T}, 6
        s_add_u32 s{S_T}, s34, {WS_FA + side*512*FLS}""")
        k.wait_vm(last)
        self.set_flag(S_T, 12)
        self.stamp(7)

    def b2_prefetch(self, side):
        k = self.k
        S = [40, 48][side]; KS = [10, 12][side]
        k.c("---- phase-2 weight prefetch into AGPRs")
        if side == 0:
            k(f"""v_min_u32 v11, 14, v0
            v_mul_u32_u24 v12, 86, v11
            v_lshrrev_b32 v12, 8, v12               ; l/3
            v_mul_u32_u24 v13, 3, v12
            v_sub_u32 v13, v11, v13
            v_mul_u32_u24 v12, 10, v12
            v_add_u32 v12, v12, v13
            v_lshlrev_b32 v12, 6, v12
            s_mul_i32 s{S_T}, s{S_W}, 10
            s_lshr_b32 s{S_T}, s{S_T}, 2
            s_mul_i32 s{S_T+1}, s{S_J}, 50
            s_add_u32 s{S_T}, s{S_T}, s{S_T+1}
            s_lshl_b32 s{S_T}, s{S_T}, 6
            s_add_u32 s{S_T}, s{S_T}, {WS_FB}""")
        else:
            k(f"""v_min_u32 v11, 23, v0
            v_lshrrev_b32 v12, 1, v11
            v_mul_u32_u24 v12, 10, v12
            v_and_b32 v13, 1, v11
            v_add_u32 v12, v12, v13
            v_lshlrev_b32 v12, 6, v12
            s_mul_i32 s{S_T}, s{S_W}, 120
            s_mul_i32 s{S_T+1}, s{S_J}, 5
            s_lshr_b32 s{S_T+1}, s{S_T+1}, 2
            s_add_u32 s{S_T}, s{S_T}, s{S_T+1}
            s_lshl_b32 s{S_T}, s{S_T}, 6
            s_add_u32 s{S_T}, s{S_T}, {WS_FB + 512*FLS}""")
        self.poll(lambda: k(f"buffer_load_dword v13, v12, {s(SRD_WS,4)}, s{S_T} offen sc1"),
                  lambda: k(f"v_cmp_ne_u32 vcc, s{S_TAG}, v13"), "pb")
        k(f"""v_lshlrev_b32 v12, 4, v0
        s_mul_i32 s{S_T}, s{S_J}, {5*S}
        s_mul_i32 s{S_T+1}, s{S_W}, {KS}
        s_add_u32 s{S_T}, s{S_T}, s{S_T+1}
        s_lshl_b32 s{S_T}, s{S_T}, 10
        s_add_u32 s{S_T}, s{S_T}, {WS_B2S[side]}""")
        for ss in range(KS):
            for cc in range(5):
                off = (cc*S + ss)*1024
                k(f"s_add_u32 s{S_T+1}, s{S_T}, {off}")
                self.b2_tok = k(f"buffer_load_dwordx4 {a((ss*5+cc)*4,4)}, v12, {s(SRD_WS,4)}, s{S_T+1} offen sc1")

    def mlp(self):
        k = self.k
        ACC = 16
        WSA = 112
        SUM, SQ = 136, 140
        ONE = 144
        FR = [148, 176]
        B1R = 204
        XE, XO, W0, RA, AE, AO, RXB = 1, 2, 3, 6, 7, 8, 206
        AEB, AOB = 9, 10
        STGS = 40960
        k.label("L_mlp")
        k.c("================ MLP side, phase 1")
        self.srd(SRD_W, 10, 1966080)
        k(f"""v_lshrrev_b32 v11, 4, v0
        v_and_b32 v12, 7, v0
        v_xor_b32 v12, v12, v11
        v_lshlrev_b32 v12, 4, v12
        v_lshrrev_b32 v13, 3, v0
        v_mul_u32_u24 v{XE}, 1280, v13
        v_add_u32 v{XE}, v{XE}, v12
        v_xor_b32 v{XO}, 64, v{XE}
        s_lshl_b32 s{S_T+2}, s{S_I}, 7
        s_lshl_b32 s{S_T+3}, s{S_W}, 5
        s_add_u32 s{S_T+2}, s{S_T+2}, s{S_T+3}
        s_mul_i32 s{S_XO}, s{S_T+2}, 1280
        s_add_u32 s{S_XO+1}, s{S_XO}, {8*1280}
        s_add_u32 s{S_XO+2}, s{S_XO}, {16*1280}
        s_add_u32 s{S_XO+3}, s{S_XO}, {24*1280}
        s_lshl_b32 s{S_MX}, s{S_W}, 12
        s_mul_i32 s{S_MW}, s{S_W}, 6144
        s_mul_i32 s{S_WO}, s{S_W}, {16*3072}
        s_mul_i32 s{S_T}, s{S_J}, 384
        s_add_u32 s{S_WO}, s{S_WO}, s{S_T}""")
        for n in range(3):
            k(f"""v_add_u32 v11, {64*n}, v0
            v_mul_u32_u24 v12, 2731, v11
            v_lshrrev_b32 v12, 16, v12              ; row = u/24
            v_mul_u32_u24 v13, 24, v12
            v_sub_u32 v13, v11, v13                 ; slot
            v_bfe_u32 v14, v12, 1, 1
            v_lshlrev_b32 v14, 2, v14
            v_xor_b32 v13, v13, v14
            v_mul_u32_u24 v12, 3072, v12
            v_lshl_add_u32 v{W0+n}, v13, 4, v12""")
        def dma_list(t):
            base = (t % 4)*STGS
            L = []
            for e in range(4):
                L.append((f"s_add_u32 m0, s{S_MX}, {base + 24576 + e*1024 - t*128}",
                          f"buffer_load_dwordx4 v{XE if e%2==0 else XO}, {s(SRD_X,4)}, s{S_XO+e} offen offset:{t*128} lds"))
            for n in range(6):
                L.append((f"s_add_u32 m0, s{S_MW}, {base + n*1024}\ns_add_u32 s{S_WO+1}, s{S_WO}, {(t*64 + 8*(n//3))*3072}",
                          f"buffer_load_dwordx4 v{W0+n%3}, {s(SRD_W,4)}, s{S_WO+1} offen lds"))
            return L
        stage_tok = {}
        def dma_stage(t):
            for m, ld in dma_list(t):
                k(m); stage_tok[t] = k(ld)
        dma_stage(0)
        k(f"""v_min_u32 v11, 47, v0
        s_mul_i32 s{S_T}, s{S_J}, 192
        s_mul_i32 s{S_T+1}, s{S_W}, 48
        s_add_u32 s{S_T}, s{S_T}, s{S_T+1}
        v_add_lshl_u32 v11, v11, s{S_T}, 1
        global_load_ushort v{B1R}, v11, {ptr(11)}""")
        self.srd(SRD_T1, 12, 1966080)
        SU, SC = 34, 35
        SCR = 3*STGS
        k(f"""s_sub_u32 s{S_T}, s{S_PW}, 480
        s_cmp_lt_u32 s{S_PW}, 480
        s_cselect_b32 s{SU}, s{S_PW}, s{S_T}
        s_mul_i32 s{SC}, s{SU}, 6554
        s_lshr_b32 s{SC}, s{SC}, 16              ; s = unit/10
        s_mul_i32 s{S_T}, s{SC}, 10
        s_sub_u32 s{S_T}, s{SU}, s{S_T}          ; cg
        s_mul_i32 s{S_T+1}, s{SC}, {32*1280}
        s_lshl_b32 s{S_T+2}, s{S_T}, 7
        s_add_u32 s{S_T+1}, s{S_T+1}, s{S_T+2}
        s_mul_i32 s{S_T+3}, s{S_T}, {4*48}
        s_add_u32 s{S_T+3}, s{S_T+3}, s{SC}
        s_lshl_b32 s{S_T+3}, s{S_T+3}, 10
        s_add_u32 s47, s{S_T+3}, {WS_B2S[1]}
        v_lshrrev_b32 v12, 3, v0
        v_mul_u32_u24 v12, 1280, v12
        v_and_b32 v13, 7, v0
        v_lshl_add_u32 v12, v13, 4, v12""")
        for e in range(4):
            k(f"s_add_u32 m0, s{S_MX}, {SCR + e*1024}")
            k(f"s_add_u32 s{S_T+2}, s{S_T+1}, {e*8*1280}")
            swz_tok = k(f"buffer_load_dwordx4 v12, {s(SRD_T1,4)}, s{S_T+2} offen lds")
        for t in (1, 2): dma_stage(t)
        self.make_tag()
        k(f"""v_and_b32 v11, 31, v0
        v_lshrrev_b32 v12, 5, v0                 ; h
        v_bfe_u32 v13, v0, 1, 3
        v_xor_b32 v13, v13, v12
        v_lshlrev_b32 v13, 4, v13
        v_lshl_add_u32 v13, v11, 7, v13
        v_add_u32 v{RXB}, s{S_MX}, v13
        v_xor_b32 v{RXB+1}, 32, v{RXB}
        v_xor_b32 v{RXB+2}, 64, v{RXB}
        v_xor_b32 v{RXB+3}, 96, v{RXB}
        v_bfe_u32 v13, v0, 2, 2                  ; r
        v_lshl_add_u32 v14, v12, 3, v13
        v_mul_u32_u24 v14, 384, v14
        v_bfe_u32 v15, v0, 4, 1
        v_lshl_add_u32 v14, v15, 5, v14
        v_and_b32 v15, 3, v0
        v_lshl_add_u32 v14, v15, 3, v14
        v_bfe_u32 v13, v0, 3, 1                  ; rbit
        v_lshlrev_b32 v13, 6, v13
        v_add_u32 v{AEB}, v14, v13
        v_sub_u32 v{AOB}, v14, v13
        v_mov_b32 v{ONE}, 0x3f803f80
        v_mov_b32 v{ONE+1}, 0x3f803f80""")
        def set_rd(t):
            base = (t % 4)*STGS
            k(f"""v_add_u32 v{AE}, {base}, v{AEB}
            v_add_u32 v{AO}, {base}, v{AOB}""")
        def reads(n):
            st = FR[n % 2]; ks = n % 4; base = ((n//4) % 4)*STGS
            L = [f"v_add_u32 v{RA}, {base+24576}, v{RXB+ks}\nds_read_b128 {v(st,4)}, v{RA}"]
            for T in range(6):
                for e in range(2):
                    L.append(f"ds_read_b64_tr_b16 {v(st+4+4*T+2*e,2)}, v{AE if T%2==0 else AO} offset:{(16*ks+4*e)*384+T*64}")
            return L
        set_rd(0)
        k.wait_vm(stage_tok[0])
        k("s_barrier")
        self.stamp(1)
        for r in reads(0): k(r)
        L_WS, L_B1 = 110592, 111360
        pending = []
        for n in range(40):
            st = FR[n % 2]
            k.c(f"---- mlp k-step {n}")
            k("s_waitcnt lgkmcnt(0)")
            if n % 4 == 3 and n + 1 < 40:
                T = (n + 1)//4
                k.wait_vm(stage_tok[T])
                k("s_barrier")
                set_rd(T)
                if T == 1: pending += [(3, m, ld) for m, ld in dma_list(3)]
                if T + 3 < 10: pending += [(T+3, m, ld) for m, ld in dma_list(T+3)]
            rd = reads(n+1) if n + 1 < 40 else []
            c0 = lambda r, cnt: "0" if n == 0 else v(r, cnt)
            big = [f"v_mfma_f32_32x32x16_bf16 {v(ACC+16*T,16)}, {v(st+4+4*T,4)}, {v(st,4)}, {c0(ACC+16*T,16)}" for T in range(6)]
            small = [f"v_mfma_f32_4x4x4_16b_bf16 {v(SQ,4)}, {v(st,2)}, {v(st,2)}, {c0(SQ,4)}",
                     f"v_mfma_f32_4x4x4_16b_bf16 {v(SUM,4)}, {v(ONE,2)}, {v(st,2)}, {c0(SUM,4)}",
                     f"v_mfma_f32_4x4x4_16b_bf16 {v(SQ,4)}, {v(st+2,2)}, {v(st+2,2)}, {v(SQ,4)}",
                     f"v_mfma_f32_4x4x4_16b_bf16 {v(SUM,4)}, {v(ONE,2)}, {v(st+2,2)}, {v(SUM,4)}"]
            ri = 0
            for T in range(6):
                k(big[T])
                cnt = [3, 3, 3, 2, 2, 0][T]
                for _ in range(cnt):
                    if ri < len(rd): k(rd[ri]); ri += 1
                if T >= 3 and pending:
                    p = pending.pop(0); k(p[1]); stage_tok[p[0]] = k(p[2])
                if T == 5 and pending:
                    p = pending.pop(0); k(p[1]); stage_tok[p[0]] = k(p[2])
                    if len(pending) > 6:
                        p = pending.pop(0); k(p[1]); stage_tok[p[0]] = k(p[2])
                if T == 1: k(small[0]); k(small[1])
                if T == 3: k(small[2]); k(small[3])
            assert ri == len(rd)
            sk = k.newlabel("ws")
            k(f"""s_cmp_lg_u32 s{S_W}, {n%4}
            s_cbranch_scc1 {sk}""")
            for hh in range(2):
                for T in range(6):
                    cc = "0" if (n < 4 and hh == 0) else v(WSA+4*T, 4)
                    k(f"v_mfma_f32_4x4x4_16b_bf16 {v(WSA+4*T,4)}, {v(ONE,2)}, {v(st+4+4*T+2*hh,2)}, {cc}")
            k.label(sk)
            if n == 1:
                k.wait_vm(swz_tok)
                k(f"""v_lshrrev_b32 v11, 5, v0
                v_bfe_u32 v12, v0, 4, 1
                v_lshlrev_b32 v11, 4, v11
                v_lshl_add_u32 v11, v12, 2, v11
                v_bfe_u32 v12, v0, 2, 2
                v_add_u32 v11, v11, v12
                v_lshlrev_b32 v11, 7, v11
                v_and_b32 v12, 3, v0
                v_lshl_add_u32 v11, v12, 3, v11
                v_add_u32 v11, s{S_MX}, v11
                v_add_u32 v11, {SCR}, v11
                v_lshlrev_b32 v12, 4, v0""")
                k("s_waitcnt lgkmcnt(0)")
                for cc in range(4):
                    for e in range(2):
                        k(f"ds_read_b64_tr_b16 {a(240+4*cc+2*e,2)}, v11 offset:{e*1024+cc*32}")
                k("s_waitcnt lgkmcnt(0)")
                for cc in range(4):
                    k(f"s_add_u32 s{S_T}, s47, {cc*48*1024}")
                    st_tok = k(f"buffer_store_dwordx4 {a(240+4*cc,4)}, v12, {s(SRD_WS,4)}, s{S_T} offen sc1")
            if n == 11:
                k.wait_vm(st_tok)
                k(f"""s_lshl_b32 s{S_T}, s{SU}, 6
                s_add_u32 s{S_T}, s{S_T}, {WS_FB + 512*FLS}""")
                self.set_flag(S_T, 11)
            if n == 28:
                k(f"""v_min_u32 v11, 47, v0
                s_mul_i32 s{S_T}, s{S_W}, 48
                v_add_lshl_u32 v11, v11, s{S_T}, 2
                v_add_u32 v11, {L_WS}, v11
                v_lshlrev_b32 v{B1R}, 16, v{B1R}
                v_mov_b32 v12, 0
                ds_write_b32 v11, v12
                ds_write_b32 v11, v{B1R} offset:768""")
        assert not pending
        self.stamp(2)
        k.c("================ MLP epilogue")
        self.b2_prefetch(1)
        TM = 148
        k(f"""v_and_b32 v11, 31, v0
        v_lshlrev_b32 v12, 2, v11
        v_add_u32 v12, {L_WS}, v12""")
        for T in range(6):
            k(f"ds_add_f32 v12, v{WSA+4*T} offset:{128*T}")
        AT, BT = 204, 206
        k(f"""v_and_b32 v13, 3, v0
        v_cmp_eq_u32 vcc, 1, v13
        v_cndmask_b32 v{SQ}, v{SQ}, v{SQ+1}, vcc
        v_cmp_eq_u32 vcc, 2, v13
        v_cndmask_b32 v{SQ}, v{SQ}, v{SQ+2}, vcc
        v_cmp_eq_u32 vcc, 3, v13
        v_cndmask_b32 v{SQ}, v{SQ}, v{SQ+3}, vcc
        v_mov_b32 v{SQ+1}, v{SQ}
        v_permlane32_swap_b32 v{SUM}, v{SUM+1}
        v_permlane32_swap_b32 v{SQ}, v{SQ+1}
        v_add_f32 v{SUM}, v{SUM}, v{SUM+1}
        v_add_f32 v{SQ}, v{SQ}, v{SQ+1}
        s_mov_b32 s{S_T}, {fbits(1.0/640)}
        v_mul_f32 v{SUM}, s{S_T}, v{SUM}
        v_mul_f32 v{TM}, v{SUM}, v{SUM}
        v_fma_f32 v{SQ}, v{SQ}, s{S_T}, -v{TM}
        v_max_f32 v{SQ}, 0, v{SQ}
        v_add_f32 v{TM}, {fbits(EPS)}, v{SQ}
        v_rsq_f32 v{SUM+1}, v{TM}
        v_mul_f32 v{TM}, v{SUM+1}, v{SUM+1}
        v_mul_f32 v{TM}, v{TM}, v{SQ}
        v_add_f32 v{TM}, {fbits(EPS)}, v{TM}
        v_rsq_f32 v{TM}, v{TM}
        v_mul_f32 v{AT}, v{TM}, v{SUM+1}
        v_mul_f32_e64 v{BT}, v{SUM}, -v{AT}
        s_lshl_b32 s{S_T}, s{S_W}, 8
        v_lshlrev_b32 v13, 3, v11
        v_add_u32 v13, s{S_T}, v13
        v_add_u32 v13, {LDS_STAT}, v13
        ds_write_b64 v13, {v(SUM,2)}
        v_lshrrev_b32 v14, 5, v0
        v_lshlrev_b32 v12, 4, v14
        v_add_u32 v12, {L_WS}, v12
        v_lshrrev_b32 v13, 4, v11
        v_mul_u32_u24 v13, {48*1024}, v13
        v_and_b32 v15, 15, v0
        v_lshl_add_u32 v13, v15, 4, v13
        v_lshl_add_u32 v13, v14, 8, v13
        s_lshl_b32 s{S_T}, s{S_I}, 3
        s_lshl_b32 s{S_T+1}, s{S_W}, 1
        s_add_u32 s{S_T}, s{S_T}, s{S_T+1}
        s_mul_i32 s{S_T}, s{S_T}, 48
        s_mul_i32 s{S_T+1}, s{S_J}, 6
        s_add_u32 s{S_T}, s{S_T}, s{S_T+1}
        s_lshl_b32 s{S_T}, s{S_T}, 10
        s_add_u32 s{S_T}, s{S_T}, {WS_A2[1]}
        s_add_u32 s{S_T+1}, s{S_T}, 4096
        s_mov_b32 s{S_T+2}, {fbits(-2*LOG2E*math.sqrt(2/math.pi))}
        s_mov_b32 s{S_T+3}, s{S_T+2}
        s_mov_b32 s{S_T+4}, {fbits(-2*LOG2E*math.sqrt(2/math.pi)*0.044715)}
        s_mov_b32 s{S_T+5}, s{S_T+4}
        v_mov_b32 v{TM}, s{S_T+2}
        v_mov_b32 v{TM+1}, s{S_T+2}
        s_waitcnt lgkmcnt(0)
        s_barrier""")
        self.stamp(3)
        C1 = TM
        WB = [150, 182]
        WB = [112-0, 150]
        Q = 182
        PKO = [198, 208]
        def wreads(T):
            b = WB[T % 2]; tk = None
            for q4 in range(4):
                k(f"ds_read_b128 {v(b+4*q4,4)}, v12 offset:{(32*T+8*q4)*4}")
                tk = k(f"ds_read_b128 {v(b+16+4*q4,4)}, v12 offset:{768+(32*T+8*q4)*4}")
            return tk
        tk = wreads(0)
        last = None
        for T in range(6):
            k.wait_lg(tk)
            if T + 1 < 6: tk = wreads(T+1)
            b = WB[T % 2]
            for c in range(2):
                po = PKO[c]
                prs = range(4*c, 4*c+4)
                for p in prs:
                    z = ACC + 16*T + 2*p
                    k(f"v_pk_fma_f32 {v(b+2*p,2)}, {v(BT,2)}, {v(b+2*p,2)}, {v(b+16+2*p,2)} op_sel_hi:[0,1,1]")
                for p in prs:
                    z = ACC + 16*T + 2*p
                    k(f"v_pk_fma_f32 {v(z,2)}, {v(AT,2)}, {v(z,2)}, {v(b+2*p,2)} op_sel_hi:[0,1,1]")
                for p in prs:
                    z = ACC + 16*T + 2*p; q = Q + 2*(p % 4)
                    k(f"v_pk_mul_f32 {v(q,2)}, {v(z,2)}, {v(z,2)}")
                for p in prs:
                    q = Q + 2*(p % 4)
                    k(f"v_pk_fma_f32 {v(q,2)}, {v(q,2)}, {s(S_T+4,2)}, {v(C1,2)}")
                for p in prs:
                    z = ACC + 16*T + 2*p; q = Q + 2*(p % 4)
                    k(f"v_pk_mul_f32 {v(q,2)}, {v(q,2)}, {v(z,2)}")
                for p in prs:
                    q = Q + 2*(p % 4)
                    k(f"v_exp_f32 v{q}, v{q}\nv_exp_f32 v{q+1}, v{q+1}")
                for p in prs:
                    q = Q + 2*(p % 4)
                    k(f"v_pk_add_f32 {v(q,2)}, {v(q,2)}, 1.0 op_sel_hi:[1,0]")
                for p in prs:
                    q = Q + 2*(p % 4)
                    k(f"v_rcp_f32 v{q}, v{q}\nv_rcp_f32 v{q+1}, v{q+1}")
                for p in prs:
                    z = ACC + 16*T + 2*p; q = Q + 2*(p % 4)
                    k(f"v_pk_mul_f32 {v(q,2)}, {v(q,2)}, {v(z,2)}")
                for p in prs:
                    q = Q + 2*(p % 4)
                    k(f"v_cvt_pk_bf16_f32 v{po+p%4}, v{q}, v{q+1}")
                last = k(f"buffer_store_dwordx4 {v(po,4)}, v13, {s(SRD_WS,4)}, s{S_T+(T//4)} offen offset:{(T%4)*1024+c*512} sc1")
        self.stamp(6)
        self.flag_a2(1, last)
        self.phase2(1)

    def phase2(self, side):
        k = self.k
        if self.stop == "p1":
            k("s_waitcnt vmcnt(0)")
            self.finish_wg(side)
            return
        S = [40, 48][side]; KS = [10, 12][side]
        ACC = 16; RING = 96; NR = 32
        hfS = [0, 1][side]
        hfO = 1 - hfS
        LV, RW, RR = 1, 2, 3
        OO = 8
        XB, DB, BB = 224, 234, 244
        SA = 36
        k.c(f"================ phase 2 (side {side})")
        k(f"""v_lshlrev_b32 v{LV}, 4, v0
        v_and_b32 v13, 7, v0
        v_lshlrev_b32 v13, 6, v13
        s_lshl_b32 s{S_T}, s{S_I}, 5
        s_lshl_b32 s{S_T+1}, s{S_W}, 3
        s_add_u32 s{S_T}, s{S_T}, s{S_T+1}
        s_lshl_b32 s{S_T}, s{S_T}, 6
        s_add_u32 s{S_T}, s{S_T}, {WS_FA + side*512*FLS}
        s_mul_i32 s{S_T+1}, s{S_I}, {8*S}
        s_mul_i32 s{S_T+2}, s{S_W}, {KS}
        s_add_u32 s{S_T+1}, s{S_T+1}, s{S_T+2}
        s_lshl_b32 s{S_T+1}, s{S_T+1}, 10
        s_add_u32 s{S_T+1}, s{S_T+1}, {WS_A2[side]}""")
        for t4 in range(4):
            k(f"s_add_u32 s{SA+t4}, s{S_T+1}, {(4*hfS+t4)*S*1024}")
            k(f"s_add_u32 s{SA+4+t4}, s{S_T+1}, {(4*hfO+t4)*S*1024}")
        self.poll(lambda: k(f"buffer_load_dword v14, v13, {s(SRD_WS,4)}, s{S_T} offen sc1"),
                  lambda: k(f"v_cmp_ne_u32 vcc, s{S_TAG}, v14"), "pa")
        self.stamp(8)
        seq = [(p, ss, t4) for p in range(2) for ss in range(KS) for t4 in range(4)]
        atok = {}
        def aload(idx):
            p, ss, t4 = seq[idx]
            r = RING + 4*(idx % NR)
            if ss % 4 == 0 and ss > 0:
                k(f"s_add_u32 s{SA+4*p+t4}, s{SA+4*p+t4}, 4096")
            atok[idx] = k(f"buffer_load_dwordx4 {v(r,4)}, v{LV}, {s(SRD_WS,4)}, s{SA+4*p+t4} offen offset:{(ss%4)*1024} sc1")
        nxt = 0
        while nxt < NR - 4:
            aload(nxt); nxt += 1
        k(f"""v_and_b32 v13, 15, v0
        v_mul_u32_u24 v{RW}, {RED_RS}, v13
        v_lshrrev_b32 v14, 4, v0
        v_lshl_add_u32 v{RW}, v14, 4, v{RW}
        s_mul_i32 s{S_T}, s{S_W}, {RED_W}
        s_add_u32 s{S_T}, s{S_T}, {LDS_RED}
        v_add_u32 v{RW}, s{S_T}, v{RW}
        s_mul_i32 s{S_T}, s{S_W}, {16*RED_RS}
        s_add_u32 s{S_T}, s{S_T}, {LDS_RED}""")
        for it in range(5):
            k(f"""v_add_u32 v13, {64*it}, v0
            v_mul_u32_u24 v14, 3277, v13
            v_lshrrev_b32 v14, 16, v14               ; row = q/20
            v_mul_u32_u24 v15, 20, v14
            v_sub_u32 v15, v13, v15                  ; c4
            v_mul_u32_u24 v13, {RED_RS}, v14
            v_lshl_add_u32 v13, v15, 4, v13
            v_add_u32 v{RR+it}, s{S_T}, v13
            v_mul_u32_u24 v13, 2560, v14
            v_lshl_add_u32 v{OO+it}, v15, 4, v13""")
        def mfmas(p, ss):
            nonlocal nxt
            base_idx = (p*KS + ss)*4
            cnt = 0
            for t4 in range(4):
                idx = base_idx + t4
                k.wait_vm(atok[idx])
                for cc in range(5):
                    d = ACC + (t4*5 + cc)*4
                    c_ = "0" if ss == 0 else v(d, 4)
                    k(f"v_mfma_f32_16x16x32_bf16 {v(d,4)}, {a((ss*5+cc)*4,4)}, {v(RING+4*(idx%NR),4)}, {c_}")
                    if cc == 1 and nxt < len(seq) and nxt < idx + NR - 1 - 3 + 0:
                        aload(nxt); nxt += 1
            return
        def reduce():
            for t4 in range(4):
                for cc in range(5):
                    k(f"ds_write_b128 v{RW}, {v(ACC+(t4*5+cc)*4,4)} offset:{t4*16*RED_RS+cc*64}")
            k("s_waitcnt lgkmcnt(0)")
            k("s_barrier")
            toks = []
            for it in range(5):
                for sw in range(4):
                    off = sw*RED_W
                    toks.append(k(f"ds_read_b128 {v(ACC+(it*4+sw)*4,4)}, v{RR+it} offset:{off}"))
                if it >= 2:
                    pass
            for it in range(5):
                k.wait_lg(toks[4*it+3])
                b = ACC + it*16
                for h in range(2):
                    k(f"v_pk_add_f32 {v(b+2*h,2)}, {v(b+2*h,2)}, {v(b+4+2*h,2)}")
                    k(f"v_pk_add_f32 {v(b+8+2*h,2)}, {v(b+8+2*h,2)}, {v(b+12+2*h,2)}")
                for h in range(2):
                    k(f"v_pk_add_f32 {v(b+2*h,2)}, {v(b+2*h,2)}, {v(b+8+2*h,2)}")
        assert 3*RED_W < 65536
        k.wait_vm(self.b2_tok)
        for ss in range(KS): mfmas(0, ss)
        self.stamp(9)
        reduce()
        k(f"""s_lshl_b32 s{S_T}, s{S_I}, 3
        s_add_u32 s{S_T}, s{S_T}, s{S_J}
        s_mul_i32 s{S_T}, s{S_T}, 20480
        s_mul_i32 s{S_T+1}, s{S_W}, 5120
        s_add_u32 s{S_T}, s{S_T}, s{S_T+1}
        s_add_u32 s44, s{S_T}, {WS_PART + (1-side)*128*20480}
        s_add_u32 s{S_T}, s{S_T}, {WS_PART + side*128*20480}
        s_add_u32 s{S_T+1}, s{S_T}, 4096""")
        for it in range(5):
            send_tok = k(f"buffer_store_dwordx4 {v(ACC+it*16,4)}, v{LV}, {s(SRD_WS,4)}, s{S_T+it//4} offen offset:{(it%4)*1024} sc1")
        k("s_barrier")
        k(f"""s_lshl_b32 s{S_T}, s{S_I}, 7
        s_lshl_b32 s{S_T+1}, s{S_W}, 4
        s_add_u32 s{S_T}, s{S_T}, s{S_T+1}
        s_add_u32 s{S_T}, s{S_T}, {64*hfO}
        s_mul_i32 s{S_T}, s{S_T}, 2560
        s_mul_i32 s{S_T+1}, s{S_J}, 320
        s_add_u32 s35, s{S_T}, s{S_T+1}
        s_lshr_b32 s{S_T}, s35, 1
        s_lshr_b32 s{S_T+1}, s{S_T+1}, 1""")
        self.srd(SRD_T1, 8, 1280)
        self.srd(SRD_T2, 13, 1280)
        for it in range(5):
            k(f"""v_lshrrev_b32 v13, 1, v{OO+it}
            buffer_load_dwordx2 {v(XB+2*it,2)}, v13, {s(SRD_X,4)}, s{S_T} offen
            v_add_u32 v13, {64*it}, v0
            v_mul_u32_u24 v14, 3277, v13
            v_lshrrev_b32 v14, 16, v14
            v_mul_u32_u24 v14, 20, v14
            v_sub_u32 v14, v13, v14
            v_lshlrev_b32 v14, 3, v14
            buffer_load_dwordx2 {v(DB+2*it,2)}, v14, {s(SRD_T1,4)}, s{S_T+1} offen""")
            ep_tok = k(f"buffer_load_dwordx2 {v(BB+2*it,2)}, v14, {s(SRD_T2,4)}, s{S_T+1} offen")
        flagged = False
        for ss in range(KS):
            mfmas(1, ss)
            if not flagged and k.vm_done >= send_tok:
                k(f"s_add_u32 s{S_T}, s34, {WS_FP + side*512*FLS}")
                self.set_flag(S_T, 14)
                flagged = True
        if not flagged:
            k.wait_vm(send_tok)
            k(f"s_add_u32 s{S_T}, s34, {WS_FP + side*512*FLS}")
            self.set_flag(S_T, 14)
        self.stamp(10)
        reduce()
        PB = RING
        k(f"""s_add_u32 s{S_T}, s34, {WS_FP + (1-side)*512*FLS}
        v_mov_b32 v13, 0""")
        self.poll(lambda: k(f"buffer_load_dword v14, v13, {s(SRD_WS,4)}, s{S_T} offen sc1"),
                  lambda: k(f"v_cmp_ne_u32 vcc, s{S_TAG}, v14"), "pp")
        self.stamp(11)
        k(f"s_add_u32 s{S_T}, s44, 4096")
        ptoks = []
        for it in range(5):
            ptoks.append(k(f"buffer_load_dwordx4 {v(PB+4*it,4)}, v{LV}, {s(SRD_WS,4)}, s{44 if it<4 else S_T} offen offset:{(it%4)*1024} sc1"))
        ST = RING + 32; T2 = RING + 48
        k(f"""s_lshl_b32 s{S_T+1}, s{S_W}, 7
        s_add_u32 s{S_T+1}, s{S_T+1}, {LDS_STAT + 64*hfO*8}""")
        stoks = []
        for it in range(5):
            k(f"""v_add_u32 v13, {64*it}, v0
            v_mul_u32_u24 v13, 3277, v13
            v_lshrrev_b32 v13, 16, v13
            v_lshl_add_u32 v13, v13, 3, s{S_T+1}""")
            stoks.append(k(f"ds_read_b64 {v(ST+2*it,2)}, v13"))
        for it in range(5):
            b = ACC + it*16
            xx, dd, bb = T2, T2+4, T2+8
            for (src, dst) in ((XB, xx), (DB, dd), (BB, bb)):
                for h in range(2):
                    k(f"v_lshlrev_b32 v{dst+2*h}, 16, v{src+2*it+h}")
                    k(f"v_and_b32 v{dst+2*h+1}, 0xffff0000, v{src+2*it+h}")
            k.wait_lg(stoks[it])
            for h in range(2):
                k(f"""v_pk_add_f32 {v(b+2*h,2)}, {v(b+2*h,2)}, {v(bb+2*h,2)}
                v_pk_add_f32 {v(b+2*h,2)}, {v(b+2*h,2)}, {v(xx+2*h,2)}
                v_pk_add_f32 {v(xx+2*h,2)}, {v(xx+2*h,2)}, {v(ST+2*it,2)} op_sel_hi:[1,0] neg_lo:[0,1] neg_hi:[0,1]
                v_pk_mul_f32 {v(dd+2*h,2)}, {v(dd+2*h,2)}, {v(ST+2*it,2)} op_sel:[0,1] op_sel_hi:[1,1]
                v_pk_fma_f32 {v(b+2*h,2)}, {v(xx+2*h,2)}, {v(dd+2*h,2)}, {v(b+2*h,2)}""")
        for it in range(5):
            b = ACC + it*16
            k.wait_vm(ptoks[it])
            for h in range(2):
                k(f"v_pk_add_f32 {v(b+2*h,2)}, {v(b+2*h,2)}, {v(PB+4*it+2*h,2)}")
            k(f"buffer_store_dwordx4 {v(b,4)}, v{OO+it}, {s(SRD_OUT,4)}, s35 offen")
        self.stamp(12)
        self.finish_wg(side)

    def finish_wg(self, side):
        k = self.k
        if side == 0:
            k(f"""s_or_b32 s{S_T}, s2, s{S_W}
            s_cmp_lg_u32 s{S_T}, 0
            s_cbranch_scc1 L_fin0
            v_lshlrev_b32 v13, 8, v0
            s_mov_b32 s{S_T}, {WS_FA}""")
            def loads():
                for q in range(4):
                    k(f"s_add_u32 s{S_T+1}, s{S_T}, {q*64*4*FLS}")
                    k(f"buffer_load_dword v{16+q}, v13, {s(SRD_WS,4)}, s{S_T+1} offen sc1")
            def check():
                k(f"v_xor_b32 v14, s{S_TAG}, v16")
                for q in range(1, 4):
                    k(f"v_xor_b32 v15, s{S_TAG}, v{16+q}\nv_or_b32 v14, v14, v15")
                k("v_cmp_ne_u32 vcc, 0, v14")
            self.poll(loads, check, "pe")
            k(f"s_mov_b32 s{S_T}, {WS_EPOCH}")
            self.set_flag(S_T, 14)
            k.label("L_fin0")
        if self.ts:
            k("s_waitcnt vmcnt(0)")
            self.stamp(13)
            self.stamp_flush()
        k("s_endpgm")

    def build(self):
        k = self.k
        self.prologue()
        st = k.state()
        self.ssm()
        k.set_state(st)
        self.mlp()
        k.label("L_end")
        k("s_endpgm")
        body = k.finish()
        hdr = open("header.txt").read()
        return (hdr + f"""; @launch grid=(256,1,1) block=(256,1,1) lds=163840
.amdgcn_target "amdgcn-amd-amdhsa--gfx950"
.text
.globl {NAME}
.p2align 8
.type {NAME},@function
{NAME}:
""" + body + f""".section .rodata,"a"
.p2align 6
.amdhsa_kernel {NAME}
  .amdhsa_next_free_vgpr 512
  .amdhsa_next_free_sgpr 102
  .amdhsa_accum_offset 256
  .amdhsa_group_segment_fixed_size 0
  .amdhsa_kernarg_size 136
  .amdhsa_user_sgpr_count 2
  .amdhsa_user_sgpr_kernarg_segment_ptr 1
  .amdhsa_system_sgpr_workgroup_id_x 1
.end_amdhsa_kernel
""")

if __name__ == "__main__":
    import argparse
    ap = argparse.ArgumentParser()
    ap.add_argument("-o", default="k1.s")
    ap.add_argument("--stop", default=None)
    ap.add_argument("--ts", action="store_true")
    a_ = ap.parse_args()
    g = G(stop=a_.stop, ts=a_.ts)
    txt = g.build()
    open(a_.o, "w").write(txt)
    print("written", a_.o, "nops inserted:", g.k.nops, "lines:", txt.count("\n"))
```

```python
import sys, math
sys.path.insert(0, "gen")
from emit import *

NAME = "parallel_sum__ssm_conv_s5__mixer_channel_mlp__prompt_kernel"
WS_EPOCH = 0
WS_FB = 0x1000
WS_FA = 0x11000
WS_FP = 0x21000
WS_AGG = 0x31000
WS_B2S = [0x60000, 0x1F0000]
WS_A2 = [0x400000, 0x900000]
WS_PART = 0xF00000
WS_TS = 0x1400000
WS_SIZE = 0x1500000
FLS = 64
S_W = 3
SRD_X, SRD_W, SRD_WS, SRD_OUT, SRD_T1, SRD_T2 = 4, 8, 12, 16, 20, 24
S_TAG, S_TAG2, S_I, S_J, S_SIDE = 28, 29, 30, 31, 32
S_PW = 33
S_XO = 36
S_WO = 40
S_MX, S_MW = 45, 46
S_T = 48
P0 = 64
def ptr(n): return s(P0 + 2*n, 2)
S_TS = 98
LOG2E = 1.4426950408889634
EPS = 1e-5
import struct
def fbits(x): return "0x%08x" % struct.unpack("<I", struct.pack("<f", x))[0]

POLL_MAX = 20000
LDS_STAT = 160000
LDS_RED = 16384
RED_RS = 336
RED_W = 64 * RED_RS

class G:
    def __init__(self, stop=None, ts=False):
        self.k = Emit()
        self.stop = stop
        self.ts = ts
        self.nts = 0

    def stamp(self, idx):
        if not self.ts: return
        k = self.k
        k(f"s_memrealtime {s(S_TS,2)}")
        k("s_waitcnt lgkmcnt(0)")
        k(f"v_writelane_b32 v255, s{S_TS}, {idx}")

    def stamp_flush(self):
        if not self.ts: return
        k = self.k
        k(f"""s_lshl_b32 s{S_T}, s2, 2
        s_add_u32 s{S_T}, s{S_T}, s{S_W}
        s_lshl_b32 s{S_T}, s{S_T}, 6
        s_add_u32 s{S_T}, s{S_T}, {WS_TS}
        v_mbcnt_lo_u32_b32 v254, -1, 0
        v_mbcnt_hi_u32_b32 v254, -1, v254
        v_cmp_gt_u32 vcc, 16, v254
        v_lshlrev_b32 v254, 2, v254
        s_and_saveexec_b64 {s(S_T+2,2)}, vcc
        buffer_store_dword v255, v254, {s(SRD_WS,4)}, s{S_T} offen
        v_readlane_b32 s{S_T+4}, v255, 0
        s_not_b32 s{S_T+4}, s{S_T+4}
        v_writelane_b32 v255, s{S_T+4}, 15
        global_atomic_umax v254, v255, {ptr(15)} sc1
        s_mov_b64 exec, {s(S_T+2,2)}""")

    def srd(self, base, pn, size):
        self.k(f"""s_mov_b32 s{base}, s{P0+2*pn}
        s_and_b32 s{base+1}, s{P0+2*pn+1}, 0xffff
        s_mov_b32 s{base+2}, {size}
        s_mov_b32 s{base+3}, 0x20000""")

    def poll(self, loads, check, name):
        k = self.k
        top = k.newlabel(name); done = k.newlabel(name + "d")
        k(f"s_mov_b32 s{S_T+15}, {POLL_MAX}")
        k.label(top)
        loads()
        k("s_waitcnt vmcnt(0)")
        check()
        k(f"""s_cbranch_vccz {done}
        s_sub_u32 s{S_T+15}, s{S_T+15}, 1
        s_cmp_lg_u32 s{S_T+15}, 0
        s_cbranch_scc1 {top}""")
        k.label(done)

    def set_flag(self, soff_sgpr, vtmp):
        k = self.k
        k(f"""v_mov_b32 v{vtmp}, s{S_TAG}
        v_mov_b32 v{vtmp+1}, 0
        s_mov_b64 exec, 1
        buffer_store_dword v{vtmp}, v{vtmp+1}, {s(SRD_WS,4)}, s{soff_sgpr} offen sc1
        s_mov_b64 exec, -1""")

    def prologue(self):
        k = self.k
        k(f"""s_cmp_ge_u32 s2, 256
        s_cbranch_scc1 L_end
        s_load_dwordx16 {s(P0,16)}, s[0:1], 0
        s_load_dwordx16 {s(P0+16,16)}, s[0:1], 64
        s_load_dwordx2 {s(P0+32,2)}, s[0:1], 128
        v_lshrrev_b32 v1, 6, v0
        v_and_b32 v0, 63, v0
        v_readfirstlane_b32 s{S_W}, v1
        s_and_b32 s{S_SIDE}, s2, 1
        s_bfe_u32 s{S_T}, s2, 0x20001
        s_lshr_b32 s{S_T+1}, s2, 6           ; c = id>>6
        s_lshl_b32 s{S_I}, s{S_T+1}, 2
        s_add_u32 s{S_I}, s{S_I}, s{S_T}
        s_bfe_u32 s{S_J}, s2, 0x30003        ; j = (id>>3)&7
        s_lshr_b32 s{S_PW}, s2, 1
        s_lshl_b32 s{S_PW}, s{S_PW}, 2
        s_add_u32 s{S_PW}, s{S_PW}, s{S_W}
        """)
        if self.ts:
            k("v_mov_b32 v255, 0")
        k("s_waitcnt lgkmcnt(0)")
        k(f"s_load_dword s{S_TAG}, {ptr(16)}, {WS_EPOCH}")
        self.srd(SRD_X, 0, 2621440)
        self.srd(SRD_WS, 16, WS_SIZE)
        self.srd(SRD_OUT, 14, 5242880)
        self.stamp(0)
        k(f"""s_cmp_eq_u32 s{S_SIDE}, 1
        s_cbranch_scc1 L_mlp""")

    def make_tag(self):
        k = self.k
        k(f"""s_waitcnt lgkmcnt(0)
        s_mul_i32 s{S_TAG}, s{S_TAG}, 0x9E3779B1
        s_add_u32 s{S_TAG}, s{S_TAG}, 0x7F4A7C15
        s_xor_b32 s{S_TAG2}, s{S_TAG}, 0x5bd1e995
        s_brev_b32 s{S_TAG2}, s{S_TAG2}""")

    def count_started(self, vt):
        k = self.k
        skip = k.newlabel("cs")
        k(f"""v_mov_b32 v{vt}, 0
        v_mov_b32 v{vt+1}, 1
        s_mov_b64 exec, 1
        global_atomic_add v{vt}, v{vt+1}, {ptr(15)} sc1
        s_mov_b64 exec, -1""")

    def ssm(self):
        k = self.k
        ACC = 16
        WSA = 96
        STA = 116
        ONE = 132
        FR = [136, 184]
        CN = 232
        XE, XO, WA, WB, RD0, RD1, RX0, RX1, RW0, RW1 = 1, 2, 3, 4, 5, 6, 7, 8, 9, 10
        T0 = 11
        STG0, STGS = 16384, 36864
        acc = lambda a_, tt: ACC + (a_*10 + tt)*4
        k.c("================ SSM side, phase 1")
        k(f"""s_cmp_lt_u32 s{S_W}, 2
        s_cselect_b32 s{SRD_W}, s{P0+6}, s{P0+8}
        s_cselect_b32 s{SRD_W+1}, s{P0+7}, s{P0+9}
        s_and_b32 s{SRD_W+1}, s{SRD_W+1}, 0xffff
        s_mov_b32 s{SRD_W+2}, 819200
        s_mov_b32 s{SRD_W+3}, 0x20000
        v_lshrrev_b32 v11, 4, v0                 ; g
        v_and_b32 v12, 7, v0
        v_xor_b32 v12, v12, v11
        v_lshlrev_b32 v12, 4, v12
        v_lshrrev_b32 v13, 3, v0                 ; l>>3
        v_mul_u32_u24 v{WA}, 1280, v13
        v_add_u32 v{WA}, v{WA}, v12
        v_and_b32 v13, 3, v13
        v_lshrrev_b32 v14, 5, v0
        v_lshl_add_u32 v13, v14, 3, v13
        v_mul_u32_u24 v{XE}, 1280, v13
        v_add_u32 v{XE}, v{XE}, v12
        v_xor_b32 v{XO}, 64, v{XE}
        s_and_b32 s{S_T}, s{S_W}, 1
        s_lshl_b32 s{S_T+1}, s{S_T}, 6
        v_xor_b32 v{WA}, s{S_T+1}, v{WA}
        v_xor_b32 v{WB}, 64, v{WA}
        s_lshl_b32 s{S_T+2}, s{S_I}, 7
        s_lshl_b32 s{S_T+3}, s{S_W}, 5
        s_add_u32 s{S_T+2}, s{S_T+2}, s{S_T+3}
        s_mul_i32 s{S_XO}, s{S_T+2}, 1280
        s_add_u32 s{S_XO+1}, s{S_XO}, {16*1280}
        s_add_u32 s{S_XO+2}, s{S_XO}, {4*1280}
        s_add_u32 s{S_XO+3}, s{S_XO}, {20*1280}
        s_mul_i32 s{S_T+2}, s{S_J}, 80
        s_mul_i32 s{S_T+3}, s{S_T}, 40
        s_add_u32 s{S_T+2}, s{S_T+2}, s{S_T+3}
        s_mul_i32 s{S_WO}, s{S_T+2}, 1280
        s_add_u32 s{S_WO+1}, s{S_WO}, {8*1280}
        s_add_u32 s{S_WO+2}, s{S_WO}, {16*1280}
        s_add_u32 s{S_WO+3}, s{S_WO}, {24*1280}
        s_add_u32 s{S_WO+4}, s{S_WO}, {32*1280}
        s_lshl_b32 s{S_MX}, s{S_W}, 12
        s_mul_i32 s{S_MW}, s{S_W}, 5120
        """)
        def dma_list(t):
            base = STG0 + (t % 4)*STGS
            L = []
            for e in range(4):
                L.append((f"s_add_u32 m0, s{S_MX}, {base + e*1024 - t*128}",
                          f"buffer_load_dwordx4 v{XE if e%2==0 else XO}, {s(SRD_X,4)}, s{S_XO+e} offen offset:{t*128} lds"))
            for e in range(5):
                L.append((f"s_add_u32 m0, s{S_MW}, {base + 16384 + e*1024 - t*128}",
                          f"buffer_load_dwordx4 v{WA if e%2==0 else WB}, {s(SRD_W,4)}, s{S_WO+e} offen offset:{t*128} lds"))
            return L
        stage_tok = {}
        def dma_stage(t):
            for m, ld in dma_list(t):
                k(m); stage_tok[t] = k(ld)
        dma_stage(0)
        k(f"""v_and_b32 v11, 15, v0
        s_mul_i32 s{S_T}, s{S_J}, 160
        v_lshl_add_u32 v11, v11, 1, s{S_T}""")
        for b in range(5):
            k(f"global_load_ushort v{CN+10+b}, v11, {ptr(1)} offset:{32*b}")
            k(f"global_load_ushort v{CN+15+b}, v11, {ptr(2)} offset:{32*b}")
            vec_tok = k(f"global_load_ushort v{CN+b}, v11, {ptr(7)} offset:{32*b}")
        self.srd(SRD_T1, 5, 819200)
        self.srd(SRD_T2, 6, 819200)
        SU, SC = 34, 35
        k(f"""s_sub_u32 s{S_T}, s{S_PW}, 400
        s_cmp_lt_u32 s{S_PW}, 400
        s_cselect_b32 s{SU}, s{S_PW}, s{S_T}
        s_mul_i32 s{SC}, s{SU}, 6554
        s_lshr_b32 s{SC}, s{SC}, 16              ; c' = unit/10
        s_mul_i32 s{S_T}, s{SC}, 10
        s_sub_u32 s{S_T}, s{SU}, s{S_T}          ; u
        s_mul_i32 s{S_T+1}, s{SC}, {16*1280}
        s_lshl_b32 s{S_T+2}, s{S_T}, 7
        s_add_u32 s{S_T+1}, s{S_T+1}, s{S_T+2}
        s_add_u32 s{S_T+2}, s{S_T+1}, {8*1280}
        s_mul_i32 s{S_T+3}, s{SC}, 40
        s_lshl_b32 s{S_T+4}, s{S_T}, 2
        s_add_u32 s{S_T+3}, s{S_T+3}, s{S_T+4}
        s_lshl_b32 s{S_T+3}, s{S_T+3}, 10
        s_add_u32 s47, s{S_T+3}, {WS_B2S[0]}
        v_lshrrev_b32 v12, 3, v0
        v_mul_u32_u24 v12, 1280, v12
        v_and_b32 v13, 7, v0
        v_lshl_add_u32 v12, v13, 4, v12
        s_mov_b32 m0, s{S_MX}
        """)
        k(f"buffer_load_dwordx4 v12, {s(SRD_T1,4)}, s{S_T+1} offen lds")
        k(f"s_add_u32 m0, s{S_MX}, 1024")
        k(f"buffer_load_dwordx4 v12, {s(SRD_T1,4)}, s{S_T+2} offen lds")
        k(f"s_add_u32 m0, s{S_MX}, 2048")
        k(f"buffer_load_dwordx4 v12, {s(SRD_T2,4)}, s{S_T+1} offen lds")
        k(f"s_add_u32 m0, s{S_MX}, 3072")
        swz_tok = k(f"buffer_load_dwordx4 v12, {s(SRD_T2,4)}, s{S_T+2} offen lds")
        for t in (1, 2, 3): dma_stage(t)
        self.make_tag()
        k(f"""v_and_b32 v11, 15, v0
        v_lshrrev_b32 v12, 4, v0
        v_lshrrev_b32 v13, 1, v11
        v_xor_b32 v13, v13, v12
        v_lshlrev_b32 v13, 4, v13
        v_lshl_add_u32 v{RD0}, v11, 7, v13
        v_xor_b32 v{RD1}, 64, v{RD0}
        """)
        for r in range(4): k(f"v_mov_b32 v{ONE+r}, 0x3f803f80")
        k.wait_vm(vec_tok)
        for b in range(5):
            k(f"""v_lshlrev_b32 v{CN+b}, 16, v{CN+b}
            v_lshlrev_b32 v{CN+10+b}, 16, v{CN+10+b}
            v_lshlrev_b32 v{CN+15+b}, 16, v{CN+15+b}
            v_mul_f32 v{CN+b}, {fbits(LOG2E)}, v{CN+b}""")
        for b in range(5): k(f"v_exp_f32 v{CN+b}, v{CN+b}")
        for b in range(5):
            k(f"""v_cvt_pk_bf16_f32 v{CN+b}, v{CN+b}, v{CN+b}
            v_and_b32 v{CN+b}, 0xffff0000, v{CN+b}
            v_mul_f32 v{CN+5+b}, v{CN+b}, v{CN+15+b}
            v_mul_f32 v{CN+b}, v{CN+b}, v{CN+10+b}
            v_mul_f32 v{CN+5+b}, 0.15915494, v{CN+5+b}
            v_mul_f32 v{CN+b}, {fbits(LOG2E)}, v{CN+b}""")
        def set_rd(t):
            base = STG0 + (t % 4)*STGS
            k(f"""v_add_u32 v{RW0}, {base}, v{RD0}
            v_add_u32 v{RW1}, {base}, v{RD1}
            v_add_u32 v{RX0}, s{S_MX}, v{RW0}
            v_add_u32 v{RX1}, s{S_MX}, v{RW1}""")
        def reads(n):
            st = FR[n % 2]; ks = n % 2
            L = []
            for a_ in range(2):
                L.append(f"ds_read_b128 {v(st+4*a_,4)}, v{RX0 if ks==0 else RX1} offset:{a_*2048}")
            for tt in range(10):
                L.append(f"ds_read_b128 {v(st+8+4*tt,4)}, v{RW0 if ks==0 else RW1} offset:{16384+tt*2048}")
            return L
        set_rd(0)
        k.wait_vm(stage_tok[0])
        k("s_barrier")
        self.stamp(1)
        for r in reads(0): k(r)
        st_tok = None
        for n in range(20):
            st = FR[n % 2]
            k.c(f"---- ssm k-step {n}")
            k("s_waitcnt lgkmcnt(0)")
            fill = []
            if n % 2 == 1 and n + 1 < 20:
                T = (n + 1)//2
                k.wait_vm(stage_tok[T])
                k("s_barrier")
                set_rd(T)
            if n + 1 < 20: fill += [(r,) for r in reads(n+1)]
            if n % 2 == 1 and (n+1)//2 + 3 < 10:
                Tn = (n+1)//2 + 3
                fill += [("dma", Tn, m, ld) for m, ld in dma_list(Tn)]
            mf = []
            c0 = lambda r, cnt: "0" if n == 0 else v(r, cnt)
            for tt in range(10):
                for a_ in range(2):
                    mf.append(f"v_mfma_f32_16x16x32_bf16 {v(acc(a_,tt),4)}, {v(st+4*a_,4)}, {v(st+8+4*tt,4)}, {c0(acc(a_,tt),4)}")
            for a_ in range(2):
                mf.append(f"v_mfma_f32_16x16x32_bf16 {v(STA+4*a_,4)}, {v(st+4*a_,4)}, {v(ONE,4)}, {c0(STA+4*a_,4)}")
                mf.append(f"v_mfma_f32_16x16x32_bf16 {v(STA+8+4*a_,4)}, {v(st+4*a_,4)}, {v(st+4*a_,4)}, {c0(STA+8+4*a_,4)}")
            for i_, m in enumerate(mf):
                k(m)
                if i_ < len(fill):
                    f = fill[i_]
                    if f[0] == "dma":
                        k(f[2]); stage_tok[f[1]] = k(f[3])
                    else: k(f[0])
            assert len(fill) <= len(mf)
            for half in range(2):
                sk = k.newlabel("ws")
                k(f"""s_cmp_lg_u32 s{S_W}, {2*(n%2)+half}
                s_cbranch_scc1 {sk}""")
                for q in range(5):
                    cc = "0" if n < 2 else v(WSA+4*q, 4)
                    k(f"v_mfma_f32_16x16x32_bf16 {v(WSA+4*q,4)}, {v(ONE,4)}, {v(st+8+4*(5*half+q),4)}, {cc}")
                k.label(sk)
            if n == 0:
                k.wait_vm(swz_tok)
                k(f"""v_and_b32 v11, 15, v0
                v_lshlrev_b32 v11, 7, v11
                v_lshrrev_b32 v12, 5, v0
                v_lshl_add_u32 v11, v12, 11, v11
                v_bfe_u32 v12, v0, 4, 1
                v_lshl_add_u32 v11, v12, 4, v11
                v_add_u32 v11, s{S_MX}, v11
                v_lshlrev_b32 v12, 4, v0""")
                for ss in range(4):
                    k(f"ds_read_b128 {a(200+4*ss,4)}, v11 offset:{32*ss}")
                k("s_waitcnt lgkmcnt(0)")
                for ss in range(4):
                    st_tok = k(f"buffer_store_dwordx4 {a(200+4*ss,4)}, v12, {s(SRD_WS,4)}, s47 offen offset:{1024*ss} sc1")
            if n == 5:
                k.wait_vm(st_tok)
                k(f"""s_lshl_b32 s{S_T}, s{SU}, 6
                s_add_u32 s{S_T}, s{S_T}, {WS_FB}""")
                self.set_flag(S_T, 11)
                k(f"""v_lshlrev_b32 v11, 3, v0
                v_mov_b32 v12, 0
                v_mov_b32 v13, 0
                ds_write_b64 v11, v[12:13]
                ds_write_b64 v11, v[12:13] offset:512
                ds_write_b64 v11, v[12:13] offset:1024""")
        self.stamp(2)
        self.ssm_epilogue(ACC, WSA, STA, CN)

    def cpow(self, dre, dim, n, zr, zi, t):
        k = self.k
        k(f"""v_mul_f32 v{t}, {n}, v{zi}
        v_mul_f32 v{dre}, {n}, v{zr}
        v_fract_f32 v{t}, v{t}
        v_exp_f32 v{dre}, v{dre}
        v_sin_f32 v{dim}, v{t}
        v_cos_f32 v{t}, v{t}
        v_mul_f32 v{dim}, v{dim}, v{dre}
        v_mul_f32 v{dre}, v{t}, v{dre}""")

    def ssm_epilogue(self, ACC, WSA, STA, CN):
        k = self.k
        acc = lambda a_, tt: ACC + (a_*10 + tt)*4
        tok = lambda r, tt: acc(r//4, tt) + r % 4
        L_AGG, L_CAR, L_WSP, L_ES = 0, 640, 2048, 4096
        AT, BT = 136, 144
        WSM = 152
        LR, LI = 172, 177
        ER, EI = 182, 187
        PR, PI = 192, 197
        TM = 202
        SEG = 15
        k.c("================ SSM epilogue")
        self.b2_prefetch(0)
        k(f"""v_and_b32 v11, 15, v0
        v_mul_u32_u24 v12, 80, v11
        s_mul_i32 s{S_T}, s{S_W}, 20
        v_add_u32 v13, s{S_T}, v12""")
        for q in range(5):
            k(f"ds_write_b32 v13, v{WSA+4*q} offset:{L_WSP+4*q}")
        k(f"""v_lshrrev_b32 v14, 4, v0
        v_mul_u32_u24 v13, 80, v14""")
        for a_ in range(2):
            for r in range(4):
                k(f"ds_bpermute_b32 v{BT+4*a_+r}, v13, v{STA+8+4*a_+r} offset:{4*r}")
        k(f"""s_lshl_b32 s{S_T}, s{S_W}, 2
        v_add_u32 v{SEG}, s{S_T}, v14            ; segment s = 4w+g
        v_sub_u32 v13, 15, v{SEG}
        v_lshlrev_b32 v13, 3, v13
        v_cvt_f32_u32 v13, v13""")
        for b in range(5): self.cpow(LR+b, LI+b, "1.0", CN+b, CN+5+b, TM)
        for b in range(5): self.cpow(PR+b, PI+b, "v13", CN+b, CN+5+b, TM)
        k("s_waitcnt lgkmcnt(0)")
        k("s_barrier")
        for q in range(5):
            k(f"ds_read_b128 {v(WSM+4*q,4)}, v12 offset:{L_WSP+16*q}")
        k(f"s_mov_b32 s{S_T}, {fbits(1.0/640)}")
        k(f"""s_lshl_b32 s{S_T+1}, s{S_W}, 8
        v_lshlrev_b32 v13, 6, v14
        v_add_u32 v13, s{S_T+1}, v13
        v_add_u32 v13, {LDS_STAT}, v13""")
        for r in range(8):
            sm = STA + r
            k(f"""v_mul_f32 v{sm}, s{S_T}, v{sm}
            v_mul_f32 v{TM}, v{sm}, v{sm}
            v_fma_f32 v{BT+r}, v{BT+r}, s{S_T}, -v{TM}
            v_max_f32 v{BT+r}, 0, v{BT+r}
            v_add_f32 v{BT+r}, {fbits(EPS)}, v{BT+r}
            v_rsq_f32 v{AT+r}, v{BT+r}""")
        for r in range(8):
            k(f"v_mul_f32 v{BT+r}, v{STA+r}, -v{AT+r}".replace("v_mul_f32", "v_mul_f32_e64"))
            k(f"ds_write2_b32 v13, v{STA+r}, v{AT+r} offset0:{2*r} offset1:{2*r+1}")
        k("s_waitcnt lgkmcnt(8)")
        for q in range(10):
            k(f"v_add_f32 v{WSM+q}, v{WSM+q}, v{WSM+10+q}")
        for tt in range(10):
            wr = WSM + tt
            pair = wr & ~1; hi = wr & 1
            for a_ in range(2):
                for h in range(2):
                    d = acc(a_, tt) + 2*h; t_ = TM + 2*((tt*4 + a_*2 + h) % 8)
                    k(f"v_pk_mul_f32 {v(t_,2)}, {v(BT+4*a_+2*h,2)}, {v(pair,2)} op_sel:[0,{hi}] op_sel_hi:[1,{hi}]")
                    k(f"v_pk_fma_f32 {v(d,2)}, {v(AT+4*a_+2*h,2)}, {v(d,2)}, {v(t_,2)}")
        for r in range(1, 8):
            for b in range(5):
                pr = tok(0, b) if r == 1 else ER+b
                pi = tok(0, 5+b) if r == 1 else EI+b
                k(f"""v_fma_f32 v{TM+b}, v{LR+b}, v{pr}, v{tok(r,b)}
                v_fma_f32 v{TM+5+b}, v{LR+b}, v{pi}, v{tok(r,5+b)}""")
            for b in range(5):
                pr = tok(0, b) if r == 1 else ER+b
                pi = tok(0, 5+b) if r == 1 else EI+b
                k(f"""v_fma_f32 v{TM+10+b}, -v{LI+b}, v{pi}, v{TM+b}
                v_fma_f32 v{EI+b}, v{LI+b}, v{pr}, v{TM+5+b}""")
            for b in range(5):
                k(f"v_mov_b32 v{ER+b}, v{TM+10+b}")
        k(f"""v_lshlrev_b32 v12, 3, v11            ; col*8
        v_mul_u32_u24 v13, 768, v{SEG}
        v_mul_u32_u24 v14, 48, v11
        v_add_u32 v13, v13, v14""")
        for b in range(5):
            k(f"""v_mul_f32 v{TM+b}, v{PR+b}, v{ER+b}
            v_mul_f32 v{TM+5+b}, v{PR+b}, v{EI+b}
            v_fma_f32 v{TM+b}, -v{PI+b}, v{EI+b}, v{TM+b}
            v_fma_f32 v{TM+5+b}, v{PI+b}, v{ER+b}, v{TM+5+b}
            ds_add_f32 v12, v{TM+b} offset:{L_AGG+128*b}
            ds_add_f32 v12, v{TM+5+b} offset:{L_AGG+128*b+4}
            ds_write2_b32 v13, v{ER+b}, v{EI+b} offset0:{(L_ES//4+2*b) % 256} offset1:{(L_ES//4+2*b+1) % 256}""".replace("v13,", "v14,") if False else
            f"""v_mul_f32 v{TM+b}, v{PR+b}, v{ER+b}
            v_mul_f32 v{TM+5+b}, v{PR+b}, v{EI+b}
            v_fma_f32 v{TM+b}, -v{PI+b}, v{EI+b}, v{TM+b}
            v_fma_f32 v{TM+5+b}, v{PI+b}, v{ER+b}, v{TM+5+b}
            ds_add_f32 v12, v{TM+b} offset:{L_AGG+128*b}
            ds_add_f32 v12, v{TM+5+b} offset:{L_AGG+128*b+4}
            ds_write_b32 v13, v{ER+b} offset:{L_ES+8*b}
            ds_write_b32 v13, v{EI+b} offset:{L_ES+8*b+4}""")
        k("s_waitcnt lgkmcnt(0)")
        k("s_barrier")
        k(f"""s_mul_i32 s{S_T}, s{S_W}, 20
        v_add_u32 v13, s{S_T}, v0
        v_lshlrev_b32 v{TM+4}, 3, v13
        ds_read_b32 v{TM}, v{TM+4} offset:{L_AGG}
        ds_read_b32 v{TM+2}, v{TM+4} offset:{L_AGG+4}
        v_mov_b32 v{TM+1}, s{S_TAG}
        v_mov_b32 v{TM+3}, s{S_TAG2}
        v_lshlrev_b32 v13, 4, v13
        s_lshl_b32 s{S_T}, s{S_J}, 4
        s_add_u32 s{S_T+1}, s{S_T}, s{S_I}
        s_mul_i32 s{S_T+1}, s{S_T+1}, 1280
        s_add_u32 s{S_T+1}, s{S_T+1}, {WS_AGG}
        s_mov_b64 exec, 0xfffff
        s_waitcnt lgkmcnt(0)
        buffer_store_dwordx4 {v(TM,4)}, v13, {s(SRD_WS,4)}, s{S_T+1} offen sc1
        s_mov_b64 exec, -1""")
        self.stamp(3)
        KR, KI = 152, 157
        CR, CI = 162, 167
        L8R, L8I = 136, 141
        for b in range(5):
            Lre, Lim = CN+10+b, CN+15+b
            k(f"""v_mul_f32 v{TM+4}, v{Lre}, v{Lre}
            v_fma_f32 v{TM+4}, v{Lim}, v{Lim}, v{TM+4}
            v_rcp_f32 v{TM+4}, v{TM+4}
            v_add_f32 v{TM+5}, -1.0, v{LR+b}
            v_mul_f32 v{TM+6}, v{TM+5}, v{Lre}
            v_fma_f32 v{TM+6}, v{LI+b}, v{Lim}, v{TM+6}
            v_mul_f32 v{TM+7}, v{LI+b}, v{Lre}
            v_fma_f32 v{TM+7}, -v{TM+5}, v{Lim}, v{TM+7}
            v_add_f32 v{TM+4}, v{TM+4}, v{TM+4}
            v_mul_f32 v{KR+b}, v{TM+6}, v{TM+4}
            v_mul_f32 v{KI+b}, v{TM+7}, v{TM+4}""")
        def bc(r):
            return v(r & ~1, 2), r & 1
        for b in range(5):
            (kr, sr), (ki, si) = bc(KR+b), bc(KI+b)
            for h in range(4):
                ur = tok(2*h, b); ui = tok(2*h, 5+b); t_ = TM + 4 + 4*(h % 2)
                k(f"""v_pk_mul_f32 {v(t_,2)}, {v(ur,2)}, {kr} op_sel:[0,{sr}] op_sel_hi:[1,{sr}]
                v_pk_mul_f32 {v(t_+2,2)}, {v(ur,2)}, {ki} op_sel:[0,{si}] op_sel_hi:[1,{si}]
                v_pk_fma_f32 {v(ur,2)}, {v(ui,2)}, {ki}, {v(t_,2)} op_sel:[0,{si},0] op_sel_hi:[1,{si},1] neg_lo:[1,0,0] neg_hi:[1,0,0]
                v_pk_fma_f32 {v(ui,2)}, {v(ui,2)}, {kr}, {v(t_+2,2)} op_sel:[0,{sr},0] op_sel_hi:[1,{sr},1]""")
        k(f"s_mov_b32 s{S_T}, {fbits(8.0)}")
        for b in range(5): self.cpow(L8R+b, L8I+b, f"s{S_T}", CN+b, CN+5+b, TM+4)
        for b in range(5):
            k(f"v_mov_b32 v{CR+b}, 0")
            k(f"v_mov_b32 v{CI+b}, 0")
        k(f"v_mul_u32_u24 v14, 48, v11")
        hdone = k.newlabel("hd")
        EB = 204
        for sp in range(15):
            if sp % 4 == 3:
                k(f"""s_cmp_le_u32 s{S_W}, {sp//4}
                s_cbranch_scc1 {hdone}""")
            k(f"""ds_read_b128 {v(EB,4)}, v14 offset:{L_ES+768*sp}
            ds_read_b128 {v(EB+4,4)}, v14 offset:{L_ES+768*sp+16}
            ds_read_b64 {v(EB+8,2)}, v14 offset:{L_ES+768*sp+32}
            v_cmp_lt_u32 vcc, {sp}, v{SEG}
            s_waitcnt lgkmcnt(0)
            s_mov_b64 exec, vcc""")
            for b in range(5):
                k(f"""v_fma_f32 v{EB+2*b}, v{L8R+b}, v{CR+b}, v{EB+2*b}
                v_fma_f32 v{EB+2*b+1}, v{L8R+b}, v{CI+b}, v{EB+2*b+1}
                v_fma_f32 v{EB+2*b+1}, v{L8I+b}, v{CR+b}, v{EB+2*b+1}
                v_fma_f32 v{CR+b}, -v{L8I+b}, v{CI+b}, v{EB+2*b}
                v_mov_b32 v{CI+b}, v{EB+2*b+1}""")
            k("s_mov_b64 exec, -1")
        k.label(hdone)
        VR, VI = 136, 141
        QR, QI = 182, 187
        k(f"""v_lshlrev_b32 v13, 3, v{SEG}
        v_cvt_f32_u32 v13, v13""")
        for b in range(5): self.cpow(PR+b, PI+b, "v13", CN+b, CN+5+b, TM)
        for b in range(5):
            k(f"""v_mul_f32 v{VR+b}, v{KR+b}, v{PR+b}
            v_mul_f32 v{VI+b}, v{KR+b}, v{PI+b}
            v_fma_f32 v{VR+b}, -v{KI+b}, v{PI+b}, v{VR+b}
            v_fma_f32 v{VI+b}, v{KI+b}, v{PR+b}, v{VI+b}
            v_mul_f32 v{TM}, v{KR+b}, v{CR+b}
            v_mul_f32 v{TM+1}, v{KR+b}, v{CI+b}
            v_fma_f32 v{TM}, -v{KI+b}, v{CI+b}, v{TM}
            v_fma_f32 v{CI+b}, v{KI+b}, v{CR+b}, v{TM+1}
            v_mov_b32 v{CR+b}, v{TM}""")
        k(f"""s_sub_u32 s{S_T}, s{S_I}, 1
        v_sub_u32 v13, s{S_T}, v{SEG}
        v_max_i32 v13, 0, v13
        v_lshlrev_b32 v13, 7, v13
        v_cvt_f32_u32 v13, v13""")
        for b in range(5): self.cpow(QR+b, QI+b, "v13", CN+b, CN+5+b, TM)
        GB = 204
        k(f"""v_mul_u32_u24 v13, 1280, v{SEG}
        v_lshl_add_u32 v13, v11, 4, v13
        s_mul_i32 s{S_T}, s{S_J}, {16*1280}
        s_add_u32 s{S_T}, s{S_T}, {WS_AGG}
        v_cmp_gt_u32 {s(S_T+2,2)}, s{S_I}, v{SEG}      ; valid = k < i""")
        self.stamp(4)
        def loads():
            for b in range(5):
                k(f"buffer_load_dwordx4 {v(GB+4*b,4)}, v13, {s(SRD_WS,4)}, s{S_T} offen offset:{256*b} sc1")
        def check():
            k(f"v_xor_b32 v14, s{S_TAG}, v{GB+1}")
            for b in range(5):
                if b: k(f"v_xor_b32 v{TM}, s{S_TAG}, v{GB+4*b+1}\nv_or_b32 v14, v14, v{TM}")
                k(f"v_xor_b32 v{TM}, s{S_TAG2}, v{GB+4*b+3}\nv_or_b32 v14, v14, v{TM}")
            k(f"v_cmp_ne_u32 vcc, 0, v14")
            k(f"s_and_b64 vcc, vcc, {s(S_T+2,2)}")
        self.poll(loads, check, "pg")
        self.stamp(5)
        k(f"s_mov_b64 exec, {s(S_T+2,2)}")
        for b in range(5):
            er, ei = GB+4*b, GB+4*b+2
            k(f"""v_mul_f32 v{er+1}, v{QR+b}, v{er}
            v_mul_f32 v{ei+1}, v{QR+b}, v{ei}
            v_fma_f32 v{er+1}, -v{QI+b}, v{ei}, v{er+1}
            v_fma_f32 v{ei+1}, v{QI+b}, v{er}, v{ei+1}
            ds_add_f32 v12, v{er+1} offset:{L_CAR+128*b}
            ds_add_f32 v12, v{ei+1} offset:{L_CAR+128*b+4}""")
        k("s_mov_b64 exec, -1")
        k("s_waitcnt lgkmcnt(0)")
        k("s_barrier")
        for b in range(5):
            k(f"ds_read_b64 {v(GB+2*b,2)}, v12 offset:{L_CAR+128*b}")
        L_T = 102400
        k(f"""s_mul_i32 s{S_T}, s{S_W}, 12800
        s_add_u32 s{S_T}, s{S_T}, {L_T}
        v_lshrrev_b32 v14, 4, v0
        v_mul_u32_u24 v13, 80, v11
        v_lshl_add_u32 v13, v14, 4, v13
        v_add_u32 v13, s{S_T}, v13
        v_lshrrev_b32 v{TM}, 2, v11
        v_lshl_add_u32 v{TM}, v14, 3, v{TM}
        v_mul_u32_u24 v{TM}, 80, v{TM}
        v_and_b32 v14, 3, v11
        v_lshl_add_u32 v14, v14, 3, v{TM}
        v_add_u32 v14, s{S_T}, v14
        v_lshlrev_b32 v12, 4, v0
        s_lshl_b32 s{S_T}, s{S_I}, 3
        s_lshl_b32 s{S_T+1}, s{S_W}, 1
        s_add_u32 s{S_T}, s{S_T}, s{S_T+1}
        s_mul_i32 s{S_T}, s{S_T}, 40
        s_mul_i32 s{S_T+1}, s{S_J}, 5
        s_add_u32 s{S_T}, s{S_T}, s{S_T+1}
        s_lshl_b32 s{S_T}, s{S_T}, 10
        s_add_u32 s{S_T}, s{S_T}, {WS_A2[0]}
        s_add_u32 s{S_T+1}, s{S_T}, 4096
        s_add_u32 s{S_T+2}, s{S_T}, {40*1024}
        s_add_u32 s{S_T+3}, s{S_T}, {40*1024+4096}
        s_waitcnt lgkmcnt(0)""")
        for b in range(5):
            cr, ci = GB+2*b, GB+2*b+1
            k(f"""v_fma_f32 v{CR+b}, v{VR+b}, v{cr}, v{CR+b}
            v_fma_f32 v{CI+b}, v{VR+b}, v{ci}, v{CI+b}
            v_fma_f32 v{CR+b}, -v{VI+b}, v{ci}, v{CR+b}
            v_fma_f32 v{CI+b}, v{VI+b}, v{cr}, v{CI+b}""")
        for r in range(8):
            for b in range(5):
                pr = CR+b if r == 0 else tok(r-1, b)
                pi = CI+b if r == 0 else tok(r-1, 5+b)
                k(f"""v_fmac_f32 v{tok(r,b)}, v{LR+b}, v{pr}
                v_fmac_f32 v{tok(r,5+b)}, v{LR+b}, v{pi}""")
            for b in range(5):
                pr = CR+b if r == 0 else tok(r-1, b)
                pi = CI+b if r == 0 else tok(r-1, 5+b)
                k(f"""v_fma_f32 v{tok(r,b)}, -v{LI+b}, v{pi}, v{tok(r,b)}
                v_fmac_f32 v{tok(r,5+b)}, v{LI+b}, v{pr}""")
        PK = 136
        for b in range(5):
            for comp in range(2):
                d = PK + 4*(2*b + comp); ng = "-" if comp else ""
                for h in range(4):
                    k(f"v_cvt_pk_bf16_f32 v{d+h}, {ng}v{tok(2*h,5*comp+b)}, {ng}v{tok(2*h+1,5*comp+b)}")
                k(f"ds_write_b128 v13, {v(d,4)} offset:{(32*b+16*comp)*80}")
        k("s_waitcnt lgkmcnt(0)")
        FRG = 16
        last = None
        toks = []
        for tt2 in range(2):
            for b in range(5):
                d = FRG + 4*(5*tt2 + b)
                k(f"ds_read_b64_tr_b16 {v(d,2)}, v14 offset:{(32*b)*80+32*tt2}")
                toks.append(k(f"ds_read_b64_tr_b16 {v(d+2,2)}, v14 offset:{(32*b+4)*80+32*tt2}"))
        for tt2 in range(2):
            for b in range(5):
                d = FRG + 4*(5*tt2 + b)
                k.wait_lg(toks[5*tt2+b])
                so = S_T + 2*tt2 + (1 if b == 4 else 0)
                last = k(f"buffer_store_dwordx4 {v(d,4)}, v12, {s(SRD_WS,4)}, s{so} offen offset:{1024*(b%4)} sc1")
        self.stamp(6)
        self.flag_a2(0, last)
        self.phase2(0)

    def flag_a2(self, side, last):
        k = self.k
        k(f"""s_lshl_b32 s{S_T}, s{S_I}, 3
        s_add_u32 s{S_T}, s{S_T}, s{S_J}
        s_lshl_b32 s{S_T}, s{S_T}, 2
        s_add_u32 s{S_T}, s{S_T}, s{S_W}
        s_lshl_b32 s34, s{S_T}, 6
        s_add_u32 s{S_T}, s34, {WS_FA + side*512*FLS}""")
        k.wait_vm(last)
        self.set_flag(S_T, 12)
        self.stamp(7)

    def b2_prefetch(self, side):
        k = self.k
        S = [40, 48][side]; KS = [10, 12][side]
        k.c("---- phase-2 weight prefetch into AGPRs")
        if side == 0:
            k(f"""v_min_u32 v11, 14, v0
            v_mul_u32_u24 v12, 86, v11
            v_lshrrev_b32 v12, 8, v12               ; l/3
            v_mul_u32_u24 v13, 3, v12
            v_sub_u32 v13, v11, v13
            v_mul_u32_u24 v12, 10, v12
            v_add_u32 v12, v12, v13
            v_lshlrev_b32 v12, 6, v12
            s_mul_i32 s{S_T}, s{S_W}, 10
            s_lshr_b32 s{S_T}, s{S_T}, 2
            s_mul_i32 s{S_T+1}, s{S_J}, 50
            s_add_u32 s{S_T}, s{S_T}, s{S_T+1}
            s_lshl_b32 s{S_T}, s{S_T}, 6
            s_add_u32 s{S_T}, s{S_T}, {WS_FB}""")
        else:
            k(f"""v_min_u32 v11, 23, v0
            v_lshrrev_b32 v12, 1, v11
            v_mul_u32_u24 v12, 10, v12
            v_and_b32 v13, 1, v11
            v_add_u32 v12, v12, v13
            v_lshlrev_b32 v12, 6, v12
            s_mul_i32 s{S_T}, s{S_W}, 120
            s_mul_i32 s{S_T+1}, s{S_J}, 5
            s_lshr_b32 s{S_T+1}, s{S_T+1}, 2
            s_add_u32 s{S_T}, s{S_T}, s{S_T+1}
            s_lshl_b32 s{S_T}, s{S_T}, 6
            s_add_u32 s{S_T}, s{S_T}, {WS_FB + 512*FLS}""")
        self.poll(lambda: k(f"buffer_load_dword v13, v12, {s(SRD_WS,4)}, s{S_T} offen sc1"),
                  lambda: k(f"v_cmp_ne_u32 vcc, s{S_TAG}, v13"), "pb")
        k(f"""v_lshlrev_b32 v12, 4, v0
        s_mul_i32 s{S_T}, s{S_J}, {5*S}
        s_mul_i32 s{S_T+1}, s{S_W}, {KS}
        s_add_u32 s{S_T}, s{S_T}, s{S_T+1}
        s_lshl_b32 s{S_T}, s{S_T}, 10
        s_add_u32 s{S_T}, s{S_T}, {WS_B2S[side]}""")
        for ss in range(KS):
            for cc in range(5):
                off = (cc*S + ss)*1024
                k(f"s_add_u32 s{S_T+1}, s{S_T}, {off}")
                self.b2_tok = k(f"buffer_load_dwordx4 {a((ss*5+cc)*4,4)}, v12, {s(SRD_WS,4)}, s{S_T+1} offen sc1")

    def mlp(self):
        k = self.k
        ACC = 16
        WSA = 112
        SUM, SQ = 136, 140
        ONE = 144
        FR = [148, 176]
        B1R = 204
        XE, XO, W0, RA, AE, AO, RXB = 1, 2, 3, 6, 7, 8, 206
        AEB, AOB = 9, 10
        STGS = 40960
        k.label("L_mlp")
        k.c("================ MLP side, phase 1")
        self.srd(SRD_W, 10, 1966080)
        k(f"""v_lshrrev_b32 v11, 4, v0
        v_and_b32 v12, 7, v0
        v_xor_b32 v12, v12, v11
        v_lshlrev_b32 v12, 4, v12
        v_lshrrev_b32 v13, 3, v0
        v_mul_u32_u24 v{XE}, 1280, v13
        v_add_u32 v{XE}, v{XE}, v12
        v_xor_b32 v{XO}, 64, v{XE}
        s_lshl_b32 s{S_T+2}, s{S_I}, 7
        s_lshl_b32 s{S_T+3}, s{S_W}, 5
        s_add_u32 s{S_T+2}, s{S_T+2}, s{S_T+3}
        s_mul_i32 s{S_XO}, s{S_T+2}, 1280
        s_add_u32 s{S_XO+1}, s{S_XO}, {8*1280}
        s_add_u32 s{S_XO+2}, s{S_XO}, {16*1280}
        s_add_u32 s{S_XO+3}, s{S_XO}, {24*1280}
        s_lshl_b32 s{S_MX}, s{S_W}, 12
        s_mul_i32 s{S_MW}, s{S_W}, 6144
        s_mul_i32 s{S_WO}, s{S_W}, {16*3072}
        s_mul_i32 s{S_T}, s{S_J}, 384
        s_add_u32 s{S_WO}, s{S_WO}, s{S_T}""")
        for n in range(3):
            k(f"""v_add_u32 v11, {64*n}, v0
            v_mul_u32_u24 v12, 2731, v11
            v_lshrrev_b32 v12, 16, v12              ; row = u/24
            v_mul_u32_u24 v13, 24, v12
            v_sub_u32 v13, v11, v13                 ; slot
            v_bfe_u32 v14, v12, 1, 1
            v_lshlrev_b32 v14, 2, v14
            v_xor_b32 v13, v13, v14
            v_mul_u32_u24 v12, 3072, v12
            v_lshl_add_u32 v{W0+n}, v13, 4, v12""")
        def dma_list(t):
            base = (t % 4)*STGS
            L = []
            for e in range(4):
                L.append((f"s_add_u32 m0, s{S_MX}, {base + 24576 + e*1024 - t*128}",
                          f"buffer_load_dwordx4 v{XE if e%2==0 else XO}, {s(SRD_X,4)}, s{S_XO+e} offen offset:{t*128} lds"))
            for n in range(6):
                L.append((f"s_add_u32 m0, s{S_MW}, {base + n*1024}\ns_add_u32 s{S_WO+1}, s{S_WO}, {(t*64 + 8*(n//3))*3072}",
                          f"buffer_load_dwordx4 v{W0+n%3}, {s(SRD_W,4)}, s{S_WO+1} offen lds"))
            return L
        stage_tok = {}
        def dma_stage(t):
            for m, ld in dma_list(t):
                k(m); stage_tok[t] = k(ld)
        dma_stage(0)
        k(f"""v_min_u32 v11, 47, v0
        s_mul_i32 s{S_T}, s{S_J}, 192
        s_mul_i32 s{S_T+1}, s{S_W}, 48
        s_add_u32 s{S_T}, s{S_T}, s{S_T+1}
        v_add_lshl_u32 v11, v11, s{S_T}, 1
        global_load_ushort v{B1R}, v11, {ptr(11)}""")
        self.srd(SRD_T1, 12, 1966080)
        SU, SC = 34, 35
        SCR = 3*STGS
        k(f"""s_sub_u32 s{S_T}, s{S_PW}, 480
        s_cmp_lt_u32 s{S_PW}, 480
        s_cselect_b32 s{SU}, s{S_PW}, s{S_T}
        s_mul_i32 s{SC}, s{SU}, 6554
        s_lshr_b32 s{SC}, s{SC}, 16              ; s = unit/10
        s_mul_i32 s{S_T}, s{SC}, 10
        s_sub_u32 s{S_T}, s{SU}, s{S_T}          ; cg
        s_mul_i32 s{S_T+1}, s{SC}, {32*1280}
        s_lshl_b32 s{S_T+2}, s{S_T}, 7
        s_add_u32 s{S_T+1}, s{S_T+1}, s{S_T+2}
        s_mul_i32 s{S_T+3}, s{S_T}, {4*48}
        s_add_u32 s{S_T+3}, s{S_T+3}, s{SC}
        s_lshl_b32 s{S_T+3}, s{S_T+3}, 10
        s_add_u32 s47, s{S_T+3}, {WS_B2S[1]}
        v_lshrrev_b32 v12, 3, v0
        v_mul_u32_u24 v12, 1280, v12
        v_and_b32 v13, 7, v0
        v_lshl_add_u32 v12, v13, 4, v12""")
        for e in range(4):
            k(f"s_add_u32 m0, s{S_MX}, {SCR + e*1024}")
            k(f"s_add_u32 s{S_T+2}, s{S_T+1}, {e*8*1280}")
            swz_tok = k(f"buffer_load_dwordx4 v12, {s(SRD_T1,4)}, s{S_T+2} offen lds")
        for t in (1, 2): dma_stage(t)
        self.make_tag()
        k(f"""v_and_b32 v11, 31, v0
        v_lshrrev_b32 v12, 5, v0                 ; h
        v_bfe_u32 v13, v0, 1, 3
        v_xor_b32 v13, v13, v12
        v_lshlrev_b32 v13, 4, v13
        v_lshl_add_u32 v13, v11, 7, v13
        v_add_u32 v{RXB}, s{S_MX}, v13
        v_xor_b32 v{RXB+1}, 32, v{RXB}
        v_xor_b32 v{RXB+2}, 64, v{RXB}
        v_xor_b32 v{RXB+3}, 96, v{RXB}
        v_bfe_u32 v13, v0, 2, 2                  ; r
        v_lshl_add_u32 v14, v12, 3, v13
        v_mul_u32_u24 v14, 384, v14
        v_bfe_u32 v15, v0, 4, 1
        v_lshl_add_u32 v14, v15, 5, v14
        v_and_b32 v15, 3, v0
        v_lshl_add_u32 v14, v15, 3, v14
        v_bfe_u32 v13, v0, 3, 1                  ; rbit
        v_lshlrev_b32 v13, 6, v13
        v_add_u32 v{AEB}, v14, v13
        v_sub_u32 v{AOB}, v14, v13
        v_mov_b32 v{ONE}, 0x3f803f80
        v_mov_b32 v{ONE+1}, 0x3f803f80""")
        def set_rd(t):
            base = (t % 4)*STGS
            k(f"""v_add_u32 v{AE}, {base}, v{AEB}
            v_add_u32 v{AO}, {base}, v{AOB}""")
        def reads(n):
            st = FR[n % 2]; ks = n % 4; base = ((n//4) % 4)*STGS
            L = [f"v_add_u32 v{RA}, {base+24576}, v{RXB+ks}\nds_read_b128 {v(st,4)}, v{RA}"]
            for T in range(6):
                for e in range(2):
                    L.append(f"ds_read_b64_tr_b16 {v(st+4+4*T+2*e,2)}, v{AE if T%2==0 else AO} offset:{(16*ks+4*e)*384+T*64}")
            return L
        set_rd(0)
        k.wait_vm(stage_tok[0])
        k("s_barrier")
        self.stamp(1)
        for r in reads(0): k(r)
        L_WS, L_B1 = 110592, 111360
        pending = []
        for n in range(40):
            st = FR[n % 2]
            k.c(f"---- mlp k-step {n}")
            k("s_waitcnt lgkmcnt(0)")
            if n % 4 == 3 and n + 1 < 40:
                T = (n + 1)//4
                k.wait_vm(stage_tok[T])
                k("s_barrier")
                set_rd(T)
                if T == 1: pending += [(3, m, ld) for m, ld in dma_list(3)]
                if T + 3 < 10: pending += [(T+3, m, ld) for m, ld in dma_list(T+3)]
            rd = reads(n+1) if n + 1 < 40 else []
            c0 = lambda r, cnt: "0" if n == 0 else v(r, cnt)
            big = [f"v_mfma_f32_32x32x16_bf16 {v(ACC+16*T,16)}, {v(st+4+4*T,4)}, {v(st,4)}, {c0(ACC+16*T,16)}" for T in range(6)]
            small = [f"v_mfma_f32_4x4x4_16b_bf16 {v(SQ,4)}, {v(st,2)}, {v(st,2)}, {c0(SQ,4)}",
                     f"v_mfma_f32_4x4x4_16b_bf16 {v(SUM,4)}, {v(ONE,2)}, {v(st,2)}, {c0(SUM,4)}",
                     f"v_mfma_f32_4x4x4_16b_bf16 {v(SQ,4)}, {v(st+2,2)}, {v(st+2,2)}, {v(SQ,4)}",
                     f"v_mfma_f32_4x4x4_16b_bf16 {v(SUM,4)}, {v(ONE,2)}, {v(st+2,2)}, {v(SUM,4)}"]
            ri = 0
            for T in range(6):
                k(big[T])
                cnt = [3, 3, 3, 2, 2, 0][T]
                for _ in range(cnt):
                    if ri < len(rd): k(rd[ri]); ri += 1
                if T >= 3 and pending:
                    p = pending.pop(0); k(p[1]); stage_tok[p[0]] = k(p[2])
                if T == 5 and pending:
                    p = pending.pop(0); k(p[1]); stage_tok[p[0]] = k(p[2])
                    if len(pending) > 6:
                        p = pending.pop(0); k(p[1]); stage_tok[p[0]] = k(p[2])
                if T == 1: k(small[0]); k(small[1])
                if T == 3: k(small[2]); k(small[3])
            assert ri == len(rd)
            sk = k.newlabel("ws")
            k(f"""s_cmp_lg_u32 s{S_W}, {n%4}
            s_cbranch_scc1 {sk}""")
            for hh in range(2):
                for T in range(6):
                    cc = "0" if (n < 4 and hh == 0) else v(WSA+4*T, 4)
                    k(f"v_mfma_f32_4x4x4_16b_bf16 {v(WSA+4*T,4)}, {v(ONE,2)}, {v(st+4+4*T+2*hh,2)}, {cc}")
            k.label(sk)
            if n == 1:
                k.wait_vm(swz_tok)
                k(f"""v_lshrrev_b32 v11, 5, v0
                v_bfe_u32 v12, v0, 4, 1
                v_lshlrev_b32 v11, 4, v11
                v_lshl_add_u32 v11, v12, 2, v11
                v_bfe_u32 v12, v0, 2, 2
                v_add_u32 v11, v11, v12
                v_lshlrev_b32 v11, 7, v11
                v_and_b32 v12, 3, v0
                v_lshl_add_u32 v11, v12, 3, v11
                v_add_u32 v11, s{S_MX}, v11
                v_add_u32 v11, {SCR}, v11
                v_lshlrev_b32 v12, 4, v0""")
                k("s_waitcnt lgkmcnt(0)")
                for cc in range(4):
                    for e in range(2):
                        k(f"ds_read_b64_tr_b16 {a(240+4*cc+2*e,2)}, v11 offset:{e*1024+cc*32}")
                k("s_waitcnt lgkmcnt(0)")
                for cc in range(4):
                    k(f"s_add_u32 s{S_T}, s47, {cc*48*1024}")
                    st_tok = k(f"buffer_store_dwordx4 {a(240+4*cc,4)}, v12, {s(SRD_WS,4)}, s{S_T} offen sc1")
            if n == 11:
                k.wait_vm(st_tok)
                k(f"""s_lshl_b32 s{S_T}, s{SU}, 6
                s_add_u32 s{S_T}, s{S_T}, {WS_FB + 512*FLS}""")
                self.set_flag(S_T, 11)
            if n == 28:
                k(f"""v_min_u32 v11, 47, v0
                s_mul_i32 s{S_T}, s{S_W}, 48
                v_add_lshl_u32 v11, v11, s{S_T}, 2
                v_add_u32 v11, {L_WS}, v11
                v_lshlrev_b32 v{B1R}, 16, v{B1R}
                v_mov_b32 v12, 0
                ds_write_b32 v11, v12
                ds_write_b32 v11, v{B1R} offset:768""")
        assert not pending
        self.stamp(2)
        k.c("================ MLP epilogue")
        self.b2_prefetch(1)
        TM = 148
        k(f"""v_and_b32 v11, 31, v0
        v_lshlrev_b32 v12, 2, v11
        v_add_u32 v12, {L_WS}, v12""")
        for T in range(6):
            k(f"ds_add_f32 v12, v{WSA+4*T} offset:{128*T}")
        AT, BT = 204, 206
        k(f"""v_and_b32 v13, 3, v0
        v_cmp_eq_u32 vcc, 1, v13
        v_cndmask_b32 v{SQ}, v{SQ}, v{SQ+1}, vcc
        v_cmp_eq_u32 vcc, 2, v13
        v_cndmask_b32 v{SQ}, v{SQ}, v{SQ+2}, vcc
        v_cmp_eq_u32 vcc, 3, v13
        v_cndmask_b32 v{SQ}, v{SQ}, v{SQ+3}, vcc
        v_mov_b32 v{SQ+1}, v{SQ}
        v_permlane32_swap_b32 v{SUM}, v{SUM+1}
        v_permlane32_swap_b32 v{SQ}, v{SQ+1}
        v_add_f32 v{SUM}, v{SUM}, v{SUM+1}
        v_add_f32 v{SQ}, v{SQ}, v{SQ+1}
        s_mov_b32 s{S_T}, {fbits(1.0/640)}
        v_mul_f32 v{SUM}, s{S_T}, v{SUM}
        v_mul_f32 v{TM}, v{SUM}, v{SUM}
        v_fma_f32 v{SQ}, v{SQ}, s{S_T}, -v{TM}
        v_max_f32 v{SQ}, 0, v{SQ}
        v_add_f32 v{TM}, {fbits(EPS)}, v{SQ}
        v_rsq_f32 v{SUM+1}, v{TM}
        v_mul_f32 v{TM}, v{SUM+1}, v{SUM+1}
        v_mul_f32 v{TM}, v{TM}, v{SQ}
        v_add_f32 v{TM}, {fbits(EPS)}, v{TM}
        v_rsq_f32 v{TM}, v{TM}
        v_mul_f32 v{AT}, v{TM}, v{SUM+1}
        v_mul_f32_e64 v{BT}, v{SUM}, -v{AT}
        s_lshl_b32 s{S_T}, s{S_W}, 8
        v_lshlrev_b32 v13, 3, v11
        v_add_u32 v13, s{S_T}, v13
        v_add_u32 v13, {LDS_STAT}, v13
        ds_write_b64 v13, {v(SUM,2)}
        v_lshrrev_b32 v14, 5, v0
        v_lshlrev_b32 v12, 4, v14
        v_add_u32 v12, {L_WS}, v12
        v_lshrrev_b32 v13, 4, v11
        v_mul_u32_u24 v13, {48*1024}, v13
        v_and_b32 v15, 15, v0
        v_lshl_add_u32 v13, v15, 4, v13
        v_lshl_add_u32 v13, v14, 8, v13
        s_lshl_b32 s{S_T}, s{S_I}, 3
        s_lshl_b32 s{S_T+1}, s{S_W}, 1
        s_add_u32 s{S_T}, s{S_T}, s{S_T+1}
        s_mul_i32 s{S_T}, s{S_T}, 48
        s_mul_i32 s{S_T+1}, s{S_J}, 6
        s_add_u32 s{S_T}, s{S_T}, s{S_T+1}
        s_lshl_b32 s{S_T}, s{S_T}, 10
        s_add_u32 s{S_T}, s{S_T}, {WS_A2[1]}
        s_add_u32 s{S_T+1}, s{S_T}, 4096
        s_mov_b32 s{S_T+2}, {fbits(-2*LOG2E*math.sqrt(2/math.pi))}
        s_mov_b32 s{S_T+3}, s{S_T+2}
        s_mov_b32 s{S_T+4}, {fbits(-2*LOG2E*math.sqrt(2/math.pi)*0.044715)}
        s_mov_b32 s{S_T+5}, s{S_T+4}
        v_mov_b32 v{TM}, s{S_T+2}
        v_mov_b32 v{TM+1}, s{S_T+2}
        s_waitcnt lgkmcnt(0)
        s_barrier""")
        self.stamp(3)
        C1 = TM
        WB = [150, 182]
        WB = [112-0, 150]
        Q = 182
        PKO = [198, 208]
        def wreads(T):
            b = WB[T % 2]; tk = None
            for q4 in range(4):
                k(f"ds_read_b128 {v(b+4*q4,4)}, v12 offset:{(32*T+8*q4)*4}")
                tk = k(f"ds_read_b128 {v(b+16+4*q4,4)}, v12 offset:{768+(32*T+8*q4)*4}")
            return tk
        tk = wreads(0)
        last = None
        for T in range(6):
            k.wait_lg(tk)
            if T + 1 < 6: tk = wreads(T+1)
            b = WB[T % 2]
            for c in range(2):
                po = PKO[c]
                prs = range(4*c, 4*c+4)
                for p in prs:
                    z = ACC + 16*T + 2*p
                    k(f"v_pk_fma_f32 {v(b+2*p,2)}, {v(BT,2)}, {v(b+2*p,2)}, {v(b+16+2*p,2)} op_sel_hi:[0,1,1]")
                for p in prs:
                    z = ACC + 16*T + 2*p
                    k(f"v_pk_fma_f32 {v(z,2)}, {v(AT,2)}, {v(z,2)}, {v(b+2*p,2)} op_sel_hi:[0,1,1]")
                for p in prs:
                    z = ACC + 16*T + 2*p; q = Q + 2*(p % 4)
                    k(f"v_pk_mul_f32 {v(q,2)}, {v(z,2)}, {v(z,2)}")
                for p in prs:
                    q = Q + 2*(p % 4)
                    k(f"v_pk_fma_f32 {v(q,2)}, {v(q,2)}, {s(S_T+4,2)}, {v(C1,2)}")
                for p in prs:
                    z = ACC + 16*T + 2*p; q = Q + 2*(p % 4)
                    k(f"v_pk_mul_f32 {v(q,2)}, {v(q,2)}, {v(z,2)}")
                for p in prs:
                    q = Q + 2*(p % 4)
                    k(f"v_exp_f32 v{q}, v{q}\nv_exp_f32 v{q+1}, v{q+1}")
                for p in prs:
                    q = Q + 2*(p % 4)
                    k(f"v_pk_add_f32 {v(q,2)}, {v(q,2)}, 1.0 op_sel_hi:[1,0]")
                for p in prs:
                    q = Q + 2*(p % 4)
                    k(f"v_rcp_f32 v{q}, v{q}\nv_rcp_f32 v{q+1}, v{q+1}")
                for p in prs:
                    z = ACC + 16*T + 2*p; q = Q + 2*(p % 4)
                    k(f"v_pk_mul_f32 {v(q,2)}, {v(q,2)}, {v(z,2)}")
                for p in prs:
                    q = Q + 2*(p % 4)
                    k(f"v_cvt_pk_bf16_f32 v{po+p%4}, v{q}, v{q+1}")
                last = k(f"buffer_store_dwordx4 {v(po,4)}, v13, {s(SRD_WS,4)}, s{S_T+(T//4)} offen offset:{(T%4)*1024+c*512} sc1")
        self.stamp(6)
        self.flag_a2(1, last)
        self.phase2(1)

    def phase2(self, side):
        k = self.k
        if self.stop == "p1":
            k("s_waitcnt vmcnt(0)")
            self.finish_wg(side)
            return
        S = [40, 48][side]; KS = [10, 12][side]
        ACC = 16; RING = 96; NR = 32
        hfS = [0, 1][side]
        hfO = 1 - hfS
        LV, RW, RR = 1, 2, 3
        OO = 8
        XB, DB, BB = 224, 234, 244
        SA = 36
        k.c(f"================ phase 2 (side {side})")
        k(f"""v_lshlrev_b32 v{LV}, 4, v0
        v_and_b32 v13, 7, v0
        v_lshlrev_b32 v13, 6, v13
        s_lshl_b32 s{S_T}, s{S_I}, 5
        s_lshl_b32 s{S_T+1}, s{S_W}, 3
        s_add_u32 s{S_T}, s{S_T}, s{S_T+1}
        s_lshl_b32 s{S_T}, s{S_T}, 6
        s_add_u32 s{S_T}, s{S_T}, {WS_FA + side*512*FLS}
        s_mul_i32 s{S_T+1}, s{S_I}, {8*S}
        s_mul_i32 s{S_T+2}, s{S_W}, {KS}
        s_add_u32 s{S_T+1}, s{S_T+1}, s{S_T+2}
        s_lshl_b32 s{S_T+1}, s{S_T+1}, 10
        s_add_u32 s{S_T+1}, s{S_T+1}, {WS_A2[side]}""")
        for t4 in range(4):
            k(f"s_add_u32 s{SA+t4}, s{S_T+1}, {(4*hfS+t4)*S*1024}")
            k(f"s_add_u32 s{SA+4+t4}, s{S_T+1}, {(4*hfO+t4)*S*1024}")
        self.poll(lambda: k(f"buffer_load_dword v14, v13, {s(SRD_WS,4)}, s{S_T} offen sc1"),
                  lambda: k(f"v_cmp_ne_u32 vcc, s{S_TAG}, v14"), "pa")
        self.stamp(8)
        seq = [(p, ss, t4) for p in range(2) for ss in range(KS) for t4 in range(4)]
        atok = {}
        def aload(idx):
            p, ss, t4 = seq[idx]
            r = RING + 4*(idx % NR)
            if ss % 4 == 0 and ss > 0:
                k(f"s_add_u32 s{SA+4*p+t4}, s{SA+4*p+t4}, 4096")
            atok[idx] = k(f"buffer_load_dwordx4 {v(r,4)}, v{LV}, {s(SRD_WS,4)}, s{SA+4*p+t4} offen offset:{(ss%4)*1024} sc1")
        nxt = 0
        while nxt < NR - 4:
            aload(nxt); nxt += 1
        k(f"""v_and_b32 v13, 15, v0
        v_mul_u32_u24 v{RW}, {RED_RS}, v13
        v_lshrrev_b32 v14, 4, v0
        v_lshl_add_u32 v{RW}, v14, 4, v{RW}
        s_mul_i32 s{S_T}, s{S_W}, {RED_W}
        s_add_u32 s{S_T}, s{S_T}, {LDS_RED}
        v_add_u32 v{RW}, s{S_T}, v{RW}
        s_mul_i32 s{S_T}, s{S_W}, {16*RED_RS}
        s_add_u32 s{S_T}, s{S_T}, {LDS_RED}""")
        for it in range(5):
            k(f"""v_add_u32 v13, {64*it}, v0
            v_mul_u32_u24 v14, 3277, v13
            v_lshrrev_b32 v14, 16, v14               ; row = q/20
            v_mul_u32_u24 v15, 20, v14
            v_sub_u32 v15, v13, v15                  ; c4
            v_mul_u32_u24 v13, {RED_RS}, v14
            v_lshl_add_u32 v13, v15, 4, v13
            v_add_u32 v{RR+it}, s{S_T}, v13
            v_mul_u32_u24 v13, 2560, v14
            v_lshl_add_u32 v{OO+it}, v15, 4, v13""")
        def mfmas(p, ss):
            nonlocal nxt
            base_idx = (p*KS + ss)*4
            cnt = 0
            for t4 in range(4):
                idx = base_idx + t4
                k.wait_vm(atok[idx])
                for cc in range(5):
                    d = ACC + (t4*5 + cc)*4
                    c_ = "0" if ss == 0 else v(d, 4)
                    k(f"v_mfma_f32_16x16x32_bf16 {v(d,4)}, {a((ss*5+cc)*4,4)}, {v(RING+4*(idx%NR),4)}, {c_}")
                    if cc == 1 and nxt < len(seq) and nxt < idx + NR - 1 - 3 + 0:
                        aload(nxt); nxt += 1
            return
        def reduce():
            for t4 in range(4):
                for cc in range(5):
                    k(f"ds_write_b128 v{RW}, {v(ACC+(t4*5+cc)*4,4)} offset:{t4*16*RED_RS+cc*64}")
            k("s_waitcnt lgkmcnt(0)")
            k("s_barrier")
            toks = []
            for it in range(5):
                for sw in range(4):
                    off = sw*RED_W
                    toks.append(k(f"ds_read_b128 {v(ACC+(it*4+sw)*4,4)}, v{RR+it} offset:{off}"))
                if it >= 2:
                    pass
            for it in range(5):
                k.wait_lg(toks[4*it+3])
                b = ACC + it*16
                for h in range(2):
                    k(f"v_pk_add_f32 {v(b+2*h,2)}, {v(b+2*h,2)}, {v(b+4+2*h,2)}")
                    k(f"v_pk_add_f32 {v(b+8+2*h,2)}, {v(b+8+2*h,2)}, {v(b+12+2*h,2)}")
                for h in range(2):
                    k(f"v_pk_add_f32 {v(b+2*h,2)}, {v(b+2*h,2)}, {v(b+8+2*h,2)}")
        assert 3*RED_W < 65536
        k.wait_vm(self.b2_tok)
        for ss in range(KS): mfmas(0, ss)
        self.stamp(9)
        reduce()
        k(f"""s_lshl_b32 s{S_T}, s{S_I}, 3
        s_add_u32 s{S_T}, s{S_T}, s{S_J}
        s_mul_i32 s{S_T}, s{S_T}, 20480
        s_mul_i32 s{S_T+1}, s{S_W}, 5120
        s_add_u32 s{S_T}, s{S_T}, s{S_T+1}
        s_add_u32 s44, s{S_T}, {WS_PART + (1-side)*128*20480}
        s_add_u32 s{S_T}, s{S_T}, {WS_PART + side*128*20480}
        s_add_u32 s{S_T+1}, s{S_T}, 4096""")
        for it in range(5):
            send_tok = k(f"buffer_store_dwordx4 {v(ACC+it*16,4)}, v{LV}, {s(SRD_WS,4)}, s{S_T+it//4} offen offset:{(it%4)*1024} sc1")
        k("s_barrier")
        k(f"""s_lshl_b32 s{S_T}, s{S_I}, 7
        s_lshl_b32 s{S_T+1}, s{S_W}, 4
        s_add_u32 s{S_T}, s{S_T}, s{S_T+1}
        s_add_u32 s{S_T}, s{S_T}, {64*hfO}
        s_mul_i32 s{S_T}, s{S_T}, 2560
        s_mul_i32 s{S_T+1}, s{S_J}, 320
        s_add_u32 s35, s{S_T}, s{S_T+1}
        s_lshr_b32 s{S_T}, s35, 1
        s_lshr_b32 s{S_T+1}, s{S_T+1}, 1""")
        self.srd(SRD_T1, 8, 1280)
        self.srd(SRD_T2, 13, 1280)
        for it in range(5):
            k(f"""v_lshrrev_b32 v13, 1, v{OO+it}
            buffer_load_dwordx2 {v(XB+2*it,2)}, v13, {s(SRD_X,4)}, s{S_T} offen
            v_add_u32 v13, {64*it}, v0
            v_mul_u32_u24 v14, 3277, v13
            v_lshrrev_b32 v14, 16, v14
            v_mul_u32_u24 v14, 20, v14
            v_sub_u32 v14, v13, v14
            v_lshlrev_b32 v14, 3, v14
            buffer_load_dwordx2 {v(DB+2*it,2)}, v14, {s(SRD_T1,4)}, s{S_T+1} offen""")
            ep_tok = k(f"buffer_load_dwordx2 {v(BB+2*it,2)}, v14, {s(SRD_T2,4)}, s{S_T+1} offen")
        flagged = False
        for ss in range(KS):
            mfmas(1, ss)
            if not flagged and k.vm_done >= send_tok:
                k(f"s_add_u32 s{S_T}, s34, {WS_FP + side*512*FLS}")
                self.set_flag(S_T, 14)
                flagged = True
        if not flagged:
            k.wait_vm(send_tok)
            k(f"s_add_u32 s{S_T}, s34, {WS_FP + side*512*FLS}")
            self.set_flag(S_T, 14)
        self.stamp(10)
        reduce()
        PB = RING
        k(f"""s_add_u32 s{S_T}, s34, {WS_FP + (1-side)*512*FLS}
        v_mov_b32 v13, 0""")
        self.poll(lambda: k(f"buffer_load_dword v14, v13, {s(SRD_WS,4)}, s{S_T} offen sc1"),
                  lambda: k(f"v_cmp_ne_u32 vcc, s{S_TAG}, v14"), "pp")
        self.stamp(11)
        k(f"s_add_u32 s{S_T}, s44, 4096")
        ptoks = []
        for it in range(5):
            ptoks.append(k(f"buffer_load_dwordx4 {v(PB+4*it,4)}, v{LV}, {s(SRD_WS,4)}, s{44 if it<4 else S_T} offen offset:{(it%4)*1024} sc1"))
        ST = RING + 32; T2 = RING + 48
        k(f"""s_lshl_b32 s{S_T+1}, s{S_W}, 7
        s_add_u32 s{S_T+1}, s{S_T+1}, {LDS_STAT + 64*hfO*8}""")
        stoks = []
        for it in range(5):
            k(f"""v_add_u32 v13, {64*it}, v0
            v_mul_u32_u24 v13, 3277, v13
            v_lshrrev_b32 v13, 16, v13
            v_lshl_add_u32 v13, v13, 3, s{S_T+1}""")
            stoks.append(k(f"ds_read_b64 {v(ST+2*it,2)}, v13"))
        for it in range(5):
            b = ACC + it*16
            xx, dd, bb = T2, T2+4, T2+8
            for (src, dst) in ((XB, xx), (DB, dd), (BB, bb)):
                for h in range(2):
                    k(f"v_lshlrev_b32 v{dst+2*h}, 16, v{src+2*it+h}")
                    k(f"v_and_b32 v{dst+2*h+1}, 0xffff0000, v{src+2*it+h}")
            k.wait_lg(stoks[it])
            for h in range(2):
                k(f"""v_pk_add_f32 {v(b+2*h,2)}, {v(b+2*h,2)}, {v(bb+2*h,2)}
                v_pk_add_f32 {v(b+2*h,2)}, {v(b+2*h,2)}, {v(xx+2*h,2)}
                v_pk_add_f32 {v(xx+2*h,2)}, {v(xx+2*h,2)}, {v(ST+2*it,2)} op_sel_hi:[1,0] neg_lo:[0,1] neg_hi:[0,1]
                v_pk_mul_f32 {v(dd+2*h,2)}, {v(dd+2*h,2)}, {v(ST+2*it,2)} op_sel:[0,1] op_sel_hi:[1,1]
                v_pk_fma_f32 {v(b+2*h,2)}, {v(xx+2*h,2)}, {v(dd+2*h,2)}, {v(b+2*h,2)}""")
        for it in range(5):
            b = ACC + it*16
            k.wait_vm(ptoks[it])
            for h in range(2):
                k(f"v_pk_add_f32 {v(b+2*h,2)}, {v(b+2*h,2)}, {v(PB+4*it+2*h,2)}")
            k(f"buffer_store_dwordx4 {v(b,4)}, v{OO+it}, {s(SRD_OUT,4)}, s35 offen")
        self.stamp(12)
        self.finish_wg(side)

    def finish_wg(self, side):
        k = self.k
        if side == 0:
            k(f"""s_or_b32 s{S_T}, s2, s{S_W}
            s_cmp_lg_u32 s{S_T}, 0
            s_cbranch_scc1 L_fin0
            v_lshlrev_b32 v13, 8, v0
            s_mov_b32 s{S_T}, {WS_FA}""")
            def loads():
                for q in range(4):
                    k(f"s_add_u32 s{S_T+1}, s{S_T}, {q*64*4*FLS}")
                    k(f"buffer_load_dword v{16+q}, v13, {s(SRD_WS,4)}, s{S_T+1} offen sc1")
            def check():
                k(f"v_xor_b32 v14, s{S_TAG}, v16")
                for q in range(1, 4):
                    k(f"v_xor_b32 v15, s{S_TAG}, v{16+q}\nv_or_b32 v14, v14, v15")
                k("v_cmp_ne_u32 vcc, 0, v14")
            self.poll(loads, check, "pe")
            k(f"s_mov_b32 s{S_T}, {WS_EPOCH}")
            self.set_flag(S_T, 14)
            k.label("L_fin0")
        if self.ts:
            k("s_waitcnt vmcnt(0)")
            self.stamp(13)
            self.stamp_flush()
        k("s_endpgm")

    def build(self):
        k = self.k
        self.prologue()
        st = k.state()
        self.ssm()
        k.set_state(st)
        self.mlp()
        k.label("L_end")
        k("s_endpgm")
        body = k.finish()
        hdr = open("header.txt").read()
        return (hdr + f"""; @launch grid=(256,1,1) block=(256,1,1) lds=163840
.amdgcn_target "amdgcn-amd-amdhsa--gfx950"
.text
.globl {NAME}
.p2align 8
.type {NAME},@function
{NAME}:
""" + body + f""".section .rodata,"a"
.p2align 6
.amdhsa_kernel {NAME}
  .amdhsa_next_free_vgpr 512
  .amdhsa_next_free_sgpr 102
  .amdhsa_accum_offset 256
  .amdhsa_group_segment_fixed_size 0
  .amdhsa_kernarg_size 136
  .amdhsa_user_sgpr_count 2
  .amdhsa_user_sgpr_kernarg_segment_ptr 1
  .amdhsa_system_sgpr_workgroup_id_x 1
.end_amdhsa_kernel
""")

if __name__ == "__main__":
    import argparse
    ap = argparse.ArgumentParser()
    ap.add_argument("-o", default="k1.s")
    ap.add_argument("--stop", default=None)
    ap.add_argument("--ts", action="store_true")
    a_ = ap.parse_args()
    g = G(stop=a_.stop, ts=a_.ts)
    txt = g.build()
    open(a_.o, "w").write(txt)
    print("written", a_.o, "nops inserted:", g.k.nops, "lines:", txt.count("\n"))
```

```python
import sys, math
sys.path.insert(0, "gen")
from emit import *

NAME = "parallel_sum__ssm_conv_s5__mixer_channel_mlp__prompt_kernel"
WS_EPOCH = 0
WS_FB = 0x1000
WS_FA = 0x11000
WS_FP = 0x21000
WS_AGG = 0x31000
WS_B2S = [0x60000, 0x1F0000]
WS_A2 = [0x400000, 0x900000]
WS_PART = 0xF00000
WS_TS = 0x1400000
WS_SIZE = 0x1500000
FLS = 64
S_W = 3
SRD_X, SRD_W, SRD_WS, SRD_OUT, SRD_T1, SRD_T2 = 4, 8, 12, 16, 20, 24
S_TAG, S_TAG2, S_I, S_J, S_SIDE = 28, 29, 30, 31, 32
S_PW = 33
S_XO = 36
S_WO = 40
S_MX, S_MW = 45, 46
S_T = 48
P0 = 64
def ptr(n): return s(P0 + 2*n, 2)
S_TS = 98
LOG2E = 1.4426950408889634
EPS = 1e-5
import struct
def fbits(x): return "0x%08x" % struct.unpack("<I", struct.pack("<f", x))[0]

POLL_MAX = 20000
LDS_STAT = 160000
LDS_RED = 16384
RED_RS = 336
RED_W = 64 * RED_RS

class G:
    def __init__(self, stop=None, ts=False, spin=0):
        self.spin = spin
        self.k = Emit()
        self.stop = stop
        self.ts = ts
        self.nts = 0

    def stamp(self, idx):
        if not self.ts: return
        k = self.k
        k(f"s_memrealtime {s(S_TS,2)}")
        k("s_waitcnt lgkmcnt(0)")
        k(f"v_writelane_b32 v255, s{S_TS}, {idx}")

    def stamp_flush(self):
        if not self.ts: return
        k = self.k
        k(f"""s_lshl_b32 s{S_T}, s2, 2
        s_add_u32 s{S_T}, s{S_T}, s{S_W}
        s_lshl_b32 s{S_T}, s{S_T}, 6
        s_add_u32 s{S_T}, s{S_T}, {WS_TS}
        v_mbcnt_lo_u32_b32 v254, -1, 0
        v_mbcnt_hi_u32_b32 v254, -1, v254
        v_cmp_gt_u32 vcc, 16, v254
        v_lshlrev_b32 v254, 2, v254
        s_and_saveexec_b64 {s(S_T+2,2)}, vcc
        buffer_store_dword v255, v254, {s(SRD_WS,4)}, s{S_T} offen
        v_readlane_b32 s{S_T+4}, v255, 0
        s_not_b32 s{S_T+4}, s{S_T+4}
        v_writelane_b32 v255, s{S_T+4}, 15
        global_atomic_umax v254, v255, {ptr(15)} sc1
        s_mov_b64 exec, {s(S_T+2,2)}""")

    def srd(self, base, pn, size):
        self.k(f"""s_mov_b32 s{base}, s{P0+2*pn}
        s_and_b32 s{base+1}, s{P0+2*pn+1}, 0xffff
        s_mov_b32 s{base+2}, {size}
        s_mov_b32 s{base+3}, 0x20000""")

    def poll(self, loads, check, name):
        k = self.k
        top = k.newlabel(name); done = k.newlabel(name + "d")
        k(f"s_mov_b32 s{S_T+15}, {POLL_MAX}")
        k.label(top)
        loads()
        k("s_waitcnt vmcnt(0)")
        check()
        k(f"""s_cbranch_vccz {done}
        s_sub_u32 s{S_T+15}, s{S_T+15}, 1
        s_cmp_lg_u32 s{S_T+15}, 0
        s_cbranch_scc1 {top}""")
        k.label(done)

    def set_flag(self, soff_sgpr, vtmp):
        k = self.k
        k(f"""v_mov_b32 v{vtmp}, s{S_TAG}
        v_mov_b32 v{vtmp+1}, 0
        s_mov_b64 exec, 1
        buffer_store_dword v{vtmp}, v{vtmp+1}, {s(SRD_WS,4)}, s{soff_sgpr} offen sc1
        s_mov_b64 exec, -1""")

    def prologue(self):
        k = self.k
        k(f"""s_cmp_ge_u32 s2, 256
        s_cbranch_scc1 L_end
        s_memrealtime s[100:101]
        s_load_dwordx16 {s(P0,16)}, s[0:1], 0
        s_load_dwordx16 {s(P0+16,16)}, s[0:1], 64
        s_load_dwordx2 {s(P0+32,2)}, s[0:1], 128
        v_lshrrev_b32 v1, 6, v0
        v_and_b32 v0, 63, v0
        v_readfirstlane_b32 s{S_W}, v1
        s_and_b32 s{S_SIDE}, s2, 1
        s_bfe_u32 s{S_T}, s2, 0x20001
        s_lshr_b32 s{S_T+1}, s2, 6           ; c = id>>6
        s_lshl_b32 s{S_I}, s{S_T+1}, 2
        s_add_u32 s{S_I}, s{S_I}, s{S_T}
        s_bfe_u32 s{S_J}, s2, 0x30003        ; j = (id>>3)&7
        s_lshr_b32 s{S_PW}, s2, 1
        s_lshl_b32 s{S_PW}, s{S_PW}, 2
        s_add_u32 s{S_PW}, s{S_PW}, s{S_W}
        """)
        if self.ts:
            k("v_mov_b32 v255, 0")
        k("s_waitcnt lgkmcnt(0)")
        k(f"s_load_dword s{S_TAG}, {ptr(16)}, {WS_EPOCH}")
        self.srd(SRD_X, 0, 2621440)
        self.srd(SRD_WS, 16, WS_SIZE)
        self.srd(SRD_OUT, 14, 5242880)
        self.stamp(0)
        k(f"""s_cmp_eq_u32 s{S_SIDE}, 1
        s_cbranch_scc1 L_mlp""")

    def make_tag(self):
        k = self.k
        k(f"""s_waitcnt lgkmcnt(0)
        s_mul_i32 s{S_TAG}, s{S_TAG}, 0x9E3779B1
        s_add_u32 s{S_TAG}, s{S_TAG}, 0x7F4A7C15
        s_xor_b32 s{S_TAG2}, s{S_TAG}, 0x5bd1e995
        s_brev_b32 s{S_TAG2}, s{S_TAG2}""")

    def count_started(self, vt):
        k = self.k
        skip = k.newlabel("cs")
        k(f"""v_mov_b32 v{vt}, 0
        v_mov_b32 v{vt+1}, 1
        s_mov_b64 exec, 1
        global_atomic_add v{vt}, v{vt+1}, {ptr(15)} sc1
        s_mov_b64 exec, -1""")

    def ssm(self):
        k = self.k
        ACC = 16
        WSA = 96
        STA = 116
        ONE = 132
        FR = [136, 184]
        CN = 232
        XE, XO, WA, WB, RD0, RD1, RX0, RX1, RW0, RW1 = 1, 2, 3, 4, 5, 6, 7, 8, 9, 10
        T0 = 11
        STG0, STGS = 16384, 36864
        acc = lambda a_, tt: ACC + (a_*10 + tt)*4
        k.c("================ SSM side, phase 1")
        k(f"""s_cmp_lt_u32 s{S_W}, 2
        s_cselect_b32 s{SRD_W}, s{P0+6}, s{P0+8}
        s_cselect_b32 s{SRD_W+1}, s{P0+7}, s{P0+9}
        s_and_b32 s{SRD_W+1}, s{SRD_W+1}, 0xffff
        s_mov_b32 s{SRD_W+2}, 819200
        s_mov_b32 s{SRD_W+3}, 0x20000
        v_lshrrev_b32 v11, 4, v0                 ; g
        v_and_b32 v12, 7, v0
        v_xor_b32 v12, v12, v11
        v_lshlrev_b32 v12, 4, v12
        v_lshrrev_b32 v13, 3, v0                 ; l>>3
        v_mul_u32_u24 v{WA}, 1280, v13
        v_add_u32 v{WA}, v{WA}, v12
        v_and_b32 v13, 3, v13
        v_lshrrev_b32 v14, 5, v0
        v_lshl_add_u32 v13, v14, 3, v13
        v_mul_u32_u24 v{XE}, 1280, v13
        v_add_u32 v{XE}, v{XE}, v12
        v_xor_b32 v{XO}, 64, v{XE}
        s_and_b32 s{S_T}, s{S_W}, 1
        s_lshl_b32 s{S_T+1}, s{S_T}, 6
        v_xor_b32 v{WA}, s{S_T+1}, v{WA}
        v_xor_b32 v{WB}, 64, v{WA}
        s_lshl_b32 s{S_T+2}, s{S_I}, 7
        s_lshl_b32 s{S_T+3}, s{S_W}, 5
        s_add_u32 s{S_T+2}, s{S_T+2}, s{S_T+3}
        s_mul_i32 s{S_XO}, s{S_T+2}, 1280
        s_add_u32 s{S_XO+1}, s{S_XO}, {16*1280}
        s_add_u32 s{S_XO+2}, s{S_XO}, {4*1280}
        s_add_u32 s{S_XO+3}, s{S_XO}, {20*1280}
        s_mul_i32 s{S_T+2}, s{S_J}, 80
        s_mul_i32 s{S_T+3}, s{S_T}, 40
        s_add_u32 s{S_T+2}, s{S_T+2}, s{S_T+3}
        s_mul_i32 s{S_WO}, s{S_T+2}, 1280
        s_add_u32 s{S_WO+1}, s{S_WO}, {8*1280}
        s_add_u32 s{S_WO+2}, s{S_WO}, {16*1280}
        s_add_u32 s{S_WO+3}, s{S_WO}, {24*1280}
        s_add_u32 s{S_WO+4}, s{S_WO}, {32*1280}
        s_lshl_b32 s{S_MX}, s{S_W}, 12
        s_mul_i32 s{S_MW}, s{S_W}, 5120
        """)
        def dma_list(t):
            base = STG0 + (t % 4)*STGS
            L = []
            for e in range(4):
                L.append((f"s_add_u32 m0, s{S_MX}, {base + e*1024 - t*128}",
                          f"buffer_load_dwordx4 v{XE if e%2==0 else XO}, {s(SRD_X,4)}, s{S_XO+e} offen offset:{t*128} lds"))
            for e in range(5):
                L.append((f"s_add_u32 m0, s{S_MW}, {base + 16384 + e*1024 - t*128}",
                          f"buffer_load_dwordx4 v{WA if e%2==0 else WB}, {s(SRD_W,4)}, s{S_WO+e} offen offset:{t*128} lds"))
            return L
        stage_tok = {}
        def dma_stage(t):
            for m, ld in dma_list(t):
                k(m); stage_tok[t] = k(ld)
        dma_stage(0)
        k(f"""v_and_b32 v11, 15, v0
        s_mul_i32 s{S_T}, s{S_J}, 160
        v_lshl_add_u32 v11, v11, 1, s{S_T}""")
        for b in range(5):
            k(f"global_load_ushort v{CN+10+b}, v11, {ptr(1)} offset:{32*b}")
            k(f"global_load_ushort v{CN+15+b}, v11, {ptr(2)} offset:{32*b}")
            vec_tok = k(f"global_load_ushort v{CN+b}, v11, {ptr(7)} offset:{32*b}")
        self.srd(SRD_T1, 5, 819200)
        self.srd(SRD_T2, 6, 819200)
        SU, SC = 34, 35
        k(f"""s_sub_u32 s{S_T}, s{S_PW}, 400
        s_cmp_lt_u32 s{S_PW}, 400
        s_cselect_b32 s{SU}, s{S_PW}, s{S_T}
        s_mul_i32 s{SC}, s{SU}, 6554
        s_lshr_b32 s{SC}, s{SC}, 16              ; c' = unit/10
        s_mul_i32 s{S_T}, s{SC}, 10
        s_sub_u32 s{S_T}, s{SU}, s{S_T}          ; u
        s_mul_i32 s{S_T+1}, s{SC}, {16*1280}
        s_lshl_b32 s{S_T+2}, s{S_T}, 7
        s_add_u32 s{S_T+1}, s{S_T+1}, s{S_T+2}
        s_add_u32 s{S_T+2}, s{S_T+1}, {8*1280}
        s_mul_i32 s{S_T+3}, s{SC}, 40
        s_lshl_b32 s{S_T+4}, s{S_T}, 2
        s_add_u32 s{S_T+3}, s{S_T+3}, s{S_T+4}
        s_lshl_b32 s{S_T+3}, s{S_T+3}, 10
        s_add_u32 s47, s{S_T+3}, {WS_B2S[0]}
        v_lshrrev_b32 v12, 3, v0
        v_mul_u32_u24 v12, 1280, v12
        v_and_b32 v13, 7, v0
        v_lshl_add_u32 v12, v13, 4, v12
        s_mov_b32 m0, s{S_MX}
        """)
        k(f"buffer_load_dwordx4 v12, {s(SRD_T1,4)}, s{S_T+1} offen lds")
        k(f"s_add_u32 m0, s{S_MX}, 1024")
        k(f"buffer_load_dwordx4 v12, {s(SRD_T1,4)}, s{S_T+2} offen lds")
        k(f"s_add_u32 m0, s{S_MX}, 2048")
        k(f"buffer_load_dwordx4 v12, {s(SRD_T2,4)}, s{S_T+1} offen lds")
        k(f"s_add_u32 m0, s{S_MX}, 3072")
        swz_tok = k(f"buffer_load_dwordx4 v12, {s(SRD_T2,4)}, s{S_T+2} offen lds")
        for t in (1, 2, 3): dma_stage(t)
        self.make_tag()
        k(f"""v_and_b32 v11, 15, v0
        v_lshrrev_b32 v12, 4, v0
        v_lshrrev_b32 v13, 1, v11
        v_xor_b32 v13, v13, v12
        v_lshlrev_b32 v13, 4, v13
        v_lshl_add_u32 v{RD0}, v11, 7, v13
        v_xor_b32 v{RD1}, 64, v{RD0}
        """)
        for r in range(4): k(f"v_mov_b32 v{ONE+r}, 0x3f803f80")
        k.wait_vm(vec_tok)
        for b in range(5):
            k(f"""v_lshlrev_b32 v{CN+b}, 16, v{CN+b}
            v_lshlrev_b32 v{CN+10+b}, 16, v{CN+10+b}
            v_lshlrev_b32 v{CN+15+b}, 16, v{CN+15+b}
            v_mul_f32 v{CN+b}, {fbits(LOG2E)}, v{CN+b}""")
        for b in range(5): k(f"v_exp_f32 v{CN+b}, v{CN+b}")
        for b in range(5):
            k(f"""v_cvt_pk_bf16_f32 v{CN+b}, v{CN+b}, v{CN+b}
            v_and_b32 v{CN+b}, 0xffff0000, v{CN+b}
            v_mul_f32 v{CN+5+b}, v{CN+b}, v{CN+15+b}
            v_mul_f32 v{CN+b}, v{CN+b}, v{CN+10+b}
            v_mul_f32 v{CN+5+b}, 0.15915494, v{CN+5+b}
            v_mul_f32 v{CN+b}, {fbits(LOG2E)}, v{CN+b}""")
        def set_rd(t):
            base = STG0 + (t % 4)*STGS
            k(f"""v_add_u32 v{RW0}, {base}, v{RD0}
            v_add_u32 v{RW1}, {base}, v{RD1}
            v_add_u32 v{RX0}, s{S_MX}, v{RW0}
            v_add_u32 v{RX1}, s{S_MX}, v{RW1}""")
        def reads(n):
            st = FR[n % 2]; ks = n % 2
            L = []
            for a_ in range(2):
                L.append(f"ds_read_b128 {v(st+4*a_,4)}, v{RX0 if ks==0 else RX1} offset:{a_*2048}")
            for tt in range(10):
                L.append(f"ds_read_b128 {v(st+8+4*tt,4)}, v{RW0 if ks==0 else RW1} offset:{16384+tt*2048}")
            return L
        set_rd(0)
        k.wait_vm(stage_tok[0])
        k("s_barrier")
        self.stamp(1)
        for r in reads(0): k(r)
        st_tok = None
        for n in range(20):
            st = FR[n % 2]
            k.c(f"---- ssm k-step {n}")
            k("s_waitcnt lgkmcnt(0)")
            fill = []
            if n % 2 == 1 and n + 1 < 20:
                T = (n + 1)//2
                k.wait_vm(stage_tok[T])
                k("s_barrier")
                set_rd(T)
            if n + 1 < 20: fill += [(r,) for r in reads(n+1)]
            if n % 2 == 1 and (n+1)//2 + 3 < 10:
                Tn = (n+1)//2 + 3
                fill += [("dma", Tn, m, ld) for m, ld in dma_list(Tn)]
            mf = []
            c0 = lambda r, cnt: "0" if n == 0 else v(r, cnt)
            for tt in range(10):
                for a_ in range(2):
                    mf.append(f"v_mfma_f32_16x16x32_bf16 {v(acc(a_,tt),4)}, {v(st+4*a_,4)}, {v(st+8+4*tt,4)}, {c0(acc(a_,tt),4)}")
            for a_ in range(2):
                mf.append(f"v_mfma_f32_16x16x32_bf16 {v(STA+4*a_,4)}, {v(st+4*a_,4)}, {v(ONE,4)}, {c0(STA+4*a_,4)}")
                mf.append(f"v_mfma_f32_16x16x32_bf16 {v(STA+8+4*a_,4)}, {v(st+4*a_,4)}, {v(st+4*a_,4)}, {c0(STA+8+4*a_,4)}")
            for i_, m in enumerate(mf):
                k(m)
                if i_ < len(fill):
                    f = fill[i_]
                    if f[0] == "dma":
                        k(f[2]); stage_tok[f[1]] = k(f[3])
                    else: k(f[0])
            assert len(fill) <= len(mf)
            for half in range(2):
                sk = k.newlabel("ws")
                k(f"""s_cmp_lg_u32 s{S_W}, {2*(n%2)+half}
                s_cbranch_scc1 {sk}""")
                for q in range(5):
                    cc = "0" if n < 2 else v(WSA+4*q, 4)
                    k(f"v_mfma_f32_16x16x32_bf16 {v(WSA+4*q,4)}, {v(ONE,4)}, {v(st+8+4*(5*half+q),4)}, {cc}")
                k.label(sk)
            if n == 0:
                k.wait_vm(swz_tok)
                k(f"""v_and_b32 v11, 15, v0
                v_lshlrev_b32 v11, 7, v11
                v_lshrrev_b32 v12, 5, v0
                v_lshl_add_u32 v11, v12, 11, v11
                v_bfe_u32 v12, v0, 4, 1
                v_lshl_add_u32 v11, v12, 4, v11
                v_add_u32 v11, s{S_MX}, v11
                v_lshlrev_b32 v12, 4, v0""")
                for ss in range(4):
                    k(f"ds_read_b128 {a(200+4*ss,4)}, v11 offset:{32*ss}")
                k("s_waitcnt lgkmcnt(0)")
                for ss in range(4):
                    st_tok = k(f"buffer_store_dwordx4 {a(200+4*ss,4)}, v12, {s(SRD_WS,4)}, s47 offen offset:{1024*ss} sc1")
            if n == 5:
                k.wait_vm(st_tok)
                k(f"""s_lshl_b32 s{S_T}, s{SU}, 6
                s_add_u32 s{S_T}, s{S_T}, {WS_FB}""")
                self.set_flag(S_T, 11)
                k(f"""v_lshlrev_b32 v11, 3, v0
                v_mov_b32 v12, 0
                v_mov_b32 v13, 0
                ds_write_b64 v11, v[12:13]
                ds_write_b64 v11, v[12:13] offset:512
                ds_write_b64 v11, v[12:13] offset:1024""")
        self.stamp(2)
        self.ssm_epilogue(ACC, WSA, STA, CN)

    def cpow(self, dre, dim, n, zr, zi, t):
        k = self.k
        k(f"""v_mul_f32 v{t}, {n}, v{zi}
        v_mul_f32 v{dre}, {n}, v{zr}
        v_fract_f32 v{t}, v{t}
        v_exp_f32 v{dre}, v{dre}
        v_sin_f32 v{dim}, v{t}
        v_cos_f32 v{t}, v{t}
        v_mul_f32 v{dim}, v{dim}, v{dre}
        v_mul_f32 v{dre}, v{t}, v{dre}""")

    def ssm_epilogue(self, ACC, WSA, STA, CN):
        k = self.k
        acc = lambda a_, tt: ACC + (a_*10 + tt)*4
        tok = lambda r, tt: acc(r//4, tt) + r % 4
        L_AGG, L_CAR, L_WSP, L_ES = 0, 640, 2048, 4096
        AT, BT = 136, 144
        WSM = 152
        LR, LI = 172, 177
        ER, EI = 182, 187
        PR, PI = 192, 197
        TM = 202
        SEG = 15
        k.c("================ SSM epilogue")
        self.b2_prefetch(0)
        k(f"""v_and_b32 v11, 15, v0
        v_mul_u32_u24 v12, 80, v11
        s_mul_i32 s{S_T}, s{S_W}, 20
        v_add_u32 v13, s{S_T}, v12""")
        for q in range(5):
            k(f"ds_write_b32 v13, v{WSA+4*q} offset:{L_WSP+4*q}")
        k(f"""v_lshrrev_b32 v14, 4, v0
        v_mul_u32_u24 v13, 80, v14""")
        for a_ in range(2):
            for r in range(4):
                k(f"ds_bpermute_b32 v{BT+4*a_+r}, v13, v{STA+8+4*a_+r} offset:{4*r}")
        k(f"""s_lshl_b32 s{S_T}, s{S_W}, 2
        v_add_u32 v{SEG}, s{S_T}, v14            ; segment s = 4w+g
        v_sub_u32 v13, 15, v{SEG}
        v_lshlrev_b32 v13, 3, v13
        v_cvt_f32_u32 v13, v13""")
        for b in range(5): self.cpow(LR+b, LI+b, "1.0", CN+b, CN+5+b, TM)
        for b in range(5): self.cpow(PR+b, PI+b, "v13", CN+b, CN+5+b, TM)
        k("s_waitcnt lgkmcnt(0)")
        k("s_barrier")
        for q in range(5):
            k(f"ds_read_b128 {v(WSM+4*q,4)}, v12 offset:{L_WSP+16*q}")
        k(f"s_mov_b32 s{S_T}, {fbits(1.0/640)}")
        k(f"""s_lshl_b32 s{S_T+1}, s{S_W}, 8
        v_lshlrev_b32 v13, 6, v14
        v_add_u32 v13, s{S_T+1}, v13
        v_add_u32 v13, {LDS_STAT}, v13""")
        for r in range(8):
            sm = STA + r
            k(f"""v_mul_f32 v{sm}, s{S_T}, v{sm}
            v_mul_f32 v{TM}, v{sm}, v{sm}
            v_fma_f32 v{BT+r}, v{BT+r}, s{S_T}, -v{TM}
            v_max_f32 v{BT+r}, 0, v{BT+r}
            v_add_f32 v{BT+r}, {fbits(EPS)}, v{BT+r}
            v_rsq_f32 v{AT+r}, v{BT+r}""")
        for r in range(8):
            k(f"v_mul_f32 v{BT+r}, v{STA+r}, -v{AT+r}".replace("v_mul_f32", "v_mul_f32_e64"))
            k(f"ds_write2_b32 v13, v{STA+r}, v{AT+r} offset0:{2*r} offset1:{2*r+1}")
        k("s_waitcnt lgkmcnt(8)")
        for q in range(10):
            k(f"v_add_f32 v{WSM+q}, v{WSM+q}, v{WSM+10+q}")
        for tt in range(10):
            wr = WSM + tt
            pair = wr & ~1; hi = wr & 1
            for a_ in range(2):
                for h in range(2):
                    d = acc(a_, tt) + 2*h; t_ = TM + 2*((tt*4 + a_*2 + h) % 8)
                    k(f"v_pk_mul_f32 {v(t_,2)}, {v(BT+4*a_+2*h,2)}, {v(pair,2)} op_sel:[0,{hi}] op_sel_hi:[1,{hi}]")
                    k(f"v_pk_fma_f32 {v(d,2)}, {v(AT+4*a_+2*h,2)}, {v(d,2)}, {v(t_,2)}")
        for r in range(1, 8):
            for b in range(5):
                pr = tok(0, b) if r == 1 else ER+b
                pi = tok(0, 5+b) if r == 1 else EI+b
                k(f"""v_fma_f32 v{TM+b}, v{LR+b}, v{pr}, v{tok(r,b)}
                v_fma_f32 v{TM+5+b}, v{LR+b}, v{pi}, v{tok(r,5+b)}""")
            for b in range(5):
                pr = tok(0, b) if r == 1 else ER+b
                pi = tok(0, 5+b) if r == 1 else EI+b
                k(f"""v_fma_f32 v{TM+10+b}, -v{LI+b}, v{pi}, v{TM+b}
                v_fma_f32 v{EI+b}, v{LI+b}, v{pr}, v{TM+5+b}""")
            for b in range(5):
                k(f"v_mov_b32 v{ER+b}, v{TM+10+b}")
        k(f"""v_lshlrev_b32 v12, 3, v11            ; col*8
        v_mul_u32_u24 v13, 768, v{SEG}
        v_mul_u32_u24 v14, 48, v11
        v_add_u32 v13, v13, v14""")
        for b in range(5):
            k(f"""v_mul_f32 v{TM+b}, v{PR+b}, v{ER+b}
            v_mul_f32 v{TM+5+b}, v{PR+b}, v{EI+b}
            v_fma_f32 v{TM+b}, -v{PI+b}, v{EI+b}, v{TM+b}
            v_fma_f32 v{TM+5+b}, v{PI+b}, v{ER+b}, v{TM+5+b}
            ds_add_f32 v12, v{TM+b} offset:{L_AGG+128*b}
            ds_add_f32 v12, v{TM+5+b} offset:{L_AGG+128*b+4}
            ds_write2_b32 v13, v{ER+b}, v{EI+b} offset0:{(L_ES//4+2*b) % 256} offset1:{(L_ES//4+2*b+1) % 256}""".replace("v13,", "v14,") if False else
            f"""v_mul_f32 v{TM+b}, v{PR+b}, v{ER+b}
            v_mul_f32 v{TM+5+b}, v{PR+b}, v{EI+b}
            v_fma_f32 v{TM+b}, -v{PI+b}, v{EI+b}, v{TM+b}
            v_fma_f32 v{TM+5+b}, v{PI+b}, v{ER+b}, v{TM+5+b}
            ds_add_f32 v12, v{TM+b} offset:{L_AGG+128*b}
            ds_add_f32 v12, v{TM+5+b} offset:{L_AGG+128*b+4}
            ds_write_b32 v13, v{ER+b} offset:{L_ES+8*b}
            ds_write_b32 v13, v{EI+b} offset:{L_ES+8*b+4}""")
        k("s_waitcnt lgkmcnt(0)")
        k("s_barrier")
        k(f"""s_mul_i32 s{S_T}, s{S_W}, 20
        v_add_u32 v13, s{S_T}, v0
        v_lshlrev_b32 v{TM+4}, 3, v13
        ds_read_b32 v{TM}, v{TM+4} offset:{L_AGG}
        ds_read_b32 v{TM+2}, v{TM+4} offset:{L_AGG+4}
        v_mov_b32 v{TM+1}, s{S_TAG}
        v_mov_b32 v{TM+3}, s{S_TAG2}
        v_lshlrev_b32 v13, 4, v13
        s_lshl_b32 s{S_T}, s{S_J}, 4
        s_add_u32 s{S_T+1}, s{S_T}, s{S_I}
        s_mul_i32 s{S_T+1}, s{S_T+1}, 1280
        s_add_u32 s{S_T+1}, s{S_T+1}, {WS_AGG}
        s_mov_b64 exec, 0xfffff
        s_waitcnt lgkmcnt(0)
        buffer_store_dwordx4 {v(TM,4)}, v13, {s(SRD_WS,4)}, s{S_T+1} offen sc1
        s_mov_b64 exec, -1""")
        self.stamp(3)
        KR, KI = 152, 157
        CR, CI = 162, 167
        L8R, L8I = 136, 141
        for b in range(5):
            Lre, Lim = CN+10+b, CN+15+b
            k(f"""v_mul_f32 v{TM+4}, v{Lre}, v{Lre}
            v_fma_f32 v{TM+4}, v{Lim}, v{Lim}, v{TM+4}
            v_rcp_f32 v{TM+4}, v{TM+4}
            v_add_f32 v{TM+5}, -1.0, v{LR+b}
            v_mul_f32 v{TM+6}, v{TM+5}, v{Lre}
            v_fma_f32 v{TM+6}, v{LI+b}, v{Lim}, v{TM+6}
            v_mul_f32 v{TM+7}, v{LI+b}, v{Lre}
            v_fma_f32 v{TM+7}, -v{TM+5}, v{Lim}, v{TM+7}
            v_add_f32 v{TM+4}, v{TM+4}, v{TM+4}
            v_mul_f32 v{KR+b}, v{TM+6}, v{TM+4}
            v_mul_f32 v{KI+b}, v{TM+7}, v{TM+4}""")
        def bc(r):
            return v(r & ~1, 2), r & 1
        for b in range(5):
            (kr, sr), (ki, si) = bc(KR+b), bc(KI+b)
            for h in range(4):
                ur = tok(2*h, b); ui = tok(2*h, 5+b); t_ = TM + 4 + 4*(h % 2)
                k(f"""v_pk_mul_f32 {v(t_,2)}, {v(ur,2)}, {kr} op_sel:[0,{sr}] op_sel_hi:[1,{sr}]
                v_pk_mul_f32 {v(t_+2,2)}, {v(ur,2)}, {ki} op_sel:[0,{si}] op_sel_hi:[1,{si}]
                v_pk_fma_f32 {v(ur,2)}, {v(ui,2)}, {ki}, {v(t_,2)} op_sel:[0,{si},0] op_sel_hi:[1,{si},1] neg_lo:[1,0,0] neg_hi:[1,0,0]
                v_pk_fma_f32 {v(ui,2)}, {v(ui,2)}, {kr}, {v(t_+2,2)} op_sel:[0,{sr},0] op_sel_hi:[1,{sr},1]""")
        k(f"s_mov_b32 s{S_T}, {fbits(8.0)}")
        for b in range(5): self.cpow(L8R+b, L8I+b, f"s{S_T}", CN+b, CN+5+b, TM+4)
        for b in range(5):
            k(f"v_mov_b32 v{CR+b}, 0")
            k(f"v_mov_b32 v{CI+b}, 0")
        k(f"v_mul_u32_u24 v14, 48, v11")
        hdone = k.newlabel("hd")
        EB = 204
        for sp in range(15):
            if sp % 4 == 3:
                k(f"""s_cmp_le_u32 s{S_W}, {sp//4}
                s_cbranch_scc1 {hdone}""")
            k(f"""ds_read_b128 {v(EB,4)}, v14 offset:{L_ES+768*sp}
            ds_read_b128 {v(EB+4,4)}, v14 offset:{L_ES+768*sp+16}
            ds_read_b64 {v(EB+8,2)}, v14 offset:{L_ES+768*sp+32}
            v_cmp_lt_u32 vcc, {sp}, v{SEG}
            s_waitcnt lgkmcnt(0)
            s_mov_b64 exec, vcc""")
            for b in range(5):
                k(f"""v_fma_f32 v{EB+2*b}, v{L8R+b}, v{CR+b}, v{EB+2*b}
                v_fma_f32 v{EB+2*b+1}, v{L8R+b}, v{CI+b}, v{EB+2*b+1}
                v_fma_f32 v{EB+2*b+1}, v{L8I+b}, v{CR+b}, v{EB+2*b+1}
                v_fma_f32 v{CR+b}, -v{L8I+b}, v{CI+b}, v{EB+2*b}
                v_mov_b32 v{CI+b}, v{EB+2*b+1}""")
            k("s_mov_b64 exec, -1")
        k.label(hdone)
        VR, VI = 136, 141
        QR, QI = 182, 187
        k(f"""v_lshlrev_b32 v13, 3, v{SEG}
        v_cvt_f32_u32 v13, v13""")
        for b in range(5): self.cpow(PR+b, PI+b, "v13", CN+b, CN+5+b, TM)
        for b in range(5):
            k(f"""v_mul_f32 v{VR+b}, v{KR+b}, v{PR+b}
            v_mul_f32 v{VI+b}, v{KR+b}, v{PI+b}
            v_fma_f32 v{VR+b}, -v{KI+b}, v{PI+b}, v{VR+b}
            v_fma_f32 v{VI+b}, v{KI+b}, v{PR+b}, v{VI+b}
            v_mul_f32 v{TM}, v{KR+b}, v{CR+b}
            v_mul_f32 v{TM+1}, v{KR+b}, v{CI+b}
            v_fma_f32 v{TM}, -v{KI+b}, v{CI+b}, v{TM}
            v_fma_f32 v{CI+b}, v{KI+b}, v{CR+b}, v{TM+1}
            v_mov_b32 v{CR+b}, v{TM}""")
        k(f"""s_sub_u32 s{S_T}, s{S_I}, 1
        v_sub_u32 v13, s{S_T}, v{SEG}
        v_max_i32 v13, 0, v13
        v_lshlrev_b32 v13, 7, v13
        v_cvt_f32_u32 v13, v13""")
        for b in range(5): self.cpow(QR+b, QI+b, "v13", CN+b, CN+5+b, TM)
        GB = 204
        k(f"""v_mul_u32_u24 v13, 1280, v{SEG}
        v_lshl_add_u32 v13, v11, 4, v13
        s_mul_i32 s{S_T}, s{S_J}, {16*1280}
        s_add_u32 s{S_T}, s{S_T}, {WS_AGG}
        v_cmp_gt_u32 {s(S_T+2,2)}, s{S_I}, v{SEG}      ; valid = k < i""")
        self.stamp(4)
        def loads():
            for b in range(5):
                k(f"buffer_load_dwordx4 {v(GB+4*b,4)}, v13, {s(SRD_WS,4)}, s{S_T} offen offset:{256*b} sc1")
        def check():
            k(f"v_xor_b32 v14, s{S_TAG}, v{GB+1}")
            for b in range(5):
                if b: k(f"v_xor_b32 v{TM}, s{S_TAG}, v{GB+4*b+1}\nv_or_b32 v14, v14, v{TM}")
                k(f"v_xor_b32 v{TM}, s{S_TAG2}, v{GB+4*b+3}\nv_or_b32 v14, v14, v{TM}")
            k(f"v_cmp_ne_u32 vcc, 0, v14")
            k(f"s_and_b64 vcc, vcc, {s(S_T+2,2)}")
        self.poll(loads, check, "pg")
        self.stamp(5)
        k(f"s_mov_b64 exec, {s(S_T+2,2)}")
        for b in range(5):
            er, ei = GB+4*b, GB+4*b+2
            k(f"""v_mul_f32 v{er+1}, v{QR+b}, v{er}
            v_mul_f32 v{ei+1}, v{QR+b}, v{ei}
            v_fma_f32 v{er+1}, -v{QI+b}, v{ei}, v{er+1}
            v_fma_f32 v{ei+1}, v{QI+b}, v{er}, v{ei+1}
            ds_add_f32 v12, v{er+1} offset:{L_CAR+128*b}
            ds_add_f32 v12, v{ei+1} offset:{L_CAR+128*b+4}""")
        k("s_mov_b64 exec, -1")
        k("s_waitcnt lgkmcnt(0)")
        k("s_barrier")
        for b in range(5):
            k(f"ds_read_b64 {v(GB+2*b,2)}, v12 offset:{L_CAR+128*b}")
        L_T = 102400
        k(f"""s_mul_i32 s{S_T}, s{S_W}, 12800
        s_add_u32 s{S_T}, s{S_T}, {L_T}
        v_lshrrev_b32 v14, 4, v0
        v_mul_u32_u24 v13, 80, v11
        v_lshl_add_u32 v13, v14, 4, v13
        v_add_u32 v13, s{S_T}, v13
        v_lshrrev_b32 v{TM}, 2, v11
        v_lshl_add_u32 v{TM}, v14, 3, v{TM}
        v_mul_u32_u24 v{TM}, 80, v{TM}
        v_and_b32 v14, 3, v11
        v_lshl_add_u32 v14, v14, 3, v{TM}
        v_add_u32 v14, s{S_T}, v14
        v_lshlrev_b32 v12, 4, v0
        s_lshl_b32 s{S_T}, s{S_I}, 3
        s_lshl_b32 s{S_T+1}, s{S_W}, 1
        s_add_u32 s{S_T}, s{S_T}, s{S_T+1}
        s_mul_i32 s{S_T}, s{S_T}, 40
        s_mul_i32 s{S_T+1}, s{S_J}, 5
        s_add_u32 s{S_T}, s{S_T}, s{S_T+1}
        s_lshl_b32 s{S_T}, s{S_T}, 10
        s_add_u32 s{S_T}, s{S_T}, {WS_A2[0]}
        s_add_u32 s{S_T+1}, s{S_T}, 4096
        s_add_u32 s{S_T+2}, s{S_T}, {40*1024}
        s_add_u32 s{S_T+3}, s{S_T}, {40*1024+4096}
        s_waitcnt lgkmcnt(0)""")
        for b in range(5):
            cr, ci = GB+2*b, GB+2*b+1
            k(f"""v_fma_f32 v{CR+b}, v{VR+b}, v{cr}, v{CR+b}
            v_fma_f32 v{CI+b}, v{VR+b}, v{ci}, v{CI+b}
            v_fma_f32 v{CR+b}, -v{VI+b}, v{ci}, v{CR+b}
            v_fma_f32 v{CI+b}, v{VI+b}, v{cr}, v{CI+b}""")
        for r in range(8):
            for b in range(5):
                pr = CR+b if r == 0 else tok(r-1, b)
                pi = CI+b if r == 0 else tok(r-1, 5+b)
                k(f"""v_fmac_f32 v{tok(r,b)}, v{LR+b}, v{pr}
                v_fmac_f32 v{tok(r,5+b)}, v{LR+b}, v{pi}""")
            for b in range(5):
                pr = CR+b if r == 0 else tok(r-1, b)
                pi = CI+b if r == 0 else tok(r-1, 5+b)
                k(f"""v_fma_f32 v{tok(r,b)}, -v{LI+b}, v{pi}, v{tok(r,b)}
                v_fmac_f32 v{tok(r,5+b)}, v{LI+b}, v{pr}""")
        PK = 136
        for b in range(5):
            for comp in range(2):
                d = PK + 4*(2*b + comp); ng = "-" if comp else ""
                for h in range(4):
                    k(f"v_cvt_pk_bf16_f32 v{d+h}, {ng}v{tok(2*h,5*comp+b)}, {ng}v{tok(2*h+1,5*comp+b)}")
                k(f"ds_write_b128 v13, {v(d,4)} offset:{(32*b+16*comp)*80}")
        k("s_waitcnt lgkmcnt(0)")
        FRG = 16
        last = None
        toks = []
        for tt2 in range(2):
            for b in range(5):
                d = FRG + 4*(5*tt2 + b)
                k(f"ds_read_b64_tr_b16 {v(d,2)}, v14 offset:{(32*b)*80+32*tt2}")
                toks.append(k(f"ds_read_b64_tr_b16 {v(d+2,2)}, v14 offset:{(32*b+4)*80+32*tt2}"))
        for tt2 in range(2):
            for b in range(5):
                d = FRG + 4*(5*tt2 + b)
                k.wait_lg(toks[5*tt2+b])
                so = S_T + 2*tt2 + (1 if b == 4 else 0)
                last = k(f"buffer_store_dwordx4 {v(d,4)}, v12, {s(SRD_WS,4)}, s{so} offen offset:{1024*(b%4)} sc1")
        self.stamp(6)
        self.flag_a2(0, last)
        self.phase2(0)

    def flag_a2(self, side, last):
        k = self.k
        k(f"""s_lshl_b32 s{S_T}, s{S_I}, 3
        s_add_u32 s{S_T}, s{S_T}, s{S_J}
        s_lshl_b32 s{S_T}, s{S_T}, 2
        s_add_u32 s{S_T}, s{S_T}, s{S_W}
        s_lshl_b32 s34, s{S_T}, 6
        s_add_u32 s{S_T}, s34, {WS_FA + side*512*FLS}""")
        k.wait_vm(last)
        self.set_flag(S_T, 12)
        self.stamp(7)

    def b2_prefetch(self, side):
        k = self.k
        S = [40, 48][side]; KS = [10, 12][side]
        k.c("---- phase-2 weight prefetch into AGPRs")
        if side == 0:
            k(f"""v_min_u32 v11, 14, v0
            v_mul_u32_u24 v12, 86, v11
            v_lshrrev_b32 v12, 8, v12               ; l/3
            v_mul_u32_u24 v13, 3, v12
            v_sub_u32 v13, v11, v13
            v_mul_u32_u24 v12, 10, v12
            v_add_u32 v12, v12, v13
            v_lshlrev_b32 v12, 6, v12
            s_mul_i32 s{S_T}, s{S_W}, 10
            s_lshr_b32 s{S_T}, s{S_T}, 2
            s_mul_i32 s{S_T+1}, s{S_J}, 50
            s_add_u32 s{S_T}, s{S_T}, s{S_T+1}
            s_lshl_b32 s{S_T}, s{S_T}, 6
            s_add_u32 s{S_T}, s{S_T}, {WS_FB}""")
        else:
            k(f"""v_min_u32 v11, 23, v0
            v_lshrrev_b32 v12, 1, v11
            v_mul_u32_u24 v12, 10, v12
            v_and_b32 v13, 1, v11
            v_add_u32 v12, v12, v13
            v_lshlrev_b32 v12, 6, v12
            s_mul_i32 s{S_T}, s{S_W}, 120
            s_mul_i32 s{S_T+1}, s{S_J}, 5
            s_lshr_b32 s{S_T+1}, s{S_T+1}, 2
            s_add_u32 s{S_T}, s{S_T}, s{S_T+1}
            s_lshl_b32 s{S_T}, s{S_T}, 6
            s_add_u32 s{S_T}, s{S_T}, {WS_FB + 512*FLS}""")
        self.poll(lambda: k(f"buffer_load_dword v13, v12, {s(SRD_WS,4)}, s{S_T} offen sc1"),
                  lambda: k(f"v_cmp_ne_u32 vcc, s{S_TAG}, v13"), "pb")
        k(f"""v_lshlrev_b32 v12, 4, v0
        s_mul_i32 s{S_T}, s{S_J}, {5*S}
        s_mul_i32 s{S_T+1}, s{S_W}, {KS}
        s_add_u32 s{S_T}, s{S_T}, s{S_T+1}
        s_lshl_b32 s{S_T}, s{S_T}, 10
        s_add_u32 s{S_T}, s{S_T}, {WS_B2S[side]}""")
        for ss in range(KS):
            for cc in range(5):
                off = (cc*S + ss)*1024
                k(f"s_add_u32 s{S_T+1}, s{S_T}, {off}")
                self.b2_tok = k(f"buffer_load_dwordx4 {a((ss*5+cc)*4,4)}, v12, {s(SRD_WS,4)}, s{S_T+1} offen sc1")

    def mlp(self):
        k = self.k
        ACC = 16
        WSA = 112
        SUM, SQ = 136, 140
        ONE = 144
        FR = [148, 176]
        B1R = 204
        XE, XO, W0, RA, AE, AO, RXB = 1, 2, 3, 6, 7, 8, 206
        AEB, AOB = 9, 10
        STGS = 40960
        k.label("L_mlp")
        k.c("================ MLP side, phase 1")
        self.srd(SRD_W, 10, 1966080)
        k(f"""v_lshrrev_b32 v11, 4, v0
        v_and_b32 v12, 7, v0
        v_xor_b32 v12, v12, v11
        v_lshlrev_b32 v12, 4, v12
        v_lshrrev_b32 v13, 3, v0
        v_mul_u32_u24 v{XE}, 1280, v13
        v_add_u32 v{XE}, v{XE}, v12
        v_xor_b32 v{XO}, 64, v{XE}
        s_lshl_b32 s{S_T+2}, s{S_I}, 7
        s_lshl_b32 s{S_T+3}, s{S_W}, 5
        s_add_u32 s{S_T+2}, s{S_T+2}, s{S_T+3}
        s_mul_i32 s{S_XO}, s{S_T+2}, 1280
        s_add_u32 s{S_XO+1}, s{S_XO}, {8*1280}
        s_add_u32 s{S_XO+2}, s{S_XO}, {16*1280}
        s_add_u32 s{S_XO+3}, s{S_XO}, {24*1280}
        s_lshl_b32 s{S_MX}, s{S_W}, 12
        s_mul_i32 s{S_MW}, s{S_W}, 6144
        s_mul_i32 s{S_WO}, s{S_W}, {16*3072}
        s_mul_i32 s{S_T}, s{S_J}, 384
        s_add_u32 s{S_WO}, s{S_WO}, s{S_T}""")
        for n in range(3):
            k(f"""v_add_u32 v11, {64*n}, v0
            v_mul_u32_u24 v12, 2731, v11
            v_lshrrev_b32 v12, 16, v12              ; row = u/24
            v_mul_u32_u24 v13, 24, v12
            v_sub_u32 v13, v11, v13                 ; slot
            v_bfe_u32 v14, v12, 1, 1
            v_lshlrev_b32 v14, 2, v14
            v_xor_b32 v13, v13, v14
            v_mul_u32_u24 v12, 3072, v12
            v_lshl_add_u32 v{W0+n}, v13, 4, v12""")
        def dma_list(t):
            base = (t % 4)*STGS
            L = []
            for e in range(4):
                L.append((f"s_add_u32 m0, s{S_MX}, {base + 24576 + e*1024 - t*128}",
                          f"buffer_load_dwordx4 v{XE if e%2==0 else XO}, {s(SRD_X,4)}, s{S_XO+e} offen offset:{t*128} lds"))
            for n in range(6):
                L.append((f"s_add_u32 m0, s{S_MW}, {base + n*1024}\ns_add_u32 s{S_WO+1}, s{S_WO}, {(t*64 + 8*(n//3))*3072}",
                          f"buffer_load_dwordx4 v{W0+n%3}, {s(SRD_W,4)}, s{S_WO+1} offen lds"))
            return L
        stage_tok = {}
        def dma_stage(t):
            for m, ld in dma_list(t):
                k(m); stage_tok[t] = k(ld)
        dma_stage(0)
        k(f"""v_min_u32 v11, 47, v0
        s_mul_i32 s{S_T}, s{S_J}, 192
        s_mul_i32 s{S_T+1}, s{S_W}, 48
        s_add_u32 s{S_T}, s{S_T}, s{S_T+1}
        v_add_lshl_u32 v11, v11, s{S_T}, 1
        global_load_ushort v{B1R}, v11, {ptr(11)}""")
        self.srd(SRD_T1, 12, 1966080)
        SU, SC = 34, 35
        SCR = 3*STGS
        k(f"""s_sub_u32 s{S_T}, s{S_PW}, 480
        s_cmp_lt_u32 s{S_PW}, 480
        s_cselect_b32 s{SU}, s{S_PW}, s{S_T}
        s_mul_i32 s{SC}, s{SU}, 6554
        s_lshr_b32 s{SC}, s{SC}, 16              ; s = unit/10
        s_mul_i32 s{S_T}, s{SC}, 10
        s_sub_u32 s{S_T}, s{SU}, s{S_T}          ; cg
        s_mul_i32 s{S_T+1}, s{SC}, {32*1280}
        s_lshl_b32 s{S_T+2}, s{S_T}, 7
        s_add_u32 s{S_T+1}, s{S_T+1}, s{S_T+2}
        s_mul_i32 s{S_T+3}, s{S_T}, {4*48}
        s_add_u32 s{S_T+3}, s{S_T+3}, s{SC}
        s_lshl_b32 s{S_T+3}, s{S_T+3}, 10
        s_add_u32 s47, s{S_T+3}, {WS_B2S[1]}
        v_lshrrev_b32 v12, 3, v0
        v_mul_u32_u24 v12, 1280, v12
        v_and_b32 v13, 7, v0
        v_lshl_add_u32 v12, v13, 4, v12""")
        for e in range(4):
            k(f"s_add_u32 m0, s{S_MX}, {SCR + e*1024}")
            k(f"s_add_u32 s{S_T+2}, s{S_T+1}, {e*8*1280}")
            swz_tok = k(f"buffer_load_dwordx4 v12, {s(SRD_T1,4)}, s{S_T+2} offen lds")
        for t in (1, 2): dma_stage(t)
        self.make_tag()
        k(f"""v_and_b32 v11, 31, v0
        v_lshrrev_b32 v12, 5, v0                 ; h
        v_bfe_u32 v13, v0, 1, 3
        v_xor_b32 v13, v13, v12
        v_lshlrev_b32 v13, 4, v13
        v_lshl_add_u32 v13, v11, 7, v13
        v_add_u32 v{RXB}, s{S_MX}, v13
        v_xor_b32 v{RXB+1}, 32, v{RXB}
        v_xor_b32 v{RXB+2}, 64, v{RXB}
        v_xor_b32 v{RXB+3}, 96, v{RXB}
        v_bfe_u32 v13, v0, 2, 2                  ; r
        v_lshl_add_u32 v14, v12, 3, v13
        v_mul_u32_u24 v14, 384, v14
        v_bfe_u32 v15, v0, 4, 1
        v_lshl_add_u32 v14, v15, 5, v14
        v_and_b32 v15, 3, v0
        v_lshl_add_u32 v14, v15, 3, v14
        v_bfe_u32 v13, v0, 3, 1                  ; rbit
        v_lshlrev_b32 v13, 6, v13
        v_add_u32 v{AEB}, v14, v13
        v_sub_u32 v{AOB}, v14, v13
        v_mov_b32 v{ONE}, 0x3f803f80
        v_mov_b32 v{ONE+1}, 0x3f803f80""")
        def set_rd(t):
            base = (t % 4)*STGS
            k(f"""v_add_u32 v{AE}, {base}, v{AEB}
            v_add_u32 v{AO}, {base}, v{AOB}""")
        def reads(n):
            st = FR[n % 2]; ks = n % 4; base = ((n//4) % 4)*STGS
            L = [f"v_add_u32 v{RA}, {base+24576}, v{RXB+ks}\nds_read_b128 {v(st,4)}, v{RA}"]
            for T in range(6):
                for e in range(2):
                    L.append(f"ds_read_b64_tr_b16 {v(st+4+4*T+2*e,2)}, v{AE if T%2==0 else AO} offset:{(16*ks+4*e)*384+T*64}")
            return L
        set_rd(0)
        k.wait_vm(stage_tok[0])
        k("s_barrier")
        self.stamp(1)
        for r in reads(0): k(r)
        L_WS, L_B1 = 110592, 111360
        pending = []
        for n in range(40):
            st = FR[n % 2]
            k.c(f"---- mlp k-step {n}")
            k("s_waitcnt lgkmcnt(0)")
            if n % 4 == 3 and n + 1 < 40:
                T = (n + 1)//4
                k.wait_vm(stage_tok[T])
                k("s_barrier")
                set_rd(T)
                if T == 1: pending += [(3, m, ld) for m, ld in dma_list(3)]
                if T + 3 < 10: pending += [(T+3, m, ld) for m, ld in dma_list(T+3)]
            rd = reads(n+1) if n + 1 < 40 else []
            c0 = lambda r, cnt: "0" if n == 0 else v(r, cnt)
            big = [f"v_mfma_f32_32x32x16_bf16 {v(ACC+16*T,16)}, {v(st+4+4*T,4)}, {v(st,4)}, {c0(ACC+16*T,16)}" for T in range(6)]
            small = [f"v_mfma_f32_4x4x4_16b_bf16 {v(SQ,4)}, {v(st,2)}, {v(st,2)}, {c0(SQ,4)}",
                     f"v_mfma_f32_4x4x4_16b_bf16 {v(SUM,4)}, {v(ONE,2)}, {v(st,2)}, {c0(SUM,4)}",
                     f"v_mfma_f32_4x4x4_16b_bf16 {v(SQ,4)}, {v(st+2,2)}, {v(st+2,2)}, {v(SQ,4)}",
                     f"v_mfma_f32_4x4x4_16b_bf16 {v(SUM,4)}, {v(ONE,2)}, {v(st+2,2)}, {v(SUM,4)}"]
            ri = 0
            for T in range(6):
                k(big[T])
                cnt = [3, 3, 3, 2, 2, 0][T]
                for _ in range(cnt):
                    if ri < len(rd): k(rd[ri]); ri += 1
                if T >= 3 and pending:
                    p = pending.pop(0); k(p[1]); stage_tok[p[0]] = k(p[2])
                if T == 5 and pending:
                    p = pending.pop(0); k(p[1]); stage_tok[p[0]] = k(p[2])
                    if len(pending) > 6:
                        p = pending.pop(0); k(p[1]); stage_tok[p[0]] = k(p[2])
                if T == 1: k(small[0]); k(small[1])
                if T == 3: k(small[2]); k(small[3])
            assert ri == len(rd)
            sk = k.newlabel("ws")
            k(f"""s_cmp_lg_u32 s{S_W}, {n%4}
            s_cbranch_scc1 {sk}""")
            for hh in range(2):
                for T in range(6):
                    cc = "0" if (n < 4 and hh == 0) else v(WSA+4*T, 4)
                    k(f"v_mfma_f32_4x4x4_16b_bf16 {v(WSA+4*T,4)}, {v(ONE,2)}, {v(st+4+4*T+2*hh,2)}, {cc}")
            k.label(sk)
            if n == 1:
                k.wait_vm(swz_tok)
                k(f"""v_lshrrev_b32 v11, 5, v0
                v_bfe_u32 v12, v0, 4, 1
                v_lshlrev_b32 v11, 4, v11
                v_lshl_add_u32 v11, v12, 2, v11
                v_bfe_u32 v12, v0, 2, 2
                v_add_u32 v11, v11, v12
                v_lshlrev_b32 v11, 7, v11
                v_and_b32 v12, 3, v0
                v_lshl_add_u32 v11, v12, 3, v11
                v_add_u32 v11, s{S_MX}, v11
                v_add_u32 v11, {SCR}, v11
                v_lshlrev_b32 v12, 4, v0""")
                k("s_waitcnt lgkmcnt(0)")
                for cc in range(4):
                    for e in range(2):
                        k(f"ds_read_b64_tr_b16 {a(240+4*cc+2*e,2)}, v11 offset:{e*1024+cc*32}")
                k("s_waitcnt lgkmcnt(0)")
                for cc in range(4):
                    k(f"s_add_u32 s{S_T}, s47, {cc*48*1024}")
                    st_tok = k(f"buffer_store_dwordx4 {a(240+4*cc,4)}, v12, {s(SRD_WS,4)}, s{S_T} offen sc1")
            if n == 11:
                k.wait_vm(st_tok)
                k(f"""s_lshl_b32 s{S_T}, s{SU}, 6
                s_add_u32 s{S_T}, s{S_T}, {WS_FB + 512*FLS}""")
                self.set_flag(S_T, 11)
            if n == 28:
                k(f"""v_min_u32 v11, 47, v0
                s_mul_i32 s{S_T}, s{S_W}, 48
                v_add_lshl_u32 v11, v11, s{S_T}, 2
                v_add_u32 v11, {L_WS}, v11
                v_lshlrev_b32 v{B1R}, 16, v{B1R}
                v_mov_b32 v12, 0
                ds_write_b32 v11, v12
                ds_write_b32 v11, v{B1R} offset:768""")
        assert not pending
        self.stamp(2)
        k.c("================ MLP epilogue")
        self.b2_prefetch(1)
        TM = 148
        k(f"""v_and_b32 v11, 31, v0
        v_lshlrev_b32 v12, 2, v11
        v_add_u32 v12, {L_WS}, v12""")
        for T in range(6):
            k(f"ds_add_f32 v12, v{WSA+4*T} offset:{128*T}")
        AT, BT = 204, 206
        k(f"""v_and_b32 v13, 3, v0
        v_cmp_eq_u32 vcc, 1, v13
        v_cndmask_b32 v{SQ}, v{SQ}, v{SQ+1}, vcc
        v_cmp_eq_u32 vcc, 2, v13
        v_cndmask_b32 v{SQ}, v{SQ}, v{SQ+2}, vcc
        v_cmp_eq_u32 vcc, 3, v13
        v_cndmask_b32 v{SQ}, v{SQ}, v{SQ+3}, vcc
        v_mov_b32 v{SQ+1}, v{SQ}
        v_permlane32_swap_b32 v{SUM}, v{SUM+1}
        v_permlane32_swap_b32 v{SQ}, v{SQ+1}
        v_add_f32 v{SUM}, v{SUM}, v{SUM+1}
        v_add_f32 v{SQ}, v{SQ}, v{SQ+1}
        s_mov_b32 s{S_T}, {fbits(1.0/640)}
        v_mul_f32 v{SUM}, s{S_T}, v{SUM}
        v_mul_f32 v{TM}, v{SUM}, v{SUM}
        v_fma_f32 v{SQ}, v{SQ}, s{S_T}, -v{TM}
        v_max_f32 v{SQ}, 0, v{SQ}
        v_add_f32 v{TM}, {fbits(EPS)}, v{SQ}
        v_rsq_f32 v{SUM+1}, v{TM}
        v_mul_f32 v{TM}, v{SUM+1}, v{SUM+1}
        v_mul_f32 v{TM}, v{TM}, v{SQ}
        v_add_f32 v{TM}, {fbits(EPS)}, v{TM}
        v_rsq_f32 v{TM}, v{TM}
        v_mul_f32 v{AT}, v{TM}, v{SUM+1}
        v_mul_f32_e64 v{BT}, v{SUM}, -v{AT}
        s_lshl_b32 s{S_T}, s{S_W}, 8
        v_lshlrev_b32 v13, 3, v11
        v_add_u32 v13, s{S_T}, v13
        v_add_u32 v13, {LDS_STAT}, v13
        ds_write_b64 v13, {v(SUM,2)}
        v_lshrrev_b32 v14, 5, v0
        v_lshlrev_b32 v12, 4, v14
        v_add_u32 v12, {L_WS}, v12
        v_lshrrev_b32 v13, 4, v11
        v_mul_u32_u24 v13, {48*1024}, v13
        v_and_b32 v15, 15, v0
        v_lshl_add_u32 v13, v15, 4, v13
        v_lshl_add_u32 v13, v14, 8, v13
        s_lshl_b32 s{S_T}, s{S_I}, 3
        s_lshl_b32 s{S_T+1}, s{S_W}, 1
        s_add_u32 s{S_T}, s{S_T}, s{S_T+1}
        s_mul_i32 s{S_T}, s{S_T}, 48
        s_mul_i32 s{S_T+1}, s{S_J}, 6
        s_add_u32 s{S_T}, s{S_T}, s{S_T+1}
        s_lshl_b32 s{S_T}, s{S_T}, 10
        s_add_u32 s{S_T}, s{S_T}, {WS_A2[1]}
        s_add_u32 s{S_T+1}, s{S_T}, 4096
        s_mov_b32 s{S_T+2}, {fbits(-2*LOG2E*math.sqrt(2/math.pi))}
        s_mov_b32 s{S_T+3}, s{S_T+2}
        s_mov_b32 s{S_T+4}, {fbits(-2*LOG2E*math.sqrt(2/math.pi)*0.044715)}
        s_mov_b32 s{S_T+5}, s{S_T+4}
        v_mov_b32 v{TM}, s{S_T+2}
        v_mov_b32 v{TM+1}, s{S_T+2}
        s_waitcnt lgkmcnt(0)
        s_barrier""")
        self.stamp(3)
        C1 = TM
        WB = [150, 182]
        WB = [112-0, 150]
        Q = 182
        PKO = [198, 208]
        def wreads(T):
            b = WB[T % 2]; tk = None
            for q4 in range(4):
                k(f"ds_read_b128 {v(b+4*q4,4)}, v12 offset:{(32*T+8*q4)*4}")
                tk = k(f"ds_read_b128 {v(b+16+4*q4,4)}, v12 offset:{768+(32*T+8*q4)*4}")
            return tk
        tk = wreads(0)
        last = None
        for T in range(6):
            k.wait_lg(tk)
            if T + 1 < 6: tk = wreads(T+1)
            b = WB[T % 2]
            for c in range(2):
                po = PKO[c]
                prs = range(4*c, 4*c+4)
                for p in prs:
                    z = ACC + 16*T + 2*p
                    k(f"v_pk_fma_f32 {v(b+2*p,2)}, {v(BT,2)}, {v(b+2*p,2)}, {v(b+16+2*p,2)} op_sel_hi:[0,1,1]")
                for p in prs:
                    z = ACC + 16*T + 2*p
                    k(f"v_pk_fma_f32 {v(z,2)}, {v(AT,2)}, {v(z,2)}, {v(b+2*p,2)} op_sel_hi:[0,1,1]")
                for p in prs:
                    z = ACC + 16*T + 2*p; q = Q + 2*(p % 4)
                    k(f"v_pk_mul_f32 {v(q,2)}, {v(z,2)}, {v(z,2)}")
                for p in prs:
                    q = Q + 2*(p % 4)
                    k(f"v_pk_fma_f32 {v(q,2)}, {v(q,2)}, {s(S_T+4,2)}, {v(C1,2)}")
                for p in prs:
                    z = ACC + 16*T + 2*p; q = Q + 2*(p % 4)
                    k(f"v_pk_mul_f32 {v(q,2)}, {v(q,2)}, {v(z,2)}")
                for p in prs:
                    q = Q + 2*(p % 4)
                    k(f"v_exp_f32 v{q}, v{q}\nv_exp_f32 v{q+1}, v{q+1}")
                for p in prs:
                    q = Q + 2*(p % 4)
                    k(f"v_pk_add_f32 {v(q,2)}, {v(q,2)}, 1.0 op_sel_hi:[1,0]")
                for p in prs:
                    q = Q + 2*(p % 4)
                    k(f"v_rcp_f32 v{q}, v{q}\nv_rcp_f32 v{q+1}, v{q+1}")
                for p in prs:
                    z = ACC + 16*T + 2*p; q = Q + 2*(p % 4)
                    k(f"v_pk_mul_f32 {v(q,2)}, {v(q,2)}, {v(z,2)}")
                for p in prs:
                    q = Q + 2*(p % 4)
                    k(f"v_cvt_pk_bf16_f32 v{po+p%4}, v{q}, v{q+1}")
                last = k(f"buffer_store_dwordx4 {v(po,4)}, v13, {s(SRD_WS,4)}, s{S_T+(T//4)} offen offset:{(T%4)*1024+c*512} sc1")
        self.stamp(6)
        self.flag_a2(1, last)
        self.phase2(1)

    def phase2(self, side):
        k = self.k
        if self.stop == "p1":
            k("s_waitcnt vmcnt(0)")
            self.finish_wg(side)
            return
        S = [40, 48][side]; KS = [10, 12][side]
        ACC = 16; RING = 96; NR = 32
        hfS = [0, 1][side]
        hfO = 1 - hfS
        LV, RW, RR = 1, 2, 3
        OO = 8
        XB, DB, BB = 224, 234, 244
        SA = 36
        k.c(f"================ phase 2 (side {side})")
        k(f"""v_lshlrev_b32 v{LV}, 4, v0
        v_and_b32 v13, 7, v0
        v_lshlrev_b32 v13, 6, v13
        s_lshl_b32 s{S_T}, s{S_I}, 5
        s_lshl_b32 s{S_T+1}, s{S_W}, 3
        s_add_u32 s{S_T}, s{S_T}, s{S_T+1}
        s_lshl_b32 s{S_T}, s{S_T}, 6
        s_add_u32 s{S_T}, s{S_T}, {WS_FA + side*512*FLS}
        s_mul_i32 s{S_T+1}, s{S_I}, {8*S}
        s_mul_i32 s{S_T+2}, s{S_W}, {KS}
        s_add_u32 s{S_T+1}, s{S_T+1}, s{S_T+2}
        s_lshl_b32 s{S_T+1}, s{S_T+1}, 10
        s_add_u32 s{S_T+1}, s{S_T+1}, {WS_A2[side]}""")
        for t4 in range(4):
            k(f"s_add_u32 s{SA+t4}, s{S_T+1}, {(4*hfS+t4)*S*1024}")
            k(f"s_add_u32 s{SA+4+t4}, s{S_T+1}, {(4*hfO+t4)*S*1024}")
        self.poll(lambda: k(f"buffer_load_dword v14, v13, {s(SRD_WS,4)}, s{S_T} offen sc1"),
                  lambda: k(f"v_cmp_ne_u32 vcc, s{S_TAG}, v14"), "pa")
        self.stamp(8)
        seq = [(p, ss, t4) for p in range(2) for ss in range(KS) for t4 in range(4)]
        atok = {}
        def aload(idx):
            p, ss, t4 = seq[idx]
            r = RING + 4*(idx % NR)
            if ss % 4 == 0 and ss > 0:
                k(f"s_add_u32 s{SA+4*p+t4}, s{SA+4*p+t4}, 4096")
            atok[idx] = k(f"buffer_load_dwordx4 {v(r,4)}, v{LV}, {s(SRD_WS,4)}, s{SA+4*p+t4} offen offset:{(ss%4)*1024} sc1")
        nxt = 0
        while nxt < NR - 4:
            aload(nxt); nxt += 1
        k(f"""v_and_b32 v13, 15, v0
        v_mul_u32_u24 v{RW}, {RED_RS}, v13
        v_lshrrev_b32 v14, 4, v0
        v_lshl_add_u32 v{RW}, v14, 4, v{RW}
        s_mul_i32 s{S_T}, s{S_W}, {RED_W}
        s_add_u32 s{S_T}, s{S_T}, {LDS_RED}
        v_add_u32 v{RW}, s{S_T}, v{RW}
        s_mul_i32 s{S_T}, s{S_W}, {16*RED_RS}
        s_add_u32 s{S_T}, s{S_T}, {LDS_RED}""")
        for it in range(5):
            k(f"""v_add_u32 v13, {64*it}, v0
            v_mul_u32_u24 v14, 3277, v13
            v_lshrrev_b32 v14, 16, v14               ; row = q/20
            v_mul_u32_u24 v15, 20, v14
            v_sub_u32 v15, v13, v15                  ; c4
            v_mul_u32_u24 v13, {RED_RS}, v14
            v_lshl_add_u32 v13, v15, 4, v13
            v_add_u32 v{RR+it}, s{S_T}, v13
            v_mul_u32_u24 v13, 2560, v14
            v_lshl_add_u32 v{OO+it}, v15, 4, v13""")
        def mfmas(p, ss):
            nonlocal nxt
            base_idx = (p*KS + ss)*4
            cnt = 0
            for t4 in range(4):
                idx = base_idx + t4
                k.wait_vm(atok[idx])
                for cc in range(5):
                    d = ACC + (t4*5 + cc)*4
                    c_ = "0" if ss == 0 else v(d, 4)
                    k(f"v_mfma_f32_16x16x32_bf16 {v(d,4)}, {a((ss*5+cc)*4,4)}, {v(RING+4*(idx%NR),4)}, {c_}")
                    if cc == 1 and nxt < len(seq) and nxt < idx + NR - 1 - 3 + 0:
                        aload(nxt); nxt += 1
            return
        def reduce():
            for t4 in range(4):
                for cc in range(5):
                    k(f"ds_write_b128 v{RW}, {v(ACC+(t4*5+cc)*4,4)} offset:{t4*16*RED_RS+cc*64}")
            k("s_waitcnt lgkmcnt(0)")
            k("s_barrier")
            toks = []
            for it in range(5):
                for sw in range(4):
                    off = sw*RED_W
                    toks.append(k(f"ds_read_b128 {v(ACC+(it*4+sw)*4,4)}, v{RR+it} offset:{off}"))
                if it >= 2:
                    pass
            for it in range(5):
                k.wait_lg(toks[4*it+3])
                b = ACC + it*16
                for h in range(2):
                    k(f"v_pk_add_f32 {v(b+2*h,2)}, {v(b+2*h,2)}, {v(b+4+2*h,2)}")
                    k(f"v_pk_add_f32 {v(b+8+2*h,2)}, {v(b+8+2*h,2)}, {v(b+12+2*h,2)}")
                for h in range(2):
                    k(f"v_pk_add_f32 {v(b+2*h,2)}, {v(b+2*h,2)}, {v(b+8+2*h,2)}")
        assert 3*RED_W < 65536
        k.wait_vm(self.b2_tok)
        for ss in range(KS): mfmas(0, ss)
        self.stamp(9)
        reduce()
        k(f"""s_lshl_b32 s{S_T}, s{S_I}, 3
        s_add_u32 s{S_T}, s{S_T}, s{S_J}
        s_mul_i32 s{S_T}, s{S_T}, 20480
        s_mul_i32 s{S_T+1}, s{S_W}, 5120
        s_add_u32 s{S_T}, s{S_T}, s{S_T+1}
        s_add_u32 s44, s{S_T}, {WS_PART + (1-side)*128*20480}
        s_add_u32 s{S_T}, s{S_T}, {WS_PART + side*128*20480}
        s_add_u32 s{S_T+1}, s{S_T}, 4096""")
        for it in range(5):
            send_tok = k(f"buffer_store_dwordx4 {v(ACC+it*16,4)}, v{LV}, {s(SRD_WS,4)}, s{S_T+it//4} offen offset:{(it%4)*1024} sc1")
        k("s_barrier")
        k(f"""s_lshl_b32 s{S_T}, s{S_I}, 7
        s_lshl_b32 s{S_T+1}, s{S_W}, 4
        s_add_u32 s{S_T}, s{S_T}, s{S_T+1}
        s_add_u32 s{S_T}, s{S_T}, {64*hfO}
        s_mul_i32 s{S_T}, s{S_T}, 2560
        s_mul_i32 s{S_T+1}, s{S_J}, 320
        s_add_u32 s35, s{S_T}, s{S_T+1}
        s_lshr_b32 s{S_T}, s35, 1
        s_lshr_b32 s{S_T+1}, s{S_T+1}, 1""")
        self.srd(SRD_T1, 8, 1280)
        self.srd(SRD_T2, 13, 1280)
        for it in range(5):
            k(f"""v_lshrrev_b32 v13, 1, v{OO+it}
            buffer_load_dwordx2 {v(XB+2*it,2)}, v13, {s(SRD_X,4)}, s{S_T} offen
            v_add_u32 v13, {64*it}, v0
            v_mul_u32_u24 v14, 3277, v13
            v_lshrrev_b32 v14, 16, v14
            v_mul_u32_u24 v14, 20, v14
            v_sub_u32 v14, v13, v14
            v_lshlrev_b32 v14, 3, v14
            buffer_load_dwordx2 {v(DB+2*it,2)}, v14, {s(SRD_T1,4)}, s{S_T+1} offen""")
            ep_tok = k(f"buffer_load_dwordx2 {v(BB+2*it,2)}, v14, {s(SRD_T2,4)}, s{S_T+1} offen")
        flagged = False
        for ss in range(KS):
            mfmas(1, ss)
            if not flagged and k.vm_done >= send_tok:
                k(f"s_add_u32 s{S_T}, s34, {WS_FP + side*512*FLS}")
                self.set_flag(S_T, 14)
                flagged = True
        if not flagged:
            k.wait_vm(send_tok)
            k(f"s_add_u32 s{S_T}, s34, {WS_FP + side*512*FLS}")
            self.set_flag(S_T, 14)
        self.stamp(10)
        reduce()
        PB = RING
        k(f"""s_add_u32 s{S_T}, s34, {WS_FP + (1-side)*512*FLS}
        v_mov_b32 v13, 0""")
        self.poll(lambda: k(f"buffer_load_dword v14, v13, {s(SRD_WS,4)}, s{S_T} offen sc1"),
                  lambda: k(f"v_cmp_ne_u32 vcc, s{S_TAG}, v14"), "pp")
        self.stamp(11)
        k(f"s_add_u32 s{S_T}, s44, 4096")
        ptoks = []
        for it in range(5):
            ptoks.append(k(f"buffer_load_dwordx4 {v(PB+4*it,4)}, v{LV}, {s(SRD_WS,4)}, s{44 if it<4 else S_T} offen offset:{(it%4)*1024} sc1"))
        ST = RING + 32; T2 = RING + 48
        k(f"""s_lshl_b32 s{S_T+1}, s{S_W}, 7
        s_add_u32 s{S_T+1}, s{S_T+1}, {LDS_STAT + 64*hfO*8}""")
        stoks = []
        for it in range(5):
            k(f"""v_add_u32 v13, {64*it}, v0
            v_mul_u32_u24 v13, 3277, v13
            v_lshrrev_b32 v13, 16, v13
            v_lshl_add_u32 v13, v13, 3, s{S_T+1}""")
            stoks.append(k(f"ds_read_b64 {v(ST+2*it,2)}, v13"))
        for it in range(5):
            b = ACC + it*16
            xx, dd, bb = T2, T2+4, T2+8
            for (src, dst) in ((XB, xx), (DB, dd), (BB, bb)):
                for h in range(2):
                    k(f"v_lshlrev_b32 v{dst+2*h}, 16, v{src+2*it+h}")
                    k(f"v_and_b32 v{dst+2*h+1}, 0xffff0000, v{src+2*it+h}")
            k.wait_lg(stoks[it])
            for h in range(2):
                k(f"""v_pk_add_f32 {v(b+2*h,2)}, {v(b+2*h,2)}, {v(bb+2*h,2)}
                v_pk_add_f32 {v(b+2*h,2)}, {v(b+2*h,2)}, {v(xx+2*h,2)}
                v_pk_add_f32 {v(xx+2*h,2)}, {v(xx+2*h,2)}, {v(ST+2*it,2)} op_sel_hi:[1,0] neg_lo:[0,1] neg_hi:[0,1]
                v_pk_mul_f32 {v(dd+2*h,2)}, {v(dd+2*h,2)}, {v(ST+2*it,2)} op_sel:[0,1] op_sel_hi:[1,1]
                v_pk_fma_f32 {v(b+2*h,2)}, {v(xx+2*h,2)}, {v(dd+2*h,2)}, {v(b+2*h,2)}""")
        for it in range(5):
            b = ACC + it*16
            k.wait_vm(ptoks[it])
            for h in range(2):
                k(f"v_pk_add_f32 {v(b+2*h,2)}, {v(b+2*h,2)}, {v(PB+4*it+2*h,2)}")
            k(f"buffer_store_dwordx4 {v(b,4)}, v{OO+it}, {s(SRD_OUT,4)}, s35 offen")
        self.stamp(12)
        self.finish_wg(side)

    def finish_wg(self, side):
        k = self.k
        if side == 0:
            k(f"""s_or_b32 s{S_T}, s2, s{S_W}
            s_cmp_lg_u32 s{S_T}, 0
            s_cbranch_scc1 L_fin0
            v_lshlrev_b32 v13, 8, v0
            s_mov_b32 s{S_T}, {WS_FA}""")
            def loads():
                for q in range(4):
                    k(f"s_add_u32 s{S_T+1}, s{S_T}, {q*64*4*FLS}")
                    k(f"buffer_load_dword v{16+q}, v13, {s(SRD_WS,4)}, s{S_T+1} offen sc1")
            def check():
                k(f"v_xor_b32 v14, s{S_TAG}, v16")
                for q in range(1, 4):
                    k(f"v_xor_b32 v15, s{S_TAG}, v{16+q}\nv_or_b32 v14, v14, v15")
                k("v_cmp_ne_u32 vcc, 0, v14")
            self.poll(loads, check, "pe")
            k(f"s_mov_b32 s{S_T}, {WS_EPOCH}")
            self.set_flag(S_T, 14)
            k.label("L_fin0")
        if self.spin:
            lb = k.newlabel("spin")
            k.label(lb)
            k(f"""s_memrealtime s[98:99]
            s_waitcnt lgkmcnt(0)
            s_sub_u32 s98, s98, s100
            s_cmp_lt_u32 s98, {self.spin}
            s_cbranch_scc1 {lb}""")
        if self.ts:
            k("s_waitcnt vmcnt(0)")
            self.stamp(13)
            self.stamp_flush()
        k("s_endpgm")

    def build(self):
        k = self.k
        self.prologue()
        st = k.state()
        self.ssm()
        k.set_state(st)
        self.mlp()
        k.label("L_end")
        k("s_endpgm")
        body = k.finish()
        hdr = open("header.txt").read()
        return (hdr + f"""; @launch grid=(256,1,1) block=(256,1,1) lds=163840
.amdgcn_target "amdgcn-amd-amdhsa--gfx950"
.text
.globl {NAME}
.p2align 8
.type {NAME},@function
{NAME}:
""" + body + f""".section .rodata,"a"
.p2align 6
.amdhsa_kernel {NAME}
  .amdhsa_next_free_vgpr 512
  .amdhsa_next_free_sgpr 102
  .amdhsa_accum_offset 256
  .amdhsa_group_segment_fixed_size 0
  .amdhsa_kernarg_size 136
  .amdhsa_user_sgpr_count 2
  .amdhsa_user_sgpr_kernarg_segment_ptr 1
  .amdhsa_system_sgpr_workgroup_id_x 1
.end_amdhsa_kernel
""")

if __name__ == "__main__":
    import argparse
    ap = argparse.ArgumentParser()
    ap.add_argument("-o", default="k1.s")
    ap.add_argument("--stop", default=None)
    ap.add_argument("--ts", action="store_true")
    ap.add_argument("--spin", type=int, default=0)
    a_ = ap.parse_args()
    g = G(stop=a_.stop, ts=a_.ts, spin=a_.spin)
    txt = g.build()
    open(a_.o, "w").write(txt)
    print("written", a_.o, "nops inserted:", g.k.nops, "lines:", txt.count("\n"))
```

```python
import sys, math, struct
sys.path.insert(0, "gen")
from emit import *

NAME = "parallel_sum__ssm_conv_s5__mixer_channel_mlp__prompt_kernel"
WS_EPOCH = 0
WS_FB = 0x1000
WS_FA = 0x11000
WS_FP = 0x21000
WS_AGG = 0x31000
WS_STG = 0x59000
WS_WSG = 0x61000
WS_B2S = [0x70000, 0x200000]
WS_A2 = [0x400000, 0x900000]
WS_PART = 0xF00000
WS_TS = 0x1400000
WS_SIZE = 0x1500000
FLS = 64
S_W = 3
SRD_X, SRD_W, SRD_WS, SRD_OUT, SRD_T1, SRD_T2 = 4, 8, 12, 16, 20, 24
S_TAG, S_TAG2, S_I, S_J, S_SIDE = 28, 29, 30, 31, 32
S_PW = 33
S_FLAG = 34
S_OUT = 35
S_XO = 36
S_WO = 40
S_MX, S_MW = 45, 46
S_B2 = 47
S_T = 48
P0 = 64
def ptr(n): return s(P0 + 2*n, 2)
S_TS = 98
LOG2E = 1.4426950408889634
EPS = 1e-5
def fbits(x): return "0x%08x" % struct.unpack("<I", struct.pack("<f", x))[0]
POLL_MAX = 20000
LDS_STAT = 160000
LDS_RED = 16384
RED_RS = 336
RED_W = 64 * RED_RS
SSM_LB = 102400
WS4 = s(SRD_WS, 4)

class G:
    def __init__(self, stop=None, ts=False, spin=0, seg=None, opt=()):
        self.k = Emit(); self.slow = []; self.stop = stop; self.ts = ts; self.spin = spin; self.seg = seg; self.opt = set(opt)

    def stamp(self, idx):
        k = self.k
        if self.seg == idx:
            k("s_memrealtime s[98:99]\ns_waitcnt lgkmcnt(0)\ns_sub_u32 s101, s98, s100")
        if not self.ts: return
        k(f"{'s_memtime' if 'cyc' in self.opt else 's_memrealtime'} {s(S_TS,2)}")
        k("s_waitcnt lgkmcnt(0)")
        k(f"v_writelane_b32 v255, s{S_TS}, {idx}")
    def stamp_flush(self):
        if not self.ts: return
        self.k(f"""s_lshl_b32 s{S_T}, s2, 2
        s_add_u32 s{S_T}, s{S_T}, s{S_W}
        s_lshl_b32 s{S_T}, s{S_T}, 6
        s_add_u32 s{S_T}, s{S_T}, {WS_TS}
        v_mbcnt_lo_u32_b32 v254, -1, 0
        v_mbcnt_hi_u32_b32 v254, -1, v254
        v_cmp_gt_u32 vcc, 16, v254
        v_lshlrev_b32 v254, 2, v254
        s_and_saveexec_b64 {s(S_T+2,2)}, vcc
        buffer_store_dword v255, v254, {WS4}, s{S_T} offen
        s_mov_b64 exec, {s(S_T+2,2)}""")
    def early_stop(self, name):
        if self.stop != name: return False
        self.k("s_waitcnt vmcnt(0)"); self.stamp(13); self.stamp_flush(); self.k("s_endpgm")
        return True

    def srd(self, base, pn, size):
        self.k(f"""s_mov_b32 s{base}, s{P0+2*pn}
        s_and_b32 s{base+1}, s{P0+2*pn+1}, 0xffff
        s_mov_b32 s{base+2}, {size}
        s_mov_b32 s{base+3}, 0x20000""")

    def verify(self, check, reload, name):
        k = self.k
        slow = k.newlabel(name); done = k.newlabel(name + "d")
        check()
        k(f"s_cbranch_vccnz {slow}")
        k.label(done)
        self.slow.append((slow, done, check, reload))
    def flush_slow(self):
        k = self.k
        for slow, done, check, reload in self.slow:
            top = k.newlabel(slow + "t")
            k.label(slow)
            k(f"s_mov_b32 s{S_T+15}, {POLL_MAX}")
            k.label(top)
            reload()
            check()
            k(f"""s_cbranch_vccz {done}
            s_sub_u32 s{S_T+15}, s{S_T+15}, 1
            s_cmp_lg_u32 s{S_T+15}, 0
            s_cbranch_scc1 {top}
            s_branch {done}""")
        self.slow = []

    def set_flag(self, soff, vtmp, off=0):
        return self.k(f"""v_mov_b32 v{vtmp}, s{S_TAG}
        s_mov_b64 exec, 1
        buffer_store_dword v{vtmp}, off, {WS4}, s{soff} offset:{off} sc1
        s_mov_b64 exec, -1""")

    def weave(self, main, fill, per=1, start=0):
        k = self.k
        for i, m in enumerate(main):
            m() if callable(m) else k(m)
            if i >= start:
                for _ in range(per):
                    if fill:
                        f = fill.pop(0)
                        f() if callable(f) else k(f)

    def cpow(self, dre, dim, n, zr, zi, t):
        return [f"v_mul_f32 v{t}, {n}, v{zi}", f"v_mul_f32 v{dre}, {n}, v{zr}", f"v_fract_f32 v{t}, v{t}",
                f"v_exp_f32 v{dre}, v{dre}", f"v_sin_f32 v{dim}, v{t}", f"v_cos_f32 v{t}, v{t}",
                f"v_mul_f32 v{dim}, v{dim}, v{dre}", f"v_mul_f32 v{dre}, v{t}, v{dre}"]
    def cpow5(self, dre, dim, n, ZR, ZI, T):
        L = [self.cpow(dre+b, dim+b, n, ZR+b, ZI+b, T+b) for b in range(5)]
        return [L[b][i] for i in range(8) for b in range(5)]
    def cmul5(self, dr, di, ar, ai, br, bi, cr=None, ci=None):
        L = []
        for b in range(5):
            L.append(f"v_mul_f32 v{dr+b}, v{ar+b}, v{br+b}" if cr is None else f"v_fma_f32 v{dr+b}, v{ar+b}, v{br+b}, v{cr+b}")
            L.append(f"v_mul_f32 v{di+b}, v{ar+b}, v{bi+b}" if ci is None else f"v_fma_f32 v{di+b}, v{ar+b}, v{bi+b}, v{ci+b}")
        for b in range(5):
            L.append(f"v_fma_f32 v{dr+b}, -v{ai+b}, v{bi+b}, v{dr+b}")
            L.append(f"v_fma_f32 v{di+b}, v{ai+b}, v{br+b}, v{di+b}")
        return L
    def csq5(self, dr, di, ar, ai):
        L = []
        for b in range(5):
            L.append(f"v_mul_f32 v{dr+b}, v{ar+b}, v{ar+b}")
            L.append(f"v_mul_f32 v{di+b}, v{ar+b}, v{ai+b}")
        for b in range(5):
            L.append(f"v_fma_f32 v{dr+b}, -v{ai+b}, v{ai+b}, v{dr+b}")
            L.append(f"v_add_f32 v{di+b}, v{di+b}, v{di+b}")
        return L
    def emit(self, L):
        for x in L:
            x() if callable(x) else self.k(x)

    def prologue(self):
        k = self.k
        k(f"""s_cmp_ge_u32 s2, 256
        s_cbranch_scc1 L_end""")
        if self.spin: k("s_memrealtime s[100:101]")
        k(f"""s_load_dwordx16 {s(P0,16)}, s[0:1], 0
        s_load_dwordx16 {s(P0+16,16)}, s[0:1], 64
        s_load_dwordx2 {s(P0+32,2)}, s[0:1], 128
        v_lshrrev_b32 v1, 6, v0
        v_and_b32 v0, 63, v0
        v_readfirstlane_b32 s{S_W}, v1
        s_and_b32 s{S_SIDE}, s2, 1
        s_bfe_u32 s{S_T}, s2, 0x20001
        s_lshr_b32 s{S_T+1}, s2, 6           ; c = id>>6
        s_lshl_b32 s{S_I}, s{S_T+1}, 2
        s_add_u32 s{S_I}, s{S_I}, s{S_T}
        s_bfe_u32 s{S_J}, s2, 0x30003        ; j = (id>>3)&7
        s_lshl_b32 s{S_T}, s{S_I}, 3
        s_add_u32 s{S_T}, s{S_T}, s{S_J}
        s_lshl_b32 s{S_T}, s{S_T}, 2
        s_add_u32 s{S_PW}, s{S_T}, s{S_W}    ; (i*8+j)*4+w
        s_lshl_b32 s{S_FLAG}, s{S_PW}, 6
        s_lshl_b32 s{S_MX}, s{S_W}, 12
        s_lshl_b32 s{S_T+2}, s{S_I}, 7
        s_lshl_b32 s{S_T+3}, s{S_W}, 5
        s_add_u32 s{S_T+2}, s{S_T+2}, s{S_T+3}
        s_mul_i32 s{S_XO}, s{S_T+2}, 1280
        v_lshrrev_b32 v11, 4, v0                 ; g
        v_and_b32 v12, 7, v0
        v_xor_b32 v12, v12, v11
        v_lshlrev_b32 v12, 4, v12
        v_lshrrev_b32 v13, 3, v0
        v_mul_u32_u24 v3, 1280, v13
        v_add_u32 v3, v3, v12                    ; (l>>3)*1280 + swz
        """)
        if self.ts: k("v_mov_b32 v255, 0")
        k("s_waitcnt lgkmcnt(0)")
        if self.spin: k("s_mov_b32 s101, 0")
        k(f"s_load_dword s{S_TAG}, {ptr(16)}, {WS_EPOCH}")
        self.srd(SRD_X, 0, 2621440)
        self.srd(SRD_WS, 16, WS_SIZE)
        self.stamp(0)
        k(f"""s_cmp_eq_u32 s{S_SIDE}, 1
        s_cbranch_scc1 L_mlp""")

    def make_tag(self):
        self.k(f"""s_waitcnt lgkmcnt(0)
        s_mul_i32 s{S_TAG}, s{S_TAG}, 0x9E3779B1
        s_add_u32 s{S_TAG}, s{S_TAG}, 0x7F4A7C15
        s_xor_b32 s{S_TAG2}, s{S_TAG}, 0x5bd1e995
        s_brev_b32 s{S_TAG2}, s{S_TAG2}""")

    def rowstat_loads(self, srd, s_row, s_cl):
        k = self.k
        k(f"""v_min_u32 v14, s{s_cl}, v11
        v_mul_u32_u24 v15, 1280, v14
        v_and_b32 v13, 15, v0
        v_lshl_add_u32 v15, v13, 4, v15
        s_mul_i32 s{s_row}, s{s_row}, 1280""")
        for q in range(5):
            t = k(f"buffer_load_dwordx4 {v(16+4*q,4)}, v15, {s(srd,4)}, s{s_row} offen offset:{256*q}")
        return t
    def rowstat_finish(self, tok, s_dst):
        k = self.k
        k.wait_vm(tok)
        k(f"s_mov_b32 s{S_T+14}, 0x3f803f80")
        for q in range(20):
            k(f"v_dot2_f32_bf16 v36, v{16+q}, s{S_T+14}, {'0' if q == 0 else 'v36'}")
            k(f"v_dot2_f32_bf16 v38, v{16+q}, v{16+q}, {'0' if q == 0 else 'v38'}")
        k(f"v_mov_b32 v37, s{S_TAG}\nv_mov_b32 v39, s{S_TAG2}\nv_lshlrev_b32 v14, 4, v14")
        for r in (8, 4, 2, 1):
            k(f"v_add_f32_dpp v36, v36, v36 row_ror:{r} row_mask:0xf bank_mask:0xf")
            k(f"v_add_f32_dpp v38, v38, v38 row_ror:{r} row_mask:0xf bank_mask:0xf")
        k(f"""s_mov_b32 exec_lo, 0x00010001
        s_mov_b32 exec_hi, 0x00010001
        buffer_store_dwordx4 v[36:39], v14, {WS4}, s{s_dst} offen sc1
        s_mov_b64 exec, -1""")

    def b2_setup(self, side, vl):
        k = self.k
        S = [40, 48][side]; KS = [10, 12][side]
        if side == 0:
            L = f"""v_min_u32 v{vl}, 14, v0
            v_mul_u32_u24 v{vl+1}, 86, v{vl}
            v_lshrrev_b32 v{vl+1}, 8, v{vl+1}
            v_mul_u32_u24 v{vl+1}, 7, v{vl+1}
            v_add_lshl_u32 v{vl}, v{vl}, v{vl+1}, 6
            s_mul_i32 s{S_T+12}, s{S_W}, 10
            s_lshr_b32 s{S_T+12}, s{S_T+12}, 2
            s_mul_i32 s{S_T+13}, s{S_J}, 50
            s_add_u32 s{S_T+12}, s{S_T+12}, s{S_T+13}
            s_lshl_b32 s{S_T+12}, s{S_T+12}, 6
            s_add_u32 s{S_T+12}, s{S_T+12}, {WS_FB}"""
        else:
            L = f"""v_min_u32 v{vl}, 23, v0
            v_lshrrev_b32 v{vl+1}, 1, v{vl}
            v_lshlrev_b32 v{vl+1}, 3, v{vl+1}
            v_add_lshl_u32 v{vl}, v{vl}, v{vl+1}, 6
            s_mul_i32 s{S_T+12}, s{S_W}, 120
            s_mul_i32 s{S_T+13}, s{S_J}, 5
            s_lshr_b32 s{S_T+13}, s{S_T+13}, 2
            s_add_u32 s{S_T+12}, s{S_T+12}, s{S_T+13}
            s_lshl_b32 s{S_T+12}, s{S_T+12}, 6
            s_add_u32 s{S_T+12}, s{S_T+12}, {WS_FB + 512*FLS}"""
        L += f"""
        s_mul_i32 s{S_B2}, s{S_J}, {5*S}
        s_mul_i32 s{S_T+13}, s{S_W}, {KS}
        s_add_u32 s{S_B2}, s{S_B2}, s{S_T+13}
        s_lshl_b32 s{S_B2}, s{S_B2}, 10
        s_add_u32 s{S_B2}, s{S_B2}, {WS_B2S[side]}"""
        self.groups = [[list(range(10))], [[0, 1, 6, 7], [2, 3, 8, 9], [4, 5, 10, 11]]][side]
        self.b2tok = {}
        self.b2q = []
        for grp in self.groups:
            for ss in grp:
                for cc in range(5):
                    def ld(ss=ss, cc=cc):
                        if 'nob2' in self.opt:
                            self.b2tok[ss, cc] = 0; return
                        k(f"s_add_u32 s{S_T+11}, s{S_B2}, {(cc*S + ss)*1024}")
                        self.b2tok[ss, cc] = k(f"buffer_load_dwordx4 {a((ss*5+cc)*4,4)}, v{self.LV}, {WS4}, s{S_T+11} offen sc1")
                    self.b2q.append(ld)
        return [x.strip() for x in L.split("\n")]
    def b2_take(self, n):
        out = self.b2q[:n]; self.b2q = self.b2q[n:]
        return out

    def ssm(self):
        k = self.k
        ACC = 16; FR = [96, 144]
        LR, LI, L2R, L2I, L4R, L4I, WR, WI = 192, 197, 202, 207, 212, 217, 222, 227
        ZR, ZI, KR, KI = 232, 237, 242, 247
        XE, XO, WA, WB, RD0, RD1, RX0, RX1, RW0, RW1 = 1, 2, 3, 4, 5, 6, 7, 8, 9, 10
        self.LV = 252; PV = 253
        STG0, STGS = 16384, 36864
        acc = lambda a_, tt: ACC + (a_*10 + tt)*4
        k.c("================ SSM side, phase 1")
        k(f"""s_cmp_lt_u32 s{S_W}, 2
        s_cselect_b32 s{SRD_W}, s{P0+6}, s{P0+8}
        s_cselect_b32 s{SRD_W+1}, s{P0+7}, s{P0+9}
        s_and_b32 s{SRD_W+1}, s{SRD_W+1}, 0xffff
        s_mov_b32 s{SRD_W+2}, 819200
        s_mov_b32 s{SRD_W+3}, 0x20000
        s_cmp_lt_u32 s{S_I}, 8
        s_cselect_b32 s{SRD_T1}, s{P0+6}, s{P0+8}
        s_cselect_b32 s{SRD_T1+1}, s{P0+7}, s{P0+9}
        s_cmp_eq_u32 s{S_W}, 0
        s_cselect_b32 s{SRD_T1}, s{P0}, s{SRD_T1}
        s_cselect_b32 s{SRD_T1+1}, s{P0+1}, s{SRD_T1+1}
        s_mov_b32 s{SRD_T1+2}, 819200
        s_cselect_b32 s{SRD_T1+2}, 2621440, s{SRD_T1+2}
        s_and_b32 s{SRD_T1+1}, s{SRD_T1+1}, 0xffff
        s_mov_b32 s{SRD_T1+3}, 0x20000
        s_lshl_b32 s{S_T}, s{S_I}, 7
        s_lshl_b32 s{S_T+1}, s{S_J}, 4
        s_add_u32 s{S_T}, s{S_T}, s{S_T+1}
        s_lshl_b32 s{S_T+1}, s{S_T}, 4
        s_add_u32 s{S_T+1}, s{S_T+1}, {WS_STG}
        s_lshl_b32 s{S_T+4}, s{S_W}, 2
        s_sub_u32 s{S_T+4}, s{S_T+4}, 4             ; 4(w-1)
        s_and_b32 s{S_T+2}, s{S_I}, 7
        s_mul_i32 s{S_T+2}, s{S_T+2}, 10
        s_mul_i32 s{S_T+3}, s{S_J}, 80
        s_add_u32 s{S_T+2}, s{S_T+2}, s{S_T+3}
        s_add_u32 s{S_T+2}, s{S_T+2}, s{S_T+4}      ; B row 80j+10(i%8)+4(w-1)
        s_mul_i32 s{S_T+3}, s{S_J}, 160
        s_mul_i32 s{S_T+5}, s{S_I}, 10
        s_add_u32 s{S_T+3}, s{S_T+3}, s{S_T+5}
        s_add_u32 s{S_T+3}, s{S_T+3}, s{S_T+4}
        s_lshl_b32 s{S_T+3}, s{S_T+3}, 4
        s_add_u32 s{S_T+3}, s{S_T+3}, {WS_WSG}
        s_cmp_eq_u32 s{S_W}, 0
        s_cselect_b32 s{S_T}, s{S_T}, s{S_T+2}
        s_cselect_b32 s{S_T+7}, s{S_T+1}, s{S_T+3}  ; destination
        s_cmp_eq_u32 s{S_W}, 3
        s_cselect_b32 s{S_T+1}, 1, 3""")
        rs_tok = self.rowstat_loads(SRD_T1, S_T, S_T+1)
        k(f"""v_lshrrev_b32 v13, 3, v0
        v_and_b32 v13, 3, v13
        v_lshrrev_b32 v15, 5, v0
        v_lshl_add_u32 v13, v15, 3, v13
        v_mul_u32_u24 v{XE}, 1280, v13
        v_add_u32 v{XE}, v{XE}, v12
        v_xor_b32 v{XO}, 64, v{XE}
        s_and_b32 s{S_T}, s{S_W}, 1
        s_lshl_b32 s{S_T+1}, s{S_T}, 6
        v_xor_b32 v{WA}, s{S_T+1}, v{WA}
        v_xor_b32 v{WB}, 64, v{WA}
        s_add_u32 s{S_XO+1}, s{S_XO}, {16*1280}
        s_add_u32 s{S_XO+2}, s{S_XO}, {4*1280}
        s_add_u32 s{S_XO+3}, s{S_XO}, {20*1280}
        s_mul_i32 s{S_T+2}, s{S_J}, 80
        s_mul_i32 s{S_T+3}, s{S_T}, 40
        s_add_u32 s{S_T+2}, s{S_T+2}, s{S_T+3}
        s_mul_i32 s{S_WO}, s{S_T+2}, 1280
        s_add_u32 s{S_WO+1}, s{S_WO}, {8*1280}
        s_add_u32 s{S_WO+2}, s{S_WO}, {16*1280}
        s_add_u32 s{S_WO+3}, s{S_WO}, {24*1280}
        s_add_u32 s{S_WO+4}, s{S_WO}, {32*1280}
        s_mul_i32 s{S_MW}, s{S_W}, 5120""")
        stage_tok = {}
        def dma_list(t):
            base = STG0 + (t % 4)*STGS
            L = []
            def mk(m, ld):
                def f(): stage_tok[t] = k(ld)
                return [m, f]
            for e in range(4):
                L.append(mk(f"s_add_u32 m0, s{S_MX}, {base + e*1024 - t*128}",
                            f"buffer_load_dwordx4 v{XE if e%2==0 else XO}, {s(SRD_X,4)}, s{S_XO+e} offen offset:{t*128} lds"))
            for e in range(5):
                L.append(mk(f"s_add_u32 m0, s{S_MW}, {base + 16384 + e*1024 - t*128}",
                            f"buffer_load_dwordx4 v{WA if e%2==0 else WB}, {s(SRD_W,4)}, s{S_WO+e} offen offset:{t*128} lds"))
            return L
        def dma_stage(t):
            for p in dma_list(t): self.emit(p)
        dma_stage(0)
        k(f"""v_and_b32 v13, 15, v0
        s_mul_i32 s{S_T}, s{S_J}, 160
        v_lshl_add_u32 v13, v13, 1, s{S_T}""")
        for b in range(5):
            k(f"global_load_ushort v{KR+b}, v13, {ptr(1)} offset:{32*b}")
            k(f"global_load_ushort v{KI+b}, v13, {ptr(2)} offset:{32*b}")
            vec_tok = k(f"global_load_ushort v{ZR+b}, v13, {ptr(7)} offset:{32*b}")
        dma_stage(1)
        U1, U2, D1, D2, SRC2 = 57, 58, 59, 60, 56
        self.srd(SRD_T2, 12, 1966080)
        k(f"""s_sub_u32 s{S_T}, s{S_PW}, 480
        s_cmp_lt_u32 s{S_PW}, 480
        s_cselect_b32 s{U1}, s{S_PW}, s{S_T}
        s_mul_i32 s{S_T+2}, s{U1}, 6554
        s_lshr_b32 s{S_T+2}, s{S_T+2}, 16        ; s = unit/10
        s_mul_i32 s{S_T}, s{S_T+2}, 10
        s_sub_u32 s{S_T}, s{U1}, s{S_T}          ; cg
        s_mul_i32 s{S_T+1}, s{S_T+2}, {32*1280}
        s_lshl_b32 s{S_T+3}, s{S_T}, 7
        s_add_u32 s{S_T+1}, s{S_T+1}, s{S_T+3}
        s_mul_i32 s{S_T+3}, s{S_T}, {4*48}
        s_add_u32 s{S_T+3}, s{S_T+3}, s{S_T+2}
        s_lshl_b32 s{S_T+3}, s{S_T+3}, 10
        s_add_u32 s{D1}, s{S_T+3}, {WS_B2S[1]}
        v_lshrrev_b32 v{PV}, 3, v0
        v_mul_u32_u24 v{PV}, 1280, v{PV}
        v_and_b32 v13, 7, v0
        v_lshl_add_u32 v{PV}, v13, 4, v{PV}
        v_lshlrev_b32 v{self.LV}, 4, v0""")
        for e in range(4):
            k(f"s_add_u32 m0, s{S_MX}, {e*1024}")
            k(f"s_add_u32 s{S_T+2}, s{S_T+1}, {e*8*1280}")
            sw1_tok = k(f"buffer_load_dwordx4 v{PV}, {s(SRD_T2,4)}, s{S_T+2} offen lds")
        k(f"""s_sub_u32 s{S_T}, s{S_PW}, 400
        s_cmp_lt_u32 s{S_PW}, 400
        s_cselect_b32 s{U2}, s{S_PW}, s{S_T}
        s_mul_i32 s{S_T+2}, s{U2}, 6554
        s_lshr_b32 s{S_T+2}, s{S_T+2}, 16        ; c' = unit/10
        s_mul_i32 s{S_T}, s{S_T+2}, 10
        s_sub_u32 s{S_T}, s{U2}, s{S_T}          ; u
        s_mul_i32 s{S_T+1}, s{S_T+2}, {16*1280}
        s_lshl_b32 s{S_T+3}, s{S_T}, 7
        s_add_u32 s{SRC2}, s{S_T+1}, s{S_T+3}
        s_mul_i32 s{S_T+3}, s{S_T+2}, 40
        s_lshl_b32 s{S_T+4}, s{S_T}, 2
        s_add_u32 s{S_T+3}, s{S_T+3}, s{S_T+4}
        s_lshl_b32 s{S_T+3}, s{S_T+3}, 10
        s_add_u32 s{D2}, s{S_T+3}, {WS_B2S[0]}""")
        self.make_tag()
        self.rowstat_finish(rs_tok, S_T+7)
        dma_stage(2)
        self.srd(SRD_T1, 5, 819200)
        self.srd(SRD_OUT, 6, 819200)
        k(f"""v_and_b32 v11, 15, v0
        v_lshrrev_b32 v12, 4, v0
        v_lshrrev_b32 v13, 1, v11
        v_xor_b32 v13, v13, v12
        v_lshlrev_b32 v13, 4, v13
        v_lshl_add_u32 v{RD0}, v11, 7, v13
        v_xor_b32 v{RD1}, 64, v{RD0}""")
        k.wait_vm(vec_tok)
        T = 40
        for b in range(5):
            k(f"""v_lshlrev_b32 v{ZR+b}, 16, v{ZR+b}
            v_lshlrev_b32 v{KR+b}, 16, v{KR+b}
            v_lshlrev_b32 v{KI+b}, 16, v{KI+b}
            v_mul_f32 v{ZR+b}, {fbits(LOG2E)}, v{ZR+b}""")
        for b in range(5): k(f"v_exp_f32 v{ZR+b}, v{ZR+b}")
        for b in range(5):
            k(f"""v_cvt_pk_bf16_f32 v{ZR+b}, v{ZR+b}, v{ZR+b}
            v_and_b32 v{ZR+b}, 0xffff0000, v{ZR+b}
            v_mul_f32 v{ZI+b}, v{ZR+b}, v{KI+b}
            v_mul_f32 v{ZR+b}, v{ZR+b}, v{KR+b}
            v_mul_f32 v{ZI+b}, 0.15915494, v{ZI+b}
            v_mul_f32 v{ZR+b}, {fbits(LOG2E)}, v{ZR+b}""")
        k(f"""s_lshl_b32 s{S_T}, s{S_W}, 2
        v_add_u32 v13, s{S_T}, v12
        v_sub_u32 v13, 15, v13
        v_lshlrev_b32 v13, 3, v13
        v_cvt_f32_u32 v13, v13""")
        self.emit(self.cpow5(LR, LI, "1.0", ZR, ZI, T))
        self.emit(self.cpow5(WR, WI, "v13", ZR, ZI, T))
        self.emit(self.csq5(L2R, L2I, LR, LI))
        self.emit(self.csq5(L4R, L4I, L2R, L2I))
        for b in range(5):
            k(f"""v_mul_f32 v{T+b}, v{KR+b}, v{KR+b}
            v_fma_f32 v{T+b}, v{KI+b}, v{KI+b}, v{T+b}""")
        for b in range(5): k(f"v_rcp_f32 v{T+b}, v{T+b}")
        for b in range(5):
            k(f"""v_add_f32 v{T+5}, -1.0, v{LR+b}
            v_add_f32 v{T+b}, v{T+b}, v{T+b}
            v_mul_f32 v{T+6}, v{T+5}, v{KR+b}
            v_mul_f32 v{T+7}, v{LI+b}, v{KR+b}
            v_fma_f32 v{T+6}, v{LI+b}, v{KI+b}, v{T+6}
            v_fma_f32 v{T+7}, -v{T+5}, v{KI+b}, v{T+7}
            v_mul_f32 v{KR+b}, v{T+6}, v{T+b}
            v_mul_f32 v{KI+b}, v{T+7}, v{T+b}""")
        def set_rd(t):
            base = STG0 + (t % 4)*STGS
            return [f"v_add_u32 v{RW0}, {base}, v{RD0}", f"v_add_u32 v{RX0}, s{S_MX}, v{RW0}",
                    f"v_add_u32 v{RW1}, {base}, v{RD1}", f"v_add_u32 v{RX1}, s{S_MX}, v{RW1}"]
        def reads(n):
            st = FR[n % 2]; ks = n % 2
            L = [f"ds_read_b128 {v(st+4*a_,4)}, v{RX0 if ks==0 else RX1} offset:{a_*2048}" for a_ in range(2)]
            L += [f"ds_read_b128 {v(st+8+4*tt,4)}, v{RW0 if ks==0 else RW1} offset:{16384+tt*2048}" for tt in range(10)]
            return L
        self.emit(set_rd(0))
        k.wait_vm(stage_tok[0])
        k("s_barrier")
        self.stamp(1)
        rtok = {}
        def mkreads(n):
            L = []
            for i, r in enumerate(reads(n)):
                def f(i=i, r=r): rtok[n, i] = k(r)
                L.append(f)
            return L
        self.emit(mkreads(0))
        tk = {}
        GW, GT = 96, 116
        dq = []
        for n in range(20):
            st = FR[n % 2]
            k.c(f"---- ssm k-step {n}")
            if n % 2 == 0 and n//2 + 3 < 10: dq += dma_list(n//2 + 3)
            extra = []
            if n == 1:
                def f():
                    k.wait_vm(sw1_tok)
                    k(f"""v_lshrrev_b32 v11, 5, v0
                    v_bfe_u32 v12, v0, 4, 1
                    v_lshlrev_b32 v11, 4, v11
                    v_lshl_add_u32 v11, v12, 2, v11
                    v_bfe_u32 v12, v0, 2, 2
                    v_add_u32 v11, v11, v12
                    v_lshlrev_b32 v11, 7, v11
                    v_and_b32 v12, 3, v0
                    v_lshl_add_u32 v11, v12, 3, v11
                    v_add_u32 v11, s{S_MX}, v11""")
                    for cc in range(4):
                        for e in range(2):
                            tk['r1'] = k(f"ds_read_b64_tr_b16 {a(200+4*cc+2*e,2)}, v11 offset:{e*1024+cc*32}")
                extra.append(f)
            if n == 2:
                for cc in range(4):
                    def f(cc=cc):
                        k.wait_lg(tk['r1'])
                        k(f"s_add_u32 s{S_T}, s{D1}, {cc*48*1024}")
                        tk['s1'] = k(f"buffer_store_dwordx4 {a(200+4*cc,4)}, v{self.LV}, {WS4}, s{S_T} offen sc1")
                    extra.append(f)
                for e in range(4):
                    def f(e=e):
                        k(f"s_add_u32 m0, s{S_MX}, {e*1024}")
                        k(f"s_add_u32 s{S_T}, s{SRC2}, {(e%2)*8*1280}")
                        tk['d2'] = k(f"buffer_load_dwordx4 v{PV}, {s(SRD_T1 if e < 2 else SRD_OUT,4)}, s{S_T} offen lds")
                    extra.append(f)
            if n == 5:
                def f():
                    k.wait_vm(tk['d2'])
                    k(f"""s_lshl_b32 s{S_T}, s{U1}, 6
                    s_add_u32 s{S_T}, s{S_T}, {WS_FB + 512*FLS}""")
                    self.set_flag(S_T, 13)
                    k(f"""v_and_b32 v11, 15, v0
                    v_lshlrev_b32 v11, 7, v11
                    v_lshrrev_b32 v12, 5, v0
                    v_lshl_add_u32 v11, v12, 11, v11
                    v_bfe_u32 v12, v0, 4, 1
                    v_lshl_add_u32 v11, v12, 4, v11
                    v_add_u32 v11, s{S_MX}, v11""")
                    for ss in range(4):
                        tk['r2'] = k(f"ds_read_b128 {a(200+4*ss,4)}, v11 offset:{32*ss}")
                extra.append(f)
            if n == 6:
                for ss in range(4):
                    def f(ss=ss):
                        k.wait_lg(tk['r2'])
                        tk['s2'] = k(f"buffer_store_dwordx4 {a(200+4*ss,4)}, v{self.LV}, {WS4}, s{D2} offen offset:{1024*ss} sc1")
                    extra.append(f)
            if n == 9:
                def f():
                    k.wait_vm(tk['s2'])
                    k(f"""s_lshl_b32 s{S_T}, s{U2}, 6
                    s_add_u32 s{S_T}, s{S_T}, {WS_FB}""")
                    self.set_flag(S_T, 13)
                extra.append(f)
            if n == 10:
                extra += self.b2_setup(0, PV)
            if n == 12:
                def f(): tk['pb'] = k(f"buffer_load_dword v15, v{PV}, {WS4}, s{S_T+12} offen sc1")
                extra.append(f)
            if n == 14:
                def f():
                    k(f"""s_mul_i32 s{S_T}, s{S_J}, 2560
                    s_add_u32 s{S_T}, s{S_T}, {WS_WSG}
                    s_lshl_b32 s{S_T+1}, s{S_I}, 11
                    s_lshl_b32 s{S_T+2}, s{S_W}, 9
                    s_add_u32 s{S_T+1}, s{S_T+1}, s{S_T+2}
                    s_add_u32 s{S_T+1}, s{S_T+1}, {WS_STG}""")
                    self.gran_dma(S_T, tk)
                extra.append(f)
                def f():
                    k.wait_vm(tk['pb'])
                    def rl():
                        k(f"buffer_load_dword v15, v{PV}, {WS4}, s{S_T+12} offen sc1\ns_waitcnt vmcnt(0)")
                    self.verify(lambda: k(f"v_cmp_ne_u32 vcc, s{S_TAG}, v15"), rl, "pb")
                extra.insert(0, f)
            if n == 15:
                extra += [f"v_lshl_add_u32 v11, v0, 4, 0\ns_lshl_b32 s{S_T}, s{S_W}, 10", f"v_add_u32 v11, s{S_T}, v11\nv_mov_b32 v12, 0",
                          f"v_add_u32 v11, {SSM_LB}, v11\nv_mov_b32 v13, 0", "v_mov_b32 v14, 0\nv_mov_b32 v15, 0", "ds_write_b128 v11, v[12:15]"]
            mem = []
            nd = 5 if n % 2 == 0 else 4
            while dq and nd > 0:
                mem.append(dq.pop(0)); nd -= 1
            if n >= 14: mem += [[None, f] for f in self.b2_take(4 if n > 14 else 0)]
            rd = mkreads(n+1) if n + 1 < 20 else []
            tail = []
            slots = [[] for _ in range(20)]
            if n % 2 == 0:
                rslots = [0, 1, 2, 4, 5, 6, 8, 9, 10, 12, 13, 14]; mslots = [3, 7, 11, 15, 18]
            else:
                rslots = list(range(4, 16)); mslots = [0, 2, 16, 18]
                if n + 1 < 20:
                    T_ = (n + 1)//2
                    def f(T_=T_):
                        k.wait_both(stage_tok[T_], k.lg_issued)
                        k("s_barrier")
                    sr = set_rd(T_)
                    slots[1] += sr[:2]; slots[3] += [f]; slots[17] += sr[2:]
            if n == 19:
                def f():
                    k.wait_vm(tk['gr'])
                    k(f"""v_and_b32 v11, 15, v0
                    v_lshl_add_u32 v12, v11, 4, s{S_MX}
                    v_lshrrev_b32 v14, 4, v0
                    v_lshlrev_b32 v13, 7, v14
                    v_add_u32 v13, s{S_MX}, v13""")
                slots[0] += [f]
                rd = self.gran_reads(GW, GT); tail = [rd.pop()]
                rslots = [1, 2, 3, 4, 5, 6, 7, 8, 9, 10, 11, 12, 13, 14, 15, 16, 17]; mslots = [0, 5, 10, 15]
            for sl, r in zip(rslots, rd): slots[sl].append(r)
            for sl, (m, ld) in zip(mslots, mem):
                if m:
                    if sl > 0: slots[sl-1].append(m)
                    else: k(m)
                slots[sl].insert(0, ld)
            assert len(mem) <= len(mslots) and len(rd) <= len(rslots)
            free = [i for i in range(20) if not slots[i]]
            for i in free:
                if extra: slots[i].append(extra.pop(0))
            slots[19] += extra + tail
            i = 0
            for tt in range(10):
                for a_ in range(2):
                    k.wait_lg(max(rtok[n, a_], rtok[n, 2+tt]))
                    c_ = "0" if n == 0 else v(acc(a_, tt), 4)
                    k(f"v_mfma_f32_16x16x32_bf16 {v(acc(a_,tt),4)}, {v(st+4*a_,4)}, {v(st+8+4*tt,4)}, {c_}")
                    self.emit(slots[i]); i += 1
        assert not dq
        k.c('loop end')
        self.stamp(2)
        if self.early_stop("loop"): return
        self.ssm_epilogue(ACC, GW, GT, LR, LI, L2R, L2I, L4R, L4I, WR, WI, ZR, ZI, KR, KI)

    def gran_dma(self, so, tk):
        k = self.k
        k(f"s_mov_b32 m0, s{S_MX}")
        for q in range(3):
            k(f"buffer_load_dwordx4 v{self.LV}, {WS4}, s{so} offen offset:{1024*q} sc1 lds")
        k(f"s_add_u32 m0, s{S_MX}, 3072")
        tk['gr'] = k(f"buffer_load_dwordx4 v{self.LV}, {WS4}, s{so+1} offen sc1 lds")
    def gran_reads(self, GW, GT):
        L = [f"ds_read_b64 {v(GW+2*tt,2)}, v12 offset:{256*tt}" for tt in range(10)]
        L += [f"ds_read_b128 {v(GT+4*r,4)}, v13 offset:{3072+16*r}" for r in range(8)]
        return L

    def ssm_epilogue(self, ACC, GW, GT, LR, LI, L2R, L2I, L4R, L4I, WR, WI, ZR, ZI, KR, KI):
        k = self.k
        acc = lambda a_, tt: ACC + (a_*10 + tt)*4
        tok = lambda r, tt: acc(r//4, tt) + r % 4
        LB = SSM_LB
        L_AGG, L_CAR, L_WAG, L_ES = 0, 640, 1280, 4096
        AT, BT = 148, 156
        TM = 164
        SEG = 15
        def bc(r): return v(r & ~1, 2), r & 1
        k.c("================ SSM epilogue")
        k("s_waitcnt lgkmcnt(0)")
        def check():
            k(f"v_xor_b32 v{TM}, s{S_TAG}, v{GW+1}")
            for tt in range(1, 10): k(f"v_bitop3_b32 v{TM}, s{S_TAG}, v{GW+2*tt+1}, v{TM} bitop3:0xbe")
            for r in range(8): k(f"v_bitop3_b32 v{TM}, s{S_TAG}, v{GT+4*r+1}, v{TM} bitop3:0xbe")
            k(f"v_cmp_ne_u32 vcc, 0, v{TM}")
        def reload():
            d = {}
            k(f"""s_mul_i32 s{S_T}, s{S_J}, 2560
            s_add_u32 s{S_T}, s{S_T}, {WS_WSG}
            s_lshl_b32 s{S_T+1}, s{S_I}, 11
            s_lshl_b32 s{S_T+2}, s{S_W}, 9
            s_add_u32 s{S_T+1}, s{S_T+1}, s{S_T+2}
            s_add_u32 s{S_T+1}, s{S_T+1}, {WS_STG}""")
            self.gran_dma(S_T, d)
            k("s_waitcnt vmcnt(0)")
            self.emit(self.gran_reads(GW, GT))
            k("s_waitcnt lgkmcnt(0)")
        self.verify(check, reload, "pg")
        k(f"""s_mov_b32 s{S_T}, {fbits(1.0/640)}
        s_lshl_b32 s{S_T+1}, s{S_W}, 8
        v_lshlrev_b32 v13, 6, v14
        v_add_u32 v13, s{S_T+1}, v13
        v_add_u32 v13, {LDS_STAT}, v13""")
        for r in range(8): k(f"v_mul_f32 v{GT+4*r}, s{S_T}, v{GT+4*r}")
        for r in range(8): k(f"v_mul_f32 v{TM+r}, v{GT+4*r}, v{GT+4*r}")
        for r in range(8): k(f"v_fma_f32 v{TM+r}, v{GT+4*r+2}, s{S_T}, -v{TM+r}")
        for r in range(8): k(f"v_max_f32 v{TM+r}, 0, v{TM+r}")
        for r in range(8): k(f"v_add_f32 v{TM+r}, {fbits(EPS)}, v{TM+r}")
        for r in range(8): k(f"v_rsq_f32 v{AT+r}, v{TM+r}")
        for r in range(8): k(f"v_mul_f32_e64 v{BT+r}, v{GT+4*r}, -v{AT+r}")
        for r in range(8): k(f"ds_write2_b32 v13, v{GT+4*r}, v{AT+r} offset0:{2*r} offset1:{2*r+1}")
        for tt in range(10):
            for a_ in range(2):
                for h in range(2):
                    t_ = TM + 2*(a_*2 + h) + 8*(tt % 2)
                    k(f"v_pk_mul_f32 {v(t_,2)}, {v(BT+4*a_+2*h,2)}, {v(GW+2*tt,2)} op_sel_hi:[1,0]")
            for a_ in range(2):
                for h in range(2):
                    d = acc(a_, tt) + 2*h; t_ = TM + 2*(a_*2 + h) + 8*(tt % 2)
                    k(f"v_pk_fma_f32 {v(d,2)}, {v(AT+4*a_+2*h,2)}, {v(d,2)}, {v(t_,2)}")
        V1 = 96
        EE = 136
        def pkc(dr, di, ar, ai, cr_, ci_, lr, li):
            (pr, sr), (pi, si) = bc(lr), bc(li)
            return [f"v_pk_fma_f32 {v(dr,2)}, {v(ar,2)}, {pr}, {v(cr_,2)} op_sel:[0,{sr},0] op_sel_hi:[1,{sr},1]",
                    f"v_pk_fma_f32 {v(di,2)}, {v(ai,2)}, {pr}, {v(ci_,2)} op_sel:[0,{sr},0] op_sel_hi:[1,{sr},1]",
                    f"v_pk_fma_f32 {v(dr,2)}, {v(ai,2)}, {pi}, {v(dr,2)} op_sel:[0,{si},0] op_sel_hi:[1,{si},1] neg_lo:[1,0,0] neg_hi:[1,0,0]",
                    f"v_pk_fma_f32 {v(di,2)}, {v(ar,2)}, {pi}, {v(di,2)} op_sel:[0,{si},0] op_sel_hi:[1,{si},1]"]
        LL = []
        for b in range(5):
            for h in range(2):
                LL.append(pkc(V1+8*b+2*h, V1+8*b+4+2*h, acc(0,b)+2*h, acc(0,5+b)+2*h, acc(1,b)+2*h, acc(1,5+b)+2*h, L4R+b, L4I+b))
        for i in range(4):
            for x in LL: k(x[i])
        LL = [pkc(V1+8*b+2, V1+8*b+6, V1+8*b, V1+8*b+4, V1+8*b+2, V1+8*b+6, L2R+b, L2I+b) for b in range(5)]
        for i in range(4):
            for x in LL: k(x[i])
        for b in range(5):
            k(f"v_fma_f32 v{EE+2*b}, v{LR+b}, v{V1+8*b+2}, v{V1+8*b+3}")
            k(f"v_fma_f32 v{EE+2*b+1}, v{LR+b}, v{V1+8*b+6}, v{V1+8*b+7}")
        for b in range(5):
            k(f"v_fma_f32 v{EE+2*b}, -v{LI+b}, v{V1+8*b+6}, v{EE+2*b}")
            k(f"v_fma_f32 v{EE+2*b+1}, v{LI+b}, v{V1+8*b+2}, v{EE+2*b+1}")
        k(f"""v_lshl_add_u32 v12, v11, 3, 0
        v_add_u32 v12, {LB}, v12
        s_lshl_b32 s{S_T}, s{S_W}, 2
        v_add_u32 v{SEG}, s{S_T}, v14""")
        for b in range(5):
            k(f"v_mul_f32 v{TM+b}, v{WR+b}, v{EE+2*b}\nv_mul_f32 v{TM+5+b}, v{WR+b}, v{EE+2*b+1}")
        for b in range(5):
            k(f"""v_fma_f32 v{TM+b}, -v{WI+b}, v{EE+2*b+1}, v{TM+b}
            v_fma_f32 v{TM+5+b}, v{WI+b}, v{EE+2*b}, v{TM+5+b}
            ds_add_f32 v12, v{TM+b} offset:{L_AGG+128*b}
            ds_add_f32 v12, v{TM+5+b} offset:{L_AGG+128*b+4}""")
        k(f"""s_mul_i32 s{S_T}, s{S_W}, 20
        v_add_u32 v13, s{S_T}, v0
        v_lshlrev_b32 v{TM+14}, 3, v13
        v_add_u32 v{TM+14}, {LB}, v{TM+14}
        v_mov_b32 v{TM+13}, s{S_TAG2}
        v_mov_b32 v{TM+11}, s{S_TAG}
        v_lshlrev_b32 v13, 4, v13
        s_lshl_b32 s{S_T}, s{S_J}, 4
        s_add_u32 s{S_T+1}, s{S_T}, s{S_I}
        s_mul_i32 s{S_T+1}, s{S_T+1}, 1280
        s_add_u32 s{S_T+1}, s{S_T+1}, {WS_AGG}
        s_waitcnt lgkmcnt(0)
        s_barrier
        ds_read_b32 v{TM+10}, v{TM+14} offset:{L_AGG}
        ds_read_b32 v{TM+12}, v{TM+14} offset:{L_AGG+4}
        s_mov_b64 exec, 0xfffff
        s_waitcnt lgkmcnt(0)
        buffer_store_dwordx4 {v(TM+10,4)}, v13, {WS4}, s{S_T+1} offen sc1
        s_mov_b64 exec, -1""")
        self.stamp(3)
        ER, EI = 96, 101; GR, GI = 106, 111; UR, UI = 116, 121; L8R, L8I = 126, 131
        YR, YI = 148, 153; L32R, L32I = 158, 163+1
        CR, CI = 170, 175; DR, DI = 180, 185
        T5 = 212
        work = []
        for b in range(5):
            work += [f"v_mov_b32 v{ER+b}, v{EE+2*b}", f"v_mov_b32 v{EI+b}, v{EE+2*b+1}"]
        work += [f"v_mul_u32_u24 v13, 768, v{SEG}", f"v_mul_u32_u24 v{TM}, 48, v11", f"v_add3_u32 v13, v13, v{TM}, 0",
                 f"v_add_u32 v13, {LB+L_ES}, v13"]
        work += [f"ds_write_b64 v13, {v(EE+2*b,2)} offset:{8*b}" for b in range(5)]
        work += self.csq5(L8R, L8I, L4R, L4I)
        work += [f"v_sub_u32 v10, 3, v14", f"v_lshlrev_b32 v10, 3, v10", f"v_cvt_f32_u32 v10, v10"]
        work += self.cpow5(GR, GI, "v10", ZR, ZI, T5)
        work += self.cmul5(YR, YI, GR, GI, ER, EI)
        work += [f"s_mul_i32 s{S_T}, s{S_W}, 640", f"v_add_u32 v10, s{S_T}, v12"]
        for b in range(5):
            work += [f"ds_add_f32 v10, v{YR+b} offset:{L_WAG+128*b}", f"ds_add_f32 v10, v{YI+b} offset:{L_WAG+128*b+4}"]
        work += self.csq5(GR, GI, L8R, L8I)
        work += self.csq5(L32R, L32I, GR, GI)
        work += [f"v_lshlrev_b32 v9, 3, v14", f"v_cvt_f32_u32 v9, v9"]
        work += self.cpow5(UR, UI, "v9", ZR, ZI, T5)
        for b in range(5):
            (kr, sr), (ki, si) = bc(KR+b), bc(KI+b)
            for h in range(4):
                ur = tok(2*h, b); ui = tok(2*h, 5+b); t_ = 202 + 4*(h % 2)
                work += [f"v_pk_mul_f32 {v(t_,2)}, {v(ur,2)}, {kr} op_sel:[0,{sr}] op_sel_hi:[1,{sr}]",
                         f"v_pk_mul_f32 {v(t_+2,2)}, {v(ur,2)}, {ki} op_sel:[0,{si}] op_sel_hi:[1,{si}]",
                         f"v_pk_fma_f32 {v(ur,2)}, {v(ui,2)}, {ki}, {v(t_,2)} op_sel:[0,{si},0] op_sel_hi:[1,{si},1] neg_lo:[1,0,0] neg_hi:[1,0,0]",
                         f"v_pk_fma_f32 {v(ui,2)}, {v(ui,2)}, {kr}, {v(t_+2,2)} op_sel:[0,{sr},0] op_sel_hi:[1,{sr},1]"]
        q = self.b2_take(len(self.b2q))
        step = max(1, len(work)//(len(q) + 1))
        for i, w_ in enumerate(work):
            k(w_)
            if i % step == step - 1 and q: q.pop(0)()
        assert not q
        k("s_waitcnt lgkmcnt(0)\ns_barrier")
        GB = 222
        GB = 136
        k(f"""v_mul_u32_u24 v9, 1280, v{SEG}
        v_lshl_add_u32 v9, v11, 4, v9
        s_mul_i32 s{S_T+4}, s{S_J}, {16*1280}
        s_add_u32 s{S_T+4}, s{S_T+4}, {WS_AGG}
        v_cmp_gt_u32 {s(S_T+2,2)}, s{S_I}, v{SEG}""")
        EB = 202
        for b in range(5): k(f"v_mov_b32 v{CR+b}, 0\nv_mov_b32 v{CI+b}, 0\nv_mov_b32 v{DR+b}, 0\nv_mov_b32 v{DI+b}, 0")
        def horner(cr, ci, lr, li, eb):
            for b in range(5):
                k(f"v_fmac_f32 v{eb+2*b}, v{lr+b}, v{cr+b}\nv_fmac_f32 v{eb+2*b+1}, v{lr+b}, v{ci+b}")
            for b in range(5):
                k(f"v_fmac_f32 v{eb+2*b+1}, v{li+b}, v{cr+b}")
            for b in range(5):
                k(f"v_fma_f32 v{cr+b}, -v{li+b}, v{ci+b}, v{eb+2*b}\nv_mov_b32 v{ci+b}, v{eb+2*b+1}")
        k(f"v_subrev_u32 v13, {768*3}, v13\nv_subrev_u32 v10, {640*3}, v10")
        masks = {3: ("0", "0xffff0000"), 2: ("0", "-1"), 1: ("0xffff0000", "-1")}
        gtok = None
        for d in (3, 2, 1):
            lo, hi = masks[d]
            k(f"s_mov_b32 exec_lo, {lo}\ns_mov_b32 exec_hi, {hi}")
            k(f"""ds_read_b128 {v(EB,4)}, v13 offset:{768*(3-d)}
            ds_read_b128 {v(EB+4,4)}, v13 offset:{768*(3-d)+16}""")
            t1 = k(f"ds_read_b64 {v(EB+8,2)}, v13 offset:{768*(3-d)+32}")
            k(f"s_cmp_ge_u32 s{S_W}, {d}\ns_cselect_b64 exec, -1, 0")
            for b in range(5):
                t2 = k(f"ds_read_b64 {v(EB+10+2*b,2)}, v10 offset:{L_WAG+640*(3-d)+128*b}")
            if d == 2:
                k("s_mov_b64 exec, -1")
                for b in range(5):
                    gtok = k(f"buffer_load_dwordx4 {v(GB+4*b,4) if b < 3 else v(222+4*(b-3),4)}, v9, {WS4}, s{S_T+4} offen offset:{256*b} sc1")
            k(f"s_mov_b32 exec_lo, {lo}\ns_mov_b32 exec_hi, {hi}")
            k.wait_lg(t1)
            horner(CR, CI, L8R, L8I, EB)
            k(f"s_cmp_ge_u32 s{S_W}, {d}\ns_cselect_b64 exec, -1, 0")
            k.wait_lg(t2)
            horner(DR, DI, L32R, L32I, EB+10)
        k("s_mov_b64 exec, -1")
        greg = lambda b: GB+4*b if b < 3 else 222+4*(b-3)
        self.emit(self.cmul5(CR, CI, UR, UI, DR, DI, CR, CI))
        VR, VI = 96, 101; QR, QI = 106, 111
        k(f"v_lshlrev_b32 v10, 3, v{SEG}\nv_cvt_f32_u32 v10, v10")
        self.emit(self.cpow5(UR, UI, "v10", ZR, ZI, T5))
        self.emit(self.cmul5(VR, VI, KR, KI, UR, UI))
        self.emit(self.cmul5(DR, DI, KR, KI, CR, CI))
        k(f"""s_sub_u32 s{S_T}, s{S_I}, 1
        v_sub_u32 v10, s{S_T}, v{SEG}
        v_max_i32 v10, 0, v10
        v_lshlrev_b32 v10, 7, v10
        v_cvt_f32_u32 v10, v10""")
        self.emit(self.cpow5(QR, QI, "v10", ZR, ZI, T5))
        self.stamp(4)
        k.wait_vm(gtok)
        def check():
            k(f"v_xor_b32 v10, s{S_TAG}, v{greg(0)+1}")
            for b in range(5):
                if b: k(f"v_bitop3_b32 v10, s{S_TAG}, v{greg(b)+1}, v10 bitop3:0xbe")
                k(f"v_bitop3_b32 v10, s{S_TAG2}, v{greg(b)+3}, v10 bitop3:0xbe")
            k(f"v_cmp_ne_u32 vcc, 0, v10\ns_and_b64 vcc, vcc, {s(S_T+2,2)}")
        def reload():
            for b in range(5):
                k(f"buffer_load_dwordx4 {v(greg(b),4)}, v9, {WS4}, s{S_T+4} offen offset:{256*b} sc1")
            k("s_waitcnt vmcnt(0)")
        self.verify(check, reload, "pc")
        self.stamp(5)
        k(f"s_mov_b64 exec, {s(S_T+2,2)}")
        for b in range(5):
            er, ei = greg(b), greg(b)+2
            k(f"v_mul_f32 v{er+1}, v{QR+b}, v{er}\nv_mul_f32 v{ei+1}, v{QR+b}, v{ei}")
        for b in range(5):
            er, ei = greg(b), greg(b)+2
            k(f"""v_fma_f32 v{er+1}, -v{QI+b}, v{ei}, v{er+1}
            v_fma_f32 v{ei+1}, v{QI+b}, v{er}, v{ei+1}
            ds_add_f32 v12, v{er+1} offset:{L_CAR+128*b}
            ds_add_f32 v12, v{ei+1} offset:{L_CAR+128*b+4}""")
        k(f"""s_mov_b64 exec, -1
        s_mul_i32 s{S_T}, s{S_W}, {RED_W}
        s_add_u32 s{S_T}, s{S_T}, {LDS_RED}
        v_mul_u32_u24 v13, 80, v11
        v_lshl_add_u32 v13, v14, 4, v13
        v_add_u32 v13, s{S_T}, v13
        v_lshrrev_b32 v10, 2, v11
        v_lshl_add_u32 v10, v14, 3, v10
        v_mul_u32_u24 v10, 80, v10
        v_and_b32 v9, 3, v11
        v_lshl_add_u32 v10, v9, 3, v10
        v_add_u32 v10, s{S_T}, v10
        s_lshl_b32 s{S_T}, s{S_I}, 3
        s_lshl_b32 s{S_T+1}, s{S_W}, 1
        s_add_u32 s{S_T}, s{S_T}, s{S_T+1}
        s_mul_i32 s{S_T}, s{S_T}, 40
        s_mul_i32 s{S_T+1}, s{S_J}, 5
        s_add_u32 s{S_T}, s{S_T}, s{S_T+1}
        s_lshl_b32 s{S_T}, s{S_T}, 10
        s_add_u32 s{S_T}, s{S_T}, {WS_A2[0]}
        s_add_u32 s{S_T+1}, s{S_T}, 4096
        s_add_u32 s{S_T+2}, s{S_T}, {40*1024}
        s_add_u32 s{S_T+3}, s{S_T}, {40*1024+4096}
        s_waitcnt lgkmcnt(0)
        s_barrier""")
        for b in range(5):
            k(f"ds_read2_b32 {v(EB+2*b,2)}, v12 offset0:{(L_CAR+128*b)//4} offset1:{(L_CAR+128*b)//4+1}" if False else
              f"ds_read_b64 {v(EB+2*b,2)}, v12 offset:{L_CAR+128*b}")
        k("s_waitcnt lgkmcnt(0)")
        for b in range(5):
            k(f"v_fmac_f32 v{DR+b}, v{VR+b}, v{EB+2*b}\nv_fmac_f32 v{DI+b}, v{VR+b}, v{EB+2*b+1}")
        for b in range(5):
            k(f"v_fma_f32 v{DR+b}, -v{VI+b}, v{EB+2*b+1}, v{DR+b}\nv_fmac_f32 v{DI+b}, v{VI+b}, v{EB+2*b}")
        for r in range(8):
            pr = lambda b: DR+b if r == 0 else tok(r-1, b)
            pi = lambda b: DI+b if r == 0 else tok(r-1, 5+b)
            for b in range(5):
                k(f"v_fmac_f32 v{tok(r,b)}, v{LR+b}, v{pr(b)}\nv_fmac_f32 v{tok(r,5+b)}, v{LR+b}, v{pi(b)}")
            for b in range(5):
                k(f"v_fma_f32 v{tok(r,b)}, -v{LI+b}, v{pi(b)}, v{tok(r,b)}\nv_fmac_f32 v{tok(r,5+b)}, v{LI+b}, v{pr(b)}")
        PK = 96; FRG = 136
        last = None
        for b in range(5):
            for comp in range(2):
                d = PK + 4*(2*b + comp); ng = "-" if comp else ""
                for h in range(4):
                    k(f"v_cvt_pk_bf16_f32 v{d+h}, {ng}v{tok(2*h,5*comp+b)}, {ng}v{tok(2*h+1,5*comp+b)}")
                wt = k(f"ds_write_b128 v13, {v(d,4)} offset:{(32*b+16*comp)*80}")
            if b >= 1:
                pass
        k("s_waitcnt lgkmcnt(0)")
        toks = []
        for b in range(5):
            for tt2 in range(2):
                d = FRG + 4*(2*b + tt2)
                k(f"ds_read_b64_tr_b16 {v(d,2)}, v10 offset:{(32*b)*80+32*tt2}")
                toks.append(k(f"ds_read_b64_tr_b16 {v(d+2,2)}, v10 offset:{(32*b+4)*80+32*tt2}"))
        for b in range(5):
            for tt2 in range(2):
                d = FRG + 4*(2*b + tt2)
                k.wait_lg(toks[2*b+tt2])
                so = S_T + 2*tt2 + (1 if b == 4 else 0)
                last = k(f"buffer_store_dwordx4 {v(d,4)}, v{self.LV}, {WS4}, s{so} offen offset:{1024*(b%4)} sc1")
        self.stamp(6)
        self.p2_addr(0)
        k(f"s_add_u32 s{S_T}, s{S_FLAG}, {WS_FA}")
        k.wait_vm(last)
        self.set_flag(S_T, 13)
        self.stamp(7)
        self.p2_poll_issue()
        self.phase2(0, 0)

    def mlp(self):
        k = self.k
        ACC = 16; WSA = 112; ONE = 136; FR = [140, 168]
        B1R = 196; GS = 198
        XE, XO, W0 = 3, 2, 4
        RA, AE, AO = 7, 8, 9
        RXB, AEB, AOB = 202, 206, 210
        self.LV = 252; PV = 253
        STGS = 40960
        k.label("L_mlp")
        k.c("================ MLP side, phase 1")
        k(f"""s_min_u32 s{S_T+2}, s{S_W}, 2
        s_lshl_b32 s{S_T+2}, s{S_T+2}, 2
        s_lshl_b32 s{S_T}, s{S_I}, 7
        s_lshl_b32 s{S_T+1}, s{S_J}, 4
        s_add_u32 s{S_T}, s{S_T}, s{S_T+1}
        s_add_u32 s{S_T}, s{S_T}, s{S_T+2}
        s_add_u32 s{S_T}, s{S_T}, 4
        s_lshl_b32 s{S_T+7}, s{S_T}, 4
        s_add_u32 s{S_T+7}, s{S_T+7}, {WS_STG}
        s_mov_b32 s{S_T+1}, 3""")
        rs_tok = self.rowstat_loads(SRD_X, S_T, S_T+1)
        self.srd(SRD_W, 10, 1966080)
        k(f"""v_xor_b32 v{XO}, 64, v{XE}
        s_add_u32 s{S_XO+1}, s{S_XO}, {8*1280}
        s_add_u32 s{S_XO+2}, s{S_XO}, {16*1280}
        s_add_u32 s{S_XO+3}, s{S_XO}, {24*1280}
        s_mul_i32 s{S_MW}, s{S_W}, 6144
        s_mul_i32 s{S_WO}, s{S_W}, {16*3072}
        s_mul_i32 s{S_T}, s{S_J}, 384
        s_add_u32 s{S_WO}, s{S_WO}, s{S_T}""")
        for n in range(3):
            k(f"""v_add_u32 v10, {64*n}, v0
            v_mul_u32_u24 v12, 2731, v10
            v_lshrrev_b32 v12, 16, v12
            v_mul_u32_u24 v13, 24, v12
            v_sub_u32 v13, v10, v13
            v_bfe_u32 v15, v12, 1, 1
            v_lshlrev_b32 v15, 2, v15
            v_xor_b32 v13, v13, v15
            v_mul_u32_u24 v12, 3072, v12
            v_lshl_add_u32 v{W0+n}, v13, 4, v12""")
        stage_tok = {}
        def dma_list(t):
            base = (t % 4)*STGS
            L = []
            def mk(m, ld):
                def f(): stage_tok[t] = k(ld)
                return [m, f]
            for n in range(6):
                L.append(mk(f"s_add_u32 m0, s{S_MW}, {base + n*1024}\ns_add_u32 s{S_WO+1}, s{S_WO}, {(t*64 + 8*(n//3))*3072}",
                            f"buffer_load_dwordx4 v{W0+n%3}, {s(SRD_W,4)}, s{S_WO+1} offen lds"))
            for e in range(4):
                L.append(mk(f"s_add_u32 m0, s{S_MX}, {base + 24576 + e*1024 - t*128}",
                            f"buffer_load_dwordx4 v{XE if e%2==0 else XO}, {s(SRD_X,4)}, s{S_XO+e} offen offset:{t*128} lds"))
            return L
        def dma_stage(t):
            for p in dma_list(t): self.emit(p)
        dma_stage(0)
        k(f"""v_min_u32 v10, 47, v0
        s_mul_i32 s{S_T}, s{S_J}, 192
        s_mul_i32 s{S_T+1}, s{S_W}, 48
        s_add_u32 s{S_T}, s{S_T}, s{S_T+1}
        v_add_lshl_u32 v10, v10, s{S_T}, 1
        global_load_ushort v{B1R}, v10, {ptr(11)}""")
        dma_stage(1)
        self.make_tag()
        self.rowstat_finish(rs_tok, S_T+7)
        dma_stage(2)
        k(f"""v_and_b32 v11, 31, v0
        v_lshrrev_b32 v12, 5, v0                 ; h
        v_bfe_u32 v13, v0, 1, 3
        v_xor_b32 v13, v13, v12
        v_lshlrev_b32 v13, 4, v13
        v_lshl_add_u32 v13, v11, 7, v13
        v_add_u32 v10, s{S_MX}, v13
        v_bfe_u32 v13, v0, 2, 2                  ; r
        v_lshl_add_u32 v14, v12, 3, v13
        v_mul_u32_u24 v14, 384, v14
        v_bfe_u32 v15, v0, 4, 1
        v_lshl_add_u32 v14, v15, 5, v14
        v_and_b32 v15, 3, v0
        v_lshl_add_u32 v14, v15, 3, v14
        v_bfe_u32 v13, v0, 3, 1                  ; rbit
        v_lshlrev_b32 v13, 6, v13
        v_add_u32 v15, v14, v13
        v_sub_u32 v14, v14, v13
        v_mov_b32 v{ONE}, 0x3f803f80
        v_mov_b32 v{ONE+1}, 0x3f803f80
        v_lshlrev_b32 v{self.LV}, 4, v0""")
        for ls in range(4):
            k(f"""s_add_u32 s{S_T}, s{S_W}, {ls}
            s_and_b32 s{S_T}, s{S_T}, 3
            s_lshl_b32 s{S_T+1}, s{S_T}, 5
            s_mul_i32 s{S_T}, s{S_T}, 6144
            v_xor_b32 v{RXB+ls}, s{S_T+1}, v10
            v_add_u32 v{AEB+ls}, s{S_T}, v15
            v_add_u32 v{AOB+ls}, s{S_T}, v14""")
        def reads(n):
            st = FR[n % 2]; ls = n % 4; base = ((n//4) % 4)*STGS
            L = [f"v_add_u32 v{AE}, {base}, v{AEB+ls}\nv_add_u32 v{RA}, {base+24576}, v{RXB+ls}",
                 f"v_add_u32 v{AO}, {base}, v{AOB+ls}\nds_read_b128 {v(st,4)}, v{RA}"]
            for T in range(6):
                for e in range(2):
                    L.append(f"ds_read_b64_tr_b16 {v(st+4+4*T+2*e,2)}, v{AE if T%2==0 else AO} offset:{4*e*384+T*64}")
            return L
        k.wait_vm(stage_tok[0])
        k("s_barrier")
        self.stamp(1)
        rtok = {}
        def mkreads(n):
            L = []
            for i, r in enumerate(reads(n)):
                def f(i=i, r=r): rtok[n, i] = k(r)
                L.append(f)
            return L
        self.emit(mkreads(0))
        L_WS = 110592
        dq = []; tk = {}
        for n in range(40):
            st = FR[n % 2]
            k.c(f"---- mlp k-step {n}")
            if n % 4 == 0 and n//4 + 3 < 10: dq += dma_list(n//4 + 3)
            extra = []
            if n == 20: extra += self.b2_setup(1, PV)
            if n == 25:
                def f(): tk['pb'] = k(f"buffer_load_dword v15, v{PV}, {WS4}, s{S_T+12} offen sc1")
                extra.append(f)
            if n == 28:
                def f():
                    k.wait_vm(tk['pb'])
                    def rl(): k(f"buffer_load_dword v15, v{PV}, {WS4}, s{S_T+12} offen sc1\ns_waitcnt vmcnt(0)")
                    self.verify(lambda: k(f"v_cmp_ne_u32 vcc, s{S_TAG}, v15"), rl, "pb")
                extra.append(f)
                extra += [f"v_min_u32 v11, 47, v0\ns_mul_i32 s{S_T}, s{S_W}, 48", f"v_add_lshl_u32 v11, v11, s{S_T}, 2",
                          f"v_add_u32 v11, {L_WS}, v11\nv_lshlrev_b32 v{B1R}, 16, v{B1R}", f"v_mov_b32 v12, 0\nds_write_b32 v11, v12",
                          f"ds_write_b32 v11, v{B1R} offset:768"]
            if n == 30:
                def f():
                    k(f"""v_and_b32 v{PV}, 31, v0
                    v_lshlrev_b32 v{PV}, 4, v{PV}
                    s_lshl_b32 s{S_T+12}, s{S_I}, 11
                    s_lshl_b32 s{S_T+13}, s{S_W}, 9
                    s_add_u32 s{S_T+12}, s{S_T+12}, s{S_T+13}
                    s_add_u32 s{S_T+12}, s{S_T+12}, {WS_STG}""")
                    tk['gs'] = k(f"buffer_load_dwordx4 {v(GS,4)}, v{PV}, {WS4}, s{S_T+12} offen sc1")
                extra.append(f)
            mem = []
            nd = [3, 3, 2, 2][n % 4]
            while dq and nd > 0:
                mem.append(dq.pop(0)); nd -= 1
            if n >= 29: mem += [[None, f] for f in self.b2_take(3 if n % 2 else 2)]
            rd = mkreads(n+1) if n + 1 < 40 else []
            small = []
            if n % 4 == 0:
                for hh in range(2):
                    for T in range(6):
                        c_ = "0" if (n == 0 and hh == 0) else v(WSA+4*T, 4)
                        small.append(f"v_mfma_f32_4x4x4_16b_bf16 {v(WSA+4*T,4)}, {v(ONE,2)}, {v(st+4+4*T+2*hh,2)}, {c_}")
            bar = n % 4 == 3 and n + 1 < 40
            cnt = [1, 4, 3, 3, 3, 0] if bar else [4, 3, 3, 2, 2, 0]
            ms = (0, 5) if bar else (1, 3, 5)
            for T in range(6):
                if T in ms and mem and mem[0][0]: k(mem[0][0])
                k.wait_lg(max(rtok[n, 1], rtok[n, 3+2*T]))
                c_ = "0" if n == 0 else v(ACC+16*T, 16)
                k(f"v_mfma_f32_32x32x16_bf16 {v(ACC+16*T,16)}, {v(st+4+4*T,4)}, {v(st,4)}, {c_}")
                if T in ms and mem: mem.pop(0)[1]()
                if bar and T == 1:
                    k.wait_both(stage_tok[(n+1)//4], k.lg_issued)
                    k("s_barrier")
                for _ in range(cnt[T]):
                    if rd: rd.pop(0)()
                if T >= 4 and extra: self.emit([extra.pop(0)])
            self.emit(extra)
            self.emit(small)
            assert not rd
            for m_ in mem: self.emit([x for x in m_ if x])
        assert not dq
        k.c('loop end')
        self.stamp(2)
        if self.early_stop("loop"): return
        k.c("================ MLP epilogue")
        TM = 140
        AT, BT = 204, 206
        k(f"""v_and_b32 v11, 31, v0
        v_lshlrev_b32 v12, 2, v11
        v_add_u32 v12, {L_WS}, v12""")
        for T in range(6):
            k(f"ds_add_f32 v12, v{WSA+4*T} offset:{128*T}")
        k.wait_vm(tk['gs'])
        def check():
            k(f"""v_xor_b32 v13, s{S_TAG}, v{GS+1}
            v_bitop3_b32 v13, s{S_TAG2}, v{GS+3}, v13 bitop3:0xbe
            v_cmp_ne_u32 vcc, 0, v13""")
        def rl(): k(f"buffer_load_dwordx4 {v(GS,4)}, v{PV}, {WS4}, s{S_T+12} offen sc1\ns_waitcnt vmcnt(0)")
        self.verify(check, rl, "ps")
        c1 = -2*LOG2E*math.sqrt(2/math.pi)
        k(f"""s_mov_b32 s{S_T}, {fbits(1.0/640)}
        v_mul_f32 v{GS}, s{S_T}, v{GS}
        v_mul_f32 v{TM}, v{GS}, v{GS}
        v_fma_f32 v{GS+2}, v{GS+2}, s{S_T}, -v{TM}
        v_max_f32 v{GS+2}, 0, v{GS+2}
        v_add_f32 v{TM}, {fbits(EPS)}, v{GS+2}
        v_rsq_f32 v{GS+1}, v{TM}
        s_lshl_b32 s{S_T}, s{S_W}, 8
        v_lshlrev_b32 v13, 3, v11
        v_mul_f32 v{TM}, v{GS+1}, v{GS+1}
        v_mul_f32 v{TM}, v{TM}, v{GS+2}
        v_add_f32 v{TM}, {fbits(EPS)}, v{TM}
        v_rsq_f32 v{TM}, v{TM}
        v_add_u32 v13, s{S_T}, v13
        v_add_u32 v13, {LDS_STAT}, v13
        v_mul_f32 v{AT}, v{TM}, v{GS+1}
        v_mul_f32_e64 v{BT}, v{GS}, -v{AT}
        ds_write_b64 v13, {v(GS,2)}
        v_lshrrev_b32 v14, 5, v0
        v_lshlrev_b32 v12, 4, v14
        v_add_u32 v12, {L_WS}, v12
        v_lshrrev_b32 v13, 4, v11
        v_mul_u32_u24 v13, {48*1024}, v13
        v_and_b32 v15, 15, v0
        v_lshl_add_u32 v13, v15, 4, v13
        v_lshl_add_u32 v{PV}, v14, 8, v13
        s_lshl_b32 s{S_T}, s{S_I}, 3
        s_lshl_b32 s{S_T+1}, s{S_W}, 1
        s_add_u32 s{S_T}, s{S_T}, s{S_T+1}
        s_mul_i32 s{S_T}, s{S_T}, 48
        s_mul_i32 s{S_T+1}, s{S_J}, 6
        s_add_u32 s{S_T}, s{S_T}, s{S_T+1}
        s_lshl_b32 s{S_T}, s{S_T}, 10
        s_add_u32 s{S_T+6}, s{S_T}, {WS_A2[1]}
        s_add_u32 s{S_T+7}, s{S_T+6}, 4096
        s_add_u32 s{S_T+8}, s{S_FLAG}, {WS_FA + 512*FLS}
        s_mov_b32 s{S_T+4}, {fbits(c1*0.044715)}
        s_mov_b32 s{S_T+5}, s{S_T+4}
        s_waitcnt lgkmcnt(0)
        s_barrier""")
        self.stamp(3)
        C1 = TM
        WB = [142, 174]
        WB = [112, 144]
        C1 = 208
        k(f"v_mov_b32 v{C1}, {fbits(c1)}\nv_mov_b32 v{C1+1}, {fbits(c1)}")
        Q = 176; PKO = [184, 188, 192, 210]
        def wreads(T):
            b = WB[T % 2]; L = []
            for q4 in range(4):
                L.append(f"ds_read_b128 {v(b+4*q4,4)}, v12 offset:{(32*T+8*q4)*4}")
                L.append(f"ds_read_b128 {v(b+16+4*q4,4)}, v12 offset:{768+(32*T+8*q4)*4}")
            return L
        self.emit(wreads(0))
        stok = {}
        for T in range(6):
            k("s_waitcnt lgkmcnt(0)")
            b = WB[T % 2]
            fill = wreads(T+1) if T + 1 < 6 else []
            body = []
            for c in range(2):
                po = PKO[(2*T + c) % 4]; prs = range(4*c, 4*c+4)
                z = lambda p: ACC + 16*T + 2*p
                q = lambda p: Q + 2*(p % 4)
                body += [f"v_pk_fma_f32 {v(b+2*p,2)}, {v(BT,2)}, {v(b+2*p,2)}, {v(b+16+2*p,2)} op_sel_hi:[0,1,1]" for p in prs]
                body += [f"v_pk_fma_f32 {v(z(p),2)}, {v(AT,2)}, {v(z(p),2)}, {v(b+2*p,2)} op_sel_hi:[0,1,1]" for p in prs]
                body += [f"v_pk_mul_f32 {v(q(p),2)}, {v(z(p),2)}, {v(z(p),2)}" for p in prs]
                body += [f"v_pk_fma_f32 {v(q(p),2)}, {v(q(p),2)}, {s(S_T+4,2)}, {v(C1,2)}" for p in prs]
                body += [f"v_pk_mul_f32 {v(q(p),2)}, {v(q(p),2)}, {v(z(p),2)}" for p in prs]
                for p in prs: body += [f"v_exp_f32 v{q(p)}, v{q(p)}", f"v_exp_f32 v{q(p)+1}, v{q(p)+1}"]
                body += [f"v_pk_add_f32 {v(q(p),2)}, {v(q(p),2)}, 1.0 op_sel_hi:[1,0]" for p in prs]
                for p in prs: body += [f"v_rcp_f32 v{q(p)}, v{q(p)}", f"v_rcp_f32 v{q(p)+1}, v{q(p)+1}"]
                body += [f"v_pk_mul_f32 {v(q(p),2)}, {v(q(p),2)}, {v(z(p),2)}" for p in prs]
                body += [f"v_cvt_pk_bf16_f32 v{po+p%4}, v{q(p)}, v{q(p)+1}" for p in prs]
                def st_(T=T, c=c, po=po):
                    stok[T] = k(f"buffer_store_dwordx4 {v(po,4)}, v{PV}, {WS4}, s{S_T+6+(T//4)} offen offset:{(T%4)*1024+c*512} sc1")
                body.append(st_)
            mem = []
            if T == 2: self.p2_addr(1)
            if T == 3:
                def f():
                    k.wait_vm(stok[1]); self.set_flag(S_T+8, 15, 0)
                mem.append(f)
            if T == 4:
                mem.append(self.p2_poll_issue)
            if T == 5:
                def f():
                    k.wait_vm(stok[3]); self.set_flag(S_T+8, 15, 4)
                mem.append(f)
                mem.append(lambda: self.p2_check(0))
                mem += [self.p2_aload for _ in range(8)]
            else:
                mem += self.b2_take(5)
            gap = max(1, (len(body) - 10)//(len(mem) + 1))
            for i, x in enumerate(body):
                self.emit([x])
                if i < 16 and i % 2 == 0 and fill: k(fill.pop(0))
                if i >= 8 and (i - 8) % gap == gap - 1 and mem: mem.pop(0)()
            self.emit(mem)
        self.stamp(6)
        self.a2_last = (stok[5], S_T+8, 8)
        self.phase2(1, 1)

    RING, NR, ACS, ACO = 16, 19, 92, 172
    def p2_addr(self, side):
        k = self.k
        S = [40, 48][side]; KS = [10, 12][side]
        self.hfS = [0, 1][side]; hfS = self.hfS; hfO = 1 - hfS
        SA = 36
        self.FV = 1
        k(f"""v_and_b32 v{self.FV}, 7, v0
        v_lshlrev_b32 v{self.FV}, 6, v{self.FV}
        s_lshl_b32 s44, s{S_I}, 5
        s_lshl_b32 s45, s{S_W}, 3
        s_add_u32 s44, s44, s45
        s_lshl_b32 s44, s44, 6
        s_add_u32 s44, s44, {WS_FA + side*512*FLS}
        s_mul_i32 s45, s{S_I}, {8*S}
        s_mul_i32 s46, s{S_W}, {KS}
        s_add_u32 s45, s45, s46
        s_lshl_b32 s45, s45, 10
        s_add_u32 s45, s45, {WS_A2[side]}""")
        for t4 in range(4):
            k(f"s_add_u32 s{SA+t4}, s45, {(4*hfS+t4)*S*1024}")
            k(f"s_add_u32 s{SA+4+t4}, s45, {(4*hfO+t4)*S*1024}")
        order = [ss for g in self.groups for ss in g]
        self.seq = [(p, ss, t4) for p in range(2) for ss in order for t4 in range(4)]
        self.gstart = []
        n = 0
        for g in self.groups:
            self.gstart.append(n); n += 4*len(g)
        self.atok = {}; self.nxt = 0; self.checked = 0; self.ptok = None
    def p2_poll_issue(self):
        self.ptok = self.k(f"buffer_load_dwordx3 v[2:4], v{self.FV}, {WS4}, s44 offen sc1")
    def p2_check(self, g):
        k = self.k
        k.wait_vm(self.ptok)
        def rl(): k(f"buffer_load_dwordx3 v[2:4], v{self.FV}, {WS4}, s44 offen sc1\ns_waitcnt vmcnt(0)")
        self.verify(lambda: k(f"v_cmp_ne_u32 vcc, s{S_TAG}, v{2+g}"), rl, "pa")
        self.checked = g + 1
    def p2_aload(self):
        k = self.k
        idx = self.nxt
        if self.checked < len(self.groups) and idx >= self.gstart[self.checked]:
            self.p2_check(self.checked)
        p, ss, t4 = self.seq[idx]
        so = 36 + 4*p + t4
        if ss >= 4:
            k(f"s_add_u32 s45, s{so}, {(ss//4)*4096}"); so = 45
        self.atok[idx] = k(f"buffer_load_dwordx4 {v(self.RING+4*(idx%self.NR),4)}, v{self.LV}, {WS4}, s{so} offen offset:{(ss%4)*1024} sc1")
        self.nxt += 1
        if self.checked < len(self.groups) and self.nxt == self.gstart[self.checked]:
            self.p2_poll_issue()

    def phase2(self, side, pend_flag):
        k = self.k
        if self.early_stop("p1"): return
        S = [40, 48][side]; KS = [10, 12][side]
        RING, NR, ACS, ACO, LV = self.RING, self.NR, self.ACS, self.ACO, self.LV
        hfS = self.hfS; hfO = 1 - hfS
        RW, RR, OO = 5, 6, 11
        T1 = 253
        k.c(f"================ phase 2 (side {side})")
        while self.nxt < NR - 3: self.p2_aload()
        self.stamp(8)
        a1 = [f"v_and_b32 v{T1}, 15, v0", f"v_mul_u32_u24 v{RW}, {RED_RS}, v{T1}", f"v_lshrrev_b32 v{T1}, 4, v0",
              f"v_lshl_add_u32 v{RW}, v{T1}, 4, v{RW}", f"s_mul_i32 s{S_T}, s{S_W}, {RED_W}\ns_add_u32 s{S_T}, s{S_T}, {LDS_RED}",
              f"v_add_u32 v{RW}, s{S_T}, v{RW}", f"s_mul_i32 s{S_T}, s{S_W}, {16*RED_RS}\ns_add_u32 s{S_T}, s{S_T}, {LDS_RED}"]
        for it in range(5):
            a1 += [f"v_add_u32 v{T1}, {64*it}, v0", f"v_mul_u32_u24 v{OO+it}, 3277, v{T1}", f"v_lshrrev_b32 v{OO+it}, 16, v{OO+it}",
                   f"v_mul_u32_u24 v{RR+it}, 20, v{OO+it}", f"v_sub_u32 v{T1}, v{T1}, v{RR+it}", f"v_lshlrev_b32 v{T1}, 4, v{T1}",
                   f"v_mad_u32_u24 v{RR+it}, v{OO+it}, s{S_T+1}, v{T1}", f"v_add_u32 v{RR+it}, s{S_T}, v{RR+it}",
                   f"v_mad_u32_u24 v{OO+it}, v{OO+it}, s{S_T+2}, v{T1}"]
        k(f"s_movk_i32 s{S_T+1}, {RED_RS}\ns_movk_i32 s{S_T+2}, 2560")
        self.emit(a1)
        nper = len(self.seq)//2
        def run_pass(p, accb, fill):
            for j in range(nper):
                idx = p*nper + j
                _, ss, t4 = self.seq[idx]
                first = j < 4
                if p == 0 and t4 == 0:
                    while (ss, 4) not in self.b2tok: self.b2q.pop(0)()
                    k.wait_vm(self.b2tok[ss, 4])
                k.wait_vm(self.atok[idx])
                for cc in range(5):
                    d = accb + (t4*5 + cc)*4
                    k(f"v_mfma_f32_16x16x32_bf16 {v(d,4)}, {a((ss*5+cc)*4,4)}, {v(RING+4*(idx%NR),4)}, {'0' if first else v(d,4)}")
                    if cc == 0:
                        if self.nxt < len(self.seq) and self.nxt < idx + NR - 1: self.p2_aload()
                    elif cc == 2 and p == 0 and self.b2q and j % 2 == 0: self.b2q.pop(0)()
                    elif fill:
                        self.emit([fill.pop(0)])
            self.emit(fill)
        fl0 = []
        if pend_flag:
            def f():
                tokn, so, off = self.a2_last
                k.wait_vm(tokn); self.set_flag(so, T1, off)
            fl0 = [lambda: None]*8 + [f]
        run_pass(0, ACS, fl0)
        self.stamp(9)
        tk = {}
        fill = [lambda: None, lambda: None]
        fill += [f"ds_write_b128 v{RW}, {v(ACS+(t4*5+cc)*4,4)} offset:{t4*16*RED_RS+cc*64}" for t4 in range(4) for cc in range(5)]
        fill += [f"""s_lshr_b32 s{S_T}, s{S_PW}, 2
                 s_mul_i32 s{S_T}, s{S_T}, 20480""", f"""s_mul_i32 s{S_T+1}, s{S_W}, 5120
                 s_add_u32 s{S_T}, s{S_T}, s{S_T+1}""", f"""s_add_u32 s{S_T+3}, s{S_T}, {WS_PART + (1-side)*128*20480}
                 s_add_u32 s{S_T+4}, s{S_T+3}, 4096""", f"""s_add_u32 s{S_T}, s{S_T}, {WS_PART + side*128*20480}
                 s_add_u32 s{S_T+1}, s{S_T}, 4096""",
                 "s_waitcnt lgkmcnt(0)\ns_barrier"]
        for it in range(5):
            for sw in range(4):
                def f(it=it, sw=sw): tk['r', it] = k(f"ds_read_b128 {v(ACS+(it*4+sw)*4,4)}, v{RR+it} offset:{sw*RED_W}")
                fill.append(f)
        for it in range(5):
            b = ACS + it*16
            fill.append(lambda it=it: k.wait_lg(tk['r', it]))
            for e in range(4): fill.append(f"v_add_f32 v{b+e}, v{b+e}, v{b+4+e}")
            for e in range(4): fill.append(f"v_add_f32 v{b+8+e}, v{b+8+e}, v{b+12+e}")
            for e in range(4): fill.append(f"v_add_f32 v{b+e}, v{b+e}, v{b+8+e}")
            def f(it=it, b=b): tk['send'] = k(f"buffer_store_dwordx4 {v(b,4)}, v{LV}, {WS4}, s{S_T+it//4} offen offset:{(it%4)*1024} sc1")
            fill.append(f)
        fill += [f"""s_lshl_b32 s{S_T}, s{S_I}, 7
                 s_lshl_b32 s{S_T+1}, s{S_W}, 4""", f"""s_add_u32 s{S_T}, s{S_T}, s{S_T+1}
                 s_add_u32 s{S_T}, s{S_T}, {64*hfO}""", f"""s_mul_i32 s{S_T}, s{S_T}, 2560
                 s_mul_i32 s{S_T+1}, s{S_J}, 320""", f"""s_add_u32 s{S_OUT}, s{S_T}, s{S_T+1}
                 s_lshr_b32 s{S_T}, s{S_OUT}, 1""", f"s_lshr_b32 s{S_T+1}, s{S_T+1}, 1",
                 lambda: self.srd(SRD_T1, 8, 1280), lambda: self.srd(SRD_T2, 13, 1280), lambda: self.srd(SRD_OUT, 14, 5242880),
                 f"s_lshl_b32 s{S_T+2}, s{S_W}, 7\ns_add_u32 s{S_T+2}, s{S_T+2}, {LDS_STAT + 64*hfO*8}", "s_barrier"]
        for it in range(5):
            b = ACS + it*16
            fill += [f"v_lshrrev_b32 v{T1}, 1, v{OO+it}",
                     f"buffer_load_dwordx2 {v(b+4,2)}, v{T1}, {s(SRD_X,4)}, s{S_T} offen",
                     f"v_add_u32 v{T1}, {64*it}, v0", f"v_mul_u32_u24 v2, 3277, v{T1}", f"v_lshrrev_b32 v2, 16, v2",
                     f"v_lshl_add_u32 v3, v2, 3, s{S_T+2}", f"ds_read_b64 {v(b+10,2)}, v3",
                     f"v_mul_u32_u24 v2, 20, v2", f"v_sub_u32 v2, v{T1}, v2", f"v_lshlrev_b32 v2, 3, v2",
                     f"buffer_load_dwordx2 {v(b+6,2)}, v2, {s(SRD_T1,4)}, s{S_T+1} offen"]
            def f(b=b): tk['ep'] = k(f"buffer_load_dwordx2 {v(b+8,2)}, v2, {s(SRD_T2,4)}, s{S_T+1} offen")
            fill.append(f)
            if it == 1:
                def f():
                    k.wait_vm(tk['send'])
                    k(f"s_add_u32 s{S_T+5}, s{S_FLAG}, {WS_FP + side*512*FLS}")
                    self.set_flag(S_T+5, T1)
                fill.append(f)
        def f():
            k(f"s_add_u32 s{S_T+5}, s{S_FLAG}, {WS_FP + (1-side)*512*FLS}")
            tk['pp'] = k(f"buffer_load_dword v4, off, {WS4}, s{S_T+5} sc1")
        npad = nper*4 - len(fill) - 8
        fill += [lambda: None]*max(0, npad) + [f]
        run_pass(1, ACO, fill)
        self.stamp(10)
        wr = [f"ds_write_b128 v{RW}, {v(ACO+(t4*5+cc)*4,4)} offset:{t4*16*RED_RS+cc*64}" for t4 in range(4) for cc in range(5)]
        k.wait_vm(tk['pp'])
        def rl(): k(f"buffer_load_dword v4, off, {WS4}, s{S_T+5} sc1\ns_waitcnt vmcnt(0)")
        self.verify(lambda: k(f"v_cmp_ne_u32 vcc, s{S_TAG}, v4"), rl, "pp")
        ptoks = [k(f"buffer_load_dwordx4 {v(ACS+it*16+12,4)}, v{LV}, {WS4}, s{S_T+3+it//4} offen offset:{(it%4)*1024} sc1") for it in range(5)]
        self.stamp(11)
        res = []
        T2 = RING
        for it in range(5):
            b = ACS + it*16
            xx, dd, bb = T2 + 12*it, T2 + 12*it + 4, T2 + 12*it + 8
            for (src, dst) in ((b+4, xx), (b+6, dd), (b+8, bb)):
                for h in range(2):
                    res += [f"v_lshlrev_b32 v{dst+2*h}, 16, v{src+h}", f"v_and_b32 v{dst+2*h+1}, 0xffff0000, v{src+h}"]
            for h in range(2):
                res += [f"v_pk_add_f32 {v(bb+2*h,2)}, {v(bb+2*h,2)}, {v(xx+2*h,2)}",
                        f"v_pk_add_f32 {v(xx+2*h,2)}, {v(xx+2*h,2)}, {v(b+10,2)} op_sel_hi:[1,0] neg_lo:[0,1] neg_hi:[0,1]",
                        f"v_pk_mul_f32 {v(dd+2*h,2)}, {v(dd+2*h,2)}, {v(b+10,2)} op_sel:[0,1] op_sel_hi:[1,1]",
                        f"v_pk_fma_f32 {v(bb+2*h,2)}, {v(xx+2*h,2)}, {v(dd+2*h,2)}, {v(bb+2*h,2)}"]
        k("s_waitcnt lgkmcnt(0)")
        half = len(res)//2
        r1, r2 = res[:half], res[half:]
        for w_ in wr:
            k(w_)
            for _ in range(3):
                if r1: k(r1.pop(0))
        self.emit(r1)
        k("s_waitcnt lgkmcnt(0)\ns_barrier")
        toks = []
        for it in range(5):
            for sw in range(4):
                toks.append(k(f"ds_read_b128 {v(ACO+(it*4+sw)*4,4)}, v{RR+it} offset:{sw*RED_W}"))
        self.emit(r2)
        for it in range(5):
            b = ACO + it*16; bb = T2 + 12*it + 8
            k.wait_both(ptoks[it], toks[4*it+3])
            for h in range(2):
                k(f"v_pk_add_f32 {v(b+2*h,2)}, {v(b+2*h,2)}, {v(b+4+2*h,2)}")
                k(f"v_pk_add_f32 {v(b+8+2*h,2)}, {v(b+8+2*h,2)}, {v(b+12+2*h,2)}")
                k(f"v_pk_add_f32 {v(bb+2*h,2)}, {v(bb+2*h,2)}, {v(ACS+it*16+12+2*h,2)}")
            for h in range(2):
                k(f"v_pk_add_f32 {v(b+2*h,2)}, {v(b+2*h,2)}, {v(b+8+2*h,2)}")
            for h in range(2):
                k(f"v_pk_add_f32 {v(b+2*h,2)}, {v(b+2*h,2)}, {v(bb+2*h,2)}")
            k(f"buffer_store_dwordx4 {v(b,4)}, v{OO+it}, {s(SRD_OUT,4)}, s{S_OUT} offen {'sc1' if 'outsc1' in self.opt else 'nt' if 'outnt' in self.opt else ''}")
        self.stamp(12)
        self.finish_wg(side)

    def finish_wg(self, side):
        k = self.k
        if side == 0:
            k(f"""s_cmp_lg_u32 s{S_PW}, 0
            s_cbranch_scc1 L_fin0
            v_lshlrev_b32 v13, 8, v0""")
            def loads():
                for q in range(4):
                    k(f"s_mov_b32 s{S_T+1}, {WS_FA + q*64*4*FLS}")
                    k(f"buffer_load_dword v{16+q}, v13, {WS4}, s{S_T+1} offen sc1")
                k("s_waitcnt vmcnt(0)")
            def check():
                k(f"v_xor_b32 v14, s{S_TAG}, v16")
                for q in range(1, 4): k(f"v_bitop3_b32 v14, s{S_TAG}, v{16+q}, v14 bitop3:0xbe")
                k("v_cmp_ne_u32 vcc, 0, v14")
            loads()
            self.verify(check, loads, "pe")
            k(f"s_mov_b32 s{S_T}, {WS_EPOCH}")
            self.set_flag(S_T, 14)
            k.label("L_fin0")
        if self.spin:
            lb = k.newlabel("spin")
            k(f"s_add_u32 s101, s101, {self.spin}")
            k.label(lb)
            k(f"""s_memrealtime s[98:99]
            s_waitcnt lgkmcnt(0)
            s_sub_u32 s98, s98, s100
            s_cmp_lt_u32 s98, s101
            s_cbranch_scc1 {lb}""")
        if self.ts:
            k("s_waitcnt vmcnt(0)"); self.stamp(13); self.stamp_flush()
        k("s_endpgm")

    def build(self):
        k = self.k
        self.prologue()
        st = k.state()
        self.ssm()
        self.flush_slow()
        k.set_state(st)
        self.mlp()
        self.flush_slow()
        k.label("L_end")
        k("s_endpgm")
        if 'noadd' in self.opt: k.ins = [x for x in k.ins if not x.op.startswith('ds_add')]
        if 'nopk' in self.opt: k.ins = [x for x in k.ins if not x.op.startswith('v_pk')]
        if 'notrans' in self.opt: k.ins = [x for x in k.ins if x.kind != 'trans']
        if 'nosw' in self.opt or 'nodma' in self.opt or 'noread' in self.opt or 'nobar' in self.opt or 'nosmall' in self.opt:
            out = []; inloop = False
            for x in k.ins:
                if 'k-step' in x.text: inloop = True
                if 'loop end' in x.text: inloop = False
                if inloop:
                    if 'nodma' in self.opt and (x.kind == 'vmem' or x.op == 's_cbranch_vccnz'): continue
                    if 'nosw' in self.opt and (x.op == 's_cbranch_vccnz' or (x.kind == 'vmem' and ('sc1' in x.text or 'v253' in x.text))): continue
                    if 'nodma' in self.opt and x.op == 's_waitcnt' and 'vmcnt' in x.text: x = Ins('s_nop 0')
                    if 'noread' in self.opt and x.kind == 'ds': continue
                    if 'nomfma' in self.opt and x.kind == 'mfma': continue
                    if 'nobar' in self.opt and x.op == 's_barrier': continue
                    if 'nosmall' in self.opt and '4x4x4' in x.op: continue
                out.append(x)
            k.ins = out
        body = k.finish()
        hdr = open("header.txt").read()
        return (hdr + f"""; @launch grid=(256,1,1) block=(256,1,1) lds=163840
.amdgcn_target "amdgcn-amd-amdhsa--gfx950"
.text
.globl {NAME}
.p2align 8
.type {NAME},@function
{NAME}:
""" + body + f""".section .rodata,"a"
.p2align 6
.amdhsa_kernel {NAME}
  .amdhsa_next_free_vgpr 512
  .amdhsa_next_free_sgpr 102
  .amdhsa_accum_offset 256
  .amdhsa_group_segment_fixed_size 0
  .amdhsa_kernarg_size 136
  .amdhsa_user_sgpr_count 2
  .amdhsa_user_sgpr_kernarg_segment_ptr 1
  .amdhsa_system_sgpr_workgroup_id_x 1
.end_amdhsa_kernel
""")

if __name__ == "__main__":
    import argparse
    ap = argparse.ArgumentParser()
    ap.add_argument("-o", default="k2.s")
    ap.add_argument("--stop", default=None)
    ap.add_argument("--ts", action="store_true")
    ap.add_argument("--spin", type=int, default=0)
    ap.add_argument("--seg", type=int, default=None)
    ap.add_argument("--opt", default="")
    a_ = ap.parse_args()
    g = G(stop=a_.stop, ts=a_.ts, spin=a_.spin, seg=a_.seg, opt=a_.opt.split(","))
    txt = g.build()
    open(a_.o, "w").write(txt)
    print("written", a_.o, "nops inserted:", g.k.nops, "lines:", txt.count("\n"))
```

```python
import sys, math, struct
sys.path.insert(0, "gen")
from emit import *

NAME = "parallel_sum__ssm_conv_s5__mixer_channel_mlp__prompt_kernel"
WS_EPOCH = 0
WS_FB = 0x1000
WS_FA = 0x11000
WS_FP = 0x21000
WS_AGG = 0x31000
WS_STG = 0x59000
WS_WSG = 0x61000
WS_B2S = [0x70000, 0x200000]
WS_A2 = [0x400000, 0x900000]
WS_PART = 0xF00000
WS_TS = 0x1400000
WS_SIZE = 0x1500000
FLS = 64
S_W = 3
SRD_X, SRD_W, SRD_WS, SRD_OUT, SRD_T1, SRD_T2 = 4, 8, 12, 16, 20, 24
S_TAG, S_TAG2, S_I, S_J, S_SIDE = 28, 29, 30, 31, 32
S_PW = 33
S_FLAG = 34
S_OUT = 35
S_XO = 36
S_WO = 40
S_MX, S_MW = 45, 46
S_B2 = 47
S_T = 48
P0 = 64
def ptr(n): return s(P0 + 2*n, 2)
S_TS = 98
LOG2E = 1.4426950408889634
EPS = 1e-5
def fbits(x): return "0x%08x" % struct.unpack("<I", struct.pack("<f", x))[0]
POLL_MAX = 20000
LDS_STAT = 160000
LDS_RED = 16384
RED_RS = 336
RED_W = 64 * RED_RS
SSM_LB = 102400
WS4 = s(SRD_WS, 4)

class G:
    def __init__(self, stop=None, ts=False, spin=0, seg=None, opt=()):
        self.k = Emit(); self.slow = []; self.stop = stop; self.ts = ts; self.spin = spin; self.seg = seg; self.opt = set(opt)

    def stamp(self, idx):
        k = self.k
        if self.seg == idx:
            k("s_memrealtime s[98:99]\ns_waitcnt lgkmcnt(0)\ns_sub_u32 s101, s98, s100")
        if not self.ts: return
        k(f"{'s_memtime' if 'cyc' in self.opt else 's_memrealtime'} {s(S_TS,2)}")
        k("s_waitcnt lgkmcnt(0)")
        k(f"v_writelane_b32 v255, s{S_TS}, {idx}")
    def stamp_flush(self):
        if not self.ts: return
        self.k(f"""s_lshl_b32 s{S_T}, s2, 2
        s_add_u32 s{S_T}, s{S_T}, s{S_W}
        s_lshl_b32 s{S_T}, s{S_T}, 6
        s_add_u32 s{S_T}, s{S_T}, {WS_TS}
        v_mbcnt_lo_u32_b32 v254, -1, 0
        v_mbcnt_hi_u32_b32 v254, -1, v254
        v_cmp_gt_u32 vcc, 16, v254
        v_lshlrev_b32 v254, 2, v254
        s_and_saveexec_b64 {s(S_T+2,2)}, vcc
        buffer_store_dword v255, v254, {WS4}, s{S_T} offen
        s_mov_b64 exec, {s(S_T+2,2)}""")
    def early_stop(self, name):
        if self.stop != name: return False
        self.k("s_waitcnt vmcnt(0)"); self.stamp(13); self.stamp_flush(); self.k("s_endpgm")
        return True

    def srd(self, base, pn, size):
        self.k(f"""s_mov_b32 s{base}, s{P0+2*pn}
        s_and_b32 s{base+1}, s{P0+2*pn+1}, 0xffff
        s_mov_b32 s{base+2}, {size}
        s_mov_b32 s{base+3}, 0x20000""")

    def verify(self, check, reload, name):
        k = self.k
        slow = k.newlabel(name); done = k.newlabel(name + "d")
        check()
        k(f"s_cbranch_vccnz {slow}")
        k.label(done)
        self.slow.append((slow, done, check, reload))
    def flush_slow(self):
        k = self.k
        for slow, done, check, reload in self.slow:
            top = k.newlabel(slow + "t")
            k.label(slow)
            k(f"s_mov_b32 s{S_T+15}, {POLL_MAX}")
            k.label(top)
            reload()
            check()
            k(f"""s_cbranch_vccz {done}
            s_sub_u32 s{S_T+15}, s{S_T+15}, 1
            s_cmp_lg_u32 s{S_T+15}, 0
            s_cbranch_scc1 {top}
            s_branch {done}""")
        self.slow = []

    def set_flag(self, soff, vtmp, off=0):
        return self.k(f"""v_mov_b32 v{vtmp}, s{S_TAG}
        s_mov_b64 exec, 1
        buffer_store_dword v{vtmp}, off, {WS4}, s{soff} offset:{off} sc1
        s_mov_b64 exec, -1""")

    def weave(self, main, fill, per=1, start=0):
        k = self.k
        for i, m in enumerate(main):
            m() if callable(m) else k(m)
            if i >= start:
                for _ in range(per):
                    if fill:
                        f = fill.pop(0)
                        f() if callable(f) else k(f)

    def cpow(self, dre, dim, n, zr, zi, t):
        return [f"v_mul_f32 v{t}, {n}, v{zi}", f"v_mul_f32 v{dre}, {n}, v{zr}", f"v_fract_f32 v{t}, v{t}",
                f"v_exp_f32 v{dre}, v{dre}", f"v_sin_f32 v{dim}, v{t}", f"v_cos_f32 v{t}, v{t}",
                f"v_mul_f32 v{dim}, v{dim}, v{dre}", f"v_mul_f32 v{dre}, v{t}, v{dre}"]
    def cpow5(self, dre, dim, n, ZR, ZI, T):
        L = [self.cpow(dre+b, dim+b, n, ZR+b, ZI+b, T+b) for b in range(5)]
        return [L[b][i] for i in range(8) for b in range(5)]
    def cmul5(self, dr, di, ar, ai, br, bi, cr=None, ci=None):
        L = []
        for b in range(5):
            L.append(f"v_mul_f32 v{dr+b}, v{ar+b}, v{br+b}" if cr is None else f"v_fma_f32 v{dr+b}, v{ar+b}, v{br+b}, v{cr+b}")
            L.append(f"v_mul_f32 v{di+b}, v{ar+b}, v{bi+b}" if ci is None else f"v_fma_f32 v{di+b}, v{ar+b}, v{bi+b}, v{ci+b}")
        for b in range(5):
            L.append(f"v_fma_f32 v{dr+b}, -v{ai+b}, v{bi+b}, v{dr+b}")
            L.append(f"v_fma_f32 v{di+b}, v{ai+b}, v{br+b}, v{di+b}")
        return L
    def csq5(self, dr, di, ar, ai):
        L = []
        for b in range(5):
            L.append(f"v_mul_f32 v{dr+b}, v{ar+b}, v{ar+b}")
            L.append(f"v_mul_f32 v{di+b}, v{ar+b}, v{ai+b}")
        for b in range(5):
            L.append(f"v_fma_f32 v{dr+b}, -v{ai+b}, v{ai+b}, v{dr+b}")
            L.append(f"v_add_f32 v{di+b}, v{di+b}, v{di+b}")
        return L
    def emit(self, L):
        for x in L:
            x() if callable(x) else self.k(x)

    def prologue(self):
        k = self.k
        k(f"""s_cmp_ge_u32 s2, 256
        s_cbranch_scc1 L_end""")
        if self.spin: k("s_memrealtime s[100:101]")
        k(f"""s_load_dwordx16 {s(P0,16)}, s[0:1], 0
        s_load_dwordx16 {s(P0+16,16)}, s[0:1], 64
        s_load_dwordx2 {s(P0+32,2)}, s[0:1], 128
        v_lshrrev_b32 v1, 6, v0
        v_and_b32 v0, 63, v0
        v_readfirstlane_b32 s{S_W}, v1
        s_and_b32 s{S_SIDE}, s2, 1
        s_bfe_u32 s{S_T}, s2, 0x20001
        s_lshr_b32 s{S_T+1}, s2, 6           ; c = id>>6
        s_lshl_b32 s{S_I}, s{S_T+1}, 2
        s_add_u32 s{S_I}, s{S_I}, s{S_T}
        s_bfe_u32 s{S_J}, s2, 0x30003        ; j = (id>>3)&7
        s_lshl_b32 s{S_T}, s{S_I}, 3
        s_add_u32 s{S_T}, s{S_T}, s{S_J}
        s_lshl_b32 s{S_T}, s{S_T}, 2
        s_add_u32 s{S_PW}, s{S_T}, s{S_W}    ; (i*8+j)*4+w
        s_lshl_b32 s{S_FLAG}, s{S_PW}, 6
        s_lshl_b32 s{S_MX}, s{S_W}, 12
        s_lshl_b32 s{S_T+2}, s{S_I}, 7
        s_lshl_b32 s{S_T+3}, s{S_W}, 5
        s_add_u32 s{S_T+2}, s{S_T+2}, s{S_T+3}
        s_mul_i32 s{S_XO}, s{S_T+2}, 1280
        v_lshrrev_b32 v11, 4, v0                 ; g
        v_and_b32 v12, 7, v0
        v_xor_b32 v12, v12, v11
        v_lshlrev_b32 v12, 4, v12
        v_lshrrev_b32 v13, 3, v0
        v_mul_u32_u24 v3, 1280, v13
        v_add_u32 v3, v3, v12                    ; (l>>3)*1280 + swz
        """)
        if self.ts: k("v_mov_b32 v255, 0")
        k("s_waitcnt lgkmcnt(0)")
        if self.spin: k("s_mov_b32 s101, 0")
        k(f"s_load_dword s{S_TAG}, {ptr(16)}, {WS_EPOCH}")
        self.srd(SRD_X, 0, 2621440)
        self.srd(SRD_WS, 16, WS_SIZE)
        self.stamp(0)
        if 'probe' in self.opt:
            self.srd(SRD_T1, 9, 2621440)
            k(f"""s_lshl_b32 s{S_T}, s2, 2
            s_add_u32 s{S_T}, s{S_T}, s{S_W}
            s_mul_i32 s{S_T}, s{S_T}, 2560
            v_lshlrev_b32 v20, 4, v0
            buffer_load_dwordx4 v[24:27], v20, {s(SRD_T1,4)}, s{S_T} offen
            buffer_load_dwordx4 v[28:31], v20, {s(SRD_T1,4)}, s{S_T} offen offset:1024
            buffer_load_dwordx2 v[32:33], v20, {s(SRD_T1,4)}, s{S_T} offen offset:2048
            s_waitcnt vmcnt(0)""")
            self.stamp(14)
        k(f"""s_cmp_eq_u32 s{S_SIDE}, 1
        s_cbranch_scc1 L_mlp""")

    def make_tag(self):
        self.k(f"""s_waitcnt lgkmcnt(0)
        s_mul_i32 s{S_TAG}, s{S_TAG}, 0x9E3779B1
        s_add_u32 s{S_TAG}, s{S_TAG}, 0x7F4A7C15
        s_xor_b32 s{S_TAG2}, s{S_TAG}, 0x5bd1e995
        s_brev_b32 s{S_TAG2}, s{S_TAG2}""")

    def rowstat_loads(self, srd, s_row, s_cl):
        k = self.k
        k(f"""v_min_u32 v14, s{s_cl}, v11
        v_mul_u32_u24 v15, 1280, v14
        v_and_b32 v13, 15, v0
        v_lshl_add_u32 v15, v13, 4, v15
        s_mul_i32 s{s_row}, s{s_row}, 1280""")
        for q in range(5):
            t = k(f"buffer_load_dwordx4 {v(16+4*q,4)}, v15, {s(srd,4)}, s{s_row} offen offset:{256*q}")
        return t
    def rowstat_finish(self, tok, s_dst):
        k = self.k
        k.wait_vm(tok)
        k(f"s_mov_b32 s{S_T+14}, 0x3f803f80")
        for q in range(20):
            k(f"v_dot2_f32_bf16 v36, v{16+q}, s{S_T+14}, {'0' if q == 0 else 'v36'}")
            k(f"v_dot2_f32_bf16 v38, v{16+q}, v{16+q}, {'0' if q == 0 else 'v38'}")
        k(f"v_mov_b32 v37, s{S_TAG}\nv_mov_b32 v39, s{S_TAG2}\nv_lshlrev_b32 v14, 4, v14")
        for r in (8, 4, 2, 1):
            k(f"v_add_f32_dpp v36, v36, v36 row_ror:{r} row_mask:0xf bank_mask:0xf")
            k(f"v_add_f32_dpp v38, v38, v38 row_ror:{r} row_mask:0xf bank_mask:0xf")
        k(f"""s_mov_b32 exec_lo, 0x00010001
        s_mov_b32 exec_hi, 0x00010001
        buffer_store_dwordx4 v[36:39], v14, {WS4}, s{s_dst} offen sc1
        s_mov_b64 exec, -1""")

    def b2_setup(self, side, vl):
        k = self.k
        S = [40, 48][side]; KS = [10, 12][side]
        if side == 0:
            L = f"""v_min_u32 v{vl}, 14, v0
            v_mul_u32_u24 v{vl+1}, 86, v{vl}
            v_lshrrev_b32 v{vl+1}, 8, v{vl+1}
            v_mul_u32_u24 v{vl+1}, 7, v{vl+1}
            v_add_lshl_u32 v{vl}, v{vl}, v{vl+1}, 6
            s_mul_i32 s{S_T+12}, s{S_W}, 10
            s_lshr_b32 s{S_T+12}, s{S_T+12}, 2
            s_mul_i32 s{S_T+13}, s{S_J}, 50
            s_add_u32 s{S_T+12}, s{S_T+12}, s{S_T+13}
            s_lshl_b32 s{S_T+12}, s{S_T+12}, 6
            s_add_u32 s{S_T+12}, s{S_T+12}, {WS_FB}"""
        else:
            L = f"""v_min_u32 v{vl}, 23, v0
            v_lshrrev_b32 v{vl+1}, 1, v{vl}
            v_lshlrev_b32 v{vl+1}, 3, v{vl+1}
            v_add_lshl_u32 v{vl}, v{vl}, v{vl+1}, 6
            s_mul_i32 s{S_T+12}, s{S_W}, 120
            s_mul_i32 s{S_T+13}, s{S_J}, 5
            s_lshr_b32 s{S_T+13}, s{S_T+13}, 2
            s_add_u32 s{S_T+12}, s{S_T+12}, s{S_T+13}
            s_lshl_b32 s{S_T+12}, s{S_T+12}, 6
            s_add_u32 s{S_T+12}, s{S_T+12}, {WS_FB + 512*FLS}"""
        L += f"""
        s_mul_i32 s{S_B2}, s{S_J}, {5*S}
        s_mul_i32 s{S_T+13}, s{S_W}, {KS}
        s_add_u32 s{S_B2}, s{S_B2}, s{S_T+13}
        s_lshl_b32 s{S_B2}, s{S_B2}, 10
        s_add_u32 s{S_B2}, s{S_B2}, {WS_B2S[side]}"""
        self.groups = [[list(range(10))], [[0, 1, 6, 7], [2, 3, 8, 9], [4, 5, 10, 11]]][side]
        self.b2tok = {}
        self.b2q = []
        for grp in self.groups:
            for ss in grp:
                for cc in range(5):
                    def ld(ss=ss, cc=cc):
                        if 'nob2' in self.opt:
                            self.b2tok[ss, cc] = 0; return
                        k(f"s_add_u32 s{S_T+11}, s{S_B2}, {(cc*S + ss)*1024}")
                        self.b2tok[ss, cc] = k(f"buffer_load_dwordx4 {a((ss*5+cc)*4,4)}, v{self.LV}, {WS4}, s{S_T+11} offen sc1")
                    self.b2q.append(ld)
        return [x.strip() for x in L.split("\n")]
    def b2_take(self, n):
        out = self.b2q[:n]; self.b2q = self.b2q[n:]
        return out

    def ssm(self):
        k = self.k
        ACC = 16; FR = [96, 144]
        LR, LI, L2R, L2I, L4R, L4I, WR, WI = 192, 197, 202, 207, 212, 217, 222, 227
        ZR, ZI, KR, KI = 232, 237, 242, 247
        XE, XO, WA, WB, RD0, RD1, RX0, RX1, RW0, RW1 = 1, 2, 3, 4, 5, 6, 7, 8, 9, 10
        self.LV = 252; PV = 253
        STG0, STGS = 16384, 36864
        acc = lambda a_, tt: ACC + (a_*10 + tt)*4
        k.c("================ SSM side, phase 1")
        k(f"""s_cmp_lt_u32 s{S_W}, 2
        s_cselect_b32 s{SRD_W}, s{P0+6}, s{P0+8}
        s_cselect_b32 s{SRD_W+1}, s{P0+7}, s{P0+9}
        s_and_b32 s{SRD_W+1}, s{SRD_W+1}, 0xffff
        s_mov_b32 s{SRD_W+2}, 819200
        s_mov_b32 s{SRD_W+3}, 0x20000
        s_cmp_lt_u32 s{S_I}, 8
        s_cselect_b32 s{SRD_T1}, s{P0+6}, s{P0+8}
        s_cselect_b32 s{SRD_T1+1}, s{P0+7}, s{P0+9}
        s_cmp_eq_u32 s{S_W}, 0
        s_cselect_b32 s{SRD_T1}, s{P0}, s{SRD_T1}
        s_cselect_b32 s{SRD_T1+1}, s{P0+1}, s{SRD_T1+1}
        s_mov_b32 s{SRD_T1+2}, 819200
        s_cselect_b32 s{SRD_T1+2}, 2621440, s{SRD_T1+2}
        s_and_b32 s{SRD_T1+1}, s{SRD_T1+1}, 0xffff
        s_mov_b32 s{SRD_T1+3}, 0x20000
        s_lshl_b32 s{S_T}, s{S_I}, 7
        s_lshl_b32 s{S_T+1}, s{S_J}, 4
        s_add_u32 s{S_T}, s{S_T}, s{S_T+1}
        s_lshl_b32 s{S_T+1}, s{S_T}, 4
        s_add_u32 s{S_T+1}, s{S_T+1}, {WS_STG}
        s_lshl_b32 s{S_T+4}, s{S_W}, 2
        s_sub_u32 s{S_T+4}, s{S_T+4}, 4             ; 4(w-1)
        s_and_b32 s{S_T+2}, s{S_I}, 7
        s_mul_i32 s{S_T+2}, s{S_T+2}, 10
        s_mul_i32 s{S_T+3}, s{S_J}, 80
        s_add_u32 s{S_T+2}, s{S_T+2}, s{S_T+3}
        s_add_u32 s{S_T+2}, s{S_T+2}, s{S_T+4}      ; B row 80j+10(i%8)+4(w-1)
        s_mul_i32 s{S_T+3}, s{S_J}, 160
        s_mul_i32 s{S_T+5}, s{S_I}, 10
        s_add_u32 s{S_T+3}, s{S_T+3}, s{S_T+5}
        s_add_u32 s{S_T+3}, s{S_T+3}, s{S_T+4}
        s_lshl_b32 s{S_T+3}, s{S_T+3}, 4
        s_add_u32 s{S_T+3}, s{S_T+3}, {WS_WSG}
        s_cmp_eq_u32 s{S_W}, 0
        s_cselect_b32 s{S_T}, s{S_T}, s{S_T+2}
        s_cselect_b32 s{S_T+7}, s{S_T+1}, s{S_T+3}  ; destination
        s_cmp_eq_u32 s{S_W}, 3
        s_cselect_b32 s{S_T+1}, 1, 3""")
        rs_tok = self.rowstat_loads(SRD_T1, S_T, S_T+1)
        k(f"""v_lshrrev_b32 v13, 3, v0
        v_and_b32 v13, 3, v13
        v_lshrrev_b32 v15, 5, v0
        v_lshl_add_u32 v13, v15, 3, v13
        v_mul_u32_u24 v{XE}, 1280, v13
        v_add_u32 v{XE}, v{XE}, v12
        v_xor_b32 v{XO}, 64, v{XE}
        s_and_b32 s{S_T}, s{S_W}, 1
        s_lshl_b32 s{S_T+1}, s{S_T}, 6
        v_xor_b32 v{WA}, s{S_T+1}, v{WA}
        v_xor_b32 v{WB}, 64, v{WA}
        s_add_u32 s{S_XO+1}, s{S_XO}, {16*1280}
        s_add_u32 s{S_XO+2}, s{S_XO}, {4*1280}
        s_add_u32 s{S_XO+3}, s{S_XO}, {20*1280}
        s_mul_i32 s{S_T+2}, s{S_J}, 80
        s_mul_i32 s{S_T+3}, s{S_T}, 40
        s_add_u32 s{S_T+2}, s{S_T+2}, s{S_T+3}
        s_mul_i32 s{S_WO}, s{S_T+2}, 1280
        s_add_u32 s{S_WO+1}, s{S_WO}, {8*1280}
        s_add_u32 s{S_WO+2}, s{S_WO}, {16*1280}
        s_add_u32 s{S_WO+3}, s{S_WO}, {24*1280}
        s_add_u32 s{S_WO+4}, s{S_WO}, {32*1280}
        s_mul_i32 s{S_MW}, s{S_W}, 5120""")
        stage_tok = {}
        def dma_list(t):
            base = STG0 + (t % 4)*STGS
            L = []
            def mk(m, ld):
                def f(): stage_tok[t] = k(ld)
                return [m, f]
            for e in range(4):
                L.append(mk(f"s_add_u32 m0, s{S_MX}, {base + e*1024 - t*128}",
                            f"buffer_load_dwordx4 v{XE if e%2==0 else XO}, {s(SRD_X,4)}, s{S_XO+e} offen offset:{t*128} lds"))
            for e in range(5):
                L.append(mk(f"s_add_u32 m0, s{S_MW}, {base + 16384 + e*1024 - t*128}",
                            f"buffer_load_dwordx4 v{WA if e%2==0 else WB}, {s(SRD_W,4)}, s{S_WO+e} offen offset:{t*128} lds"))
            return L
        def dma_stage(t):
            for p in dma_list(t): self.emit(p)
        dma_stage(0)
        k(f"""v_and_b32 v13, 15, v0
        s_mul_i32 s{S_T}, s{S_J}, 160
        v_lshl_add_u32 v13, v13, 1, s{S_T}""")
        for b in range(5):
            k(f"global_load_ushort v{KR+b}, v13, {ptr(1)} offset:{32*b}")
            k(f"global_load_ushort v{KI+b}, v13, {ptr(2)} offset:{32*b}")
            vec_tok = k(f"global_load_ushort v{ZR+b}, v13, {ptr(7)} offset:{32*b}")
        dma_stage(1)
        U1, U2, D1, D2, SRC2 = 57, 58, 59, 60, 56
        self.srd(SRD_T2, 12, 1966080)
        k(f"""s_sub_u32 s{S_T}, s{S_PW}, 480
        s_cmp_lt_u32 s{S_PW}, 480
        s_cselect_b32 s{U1}, s{S_PW}, s{S_T}
        s_mul_i32 s{S_T+2}, s{U1}, 6554
        s_lshr_b32 s{S_T+2}, s{S_T+2}, 16        ; s = unit/10
        s_mul_i32 s{S_T}, s{S_T+2}, 10
        s_sub_u32 s{S_T}, s{U1}, s{S_T}          ; cg
        s_mul_i32 s{S_T+1}, s{S_T+2}, {32*1280}
        s_lshl_b32 s{S_T+3}, s{S_T}, 7
        s_add_u32 s{S_T+1}, s{S_T+1}, s{S_T+3}
        s_mul_i32 s{S_T+3}, s{S_T}, {4*48}
        s_add_u32 s{S_T+3}, s{S_T+3}, s{S_T+2}
        s_lshl_b32 s{S_T+3}, s{S_T+3}, 10
        s_add_u32 s{D1}, s{S_T+3}, {WS_B2S[1]}
        v_lshrrev_b32 v{PV}, 3, v0
        v_mul_u32_u24 v{PV}, 1280, v{PV}
        v_and_b32 v13, 7, v0
        v_lshl_add_u32 v{PV}, v13, 4, v{PV}
        v_lshlrev_b32 v{self.LV}, 4, v0""")
        for e in range(4):
            k(f"s_add_u32 m0, s{S_MX}, {e*1024}")
            k(f"s_add_u32 s{S_T+2}, s{S_T+1}, {e*8*1280}")
            sw1_tok = k(f"buffer_load_dwordx4 v{PV}, {s(SRD_T2,4)}, s{S_T+2} offen lds")
        k(f"""s_sub_u32 s{S_T}, s{S_PW}, 400
        s_cmp_lt_u32 s{S_PW}, 400
        s_cselect_b32 s{U2}, s{S_PW}, s{S_T}
        s_mul_i32 s{S_T+2}, s{U2}, 6554
        s_lshr_b32 s{S_T+2}, s{S_T+2}, 16        ; c' = unit/10
        s_mul_i32 s{S_T}, s{S_T+2}, 10
        s_sub_u32 s{S_T}, s{U2}, s{S_T}          ; u
        s_mul_i32 s{S_T+1}, s{S_T+2}, {16*1280}
        s_lshl_b32 s{S_T+3}, s{S_T}, 7
        s_add_u32 s{SRC2}, s{S_T+1}, s{S_T+3}
        s_mul_i32 s{S_T+3}, s{S_T+2}, 40
        s_lshl_b32 s{S_T+4}, s{S_T}, 2
        s_add_u32 s{S_T+3}, s{S_T+3}, s{S_T+4}
        s_lshl_b32 s{S_T+3}, s{S_T+3}, 10
        s_add_u32 s{D2}, s{S_T+3}, {WS_B2S[0]}""")
        self.make_tag()
        self.rowstat_finish(rs_tok, S_T+7)
        dma_stage(2)
        self.srd(SRD_T1, 5, 819200)
        self.srd(SRD_OUT, 6, 819200)
        k(f"""v_and_b32 v11, 15, v0
        v_lshrrev_b32 v12, 4, v0
        v_lshrrev_b32 v13, 1, v11
        v_xor_b32 v13, v13, v12
        v_lshlrev_b32 v13, 4, v13
        v_lshl_add_u32 v{RD0}, v11, 7, v13
        v_xor_b32 v{RD1}, 64, v{RD0}""")
        k.wait_vm(vec_tok)
        T = 40
        for b in range(5):
            k(f"""v_lshlrev_b32 v{ZR+b}, 16, v{ZR+b}
            v_lshlrev_b32 v{KR+b}, 16, v{KR+b}
            v_lshlrev_b32 v{KI+b}, 16, v{KI+b}
            v_mul_f32 v{ZR+b}, {fbits(LOG2E)}, v{ZR+b}""")
        for b in range(5): k(f"v_exp_f32 v{ZR+b}, v{ZR+b}")
        for b in range(5):
            k(f"""v_cvt_pk_bf16_f32 v{ZR+b}, v{ZR+b}, v{ZR+b}
            v_and_b32 v{ZR+b}, 0xffff0000, v{ZR+b}
            v_mul_f32 v{ZI+b}, v{ZR+b}, v{KI+b}
            v_mul_f32 v{ZR+b}, v{ZR+b}, v{KR+b}
            v_mul_f32 v{ZI+b}, 0.15915494, v{ZI+b}
            v_mul_f32 v{ZR+b}, {fbits(LOG2E)}, v{ZR+b}""")
        k(f"""s_lshl_b32 s{S_T}, s{S_W}, 2
        v_add_u32 v13, s{S_T}, v12
        v_sub_u32 v13, 15, v13
        v_lshlrev_b32 v13, 3, v13
        v_cvt_f32_u32 v13, v13""")
        self.emit(self.cpow5(LR, LI, "1.0", ZR, ZI, T))
        self.emit(self.cpow5(WR, WI, "v13", ZR, ZI, T))
        self.emit(self.csq5(L2R, L2I, LR, LI))
        self.emit(self.csq5(L4R, L4I, L2R, L2I))
        for b in range(5):
            k(f"""v_mul_f32 v{T+b}, v{KR+b}, v{KR+b}
            v_fma_f32 v{T+b}, v{KI+b}, v{KI+b}, v{T+b}""")
        for b in range(5): k(f"v_rcp_f32 v{T+b}, v{T+b}")
        for b in range(5):
            k(f"""v_add_f32 v{T+5}, -1.0, v{LR+b}
            v_add_f32 v{T+b}, v{T+b}, v{T+b}
            v_mul_f32 v{T+6}, v{T+5}, v{KR+b}
            v_mul_f32 v{T+7}, v{LI+b}, v{KR+b}
            v_fma_f32 v{T+6}, v{LI+b}, v{KI+b}, v{T+6}
            v_fma_f32 v{T+7}, -v{T+5}, v{KI+b}, v{T+7}
            v_mul_f32 v{KR+b}, v{T+6}, v{T+b}
            v_mul_f32 v{KI+b}, v{T+7}, v{T+b}""")
        def set_rd(t):
            base = STG0 + (t % 4)*STGS
            return [f"v_add_u32 v{RW0}, {base}, v{RD0}", f"v_add_u32 v{RX0}, s{S_MX}, v{RW0}",
                    f"v_add_u32 v{RW1}, {base}, v{RD1}", f"v_add_u32 v{RX1}, s{S_MX}, v{RW1}"]
        def reads(n):
            st = FR[n % 2]; ks = n % 2
            L = [f"ds_read_b128 {v(st+4*a_,4)}, v{RX0 if ks==0 else RX1} offset:{a_*2048}" for a_ in range(2)]
            L += [f"ds_read_b128 {v(st+8+4*tt,4)}, v{RW0 if ks==0 else RW1} offset:{16384+tt*2048}" for tt in range(10)]
            return L
        self.emit(set_rd(0))
        k.wait_vm(stage_tok[0])
        k("s_barrier")
        self.stamp(1)
        rtok = {}
        def mkreads(n):
            L = []
            for i, r in enumerate(reads(n)):
                def f(i=i, r=r): rtok[n, i] = k(r)
                L.append(f)
            return L
        self.emit(mkreads(0))
        tk = {}
        GW, GT = 96, 116
        dq = []
        for n in range(20):
            st = FR[n % 2]
            k.c(f"---- ssm k-step {n}")
            if n % 2 == 0 and n//2 + 3 < 10: dq += dma_list(n//2 + 3)
            extra = []
            if n == 1:
                def f():
                    k.wait_vm(sw1_tok)
                    k(f"""v_lshrrev_b32 v11, 5, v0
                    v_bfe_u32 v12, v0, 4, 1
                    v_lshlrev_b32 v11, 4, v11
                    v_lshl_add_u32 v11, v12, 2, v11
                    v_bfe_u32 v12, v0, 2, 2
                    v_add_u32 v11, v11, v12
                    v_lshlrev_b32 v11, 7, v11
                    v_and_b32 v12, 3, v0
                    v_lshl_add_u32 v11, v12, 3, v11
                    v_add_u32 v11, s{S_MX}, v11""")
                    for cc in range(4):
                        for e in range(2):
                            tk['r1'] = k(f"ds_read_b64_tr_b16 {a(200+4*cc+2*e,2)}, v11 offset:{e*1024+cc*32}")
                extra.append(f)
            if n == 2:
                for cc in range(4):
                    def f(cc=cc):
                        k.wait_lg(tk['r1'])
                        k(f"s_add_u32 s{S_T}, s{D1}, {cc*48*1024}")
                        tk['s1'] = k(f"buffer_store_dwordx4 {a(200+4*cc,4)}, v{self.LV}, {WS4}, s{S_T} offen sc1")
                    extra.append(f)
                for e in range(4):
                    def f(e=e):
                        k(f"s_add_u32 m0, s{S_MX}, {e*1024}")
                        k(f"s_add_u32 s{S_T}, s{SRC2}, {(e%2)*8*1280}")
                        tk['d2'] = k(f"buffer_load_dwordx4 v{PV}, {s(SRD_T1 if e < 2 else SRD_OUT,4)}, s{S_T} offen lds")
                    extra.append(f)
            if n == 5:
                def f():
                    k.wait_vm(tk['d2'])
                    k(f"""s_lshl_b32 s{S_T}, s{U1}, 6
                    s_add_u32 s{S_T}, s{S_T}, {WS_FB + 512*FLS}""")
                    self.set_flag(S_T, 13)
                    k(f"""v_and_b32 v11, 15, v0
                    v_lshlrev_b32 v11, 7, v11
                    v_lshrrev_b32 v12, 5, v0
                    v_lshl_add_u32 v11, v12, 11, v11
                    v_bfe_u32 v12, v0, 4, 1
                    v_lshl_add_u32 v11, v12, 4, v11
                    v_add_u32 v11, s{S_MX}, v11""")
                    for ss in range(4):
                        tk['r2'] = k(f"ds_read_b128 {a(200+4*ss,4)}, v11 offset:{32*ss}")
                extra.append(f)
            if n == 6:
                for ss in range(4):
                    def f(ss=ss):
                        k.wait_lg(tk['r2'])
                        tk['s2'] = k(f"buffer_store_dwordx4 {a(200+4*ss,4)}, v{self.LV}, {WS4}, s{D2} offen offset:{1024*ss} sc1")
                    extra.append(f)
            if n == 9:
                def f():
                    k.wait_vm(tk['s2'])
                    k(f"""s_lshl_b32 s{S_T}, s{U2}, 6
                    s_add_u32 s{S_T}, s{S_T}, {WS_FB}""")
                    self.set_flag(S_T, 13)
                extra.append(f)
            if n == 10:
                extra += self.b2_setup(0, PV)
            if n == 12:
                def f(): tk['pb'] = k(f"buffer_load_dword v15, v{PV}, {WS4}, s{S_T+12} offen sc1")
                extra.append(f)
            if n == 14:
                def f():
                    k(f"""s_mul_i32 s{S_T}, s{S_J}, 2560
                    s_add_u32 s{S_T}, s{S_T}, {WS_WSG}
                    s_lshl_b32 s{S_T+1}, s{S_I}, 11
                    s_lshl_b32 s{S_T+2}, s{S_W}, 9
                    s_add_u32 s{S_T+1}, s{S_T+1}, s{S_T+2}
                    s_add_u32 s{S_T+1}, s{S_T+1}, {WS_STG}""")
                    self.gran_dma(S_T, tk)
                extra.append(f)
                def f():
                    k.wait_vm(tk['pb'])
                    def rl():
                        k(f"buffer_load_dword v15, v{PV}, {WS4}, s{S_T+12} offen sc1\ns_waitcnt vmcnt(0)")
                    self.verify(lambda: k(f"v_cmp_ne_u32 vcc, s{S_TAG}, v15"), rl, "pb")
                extra.insert(0, f)
            if n == 15:
                extra += [f"v_lshl_add_u32 v11, v0, 4, 0\ns_lshl_b32 s{S_T}, s{S_W}, 10", f"v_add_u32 v11, s{S_T}, v11\nv_mov_b32 v12, 0",
                          f"v_add_u32 v11, {SSM_LB}, v11\nv_mov_b32 v13, 0", "v_mov_b32 v14, 0\nv_mov_b32 v15, 0", "ds_write_b128 v11, v[12:15]"]
            mem = []
            nd = 5 if n % 2 == 0 else 4
            while dq and nd > 0:
                mem.append(dq.pop(0)); nd -= 1
            if n >= 14: mem += [[None, f] for f in self.b2_take(4 if n > 14 else 0)]
            rd = mkreads(n+1) if n + 1 < 20 else []
            tail = []
            slots = [[] for _ in range(20)]
            if n % 2 == 0:
                rslots = [0, 1, 2, 4, 5, 6, 8, 9, 10, 12, 13, 14]; mslots = [3, 7, 11, 15, 18]
            else:
                rslots = list(range(4, 16)); mslots = [0, 2, 16, 18]
                if n + 1 < 20:
                    T_ = (n + 1)//2
                    def f(T_=T_):
                        k.wait_both(stage_tok[T_], k.lg_issued)
                        k("s_barrier")
                    sr = set_rd(T_)
                    slots[1] += sr[:2]; slots[3] += [f]; slots[17] += sr[2:]
            if n == 19:
                def f():
                    k.wait_vm(tk['gr'])
                    k(f"""v_and_b32 v11, 15, v0
                    v_lshl_add_u32 v12, v11, 4, s{S_MX}
                    v_lshrrev_b32 v14, 4, v0
                    v_lshlrev_b32 v13, 7, v14
                    v_add_u32 v13, s{S_MX}, v13""")
                slots[0] += [f]
                rd = self.gran_reads(GW, GT); tail = [rd.pop()]
                rslots = [1, 2, 3, 4, 5, 6, 7, 8, 9, 10, 11, 12, 13, 14, 15, 16, 17]; mslots = [0, 5, 10, 15]
            for sl, r in zip(rslots, rd): slots[sl].append(r)
            for sl, (m, ld) in zip(mslots, mem):
                if m:
                    if sl > 0: slots[sl-1].append(m)
                    else: k(m)
                slots[sl].insert(0, ld)
            assert len(mem) <= len(mslots) and len(rd) <= len(rslots)
            free = [i for i in range(20) if not slots[i]]
            for i in free:
                if extra: slots[i].append(extra.pop(0))
            slots[19] += extra + tail
            i = 0
            for tt in range(10):
                for a_ in range(2):
                    k.wait_lg(max(rtok[n, a_], rtok[n, 2+tt]))
                    c_ = "0" if n == 0 else v(acc(a_, tt), 4)
                    k(f"v_mfma_f32_16x16x32_bf16 {v(acc(a_,tt),4)}, {v(st+4*a_,4)}, {v(st+8+4*tt,4)}, {c_}")
                    self.emit(slots[i]); i += 1
        assert not dq
        k.c('loop end')
        self.stamp(2)
        if self.early_stop("loop"): return
        self.ssm_epilogue(ACC, GW, GT, LR, LI, L2R, L2I, L4R, L4I, WR, WI, ZR, ZI, KR, KI)

    def gran_dma(self, so, tk):
        k = self.k
        k(f"s_mov_b32 m0, s{S_MX}")
        for q in range(3):
            k(f"buffer_load_dwordx4 v{self.LV}, {WS4}, s{so} offen offset:{1024*q} sc1 lds")
        k(f"s_add_u32 m0, s{S_MX}, 3072")
        tk['gr'] = k(f"buffer_load_dwordx4 v{self.LV}, {WS4}, s{so+1} offen sc1 lds")
    def gran_reads(self, GW, GT):
        L = [f"ds_read_b64 {v(GW+2*tt,2)}, v12 offset:{256*tt}" for tt in range(10)]
        L += [f"ds_read_b128 {v(GT+4*r,4)}, v13 offset:{3072+16*r}" for r in range(8)]
        return L

    def ssm_epilogue(self, ACC, GW, GT, LR, LI, L2R, L2I, L4R, L4I, WR, WI, ZR, ZI, KR, KI):
        k = self.k
        acc = lambda a_, tt: ACC + (a_*10 + tt)*4
        tok = lambda r, tt: acc(r//4, tt) + r % 4
        LB = SSM_LB
        L_AGG, L_CAR, L_WAG, L_ES = 0, 640, 1280, 4096
        AT, BT = 148, 156
        TM = 164
        SEG = 15
        def bc(r): return v(r & ~1, 2), r & 1
        k.c("================ SSM epilogue")
        k("s_waitcnt lgkmcnt(0)")
        def check():
            k(f"v_xor_b32 v{TM}, s{S_TAG}, v{GW+1}")
            for tt in range(1, 10): k(f"v_bitop3_b32 v{TM}, s{S_TAG}, v{GW+2*tt+1}, v{TM} bitop3:0xbe")
            for r in range(8): k(f"v_bitop3_b32 v{TM}, s{S_TAG}, v{GT+4*r+1}, v{TM} bitop3:0xbe")
            k(f"v_cmp_ne_u32 vcc, 0, v{TM}")
        def reload():
            d = {}
            k(f"""s_mul_i32 s{S_T}, s{S_J}, 2560
            s_add_u32 s{S_T}, s{S_T}, {WS_WSG}
            s_lshl_b32 s{S_T+1}, s{S_I}, 11
            s_lshl_b32 s{S_T+2}, s{S_W}, 9
            s_add_u32 s{S_T+1}, s{S_T+1}, s{S_T+2}
            s_add_u32 s{S_T+1}, s{S_T+1}, {WS_STG}""")
            self.gran_dma(S_T, d)
            k("s_waitcnt vmcnt(0)")
            self.emit(self.gran_reads(GW, GT))
            k("s_waitcnt lgkmcnt(0)")
        self.verify(check, reload, "pg")
        k(f"""s_mov_b32 s{S_T}, {fbits(1.0/640)}
        s_lshl_b32 s{S_T+1}, s{S_W}, 8
        v_lshlrev_b32 v13, 6, v14
        v_add_u32 v13, s{S_T+1}, v13
        v_add_u32 v13, {LDS_STAT}, v13""")
        for r in range(8): k(f"v_mul_f32 v{GT+4*r}, s{S_T}, v{GT+4*r}")
        for r in range(8): k(f"v_mul_f32 v{TM+r}, v{GT+4*r}, v{GT+4*r}")
        for r in range(8): k(f"v_fma_f32 v{TM+r}, v{GT+4*r+2}, s{S_T}, -v{TM+r}")
        for r in range(8): k(f"v_max_f32 v{TM+r}, 0, v{TM+r}")
        for r in range(8): k(f"v_add_f32 v{TM+r}, {fbits(EPS)}, v{TM+r}")
        for r in range(8): k(f"v_rsq_f32 v{AT+r}, v{TM+r}")
        for r in range(8): k(f"v_mul_f32_e64 v{BT+r}, v{GT+4*r}, -v{AT+r}")
        for r in range(8): k(f"ds_write2_b32 v13, v{GT+4*r}, v{AT+r} offset0:{2*r} offset1:{2*r+1}")
        for tt in range(10):
            for a_ in range(2):
                for h in range(2):
                    t_ = TM + 2*(a_*2 + h) + 8*(tt % 2)
                    k(f"v_pk_mul_f32 {v(t_,2)}, {v(BT+4*a_+2*h,2)}, {v(GW+2*tt,2)} op_sel_hi:[1,0]")
            for a_ in range(2):
                for h in range(2):
                    d = acc(a_, tt) + 2*h; t_ = TM + 2*(a_*2 + h) + 8*(tt % 2)
                    k(f"v_pk_fma_f32 {v(d,2)}, {v(AT+4*a_+2*h,2)}, {v(d,2)}, {v(t_,2)}")
        V1 = 96
        EE = 136
        def pkc(dr, di, ar, ai, cr_, ci_, lr, li):
            (pr, sr), (pi, si) = bc(lr), bc(li)
            return [f"v_pk_fma_f32 {v(dr,2)}, {v(ar,2)}, {pr}, {v(cr_,2)} op_sel:[0,{sr},0] op_sel_hi:[1,{sr},1]",
                    f"v_pk_fma_f32 {v(di,2)}, {v(ai,2)}, {pr}, {v(ci_,2)} op_sel:[0,{sr},0] op_sel_hi:[1,{sr},1]",
                    f"v_pk_fma_f32 {v(dr,2)}, {v(ai,2)}, {pi}, {v(dr,2)} op_sel:[0,{si},0] op_sel_hi:[1,{si},1] neg_lo:[1,0,0] neg_hi:[1,0,0]",
                    f"v_pk_fma_f32 {v(di,2)}, {v(ar,2)}, {pi}, {v(di,2)} op_sel:[0,{si},0] op_sel_hi:[1,{si},1]"]
        LL = []
        for b in range(5):
            for h in range(2):
                LL.append(pkc(V1+8*b+2*h, V1+8*b+4+2*h, acc(0,b)+2*h, acc(0,5+b)+2*h, acc(1,b)+2*h, acc(1,5+b)+2*h, L4R+b, L4I+b))
        for i in range(4):
            for x in LL: k(x[i])
        LL = [pkc(V1+8*b+2, V1+8*b+6, V1+8*b, V1+8*b+4, V1+8*b+2, V1+8*b+6, L2R+b, L2I+b) for b in range(5)]
        for i in range(4):
            for x in LL: k(x[i])
        for b in range(5):
            k(f"v_fma_f32 v{EE+2*b}, v{LR+b}, v{V1+8*b+2}, v{V1+8*b+3}")
            k(f"v_fma_f32 v{EE+2*b+1}, v{LR+b}, v{V1+8*b+6}, v{V1+8*b+7}")
        for b in range(5):
            k(f"v_fma_f32 v{EE+2*b}, -v{LI+b}, v{V1+8*b+6}, v{EE+2*b}")
            k(f"v_fma_f32 v{EE+2*b+1}, v{LI+b}, v{V1+8*b+2}, v{EE+2*b+1}")
        k(f"""v_lshl_add_u32 v12, v11, 3, 0
        v_add_u32 v12, {LB}, v12
        s_lshl_b32 s{S_T}, s{S_W}, 2
        v_add_u32 v{SEG}, s{S_T}, v14""")
        for b in range(5):
            k(f"v_mul_f32 v{TM+b}, v{WR+b}, v{EE+2*b}\nv_mul_f32 v{TM+5+b}, v{WR+b}, v{EE+2*b+1}")
        for b in range(5):
            k(f"""v_fma_f32 v{TM+b}, -v{WI+b}, v{EE+2*b+1}, v{TM+b}
            v_fma_f32 v{TM+5+b}, v{WI+b}, v{EE+2*b}, v{TM+5+b}
            ds_add_f32 v12, v{TM+b} offset:{L_AGG+128*b}
            ds_add_f32 v12, v{TM+5+b} offset:{L_AGG+128*b+4}""")
        k(f"""s_mul_i32 s{S_T}, s{S_W}, 20
        v_add_u32 v13, s{S_T}, v0
        v_lshlrev_b32 v{TM+14}, 3, v13
        v_add_u32 v{TM+14}, {LB}, v{TM+14}
        v_mov_b32 v{TM+13}, s{S_TAG2}
        v_mov_b32 v{TM+11}, s{S_TAG}
        v_lshlrev_b32 v13, 4, v13
        s_lshl_b32 s{S_T}, s{S_J}, 4
        s_add_u32 s{S_T+1}, s{S_T}, s{S_I}
        s_mul_i32 s{S_T+1}, s{S_T+1}, 1280
        s_add_u32 s{S_T+1}, s{S_T+1}, {WS_AGG}
        s_waitcnt lgkmcnt(0)
        s_barrier
        ds_read_b32 v{TM+10}, v{TM+14} offset:{L_AGG}
        ds_read_b32 v{TM+12}, v{TM+14} offset:{L_AGG+4}
        s_mov_b64 exec, 0xfffff
        s_waitcnt lgkmcnt(0)
        buffer_store_dwordx4 {v(TM+10,4)}, v13, {WS4}, s{S_T+1} offen sc1
        s_mov_b64 exec, -1""")
        self.stamp(3)
        ER, EI = 96, 101; GR, GI = 106, 111; UR, UI = 116, 121; L8R, L8I = 126, 131
        YR, YI = 148, 153; L32R, L32I = 158, 163+1
        CR, CI = 170, 175; DR, DI = 180, 185
        T5 = 212
        work = []
        for b in range(5):
            work += [f"v_mov_b32 v{ER+b}, v{EE+2*b}", f"v_mov_b32 v{EI+b}, v{EE+2*b+1}"]
        work += [f"v_mul_u32_u24 v13, 768, v{SEG}", f"v_mul_u32_u24 v{TM}, 48, v11", f"v_add3_u32 v13, v13, v{TM}, 0",
                 f"v_add_u32 v13, {LB+L_ES}, v13"]
        work += [f"ds_write_b64 v13, {v(EE+2*b,2)} offset:{8*b}" for b in range(5)]
        work += self.csq5(L8R, L8I, L4R, L4I)
        work += [f"v_sub_u32 v10, 3, v14", f"v_lshlrev_b32 v10, 3, v10", f"v_cvt_f32_u32 v10, v10"]
        work += self.cpow5(GR, GI, "v10", ZR, ZI, T5)
        work += self.cmul5(YR, YI, GR, GI, ER, EI)
        work += [f"s_mul_i32 s{S_T}, s{S_W}, 640", f"v_add_u32 v10, s{S_T}, v12"]
        for b in range(5):
            work += [f"ds_add_f32 v10, v{YR+b} offset:{L_WAG+128*b}", f"ds_add_f32 v10, v{YI+b} offset:{L_WAG+128*b+4}"]
        work += self.csq5(GR, GI, L8R, L8I)
        work += self.csq5(L32R, L32I, GR, GI)
        work += [f"v_lshlrev_b32 v9, 3, v14", f"v_cvt_f32_u32 v9, v9"]
        work += self.cpow5(UR, UI, "v9", ZR, ZI, T5)
        for b in range(5):
            (kr, sr), (ki, si) = bc(KR+b), bc(KI+b)
            for h in range(4):
                ur = tok(2*h, b); ui = tok(2*h, 5+b); t_ = 202 + 4*(h % 2)
                work += [f"v_pk_mul_f32 {v(t_,2)}, {v(ur,2)}, {kr} op_sel:[0,{sr}] op_sel_hi:[1,{sr}]",
                         f"v_pk_mul_f32 {v(t_+2,2)}, {v(ur,2)}, {ki} op_sel:[0,{si}] op_sel_hi:[1,{si}]",
                         f"v_pk_fma_f32 {v(ur,2)}, {v(ui,2)}, {ki}, {v(t_,2)} op_sel:[0,{si},0] op_sel_hi:[1,{si},1] neg_lo:[1,0,0] neg_hi:[1,0,0]",
                         f"v_pk_fma_f32 {v(ui,2)}, {v(ui,2)}, {kr}, {v(t_+2,2)} op_sel:[0,{sr},0] op_sel_hi:[1,{sr},1]"]
        q = self.b2_take(len(self.b2q))
        step = max(1, len(work)//(len(q) + 1))
        for i, w_ in enumerate(work):
            k(w_)
            if i % step == step - 1 and q: q.pop(0)()
        assert not q
        k("s_waitcnt lgkmcnt(0)\ns_barrier")
        GB = 222
        GB = 136
        k(f"""v_mul_u32_u24 v9, 1280, v{SEG}
        v_lshl_add_u32 v9, v11, 4, v9
        s_mul_i32 s{S_T+4}, s{S_J}, {16*1280}
        s_add_u32 s{S_T+4}, s{S_T+4}, {WS_AGG}
        v_cmp_gt_u32 {s(S_T+2,2)}, s{S_I}, v{SEG}""")
        EB = 202
        for b in range(5): k(f"v_mov_b32 v{CR+b}, 0\nv_mov_b32 v{CI+b}, 0\nv_mov_b32 v{DR+b}, 0\nv_mov_b32 v{DI+b}, 0")
        def horner(cr, ci, lr, li, eb):
            for b in range(5):
                k(f"v_fmac_f32 v{eb+2*b}, v{lr+b}, v{cr+b}\nv_fmac_f32 v{eb+2*b+1}, v{lr+b}, v{ci+b}")
            for b in range(5):
                k(f"v_fmac_f32 v{eb+2*b+1}, v{li+b}, v{cr+b}")
            for b in range(5):
                k(f"v_fma_f32 v{cr+b}, -v{li+b}, v{ci+b}, v{eb+2*b}\nv_mov_b32 v{ci+b}, v{eb+2*b+1}")
        k(f"v_subrev_u32 v13, {768*3}, v13\nv_subrev_u32 v10, {640*3}, v10")
        masks = {3: ("0", "0xffff0000"), 2: ("0", "-1"), 1: ("0xffff0000", "-1")}
        gtok = None
        for d in (3, 2, 1):
            lo, hi = masks[d]
            k(f"s_mov_b32 exec_lo, {lo}\ns_mov_b32 exec_hi, {hi}")
            k(f"""ds_read_b128 {v(EB,4)}, v13 offset:{768*(3-d)}
            ds_read_b128 {v(EB+4,4)}, v13 offset:{768*(3-d)+16}""")
            t1 = k(f"ds_read_b64 {v(EB+8,2)}, v13 offset:{768*(3-d)+32}")
            k(f"s_cmp_ge_u32 s{S_W}, {d}\ns_cselect_b64 exec, -1, 0")
            for b in range(5):
                t2 = k(f"ds_read_b64 {v(EB+10+2*b,2)}, v10 offset:{L_WAG+640*(3-d)+128*b}")
            if d == 2:
                k("s_mov_b64 exec, -1")
                for b in range(5):
                    gtok = k(f"buffer_load_dwordx4 {v(GB+4*b,4) if b < 3 else v(222+4*(b-3),4)}, v9, {WS4}, s{S_T+4} offen offset:{256*b} sc1")
            k(f"s_mov_b32 exec_lo, {lo}\ns_mov_b32 exec_hi, {hi}")
            k.wait_lg(t1)
            horner(CR, CI, L8R, L8I, EB)
            k(f"s_cmp_ge_u32 s{S_W}, {d}\ns_cselect_b64 exec, -1, 0")
            k.wait_lg(t2)
            horner(DR, DI, L32R, L32I, EB+10)
        k("s_mov_b64 exec, -1")
        greg = lambda b: GB+4*b if b < 3 else 222+4*(b-3)
        self.emit(self.cmul5(CR, CI, UR, UI, DR, DI, CR, CI))
        VR, VI = 96, 101; QR, QI = 106, 111
        k(f"v_lshlrev_b32 v10, 3, v{SEG}\nv_cvt_f32_u32 v10, v10")
        self.emit(self.cpow5(UR, UI, "v10", ZR, ZI, T5))
        self.emit(self.cmul5(VR, VI, KR, KI, UR, UI))
        self.emit(self.cmul5(DR, DI, KR, KI, CR, CI))
        k(f"""s_sub_u32 s{S_T}, s{S_I}, 1
        v_sub_u32 v10, s{S_T}, v{SEG}
        v_max_i32 v10, 0, v10
        v_lshlrev_b32 v10, 7, v10
        v_cvt_f32_u32 v10, v10""")
        self.emit(self.cpow5(QR, QI, "v10", ZR, ZI, T5))
        self.stamp(4)
        k.wait_vm(gtok)
        def check():
            k(f"v_xor_b32 v10, s{S_TAG}, v{greg(0)+1}")
            for b in range(5):
                if b: k(f"v_bitop3_b32 v10, s{S_TAG}, v{greg(b)+1}, v10 bitop3:0xbe")
                k(f"v_bitop3_b32 v10, s{S_TAG2}, v{greg(b)+3}, v10 bitop3:0xbe")
            k(f"v_cmp_ne_u32 vcc, 0, v10\ns_and_b64 vcc, vcc, {s(S_T+2,2)}")
        def reload():
            for b in range(5):
                k(f"buffer_load_dwordx4 {v(greg(b),4)}, v9, {WS4}, s{S_T+4} offen offset:{256*b} sc1")
            k("s_waitcnt vmcnt(0)")
        self.verify(check, reload, "pc")
        self.stamp(5)
        k(f"s_mov_b64 exec, {s(S_T+2,2)}")
        for b in range(5):
            er, ei = greg(b), greg(b)+2
            k(f"v_mul_f32 v{er+1}, v{QR+b}, v{er}\nv_mul_f32 v{ei+1}, v{QR+b}, v{ei}")
        for b in range(5):
            er, ei = greg(b), greg(b)+2
            k(f"""v_fma_f32 v{er+1}, -v{QI+b}, v{ei}, v{er+1}
            v_fma_f32 v{ei+1}, v{QI+b}, v{er}, v{ei+1}
            ds_add_f32 v12, v{er+1} offset:{L_CAR+128*b}
            ds_add_f32 v12, v{ei+1} offset:{L_CAR+128*b+4}""")
        k(f"""s_mov_b64 exec, -1
        s_mul_i32 s{S_T}, s{S_W}, {RED_W}
        s_add_u32 s{S_T}, s{S_T}, {LDS_RED}
        v_mul_u32_u24 v13, 80, v11
        v_lshl_add_u32 v13, v14, 4, v13
        v_add_u32 v13, s{S_T}, v13
        v_lshrrev_b32 v10, 2, v11
        v_lshl_add_u32 v10, v14, 3, v10
        v_mul_u32_u24 v10, 80, v10
        v_and_b32 v9, 3, v11
        v_lshl_add_u32 v10, v9, 3, v10
        v_add_u32 v10, s{S_T}, v10
        s_lshl_b32 s{S_T}, s{S_I}, 3
        s_lshl_b32 s{S_T+1}, s{S_W}, 1
        s_add_u32 s{S_T}, s{S_T}, s{S_T+1}
        s_mul_i32 s{S_T}, s{S_T}, 40
        s_mul_i32 s{S_T+1}, s{S_J}, 5
        s_add_u32 s{S_T}, s{S_T}, s{S_T+1}
        s_lshl_b32 s{S_T}, s{S_T}, 10
        s_add_u32 s{S_T}, s{S_T}, {WS_A2[0]}
        s_add_u32 s{S_T+1}, s{S_T}, 4096
        s_add_u32 s{S_T+2}, s{S_T}, {40*1024}
        s_add_u32 s{S_T+3}, s{S_T}, {40*1024+4096}
        s_waitcnt lgkmcnt(0)
        s_barrier""")
        for b in range(5):
            k(f"ds_read2_b32 {v(EB+2*b,2)}, v12 offset0:{(L_CAR+128*b)//4} offset1:{(L_CAR+128*b)//4+1}" if False else
              f"ds_read_b64 {v(EB+2*b,2)}, v12 offset:{L_CAR+128*b}")
        k("s_waitcnt lgkmcnt(0)")
        for b in range(5):
            k(f"v_fmac_f32 v{DR+b}, v{VR+b}, v{EB+2*b}\nv_fmac_f32 v{DI+b}, v{VR+b}, v{EB+2*b+1}")
        for b in range(5):
            k(f"v_fma_f32 v{DR+b}, -v{VI+b}, v{EB+2*b+1}, v{DR+b}\nv_fmac_f32 v{DI+b}, v{VI+b}, v{EB+2*b}")
        for r in range(8):
            pr = lambda b: DR+b if r == 0 else tok(r-1, b)
            pi = lambda b: DI+b if r == 0 else tok(r-1, 5+b)
            for b in range(5):
                k(f"v_fmac_f32 v{tok(r,b)}, v{LR+b}, v{pr(b)}\nv_fmac_f32 v{tok(r,5+b)}, v{LR+b}, v{pi(b)}")
            for b in range(5):
                k(f"v_fma_f32 v{tok(r,b)}, -v{LI+b}, v{pi(b)}, v{tok(r,b)}\nv_fmac_f32 v{tok(r,5+b)}, v{LI+b}, v{pr(b)}")
        PK = 96; FRG = 136
        last = None
        for b in range(5):
            for comp in range(2):
                d = PK + 4*(2*b + comp); ng = "-" if comp else ""
                for h in range(4):
                    k(f"v_cvt_pk_bf16_f32 v{d+h}, {ng}v{tok(2*h,5*comp+b)}, {ng}v{tok(2*h+1,5*comp+b)}")
                wt = k(f"ds_write_b128 v13, {v(d,4)} offset:{(32*b+16*comp)*80}")
            if b >= 1:
                pass
        k("s_waitcnt lgkmcnt(0)")
        toks = []
        for b in range(5):
            for tt2 in range(2):
                d = FRG + 4*(2*b + tt2)
                k(f"ds_read_b64_tr_b16 {v(d,2)}, v10 offset:{(32*b)*80+32*tt2}")
                toks.append(k(f"ds_read_b64_tr_b16 {v(d+2,2)}, v10 offset:{(32*b+4)*80+32*tt2}"))
        for b in range(5):
            for tt2 in range(2):
                d = FRG + 4*(2*b + tt2)
                k.wait_lg(toks[2*b+tt2])
                so = S_T + 2*tt2 + (1 if b == 4 else 0)
                last = k(f"buffer_store_dwordx4 {v(d,4)}, v{self.LV}, {WS4}, s{so} offen offset:{1024*(b%4)} sc1")
        self.stamp(6)
        self.p2_addr(0)
        k(f"s_add_u32 s{S_T}, s{S_FLAG}, {WS_FA}")
        k.wait_vm(last)
        self.set_flag(S_T, 13)
        self.stamp(7)
        self.p2_poll_issue()
        self.phase2(0, 0)

    def mlp(self):
        k = self.k
        ACC = 16; WSA = 112; ONE = 136; FR = [140, 168]
        B1R = 196; GS = 198
        XE, XO, W0 = 3, 2, 4
        RA, AE, AO = 7, 8, 9
        RXB, AEB, AOB = 202, 206, 210
        self.LV = 252; PV = 253
        STGS = 40960
        k.label("L_mlp")
        k.c("================ MLP side, phase 1")
        k(f"""s_min_u32 s{S_T+2}, s{S_W}, 2
        s_lshl_b32 s{S_T+2}, s{S_T+2}, 2
        s_lshl_b32 s{S_T}, s{S_I}, 7
        s_lshl_b32 s{S_T+1}, s{S_J}, 4
        s_add_u32 s{S_T}, s{S_T}, s{S_T+1}
        s_add_u32 s{S_T}, s{S_T}, s{S_T+2}
        s_add_u32 s{S_T}, s{S_T}, 4
        s_lshl_b32 s{S_T+7}, s{S_T}, 4
        s_add_u32 s{S_T+7}, s{S_T+7}, {WS_STG}
        s_mov_b32 s{S_T+1}, 3""")
        rs_tok = self.rowstat_loads(SRD_X, S_T, S_T+1)
        self.srd(SRD_W, 10, 1966080)
        k(f"""v_xor_b32 v{XO}, 64, v{XE}
        s_add_u32 s{S_XO+1}, s{S_XO}, {8*1280}
        s_add_u32 s{S_XO+2}, s{S_XO}, {16*1280}
        s_add_u32 s{S_XO+3}, s{S_XO}, {24*1280}
        s_mul_i32 s{S_MW}, s{S_W}, 6144
        s_mul_i32 s{S_WO}, s{S_W}, {16*3072}
        s_mul_i32 s{S_T}, s{S_J}, 384
        s_add_u32 s{S_WO}, s{S_WO}, s{S_T}""")
        for n in range(3):
            k(f"""v_add_u32 v10, {64*n}, v0
            v_mul_u32_u24 v12, 2731, v10
            v_lshrrev_b32 v12, 16, v12
            v_mul_u32_u24 v13, 24, v12
            v_sub_u32 v13, v10, v13
            v_bfe_u32 v15, v12, 1, 1
            v_lshlrev_b32 v15, 2, v15
            v_xor_b32 v13, v13, v15
            v_mul_u32_u24 v12, 3072, v12
            v_lshl_add_u32 v{W0+n}, v13, 4, v12""")
        stage_tok = {}
        def dma_list(t):
            base = (t % 4)*STGS
            L = []
            def mk(m, ld):
                def f(): stage_tok[t] = k(ld)
                return [m, f]
            for n in range(6):
                L.append(mk(f"s_add_u32 m0, s{S_MW}, {base + n*1024}\ns_add_u32 s{S_WO+1}, s{S_WO}, {(t*64 + 8*(n//3))*3072}",
                            f"buffer_load_dwordx4 v{W0+n%3}, {s(SRD_W,4)}, s{S_WO+1} offen lds"))
            for e in range(4):
                L.append(mk(f"s_add_u32 m0, s{S_MX}, {base + 24576 + e*1024 - t*128}",
                            f"buffer_load_dwordx4 v{XE if e%2==0 else XO}, {s(SRD_X,4)}, s{S_XO+e} offen offset:{t*128} lds"))
            return L
        def dma_stage(t):
            for p in dma_list(t): self.emit(p)
        dma_stage(0)
        k(f"""v_min_u32 v10, 47, v0
        s_mul_i32 s{S_T}, s{S_J}, 192
        s_mul_i32 s{S_T+1}, s{S_W}, 48
        s_add_u32 s{S_T}, s{S_T}, s{S_T+1}
        v_add_lshl_u32 v10, v10, s{S_T}, 1
        global_load_ushort v{B1R}, v10, {ptr(11)}""")
        dma_stage(1)
        self.make_tag()
        self.rowstat_finish(rs_tok, S_T+7)
        dma_stage(2)
        k(f"""v_and_b32 v11, 31, v0
        v_lshrrev_b32 v12, 5, v0                 ; h
        v_bfe_u32 v13, v0, 1, 3
        v_xor_b32 v13, v13, v12
        v_lshlrev_b32 v13, 4, v13
        v_lshl_add_u32 v13, v11, 7, v13
        v_add_u32 v10, s{S_MX}, v13
        v_bfe_u32 v13, v0, 2, 2                  ; r
        v_lshl_add_u32 v14, v12, 3, v13
        v_mul_u32_u24 v14, 384, v14
        v_bfe_u32 v15, v0, 4, 1
        v_lshl_add_u32 v14, v15, 5, v14
        v_and_b32 v15, 3, v0
        v_lshl_add_u32 v14, v15, 3, v14
        v_bfe_u32 v13, v0, 3, 1                  ; rbit
        v_lshlrev_b32 v13, 6, v13
        v_add_u32 v15, v14, v13
        v_sub_u32 v14, v14, v13
        v_mov_b32 v{ONE}, 0x3f803f80
        v_mov_b32 v{ONE+1}, 0x3f803f80
        v_lshlrev_b32 v{self.LV}, 4, v0""")
        for ls in range(4):
            k(f"""s_add_u32 s{S_T}, s{S_W}, {ls}
            s_and_b32 s{S_T}, s{S_T}, 3
            s_lshl_b32 s{S_T+1}, s{S_T}, 5
            s_mul_i32 s{S_T}, s{S_T}, 6144
            v_xor_b32 v{RXB+ls}, s{S_T+1}, v10
            v_add_u32 v{AEB+ls}, s{S_T}, v15
            v_add_u32 v{AOB+ls}, s{S_T}, v14""")
        def reads(n):
            st = FR[n % 2]; ls = n % 4; base = ((n//4) % 4)*STGS
            L = [f"v_add_u32 v{AE}, {base}, v{AEB+ls}\nv_add_u32 v{RA}, {base+24576}, v{RXB+ls}",
                 f"v_add_u32 v{AO}, {base}, v{AOB+ls}\nds_read_b128 {v(st,4)}, v{RA}"]
            for T in range(6):
                for e in range(2):
                    L.append(f"ds_read_b64_tr_b16 {v(st+4+4*T+2*e,2)}, v{AE if T%2==0 else AO} offset:{4*e*384+T*64}")
            return L
        k.wait_vm(stage_tok[0])
        k("s_barrier")
        self.stamp(1)
        rtok = {}
        def mkreads(n):
            L = []
            for i, r in enumerate(reads(n)):
                def f(i=i, r=r): rtok[n, i] = k(r)
                L.append(f)
            return L
        self.emit(mkreads(0))
        L_WS = 110592
        dq = []; tk = {}
        for n in range(40):
            st = FR[n % 2]
            k.c(f"---- mlp k-step {n}")
            if n % 4 == 0 and n//4 + 3 < 10: dq += dma_list(n//4 + 3)
            extra = []
            if n == 20: extra += self.b2_setup(1, PV)
            if n == 25:
                def f(): tk['pb'] = k(f"buffer_load_dword v15, v{PV}, {WS4}, s{S_T+12} offen sc1")
                extra.append(f)
            if n == 28:
                def f():
                    k.wait_vm(tk['pb'])
                    def rl(): k(f"buffer_load_dword v15, v{PV}, {WS4}, s{S_T+12} offen sc1\ns_waitcnt vmcnt(0)")
                    self.verify(lambda: k(f"v_cmp_ne_u32 vcc, s{S_TAG}, v15"), rl, "pb")
                extra.append(f)
                extra += [f"v_min_u32 v11, 47, v0\ns_mul_i32 s{S_T}, s{S_W}, 48", f"v_add_lshl_u32 v11, v11, s{S_T}, 2",
                          f"v_add_u32 v11, {L_WS}, v11\nv_lshlrev_b32 v{B1R}, 16, v{B1R}", f"v_mov_b32 v12, 0\nds_write_b32 v11, v12",
                          f"ds_write_b32 v11, v{B1R} offset:768"]
            if n == 30:
                def f():
                    k(f"""v_and_b32 v{PV}, 31, v0
                    v_lshlrev_b32 v{PV}, 4, v{PV}
                    s_lshl_b32 s{S_T+12}, s{S_I}, 11
                    s_lshl_b32 s{S_T+13}, s{S_W}, 9
                    s_add_u32 s{S_T+12}, s{S_T+12}, s{S_T+13}
                    s_add_u32 s{S_T+12}, s{S_T+12}, {WS_STG}""")
                    tk['gs'] = k(f"buffer_load_dwordx4 {v(GS,4)}, v{PV}, {WS4}, s{S_T+12} offen sc1")
                extra.append(f)
            mem = []
            nd = [3, 3, 2, 2][n % 4]
            while dq and nd > 0:
                mem.append(dq.pop(0)); nd -= 1
            if n >= 29: mem += [[None, f] for f in self.b2_take(3 if n % 2 else 2)]
            rd = mkreads(n+1) if n + 1 < 40 else []
            small = []
            if n % 4 == 0:
                for hh in range(2):
                    for T in range(6):
                        c_ = "0" if (n == 0 and hh == 0) else v(WSA+4*T, 4)
                        small.append(f"v_mfma_f32_4x4x4_16b_bf16 {v(WSA+4*T,4)}, {v(ONE,2)}, {v(st+4+4*T+2*hh,2)}, {c_}")
            bar = n % 4 == 3 and n + 1 < 40
            cnt = [1, 4, 3, 3, 3, 0] if bar else [4, 3, 3, 2, 2, 0]
            ms = (0, 5) if bar else (1, 3, 5)
            for T in range(6):
                if T in ms and mem and mem[0][0]: k(mem[0][0])
                k.wait_lg(max(rtok[n, 1], rtok[n, 3+2*T]))
                c_ = "0" if n == 0 else v(ACC+16*T, 16)
                k(f"v_mfma_f32_32x32x16_bf16 {v(ACC+16*T,16)}, {v(st+4+4*T,4)}, {v(st,4)}, {c_}")
                if T in ms and mem: mem.pop(0)[1]()
                if bar and T == 1:
                    k.wait_both(stage_tok[(n+1)//4], k.lg_issued)
                    k("s_barrier")
                for _ in range(cnt[T]):
                    if rd: rd.pop(0)()
                if T >= 4 and extra: self.emit([extra.pop(0)])
            self.emit(extra)
            self.emit(small)
            assert not rd
            for m_ in mem: self.emit([x for x in m_ if x])
        assert not dq
        k.c('loop end')
        self.stamp(2)
        if self.early_stop("loop"): return
        k.c("================ MLP epilogue")
        TM = 140
        AT, BT = 204, 206
        k(f"""v_and_b32 v11, 31, v0
        v_lshlrev_b32 v12, 2, v11
        v_add_u32 v12, {L_WS}, v12""")
        for T in range(6):
            k(f"ds_add_f32 v12, v{WSA+4*T} offset:{128*T}")
        k.wait_vm(tk['gs'])
        def check():
            k(f"""v_xor_b32 v13, s{S_TAG}, v{GS+1}
            v_bitop3_b32 v13, s{S_TAG2}, v{GS+3}, v13 bitop3:0xbe
            v_cmp_ne_u32 vcc, 0, v13""")
        def rl(): k(f"buffer_load_dwordx4 {v(GS,4)}, v{PV}, {WS4}, s{S_T+12} offen sc1\ns_waitcnt vmcnt(0)")
        self.verify(check, rl, "ps")
        c1 = -2*LOG2E*math.sqrt(2/math.pi)
        k(f"""s_mov_b32 s{S_T}, {fbits(1.0/640)}
        v_mul_f32 v{GS}, s{S_T}, v{GS}
        v_mul_f32 v{TM}, v{GS}, v{GS}
        v_fma_f32 v{GS+2}, v{GS+2}, s{S_T}, -v{TM}
        v_max_f32 v{GS+2}, 0, v{GS+2}
        v_add_f32 v{TM}, {fbits(EPS)}, v{GS+2}
        v_rsq_f32 v{GS+1}, v{TM}
        s_lshl_b32 s{S_T}, s{S_W}, 8
        v_lshlrev_b32 v13, 3, v11
        v_mul_f32 v{TM}, v{GS+1}, v{GS+1}
        v_mul_f32 v{TM}, v{TM}, v{GS+2}
        v_add_f32 v{TM}, {fbits(EPS)}, v{TM}
        v_rsq_f32 v{TM}, v{TM}
        v_add_u32 v13, s{S_T}, v13
        v_add_u32 v13, {LDS_STAT}, v13
        v_mul_f32 v{AT}, v{TM}, v{GS+1}
        v_mul_f32_e64 v{BT}, v{GS}, -v{AT}
        ds_write_b64 v13, {v(GS,2)}
        v_lshrrev_b32 v14, 5, v0
        v_lshlrev_b32 v12, 4, v14
        v_add_u32 v12, {L_WS}, v12
        v_lshrrev_b32 v13, 4, v11
        v_mul_u32_u24 v13, {48*1024}, v13
        v_and_b32 v15, 15, v0
        v_lshl_add_u32 v13, v15, 4, v13
        v_lshl_add_u32 v{PV}, v14, 8, v13
        s_lshl_b32 s{S_T}, s{S_I}, 3
        s_lshl_b32 s{S_T+1}, s{S_W}, 1
        s_add_u32 s{S_T}, s{S_T}, s{S_T+1}
        s_mul_i32 s{S_T}, s{S_T}, 48
        s_mul_i32 s{S_T+1}, s{S_J}, 6
        s_add_u32 s{S_T}, s{S_T}, s{S_T+1}
        s_lshl_b32 s{S_T}, s{S_T}, 10
        s_add_u32 s{S_T+6}, s{S_T}, {WS_A2[1]}
        s_add_u32 s{S_T+7}, s{S_T+6}, 4096
        s_add_u32 s{S_T+8}, s{S_FLAG}, {WS_FA + 512*FLS}
        s_mov_b32 s{S_T+4}, {fbits(c1*0.044715)}
        s_mov_b32 s{S_T+5}, s{S_T+4}
        s_waitcnt lgkmcnt(0)
        s_barrier""")
        self.stamp(3)
        C1 = TM
        WB = [142, 174]
        WB = [112, 144]
        C1 = 208
        k(f"v_mov_b32 v{C1}, {fbits(c1)}\nv_mov_b32 v{C1+1}, {fbits(c1)}")
        Q = 176; PKO = [184, 188, 192, 210]
        def wreads(T):
            b = WB[T % 2]; L = []
            for q4 in range(4):
                L.append(f"ds_read_b128 {v(b+4*q4,4)}, v12 offset:{(32*T+8*q4)*4}")
                L.append(f"ds_read_b128 {v(b+16+4*q4,4)}, v12 offset:{768+(32*T+8*q4)*4}")
            return L
        self.emit(wreads(0))
        stok = {}
        for T in range(6):
            k("s_waitcnt lgkmcnt(0)")
            b = WB[T % 2]
            fill = wreads(T+1) if T + 1 < 6 else []
            body = []
            for c in range(2):
                po = PKO[(2*T + c) % 4]; prs = range(4*c, 4*c+4)
                z = lambda p: ACC + 16*T + 2*p
                q = lambda p: Q + 2*(p % 4)
                body += [f"v_pk_fma_f32 {v(b+2*p,2)}, {v(BT,2)}, {v(b+2*p,2)}, {v(b+16+2*p,2)} op_sel_hi:[0,1,1]" for p in prs]
                body += [f"v_pk_fma_f32 {v(z(p),2)}, {v(AT,2)}, {v(z(p),2)}, {v(b+2*p,2)} op_sel_hi:[0,1,1]" for p in prs]
                body += [f"v_pk_mul_f32 {v(q(p),2)}, {v(z(p),2)}, {v(z(p),2)}" for p in prs]
                body += [f"v_pk_fma_f32 {v(q(p),2)}, {v(q(p),2)}, {s(S_T+4,2)}, {v(C1,2)}" for p in prs]
                body += [f"v_pk_mul_f32 {v(q(p),2)}, {v(q(p),2)}, {v(z(p),2)}" for p in prs]
                for p in prs: body += [f"v_exp_f32 v{q(p)}, v{q(p)}", f"v_exp_f32 v{q(p)+1}, v{q(p)+1}"]
                body += [f"v_pk_add_f32 {v(q(p),2)}, {v(q(p),2)}, 1.0 op_sel_hi:[1,0]" for p in prs]
                for p in prs: body += [f"v_rcp_f32 v{q(p)}, v{q(p)}", f"v_rcp_f32 v{q(p)+1}, v{q(p)+1}"]
                body += [f"v_pk_mul_f32 {v(q(p),2)}, {v(q(p),2)}, {v(z(p),2)}" for p in prs]
                body += [f"v_cvt_pk_bf16_f32 v{po+p%4}, v{q(p)}, v{q(p)+1}" for p in prs]
                def st_(T=T, c=c, po=po):
                    stok[T] = k(f"buffer_store_dwordx4 {v(po,4)}, v{PV}, {WS4}, s{S_T+6+(T//4)} offen offset:{(T%4)*1024+c*512} sc1")
                body.append(st_)
            mem = []
            if T == 2: self.p2_addr(1)
            if T == 3:
                def f():
                    k.wait_vm(stok[1]); self.set_flag(S_T+8, 15, 0)
                mem.append(f)
            if T == 4:
                mem.append(self.p2_poll_issue)
            if T == 5:
                def f():
                    k.wait_vm(stok[3]); self.set_flag(S_T+8, 15, 4)
                mem.append(f)
                mem.append(lambda: self.p2_check(0))
                mem += [self.p2_aload for _ in range(8)]
            else:
                mem += self.b2_take(5)
            gap = max(1, (len(body) - 10)//(len(mem) + 1))
            for i, x in enumerate(body):
                self.emit([x])
                if i < 16 and i % 2 == 0 and fill: k(fill.pop(0))
                if i >= 8 and (i - 8) % gap == gap - 1 and mem: mem.pop(0)()
            self.emit(mem)
        self.stamp(6)
        self.a2_last = (stok[5], S_T+8, 8)
        self.phase2(1, 1)

    RING, NR, ACS, ACO = 16, 19, 92, 172
    def p2_addr(self, side):
        k = self.k
        S = [40, 48][side]; KS = [10, 12][side]
        self.hfS = [0, 1][side]; hfS = self.hfS; hfO = 1 - hfS
        SA = 36
        self.FV = 1
        k(f"""v_and_b32 v{self.FV}, 7, v0
        v_lshlrev_b32 v{self.FV}, 6, v{self.FV}
        s_lshl_b32 s44, s{S_I}, 5
        s_lshl_b32 s45, s{S_W}, 3
        s_add_u32 s44, s44, s45
        s_lshl_b32 s44, s44, 6
        s_add_u32 s44, s44, {WS_FA + side*512*FLS}
        s_mul_i32 s45, s{S_I}, {8*S}
        s_mul_i32 s46, s{S_W}, {KS}
        s_add_u32 s45, s45, s46
        s_lshl_b32 s45, s45, 10
        s_add_u32 s45, s45, {WS_A2[side]}""")
        for t4 in range(4):
            k(f"s_add_u32 s{SA+t4}, s45, {(4*hfS+t4)*S*1024}")
            k(f"s_add_u32 s{SA+4+t4}, s45, {(4*hfO+t4)*S*1024}")
        order = [ss for g in self.groups for ss in g]
        self.seq = [(p, ss, t4) for p in range(2) for ss in order for t4 in range(4)]
        self.gstart = []
        n = 0
        for g in self.groups:
            self.gstart.append(n); n += 4*len(g)
        self.atok = {}; self.nxt = 0; self.checked = 0; self.ptok = None
    def p2_poll_issue(self):
        self.ptok = self.k(f"buffer_load_dwordx3 v[2:4], v{self.FV}, {WS4}, s44 offen sc1")
    def p2_check(self, g):
        k = self.k
        k.wait_vm(self.ptok)
        def rl(): k(f"buffer_load_dwordx3 v[2:4], v{self.FV}, {WS4}, s44 offen sc1\ns_waitcnt vmcnt(0)")
        self.verify(lambda: k(f"v_cmp_ne_u32 vcc, s{S_TAG}, v{2+g}"), rl, "pa")
        self.checked = g + 1
    def p2_aload(self):
        k = self.k
        idx = self.nxt
        if self.checked < len(self.groups) and idx >= self.gstart[self.checked]:
            self.p2_check(self.checked)
        p, ss, t4 = self.seq[idx]
        so = 36 + 4*p + t4
        if ss >= 4:
            k(f"s_add_u32 s45, s{so}, {(ss//4)*4096}"); so = 45
        self.atok[idx] = k(f"buffer_load_dwordx4 {v(self.RING+4*(idx%self.NR),4)}, v{self.LV}, {WS4}, s{so} offen offset:{(ss%4)*1024} sc1")
        self.nxt += 1
        if self.checked < len(self.groups) and self.nxt == self.gstart[self.checked]:
            self.p2_poll_issue()

    def phase2(self, side, pend_flag):
        k = self.k
        if self.early_stop("p1"): return
        S = [40, 48][side]; KS = [10, 12][side]
        RING, NR, ACS, ACO, LV = self.RING, self.NR, self.ACS, self.ACO, self.LV
        hfS = self.hfS; hfO = 1 - hfS
        RW, RR, OO = 5, 6, 11
        T1 = 253
        k.c(f"================ phase 2 (side {side})")
        while self.nxt < NR - 3: self.p2_aload()
        self.stamp(8)
        a1 = [f"v_and_b32 v{T1}, 15, v0", f"v_mul_u32_u24 v{RW}, {RED_RS}, v{T1}", f"v_lshrrev_b32 v{T1}, 4, v0",
              f"v_lshl_add_u32 v{RW}, v{T1}, 4, v{RW}", f"s_mul_i32 s{S_T}, s{S_W}, {RED_W}\ns_add_u32 s{S_T}, s{S_T}, {LDS_RED}",
              f"v_add_u32 v{RW}, s{S_T}, v{RW}", f"s_mul_i32 s{S_T}, s{S_W}, {16*RED_RS}\ns_add_u32 s{S_T}, s{S_T}, {LDS_RED}"]
        for it in range(5):
            a1 += [f"v_add_u32 v{T1}, {64*it}, v0", f"v_mul_u32_u24 v{OO+it}, 3277, v{T1}", f"v_lshrrev_b32 v{OO+it}, 16, v{OO+it}",
                   f"v_mul_u32_u24 v{RR+it}, 20, v{OO+it}", f"v_sub_u32 v{T1}, v{T1}, v{RR+it}", f"v_lshlrev_b32 v{T1}, 4, v{T1}",
                   f"v_mad_u32_u24 v{RR+it}, v{OO+it}, s{S_T+1}, v{T1}", f"v_add_u32 v{RR+it}, s{S_T}, v{RR+it}",
                   f"v_mad_u32_u24 v{OO+it}, v{OO+it}, s{S_T+2}, v{T1}"]
        k(f"s_movk_i32 s{S_T+1}, {RED_RS}\ns_movk_i32 s{S_T+2}, 2560")
        self.emit(a1)
        nper = len(self.seq)//2
        def run_pass(p, accb, fill):
            for j in range(nper):
                idx = p*nper + j
                _, ss, t4 = self.seq[idx]
                first = j < 4
                if p == 0 and t4 == 0:
                    while (ss, 4) not in self.b2tok: self.b2q.pop(0)()
                    k.wait_vm(self.b2tok[ss, 4])
                k.wait_vm(self.atok[idx])
                for cc in range(5):
                    d = accb + (t4*5 + cc)*4
                    k(f"v_mfma_f32_16x16x32_bf16 {v(d,4)}, {a((ss*5+cc)*4,4)}, {v(RING+4*(idx%NR),4)}, {'0' if first else v(d,4)}")
                    if cc == 0:
                        if self.nxt < len(self.seq) and self.nxt < idx + NR - 1: self.p2_aload()
                    elif cc == 2 and p == 0 and self.b2q and j % 2 == 0: self.b2q.pop(0)()
                    elif fill:
                        self.emit([fill.pop(0)])
            self.emit(fill)
        fl0 = []
        if pend_flag:
            def f():
                tokn, so, off = self.a2_last
                k.wait_vm(tokn); self.set_flag(so, T1, off)
            fl0 = [lambda: None]*8 + [f]
        run_pass(0, ACS, fl0)
        self.stamp(9)
        tk = {}
        fill = [lambda: None, lambda: None]
        fill += [f"ds_write_b128 v{RW}, {v(ACS+(t4*5+cc)*4,4)} offset:{t4*16*RED_RS+cc*64}" for t4 in range(4) for cc in range(5)]
        fill += [f"""s_lshr_b32 s{S_T}, s{S_PW}, 2
                 s_mul_i32 s{S_T}, s{S_T}, 20480""", f"""s_mul_i32 s{S_T+1}, s{S_W}, 5120
                 s_add_u32 s{S_T}, s{S_T}, s{S_T+1}""", f"""s_add_u32 s{S_T+3}, s{S_T}, {WS_PART + (1-side)*128*20480}
                 s_add_u32 s{S_T+4}, s{S_T+3}, 4096""", f"""s_add_u32 s{S_T}, s{S_T}, {WS_PART + side*128*20480}
                 s_add_u32 s{S_T+1}, s{S_T}, 4096""",
                 "s_waitcnt lgkmcnt(0)\ns_barrier"]
        for it in range(5):
            for sw in range(4):
                def f(it=it, sw=sw): tk['r', it] = k(f"ds_read_b128 {v(ACS+(it*4+sw)*4,4)}, v{RR+it} offset:{sw*RED_W}")
                fill.append(f)
        for it in range(5):
            b = ACS + it*16
            fill.append(lambda it=it: k.wait_lg(tk['r', it]))
            for e in range(4): fill.append(f"v_add_f32 v{b+e}, v{b+e}, v{b+4+e}")
            for e in range(4): fill.append(f"v_add_f32 v{b+8+e}, v{b+8+e}, v{b+12+e}")
            for e in range(4): fill.append(f"v_add_f32 v{b+e}, v{b+e}, v{b+8+e}")
            def f(it=it, b=b): tk['send'] = k(f"buffer_store_dwordx4 {v(b,4)}, v{LV}, {WS4}, s{S_T+it//4} offen offset:{(it%4)*1024} sc1")
            fill.append(f)
        fill += [f"""s_lshl_b32 s{S_T}, s{S_I}, 7
                 s_lshl_b32 s{S_T+1}, s{S_W}, 4""", f"""s_add_u32 s{S_T}, s{S_T}, s{S_T+1}
                 s_add_u32 s{S_T}, s{S_T}, {64*hfO}""", f"""s_mul_i32 s{S_T}, s{S_T}, 2560
                 s_mul_i32 s{S_T+1}, s{S_J}, 320""", f"""s_add_u32 s{S_OUT}, s{S_T}, s{S_T+1}
                 s_lshr_b32 s{S_T}, s{S_OUT}, 1""", f"s_lshr_b32 s{S_T+1}, s{S_T+1}, 1",
                 lambda: self.srd(SRD_T1, 8, 1280), lambda: self.srd(SRD_T2, 13, 1280), lambda: self.srd(SRD_OUT, 14, 5242880),
                 f"s_lshl_b32 s{S_T+2}, s{S_W}, 7\ns_add_u32 s{S_T+2}, s{S_T+2}, {LDS_STAT + 64*hfO*8}", "s_barrier"]
        for it in range(5):
            b = ACS + it*16
            fill += [f"v_lshrrev_b32 v{T1}, 1, v{OO+it}",
                     f"buffer_load_dwordx2 {v(b+4,2)}, v{T1}, {s(SRD_X,4)}, s{S_T} offen",
                     f"v_add_u32 v{T1}, {64*it}, v0", f"v_mul_u32_u24 v2, 3277, v{T1}", f"v_lshrrev_b32 v2, 16, v2",
                     f"v_lshl_add_u32 v3, v2, 3, s{S_T+2}", f"ds_read_b64 {v(b+10,2)}, v3",
                     f"v_mul_u32_u24 v2, 20, v2", f"v_sub_u32 v2, v{T1}, v2", f"v_lshlrev_b32 v2, 3, v2",
                     f"buffer_load_dwordx2 {v(b+6,2)}, v2, {s(SRD_T1,4)}, s{S_T+1} offen"]
            def f(b=b): tk['ep'] = k(f"buffer_load_dwordx2 {v(b+8,2)}, v2, {s(SRD_T2,4)}, s{S_T+1} offen")
            fill.append(f)
            if it == 1:
                def f():
                    k.wait_vm(tk['send'])
                    k(f"s_add_u32 s{S_T+5}, s{S_FLAG}, {WS_FP + side*512*FLS}")
                    self.set_flag(S_T+5, T1)
                fill.append(f)
        def f():
            k(f"s_add_u32 s{S_T+5}, s{S_FLAG}, {WS_FP + (1-side)*512*FLS}")
            tk['pp'] = k(f"buffer_load_dword v4, off, {WS4}, s{S_T+5} sc1")
        npad = nper*4 - len(fill) - 8
        fill += [lambda: None]*max(0, npad) + [f]
        run_pass(1, ACO, fill)
        self.stamp(10)
        wr = [f"ds_write_b128 v{RW}, {v(ACO+(t4*5+cc)*4,4)} offset:{t4*16*RED_RS+cc*64}" for t4 in range(4) for cc in range(5)]
        k.wait_vm(tk['pp'])
        def rl(): k(f"buffer_load_dword v4, off, {WS4}, s{S_T+5} sc1\ns_waitcnt vmcnt(0)")
        self.verify(lambda: k(f"v_cmp_ne_u32 vcc, s{S_TAG}, v4"), rl, "pp")
        ptoks = [k(f"buffer_load_dwordx4 {v(ACS+it*16+12,4)}, v{LV}, {WS4}, s{S_T+3+it//4} offen offset:{(it%4)*1024} sc1") for it in range(5)]
        self.stamp(11)
        res = []
        T2 = RING
        for it in range(5):
            b = ACS + it*16
            xx, dd, bb = T2 + 12*it, T2 + 12*it + 4, T2 + 12*it + 8
            for (src, dst) in ((b+4, xx), (b+6, dd), (b+8, bb)):
                for h in range(2):
                    res += [f"v_lshlrev_b32 v{dst+2*h}, 16, v{src+h}", f"v_and_b32 v{dst+2*h+1}, 0xffff0000, v{src+h}"]
            for h in range(2):
                res += [f"v_pk_add_f32 {v(bb+2*h,2)}, {v(bb+2*h,2)}, {v(xx+2*h,2)}",
                        f"v_pk_add_f32 {v(xx+2*h,2)}, {v(xx+2*h,2)}, {v(b+10,2)} op_sel_hi:[1,0] neg_lo:[0,1] neg_hi:[0,1]",
                        f"v_pk_mul_f32 {v(dd+2*h,2)}, {v(dd+2*h,2)}, {v(b+10,2)} op_sel:[0,1] op_sel_hi:[1,1]",
                        f"v_pk_fma_f32 {v(bb+2*h,2)}, {v(xx+2*h,2)}, {v(dd+2*h,2)}, {v(bb+2*h,2)}"]
        k("s_waitcnt lgkmcnt(0)")
        half = len(res)//2
        r1, r2 = res[:half], res[half:]
        for w_ in wr:
            k(w_)
            for _ in range(3):
                if r1: k(r1.pop(0))
        self.emit(r1)
        k("s_waitcnt lgkmcnt(0)\ns_barrier")
        toks = []
        for it in range(5):
            for sw in range(4):
                toks.append(k(f"ds_read_b128 {v(ACO+(it*4+sw)*4,4)}, v{RR+it} offset:{sw*RED_W}"))
        self.emit(r2)
        for it in range(5):
            b = ACO + it*16; bb = T2 + 12*it + 8
            k.wait_both(ptoks[it], toks[4*it+3])
            for h in range(2):
                k(f"v_pk_add_f32 {v(b+2*h,2)}, {v(b+2*h,2)}, {v(b+4+2*h,2)}")
                k(f"v_pk_add_f32 {v(b+8+2*h,2)}, {v(b+8+2*h,2)}, {v(b+12+2*h,2)}")
                k(f"v_pk_add_f32 {v(bb+2*h,2)}, {v(bb+2*h,2)}, {v(ACS+it*16+12+2*h,2)}")
            for h in range(2):
                k(f"v_pk_add_f32 {v(b+2*h,2)}, {v(b+2*h,2)}, {v(b+8+2*h,2)}")
            for h in range(2):
                k(f"v_pk_add_f32 {v(b+2*h,2)}, {v(b+2*h,2)}, {v(bb+2*h,2)}")
            k(f"buffer_store_dwordx4 {v(b,4)}, v{OO+it}, {s(SRD_OUT,4)}, s{S_OUT} offen {'sc1' if 'outsc1' in self.opt else 'nt' if 'outnt' in self.opt else ''}")
        self.stamp(12)
        self.finish_wg(side)

    def finish_wg(self, side):
        k = self.k
        if side == 0:
            k(f"""s_cmp_lg_u32 s{S_PW}, 0
            s_cbranch_scc1 L_fin0
            v_lshlrev_b32 v13, 8, v0""")
            def loads():
                for q in range(4):
                    k(f"s_mov_b32 s{S_T+1}, {WS_FA + q*64*4*FLS}")
                    k(f"buffer_load_dword v{16+q}, v13, {WS4}, s{S_T+1} offen sc1")
                k("s_waitcnt vmcnt(0)")
            def check():
                k(f"v_xor_b32 v14, s{S_TAG}, v16")
                for q in range(1, 4): k(f"v_bitop3_b32 v14, s{S_TAG}, v{16+q}, v14 bitop3:0xbe")
                k("v_cmp_ne_u32 vcc, 0, v14")
            loads()
            self.verify(check, loads, "pe")
            k(f"s_mov_b32 s{S_T}, {WS_EPOCH}")
            self.set_flag(S_T, 14)
            k.label("L_fin0")
        if self.spin:
            lb = k.newlabel("spin")
            k(f"s_add_u32 s101, s101, {self.spin}")
            k.label(lb)
            k(f"""s_memrealtime s[98:99]
            s_waitcnt lgkmcnt(0)
            s_sub_u32 s98, s98, s100
            s_cmp_lt_u32 s98, s101
            s_cbranch_scc1 {lb}""")
        if self.ts:
            k("s_waitcnt vmcnt(0)"); self.stamp(13); self.stamp_flush()
        k("s_endpgm")

    def build(self):
        k = self.k
        self.prologue()
        st = k.state()
        self.ssm()
        self.flush_slow()
        k.set_state(st)
        self.mlp()
        self.flush_slow()
        k.label("L_end")
        k("s_endpgm")
        if 'noadd' in self.opt: k.ins = [x for x in k.ins if not x.op.startswith('ds_add')]
        if 'nopk' in self.opt: k.ins = [x for x in k.ins if not x.op.startswith('v_pk')]
        if 'notrans' in self.opt: k.ins = [x for x in k.ins if x.kind != 'trans']
        if 'nosw' in self.opt or 'nodma' in self.opt or 'noread' in self.opt or 'nobar' in self.opt or 'nosmall' in self.opt:
            out = []; inloop = False
            for x in k.ins:
                if 'k-step' in x.text: inloop = True
                if 'loop end' in x.text: inloop = False
                if inloop:
                    if 'nodma' in self.opt and (x.kind == 'vmem' or x.op == 's_cbranch_vccnz'): continue
                    if 'nosw' in self.opt and (x.op == 's_cbranch_vccnz' or (x.kind == 'vmem' and ('sc1' in x.text or 'v253' in x.text))): continue
                    if 'nodma' in self.opt and x.op == 's_waitcnt' and 'vmcnt' in x.text: x = Ins('s_nop 0')
                    if 'noread' in self.opt and x.kind == 'ds': continue
                    if 'nomfma' in self.opt and x.kind == 'mfma': continue
                    if 'nobar' in self.opt and x.op == 's_barrier': continue
                    if 'nosmall' in self.opt and '4x4x4' in x.op: continue
                out.append(x)
            k.ins = out
        body = k.finish()
        hdr = open("header.txt").read()
        return (hdr + f"""; @launch grid=(256,1,1) block=(256,1,1) lds=163840
.amdgcn_target "amdgcn-amd-amdhsa--gfx950"
.text
.globl {NAME}
.p2align 8
.type {NAME},@function
{NAME}:
""" + body + f""".section .rodata,"a"
.p2align 6
.amdhsa_kernel {NAME}
  .amdhsa_next_free_vgpr 512
  .amdhsa_next_free_sgpr 102
  .amdhsa_accum_offset 256
  .amdhsa_group_segment_fixed_size 0
  .amdhsa_kernarg_size 136
  .amdhsa_user_sgpr_count 2
  .amdhsa_user_sgpr_kernarg_segment_ptr 1
  .amdhsa_system_sgpr_workgroup_id_x 1
.end_amdhsa_kernel
""")

if __name__ == "__main__":
    import argparse
    ap = argparse.ArgumentParser()
    ap.add_argument("-o", default="k2.s")
    ap.add_argument("--stop", default=None)
    ap.add_argument("--ts", action="store_true")
    ap.add_argument("--spin", type=int, default=0)
    ap.add_argument("--seg", type=int, default=None)
    ap.add_argument("--opt", default="")
    a_ = ap.parse_args()
    g = G(stop=a_.stop, ts=a_.ts, spin=a_.spin, seg=a_.seg, opt=a_.opt.split(","))
    txt = g.build()
    open(a_.o, "w").write(txt)
    print("written", a_.o, "nops inserted:", g.k.nops, "lines:", txt.count("\n"))
```

```python
import sys, math, struct
sys.path.insert(0, "gen")
from emit import *

NAME = "parallel_sum__ssm_conv_s5__mixer_channel_mlp__prompt_kernel"
WS_EPOCH = 0
WS_FB = 0x1000
WS_FA = 0x11000
WS_AGG = 0x31000
WS_STG = 0x59000
WS_WSG = 0x61000
WS_B2S = [0x70000, 0x200000]
WS_A2 = [0x400000, 0x900000]
WS_PART = 0xF00000
WS_TS = 0x1400000
WS_SIZE = 0x1500000
FLS = 64
S_W = 3
SRD_X, SRD_W, SRD_WS, SRD_OUT, SRD_T1, SRD_T2 = 4, 8, 12, 16, 20, 24
S_TAG, S_TAG2, S_I, S_J, S_PAT = 28, 29, 30, 31, 32
S_PW = 33
S_FLAG = 34
S_OUT = 35
S_XO = 36
S_WO = 40
S_MX, S_MW = 45, 46
S_B2 = 47
S_T = 48
P0 = 64
def ptr(n): return s(P0 + 2*n, 2)
S_PAT32 = P0 + 18
S_NM = P0 + 19
S_WRAP, S_ST1, S_ST2 = 2, 0, 1
S_TS = 98
S_ST1K, S_ST2K = P0 + 2, P0 + 3
LOG2E = 1.4426950408889634
EPS = 1e-5
def fbits(x): return "0x%08x" % struct.unpack("<I", struct.pack("<f", x))[0]
POLL_MAX = 20000
LDS_RED = 16384
RED_RS = 336
RED_W = 64 * RED_RS
L_R = 106496
WS4 = s(SRD_WS, 4)
NOP = lambda: None

class C5:
    def __init__(self, re, im=None, st=1):
        self.re = re; self.im = re + 1 if im is None else im; self.st = 2 if im is None else st
    def r(self, b): return self.re + self.st*b
    def i(self, b): return self.im + self.st*b

class G:
    def __init__(self, stop=None, ts=False, spin=0, seg=None, opt=()):
        self.k = Emit(); self.slow = []; self.stop = stop; self.ts = ts; self.spin = spin; self.seg = seg; self.opt = set(opt)

    def stamp(self, idx):
        k = self.k
        if self.seg == idx:
            k("s_memrealtime s[98:99]\ns_waitcnt lgkmcnt(0)\ns_sub_u32 s101, s98, s100")
        if not self.ts: return
        k(f"{'s_memtime' if 'cyc' in self.opt else 's_memrealtime'} {s(S_TS,2)}")
        k("s_waitcnt lgkmcnt(0)")
        k(f"v_writelane_b32 v255, s{S_TS}, {idx}")
    def fine(self, idx):
        if 'fine' in self.opt: self.stamp(idx)
    def fine2(self):
        if 'fine2' in self.opt:
            self.stamp(16 + self.nf2); self.nf2 += 1
    def stamp_flush(self):
        if not self.ts: return
        self.k(f"""s_lshl_b32 s{S_T}, s99, 2
        v_readlane_b32 s{S_T}, v255, 63
        s_nop 3
        s_lshl_b32 s{S_T}, s{S_T}, 2
        s_add_u32 s{S_T}, s{S_T}, s{S_W}
        s_lshl_b32 s{S_T}, s{S_T}, 8
        s_add_u32 s{S_T}, s{S_T}, {WS_TS}
        v_mbcnt_lo_u32_b32 v254, -1, 0
        v_mbcnt_hi_u32_b32 v254, -1, v254
        v_lshlrev_b32 v254, 2, v254
        buffer_store_dword v255, v254, {WS4}, s{S_T} offen""")
    def early_stop(self, name):
        if self.stop != name: return False
        self.k("s_waitcnt vmcnt(0)"); self.stamp(13); self.stamp_flush(); self.k("s_endpgm")
        return True

    def srd(self, base, pn, size):
        self.k(f"""s_mov_b32 s{base}, s{P0+2*pn}
        s_and_b32 s{base+1}, s{P0+2*pn+1}, 0xffff
        s_mov_b32 s{base+2}, {size}
        s_mov_b32 s{base+3}, 0x20000""")
    def verify(self, check, reload, name, checked=False):
        k = self.k
        slow = k.newlabel(name); done = k.newlabel(name + "d")
        if not checked: check()
        k(f"s_cbranch_vccnz {slow}")
        k.label(done)
        self.slow.append((slow, done, check, reload))
    def flush_slow(self):
        k = self.k
        for slow, done, check, reload in self.slow:
            top = k.newlabel(slow + "t")
            k.label(slow)
            if self.ts: k("v_writelane_b32 v255, -1, 15")
            k(f"s_mov_b32 s{S_T+15}, {POLL_MAX}")
            k.label(top)
            reload()
            check()
            k(f"""s_cbranch_vccz {done}
            s_sub_u32 s{S_T+15}, s{S_T+15}, 1
            s_cmp_lg_u32 s{S_T+15}, 0
            s_cbranch_scc1 {top}
            s_branch {done}""")
        self.slow = []
    def set_flag(self, soff, vtmp, off=0):
        return self.k(f"""v_mov_b32 v{vtmp}, s{S_TAG}
        s_mov_b64 exec, 1
        buffer_store_dword v{vtmp}, off, {WS4}, s{soff} offset:{off} sc1
        s_mov_b64 exec, -1""")
    def emit(self, L):
        for x in L:
            x() if callable(x) else self.k(x)
    def sprinkle(self, work, q, lead=0):
        k = self.k; q = list(q); n0 = len(q); masked = False
        for i, w_ in enumerate(work):
            self.emit([w_])
            if isinstance(w_, str):
                if w_.startswith(("s_mov_b32 exec", "s_cselect_b64 exec", "s_mov_b64 exec, s")): masked = True
                if w_.startswith("s_mov_b64 exec, -1"): masked = False
            while q and not masked and i >= lead and (n0 - len(q) + 1)*(len(work) - lead) <= (i - lead + 1)*(n0 + 1) + n0:
                q.pop(0)()
        for f in q: f()
    def cpow(self, dre, dim, n, zr, zi, t):
        return [f"v_mul_f32 v{t}, {n}, v{zi}", f"v_mul_f32 v{dre}, {n}, v{zr}", f"v_fract_f32 v{t}, v{t}",
                f"v_exp_f32 v{dre}, v{dre}", f"v_sin_f32 v{dim}, v{t}", f"v_cos_f32 v{t}, v{t}",
                f"v_mul_f32 v{dim}, v{dim}, v{dre}", f"v_mul_f32 v{dre}, v{t}, v{dre}"]
    def cmul5(self, d, x, y, c=None):
        L = []
        for b in range(5):
            L.append(f"v_mul_f32 v{d.r(b)}, v{x.r(b)}, v{y.r(b)}" if c is None else f"v_fma_f32 v{d.r(b)}, v{x.r(b)}, v{y.r(b)}, v{c.r(b)}")
            L.append(f"v_mul_f32 v{d.i(b)}, v{x.r(b)}, v{y.i(b)}" if c is None else f"v_fma_f32 v{d.i(b)}, v{x.r(b)}, v{y.i(b)}, v{c.i(b)}")
        for b in range(5):
            L.append(f"v_fma_f32 v{d.r(b)}, -v{x.i(b)}, v{y.i(b)}, v{d.r(b)}")
            L.append(f"v_fma_f32 v{d.i(b)}, v{x.i(b)}, v{y.r(b)}, v{d.i(b)}")
        return L
    def div20(self, q, r, x):
        return [f"v_mul_u32_u24 v{q}, 3277, v{x}", f"v_lshrrev_b32 v{q}, 16, v{q}", f"v_mul_u32_u24 v{r}, 20, v{q}", f"v_sub_u32 v{r}, v{x}, v{r}"]

    def prologue(self):
        k = self.k
        k(f"""s_cmp_ge_u32 s2, 256
        s_cbranch_scc1 L_end""")
        if self.spin: k("s_memrealtime s[100:101]")
        k(f"""s_load_dwordx16 {s(P0,16)}, s[0:1], 0
        s_load_dwordx16 {s(P0+16,16)}, s[0:1], 64
        s_load_dwordx2 {s(P0+32,2)}, s[0:1], 128
        v_lshrrev_b32 v1, 6, v0
        v_and_b32 v0, 63, v0
        v_readfirstlane_b32 s{S_W}, v1
        s_bfe_u32 s{S_T}, s2, 0x20001
        s_lshr_b32 s{S_T+1}, s2, 6           ; c = id>>6
        s_lshl_b32 s{S_I}, s{S_T+1}, 2
        s_add_u32 s{S_I}, s{S_I}, s{S_T}
        s_bfe_u32 s{S_J}, s2, 0x30003        ; j = (id>>3)&7
        s_lshl_b32 s{S_T}, s{S_I}, 3
        s_add_u32 s{S_T}, s{S_T}, s{S_J}
        s_lshl_b32 s{S_T}, s{S_T}, 2
        s_add_u32 s{S_PW}, s{S_T}, s{S_W}    ; (i*8+j)*4+w
        s_lshl_b32 s{S_FLAG}, s{S_PW}, 6
        s_lshl_b32 s{S_MX}, s{S_W}, 12
        s_lshl_b32 s{S_T+2}, s{S_I}, 7
        s_lshl_b32 s{S_T+3}, s{S_W}, 5
        s_add_u32 s{S_T+2}, s{S_T+2}, s{S_T+3}
        s_mul_i32 s{S_XO}, s{S_T+2}, 1280
        v_lshrrev_b32 v11, 4, v0                 ; g
        v_and_b32 v13, 7, v0
        v_xor_b32 v12, v13, v11
        v_lshlrev_b32 v12, 4, v12
        v_lshrrev_b32 v3, 3, v0
        v_mul_u32_u24 v3, 1280, v3
        v_lshl_add_u32 v253, v13, 4, v3          ; (l>>3)*1280 + (l&7)*16
        v_add_u32 v3, v3, v12                    ; (l>>3)*1280 + swz
        v_lshlrev_b32 v252, 4, v0
        s_bitcmp1_b32 s2, 0""")
        if self.ts: k("v_mov_b32 v255, 0\nv_writelane_b32 v255, s2, 63")
        k("s_waitcnt lgkmcnt(0)")
        if self.spin: k("s_mov_b32 s101, 0")
        k(f"s_load_dword s{S_TAG}, {ptr(16)}, {WS_EPOCH}")
        k(f"""s_mov_b32 s{SRD_X}, s{P0}
        s_mov_b32 s{SRD_X+1}, s{P0+1}
        s_mov_b32 s{SRD_X+2}, 2621440
        s_mov_b32 s{SRD_X+3}, 0x20000
        s_mov_b32 s{SRD_WS}, s{P0+32}
        s_mov_b32 s{SRD_WS+1}, s{P0+33}
        s_mov_b32 s{SRD_WS+2}, {WS_SIZE}
        s_mov_b32 s{SRD_WS+3}, 0x20000
        s_cbranch_scc1 L_mlp""")
        self.LV = 252; self.PV = 253

    def make_tag(self):
        self.k(f"""s_waitcnt lgkmcnt(0)
        s_bitcmp1_b32 s{S_TAG}, 0
        s_cselect_b32 s{S_PAT}, 0x10000, 1
        s_cselect_b32 s{S_PAT32}, 2, 1
        s_mul_i32 s{S_TAG}, s{S_TAG}, 0x9E3779B1
        s_add_u32 s{S_TAG}, s{S_TAG}, 0x7F4A7C15
        s_and_b32 s{S_TAG}, s{S_TAG}, 0xfffefffc
        s_or_b32 s{S_TAG}, s{S_TAG}, s{S_PAT}
        s_or_b32 s{S_TAG}, s{S_TAG}, s{S_PAT32}
        s_xor_b32 s{S_TAG2}, s{S_TAG}, 0x5bd1e995
        s_brev_b32 s{S_TAG2}, s{S_TAG2}
        s_mov_b32 s{S_NM}, 0xfffefffe""")

    def rowstat_loads(self, srd, s_row, s_cl, defer=False):
        k = self.k
        k(f"""v_min_u32 v14, s{s_cl}, v11
        v_mul_u32_u24 v15, 1280, v14
        v_and_b32 v13, 15, v0
        v_lshl_add_u32 v15, v13, 4, v15
        s_mul_i32 s{s_row}, s{s_row}, 1280""")
        L = []
        for q in range(5):
            def f(q=q): self.rs_tok = k(f"buffer_load_dwordx4 {v(16+4*q,4)}, v15, {s(srd,4)}, s{s_row} offen offset:{256*q}")
            L.append(f)
        if defer: return L
        self.emit(L)
    def rowstat_finish(self, tok, s_dst, memq=()):
        k = self.k
        k.wait_vm(tok)
        W = [f"s_mov_b32 s{S_T+14}, 0x3f803f80"]
        for q in range(20):
            W += [f"v_dot2_f32_bf16 v36, v{16+q}, s{S_T+14}, {'0' if q == 0 else 'v36'}", f"v_dot2_f32_bf16 v38, v{16+q}, v{16+q}, {'0' if q == 0 else 'v38'}"]
        W += [f"v_mov_b32 v37, s{S_TAG}", f"v_mov_b32 v39, s{S_TAG2}", "v_lshlrev_b32 v14, 4, v14"]
        for r in (8, 4, 2, 1):
            W += [f"v_add_f32_dpp v36, v36, v36 row_ror:{r} row_mask:0xf bank_mask:0xf", f"v_add_f32_dpp v38, v38, v38 row_ror:{r} row_mask:0xf bank_mask:0xf"]
        self.sprinkle(W, memq)
        k(f"""s_mov_b32 exec_lo, 0x00010001
        s_mov_b32 exec_hi, 0x00010001
        buffer_store_dwordx4 v[36:39], v14, {WS4}, s{s_dst} offen sc1
        s_mov_b64 exec, -1""")

    def dma_reset(self):
        self.m0 = None; self.vstage = {}; self.sstage = 0
    def rot_setup(self, regs128, regsW):
        k = self.k
        o = self.opt
        if 'rot0' in o: k(f"s_mov_b32 s{S_T}, 0")
        elif 'rotj5' in o: k(f"s_and_b32 s{S_T}, s{S_J}, 1\ns_mul_i32 s{S_T}, s{S_T}, 5")
        elif 'rotc' in o: k(f"s_lshr_b32 s{S_T}, s{S_I}, 2\ns_and_b32 s{S_T}, s{S_T}, 1")
        elif 'rotlat' in o:
            k(f"s_lshr_b32 s{S_T}, s{S_I}, 2\ns_lshl_b32 s{S_T}, s{S_T}, 1\ns_add_u32 s{S_T}, s{S_T}, s{S_J}\ns_and_b32 s{S_T}, s{S_T}, 7\ns_mul_i32 s{S_T}, s{S_T}, 5\ns_lshr_b32 s{S_T}, s{S_T}, 2")
        elif 'rotj4' in o: k(f"s_and_b32 s{S_T}, s{S_J}, 3")
        else: k(f"s_and_b32 s{S_T}, s{S_J}, 1")
        k(f"s_sub_u32 s{S_WRAP}, 10, s{S_T}\ns_lshl_b32 s{S_ST1}, s{S_T}, 7")
        for r in regs128: k(f"v_add_u32 v{r}, s{S_ST1}, v{r}")
        if regsW: k(f"s_mul_i32 s{S_ST2}, s{S_T}, {64*3072}")
    def dma(self, m0, ld, vreg=None, t=0, step=0):
        k = self.k
        def pre():
            if self.m0 != m0:
                k(f"s_add_u32 m0, s{m0[0]}, {m0[1]}"); self.m0 = m0
            if vreg is not None and self.vstage.get(vreg, 0) != t:
                assert self.vstage.get(vreg, 0) == t - 1
                if self.sstage != t:
                    k(f"s_cmp_eq_u32 s{S_WRAP}, {t}\ns_cselect_b32 s{S_ST1}, {-9*128}, s{S_ST1K}")
                    if self.has_w: k(f"s_cselect_b32 s{S_ST2}, {-9*64*3072}, s{S_ST2K}")
                    self.sstage = t
                k(f"v_add_u32 v{vreg}, s{S_ST1 if step == 128 else S_ST2}, v{vreg}"); self.vstage[vreg] = t
        return pre, ld

    def unit_decode(self, nunits, U):
        self.k(f"""s_sub_u32 s{S_T}, s{S_PW}, {nunits}
        s_cmp_lt_u32 s{S_PW}, {nunits}
        s_cselect_b32 s{U}, s{S_PW}, s{S_T}
        s_mul_i32 s{S_T+2}, s{U}, 6554
        s_lshr_b32 s{S_T+2}, s{S_T+2}, 16
        s_mul_i32 s{S_T}, s{S_T+2}, 10
        s_sub_u32 s{S_T}, s{U}, s{S_T}""")

    def b2_setup(self, side):
        k = self.k; vl = self.PV
        S = [40, 48][side]; KS = [10, 12][side]
        if side == 0:
            L = f"""v_min_u32 v{vl}, 14, v0
            v_mul_u32_u24 v{vl+1}, 86, v{vl}
            v_lshrrev_b32 v{vl+1}, 8, v{vl+1}
            v_mul_u32_u24 v{vl+1}, 7, v{vl+1}
            v_add_lshl_u32 v{vl}, v{vl}, v{vl+1}, 6
            s_mul_i32 s{S_T+12}, s{S_W}, 10
            s_lshr_b32 s{S_T+12}, s{S_T+12}, 2
            s_mul_i32 s{S_T+13}, s{S_J}, 50"""
        else:
            L = f"""v_min_u32 v{vl}, 23, v0
            v_lshrrev_b32 v{vl+1}, 1, v{vl}
            v_lshlrev_b32 v{vl+1}, 3, v{vl+1}
            v_add_lshl_u32 v{vl}, v{vl}, v{vl+1}, 6
            s_mul_i32 s{S_T+12}, s{S_W}, 120
            s_mul_i32 s{S_T+13}, s{S_J}, 5
            s_lshr_b32 s{S_T+13}, s{S_T+13}, 2"""
        L += f"""
        s_add_u32 s{S_T+12}, s{S_T+12}, s{S_T+13}
        s_lshl_b32 s{S_T+12}, s{S_T+12}, 6
        s_add_u32 s{S_T+12}, s{S_T+12}, {WS_FB + side*512*FLS}
        s_mul_i32 s{S_B2}, s{S_J}, {5*S}
        s_mul_i32 s{S_T+13}, s{S_W}, {KS}
        s_add_u32 s{S_B2}, s{S_B2}, s{S_T+13}
        s_lshl_b32 s{S_B2}, s{S_B2}, 10
        s_add_u32 s{S_B2}, s{S_B2}, {WS_B2S[side]}"""
        self.order = [list(range(10)), [0, 3, 6, 9, 1, 4, 7, 10, 2, 5, 8, 11]][side]
        self.b2tok = {}; self.b2q = []
        for ss in self.order:
            for cc in range(5):
                def ld(ss=ss, cc=cc):
                    k(f"s_add_u32 s{S_T+11}, s{S_B2}, {(cc*S + ss)*1024}")
                    self.b2tok[ss, cc] = k(f"buffer_load_dwordx4 {a((ss*5+cc)*4,4)}, v{self.LV}, {WS4}, s{S_T+11} offen sc1")
                self.b2q.append(ld)
        L = [x.strip() for x in L.split("\n")]
        return ["\n".join(L[i:i+2]) for i in range(0, len(L), 2)]
    def b2_take(self, n):
        out = self.b2q[:n]; self.b2q = self.b2q[n:]
        return out
    def b2_poll(self):
        self.pbtok = self.k(f"buffer_load_dword v254, v{self.PV}, {WS4}, s{S_T+12} offen sc1")
    def b2_check(self):
        k = self.k
        k.wait_vm(self.pbtok)
        def rl(): k(f"buffer_load_dword v254, v{self.PV}, {WS4}, s{S_T+12} offen sc1\ns_waitcnt vmcnt(0)")
        self.verify(lambda: k(f"v_cmp_ne_u32 vcc, s{S_TAG}, v254"), rl, "pb")

    TB_RS = 184
    def ssm(self):
        k = self.k
        ACC = 16; FR = [96, 144]
        XE, XO, WA, WB, RD0, RD1, RX0, RX1, RW0, RW1 = 1, 2, 3, 4, 5, 6, 7, 8, 9, 10
        PV = self.PV; LV = self.LV; RS = self.TB_RS
        STG0, STGS = 16384, 36864
        GSCR = 147456
        acc = lambda a_, tt: ACC + (a_*10 + tt)*4
        k.c("================ SSM side, phase 1")
        self.stamp(0)
        k(f"""s_cmp_lt_u32 s{S_W}, 2
        s_cselect_b32 s{SRD_W}, s{P0+6}, s{P0+8}
        s_cselect_b32 s{SRD_W+1}, s{P0+7}, s{P0+9}
        s_mov_b32 s{SRD_W+2}, 819200
        s_mov_b32 s{SRD_W+3}, 0x20000
        v_lshrrev_b32 v13, 3, v0
        v_and_b32 v13, 3, v13
        v_lshrrev_b32 v15, 5, v0
        v_lshl_add_u32 v13, v15, 3, v13
        v_mul_u32_u24 v{XE}, 1280, v13
        v_add_u32 v{XE}, v{XE}, v12
        v_xor_b32 v{XO}, 64, v{XE}
        s_and_b32 s{S_T}, s{S_W}, 1
        s_lshl_b32 s{S_T+1}, s{S_T}, 6
        v_xor_b32 v{WA}, s{S_T+1}, v{WA}
        v_xor_b32 v{WB}, 64, v{WA}
        s_add_u32 s{S_XO+1}, s{S_XO}, {16*1280 - 1024}
        s_add_u32 s{S_XO+2}, s{S_XO}, {4*1280 - 2048}
        s_add_u32 s{S_XO+3}, s{S_XO}, {20*1280 - 3072}
        s_mul_i32 s{S_T+6}, s{S_J}, 80
        s_mul_i32 s{S_T+3}, s{S_T}, 40
        s_add_u32 s{S_T+2}, s{S_T+6}, s{S_T+3}
        s_mul_i32 s{S_WO}, s{S_T+2}, 1280
        s_add_u32 s{S_WO+1}, s{S_WO}, {8*1280 - 1024}
        s_add_u32 s{S_WO+2}, s{S_WO}, {16*1280 - 2048}
        s_add_u32 s{S_WO+3}, s{S_WO}, {24*1280 - 3072}
        s_add_u32 s{S_WO+4}, s{S_WO}, {32*1280}
        s_mul_i32 s{S_MW}, s{S_W}, 5120""")
        self.emit(self.div20(40, 41, 0))
        k(f"""s_mul_i32 s{S_T+1}, s{S_W}, 20
        v_add_u32 v41, s{S_T+1}, v41             ; p_local
        v_add_lshl_u32 v13, v41, s{S_T+6}, 1
        global_load_ushort v44, v13, {ptr(1)}
        global_load_ushort v45, v13, {ptr(2)}""")
        vec_tok = k(f"global_load_ushort v46, v13, {ptr(7)}")
        stage_tok = {}; stage_cnt = {}
        self.dma_reset(); self.has_w = False
        k(f"s_movk_i32 s{S_ST1K}, 128")
        self.rot_setup([XE, XO, WA, WB], False)
        def dma_list(t):
            base = STG0 + (t % 4)*STGS
            L = []
            def mk(ld):
                def f():
                    stage_tok[t] = k(ld); stage_cnt[t] = stage_cnt.get(t, 0) + 1
                return f
            for e in range(4):
                vr = XE if e % 2 == 0 else XO
                L.append(self.dma((S_MX, base), mk(f"buffer_load_dwordx4 v{vr}, {s(SRD_X,4)}, s{S_XO+e} offen offset:{e*1024} lds"), vr, t, 128))
            for e in range(5):
                vr = WA if e % 2 == 0 else WB
                L.append(self.dma((S_MW, base + 16384 + (e//4)*4096), mk(f"buffer_load_dwordx4 v{vr}, {s(SRD_W,4)}, s{S_WO+e} offen offset:{(e%4)*1024} lds"), vr, t, 128))
            return L
        k(f"""s_cmp_lt_u32 s{S_I}, 8
        s_cselect_b32 s{SRD_T1}, s{P0+6}, s{P0+8}
        s_cselect_b32 s{SRD_T1+1}, s{P0+7}, s{P0+9}
        s_cmp_eq_u32 s{S_W}, 0
        s_cselect_b32 s{SRD_T1}, s{P0}, s{SRD_T1}
        s_cselect_b32 s{SRD_T1+1}, s{P0+1}, s{SRD_T1+1}
        s_mov_b32 s{SRD_T1+2}, 819200
        s_cselect_b32 s{SRD_T1+2}, 2621440, s{SRD_T1+2}
        s_mov_b32 s{SRD_T1+3}, 0x20000
        s_lshl_b32 s{S_T}, s{S_I}, 7
        s_lshl_b32 s{S_T+1}, s{S_J}, 4
        s_add_u32 s{S_T}, s{S_T}, s{S_T+1}
        s_lshl_b32 s{S_T+1}, s{S_T}, 4
        s_add_u32 s{S_T+1}, s{S_T+1}, {WS_STG}
        s_lshl_b32 s{S_T+4}, s{S_W}, 2
        s_sub_u32 s{S_T+4}, s{S_T+4}, 4
        s_and_b32 s{S_T+2}, s{S_I}, 7
        s_mul_i32 s{S_T+2}, s{S_T+2}, 10
        s_add_u32 s{S_T+2}, s{S_T+2}, s{S_T+6}
        s_add_u32 s{S_T+2}, s{S_T+2}, s{S_T+4}
        s_mul_i32 s{S_T+3}, s{S_J}, 160
        s_mul_i32 s{S_T+5}, s{S_I}, 10
        s_add_u32 s{S_T+3}, s{S_T+3}, s{S_T+5}
        s_add_u32 s{S_T+3}, s{S_T+3}, s{S_T+4}
        s_lshl_b32 s{S_T+3}, s{S_T+3}, 4
        s_add_u32 s{S_T+3}, s{S_T+3}, {WS_WSG}
        s_cmp_eq_u32 s{S_W}, 0
        s_cselect_b32 s{S_T}, s{S_T}, s{S_T+2}
        s_cselect_b32 s{S_T+7}, s{S_T+1}, s{S_T+3}
        s_cmp_eq_u32 s{S_W}, 3
        s_cselect_b32 s{S_T+1}, 1, 3""")
        rs = self.rowstat_loads(SRD_T1, S_T, S_T+1, defer=True)
        U2, D2, SW0 = 57, 58, 59
        k(f"s_mov_b32 s{S_T+5}, s{S_T}")
        self.unit_decode(400, U2)
        k(f"""s_mul_i32 s{S_T+1}, s{S_T+2}, {16*1280}
        s_lshl_b32 s{S_T+3}, s{S_T}, 7
        s_add_u32 s{S_T+1}, s{S_T+1}, s{S_T+3}
        s_mul_i32 s{S_T+3}, s{S_T+2}, 40
        s_lshl_b32 s{S_T+4}, s{S_T}, 2
        s_add_u32 s{S_T+3}, s{S_T+3}, s{S_T+4}
        s_lshl_b32 s{S_T+3}, s{S_T+3}, 10
        s_add_u32 s{D2}, s{S_T+3}, {WS_B2S[0]}
        s_mov_b32 s{S_T}, s{S_T+5}
        s_mov_b32 s{SW0}, s{S_T+1}
        s_add_u32 s{SW0+1}, s{S_T+1}, {8*1280}""")
        self.srd(SRD_T2, 5, 819200)
        self.srd(SRD_OUT, 6, 819200)
        SCR2 = STG0 + 3*STGS
        tk = {}
        self.emit(rs)
        for p in dma_list(0): self.emit(p)
        swq = []
        for e in range(4):
            def f(e=e): tk['d2'] = k(f"buffer_load_dwordx4 v{PV}, {s(SRD_T2 if e < 2 else SRD_OUT,4)}, s{SW0+e%2} offen lds")
            swq.append(self.dma((S_MX, SCR2 + e*1024), f))
        memq = [(lambda p=p: self.emit(p)) for p in swq + dma_list(1)]
        k.wait_vm(vec_tok)
        ZR, ZI = 47, 48
        W = f"""v_lshlrev_b32 v46, 16, v46
        v_mul_f32 v46, {fbits(LOG2E)}, v46
        v_exp_f32 v46, v46
        v_lshlrev_b32 v44, 16, v44
        v_lshlrev_b32 v45, 16, v45
        v_min_u32 v40, 2, v40
        v_cvt_pk_bf16_f32 v46, v46, v46
        v_and_b32 v46, 0xffff0000, v46           ; dt rounded to bf16
        v_mul_f32 v{ZR}, v44, v46
        v_mul_f32 v{ZI}, v45, v46
        v_mul_f32 v{ZR}, {fbits(LOG2E)}, v{ZR}
        v_mul_f32 v{ZI}, 0.15915494, v{ZI}
        v_mul_u32_u24 v42, {RS}, v41
        v_lshl_add_u32 v43, v40, 3, v42          ; row + 8t
        v_lshlrev_b32 v49, 3, v40
        v_cvt_f32_u32 v49, v49                   ; 8t
        s_mov_b32 s{S_T+3}, {fbits(128.0)}
        s_mov_b32 s{S_T+4}, {fbits(8.0)}
        v_accvgpr_write_b32 a250, v{ZR}
        v_accvgpr_write_b32 a251, v{ZI}""".split("\n")
        P = []
        for q in range(6):
            P.append([f"v_add_f32 v{70+q}, {fbits(24.0*q)}, v49"] + self.cpow(50+2*q, 51+2*q, f"v{70+q}", ZR, ZI, 76+q))
        P.append([None] + self.cpow(62, 63, "1.0", ZR, ZI, 82))
        P.append([None] + self.cpow(84, 85, f"s{S_T+3}", ZR, ZI, 83))
        P.append([None] + self.cpow(248, 249, f"s{S_T+4}", ZR, ZI, 86))
        W += [x[i] for i in range(9) for x in P if x[i]]
        W += [f"ds_write_b64 v43, {v(50+2*q,2)} offset:{24*q}" for q in range(6)]
        W += f"""v_accvgpr_write_b32 a252, v84
        v_accvgpr_write_b32 a253, v85
        v_mul_f32 v70, v44, v44
        v_fma_f32 v70, v45, v45, v70
        v_rcp_f32 v70, v70
        v_mul_f32 v64, v62, v62
        v_mul_f32 v65, v62, v63
        v_fma_f32 v64, -v63, v63, v64
        v_add_f32 v65, v65, v65
        v_add_f32 v71, -1.0, v62
        v_add_f32 v70, v70, v70
        v_mul_f32 v66, v64, v64
        v_mul_f32 v67, v64, v65
        v_fma_f32 v66, -v65, v65, v66
        v_add_f32 v67, v67, v67
        v_mul_f32 v68, v71, v44
        v_mul_f32 v69, v63, v44
        v_fma_f32 v68, v63, v45, v68
        v_fma_f32 v69, -v71, v45, v69
        v_mul_f32 v68, v68, v70
        v_mul_f32 v69, v69, v70""".split("\n")
        W += [f"ds_write_b64 v42, {v(62+2*q,2)} offset:{144+8*q}" for q in range(4)]
        self.make_tag()
        self.rowstat_finish(self.rs_tok, S_T+7, memq[:4])
        self.sprinkle([x.strip() for x in W], memq[4:])
        k(f"""v_and_b32 v11, 15, v0
        v_lshrrev_b32 v12, 4, v0
        v_lshrrev_b32 v13, 1, v11
        v_xor_b32 v13, v13, v12
        v_lshlrev_b32 v13, 4, v13
        v_lshl_add_u32 v13, v11, 7, v13
        v_add_u32 v5, {STG0}, v13
        v_add_u32 v5, s{S_MX}, v5
        v_xor_b32 v6, 64, v5
        v_add_u32 v7, {STG0+16384}, v13
        v_xor_b32 v8, 64, v7
        v_add_u32 v9, {2*STGS}, v5
        v_add_u32 v10, {2*STGS}, v6
        v_add_u32 v250, {2*STGS}, v7
        v_add_u32 v251, {2*STGS}, v8""")
        RXA = [[5, 6], [9, 10]]; RWA = [[7, 8], [250, 251]]
        rtok = {}
        def mkreads(n):
            st = FR[n % 2]; ks = n % 2; sl = (n//2) % 4; o = (sl % 2)*STGS
            R = [f"ds_read_b128 {v(st+4*a_,4)}, v{RXA[sl//2][ks]} offset:{o+a_*2048}" for a_ in range(2)]
            R += [f"ds_read_b128 {v(st+8+4*tt,4)}, v{RWA[sl//2][ks]} offset:{o+tt*2048}" for tt in range(10)]
            L = []
            for i, r in enumerate(R):
                def f(i=i, r=r): rtok[n, i] = k(r)
                L.append(f)
            return L
        k.wait_both(stage_tok[0], k.lg_issued)
        k("s_barrier")
        self.stamp(1)
        self.emit(mkreads(0))
        LAM, LAM2, LAM4, WSUM = C5(192), C5(202), C5(212), C5(222)
        AT, BT, TG = 232, 240, 232
        L_AB = 14720
        mq = []
        def q_stage(t):
            for j_, (p_, l_) in enumerate(dma_list(t)): mq.append([max(2*(t-3), 2 if (t == 3 and j_ < 4) else 0), 1, p_, l_])
        def sw_store(cc):
            def f():
                k.wait_lg(tk['r2'])
                tk['s2'] = k(f"buffer_store_dwordx4 {a(220+4*cc,4)}, v{LV}, {WS4}, s{D2} offen offset:{1024*cc} sc1")
            return f
        def gl1(): k(f"buffer_load_dwordx4 {v(TG,4)}, v12, {WS4}, s{S_T+9} offen sc1")
        def gl2(): tk['gr'] = k(f"buffer_load_dwordx2 {v(TG+4,2)}, v14, {WS4}, s{S_T+8} offen sc1")
        q_stage(2); q_stage(3); mq.append([2, 2, None, sw_store(0)]); mq.append([2, 2, None, sw_store(1)])
        q_stage(4); mq.append([2, 2, None, sw_store(2)]); mq.append([2, 2, None, sw_store(3)])
        q_stage(5); mq.append([7, 1, None, gl1]); mq.append([7, 1, None, gl2])
        q_stage(6); q_stage(7); q_stage(8)
        NFLAG, NPOLL, NCHK = 10, 13, 15
        mq.append([NPOLL, 0.5, None, self.b2_poll]); q_stage(9)
        credit = 0.0
        for n in range(20):
            st = FR[n % 2]
            k.c(f"---- ssm k-step {n}")
            self.fine(16 + n)
            extra = []
            if n == 1:
                def f():
                    k.wait_vm(tk['d2'])
                    k(f"""v_lshrrev_b32 v11, 5, v0
                    v_bfe_u32 v12, v0, 4, 1
                    v_and_b32 v14, 15, v0
                    v_lshlrev_b32 v14, 7, v14
                    v_lshl_add_u32 v14, v11, 11, v14
                    v_lshl_add_u32 v14, v12, 4, v14
                    v_add_u32 v14, s{S_MX}, v14
                    v_add_u32 v14, {SCR2}, v14""")
                    for ss in range(4):
                        tk['r2'] = k(f"ds_read_b128 {a(220+4*ss,4)}, v14 offset:{32*ss}")
                extra.append(f)
            if n == 2: k.wait_lg(tk['r2'])
            if n == 5:
                extra += [f"v_and_b32 v12, 31, v0\nv_lshlrev_b32 v12, 4, v12", f"v_min_u32 v13, 39, v0\nv_lshlrev_b32 v14, 4, v13",
                          f"s_mul_i32 s{S_T+8}, s{S_J}, 2560\ns_mul_i32 s{S_T}, s{S_W}, 640",
                          f"s_add_u32 s{S_T+8}, s{S_T+8}, s{S_T}\ns_add_u32 s{S_T+8}, s{S_T+8}, {WS_WSG}"]
            if n == 6:
                extra += [f"s_lshl_b32 s{S_T+7}, s{U2}, 6\ns_add_u32 s{S_T+7}, s{S_T+7}, {WS_FB}",
                          f"s_lshl_b32 s{S_T+9}, s{S_I}, 11\ns_lshl_b32 s{S_T}, s{S_W}, 9",
                          f"s_add_u32 s{S_T+9}, s{S_T+9}, s{S_T}\ns_add_u32 s{S_T+9}, s{S_T+9}, {WS_STG}"]
            if n == 8: b2s = self.b2_setup(0)
            if n == 8: extra += b2s[:4]
            if n == 9: extra += b2s[4:]
            if n == NFLAG:
                def f():
                    k.wait_vm(tk['s2'])
                    self.set_flag(S_T+7, 15)
                extra += [f, f"v_and_b32 v11, 15, v0\nv_mul_u32_u24 v11, {RS}, v11"]
            if n == 11:
                k.wait_vm(tk['gr'])
                def check():
                    k(f"""v_xor_b32 v15, s{S_TAG}, v{TG+1}
                    v_bitop3_b32 v15, s{S_TAG2}, v{TG+3}, v15 bitop3:0xbe
                    v_bitop3_b32 v15, s{S_TAG}, v{TG+5}, v15 bitop3:0xbe
                    v_cmp_ne_u32 vcc, 0, v15""")
                def rl():
                    gl1(); gl2(); k("s_waitcnt vmcnt(0)")
                self.verify(check, rl, "pg")
                stq = [f"s_mov_b32 s{S_T}, {fbits(1.0/640)}\nv_mul_f32 v{TG}, s{S_T}, v{TG}", f"v_mul_f32 v15, v{TG}, v{TG}\nv_fma_f32 v15, v{TG+2}, s{S_T}, -v15",
                       f"v_max_f32 v15, 0, v15\nv_add_f32 v15, {fbits(EPS)}, v15", f"v_rsq_f32 v15, v15",
                       f"s_lshl_b32 s{S_T}, s{S_W}, 7\nv_lshrrev_b32 v12, 2, v12", f"v_add_u32 v12, s{S_T}, v12\nv_mul_f32_e64 v{TG}, v{TG}, -v15",
                       f"v_add_u32 v12, {L_AB}, v12\nds_write2st64_b32 v12, v15, v{TG} offset0:0 offset1:2",
                       f"s_and_b32 s{S_T}, s{S_W}, 1\ns_mul_i32 s{S_T}, s{S_T}, 40", f"v_add_u32 v13, s{S_T}, v13\nv_mul_u32_u24 v13, {RS}, v13",
                       f"s_lshr_b32 s{S_T}, s{S_W}, 1\ns_lshl_b32 s{S_T}, s{S_T}, 2", f"v_add_u32 v13, s{S_T}, v13\nds_write_b32 v13, v{TG+4} offset:176"]
                extra += stq[:5]
            if n == 12: extra += stq[5:]
            if n == NCHK:
                self.b2_check()
                mq += [[n, 1, None, f] for f in self.b2q]
            if n == 14:
                extra += [f"v_lshrrev_b32 v14, 4, v0\ns_lshl_b32 s{S_T}, s{S_W}, 7", f"v_lshl_add_u32 v12, v14, 5, s{S_T}"]
                extra += [f"ds_read_b128 {v(AT+4*q,4)}, v12 offset:{L_AB+16*(q%2)+512*(q//2)}" for q in range(4)]
            if 15 <= n <= 19:
                b = n - 15
                extra += [f"ds_read_b64 {v(LAM.r(b),2)}, v11 offset:{16*b*RS+144}", f"ds_read_b64 {v(LAM2.r(b),2)}, v11 offset:{16*b*RS+152}",
                          f"ds_read_b64 {v(LAM4.r(b),2)}, v11 offset:{16*b*RS+160}", f"ds_read_b64 {v(WSUM.r(b),2)}, v11 offset:{16*b*RS+176}"]
            mem = []
            credit = min(credit + 5.4, 6.5)
            while mq and mq[0][0] <= n and credit >= mq[0][1] and len(mem) < 6:
                it_ = mq.pop(0); credit -= it_[1]; mem.append(it_)
                if it_[3] in self.__dict__.get('b2q', []): self.b2q.remove(it_[3])
            rd = mkreads(n+1) if n + 1 < 20 else []
            slots = [[] for _ in range(20)]
            if n % 2 == 0:
                rslots = [0, 1, 2, 4, 5, 6, 8, 9, 11, 12, 13, 15]; mslots = [3, 7, 10, 14, 17, 19]
            else:
                rslots = [4, 5, 6, 7, 9, 10, 11, 12, 14, 15, 16, 17]; mslots = [0, 2, 8, 13, 18, 19]
                if n + 1 < 20:
                    T_ = (n + 1)//2
                    def f(T_=T_):
                        assert stage_cnt[T_] == 9
                        k.wait_both(stage_tok[T_], k.lg_issued)
                        k("s_barrier")
                    slots[3] += [f]
            if len(mem) < 6: mslots = mslots[:5]
            for sl, r in zip(rslots, rd): slots[sl].append(r)
            used = set()
            for sl, it_ in zip(mslots, mem):
                if it_[2]:
                    if sl > 0: slots[sl-1].append(it_[2])
                    else: it_[2]()
                slots[sl].insert(0, it_[3]); used.add(sl)
            for i in range(20):
                if not extra: break
                if not slots[i]: slots[i].append(extra.pop(0))
                elif i in rslots and len(slots[i]) == 1 and isinstance(extra[0], str) and not extra[0].startswith("ds_"):
                    a_, _, b_ = extra.pop(0).partition("\n")
                    slots[i].append(a_)
                    if b_: extra.insert(0, b_)
            slots[19] += extra
            i = 0
            for tt in range(10):
                for a_ in range(2):
                    k.wait_lg(max(rtok[n, a_], rtok[n, 2+tt]))
                    c_ = "0" if n == 0 else v(acc(a_, tt), 4)
                    k(f"v_mfma_f32_16x16x32_bf16 {v(acc(a_,tt),4)}, {v(st+4*a_,4)}, {v(st+8+4*tt,4)}, {c_}")
                    self.emit(slots[i]); i += 1
        assert all(x[3] in self.b2q for x in mq)
        self.info = f"ssm b2 left {len(self.b2q)}"
        k.c('loop end')
        self.stamp(2)
        if self.early_stop("loop"): return
        self.ssm_epilogue(ACC, AT, BT, LAM, LAM2, LAM4, WSUM, L_AB)

    def ssm_epilogue(self, ACC, AT, BT, LAM, LAM2, LAM4, WSUM, L_AB):
        k = self.k; RS = self.TB_RS; LV = self.LV
        acc = lambda a_, tt: ACC + (a_*10 + tt)*4
        tok = lambda r, tt: acc(r//4, tt) + r % 4
        L_E, L_C = 16384, 102400
        TM, SEG = 146, 15
        def bc(r): return v(r & ~1, 2), r & 1
        k.c("================ SSM epilogue")
        self.nf2 = 0; self.fine2()
        self.emit(self.div20(8, 9, 0))
        k(f"""v_and_b32 v11, 15, v0
        s_lshl_b32 s{S_T}, s{S_W}, 2
        v_add_u32 v{SEG}, s{S_T}, v14
        v_mul_u32_u24 v13, 768, v{SEG}
        v_mul_u32_u24 v12, 48, v11
        v_add_u32 v13, v13, v12                  ; E[s][col]
        s_mul_i32 s{S_T}, s{S_W}, 20
        v_add_u32 v9, s{S_T}, v9
        v_and_b32 v10, 15, v9
        v_mul_u32_u24 v10, 48, v10
        v_lshrrev_b32 v7, 4, v9
        v_lshl_add_u32 v10, v7, 3, v10           ; E[.][p_local]
        s_waitcnt lgkmcnt(0)""")
        for tt in list(range(10)):
            ws = WSUM.r(tt % 5); hi = tt // 5
            for a_ in range(2):
                for h in range(2):
                    t_ = TM + 2*(a_*2 + h) + 8*(tt % 2)
                    k(f"v_pk_mul_f32 {v(t_,2)}, {v(BT+4*a_+2*h,2)}, {v(ws,2)} op_sel:[0,{hi}] op_sel_hi:[1,{hi}]")
            for a_ in range(2):
                for h in range(2):
                    d = acc(a_, tt) + 2*h; t_ = TM + 2*(a_*2 + h) + 8*(tt % 2)
                    k(f"v_pk_fma_f32 {v(d,2)}, {v(AT+4*a_+2*h,2)}, {v(d,2)}, {v(t_,2)}")
        self.fine2()
        V1 = 96; EE = C5(136)
        def pkc(dr, di, ar, ai, cr_, ci_, lr, li):
            (pr, sr), (pi, si) = bc(lr), bc(li)
            return [f"v_pk_fma_f32 {v(dr,2)}, {v(ar,2)}, {pr}, {v(cr_,2)} op_sel:[0,{sr},0] op_sel_hi:[1,{sr},1]",
                    f"v_pk_fma_f32 {v(di,2)}, {v(ai,2)}, {pr}, {v(ci_,2)} op_sel:[0,{sr},0] op_sel_hi:[1,{sr},1]",
                    f"v_pk_fma_f32 {v(dr,2)}, {v(ai,2)}, {pi}, {v(dr,2)} op_sel:[0,{si},0] op_sel_hi:[1,{si},1] neg_lo:[1,0,0] neg_hi:[1,0,0]",
                    f"v_pk_fma_f32 {v(di,2)}, {v(ar,2)}, {pi}, {v(di,2)} op_sel:[0,{si},0] op_sel_hi:[1,{si},1]"]
        LL = [pkc(V1+8*b+2*h, V1+8*b+4+2*h, acc(0,b)+2*h, acc(0,5+b)+2*h, acc(1,b)+2*h, acc(1,5+b)+2*h, LAM4.r(b), LAM4.i(b))
              for b in range(5) for h in range(2)]
        for i in range(4):
            for x in LL: k(x[i])
        LL = [pkc(V1+8*b+2, V1+8*b+6, V1+8*b, V1+8*b+4, V1+8*b+2, V1+8*b+6, LAM2.r(b), LAM2.i(b)) for b in range(5)]
        for i in range(4):
            for x in LL: k(x[i])
        self.emit(self.cmul5(EE, LAM, C5(V1+2, V1+6, 8), C5(V1+3, V1+7, 8)))
        k(f"""ds_write_b128 v13, {v(136,4)} offset:{L_E}
        ds_write_b128 v13, {v(140,4)} offset:{L_E+16}
        ds_write_b64 v13, {v(144,2)} offset:{L_E+32}
        v_lshlrev_b32 v6, 4, v9
        s_lshl_b32 s{S_T}, s{S_J}, 4
        s_add_u32 s{S_T+1}, s{S_T}, s{S_I}
        s_mul_i32 s{S_T+1}, s{S_T+1}, 1280
        s_add_u32 s{S_T+1}, s{S_T+1}, {WS_AGG}
        v_mov_b32 v129, s{S_TAG}
        v_mov_b32 v131, s{S_TAG2}
        s_waitcnt lgkmcnt(0)
        s_barrier""")
        self.fine2()
        CH = 96; L8R, L8I = 248, 249
        ct = [k(f"ds_read_b64 {v(CH+2*q,2)}, v10 offset:{L_E+768*q}") for q in range(16)]
        for q in range(1, 16):
            k.wait_lg(ct[q])
            er, ei, pr, pi = CH+2*q, CH+2*q+1, CH+2*q-2, CH+2*q-1
            if q < 15:
                k(f"v_fmac_f32 v{er}, v{L8R}, v{pr}\nv_fmac_f32 v{ei}, v{L8R}, v{pi}\nv_fma_f32 v{er}, -v{L8I}, v{pi}, v{er}\nv_fmac_f32 v{ei}, v{L8I}, v{pr}")
            else:
                k(f"v_fmac_f32 v{er}, v{L8R}, v{pr}\nv_fmac_f32 v{ei}, v{L8R}, v{pi}\nv_fma_f32 v128, -v{L8I}, v{pi}, v{er}\nv_fma_f32 v130, v{L8I}, v{pr}, v{ei}")
        k(f"""s_mov_b64 exec, 0xfffff
        buffer_store_dwordx4 v[128:131], v6, {WS4}, s{S_T+1} offen sc1
        s_mov_b64 exec, -1""")
        self.stamp(3); self.fine2()
        KK, US, CS, VV, DD = C5(202), C5(212), C5(136), C5(146, 151), C5(156, 161)
        work = [f"ds_write_b64 v10, {v(CH+2*q,2)} offset:{L_E+768*q}" for q in range(1, 15)]
        work += [f"v_mul_u32_u24 v7, {RS}, v11", f"v_lshl_add_u32 v5, v{SEG}, 3, v7"]
        work += [f"ds_read_b64 {v(KK.r(b),2)}, v7 offset:{16*b*RS+168}" for b in range(5)]
        work += [f"ds_read_b64 {v(US.r(b),2)}, v5 offset:{16*b*RS}" for b in range(5)]
        GB = 96
        BZR, BZI, BLR, BLI, BQR, BQI, BT_ = 116, 117, 118, 119, 120, 121, 122
        MK = 36
        work += [f"v_min_u32 v8, 2, v8", f"v_mul_u32_u24 v7, 5, v8", f"v_mul_u32_u24 v5, 1280, v7", f"v_add_u32 v6, v6, v5",
                 f"s_mul_i32 s{S_T+4}, s{S_J}, {16*1280}", f"s_add_u32 s{S_T+4}, s{S_T+4}, {WS_AGG}", f"s_add_u32 s{S_T+5}, s{S_T+4}, 3840",
                 "s_waitcnt lgkmcnt(0)", "s_barrier",
                 f"ds_read_b128 {v(136,4)}, v13 offset:{L_E-768}", f"ds_read_b128 {v(140,4)}, v13 offset:{L_E-768+16}", f"ds_read_b64 {v(144,2)}, v13 offset:{L_E-768+32}",
                 f"v_accvgpr_read_b32 v{BZR}, a250", f"v_accvgpr_read_b32 v{BZI}, a251", f"v_accvgpr_read_b32 v{BLR}, a252", f"v_accvgpr_read_b32 v{BLI}, a253",
                 f"v_add_u32 v10, 5, v7", f"v_min_u32 v10, s{S_I}, v10", f"v_sub_u32 v10, s{S_I}, v10", f"v_lshlrev_b32 v10, 7, v10", f"v_cvt_f32_u32 v10, v10"]
        work += self.cpow(BQR, BQI, "v10", BZR, BZI, BT_)
        for q in range(5): work += [f"v_add_u32 v10, {q}, v7", f"v_cmp_gt_u32 {s(MK+2*q,2)}, s{S_I}, v10"]
        ku = []
        for b in range(5):
            (kr, sr), (ki, si) = bc(KK.r(b)), bc(KK.i(b))
            for h in range(4):
                ur = tok(2*h, b); ui = tok(2*h, 5+b); t_ = 166 + 4*(h % 2)
                ku += [f"v_pk_mul_f32 {v(t_,2)}, {v(ur,2)}, {kr} op_sel:[0,{sr}] op_sel_hi:[1,{sr}]",
                       f"v_pk_mul_f32 {v(t_+2,2)}, {v(ur,2)}, {ki} op_sel:[0,{si}] op_sel_hi:[1,{si}]",
                       f"v_pk_fma_f32 {v(ur,2)}, {v(ui,2)}, {ki}, {v(t_,2)} op_sel:[0,{si},0] op_sel_hi:[1,{si},1] neg_lo:[1,0,0] neg_hi:[1,0,0]",
                       f"v_pk_fma_f32 {v(ui,2)}, {v(ui,2)}, {kr}, {v(t_+2,2)} op_sel:[0,{sr},0] op_sel_hi:[1,{sr},1]"]
        work += ku
        self.sprinkle(work, self.b2_take(len(self.b2q)))
        self.fine2()
        def gloads():
            for q in range(5):
                t = k(f"buffer_load_dwordx4 {v(GB+4*q,4)}, v6, {WS4}, s{S_T+4+(q//3)} offen offset:{1280*(q%3)} sc1")
            return t
        gtok = gloads()
        w2 = ["s_waitcnt lgkmcnt(0)", f"s_cmp_eq_u32 s{S_W}, 0", "s_cselect_b64 exec, 0xffff, 0"]
        w2 += [f"v_mov_b32 v{136+q}, 0" for q in range(10)] + ["s_mov_b64 exec, -1"]
        w2 += self.cmul5(VV, KK, US) + self.cmul5(DD, KK, CS)
        w2 += [x.strip() for x in f"""v_and_b32 v5, 15, v9
        v_mul_u32_u24 v5, 160, v5
        v_lshrrev_b32 v4, 4, v9
        v_lshlrev_b32 v4, 5, v4
        v_lshl_add_u32 v4, v8, 3, v4
        v_add_u32 v5, v5, v4
        v_add_u32 v5, {L_C}, v5
        v_mul_u32_u24 v12, 160, v11
        v_add_u32 v12, {L_C}, v12
        v_mov_b32 v{BZR}, 0
        v_mov_b32 v{BZI}, 0
        s_mul_i32 s{S_T}, s{S_W}, {RED_W}
        s_add_u32 s{S_T}, s{S_T}, {LDS_RED}
        v_mul_u32_u24 v13, 80, v11
        v_lshl_add_u32 v13, v14, 4, v13
        v_add_u32 v13, s{S_T}, v13
        v_lshrrev_b32 v4, 2, v11
        v_lshl_add_u32 v4, v14, 3, v4
        v_mul_u32_u24 v4, 80, v4
        v_and_b32 v3, 3, v11
        v_lshl_add_u32 v4, v3, 3, v4
        v_add_u32 v4, s{S_T}, v4
        v_and_b32 v3, 1, v11
        v_lshlrev_b32 v3, 4, v3
        v_lshrrev_b32_e64 v3, v3, s{S_PAT}
        v_and_b32 v3, 1, v3
        v_mul_u32_u24 v3, 0x10001, v3
        s_lshl_b32 s{S_T}, s{S_I}, 3
        s_lshl_b32 s{S_T+1}, s{S_W}, 1
        s_add_u32 s{S_T}, s{S_T}, s{S_T+1}
        s_mul_i32 s{S_T}, s{S_T}, 40
        s_mul_i32 s{S_T+1}, s{S_J}, 5
        s_add_u32 s{S_T}, s{S_T}, s{S_T+1}
        s_lshl_b32 s{S_T}, s{S_T}, 10
        s_add_u32 s{S_T+8}, s{S_T}, {WS_A2[0]}
        s_add_u32 s{S_T+9}, s{S_T+8}, 4096
        s_add_u32 s{S_T+10}, s{S_T+8}, {40*1024}
        s_add_u32 s{S_T+11}, s{S_T+8}, {40*1024+4096}""".split("\n")]
        self.sprinkle(w2, self.resid_loads())
        self.stamp(4); self.fine2()
        k.wait_vm(gtok)
        def check():
            for q in range(5):
                k(f"v_xor_b32 v10, s{S_TAG}, v{GB+4*q+1}")
                k(f"v_bitop3_b32 v10, s{S_TAG2}, v{GB+4*q+3}, v10 bitop3:0xbe")
                k(f"v_cmp_ne_u32 {s(S_T+2,2)}, 0, v10")
                k(f"s_and_b64 {'vcc' if q == 0 else s(S_T+2,2)}, {s(S_T+2,2)}, {s(MK+2*q,2)}")
                if q: k(f"s_or_b64 vcc, vcc, {s(S_T+2,2)}")
        def reload():
            gloads(); k("s_waitcnt vmcnt(0)")
        self.verify(check, reload, "pc")
        self.stamp(5); self.fine2()
        for q in range(5):
            er, ei = GB+4*q, GB+4*q+2
            k(f"""s_mov_b64 exec, {s(MK+2*q,2)}
            v_fmac_f32 v{er}, v{BLR}, v{BZR}
            v_fmac_f32 v{ei}, v{BLR}, v{BZI}
            v_fmac_f32 v{ei}, v{BLI}, v{BZR}
            v_fma_f32 v{BZR}, -v{BLI}, v{BZI}, v{er}
            v_mov_b32 v{BZI}, v{ei}""")
        k(f"""s_mov_b64 exec, -1
        v_mul_f32 v126, v{BQR}, v{BZR}
        v_mul_f32 v127, v{BQR}, v{BZI}
        v_fma_f32 v126, -v{BQI}, v{BZI}, v126
        v_fmac_f32 v127, v{BQI}, v{BZR}
        ds_write_b64 v5, v[126:127]
        s_waitcnt lgkmcnt(0)
        s_barrier""")
        CB = 96
        ct = []
        for b in range(5):
            k(f"ds_read_b128 {v(CB+6*b,4)}, v12 offset:{32*b}")
            ct.append(k(f"ds_read_b64 {v(CB+6*b+4,2)}, v12 offset:{32*b+16}"))
        for b in range(5):
            k.wait_lg(ct[b])
            k(f"v_pk_add_f32 {v(CB+6*b,2)}, {v(CB+6*b,2)}, {v(CB+6*b+2,2)}")
        for b in range(5):
            k(f"v_pk_add_f32 {v(CB+6*b,2)}, {v(CB+6*b,2)}, {v(CB+6*b+4,2)}")
        self.emit(self.cmul5(DD, VV, C5(CB, CB+1, 6), DD))
        self.fine2()
        PK = 96
        frg = lambda b, tt2: (136 + 4*(2*b + tt2)) if 2*b + tt2 < 5 else (202 + 4*(2*b + tt2 - 5))
        wt = {}; rt = {}
        def scan(bs):
            L = []
            for r in range(8):
                pr = lambda b: DD.r(b) if r == 0 else tok(r-1, b)
                pi = lambda b: DD.i(b) if r == 0 else tok(r-1, 5+b)
                for b in bs: L += [f"v_fmac_f32 v{tok(r,b)}, v{LAM.r(b)}, v{pr(b)}", f"v_fmac_f32 v{tok(r,5+b)}, v{LAM.r(b)}, v{pi(b)}"]
                for b in bs: L += [f"v_fma_f32 v{tok(r,b)}, -v{LAM.i(b)}, v{pi(b)}, v{tok(r,b)}", f"v_fmac_f32 v{tok(r,5+b)}, v{LAM.i(b)}, v{pr(b)}"]
            for b in bs:
                for comp in range(2):
                    d = PK + 4*(2*b + comp); ng = "-" if comp else ""
                    L += [f"v_cvt_pk_bf16_f32 v{d+h}, {ng}v{tok(2*h,5*comp+b)}, {ng}v{tok(2*h+1,5*comp+b)}" for h in range(4)]
                    L += [f"v_and_or_b32 v{d+h}, v{d+h}, s{S_NM}, v3" for h in range(4)]
                    def f(b=b, d=d, comp=comp): wt[b] = k(f"ds_write_b128 v13, {v(d,4)} offset:{(32*b+16*comp)*80}")
                    L.append(f)
            return L
        def outq(bs):
            L = []
            for b in bs:
                def trr(b=b):
                    k.wait_lg(wt[b])
                    for tt2 in range(2):
                        d = frg(b, tt2)
                        k(f"ds_read_b64_tr_b16 {v(d,2)}, v4 offset:{(32*b)*80+32*tt2}")
                        rt[b, tt2] = k(f"ds_read_b64_tr_b16 {v(d+2,2)}, v4 offset:{(32*b+4)*80+32*tt2}")
                L.append(trr)
            for b in bs:
                for tt2 in range(2):
                    def sto(b=b, tt2=tt2):
                        k.wait_lg(rt[b, tt2])
                        so = S_T + 8 + 2*tt2 + (1 if b == 4 else 0)
                        self.last_st = k(f"buffer_store_dwordx4 {v(frg(b,tt2),4)}, v{LV}, {WS4}, s{so} offen offset:{1024*(b%4)} sc1")
                    L.append(sto)
            return L
        self.emit(scan([0, 1]))
        self.sprinkle(scan([2, 3]), outq([0, 1]), lead=4)
        self.sprinkle(scan([4]), outq([2, 3]), lead=4)
        self.emit(outq([4]))
        self.stamp(6); self.fine2()
        self.resid_compute(L_AB)
        self.fine2()
        self.p2_addr(0)
        k(f"s_add_u32 s{S_T}, s{S_FLAG}, {WS_FA}")
        k.wait_vm(self.last_st)
        self.set_flag(S_T, 13)
        self.stamp(7)
        self.phase2(0)

    def resid_loads(self):
        k = self.k
        self.srd(SRD_T1, 8, 1280)
        self.srd(SRD_T2, 13, 1280)
        k(f"""s_lshl_b32 s{S_T+12}, s{S_I}, 7
        s_lshl_b32 s{S_T+13}, s{S_W}, 4
        s_add_u32 s{S_T+12}, s{S_T+12}, s{S_T+13}
        s_mul_i32 s{S_T+12}, s{S_T+12}, 1280
        s_mul_i32 s{S_T+14}, s{S_J}, 160
        s_add_u32 s{S_T+12}, s{S_T+12}, s{S_T+14}
        s_mul_i32 s{S_T+13}, s{S_W}, 5120
        s_add_u32 s{S_T+13}, s{S_T+13}, {L_R}""")
        L = []
        for it in range(5):
            def f(it=it):
                k(f"""v_add_u32 v1, {64*it}, v0
                v_mul_u32_u24 v2, 6554, v1
                v_lshrrev_b32 v2, 16, v2             ; row (0..31)
                v_mul_u32_u24 v7, 10, v2
                v_sub_u32 v1, v1, v7
                v_lshrrev_b32 v7, 4, v2
                v_mul_u32_u24 v7, 48, v7
                v_add_u32 v2, v2, v7
                v_mul_u32_u24 v2, 1280, v2
                v_lshl_add_u32 v1, v1, 4, v2
                s_add_u32 m0, s{S_T+13}, {1024*it}
                buffer_load_dwordx4 v1, {s(SRD_X,4)}, s{S_T+12} offen lds""")
            L.append(f)
        def g():
            k(f"""v_lshlrev_b32 v1, 2, v0
            s_add_u32 m0, s{S_T+13}, 20480
            buffer_load_dword v1, {s(SRD_T1,4)}, s{S_T+14} offen lds
            s_add_u32 m0, s{S_T+13}, {20480+256}""")
            self.rl_tok = k(f"buffer_load_dword v1, {s(SRD_T2,4)}, s{S_T+14} offen lds")
        return L + [g]
    def resid_compute(self, L_AB):
        k = self.k
        ST, XB, DB, BB, T = 16, 36, 56, 66, 166
        k(f"s_lshl_b32 s{S_T+4}, s{S_W}, 6\ns_add_u32 s{S_T+4}, s{S_T+4}, {L_AB}")
        k.wait_vm(self.rl_tok)
        for it in range(5):
            k(f"v_add_u32 v1, {64*it}, v0")
            self.emit(self.div20(2, 7, 1))
            k(f"""v_lshl_add_u32 v1, v2, 2, s{S_T+4}
            v_lshl_add_u32 v7, v7, 3, s{S_T+13}
            v_mad_u32_u24 v2, v2, s{S_T+15}, v7""".replace(f"v_mad_u32_u24 v2, v2, s{S_T+15}, v7", f"v_mul_u32_u24 v2, 160, v2\nv_add_u32 v2, v2, v7"))
            k(f"""ds_read2st64_b32 {v(ST+2*it,2)}, v1 offset0:0 offset1:2
            ds_read2st64_b32 {v(ST+10+2*it,2)}, v1 offset0:1 offset1:3
            ds_read_b64 {v(XB+2*it,2)}, v2
            ds_read_b64 {v(XB+10+2*it,2)}, v2 offset:2560
            ds_read_b64 {v(DB+2*it,2)}, v7 offset:20480
            ds_read_b64 {v(BB+2*it,2)}, v7 offset:{20480+256}""")
        k(f"v_add_u32 v10, s{S_T+13}, v{self.LV}")
        k("s_waitcnt lgkmcnt(0)")
        for it in range(5):
            dd, bb = [76, 100][it % 2], [76, 100][it % 2] + 4
            for (src, dst) in ((DB+2*it, dd), (BB+2*it, bb)):
                for h in range(2):
                    k(f"v_lshlrev_b32 v{dst+2*h}, 16, v{src+h}\nv_and_b32 v{dst+2*h+1}, 0xffff0000, v{src+h}")
            for hf in range(2):
                xx = dd + 8 + 8*hf
                for h in range(2):
                    k(f"v_lshlrev_b32 v{xx+2*h}, 16, v{XB+10*hf+2*it+h}\nv_and_b32 v{xx+2*h+1}, 0xffff0000, v{XB+10*hf+2*it+h}")
            for hf in range(2):
                xx = dd + 8 + 8*hf; rr = xx + 4; st = ST + 10*hf + 2*it
                for h in range(2):
                    k(f"""v_pk_add_f32 {v(rr+2*h,2)}, {v(bb+2*h,2)}, {v(xx+2*h,2)}
                    v_pk_fma_f32 {v(xx+2*h,2)}, {v(xx+2*h,2)}, {v(st,2)}, {v(st,2)} op_sel:[0,0,1] op_sel_hi:[1,0,1]""")
            for hf in range(2):
                xx = dd + 8 + 8*hf; rr = xx + 4
                for h in range(2):
                    k(f"v_pk_fma_f32 {v(rr+2*h,2)}, {v(xx+2*h,2)}, {v(dd+2*h,2)}, {v(rr+2*h,2)}")
                k(f"ds_write_b128 v10, {v(rr,4)} offset:{hf*20480+it*1024}")

    def mlp(self):
        k = self.k
        ACC = 16; WSA = 112; ONE = 124; FR = [128, 148]
        B1R = 126; GS = 168
        XE, XO, W0 = 3, 2, 4
        RXB, AEB, AOB = 176, 180, 184
        PV = self.PV; LV = self.LV
        STGS = 40960
        S_MH, S_NH = 42, 43
        k.label("L_mlp")
        k.c("================ MLP side, phase 1")
        self.stamp(0)
        k(f"""s_min_u32 s{S_T+2}, s{S_W}, 2
        s_lshl_b32 s{S_T+2}, s{S_T+2}, 2
        s_lshl_b32 s{S_T}, s{S_I}, 7
        s_lshl_b32 s{S_T+1}, s{S_J}, 4
        s_add_u32 s{S_T}, s{S_T}, s{S_T+1}
        s_add_u32 s{S_T}, s{S_T}, s{S_T+2}
        s_add_u32 s{S_T}, s{S_T}, 4
        s_lshl_b32 s{S_T+7}, s{S_T}, 4
        s_add_u32 s{S_T+7}, s{S_T+7}, {WS_STG}
        s_mov_b32 s{S_T+1}, 3""")
        self.rowstat_loads(SRD_X, S_T, S_T+1)
        k(f"""v_xor_b32 v{XO}, 64, v{XE}
        s_add_u32 s{S_XO+1}, s{S_XO}, {8*1280 - 1024}
        s_add_u32 s{S_XO+2}, s{S_XO}, {16*1280 - 2048}
        s_add_u32 s{S_XO+3}, s{S_XO}, {24*1280 - 3072}""")
        stage_tok = {}; stage_cnt = {}
        self.dma_reset(); self.has_w = True
        k(f"s_movk_i32 s{S_ST1K}, 128\ns_mov_b32 s{S_ST2K}, {64*3072}")
        self.rot_setup([XE, XO], True)
        WSO = [S_WO, S_WO, S_WO, S_WO+1, S_WO+4, S_WO+4]
        def dma_list(t):
            base = (t % 4)*STGS
            L = []
            def mk(ld):
                def f():
                    stage_tok[t] = k(ld); stage_cnt[t] = stage_cnt.get(t, 0) + 1
                return f
            for e in range(4):
                vr = XE if e % 2 == 0 else XO
                L.append(self.dma((S_MX, base + 24576), mk(f"buffer_load_dwordx4 v{vr}, {s(SRD_X,4)}, s{S_XO+e} offen offset:{e*1024} lds"), vr, t, 128))
            for n in range(6):
                L.append(self.dma((S_MW, base + (n//4)*4096), mk(f"buffer_load_dwordx4 v{W0+n%3}, {s(SRD_W,4)}, s{WSO[n]} offen offset:{(n%4)*1024} lds"), W0+n%3, t, 64*3072))
            return L
        d0 = dma_list(0)
        for p in d0[:4]: self.emit(p)
        self.srd(SRD_W, 10, 1966080)
        k(f"""s_mul_i32 s{S_MW}, s{S_W}, 6144
        s_mul_i32 s{S_WO}, s{S_W}, {16*3072}
        s_mul_i32 s{S_T}, s{S_J}, 384
        s_add_u32 s{S_WO}, s{S_WO}, s{S_T}
        s_add_u32 s{S_WO+1}, s{S_WO}, {24576 - 3072}
        s_add_u32 s{S_WO+4}, s{S_WO}, {24576 + 1024}
        s_lshr_b32 s{S_MH}, s{S_W}, 1
        s_and_b32 s{S_NH}, s{S_W}, 1""")
        for n in range(3):
            k(f"""v_add_u32 v10, {64*n}, v0
            v_mul_u32_u24 v12, 2731, v10
            v_lshrrev_b32 v12, 16, v12
            v_mul_u32_u24 v13, 24, v12
            v_sub_u32 v13, v10, v13
            v_bfe_u32 v40, v12, 1, 1
            v_lshlrev_b32 v40, 2, v40
            v_xor_b32 v13, v13, v40
            v_mul_u32_u24 v12, 3072, v12
            v_lshl_add_u32 v{W0+n}, v13, 4, v12""")
            if n: k(f"v_subrev_u32 v{W0+n}, {1024*n}, v{W0+n}")
            k(f"v_add_u32 v{W0+n}, s{S_ST2}, v{W0+n}")
            self.emit(d0[4+n])
        for p in d0[7:]: self.emit(p)
        U1, D1, SW0 = 57, 58, 59
        self.srd(SRD_T2, 12, 1966080)
        self.unit_decode(480, U1)
        k(f"""s_mul_i32 s{S_T+1}, s{S_T+2}, {32*1280}
        s_lshl_b32 s{S_T+3}, s{S_T}, 7
        s_add_u32 s{SW0}, s{S_T+1}, s{S_T+3}
        s_mul_i32 s{S_T+3}, s{S_T}, {4*48}
        s_add_u32 s{S_T+3}, s{S_T+3}, s{S_T+2}
        s_lshl_b32 s{S_T+3}, s{S_T+3}, 10
        s_add_u32 s{D1}, s{S_T+3}, {WS_B2S[1]}""")
        SCR = 3*STGS + 24576
        tk = {}
        swq = []
        for e in range(4):
            def f(e=e):
                k(f"s_add_u32 s{S_T+2}, s{SW0}, {e*8*1280}")
                tk['d1'] = k(f"buffer_load_dwordx4 v{PV}, {s(SRD_T2,4)}, s{S_T+2} offen lds")
            swq.append(self.dma((S_MX, SCR + e*1024), f))
        d1 = dma_list(1)
        self.make_tag()
        self.rowstat_finish(self.rs_tok, S_T+7, [(lambda p=p: self.emit(p)) for p in d1[:4]])
        W = f"""v_and_b32 v11, 31, v0
        v_lshrrev_b32 v12, 5, v0
        v_bfe_u32 v13, v0, 1, 3
        v_xor_b32 v13, v13, v12
        v_lshlrev_b32 v13, 4, v13
        v_lshl_add_u32 v13, v11, 7, v13
        s_lshl_b32 s{S_T}, s{S_MH}, 13
        s_add_u32 s{S_T}, s{S_T}, 24576
        v_add_u32 v10, s{S_T}, v13
        v_bfe_u32 v13, v0, 2, 2
        v_lshl_add_u32 v40, v12, 3, v13
        v_mul_u32_u24 v40, 384, v40
        v_bfe_u32 v15, v0, 4, 1
        v_lshl_add_u32 v40, v15, 5, v40
        v_and_b32 v15, 3, v0
        v_lshl_add_u32 v40, v15, 3, v40
        s_mul_i32 s{S_T}, s{S_NH}, 192
        v_add_u32 v40, s{S_T}, v40
        v_bfe_u32 v13, v0, 3, 1
        v_lshlrev_b32 v13, 6, v13
        s_cmp_eq_u32 s{S_NH}, 0
        s_cselect_b32 s{S_T}, 1, -1
        v_mul_lo_u32 v13, v13, s{S_T}
        v_add_u32 v15, v40, v13
        v_sub_u32 v40, v40, v13
        v_mov_b32 v{ONE}, 0x3f803f80
        v_mov_b32 v{ONE+1}, 0x3f803f80"""
        for ls in range(4):
            W += f"""
            s_lshl_b32 s{S_T}, s{S_MH}, 1
            s_add_u32 s{S_T}, s{S_T}, {ls}
            s_and_b32 s{S_T}, s{S_T}, 3
            s_lshl_b32 s{S_T+1}, s{S_T}, 5
            s_mul_i32 s{S_T}, s{S_T}, 6144
            v_xor_b32 v{RXB+ls}, s{S_T+1}, v10
            v_add_u32 v{AEB+ls}, s{S_T}, v15
            v_add_u32 v{AOB+ls}, s{S_T}, v40"""
        W = [x.strip() for x in W.split("\n")]
        i0 = W.index(f"s_cmp_eq_u32 s{S_NH}, 0")
        W[i0:i0+2] = [W[i0] + "\n" + W[i0+1]]
        self.sprinkle(W, [(lambda p=p: self.emit(p)) for p in d1[4:7]])
        rtok = {}
        def mkreads(n):
            st = FR[n % 2]; ls = n % 4; sl = (n//4) % 4; o = (sl % 2)*STGS; h_ = 12*(sl//2)
            ra, ae, ao = RXB+ls+h_, AEB+ls+h_, AOB+ls+h_
            R = [f"ds_read_b128 {v(st,4)}, v{ra} offset:{o}",
                 f"ds_read_b64_tr_b16 {v(st+8,2)}, v{ae} offset:{o}", f"ds_read_b64_tr_b16 {v(st+10,2)}, v{ae} offset:{o+1536}",
                 f"ds_read_b128 {v(st+4,4)}, v{ra} offset:{o+4096}",
                 f"ds_read_b64_tr_b16 {v(st+12,2)}, v{ao} offset:{o+64}", f"ds_read_b64_tr_b16 {v(st+14,2)}, v{ao} offset:{o+1600}",
                 f"ds_read_b64_tr_b16 {v(st+16,2)}, v{ae} offset:{o+128}", f"ds_read_b64_tr_b16 {v(st+18,2)}, v{ae} offset:{o+1664}"]
            L = []
            for i, r in enumerate(R):
                def f(i=i, r=r): rtok[n, i] = k(r)
                L.append(f)
            return L
        k.wait_vm(stage_tok[0])
        k("s_barrier")
        self.stamp(1)
        self.emit(mkreads(0))
        L_WS = 110592
        mq = [[0, 1, p_, l_] for p_, l_ in d1[7:] + swq]
        def q_stage(t):
            for j_, (p_, l_) in enumerate(dma_list(t)): mq.append([max(4*(t-3), 5 if (t == 3 and j_ < 4) else 0), 1, p_, l_])
        def sw_store(cc):
            def f():
                k.wait_lg(tk['r1'])
                k(f"s_add_u32 s{S_T}, s{D1}, {cc*48*1024}")
                tk['s1'] = k(f"buffer_store_dwordx4 {a(240+4*cc,4)}, v{LV}, {WS4}, s{S_T} offen sc1")
            return f
        def b1l():
            k(f"""v_min_u32 v10, 47, v0
            s_mul_i32 s{S_T}, s{S_J}, 192
            s_mul_i32 s{S_T+1}, s{S_W}, 48
            s_add_u32 s{S_T}, s{S_T}, s{S_T+1}
            v_add_lshl_u32 v10, v10, s{S_T}, 1
            global_load_ushort v{B1R}, v10, {ptr(11)}""")
        def gs1(): k(f"buffer_load_dwordx4 {v(GS,4)}, v10, {WS4}, s{S_T+9} offen sc1")
        def gs2(): tk['gs'] = k(f"buffer_load_dwordx4 {v(GS+4,4)}, v10, {WS4}, s{S_T+9} offen offset:512 sc1")
        NFLAG, NPOLL, NCHK = 12, 16, 19
        q_stage(2)
        for cc in range(4): mq.append([5, 2, None, sw_store(cc)])
        q_stage(3); q_stage(4); mq.append([0, 0.5, None, b1l]); q_stage(5); q_stage(6)
        late = {NPOLL: [[NPOLL, 0.5, None, self.b2_poll]], 30: [[30, 1, None, gs1], [30, 1, None, gs2]]}
        q_stage(7); q_stage(8); q_stage(9)
        credit = 0.0
        b2on = False
        for n in range(40):
            st = FR[n % 2]
            k.c(f"---- mlp k-step {n}")
            if n % 2 == 0: self.fine(16 + n//2)
            extra = []
            if n < 3: extra += [f"v_add_u32 v{RXB+12+4*n+q}, {2*STGS}, v{RXB+4*n+q}" for q in range(4)]
            if n == 4:
                def f():
                    k.wait_vm(tk['d1'])
                    k(f"""v_lshrrev_b32 v11, 5, v0
                    v_bfe_u32 v12, v0, 4, 1
                    v_lshlrev_b32 v13, 4, v11
                    v_lshl_add_u32 v13, v12, 2, v13
                    v_bfe_u32 v14, v0, 2, 2
                    v_add_u32 v13, v13, v14
                    v_lshlrev_b32 v13, 7, v13
                    v_and_b32 v14, 3, v0
                    v_lshl_add_u32 v13, v14, 3, v13
                    v_add_u32 v13, s{S_MX}, v13
                    v_add_u32 v13, {SCR}, v13""")
                    for cc in range(4):
                        for e in range(2):
                            tk['r1'] = k(f"ds_read_b64_tr_b16 {a(240+4*cc+2*e,2)}, v13 offset:{e*1024+cc*32}")
                extra.append(f)
            if n == 5: k.wait_lg(tk['r1'])
            if n == NFLAG:
                def f():
                    k.wait_vm(tk['s1'])
                    k(f"s_lshl_b32 s{S_T}, s{U1}, 6\ns_add_u32 s{S_T}, s{S_T}, {WS_FB + 512*FLS}")
                    self.set_flag(S_T, 13)
                extra.append(f)
            if n == 13: b2s = self.b2_setup(1)
            if n in (13, 14): extra += b2s[4*(n-13):4*(n-13)+4]
            if n == NCHK:
                self.b2_check(); b2on = True
            if n == 28:
                extra += [f"v_min_u32 v11, 47, v0\ns_mul_i32 s{S_T}, s{S_W}, 48", f"v_add_lshl_u32 v11, v11, s{S_T}, 2",
                          f"v_add_u32 v11, {L_WS}, v11\nv_lshlrev_b32 v{B1R}, 16, v{B1R}", f"ds_write_b32 v11, v{B1R} offset:1536"]
            if n == 29:
                extra += [f"v_and_b32 v10, 31, v0\nv_lshlrev_b32 v10, 4, v10", f"s_lshl_b32 s{S_T+9}, s{S_I}, 11\ns_lshl_b32 s{S_T+13}, s{S_MH}, 10",
                          f"s_add_u32 s{S_T+9}, s{S_T+9}, s{S_T+13}\ns_add_u32 s{S_T+9}, s{S_T+9}, {WS_STG}"]
            mq[0:0] = late.get(n, [])
            mem = []
            credit = min(credit + (3.8 if n % 4 < 2 else 3.1), 4.6)
            while len(mem) < 4:
                if mq and mq[0][0] <= n:
                    if credit < mq[0][1]: break
                    it_ = mq.pop(0)
                elif b2on and self.b2q and credit >= 1: it_ = [n, 1, None, self.b2q.pop(0)]
                else: break
                credit -= it_[1]; mem.append(it_)
            rd = mkreads(n+1) if n + 1 < 40 else []
            small = []
            if n % 4 < 2:
                for hh in range(2):
                    for T in range(3):
                        c_ = "0" if (n == 0 and hh == 0) else v(WSA+4*T, 4)
                        small.append(f"v_mfma_f32_4x4x4_16b_bf16 {v(WSA+4*T,4)}, {v(ONE,2)}, {v(st+8+4*T+2*hh,2)}, {c_}")
            bar = n % 4 == 3 and n + 1 < 40
            cnt = [0, 3, 3, 2, 0, 0] if bar else [3, 3, 2, 0, 0, 0]
            ms = {0: [], 1: [4], 2: [0, 4] if bar else [3, 5], 3: [0, 4, 5] if bar else [2, 4, 5], 4: [0, 3, 4, 5] if bar else [0, 2, 4, 5]}[len(mem)]
            dep = {0: 2, 1: 3, 2: 5, 4: 7}
            for i in range(6):
                T3, mt = i//2, i % 2
                if i in ms and mem[0][2]: mem[0][2]()
                if i in dep: k.wait_lg(rtok[n, dep[i]])
                d = ACC + 16*i
                k(f"v_mfma_f32_32x32x16_bf16 {v(d,16)}, {v(st+8+4*T3,4)}, {v(st+4*mt,4)}, {'0' if n == 0 else v(d,16)}")
                if i in ms: mem.pop(0)[3]()
                if bar and i == 1:
                    assert stage_cnt[(n+1)//4] == 10
                    k.wait_both(stage_tok[(n+1)//4], k.lg_issued)
                    k("s_barrier")
                for _ in range(cnt[i]):
                    if rd: rd.pop(0)()
                if i >= 3 and extra: self.emit([extra.pop(0)])
            self.emit(extra)
            self.emit(small)
            assert not rd and not mem
        assert not mq
        self.info += f" mlp b2 left {len(self.b2q)}"
        k.c('loop end')
        self.stamp(2)
        if self.early_stop("loop"): return
        k.c("================ MLP epilogue")
        self.nf2 = 0
        TM = 128
        AT, BT = 176, 180
        for T in range(3): k(f"v_permlane32_swap_b32 v{WSA+4*T}, v{WSA+4*T+1}")
        k(f"""v_and_b32 v11, 31, v0
        s_mul_i32 s{S_T}, s{S_MH}, 768
        s_mul_i32 s{S_T+1}, s{S_NH}, 384
        s_add_u32 s{S_T}, s{S_T}, s{S_T+1}
        v_lshl_add_u32 v12, v11, 2, s{S_T}
        v_add_u32 v12, {L_WS}, v12""")
        for T in range(3):
            k(f"v_add_f32 v{WSA+4*T}, v{WSA+4*T}, v{WSA+4*T+1}\nds_write_b32 v12, v{WSA+4*T} offset:{128*T}")
        k.wait_vm(tk['gs'])
        def check():
            k(f"""v_xor_b32 v13, s{S_TAG}, v{GS+1}
            v_bitop3_b32 v13, s{S_TAG2}, v{GS+3}, v13 bitop3:0xbe
            v_bitop3_b32 v13, s{S_TAG}, v{GS+5}, v13 bitop3:0xbe
            v_bitop3_b32 v13, s{S_TAG2}, v{GS+7}, v13 bitop3:0xbe
            v_cmp_ne_u32 vcc, 0, v13""")
        def rl():
            k(f"""buffer_load_dwordx4 {v(GS,4)}, v10, {WS4}, s{S_T+9} offen sc1
            buffer_load_dwordx4 {v(GS+4,4)}, v10, {WS4}, s{S_T+9} offen offset:512 sc1
            s_waitcnt vmcnt(0)""")
        self.verify(check, rl, "ps")
        c1 = -2*LOG2E*math.sqrt(2/math.pi)
        k(f"s_mov_b32 s{S_T}, {fbits(1.0/640)}")
        seqs = []
        for mt in range(2):
            g_ = GS + 4*mt; t_ = TM + mt
            seqs.append([f"v_mul_f32 v{g_}, s{S_T}, v{g_}", f"v_mul_f32 v{t_}, v{g_}, v{g_}", f"v_fma_f32 v{g_+2}, v{g_+2}, s{S_T}, -v{t_}",
                         f"v_max_f32 v{g_+2}, 0, v{g_+2}", f"v_add_f32 v{t_}, {fbits(EPS)}, v{g_+2}", f"v_rsq_f32 v{g_+1}, v{t_}",
                         f"v_mul_f32 v{t_}, v{g_+1}, v{g_+1}", f"v_mul_f32 v{t_}, v{t_}, v{g_+2}", f"v_add_f32 v{t_}, {fbits(EPS)}, v{t_}",
                         f"v_rsq_f32 v{t_}, v{t_}", f"v_mul_f32 v{AT+2*mt}, v{t_}, v{g_+1}", f"v_mul_f32_e64 v{BT+2*mt}, v{g_}, -v{AT+2*mt}"])
        for x, y in zip(*seqs): k(x); k(y)
        C1 = 184; PATV = 15
        k(f"""v_lshrrev_b32 v14, 5, v0
        s_mul_i32 s{S_T}, s{S_NH}, 384
        v_lshl_add_u32 v12, v14, 4, s{S_T}
        v_add_u32 v12, {L_WS}, v12
        v_lshrrev_b32 v13, 4, v11
        v_mul_u32_u24 v13, {48*1024}, v13
        v_and_b32 v15, 15, v0
        v_lshl_add_u32 v13, v15, 4, v13
        v_lshl_add_u32 v{PV}, v14, 8, v13
        s_lshl_b32 s{S_T}, s{S_I}, 3
        s_lshl_b32 s{S_T+1}, s{S_MH}, 2
        s_add_u32 s{S_T}, s{S_T}, s{S_T+1}
        s_mul_i32 s{S_T}, s{S_T}, 48
        s_mul_i32 s{S_T+1}, s{S_J}, 6
        s_add_u32 s{S_T}, s{S_T}, s{S_T+1}
        s_mul_i32 s{S_T+1}, s{S_NH}, 3
        s_add_u32 s{S_T}, s{S_T}, s{S_T+1}
        s_lshl_b32 s{S_T}, s{S_T}, 10
        s_add_u32 s{S_T+6}, s{S_T}, {WS_A2[1]}
        s_add_u32 s{S_T+7}, s{S_T+6}, {96*1024}
        s_mov_b32 s{S_T+4}, {fbits(c1*0.044715)}
        s_mov_b32 s{S_T+5}, s{S_T+4}
        v_mov_b32 v{C1}, {fbits(c1)}
        v_mov_b32 v{C1+1}, {fbits(c1)}
        v_mov_b32 v{PATV}, s{S_PAT}
        s_waitcnt lgkmcnt(0)
        s_barrier""")
        self.stamp(3)
        WB = [112, 186]
        Q = 160; PKO = [168, 172, 234, 238]; TT = 242
        def wreads(T3):
            b = WB[T3 % 2]
            return [f"ds_read_b128 {v(b+16*a_+4*q4,4)}, v12 offset:{768*a_+(32*T3+8*q4)*4}" for q4 in range(4) for a_ in range(3)]
        self.emit(wreads(0))
        self.p2_addr(1)
        held = []
        for Tl in range(6):
            T3, mt = Tl//2, Tl % 2
            self.fine2()
            b = WB[T3 % 2]
            fill = []; body = []
            if mt == 0:
                k("s_waitcnt lgkmcnt(0)")
                body += [f"v_pk_add_f32 {v(b+2*p,2)}, {v(b+2*p,2)}, {v(b+16+2*p,2)}" for p in range(8)]
                if T3 < 2: fill = [lambda x=x: k(x) for x in wreads(T3+1)]
            for c in range(2):
                po = PKO[(2*Tl + c) % 4]; prs = range(4*c, 4*c+4)
                z = lambda p: ACC + 16*Tl + 2*p
                q = lambda p: Q + 2*(p % 4)
                body += [f"v_pk_fma_f32 {v(TT+2*(p%4),2)}, {v(BT+2*mt,2)}, {v(b+2*p,2)}, {v(b+32+2*p,2)} op_sel_hi:[0,1,1]" for p in prs]
                body += [f"v_pk_fma_f32 {v(z(p),2)}, {v(AT+2*mt,2)}, {v(z(p),2)}, {v(TT+2*(p%4),2)} op_sel_hi:[0,1,1]" for p in prs]
                body += [f"v_pk_mul_f32 {v(q(p),2)}, {v(z(p),2)}, {v(z(p),2)}" for p in prs]
                body += [f"v_pk_fma_f32 {v(q(p),2)}, {v(q(p),2)}, {s(S_T+4,2)}, {v(C1,2)}" for p in prs]
                body += [f"v_pk_mul_f32 {v(q(p),2)}, {v(q(p),2)}, {v(z(p),2)}" for p in prs]
                for p in prs: body += [f"v_exp_f32 v{q(p)}, v{q(p)}", f"v_exp_f32 v{q(p)+1}, v{q(p)+1}"]
                body += [f"v_pk_add_f32 {v(q(p),2)}, {v(q(p),2)}, 1.0 op_sel_hi:[1,0]" for p in prs]
                for p in prs: body += [f"v_rcp_f32 v{q(p)}, v{q(p)}", f"v_rcp_f32 v{q(p)+1}, v{q(p)+1}"]
                body += [f"v_pk_mul_f32 {v(q(p),2)}, {v(q(p),2)}, {v(z(p),2)}" for p in prs]
                body += [f"v_cvt_pk_bf16_f32 v{po+p%4}, v{q(p)}, v{q(p)+1}" for p in prs]
                body += [f"v_and_or_b32 v{po+p%4}, v{po+p%4}, s{S_NM}, v{PATV}" for p in prs]
                def st_(T3=T3, mt=mt, c=c, po=po):
                    self.last_st = k(f"buffer_store_dwordx4 {v(po,4)}, v{PV}, {WS4}, s{S_T+6+mt} offen offset:{T3*1024+c*512} sc1")
                if Tl < 4: body.append(st_)
                else: held.append(st_)
            if Tl >= 4: fill = [self.p2_aload]*8
            if Tl < 4: fill = fill + self.b2_take(-(-len(self.b2q)//(4 - Tl)))
            self.sprinkle(body, fill, lead=8)
        self.fine2()
        self.emit(held)
        self.fine2()
        self.stamp(6)
        self.phase2(1)

    RING, NR, ACS, ACO = 16, 19, 92, 172
    def p2_addr(self, side):
        k = self.k
        S = [40, 48][side]; KS = [10, 12][side]
        self.side = side; self.KS = KS
        hfS = side; hfO = 1 - side
        k(f"""s_mul_i32 s45, s{S_I}, {8*S}
        s_mul_i32 s46, s{S_W}, {KS}
        s_add_u32 s45, s45, s46
        s_lshl_b32 s45, s45, 10
        s_add_u32 s45, s45, {WS_A2[side]}""")
        for t4 in range(4):
            k(f"s_add_u32 s{36+t4}, s45, {(4*hfS+t4)*S*1024}")
            k(f"s_add_u32 s{40+t4}, s45, {(4*hfO+t4)*S*1024}")
        self.seq = [(0, ss, t4) for ss in self.order for t4 in range(4)] + [(1, ss, t4) for t4 in range(4) for ss in range(KS)]
        self.atok = {}; self.areg = {}; self.nxt = 0
        self.free_ring = [self.RING + 4*i for i in range(self.NR)]
        self.free_big = [self.ACO + 4*i for i in range(20)] if side == 0 else []
    def a_instr(self, idx):
        p, ss, t4 = self.seq[idx]
        so = 36 + 4*p + t4; pre = ""
        if ss >= 4:
            pre = f"s_add_u32 s45, s{so}, {(ss//4)*4096}\n"; so = 45
        return pre + f"buffer_load_dwordx4 {v(self.areg[idx],4)}, v{self.LV}, {WS4}, s{so} offen offset:{(ss%4)*1024} sc1"
    def p2_can(self):
        if self.nxt >= len(self.seq): return False
        if self.seq[self.nxt][0] == 0 and self.free_big: return True
        return bool(self.free_ring)
    def p2_aload(self):
        idx = self.nxt
        if self.seq[idx][0] == 0 and self.free_big: r = self.free_big.pop(0)
        else: r = self.free_ring.pop(0)
        self.areg[idx] = r
        self.atok[idx] = self.k(self.a_instr(idx))
        self.nxt += 1

    def phase2(self, side):
        k = self.k
        if self.early_stop("p1"): return
        KS = self.KS; nper = 4*KS
        ACS, ACO, LV = self.ACS, self.ACO, self.LV
        hfS = side; hfO = 1 - side
        RW, RR, OO, VA, FV, T1 = 5, 6, 11, 1, 2, 253
        k.c(f"================ phase 2 (side {side})")
        if side == 1: self.free_big = [self.ACO + 4*i for i in range(20)]
        while self.nxt < (20 if side == 0 else 16): self.p2_aload()
        self.stamp(8)
        def vcheck(j, lst):
            regs = [self.areg[4*j+t]+e for t in range(4) for e in range(4)]
            L = [f"v_xor_b32 v{VA}, s{S_PAT}, v{regs[0]}"]
            L += [f"v_bitop3_b32 v{VA}, s{S_PAT}, v{r}, v{VA} bitop3:0xbe" for r in regs[1:]]
            L += [f"v_and_b32 v{VA}, 0x10001, v{VA}", f"v_cmp_ne_u32 vcc, 0, v{VA}"]
            return L
        def vfinish(j):
            hi = min(self.nxt, nper)
            ins = [self.a_instr(i) for i in range(4*j, hi)]
            chk = vcheck(j, None)
            def reload():
                self.emit(ins); k("s_waitcnt vmcnt(0)")
            self.verify(lambda: self.emit(chk), reload, "va", checked=True)
        a1 = [f"v_and_b32 v{FV}, 7, v0\nv_lshlrev_b32 v{FV}, 6, v{FV}", f"s_lshl_b32 s44, s{S_I}, 5\ns_lshl_b32 s46, s{S_W}, 3",
              f"s_add_u32 s44, s44, s46\ns_lshl_b32 s44, s44, 6", f"s_add_u32 s44, s44, {WS_FA + side*512*FLS}",
              f"v_and_b32 v{T1}, 15, v0", f"v_mul_u32_u24 v{RW}, {RED_RS}, v{T1}", f"v_lshrrev_b32 v{T1}, 4, v0",
              f"v_lshl_add_u32 v{RW}, v{T1}, 4, v{RW}", f"s_mul_i32 s{S_T}, s{S_W}, {RED_W}\ns_add_u32 s{S_T}, s{S_T}, {LDS_RED}",
              f"v_add_u32 v{RW}, s{S_T}, v{RW}", f"s_mul_i32 s{S_T}, s{S_W}, {16*RED_RS}\ns_add_u32 s{S_T}, s{S_T}, {LDS_RED}",
              f"s_movk_i32 s{S_T+1}, {RED_RS}\ns_movk_i32 s{S_T+2}, 2560"]
        for it in range(5):
            a1 += [f"v_add_u32 v{T1}, {64*it}, v0"] + self.div20(OO+it, RR+it, T1) + [f"v_lshlrev_b32 v{T1}, 4, v{RR+it}",
                   f"v_mad_u32_u24 v{RR+it}, v{OO+it}, s{S_T+1}, v{T1}", f"v_add_u32 v{RR+it}, s{S_T}, v{RR+it}",
                   f"v_mad_u32_u24 v{OO+it}, v{OO+it}, s{S_T+2}, v{T1}"]
        a1 += [
               f"s_lshr_b32 s{S_T}, s{S_PW}, 2\ns_mul_i32 s{S_T}, s{S_T}, 20480", f"s_mul_i32 s{S_T+1}, s{S_W}, 5120\ns_add_u32 s{S_T}, s{S_T}, s{S_T+1}",
               f"s_add_u32 s{S_T+3}, s{S_T}, {WS_PART + (1-side)*128*20480}\ns_add_u32 s{S_T+4}, s{S_T+3}, 4096",
               f"s_add_u32 s{S_T+5}, s{S_T}, {WS_PART + side*128*20480}\ns_add_u32 s{S_T+6}, s{S_T+5}, 4096",
               f"s_add_u32 s{S_T+7}, s{S_T+1}, {L_R}\nv_mov_b32 v3, s{S_PAT32}",
               f"s_lshl_b32 s{S_T}, s{S_I}, 7\ns_lshl_b32 s{S_T+1}, s{S_W}, 4", f"s_add_u32 s{S_T}, s{S_T}, s{S_T+1}\ns_add_u32 s{S_T}, s{S_T}, {64*hfO}",
               f"s_mul_i32 s{S_T}, s{S_T}, 2560\ns_mul_i32 s{S_T+1}, s{S_J}, 320", f"s_add_u32 s{S_OUT}, s{S_T}, s{S_T+1}\ns_mov_b32 s{S_NM}, -4",
               f"s_mov_b32 s{SRD_OUT}, s{P0+28}\ns_mov_b32 s{SRD_OUT+1}, s{P0+29}", f"s_mov_b32 s{SRD_OUT+2}, 5242880\ns_mov_b32 s{SRD_OUT+3}, 0x20000"]
        if side == 0:
            self.emit(a1); a1 = []
        tk = {}
        gate = [lambda j: nper, lambda j: 32 if j < 3 else nper][side]
        k.wait_vm(self.atok[3])
        self.emit(vcheck(0, None)); vfinish(0)
        o_ok = False
        for j in range(KS):
            self.fine(36 + j)
            ss = self.order[j]
            while (ss, 4) not in self.b2tok: self.b2q.pop(0)()
            k.wait_vm(self.b2tok[ss, 4])
            vq = None
            misc = []
            if side == 1 and j == 2:
                def f():
                    k.wait_vm(self.last_st)
                    k(f"s_add_u32 s{S_T+10}, s{S_FLAG}, {WS_FA + 512*FLS}")
                    self.set_flag(S_T+10, 4)
                misc.append(f)
            if j == [3, 6][side]:
                def f(): tk['fa'] = k(f"buffer_load_dword v4, v{FV}, {WS4}, s44 offen sc1")
                misc.append(f)
            if j == [5, 8][side]:
                k.wait_vm(tk['fa'])
                def rl(): k(f"buffer_load_dword v4, v{FV}, {WS4}, s44 offen sc1\ns_waitcnt vmcnt(0)")
                self.verify(lambda: k(f"v_cmp_ne_u32 vcc, s{S_TAG}, v4"), rl, "fa")
                o_ok = True
            for t4 in range(4):
                idx = 4*j + t4
                for cc in range(5):
                    g_ = 5*t4 + cc
                    d = ACS + (t4*5 + cc)*4
                    k(f"v_mfma_f32_16x16x32_bf16 {v(d,4)}, {a((ss*5+cc)*4,4)}, {v(self.areg[idx],4)}, {'0' if j == 0 else v(d,4)}")
                    lim = gate(j) if not o_ok else 2*nper
                    if g_ % 3 == 0 and self.p2_can() and self.nxt < lim and self.nxt < idx + 22:
                        self.p2_aload()
                    elif g_ >= 4 and j + 1 < KS:
                        if vq is None:
                            k.wait_vm(self.atok[4*j+7]); vq = vcheck(j+1, None)
                        self.emit(vq[:2]); vq = vq[2:]
                        if not vq and (misc or a1): self.emit([(misc or a1).pop(0)])
                    elif misc or a1:
                        self.emit([(misc or a1).pop(0)])
                r = self.areg[idx]
                (self.free_ring if r < ACS else self.free_big).append(r) if (r < ACS or self.nxt < nper - 8) else None
            self.emit(misc)
            if j + 1 < KS:
                self.emit(vq); vfinish(j+1)
        self.emit(a1)
        self.stamp(9)
        nsrc = 5 if side == 0 else 4
        fill = []
        for t4 in range(4):
            for cc in range(5):
                fill += [f"ds_write_b128 v{RW}, {v(ACS+(t4*5+cc)*4,4)} offset:{t4*16*RED_RS+cc*64}", NOP] + [NOP]*side
        fill += ["s_waitcnt lgkmcnt(0)\ns_barrier"]
        if side == 0: fill += [f"v_add_u32 v4, s{S_T+7}, v{LV}"]
        RB = self.RING
        for it in range(5):
            b = ACS + it*16
            for sw in range(4):
                def f(it=it, sw=sw): tk['r', it] = k(f"ds_read_b128 {v(ACS+(it*4+sw)*4,4)}, v{RR+it} offset:{sw*RED_W}")
                fill.append(f)
        fill += ["s_waitcnt lgkmcnt(0)\ns_barrier"]
        for it in range(5):
            b = ACS + it*16
            fill += [f"v_add_f32 v{b+e}, v{b+e}, v{b+4+e}\nv_add_f32 v{b+8+e}, v{b+8+e}, v{b+12+e}" for e in range(4)]
            if side == 0:
                def f(it=it, b=b): tk['R', it] = k(f"ds_read_b128 {v(b+4,4)}, v4 offset:{hfS*20480+it*1024}")
                fill.append(f)
            fill += [f"v_add_f32 v{b+e}, v{b+e}, v{b+8+e}\nv_add_f32 v{b+e+1}, v{b+e+1}, v{b+9+e}" for e in (0, 2)]
        for it in range(5):
            b = ACS + it*16
            if side == 0:
                fill.append(lambda it=it: k.wait_lg(tk['R', it]))
                fill += [f"v_add_f32 v{b+e}, v{b+e}, v{b+4+e}\nv_add_f32 v{b+e+1}, v{b+e+1}, v{b+5+e}" for e in (0, 2)]
            fill += [f"v_and_or_b32 v{b+e}, v{b+e}, s{S_NM}, v3\nv_and_or_b32 v{b+e+1}, v{b+e+1}, s{S_NM}, v3" for e in (0, 2)]
            fill.append(f"buffer_store_dwordx4 {v(b,4)}, v{LV}, {WS4}, s{S_T+5+it//4} offen offset:{(it%4)*1024} sc1")
        nS = len(fill)
        owr = {t4: [f"ds_write_b128 v{RW}, {v(ACO+(t4*5+cc)*4,4)} offset:{t4*16*RED_RS+cc*64}" for cc in range(5)] for t4 in range(4)}
        oq = []
        def ploads():
            return [k(f"buffer_load_dwordx4 {v(ACS+it*16+12,4)}, v{LV}, {WS4}, s{S_T+3+it//4} offen offset:{(it%4)*1024} sc1") for it in range(5)]
        slot = 0
        for j in range(nper):
            idx = nper + j
            _, ss, t4 = self.seq[idx]
            if j % 4 == 0: self.fine(36 + KS + j//4)
            if ss == 1 and t4 > 0: oq += [x for w_ in owr[t4-1] for x in (w_, NOP)]
            while idx not in self.atok: self.p2_aload()
            k.wait_vm(self.atok[idx])
            for cc in range(5):
                d = ACO + (t4*5 + cc)*4
                k(f"v_mfma_f32_16x16x32_bf16 {v(d,4)}, {a((ss*5+cc)*4,4)}, {v(self.areg[idx],4)}, {'0' if ss == 0 else v(d,4)}")
                if cc == 0 and self.p2_can(): self.p2_aload()
                elif fill: self.emit([fill.pop(0)])
                elif oq: self.emit([oq.pop(0)])
            self.free_ring.append(self.areg[idx])
            if j == nper - 3: ptoks = ploads()
        assert not fill
        self.stamp(10)
        rest = [x for x in oq if x is not NOP] + owr[3]
        if side == 0:
            for it in range(5): k(f"ds_read_b128 {v(ACS+it*16+4,4)}, v4 offset:{hfO*20480+it*1024}")
        self.emit(rest)
        def pcheck():
            regs = [ACS+it*16+12+e for it in range(5) for e in range(4)]
            k(f"v_xor_b32 v{VA}, s{S_PAT32}, v{regs[0]}")
            for r in regs[1:]: k(f"v_bitop3_b32 v{VA}, s{S_PAT32}, v{r}, v{VA} bitop3:0xbe")
            k(f"v_and_b32 v{VA}, 3, v{VA}\nv_cmp_ne_u32 vcc, 0, v{VA}")
        k("s_waitcnt lgkmcnt(0)\ns_barrier")
        toks = []
        for it in range(5):
            for sw in range(4):
                toks.append(k(f"ds_read_b128 {v(ACO+(it*4+sw)*4,4)}, v{RR+it} offset:{sw*RED_W}"))
        k.wait_vm(ptoks[4])
        def rl():
            ploads(); k("s_waitcnt vmcnt(0)")
        self.verify(pcheck, rl, "pp")
        self.stamp(11)
        if side == 0:
            for it in range(5):
                for h in range(2):
                    k(f"v_pk_add_f32 {v(ACS+it*16+12+2*h,2)}, {v(ACS+it*16+12+2*h,2)}, {v(ACS+it*16+4+2*h,2)}")
        for it in range(5):
            b = ACO + it*16
            k.wait_lg(toks[4*it+3])
            for h in range(2):
                k(f"v_pk_add_f32 {v(b+2*h,2)}, {v(b+2*h,2)}, {v(b+4+2*h,2)}")
                k(f"v_pk_add_f32 {v(b+8+2*h,2)}, {v(b+8+2*h,2)}, {v(b+12+2*h,2)}")
            for h in range(2):
                k(f"v_pk_add_f32 {v(b+2*h,2)}, {v(b+2*h,2)}, {v(ACS+it*16+12+2*h,2)}")
            for h in range(2):
                k(f"v_pk_add_f32 {v(b+2*h,2)}, {v(b+2*h,2)}, {v(b+8+2*h,2)}")
            k(f"buffer_store_dwordx4 {v(b,4)}, v{OO+it}, {s(SRD_OUT,4)}, s{S_OUT} offen {'sc1' if 'outsc1' in self.opt else 'nt' if 'outnt' in self.opt else ''}")
        self.stamp(12)
        self.finish_wg(side)

    def finish_wg(self, side):
        k = self.k
        if side == 0:
            k(f"""s_cmp_lg_u32 s{S_PW}, 0
            s_cbranch_scc1 L_fin0
            v_lshlrev_b32 v13, 8, v0""")
            def loads():
                for q in range(4):
                    k(f"s_mov_b32 s{S_T+1}, {WS_FA + q*64*4*FLS}")
                    k(f"buffer_load_dword v{16+q}, v13, {WS4}, s{S_T+1} offen sc1")
                k("s_waitcnt vmcnt(0)")
            def check():
                k(f"v_xor_b32 v14, s{S_TAG}, v16")
                for q in range(1, 4): k(f"v_bitop3_b32 v14, s{S_TAG}, v{16+q}, v14 bitop3:0xbe")
                k("v_cmp_ne_u32 vcc, 0, v14")
            loads()
            self.verify(check, loads, "pe")
            k(f"s_mov_b32 s{S_T}, {WS_EPOCH}")
            self.set_flag(S_T, 14)
            k.label("L_fin0")
        if self.spin:
            lb = k.newlabel("spin")
            k(f"s_add_u32 s101, s101, {self.spin}")
            k.label(lb)
            k(f"""s_memrealtime s[98:99]
            s_waitcnt lgkmcnt(0)
            s_sub_u32 s98, s98, s100
            s_cmp_lt_u32 s98, s101
            s_cbranch_scc1 {lb}""")
        if self.ts:
            k("s_waitcnt vmcnt(0)"); self.stamp(13); self.stamp_flush()
        k("s_endpgm")

    def build(self):
        k = self.k
        self.prologue()
        st = k.state()
        self.ssm()
        self.flush_slow()
        k.set_state(st)
        self.mlp()
        self.flush_slow()
        k.label("L_end")
        k("s_endpgm")
        body = k.finish()
        hdr = open("header.txt").read()
        return (hdr + f"""; @launch grid=(256,1,1) block=(256,1,1) lds=163840
.amdgcn_target "amdgcn-amd-amdhsa--gfx950"
.text
.globl {NAME}
.p2align 8
.type {NAME},@function
{NAME}:
""" + body + f""".section .rodata,"a"
.p2align 6
.amdhsa_kernel {NAME}
  .amdhsa_next_free_vgpr 512
  .amdhsa_next_free_sgpr 102
  .amdhsa_accum_offset 256
  .amdhsa_group_segment_fixed_size 0
  .amdhsa_kernarg_size 136
  .amdhsa_user_sgpr_count 2
  .amdhsa_user_sgpr_kernarg_segment_ptr 1
  .amdhsa_system_sgpr_workgroup_id_x 1
.end_amdhsa_kernel
""")

if __name__ == "__main__":
    import argparse
    ap = argparse.ArgumentParser()
    ap.add_argument("-o", default="k4.s")
    ap.add_argument("--stop", default=None)
    ap.add_argument("--ts", action="store_true")
    ap.add_argument("--spin", type=int, default=0)
    ap.add_argument("--seg", type=int, default=None)
    ap.add_argument("--opt", default="")
    a_ = ap.parse_args()
    g = G(stop=a_.stop, ts=a_.ts, spin=a_.spin, seg=a_.seg, opt=a_.opt.split(","))
    txt = g.build()
    open(a_.o, "w").write(txt)
    print("written", a_.o, "nops inserted:", g.k.nops, "lines:", txt.count("\n"), g.info)
```

```python
import sys, math, struct
sys.path.insert(0, "gen")
from emit import *

NAME = "parallel_sum__ssm_conv_s5__mixer_channel_mlp__prompt_kernel"
WS_EPOCH = 0
WS_FB = 0x1000
WS_FA = 0x11000
WS_AGG = 0x31000
WS_STG = 0x59000
WS_WSG = 0x61000
WS_B2S = [0x70000, 0x200000]
WS_A2 = [0x400000, 0x900000]
WS_PART = 0xF00000
WS_TS = 0x1400000
WS_SIZE = 0x1500000
FLS = 64
S_W = 3
SRD_X, SRD_W, SRD_WS, SRD_OUT, SRD_T1, SRD_T2 = 4, 8, 12, 16, 20, 24
S_TAG, S_TAG2, S_I, S_J, S_PAT = 28, 29, 30, 31, 32
S_PW = 33
S_FLAG = 34
S_OUT = 35
S_XO = 36
S_WO = 40
S_MX, S_MW = 45, 46
S_B2 = 47
S_T = 48
P0 = 64
def ptr(n): return s(P0 + 2*n, 2)
S_PAT32 = P0 + 18
S_NM = P0 + 19
S_WRAP, S_ST1, S_ST2 = 2, 0, 1
S_TS = 98
S_ST1K, S_ST2K = P0 + 2, P0 + 3
LOG2E = 1.4426950408889634
EPS = 1e-5
def fbits(x): return "0x%08x" % struct.unpack("<I", struct.pack("<f", x))[0]
POLL_MAX = 20000
LDS_RED = 16384
RED_RS = 336
RED_W = 64 * RED_RS
L_R = 106496
WS4 = s(SRD_WS, 4)
NOP = lambda: None

class C5:
    def __init__(self, re, im=None, st=1):
        self.re = re; self.im = re + 1 if im is None else im; self.st = 2 if im is None else st
    def r(self, b): return self.re + self.st*b
    def i(self, b): return self.im + self.st*b

class G:
    def __init__(self, stop=None, ts=False, spin=0, seg=None, opt=()):
        self.k = Emit(); self.slow = []; self.stop = stop; self.ts = ts; self.spin = spin; self.seg = seg; self.opt = set(opt)

    def P(self, name, default):
        for o in self.opt:
            if o.startswith(name + "="): return float(o.split("=")[1])
        return default
    def stamp(self, idx):
        k = self.k
        if self.seg == idx:
            k("s_memrealtime s[98:99]\ns_waitcnt lgkmcnt(0)\ns_sub_u32 s101, s98, s100")
        if not self.ts: return
        k(f"{'s_memtime' if 'cyc' in self.opt else 's_memrealtime'} {s(S_TS,2)}")
        k("s_waitcnt lgkmcnt(0)")
        k(f"v_writelane_b32 v255, s{S_TS}, {idx}")
    def fine(self, idx):
        if 'fine' in self.opt: self.stamp(idx)
    def fine3(self):
        if 'fine3' in self.opt:
            self.stamp(16 + self.nf3); self.nf3 += 1
    def fine2(self):
        if 'fine2' in self.opt:
            self.stamp(16 + self.nf2); self.nf2 += 1
    def stamp_flush(self):
        if not self.ts: return
        self.k(f"""s_lshl_b32 s{S_T}, s99, 2
        v_readlane_b32 s{S_T}, v255, 63
        s_nop 3
        s_lshl_b32 s{S_T}, s{S_T}, 2
        s_add_u32 s{S_T}, s{S_T}, s{S_W}
        s_lshl_b32 s{S_T}, s{S_T}, 8
        s_add_u32 s{S_T}, s{S_T}, {WS_TS}
        v_mbcnt_lo_u32_b32 v254, -1, 0
        v_mbcnt_hi_u32_b32 v254, -1, v254
        v_lshlrev_b32 v254, 2, v254
        buffer_store_dword v255, v254, {WS4}, s{S_T} offen""")
    def early_stop(self, name):
        if self.stop != name: return False
        self.k("s_waitcnt vmcnt(0)"); self.stamp(13); self.stamp_flush(); self.k("s_endpgm")
        return True

    def srd(self, base, pn, size):
        self.k(f"""s_mov_b32 s{base}, s{P0+2*pn}
        s_and_b32 s{base+1}, s{P0+2*pn+1}, 0xffff
        s_mov_b32 s{base+2}, {size}
        s_mov_b32 s{base+3}, 0x20000""")
    def verify(self, check, reload, name, checked=False):
        k = self.k
        slow = k.newlabel(name); done = k.newlabel(name + "d")
        if not checked: check()
        k(f"s_cbranch_vccnz {slow}")
        k.label(done)
        self.slow.append((slow, done, check, reload))
    def flush_slow(self):
        k = self.k
        for slow, done, check, reload in self.slow:
            top = k.newlabel(slow + "t")
            k.label(slow)
            if self.ts:
                bit = {'pb': 1, 'pg': 2, 'ps': 2, 'pc': 4, 'va': 8, 'fa': 16, 'pp': 32, 'pe': 64}[slow[:2]]
                k(f"v_readlane_b32 s{S_T+15}, v255, 15\ns_nop 3\ns_or_b32 s{S_T+15}, s{S_T+15}, {bit}\nv_writelane_b32 v255, s{S_T+15}, 15")
            k(f"s_mov_b32 s{S_T+15}, {POLL_MAX}")
            k.label(top)
            reload()
            check()
            k(f"""s_cbranch_vccz {done}
            s_sub_u32 s{S_T+15}, s{S_T+15}, 1
            s_cmp_lg_u32 s{S_T+15}, 0
            s_cbranch_scc1 {top}
            s_branch {done}""")
        self.slow = []
    def set_flag(self, soff, vtmp, off=0):
        return self.k(f"""v_mov_b32 v{vtmp}, s{S_TAG}
        s_mov_b64 exec, 1
        buffer_store_dword v{vtmp}, off, {WS4}, s{soff} offset:{off} sc1
        s_mov_b64 exec, -1""")
    def emit(self, L):
        for x in L:
            x() if callable(x) else self.k(x)
    def sprinkle(self, work, q, lead=0):
        k = self.k; q = list(q); n0 = len(q); masked = False
        for i, w_ in enumerate(work):
            self.emit([w_])
            if isinstance(w_, str):
                if w_.startswith(("s_mov_b32 exec", "s_cselect_b64 exec", "s_mov_b64 exec, s")): masked = True
                if w_.startswith("s_mov_b64 exec, -1"): masked = False
            while q and not masked and i >= lead and (n0 - len(q) + 1)*(len(work) - lead) <= (i - lead + 1)*(n0 + 1) + n0:
                q.pop(0)()
        for f in q: f()
    def cpow(self, dre, dim, n, zr, zi, t):
        return [f"v_mul_f32 v{t}, {n}, v{zi}", f"v_mul_f32 v{dre}, {n}, v{zr}", f"v_fract_f32 v{t}, v{t}",
                f"v_exp_f32 v{dre}, v{dre}", f"v_sin_f32 v{dim}, v{t}", f"v_cos_f32 v{t}, v{t}",
                f"v_mul_f32 v{dim}, v{dim}, v{dre}", f"v_mul_f32 v{dre}, v{t}, v{dre}"]
    def cmul5(self, d, x, y, c=None):
        L = []
        for b in range(5):
            L.append(f"v_mul_f32 v{d.r(b)}, v{x.r(b)}, v{y.r(b)}" if c is None else f"v_fma_f32 v{d.r(b)}, v{x.r(b)}, v{y.r(b)}, v{c.r(b)}")
            L.append(f"v_mul_f32 v{d.i(b)}, v{x.r(b)}, v{y.i(b)}" if c is None else f"v_fma_f32 v{d.i(b)}, v{x.r(b)}, v{y.i(b)}, v{c.i(b)}")
        for b in range(5):
            L.append(f"v_fma_f32 v{d.r(b)}, -v{x.i(b)}, v{y.i(b)}, v{d.r(b)}")
            L.append(f"v_fma_f32 v{d.i(b)}, v{x.i(b)}, v{y.r(b)}, v{d.i(b)}")
        return L
    def div20(self, q, r, x):
        return [f"v_mul_u32_u24 v{q}, 3277, v{x}", f"v_lshrrev_b32 v{q}, 16, v{q}", f"v_mul_u32_u24 v{r}, 20, v{q}", f"v_sub_u32 v{r}, v{x}, v{r}"]

    def prologue(self):
        k = self.k
        k(f"""s_cmp_ge_u32 s2, 256
        s_cbranch_scc1 L_end""")
        if self.spin: k("s_memrealtime s[100:101]")
        k(f"""s_load_dwordx16 {s(P0,16)}, s[0:1], 0
        s_load_dwordx16 {s(P0+16,16)}, s[0:1], 64
        s_load_dwordx2 {s(P0+32,2)}, s[0:1], 128
        v_lshrrev_b32 v1, 6, v0
        v_and_b32 v0, 63, v0
        v_readfirstlane_b32 s{S_W}, v1
        s_bfe_u32 s{S_T}, s2, 0x20001
        s_lshr_b32 s{S_T+1}, s2, 6           ; c = id>>6
        s_lshl_b32 s{S_I}, s{S_T+1}, 2
        s_add_u32 s{S_I}, s{S_I}, s{S_T}
        s_bfe_u32 s{S_J}, s2, 0x30003        ; j = (id>>3)&7
        s_lshl_b32 s{S_T}, s{S_I}, 3
        s_add_u32 s{S_T}, s{S_T}, s{S_J}
        s_lshl_b32 s{S_T}, s{S_T}, 2
        s_add_u32 s{S_PW}, s{S_T}, s{S_W}    ; (i*8+j)*4+w
        s_lshl_b32 s{S_FLAG}, s{S_PW}, 6
        s_lshl_b32 s{S_MX}, s{S_W}, 12
        s_lshl_b32 s{S_T+2}, s{S_I}, 7
        s_lshl_b32 s{S_T+3}, s{S_W}, 5
        s_add_u32 s{S_T+2}, s{S_T+2}, s{S_T+3}
        s_mul_i32 s{S_XO}, s{S_T+2}, 1280
        v_lshrrev_b32 v11, 4, v0                 ; g
        v_and_b32 v13, 7, v0
        v_xor_b32 v12, v13, v11
        v_lshlrev_b32 v12, 4, v12
        v_lshrrev_b32 v3, 3, v0
        v_mul_u32_u24 v3, 1280, v3
        v_lshl_add_u32 v253, v13, 4, v3          ; (l>>3)*1280 + (l&7)*16
        v_add_u32 v3, v3, v12                    ; (l>>3)*1280 + swz
        v_lshlrev_b32 v252, 4, v0
        s_bitcmp1_b32 s2, 0""")
        if self.ts: k("v_mov_b32 v255, 0\nv_writelane_b32 v255, s2, 63")
        k("s_waitcnt lgkmcnt(0)")
        if self.spin: k("s_mov_b32 s101, 0")
        k(f"s_load_dword s{S_TAG}, {ptr(16)}, {WS_EPOCH}")
        k(f"""s_mov_b32 s{SRD_X}, s{P0}
        s_mov_b32 s{SRD_X+1}, s{P0+1}
        s_mov_b32 s{SRD_X+2}, 2621440
        s_mov_b32 s{SRD_X+3}, 0x20000
        s_mov_b32 s{SRD_WS}, s{P0+32}
        s_mov_b32 s{SRD_WS+1}, s{P0+33}
        s_mov_b32 s{SRD_WS+2}, {WS_SIZE}
        s_mov_b32 s{SRD_WS+3}, 0x20000
        s_cbranch_scc1 L_mlp""")
        self.LV = 252; self.PV = 253

    def make_tag(self):
        self.k(f"""s_waitcnt lgkmcnt(0)
        s_bitcmp1_b32 s{S_TAG}, 0
        s_cselect_b32 s{S_PAT}, 0x10000, 1        ; payload tag bits alternate from launch to launch
        s_cselect_b32 s{S_PAT32}, 2, 1
        s_mul_i32 s{S_TAG}, s{S_TAG}, 0x9E3779B1
        s_add_u32 s{S_TAG}, s{S_TAG}, 0x7F4A7C15
        s_and_b32 s{S_TAG}, s{S_TAG}, 0xfffefffc
        s_or_b32 s{S_TAG}, s{S_TAG}, s{S_PAT}
        s_or_b32 s{S_TAG}, s{S_TAG}, s{S_PAT32}
        s_xor_b32 s{S_TAG2}, s{S_TAG}, 0x5bd1e995
        s_brev_b32 s{S_TAG2}, s{S_TAG2}
        s_mov_b32 s{S_NM}, 0xfffefffe""")

    def rowstat_setup(self, s_row, s_cl, va, vr):
        self.k(f"""v_min_u32 v{vr}, s{s_cl}, v11
        v_mul_u32_u24 v{va}, 1280, v{vr}
        v_and_b32 v13, 15, v0
        v_lshl_add_u32 v{va}, v13, 4, v{va}
        v_lshlrev_b32 v{vr}, 4, v{vr}
        s_mul_i32 s{s_row}, s{s_row}, 1280""")
    def rowstat_loads(self, srd, s_row, va, R0):
        L = []
        for q in range(5):
            def f(q=q): self.rs_tok[q] = self.k(f"buffer_load_dwordx4 {v(R0+4*q,4)}, v{va}, {s(srd,4)}, s{s_row} offen offset:{256*q}")
            L.append(f)
        self.rs_tok = {}
        return L
    def rowstat_fill(self, R0, A0, T0, vr, s_dst, sq=True):
        k = self.k; L = []
        for q in range(20):
            if q % 4 == 0: L.append(lambda q=q: k.wait_vm(self.rs_tok[q//4]))
            t0, t1 = T0 + 2*(q % 2), T0 + 2*(q % 2) + 1
            L += [f"v_lshlrev_b32 v{t0}, 16, v{R0+q}", f"v_and_b32 v{t1}, 0xffff0000, v{R0+q}"]
            if q == 0: L += [f"v_add_f32 v{A0}, v{t0}, v{t1}", f"v_mul_f32 v{A0+2}, v{t0}, v{t0}", f"v_fmac_f32 v{A0+2}, v{t1}, v{t1}"]
            else: L += [f"v_add_f32 v{A0}, v{A0}, v{t0}", f"v_fmac_f32 v{A0+2}, v{t0}, v{t0}", f"v_add_f32 v{A0}, v{A0}, v{t1}", f"v_fmac_f32 v{A0+2}, v{t1}, v{t1}"]
        L += [f"v_mov_b32 v{A0+1}, s{S_TAG}", f"v_mov_b32 v{A0+3}, s{S_TAG2}"]
        for r in (8, 4, 2, 1):
            L += [f"v_add_f32_dpp v{A0}, v{A0}, v{A0} row_ror:{r} row_mask:0xf bank_mask:0xf", f"v_add_f32_dpp v{A0+2}, v{A0+2}, v{A0+2} row_ror:{r} row_mask:0xf bank_mask:0xf"]
        if not sq: L = [x for x in L if callable(x) or not x.split(",")[0].endswith((f"v{A0+2}", f"v{A0+3}"))]
        L.append(lambda: k(f"""s_mov_b32 exec_lo, 0x00010001
        s_mov_b32 exec_hi, 0x00010001
        buffer_store_dwordx{4 if sq else 2} {v(A0,4 if sq else 2)}, v{vr}, {WS4}, s{s_dst} offen sc1
        s_mov_b64 exec, -1"""))
        return L
    @staticmethod
    def cost(x):
        if callable(x): return 1
        if x.startswith(("v_exp", "v_rcp", "v_rsq", "v_sin", "v_cos")): return 2
        return 1
    def take_fill(self, fq, n, cap):
        out = []
        while fq:
            x = fq[0]
            if isinstance(x, tuple):
                if x[0] == 'at':
                    if n < x[1]: break
                    fq.pop(0); continue
                if x[0] == 'mark':
                    self.marks[x[1]] = n; fq.pop(0); continue
            c = self.cost(x)
            if cap <= 0 or (c > cap and out): break
            cap -= c; out.append(fq.pop(0))
        return out
    def code_prefetch(self, label, vt):
        if 'nopf' in self.opt: return
        k = self.k
        here = k.newlabel("pc")
        k(f"s_getpc_b64 {s(S_T,2)}")
        k.label(here)
        k(f"""s_add_u32 s{S_T}, s{S_T}, {label}-{here}
        s_addc_u32 s{S_T+1}, s{S_T+1}, 0
        s_lshr_b32 s{S_T+2}, s2, 3
        s_lshl_b32 s{S_T+2}, s{S_T+2}, 2
        s_add_u32 s{S_T+2}, s{S_T+2}, s{S_W}
        s_lshl_b32 s{S_T+2}, s{S_T+2}, 8
        v_lshl_add_u32 v{vt}, v0, 2, s{S_T+2}
        global_load_dword v{vt}, v{vt}, {s(S_T,2)}""")

    def dma_reset(self):
        self.m0 = None; self.vstage = {}; self.sstage = 0
    def tile_of(self, t, dst):
        o = self.opt; r = S_WRAP
        if 'blk4' in o:
            if t < 8: return f"s_add_u32 s{dst}, s{r}, {t}\ns_and_b32 s{dst}, s{dst}, 3\ns_or_b32 s{dst}, s{dst}, {t & ~3}"
            return f"s_and_b32 s{dst}, s{r}, 1\ns_xor_b32 s{dst}, s{dst}, {t}"
        if 'blk5' in o:
            return f"s_add_u32 s{dst}, s{r}, {t % 5}\ns_cmp_ge_u32 s{dst}, 5\ns_cselect_b32 s{S_ST2K}, 5, 0\ns_sub_u32 s{dst}, s{dst}, s{S_ST2K}\ns_add_u32 s{dst}, s{dst}, {t - t % 5}"
        if 'rotlat' in o:
            return f"s_add_u32 s{dst}, s{r}, {t}\ns_cmp_ge_u32 s{dst}, 10\ns_cselect_b32 s{S_ST2K}, 10, 0\ns_sub_u32 s{dst}, s{dst}, s{S_ST2K}"
        return f"s_xor_b32 s{dst}, s{r}, {t}"
    def rot_setup(self, regs128, regsW):
        k = self.k; o = self.opt; r = S_WRAP
        k(f"s_lshr_b32 s{S_T}, s{S_I}, 2")
        if 'rot0' in o: k(f"s_mov_b32 s{r}, 0")
        elif 'blk4' in o: k(f"s_add_u32 s{r}, s{S_T}, s{S_J}\ns_and_b32 s{r}, s{r}, 3")
        elif 'blk5' in o: k(f"s_add_u32 s{r}, s{S_T}, s{S_J}\ns_and_b32 s{r}, s{r}, 3")
        elif 'rotlat' in o: k(f"s_lshl_b32 s{S_T}, s{S_T}, 1\ns_add_u32 s{S_T}, s{S_T}, s{S_J}\ns_and_b32 s{S_T}, s{S_T}, 7\ns_mul_i32 s{S_T}, s{S_T}, 5\ns_lshr_b32 s{r}, s{S_T}, 2")
        else: k(f"s_add_u32 s{r}, s{S_T}, s{S_J}\ns_and_b32 s{r}, s{r}, 1")
        k(f"s_mov_b32 s{S_ST1}, s{r}\ns_lshl_b32 s{S_ST2}, s{r}, 7")
        for x in regs128: k(f"v_add_u32 v{x}, s{S_ST2}, v{x}")
        if regsW: k(f"s_mul_i32 s{S_ST2}, s{S_ST2}, 1536")
    def dma(self, m0, ld, vreg=None, t=0, step=0):
        k = self.k
        def pre():
            if self.m0 != m0:
                k(f"s_add_u32 m0, s{m0[0]}, {m0[1]}"); self.m0 = m0
            if vreg is not None and self.vstage.get(vreg, 0) != t:
                assert self.vstage.get(vreg, 0) == t - 1
                if self.sstage != t:
                    k(self.tile_of(t, S_ST2))
                    k(f"s_sub_u32 s{S_ST1K}, s{S_ST2}, s{S_ST1}\ns_mov_b32 s{S_ST1}, s{S_ST2}\ns_lshl_b32 s{S_ST1K}, s{S_ST1K}, 7")
                    if self.has_w: k(f"s_mul_i32 s{S_ST2K}, s{S_ST1K}, 1536")
                    self.sstage = t
                k(f"v_add_u32 v{vreg}, s{S_ST1K if step == 128 else S_ST2K}, v{vreg}"); self.vstage[vreg] = t
        return pre, ld

    def unit_decode(self, nunits, U):
        self.k(f"""s_sub_u32 s{S_T}, s{S_PW}, {nunits}
        s_cmp_lt_u32 s{S_PW}, {nunits}
        s_cselect_b32 s{U}, s{S_PW}, s{S_T}
        s_mul_i32 s{S_T+2}, s{U}, 6554
        s_lshr_b32 s{S_T+2}, s{S_T+2}, 16
        s_mul_i32 s{S_T}, s{S_T+2}, 10
        s_sub_u32 s{S_T}, s{U}, s{S_T}""")

    def b2_setup(self, side):
        k = self.k; vl = self.PV
        S = [40, 48][side]; KS = [10, 12][side]
        if side == 0:
            V = f"""v_min_u32 v{vl}, 14, v0
            v_mul_u32_u24 v{vl+1}, 86, v{vl}
            v_lshrrev_b32 v{vl+1}, 8, v{vl+1}
            v_mul_u32_u24 v{vl+1}, 7, v{vl+1}
            v_add_lshl_u32 v{vl}, v{vl}, v{vl+1}, 6"""
            L = f"""s_mul_i32 s{S_T+12}, s{S_W}, 10
            s_lshr_b32 s{S_T+12}, s{S_T+12}, 2
            s_mul_i32 s{S_T+3}, s{S_J}, 50"""
        else:
            V = f"""v_min_u32 v{vl}, 23, v0
            v_lshrrev_b32 v{vl+1}, 1, v{vl}
            v_lshlrev_b32 v{vl+1}, 3, v{vl+1}
            v_add_lshl_u32 v{vl}, v{vl}, v{vl+1}, 6"""
            L = f"""s_mul_i32 s{S_T+12}, s{S_W}, 120
            s_mul_i32 s{S_T+3}, s{S_J}, 5
            s_lshr_b32 s{S_T+3}, s{S_T+3}, 2"""
        k(L + f"""
        s_add_u32 s{S_T+12}, s{S_T+12}, s{S_T+3}
        s_lshl_b32 s{S_T+12}, s{S_T+12}, 6
        s_add_u32 s{S_T+12}, s{S_T+12}, {WS_FB + side*512*FLS}
        s_mul_i32 s{S_B2}, s{S_J}, {5*S}
        s_mul_i32 s{S_T+3}, s{S_W}, {KS}
        s_add_u32 s{S_B2}, s{S_B2}, s{S_T+3}
        s_lshl_b32 s{S_B2}, s{S_B2}, 10
        s_add_u32 s{S_B2}, s{S_B2}, {WS_B2S[side]}""")
        self.order = [list(range(10)), [0, 3, 6, 9, 1, 4, 7, 10, 2, 5, 8, 11]][side]
        self.b2tok = {}; self.b2q = []
        for ss in self.order:
            for cc in range(5):
                def ld(ss=ss, cc=cc):
                    k(f"s_add_u32 s{P0+30}, s{S_B2}, {(cc*S + ss)*1024}")
                    self.b2tok[ss, cc] = k(f"buffer_load_dwordx4 {a((ss*5+cc)*4,4)}, v{self.LV}, {WS4}, s{P0+30} offen sc1")
                self.b2q.append(ld)
        return [x.strip() for x in V.split("\n")]
    def b2_take(self, n):
        out = self.b2q[:n]; self.b2q = self.b2q[n:]
        return out
    def b2_poll(self):
        self.pbtok = self.k(f"buffer_load_dword v254, v{self.PV}, {WS4}, s{S_T+12} offen sc1")
    def b2_check(self):
        k = self.k
        k.wait_vm(self.pbtok)
        def rl(): k(f"buffer_load_dword v254, v{self.PV}, {WS4}, s{S_T+12} offen sc1\ns_waitcnt vmcnt(0)")
        self.verify(lambda: k(f"v_cmp_ne_u32 vcc, s{S_TAG}, v254"), rl, "pb")

    TB_RS = 184
    def ssm(self):
        k = self.k
        ACC = 16; FR = [96, 144]
        XE, XO, WA, WB = 1, 2, 3, 4
        PV = self.PV; LV = self.LV; RS = self.TB_RS
        STG0, STGS = 16384, 36864
        S_RSROW, SW0, S_GW, S_GT, D2, S_RSDST, S_FB = S_T+5, S_T+6, S_T+8, S_T+9, S_T+10, S_T+13, S_T+14
        acc = lambda a_, tt: ACC + (a_*10 + tt)*4
        k.c("================ SSM side, phase 1")
        self.stamp(0); self.nf3 = 0; self.fine3(); self.marks = {}
        k(f"""v_lshrrev_b32 v13, 3, v0
        v_and_b32 v13, 3, v13
        v_lshrrev_b32 v15, 5, v0
        v_lshl_add_u32 v13, v15, 3, v13
        v_mul_u32_u24 v{XE}, 1280, v13
        v_add_u32 v{XE}, v{XE}, v12
        v_xor_b32 v{XO}, 64, v{XE}
        s_and_b32 s{S_T+4}, s{S_W}, 1
        s_lshl_b32 s{S_T+1}, s{S_T+4}, 6
        v_xor_b32 v{WA}, s{S_T+1}, v{WA}
        v_xor_b32 v{WB}, 64, v{WA}
        s_add_u32 s{S_XO+1}, s{S_XO}, {16*1280 - 1024}
        s_add_u32 s{S_XO+2}, s{S_XO}, {4*1280 - 2048}
        s_add_u32 s{S_XO+3}, s{S_XO}, {20*1280 - 3072}""")
        self.code_prefetch("L_ssm_code", 254)
        stage_tok = {}; stage_cnt = {}
        self.dma_reset(); self.has_w = False
        self.rot_setup([XE, XO, WA, WB], False)
        def dma_list(t):
            base = STG0 + (t % 4)*STGS
            L = []
            def mk(ld):
                def f():
                    stage_tok[t] = k(ld); stage_cnt[t] = stage_cnt.get(t, 0) + 1
                return f
            for e in range(4):
                vr = XE if e % 2 == 0 else XO
                L.append(self.dma((S_MX, base), mk(f"buffer_load_dwordx4 v{vr}, {s(SRD_X,4)}, s{S_XO+e} offen offset:{e*1024} lds"), vr, t, 128))
            for e in range(5):
                vr = WA if e % 2 == 0 else WB
                L.append(self.dma((S_MW, base + 16384 + (e//4)*4096), mk(f"buffer_load_dwordx4 v{vr}, {s(SRD_W,4)}, s{S_WO+e} offen offset:{(e%4)*1024} lds"), vr, t, 128))
            return L
        d0 = dma_list(0)
        for p in d0[:4]: self.emit(p)
        k(f"""s_cmp_lt_u32 s{S_W}, 2
        s_cselect_b32 s{SRD_W}, s{P0+6}, s{P0+8}
        s_cselect_b32 s{SRD_W+1}, s{P0+7}, s{P0+9}
        s_mov_b32 s{SRD_W+2}, 819200
        s_mov_b32 s{SRD_W+3}, 0x20000
        s_mul_i32 s{S_T+7}, s{S_J}, 80
        s_mul_i32 s{S_T+3}, s{S_T+4}, 40
        s_add_u32 s{S_T+2}, s{S_T+7}, s{S_T+3}
        s_mul_i32 s{S_WO}, s{S_T+2}, 1280
        s_add_u32 s{S_WO+1}, s{S_WO}, {8*1280 - 1024}
        s_add_u32 s{S_WO+2}, s{S_WO}, {16*1280 - 2048}
        s_add_u32 s{S_WO+3}, s{S_WO}, {24*1280 - 3072}
        s_add_u32 s{S_WO+4}, s{S_WO}, {32*1280}
        s_mul_i32 s{S_MW}, s{S_W}, 5120""")
        for p in d0[4:]: self.emit(p)
        VLR, VLI, VDT, ZR, ZI, VT, VP, TA, TB_ = 218, 219, 220, 221, 222, 223, 224, 225, 226
        self.emit(self.div20(VT, VP, 0))
        k(f"""s_mul_i32 s{S_T+1}, s{S_W}, 20
        v_add_u32 v{VP}, s{S_T+1}, v{VP}
        v_add_lshl_u32 v13, v{VP}, s{S_T+7}, 1
        global_load_ushort v{VLR}, v13, {ptr(1)}
        global_load_ushort v{VLI}, v13, {ptr(2)}""")
        vec_tok = k(f"global_load_ushort v{VDT}, v13, {ptr(7)}")
        d1 = dma_list(1)
        for p in d1[:4]: self.emit(p)
        self.fine3()
        k(f"""s_cmp_lt_u32 s{S_I}, 8
        s_cselect_b32 s{SRD_T1}, s{P0+6}, s{P0+8}
        s_cselect_b32 s{SRD_T1+1}, s{P0+7}, s{P0+9}
        s_mov_b32 s{SRD_T1+2}, 819200
        s_mov_b32 s{SRD_T1+3}, 0x20000
        s_mul_i32 s{S_T+4}, s{S_W}, 3
        s_and_b32 s{S_T+2}, s{S_I}, 7
        s_mul_i32 s{S_T+2}, s{S_T+2}, 10
        s_add_u32 s{S_T+2}, s{S_T+2}, s{S_T+7}
        s_add_u32 s{S_RSROW}, s{S_T+2}, s{S_T+4}     ; rows 80j + 10(i%8) + 3w + ..
        s_mul_i32 s{S_T+3}, s{S_J}, 160
        s_mul_i32 s{S_T+6}, s{S_I}, 10
        s_add_u32 s{S_T+3}, s{S_T+3}, s{S_T+6}
        s_add_u32 s{S_T+3}, s{S_T+3}, s{S_T+4}
        s_lshl_b32 s{S_T+3}, s{S_T+3}, 4
        s_add_u32 s{S_RSDST}, s{S_T+3}, {WS_WSG}
        s_cmp_eq_u32 s{S_W}, 3
        s_cselect_b32 s{S_T+1}, 0, 2""")
        R0, A0, T0 = 192, 212, 227
        self.rowstat_setup(S_RSROW, S_T+1, 15, 14)
        rs = self.rowstat_loads(SRD_T1, S_RSROW, 15, R0)
        self.unit_decode(400, S_FB)
        k(f"""s_mul_i32 s{S_T+1}, s{S_T+2}, {16*1280}
        s_lshl_b32 s{S_T+3}, s{S_T}, 7
        s_add_u32 s{SW0}, s{S_T+1}, s{S_T+3}
        s_add_u32 s{SW0+1}, s{SW0}, {8*1280 - 1024}
        s_mul_i32 s{S_T+3}, s{S_T+2}, 40
        s_lshl_b32 s{S_T+4}, s{S_T}, 2
        s_add_u32 s{S_T+3}, s{S_T+3}, s{S_T+4}
        s_lshl_b32 s{S_T+3}, s{S_T+3}, 10
        s_add_u32 s{D2}, s{S_T+3}, {WS_B2S[0]}
        s_lshl_b32 s{S_FB}, s{S_FB}, 6
        s_add_u32 s{S_FB}, s{S_FB}, {WS_FB}
        s_mul_i32 s{S_GW}, s{S_J}, 2560
        s_mul_i32 s{S_T}, s{S_W}, 640
        s_add_u32 s{S_GW}, s{S_GW}, s{S_T}
        s_add_u32 s{S_GW}, s{S_GW}, {WS_WSG}
        s_lshl_b32 s{S_GT}, s{S_I}, 11
        s_lshl_b32 s{S_T}, s{S_W}, 9
        s_add_u32 s{S_GT}, s{S_GT}, s{S_T}
        s_add_u32 s{S_GT}, s{S_GT}, {WS_STG}
        v_and_b32 v11, 15, v0
        v_lshrrev_b32 v12, 4, v0
        v_lshrrev_b32 v13, 1, v11
        v_xor_b32 v13, v13, v12
        v_lshlrev_b32 v13, 4, v13
        v_lshl_add_u32 v13, v11, 7, v13
        v_add_u32 v5, {STG0}, v13
        v_add_u32 v5, s{S_MX}, v5
        v_xor_b32 v6, 64, v5
        v_add_u32 v7, {STG0+16384}, v13
        v_xor_b32 v8, 64, v7
        v_add_u32 v9, {2*STGS}, v5
        v_add_u32 v10, {2*STGS}, v6
        v_add_u32 v250, {2*STGS}, v7
        v_add_u32 v251, {2*STGS}, v8
        v_lshlrev_b32 v13, 7, v11
        v_lshrrev_b32 v12, 5, v0
        v_lshl_add_u32 v13, v12, 11, v13
        v_bfe_u32 v12, v0, 4, 1
        v_lshl_add_u32 v13, v12, 4, v13
        v_add_u32 v13, s{S_MX}, v13
        v_mul_u32_u24 v11, {RS}, v11             ; table row of this lane's column
        v_min_u32 v{VT}, 2, v{VT}
        v_mul_u32_u24 v{TA}, {RS}, v{VP}
        v_lshl_add_u32 v{TB_}, v{VT}, 3, v{TA}
        v_lshlrev_b32 v{VT}, 3, v{VT}
        v_cvt_f32_u32 v{VT}, v{VT}
        v_and_b32 v216, 31, v0
        v_lshlrev_b32 v216, 4, v216
        v_min_u32 v217, 39, v0
        v_lshlrev_b32 v217, 4, v217""")
        b2v = self.b2_setup(0)
        self.srd(SRD_T2, 5, 819200)
        self.srd(SRD_OUT, 6, 819200)
        tk = {}
        swq = []
        for e in range(4):
            def f(e=e): tk['d2'] = k(f"buffer_load_dwordx4 v{PV}, {s(SRD_T2 if e < 2 else SRD_OUT,4)}, s{SW0+e%2} offen offset:{(e%2)*1024} lds")
            swq.append(self.dma((S_MX, (e//2)*2048), f))
        self.make_tag()
        for p in d1[4:7]: self.emit(p)
        RXA = [[5, 6], [9, 10]]; RWA = [[7, 8], [250, 251]]
        rtok = {}
        def mkreads(n):
            st = FR[n % 2]; ks = n % 2; sl = (n//2) % 4; o = (sl % 2)*STGS
            R = [f"ds_read_b128 {v(st+4*a_,4)}, v{RXA[sl//2][ks]} offset:{o+a_*2048}" for a_ in range(2)]
            R += [f"ds_read_b128 {v(st+8+4*tt,4)}, v{RWA[sl//2][ks]} offset:{o+tt*2048}" for tt in range(10)]
            L = []
            for i, r in enumerate(R):
                def f(i=i, r=r): rtok[n, i] = k(r)
                L.append(f)
            return L
        self.fine3()
        k.wait_vm(stage_tok[0])
        self.fine3()
        k("s_barrier")
        self.fine3()
        self.stamp(1)
        k.label("L_ssm_code")
        self.emit(mkreads(0))
        LAM, LAM2, LAM4, WSUM = C5(192), C5(202), C5(212), C5(222)
        AT, BT, TG = 232, 240, 192
        L_AB = 14720
        mq = [[0, 1, p_, l_] for p_, l_ in d1[7:]] + [[0, 1, None, f] for f in rs]
        def q_stage(t):
            for p_, l_ in dma_list(t): mq.append([max(2*(t-3), 0), 1, p_, l_])
        def sw_store(cc):
            def f():
                k.wait_lg(tk['r2'])
                tk['s2'] = k(f"buffer_store_dwordx4 {a(220+4*cc,4)}, v{LV}, {WS4}, s{D2} offen offset:{1024*cc} sc1")
            return f
        def gl1(): k(f"buffer_load_dwordx4 {v(TG,4)}, v216, {WS4}, s{S_GT} offen sc1")
        def gl2(): tk['gr'] = k(f"buffer_load_dwordx2 {v(TG+4,2)}, v217, {WS4}, s{S_GW} offen sc1")
        NSW, NFLAG, NGL, NGC, NPOLL, NCHK = [int(self.P(a_, b_)) for a_, b_ in (('snsw', 3), ('snfl', 9), ('sngl', 13), ('sngc', 16), ('snpo', 14), ('snck', 17))]
        q_stage(2); mq += [[0, 1, p_, l_] for p_, l_ in swq]; q_stage(3); q_stage(4)
        for cc in range(4): mq.append([NSW+1, 2, None, sw_store(cc)])
        for t in range(5, 10): q_stage(t)
        late = {NGL: [[NGL, 1, None, gl1], [NGL, 1, None, gl2]]}
        late[NPOLL] = late.get(NPOLL, []) + [[NPOLL, 0.5, None, self.b2_poll]]
        def swr():
            k.wait_vm(tk['d2'])
            for ss in range(4): tk['r2'] = k(f"ds_read_b128 {a(220+4*ss,4)}, v13 offset:{32*ss}")
        fq = [lambda: k.wait_vm(vec_tok)]
        fq += [x.strip() for x in f"""v_lshlrev_b32 v{VDT}, 16, v{VDT}
        v_mul_f32 v{VDT}, {fbits(LOG2E)}, v{VDT}
        v_exp_f32 v{VDT}, v{VDT}
        v_lshlrev_b32 v{VLR}, 16, v{VLR}
        v_lshlrev_b32 v{VLI}, 16, v{VLI}
        v_cvt_pk_bf16_f32 v{VDT}, v{VDT}, v{VDT}
        v_and_b32 v{VDT}, 0xffff0000, v{VDT}
        v_mul_f32 v{ZR}, v{VLR}, v{VDT}
        v_mul_f32 v{ZI}, v{VLI}, v{VDT}
        v_mul_f32 v{ZR}, {fbits(LOG2E)}, v{ZR}
        v_mul_f32 v{ZI}, 0.15915494, v{ZI}
        v_accvgpr_write_b32 a250, v{ZR}
        v_accvgpr_write_b32 a251, v{ZI}
        v_mov_b32 v231, {fbits(128.0)}
        v_mov_b32 v232, {fbits(8.0)}""".split("\n")]
        LM = 240
        P = [self.cpow(LM, LM+1, "1.0", ZR, ZI, 233), self.cpow(236, 237, "v231", ZR, ZI, 234), self.cpow(248, 249, "v232", ZR, ZI, 235)]
        fq += [x[i] for i in range(8) for x in P]
        fq += [x.strip() for x in f"""v_accvgpr_write_b32 a252, v236
        v_accvgpr_write_b32 a253, v237
        v_mul_f32 v231, v{VLR}, v{VLR}
        v_fma_f32 v231, v{VLI}, v{VLI}, v231
        v_rcp_f32 v231, v231
        v_mul_f32 v{LM+2}, v{LM}, v{LM}
        v_mul_f32 v{LM+3}, v{LM}, v{LM+1}
        v_fma_f32 v{LM+2}, -v{LM+1}, v{LM+1}, v{LM+2}
        v_add_f32 v{LM+3}, v{LM+3}, v{LM+3}
        v_add_f32 v232, -1.0, v{LM}
        v_add_f32 v231, v231, v231
        v_mul_f32 v{LM+4}, v{LM+2}, v{LM+2}
        v_mul_f32 v{LM+5}, v{LM+2}, v{LM+3}
        v_fma_f32 v{LM+4}, -v{LM+3}, v{LM+3}, v{LM+4}
        v_add_f32 v{LM+5}, v{LM+5}, v{LM+5}
        v_mul_f32 v{LM+6}, v232, v{VLR}
        v_mul_f32 v{LM+7}, v{LM+1}, v{VLR}
        v_fma_f32 v{LM+6}, v{LM+1}, v{VLI}, v{LM+6}
        v_fma_f32 v{LM+7}, -v232, v{VLI}, v{LM+7}
        v_mul_f32 v{LM+6}, v{LM+6}, v231
        v_mul_f32 v{LM+7}, v{LM+7}, v231""".split("\n")]
        rsf = self.rowstat_fill(R0, A0, T0, 14, S_RSDST, sq=False)
        fq += [('at', 2)] + rsf + [('mark', 'rs')]
        fq += b2v + [('mark', 'gaddr')]
        fq += [('at', (NSW | 1) + 1 + (NSW & 1)*2)] + [f"ds_write_b64 v{TA}, {v(LM+2*q,2)} offset:{144+8*q}" for q in range(4)]
        for g3 in range(2):
            P = [[f"v_add_f32 v{237+q}, {fbits(24.0*(3*g3+q))}, v{VT}"] + self.cpow(231+2*q - 0, 232+2*q, f"v{237+q}", ZR, ZI, 227+q) for q in range(3)]
            P = [[f"v_add_f32 v{238+q}, {fbits(24.0*(3*g3+q))}, v{VT}"] + self.cpow(232+2*q, 233+2*q, f"v{238+q}", ZR, ZI, 227+q) for q in range(3)]
            fq += [x[i] for i in range(9) for x in P]
            fq += [f"ds_write_b64 v{TB_}, {v(232+2*q,2)} offset:{24*(3*g3+q)}" for q in range(3)]
        fq += [('mark', 'table')]
        def flg():
            k.wait_vm(tk['s2']); self.set_flag(S_FB, 15)
        flags = {NFLAG: flg, NSW: swr}
        pre_st = [x.strip() for x in f"""s_lshl_b32 s{S_T}, s{S_W}, 7
        v_lshrrev_b32 v12, 2, v216
        v_add_u32 v12, s{S_T}, v12
        v_add_u32 v12, {L_AB}, v12
        v_lshrrev_b32 v14, 4, v0
        v_lshl_add_u32 v239, v14, 5, s{S_T}
        s_and_b32 s{S_T}, s{S_W}, 1
        s_mul_i32 s{S_T}, s{S_T}, 40
        v_lshrrev_b32 v13, 4, v217
        v_add_u32 v13, s{S_T}, v13
        v_mul_u32_u24 v13, {RS}, v13
        s_lshr_b32 s{S_T}, s{S_W}, 1
        s_lshl_b32 s{S_T}, s{S_T}, 2
        v_add_u32 v13, s{S_T}, v13
        s_mov_b32 s{S_T}, {fbits(1.0/640)}""".split("\n")]
        stq = [x.strip() for x in f"""ds_write_b32 v13, v{TG+4} offset:176
        v_mul_f32 v{TG}, s{S_T}, v{TG}
        v_mul_f32 v15, v{TG}, v{TG}
        v_fma_f32 v15, v{TG+2}, s{S_T}, -v15
        v_max_f32 v15, 0, v15
        v_add_f32 v15, {fbits(EPS)}, v15
        v_rsq_f32 v15, v15
        v_mul_f32_e64 v{TG}, v{TG}, -v15
        ds_write2st64_b32 v12, v15, v{TG} offset0:0 offset1:2""".split("\n")]
        fq += pre_st + [('at', 14)] + [f"ds_read_b64 {v(LAM2.r(b),2)}, v11 offset:{16*b*RS+152}" for b in range(5)]
        fq += [('at', NGC)] + stq + [('mark', 'stats')]
        fq += [f"ds_read_b64 {v(LAM4.r(b),2)}, v11 offset:{16*b*RS+160}" for b in range(5)]
        NRD = int(self.P('snrd', 18))
        fq += [('at', NRD)] + [f"ds_read_b64 {v(LAM.r(b),2)}, v11 offset:{16*b*RS+144}" for b in range(5)]
        fq += [f"ds_read_b128 {v(AT+4*q,4)}, v239 offset:{L_AB+16*(q%2)+512*(q//2)}" for q in (3, 2, 0, 1)]
        fq += [f"ds_read_b64 {v(WSUM.r(b),2)}, v11 offset:{16*b*RS+176}" for b in range(5)]
        credit = 0.0; b2on = False
        for n in range(20):
            st = FR[n % 2]
            k.c(f"---- ssm k-step {n}")
            self.fine(16 + n)
            if n == NGC:
                k.wait_vm(tk['gr'])
                def check():
                    k(f"""v_xor_b32 v15, s{S_TAG}, v{TG+1}
                    v_bitop3_b32 v15, s{S_TAG2}, v{TG+3}, v15 bitop3:0xbe
                    v_bitop3_b32 v15, s{S_TAG}, v{TG+5}, v15 bitop3:0xbe
                    v_cmp_ne_u32 vcc, 0, v15""")
                def rl():
                    gl1(); gl2(); k("s_waitcnt vmcnt(0)")
                self.verify(check, rl, "pg")
            if n == NCHK:
                self.b2_check(); b2on = True
            if n == NGL: assert self.marks['rs'] < n
            if n == NPOLL: assert self.marks['gaddr'] < n
            mq[0:0] = late.get(n, [])
            mem = []
            mmax = int(self.P('smax', 9)) if n < self.P('sfast', 2) else int(self.P('scap', 5))
            while len(mem) < mmax:
                if mq and mq[0][0] <= n: it_ = mq.pop(0)
                elif b2on and self.b2q and len(mem) < self.P('sb2', 5): it_ = [n, 1, None, self.b2q.pop(0)]
                else: break
                mem.append(it_)
            rd = mkreads(n+1) if n + 1 < 20 else []
            slots = [[] for _ in range(20)]
            if n % 2 == 0:
                rslots = [0, 1, 3, 4, 6, 7, 9, 10, 12, 13, 15, 16]; pref = [2, 8, 14, 19, 5, 11, 17, 18, 0, 6, 12, 3, 9, 15, 1, 4]
            else:
                rslots = [4, 5, 6, 8, 9, 10, 12, 13, 14, 16, 17, 18]; pref = [0, 7, 15, 2, 11, 19, 1, 5, 9, 13, 17, 4, 8, 12, 16, 6]
                if n + 1 < 20:
                    T_ = (n + 1)//2
                    def f(T_=T_):
                        assert stage_cnt[T_] == 9
                        k.wait_both(stage_tok[T_], k.lg_issued)
                        k("s_barrier")
                    slots[3] += [f]
            mslots = sorted(pref[:len(mem)])
            cap = [2]*20
            for sl, r in zip(rslots, rd): slots[sl].append(r); cap[sl] = 1
            for sl, it_ in zip(mslots, mem):
                slots[sl] = [it_[3]] + slots[sl]; cap[sl] -= 1
            if n % 2 == 1 and n + 1 < 20: cap[3] = 0
            i = 0
            for tt in range(10):
                for a_ in range(2):
                    if i in mslots[:len(mem)] and i == 0 and mem[0][2]: mem[0][2]()
                    grp = {0: 1, 2: 9} if n % 2 == 1 else {0: tt, 1: tt, 2: tt, 3: tt, 4: tt, 5: tt, 6: tt, 7: tt, 8: tt, 9: tt} if n == 0 else {0: 3, 4: 6, 7: 9}
                    if a_ == 0 and tt in grp: k.wait_lg(rtok[n, 2+grp[tt]])
                    assert k.lg_done >= rtok[n, 2+tt]
                    c_ = "0" if n == 0 else v(acc(a_, tt), 4)
                    k(f"v_mfma_f32_16x16x32_bf16 {v(acc(a_,tt),4)}, {v(st+4*a_,4)}, {v(st+8+4*tt,4)}, {c_}")
                    self.emit(slots[i])
                    c0 = cap[i]
                    if i + 1 in mslots[:len(mem)]:
                        n0 = len(k.ins); pre_ = mem[mslots.index(i+1)][2]
                        if pre_: pre_()
                        c0 -= len(k.ins) - n0
                    if c0 > 0 and (cap[i] == 2 or i % int(self.P('sden', 1)) == 0): self.emit(self.take_fill(fq, n, c0))
                    if i == 19 and n in flags: flags[n]()
                    i += 1
        self.emit([x for x in fq if not isinstance(x, tuple)])
        assert not mq and self.marks['table'] <= 12 and self.marks['stats'] <= NRD - 2 + (NRD & 1), self.marks
        self.info = f"ssm b2 left {len(self.b2q)} marks {self.marks} tail {len(fq)}"
        k.c('loop end')
        self.stamp(2)
        if self.early_stop("loop"): return
        self.ssm_epilogue(ACC, AT, BT, LAM, LAM2, LAM4, WSUM, L_AB)

    def ssm_epilogue(self, ACC, AT, BT, LAM, LAM2, LAM4, WSUM, L_AB):
        k = self.k; RS = self.TB_RS; LV = self.LV
        acc = lambda a_, tt: ACC + (a_*10 + tt)*4
        tok = lambda r, tt: acc(r//4, tt) + r % 4
        L_E, L_C = 16384, 102400
        TM, SEG = 146, 15
        def bc(r): return v(r & ~1, 2), r & 1
        k.c("================ SSM epilogue")
        self.nf2 = 0; self.fine2()
        self.emit(self.div20(8, 9, 0))
        k(f"""v_and_b32 v11, 15, v0
        s_lshl_b32 s{S_T}, s{S_W}, 2
        v_add_u32 v{SEG}, s{S_T}, v14
        v_mul_u32_u24 v13, 768, v{SEG}
        v_mul_u32_u24 v12, 48, v11
        v_add_u32 v13, v13, v12                  ; E[s][col]
        s_mul_i32 s{S_T}, s{S_W}, 20
        v_add_u32 v9, s{S_T}, v9
        v_and_b32 v10, 15, v9
        v_mul_u32_u24 v10, 48, v10
        v_lshrrev_b32 v7, 4, v9
        v_lshl_add_u32 v10, v7, 3, v10           ; E[.][p_local]
        s_waitcnt lgkmcnt(0)""")
        sec = []
        for tt in list(range(10)):
            ws = WSUM.r(tt % 5); hi = tt // 5
            for a_ in range(2):
                for h in range(2):
                    t_ = TM + 2*(a_*2 + h) + 8*(tt % 2)
                    sec.append(f"v_pk_mul_f32 {v(t_,2)}, {v(BT+4*a_+2*h,2)}, {v(ws,2)} op_sel:[0,{hi}] op_sel_hi:[1,{hi}]")
            for a_ in range(2):
                for h in range(2):
                    d = acc(a_, tt) + 2*h; t_ = TM + 2*(a_*2 + h) + 8*(tt % 2)
                    sec.append(f"v_pk_fma_f32 {v(d,2)}, {v(AT+4*a_+2*h,2)}, {v(d,2)}, {v(t_,2)}")
        V1 = 96; EE = C5(136)
        def pkc(dr, di, ar, ai, cr_, ci_, lr, li):
            (pr, sr), (pi, si) = bc(lr), bc(li)
            return [f"v_pk_fma_f32 {v(dr,2)}, {v(ar,2)}, {pr}, {v(cr_,2)} op_sel:[0,{sr},0] op_sel_hi:[1,{sr},1]",
                    f"v_pk_fma_f32 {v(di,2)}, {v(ai,2)}, {pr}, {v(ci_,2)} op_sel:[0,{sr},0] op_sel_hi:[1,{sr},1]",
                    f"v_pk_fma_f32 {v(dr,2)}, {v(ai,2)}, {pi}, {v(dr,2)} op_sel:[0,{si},0] op_sel_hi:[1,{si},1] neg_lo:[1,0,0] neg_hi:[1,0,0]",
                    f"v_pk_fma_f32 {v(di,2)}, {v(ar,2)}, {pi}, {v(di,2)} op_sel:[0,{si},0] op_sel_hi:[1,{si},1]"]
        LL = [pkc(V1+8*b+2*h, V1+8*b+4+2*h, acc(0,b)+2*h, acc(0,5+b)+2*h, acc(1,b)+2*h, acc(1,5+b)+2*h, LAM4.r(b), LAM4.i(b))
              for b in range(5) for h in range(2)]
        sec += [x[i] for i in range(4) for x in LL]
        LL = [pkc(V1+8*b+2, V1+8*b+6, V1+8*b, V1+8*b+4, V1+8*b+2, V1+8*b+6, LAM2.r(b), LAM2.i(b)) for b in range(5)]
        sec += [x[i] for i in range(4) for x in LL]
        sec += self.cmul5(EE, LAM, C5(V1+2, V1+6, 8), C5(V1+3, V1+7, 8))
        self.sprinkle(sec, self.b2_take(int(self.P('e1', 8))))
        k(f"""ds_write_b128 v13, {v(136,4)} offset:{L_E}
        ds_write_b128 v13, {v(140,4)} offset:{L_E+16}
        ds_write_b64 v13, {v(144,2)} offset:{L_E+32}
        v_lshlrev_b32 v6, 4, v9
        s_lshl_b32 s{S_T}, s{S_J}, 4
        s_add_u32 s{S_T+1}, s{S_T}, s{S_I}
        s_mul_i32 s{S_T+1}, s{S_T+1}, 1280
        s_add_u32 s{S_T+1}, s{S_T+1}, {WS_AGG}
        v_mov_b32 v129, s{S_TAG}
        v_mov_b32 v131, s{S_TAG2}
        s_waitcnt lgkmcnt(0)
        s_barrier""")
        self.fine2()
        CH = 96; L8R, L8I = 248, 249
        ct = [k(f"ds_read_b64 {v(CH+2*q,2)}, v10 offset:{L_E+768*q}") for q in range(16)]
        for q in range(1, 16):
            k.wait_lg(ct[q])
            er, ei, pr, pi = CH+2*q, CH+2*q+1, CH+2*q-2, CH+2*q-1
            if q < 15:
                k(f"v_fmac_f32 v{er}, v{L8R}, v{pr}\nv_fmac_f32 v{ei}, v{L8R}, v{pi}\nv_fma_f32 v{er}, -v{L8I}, v{pi}, v{er}\nv_fmac_f32 v{ei}, v{L8I}, v{pr}")
            else:
                k(f"v_fmac_f32 v{er}, v{L8R}, v{pr}\nv_fmac_f32 v{ei}, v{L8R}, v{pi}\nv_fma_f32 v128, -v{L8I}, v{pi}, v{er}\nv_fma_f32 v130, v{L8I}, v{pr}, v{ei}")
        k(f"""s_mov_b64 exec, 0xfffff
        buffer_store_dwordx4 v[128:131], v6, {WS4}, s{S_T+1} offen sc1
        s_mov_b64 exec, -1""")
        self.stamp(3); self.fine2()
        KK, US, CS, VV, DD = C5(202), C5(212), C5(136), C5(146, 151), C5(156, 161)
        work = [f"ds_write_b64 v10, {v(CH+2*q,2)} offset:{L_E+768*q}" for q in range(1, 15)]
        work += [f"v_mul_u32_u24 v7, {RS}, v11", f"v_lshl_add_u32 v5, v{SEG}, 3, v7"]
        work += [f"ds_read_b64 {v(KK.r(b),2)}, v7 offset:{16*b*RS+168}" for b in range(5)]
        work += [f"ds_read_b64 {v(US.r(b),2)}, v5 offset:{16*b*RS}" for b in range(5)]
        GB = 96
        BZR, BZI, BLR, BLI, BQR, BQI, BT_ = 116, 117, 118, 119, 120, 121, 122
        MK = 36
        work += [f"v_min_u32 v8, 2, v8", f"v_mul_u32_u24 v7, 5, v8", f"v_mul_u32_u24 v5, 1280, v7", f"v_add_u32 v6, v6, v5",
                 f"s_mul_i32 s{S_T+4}, s{S_J}, {16*1280}", f"s_add_u32 s{S_T+4}, s{S_T+4}, {WS_AGG}", f"s_add_u32 s{S_T+5}, s{S_T+4}, 3840",
                 "s_waitcnt lgkmcnt(0)", "s_barrier",
                 f"ds_read_b128 {v(136,4)}, v13 offset:{L_E-768}", f"ds_read_b128 {v(140,4)}, v13 offset:{L_E-768+16}", f"ds_read_b64 {v(144,2)}, v13 offset:{L_E-768+32}",
                 f"v_accvgpr_read_b32 v{BZR}, a250", f"v_accvgpr_read_b32 v{BZI}, a251", f"v_accvgpr_read_b32 v{BLR}, a252", f"v_accvgpr_read_b32 v{BLI}, a253",
                 f"v_add_u32 v10, 5, v7", f"v_min_u32 v10, s{S_I}, v10", f"v_sub_u32 v10, s{S_I}, v10", f"v_lshlrev_b32 v10, 7, v10", f"v_cvt_f32_u32 v10, v10"]
        work += self.cpow(BQR, BQI, "v10", BZR, BZI, BT_)
        for q in range(5): work += [f"v_add_u32 v10, {q}, v7", f"v_cmp_gt_u32 {s(MK+2*q,2)}, s{S_I}, v10"]
        ku = []
        for b in range(5):
            (kr, sr), (ki, si) = bc(KK.r(b)), bc(KK.i(b))
            for h in range(4):
                ur = tok(2*h, b); ui = tok(2*h, 5+b); t_ = 166 + 4*(h % 2)
                ku += [f"v_pk_mul_f32 {v(t_,2)}, {v(ur,2)}, {kr} op_sel:[0,{sr}] op_sel_hi:[1,{sr}]",
                       f"v_pk_mul_f32 {v(t_+2,2)}, {v(ur,2)}, {ki} op_sel:[0,{si}] op_sel_hi:[1,{si}]",
                       f"v_pk_fma_f32 {v(ur,2)}, {v(ui,2)}, {ki}, {v(t_,2)} op_sel:[0,{si},0] op_sel_hi:[1,{si},1] neg_lo:[1,0,0] neg_hi:[1,0,0]",
                       f"v_pk_fma_f32 {v(ui,2)}, {v(ui,2)}, {kr}, {v(t_+2,2)} op_sel:[0,{sr},0] op_sel_hi:[1,{sr},1]"]
        work += ku
        self.sprinkle(work, self.b2_take(int(self.P('e2', 11))))
        self.fine2()
        def gloads():
            for q in range(5):
                t = k(f"buffer_load_dwordx4 {v(GB+4*q,4)}, v6, {WS4}, s{S_T+4+(q//3)} offen offset:{1280*(q%3)} sc1")
            return t
        gt = {}
        def gl_(): gt['t'] = gloads()
        w2 = ["s_waitcnt lgkmcnt(0)", f"s_cmp_eq_u32 s{S_W}, 0", "s_cselect_b64 exec, 0xffff, 0"]
        w2 += [f"v_mov_b32 v{136+q}, 0" for q in range(10)] + ["s_mov_b64 exec, -1"]
        w2 += self.cmul5(VV, KK, US) + self.cmul5(DD, KK, CS)
        w2 += [x.strip() for x in f"""v_and_b32 v5, 15, v9
        v_mul_u32_u24 v5, 160, v5
        v_lshrrev_b32 v4, 4, v9
        v_lshlrev_b32 v4, 5, v4
        v_lshl_add_u32 v4, v8, 3, v4
        v_add_u32 v5, v5, v4
        v_add_u32 v5, {L_C}, v5
        v_mul_u32_u24 v12, 160, v11
        v_add_u32 v12, {L_C}, v12
        v_mov_b32 v{BZR}, 0
        v_mov_b32 v{BZI}, 0
        s_mul_i32 s{S_T}, s{S_W}, {RED_W}
        s_add_u32 s{S_T}, s{S_T}, {LDS_RED}
        v_mul_u32_u24 v13, 80, v11
        v_lshl_add_u32 v13, v14, 4, v13
        v_add_u32 v13, s{S_T}, v13
        v_lshrrev_b32 v4, 2, v11
        v_lshl_add_u32 v4, v14, 3, v4
        v_mul_u32_u24 v4, 80, v4
        v_and_b32 v3, 3, v11
        v_lshl_add_u32 v4, v3, 3, v4
        v_add_u32 v4, s{S_T}, v4
        v_and_b32 v3, 1, v11
        v_lshlrev_b32 v3, 4, v3
        v_lshrrev_b32_e64 v3, v3, s{S_PAT}
        v_and_b32 v3, 1, v3
        v_mul_u32_u24 v3, 0x10001, v3
        s_lshl_b32 s{S_T}, s{S_I}, 3
        s_lshl_b32 s{S_T+1}, s{S_W}, 1
        s_add_u32 s{S_T}, s{S_T}, s{S_T+1}
        s_mul_i32 s{S_T}, s{S_T}, 40
        s_mul_i32 s{S_T+1}, s{S_J}, 5
        s_add_u32 s{S_T}, s{S_T}, s{S_T+1}
        s_lshl_b32 s{S_T}, s{S_T}, 10
        s_add_u32 s{S_T+8}, s{S_T}, {WS_A2[0]}
        s_add_u32 s{S_T+9}, s{S_T+8}, 4096
        s_add_u32 s{S_T+10}, s{S_T+8}, {40*1024}
        s_add_u32 s{S_T+11}, s{S_T+8}, {40*1024+4096}""".split("\n")]
        rq = self.resid_loads()
        gpos = int(self.P('gpos', 6))
        self.sprinkle(w2, rq[:gpos] + [gl_] + rq[gpos:] + self.b2_take(int(self.P('e3', 3))))
        gtok = gt['t']
        self.stamp(4); self.fine2()
        k.wait_vm(gtok)
        def check():
            for q in range(5):
                k(f"v_xor_b32 v10, s{S_TAG}, v{GB+4*q+1}")
                k(f"v_bitop3_b32 v10, s{S_TAG2}, v{GB+4*q+3}, v10 bitop3:0xbe")
                k(f"v_cmp_ne_u32 {s(S_T+2,2)}, 0, v10")
                k(f"s_and_b64 {'vcc' if q == 0 else s(S_T+2,2)}, {s(S_T+2,2)}, {s(MK+2*q,2)}")
                if q: k(f"s_or_b64 vcc, vcc, {s(S_T+2,2)}")
        def reload():
            gloads(); k("s_waitcnt vmcnt(0)")
        self.verify(check, reload, "pc")
        self.stamp(5); self.fine2()
        for q in range(5):
            er, ei = GB+4*q, GB+4*q+2
            k(f"""s_mov_b64 exec, {s(MK+2*q,2)}
            v_fmac_f32 v{er}, v{BLR}, v{BZR}
            v_fmac_f32 v{ei}, v{BLR}, v{BZI}
            v_fmac_f32 v{ei}, v{BLI}, v{BZR}
            v_fma_f32 v{BZR}, -v{BLI}, v{BZI}, v{er}
            v_mov_b32 v{BZI}, v{ei}""")
        k(f"""s_mov_b64 exec, -1
        v_mul_f32 v126, v{BQR}, v{BZR}
        v_mul_f32 v127, v{BQR}, v{BZI}
        v_fma_f32 v126, -v{BQI}, v{BZI}, v126
        v_fmac_f32 v127, v{BQI}, v{BZR}
        ds_write_b64 v5, v[126:127]
        s_waitcnt lgkmcnt(0)
        s_barrier""")
        CB = 96
        ct = []
        for b in range(5):
            k(f"ds_read_b128 {v(CB+6*b,4)}, v12 offset:{32*b}")
            ct.append(k(f"ds_read_b64 {v(CB+6*b+4,2)}, v12 offset:{32*b+16}"))
        for b in range(5):
            k.wait_lg(ct[b])
            k(f"v_pk_add_f32 {v(CB+6*b,2)}, {v(CB+6*b,2)}, {v(CB+6*b+2,2)}")
        for b in range(5):
            k(f"v_pk_add_f32 {v(CB+6*b,2)}, {v(CB+6*b,2)}, {v(CB+6*b+4,2)}")
        self.sprinkle(self.cmul5(DD, VV, C5(CB, CB+1, 6), DD), self.b2_take(int(self.P('e4', 2))))
        self.fine2()
        PK = 96
        frg = lambda b, tt2: (136 + 4*(2*b + tt2)) if 2*b + tt2 < 5 else (202 + 4*(2*b + tt2 - 5))
        wt = {}; rt = {}
        def scan(bs):
            L = []
            for r in range(8):
                pr = lambda b: DD.r(b) if r == 0 else tok(r-1, b)
                pi = lambda b: DD.i(b) if r == 0 else tok(r-1, 5+b)
                for b in bs: L += [f"v_fmac_f32 v{tok(r,b)}, v{LAM.r(b)}, v{pr(b)}", f"v_fmac_f32 v{tok(r,5+b)}, v{LAM.r(b)}, v{pi(b)}"]
                for b in bs: L += [f"v_fma_f32 v{tok(r,b)}, -v{LAM.i(b)}, v{pi(b)}, v{tok(r,b)}", f"v_fmac_f32 v{tok(r,5+b)}, v{LAM.i(b)}, v{pr(b)}"]
            for b in bs:
                for comp in range(2):
                    d = PK + 4*(2*b + comp); ng = "-" if comp else ""
                    L += [f"v_cvt_pk_bf16_f32 v{d+h}, {ng}v{tok(2*h,5*comp+b)}, {ng}v{tok(2*h+1,5*comp+b)}" for h in range(4)]
                    L += [f"v_and_or_b32 v{d+h}, v{d+h}, s{S_NM}, v3" for h in range(4)]
                    def f(b=b, d=d, comp=comp): wt[b] = k(f"ds_write_b128 v13, {v(d,4)} offset:{(32*b+16*comp)*80}")
                    L.append(f)
            return L
        def outq(bs):
            L = []
            for b in bs:
                def trr(b=b):
                    k.wait_lg(wt[b])
                    for tt2 in range(2):
                        d = frg(b, tt2)
                        k(f"ds_read_b64_tr_b16 {v(d,2)}, v4 offset:{(32*b)*80+32*tt2}")
                        rt[b, tt2] = k(f"ds_read_b64_tr_b16 {v(d+2,2)}, v4 offset:{(32*b+4)*80+32*tt2}")
                L.append(trr)
            for b in bs:
                for tt2 in range(2):
                    def sto(b=b, tt2=tt2):
                        k.wait_lg(rt[b, tt2])
                        so = S_T + 8 + 2*tt2 + (1 if b == 4 else 0)
                        self.last_st = k(f"buffer_store_dwordx4 {v(frg(b,tt2),4)}, v{LV}, {WS4}, s{so} offen offset:{1024*(b%4)} sc1")
                    L.append(sto)
            return L
        self.sprinkle(scan([0, 1]), self.b2_take(int(self.P('e5', 4))))
        self.sprinkle(scan([2, 3]), outq([0, 1]), lead=4)
        self.sprinkle(scan([4]), outq([2, 3]), lead=4)
        self.emit(outq([4]))
        self.stamp(6); self.fine2()
        self.resid_compute(L_AB)
        self.fine2()
        self.p2_addr(0)
        k(f"s_add_u32 s{S_T}, s{S_FLAG}, {WS_FA}")
        k.wait_vm(self.last_st)
        self.set_flag(S_T, 13)
        self.stamp(7)
        self.phase2(0)

    def resid_loads(self):
        k = self.k
        self.srd(SRD_T1, 8, 1280)
        self.srd(SRD_T2, 13, 1280)
        k(f"""s_lshl_b32 s{S_T+12}, s{S_I}, 7
        s_lshl_b32 s{S_T+13}, s{S_W}, 4
        s_add_u32 s{S_T+12}, s{S_T+12}, s{S_T+13}
        s_mul_i32 s{S_T+12}, s{S_T+12}, 1280
        s_mul_i32 s{S_T+14}, s{S_J}, 160
        s_add_u32 s{S_T+12}, s{S_T+12}, s{S_T+14}
        s_mul_i32 s{S_T+13}, s{S_W}, 5120
        s_add_u32 s{S_T+13}, s{S_T+13}, {L_R}""")
        L = []
        for it in range(5):
            def f(it=it):
                k(f"""v_add_u32 v1, {64*it}, v0
                v_mul_u32_u24 v2, 6554, v1
                v_lshrrev_b32 v2, 16, v2             ; row (0..31)
                v_mul_u32_u24 v7, 10, v2
                v_sub_u32 v1, v1, v7
                v_lshrrev_b32 v7, 4, v2
                v_mul_u32_u24 v7, 48, v7
                v_add_u32 v2, v2, v7
                v_mul_u32_u24 v2, 1280, v2
                v_lshl_add_u32 v1, v1, 4, v2
                s_add_u32 m0, s{S_T+13}, {1024*it}
                buffer_load_dwordx4 v1, {s(SRD_X,4)}, s{S_T+12} offen lds""")
            L.append(f)
        def g():
            k(f"""v_lshlrev_b32 v1, 2, v0
            s_add_u32 m0, s{S_T+13}, 20480
            buffer_load_dword v1, {s(SRD_T1,4)}, s{S_T+14} offen lds
            s_add_u32 m0, s{S_T+13}, {20480+256}""")
            self.rl_tok = k(f"buffer_load_dword v1, {s(SRD_T2,4)}, s{S_T+14} offen lds")
        return L + [g]
    def resid_compute(self, L_AB):
        k = self.k
        ST, XB, DB, BB, T = 16, 36, 56, 66, 166
        k(f"s_lshl_b32 s{S_T+4}, s{S_W}, 6\ns_add_u32 s{S_T+4}, s{S_T+4}, {L_AB}")
        k.wait_vm(self.rl_tok)
        for it in range(5):
            k(f"v_add_u32 v1, {64*it}, v0")
            self.emit(self.div20(2, 7, 1))
            k(f"""v_lshl_add_u32 v1, v2, 2, s{S_T+4}
            v_lshl_add_u32 v7, v7, 3, s{S_T+13}
            v_mad_u32_u24 v2, v2, s{S_T+15}, v7""".replace(f"v_mad_u32_u24 v2, v2, s{S_T+15}, v7", f"v_mul_u32_u24 v2, 160, v2\nv_add_u32 v2, v2, v7"))
            k(f"""ds_read2st64_b32 {v(ST+2*it,2)}, v1 offset0:0 offset1:2
            ds_read2st64_b32 {v(ST+10+2*it,2)}, v1 offset0:1 offset1:3
            ds_read_b64 {v(XB+2*it,2)}, v2
            ds_read_b64 {v(XB+10+2*it,2)}, v2 offset:2560
            ds_read_b64 {v(DB+2*it,2)}, v7 offset:20480
            ds_read_b64 {v(BB+2*it,2)}, v7 offset:{20480+256}""")
        k(f"v_add_u32 v10, s{S_T+13}, v{self.LV}")
        k("s_waitcnt lgkmcnt(0)")
        for it in range(5):
            dd, bb = [76, 100][it % 2], [76, 100][it % 2] + 4
            for (src, dst) in ((DB+2*it, dd), (BB+2*it, bb)):
                for h in range(2):
                    k(f"v_lshlrev_b32 v{dst+2*h}, 16, v{src+h}\nv_and_b32 v{dst+2*h+1}, 0xffff0000, v{src+h}")
            for hf in range(2):
                xx = dd + 8 + 8*hf
                for h in range(2):
                    k(f"v_lshlrev_b32 v{xx+2*h}, 16, v{XB+10*hf+2*it+h}\nv_and_b32 v{xx+2*h+1}, 0xffff0000, v{XB+10*hf+2*it+h}")
            for hf in range(2):
                xx = dd + 8 + 8*hf; rr = xx + 4; st = ST + 10*hf + 2*it
                for h in range(2):
                    k(f"""v_pk_add_f32 {v(rr+2*h,2)}, {v(bb+2*h,2)}, {v(xx+2*h,2)}
                    v_pk_fma_f32 {v(xx+2*h,2)}, {v(xx+2*h,2)}, {v(st,2)}, {v(st,2)} op_sel:[0,0,1] op_sel_hi:[1,0,1]""")
            for hf in range(2):
                xx = dd + 8 + 8*hf; rr = xx + 4
                for h in range(2):
                    k(f"v_pk_fma_f32 {v(rr+2*h,2)}, {v(xx+2*h,2)}, {v(dd+2*h,2)}, {v(rr+2*h,2)}")
                k(f"ds_write_b128 v10, {v(rr,4)} offset:{hf*20480+it*1024}")

    def mlp(self):
        k = self.k
        ACC = 16; WSA = 112; ONE = 124; FR = [128, 148]
        B1R = 126; GS = 168
        XE, XO, W0 = 3, 2, 4
        RXB, AEB, AOB = 176, 180, 184
        PV = self.PV; LV = self.LV
        STGS = 40960
        S_MH, S_NH = 42, 43
        L_WS = 110592
        k.label("L_mlp")
        k.c("================ MLP side, phase 1")
        self.stamp(0); self.nf3 = 0; self.fine3()
        self.marks = {}
        S_RSROW, SW0, S_GT, D1, S_RSDST, S_FB = S_T+5, S_T+6, S_T+9, S_T+10, S_T+8, S_T+14
        k(f"""v_xor_b32 v{XO}, 64, v{XE}
        s_add_u32 s{S_XO+1}, s{S_XO}, {8*1280 - 1024}
        s_add_u32 s{S_XO+2}, s{S_XO}, {16*1280 - 2048}
        s_add_u32 s{S_XO+3}, s{S_XO}, {24*1280 - 3072}""")
        self.code_prefetch("L_mlp_code", 254)
        stage_tok = {}; stage_cnt = {}
        self.dma_reset(); self.has_w = True
        self.rot_setup([XE, XO], True)
        WSO = [S_WO, S_WO, S_WO, S_WO+1, S_WO+4, S_WO+4]
        def dma_list(t):
            base = (t % 4)*STGS
            L = []
            def mk(ld):
                def f():
                    stage_tok[t] = k(ld); stage_cnt[t] = stage_cnt.get(t, 0) + 1
                return f
            for e in range(4):
                vr = XE if e % 2 == 0 else XO
                L.append(self.dma((S_MX, base + 24576), mk(f"buffer_load_dwordx4 v{vr}, {s(SRD_X,4)}, s{S_XO+e} offen offset:{e*1024} lds"), vr, t, 128))
            for n in range(6):
                L.append(self.dma((S_MW, base + (n//4)*4096), mk(f"buffer_load_dwordx4 v{W0+n%3}, {s(SRD_W,4)}, s{WSO[n]} offen offset:{(n%4)*1024} lds"), W0+n%3, t, 64*3072))
            return L
        d0 = dma_list(0)
        for p in d0[:4]: self.emit(p)
        self.srd(SRD_W, 10, 1966080)
        k(f"""s_mul_i32 s{S_MW}, s{S_W}, 6144
        s_mul_i32 s{S_WO}, s{S_W}, {16*3072}
        s_mul_i32 s{S_T}, s{S_J}, 384
        s_add_u32 s{S_WO}, s{S_WO}, s{S_T}
        s_add_u32 s{S_WO+1}, s{S_WO}, {24576 - 3072}
        s_add_u32 s{S_WO+4}, s{S_WO}, {24576 + 1024}""")
        for n in range(3):
            k(f"""v_add_u32 v10, {64*n}, v0
            v_mul_u32_u24 v12, 2731, v10
            v_lshrrev_b32 v12, 16, v12
            v_mul_u32_u24 v13, 24, v12
            v_sub_u32 v13, v10, v13
            v_bfe_u32 v40, v12, 1, 1
            v_lshlrev_b32 v40, 2, v40
            v_xor_b32 v13, v13, v40
            v_mul_u32_u24 v12, 3072, v12
            v_lshl_add_u32 v{W0+n}, v13, 4, v12""")
            if n: k(f"v_subrev_u32 v{W0+n}, {1024*n}, v{W0+n}")
            k(f"v_add_u32 v{W0+n}, s{S_ST2}, v{W0+n}")
            self.emit(d0[4+n])
        for p in d0[7:]: self.emit(p)
        d1 = dma_list(1)
        for p in d1[:4]: self.emit(p)
        self.fine3()
        k(f"""s_lshr_b32 s{S_MH}, s{S_W}, 1
        s_and_b32 s{S_NH}, s{S_W}, 1
        s_lshl_b32 s{S_T+2}, s{S_W}, 2
        s_lshl_b32 s{S_T}, s{S_I}, 7
        s_lshl_b32 s{S_T+1}, s{S_J}, 4
        s_add_u32 s{S_T}, s{S_T}, s{S_T+1}
        s_add_u32 s{S_RSROW}, s{S_T}, s{S_T+2}
        s_lshl_b32 s{S_RSDST}, s{S_RSROW}, 4
        s_add_u32 s{S_RSDST}, s{S_RSDST}, {WS_STG}
        s_mov_b32 s{S_T+1}, 3""")
        R0, A0, T0 = 200, 220, 224
        self.rowstat_setup(S_RSROW, S_T+1, 8, 9)
        rs = self.rowstat_loads(SRD_X, S_RSROW, 8, R0)
        self.srd(SRD_T2, 12, 1966080)
        self.unit_decode(480, S_FB)
        SCR = 3*STGS + 24576
        k(f"""s_mul_i32 s{S_T+1}, s{S_T+2}, {32*1280}
        s_lshl_b32 s{S_T+3}, s{S_T}, 7
        s_add_u32 s{SW0}, s{S_T+1}, s{S_T+3}
        s_mul_i32 s{S_T+3}, s{S_T}, {4*48}
        s_add_u32 s{S_T+3}, s{S_T+3}, s{S_T+2}
        s_lshl_b32 s{S_T+3}, s{S_T+3}, 10
        s_add_u32 s{D1}, s{S_T+3}, {WS_B2S[1]}
        s_lshl_b32 s{S_FB}, s{S_FB}, 6
        s_add_u32 s{S_FB}, s{S_FB}, {WS_FB + 512*FLS}
        s_lshl_b32 s{S_GT}, s{S_I}, 11
        s_lshl_b32 s{S_T}, s{S_MH}, 10
        s_add_u32 s{S_GT}, s{S_GT}, s{S_T}
        s_add_u32 s{S_GT}, s{S_GT}, {WS_STG}
        v_and_b32 v11, 31, v0
        v_lshrrev_b32 v12, 5, v0
        v_bfe_u32 v13, v0, 1, 3
        v_xor_b32 v13, v13, v12
        v_lshlrev_b32 v13, 4, v13
        v_lshl_add_u32 v13, v11, 7, v13
        s_lshl_b32 s{S_T}, s{S_MH}, 13
        s_add_u32 s{S_T}, s{S_T}, 24576
        v_add_u32 v10, s{S_T}, v13
        v_bfe_u32 v13, v0, 2, 2
        v_lshl_add_u32 v40, v12, 3, v13
        v_mul_u32_u24 v40, 384, v40
        v_bfe_u32 v15, v0, 4, 1
        v_lshl_add_u32 v40, v15, 5, v40
        v_and_b32 v41, 3, v0
        v_lshl_add_u32 v40, v41, 3, v40
        v_lshlrev_b32 v7, 4, v12
        v_lshl_add_u32 v7, v15, 2, v7
        v_add_u32 v7, v7, v13
        v_lshlrev_b32 v7, 7, v7
        v_lshl_add_u32 v7, v41, 3, v7
        v_add_u32 v7, s{S_MX}, v7
        v_add_u32 v7, {SCR}, v7
        s_mul_i32 s{S_T}, s{S_NH}, 192
        v_add_u32 v40, s{S_T}, v40
        v_bfe_u32 v13, v0, 3, 1
        v_lshlrev_b32 v13, 6, v13
        s_cmp_eq_u32 s{S_NH}, 0
        s_cselect_b32 s{S_T}, 1, -1
        v_mul_lo_u32 v13, v13, s{S_T}
        v_add_u32 v15, v40, v13
        v_sub_u32 v40, v40, v13
        v_mov_b32 v{ONE}, 0x3f803f80
        v_mov_b32 v{ONE+1}, 0x3f803f80""")
        for ls in range(4):
            k(f"""s_lshl_b32 s{S_T}, s{S_MH}, 1
            s_add_u32 s{S_T}, s{S_T}, {ls}
            s_and_b32 s{S_T}, s{S_T}, 3
            s_lshl_b32 s{S_T+1}, s{S_T}, 5
            s_mul_i32 s{S_T}, s{S_T}, 6144
            v_xor_b32 v{RXB+ls}, s{S_T+1}, v10
            v_add_u32 v{AEB+ls}, s{S_T}, v15
            v_add_u32 v{AOB+ls}, s{S_T}, v40""")
        for q in range(12): k(f"v_add_u32 v{RXB+12+q}, {2*STGS}, v{RXB+q}")
        k(f"""v_lshlrev_b32 v10, 4, v11
        v_min_u32 v11, 47, v0
        s_mul_i32 s{S_T}, s{S_J}, 192
        s_mul_i32 s{S_T+1}, s{S_W}, 48
        s_add_u32 s{S_T}, s{S_T}, s{S_T+1}
        v_add_lshl_u32 v12, v11, s{S_T}, 1
        v_add_lshl_u32 v11, v11, s{S_T+1}, 2
        v_add_u32 v11, {L_WS}, v11""")
        b2v = self.b2_setup(1)
        tk = {}
        swq = []
        for e in range(4):
            def f(e=e):
                k(f"s_add_u32 s{S_T+2}, s{SW0}, {e*8*1280}")
                tk['d1'] = k(f"buffer_load_dwordx4 v{PV}, {s(SRD_T2,4)}, s{S_T+2} offen lds")
            swq.append(self.dma((S_MX, SCR + e*1024), f))
        self.make_tag()
        self.emit(rs)
        rtok = {}
        def mkreads(n):
            st = FR[n % 2]; ls = n % 4; sl = (n//4) % 4; o = (sl % 2)*STGS; h_ = 12*(sl//2)
            ra, ae, ao = RXB+ls+h_, AEB+ls+h_, AOB+ls+h_
            R = [f"ds_read_b128 {v(st,4)}, v{ra} offset:{o}",
                 f"ds_read_b64_tr_b16 {v(st+8,2)}, v{ae} offset:{o}", f"ds_read_b64_tr_b16 {v(st+10,2)}, v{ae} offset:{o+1536}",
                 f"ds_read_b128 {v(st+4,4)}, v{ra} offset:{o+4096}",
                 f"ds_read_b64_tr_b16 {v(st+12,2)}, v{ao} offset:{o+64}", f"ds_read_b64_tr_b16 {v(st+14,2)}, v{ao} offset:{o+1600}",
                 f"ds_read_b64_tr_b16 {v(st+16,2)}, v{ae} offset:{o+128}", f"ds_read_b64_tr_b16 {v(st+18,2)}, v{ae} offset:{o+1664}"]
            L = []
            for i, r in enumerate(R):
                def f(i=i, r=r): rtok[n, i] = k(r)
                L.append(f)
            return L
        self.fine3()
        k.wait_vm(stage_tok[0])
        self.fine3()
        k("s_barrier")
        self.fine3()
        self.stamp(1)
        k.label("L_mlp_code")
        self.emit(mkreads(0))
        NSW, NFLAG, NPOLL, NCHK = [int(self.P(a_, b_)) for a_, b_ in (('mnsw', 4), ('mnfl', 12), ('mnpo', 21), ('mnck', 26))]
        mq = [[0, 1, p_, l_] for p_, l_ in d1[4:] + swq]
        def q_stage(t):
            for j_, (p_, l_) in enumerate(dma_list(t)): mq.append([max(4*(t-3), NSW+2 if (t == 3 and j_ < 4) else 0), 1, p_, l_])
        def sw_store(cc):
            def f():
                k.wait_lg(tk['r1'])
                k(f"s_add_u32 s{S_T}, s{D1}, {cc*48*1024}")
                tk['s1'] = k(f"buffer_store_dwordx4 {a(240+4*cc,4)}, v{LV}, {WS4}, s{S_T} offen sc1")
            return f
        def b1l(): tk['b1'] = k(f"global_load_ushort v{B1R}, v12, {ptr(11)}")
        def gs1(): k(f"buffer_load_dwordx4 {v(GS,4)}, v10, {WS4}, s{S_GT} offen sc1")
        def gs2(): tk['gs'] = k(f"buffer_load_dwordx4 {v(GS+4,4)}, v10, {WS4}, s{S_GT} offen offset:512 sc1")
        q_stage(2)
        for cc in range(4): mq.append([NSW+1, 2, None, sw_store(cc)])
        q_stage(3); q_stage(4); mq.append([0, 0.5, None, b1l])
        for t in range(5, 10): q_stage(t)
        late = {NPOLL: [[NPOLL, 0.5, None, self.b2_poll]], 30: [[30, 1, None, gs1], [30, 1, None, gs2]]}
        def swr():
            k.wait_vm(tk['d1'])
            for cc in range(4):
                for e in range(2):
                    tk['r1'] = k(f"ds_read_b64_tr_b16 {a(240+4*cc+2*e,2)}, v7 offset:{e*1024+cc*32}")
        def flg():
            k.wait_vm(tk['s1']); self.set_flag(S_FB, 13)
        hooks = {NSW: swr, NFLAG: flg}
        fq = [('at', 1)] + self.rowstat_fill(R0, A0, T0, 9, S_RSDST) + [('mark', 'rs')] + b2v + [('mark', 'b2s')]
        fq += [('at', 28), lambda: k.wait_vm(tk['b1']), f"v_lshlrev_b32 v{B1R}, 16, v{B1R}", f"ds_write_b32 v11, v{B1R} offset:1536"]
        credit = 0.0; b2on = False
        for n in range(40):
            st = FR[n % 2]
            k.c(f"---- mlp k-step {n}")
            if n % 2 == 0: self.fine(16 + n//2)
            if n == NCHK:
                self.b2_check(); b2on = True
            if n == NSW + 2: k.wait_lg(tk['r1'])
            mq[0:0] = late.get(n, [])
            mem = []
            mmax = int(self.P('mmax', 5)) if n < self.P('mfast', 4) else int(self.P('mcap', 3)) + (1 if n % 4 < 2 and self.P('mcap', 3) % 1 else 0)
            while len(mem) < mmax:
                if mq and mq[0][0] <= n: it_ = mq.pop(0)
                elif b2on and self.b2q and len(mem) < self.P('mb2', 4) + (0.5 if n % 4 < 2 else -0.5): it_ = [n, 1, None, self.b2q.pop(0)]
                else: break
                mem.append(it_)
            rd = mkreads(n+1) if n + 1 < 40 else []
            small = []
            if n % 4 < 2:
                for hh in range(2):
                    for T in range(3):
                        c_ = "0" if (n == 0 and hh == 0) else v(WSA+4*T, 4)
                        small.append(f"v_mfma_f32_4x4x4_16b_bf16 {v(WSA+4*T,4)}, {v(ONE,2)}, {v(st+8+4*T+2*hh,2)}, {c_}")
            bar = n % 4 == 3 and n + 1 < 40
            cnt = [0, 3, 3, 2, 0, 0] if bar else [3, 3, 2, 0, 0, 0]
            pref = [4, 0, 5, 3, 2, 1] if bar else [4, 5, 2, 3, 0, 1]
            nper_ = [0]*6
            for j_ in range(len(mem)): nper_[pref[j_ % 6]] += 1
            dep = {0: 2, 1: 3, 2: 5, 4: 7}
            for i in range(6):
                T3, mt = i//2, i % 2
                if nper_[i] and mem[0][2]: mem[0][2]()
                if i in dep: k.wait_lg(rtok[n, dep[i]])
                d = ACC + 16*i
                k(f"v_mfma_f32_32x32x16_bf16 {v(d,16)}, {v(st+8+4*T3,4)}, {v(st+4*mt,4)}, {'0' if n == 0 else v(d,16)}")
                n0 = len(k.ins)
                for j_ in range(nper_[i]):
                    it_ = mem.pop(0)
                    if j_ and it_[2]: it_[2]()
                    it_[3]()
                if bar and i == 1:
                    assert stage_cnt[(n+1)//4] == 10
                    k.wait_both(stage_tok[(n+1)//4], k.lg_issued)
                    k("s_barrier")
                for _ in range(cnt[i]):
                    if rd: rd.pop(0)()
                self.emit(self.take_fill(fq, n, int(self.P('mden', 5)) - (len(k.ins) - n0)))
            if n in hooks: hooks[n]()
            self.emit(small)
            assert not rd and not mem
        assert not mq and not fq and self.marks['b2s'] < NPOLL
        self.info += f" mlp b2 left {len(self.b2q)} marks {self.marks}"
        k.c('loop end')
        self.stamp(2)
        if self.early_stop("loop"): return
        k.c("================ MLP epilogue")
        self.nf2 = 0
        TM = 128
        AT, BT = 176, 180
        for T in range(3): k(f"v_permlane32_swap_b32 v{WSA+4*T}, v{WSA+4*T+1}")
        k(f"""v_and_b32 v11, 31, v0
        s_mul_i32 s{S_T}, s{S_MH}, 768
        s_mul_i32 s{S_T+1}, s{S_NH}, 384
        s_add_u32 s{S_T}, s{S_T}, s{S_T+1}
        v_lshl_add_u32 v12, v11, 2, s{S_T}
        v_add_u32 v12, {L_WS}, v12""")
        for T in range(3):
            k(f"v_add_f32 v{WSA+4*T}, v{WSA+4*T}, v{WSA+4*T+1}\nds_write_b32 v12, v{WSA+4*T} offset:{128*T}")
        k.wait_vm(tk['gs'])
        def check():
            k(f"""v_xor_b32 v13, s{S_TAG}, v{GS+1}
            v_bitop3_b32 v13, s{S_TAG2}, v{GS+3}, v13 bitop3:0xbe
            v_bitop3_b32 v13, s{S_TAG}, v{GS+5}, v13 bitop3:0xbe
            v_bitop3_b32 v13, s{S_TAG2}, v{GS+7}, v13 bitop3:0xbe
            v_cmp_ne_u32 vcc, 0, v13""")
        def rl():
            k(f"""buffer_load_dwordx4 {v(GS,4)}, v10, {WS4}, s{S_GT} offen sc1
            buffer_load_dwordx4 {v(GS+4,4)}, v10, {WS4}, s{S_GT} offen offset:512 sc1
            s_waitcnt vmcnt(0)""")
        self.verify(check, rl, "ps")
        c1 = -2*LOG2E*math.sqrt(2/math.pi)
        k(f"s_mov_b32 s{S_T}, {fbits(1.0/640)}")
        seqs = []
        for mt in range(2):
            g_ = GS + 4*mt; t_ = TM + mt
            seqs.append([f"v_mul_f32 v{g_}, s{S_T}, v{g_}", f"v_mul_f32 v{t_}, v{g_}, v{g_}", f"v_fma_f32 v{g_+2}, v{g_+2}, s{S_T}, -v{t_}",
                         f"v_max_f32 v{g_+2}, 0, v{g_+2}", f"v_add_f32 v{t_}, {fbits(EPS)}, v{g_+2}", f"v_rsq_f32 v{g_+1}, v{t_}",
                         f"v_mul_f32 v{t_}, v{g_+1}, v{g_+1}", f"v_mul_f32 v{t_}, v{t_}, v{g_+2}", f"v_add_f32 v{t_}, {fbits(EPS)}, v{t_}",
                         f"v_rsq_f32 v{t_}, v{t_}", f"v_mul_f32 v{AT+2*mt}, v{t_}, v{g_+1}", f"v_mul_f32_e64 v{BT+2*mt}, v{g_}, -v{AT+2*mt}"])
        for x, y in zip(*seqs): k(x); k(y)
        C1 = 184; PATV = 15
        k(f"""v_lshrrev_b32 v14, 5, v0
        s_mul_i32 s{S_T}, s{S_NH}, 384
        v_lshl_add_u32 v12, v14, 4, s{S_T}
        v_add_u32 v12, {L_WS}, v12
        v_lshrrev_b32 v13, 4, v11
        v_mul_u32_u24 v13, {48*1024}, v13
        v_and_b32 v15, 15, v0
        v_lshl_add_u32 v13, v15, 4, v13
        v_lshl_add_u32 v{PV}, v14, 8, v13
        s_lshl_b32 s{S_T}, s{S_I}, 3
        s_lshl_b32 s{S_T+1}, s{S_MH}, 2
        s_add_u32 s{S_T}, s{S_T}, s{S_T+1}
        s_mul_i32 s{S_T}, s{S_T}, 48
        s_mul_i32 s{S_T+1}, s{S_J}, 6
        s_add_u32 s{S_T}, s{S_T}, s{S_T+1}
        s_mul_i32 s{S_T+1}, s{S_NH}, 3
        s_add_u32 s{S_T}, s{S_T}, s{S_T+1}
        s_lshl_b32 s{S_T}, s{S_T}, 10
        s_add_u32 s{S_T+6}, s{S_T}, {WS_A2[1]}
        s_add_u32 s{S_T+7}, s{S_T+6}, {96*1024}
        s_mov_b32 s{S_T+4}, {fbits(c1*0.044715)}
        s_mov_b32 s{S_T+5}, s{S_T+4}
        v_mov_b32 v{C1}, {fbits(c1)}
        v_mov_b32 v{C1+1}, {fbits(c1)}
        v_mov_b32 v{PATV}, s{S_PAT}
        s_waitcnt lgkmcnt(0)
        s_barrier""")
        self.stamp(3)
        WB = [112, 186]
        Q = 160; PKO = [168, 172, 234, 238]; TT = 242
        def wreads(T3):
            b = WB[T3 % 2]
            return [f"ds_read_b128 {v(b+16*a_+4*q4,4)}, v12 offset:{768*a_+(32*T3+8*q4)*4}" for q4 in range(4) for a_ in range(3)]
        self.emit(wreads(0))
        self.p2_addr(1)
        held = []
        for Tl in range(6):
            T3, mt = Tl//2, Tl % 2
            self.fine2()
            b = WB[T3 % 2]
            fill = []; body = []
            if mt == 0:
                k("s_waitcnt lgkmcnt(0)")
                body += [f"v_pk_add_f32 {v(b+2*p,2)}, {v(b+2*p,2)}, {v(b+16+2*p,2)}" for p in range(8)]
                if T3 < 2: fill = [lambda x=x: k(x) for x in wreads(T3+1)]
            for c in range(2):
                po = PKO[(2*Tl + c) % 4]; prs = range(4*c, 4*c+4)
                z = lambda p: ACC + 16*Tl + 2*p
                q = lambda p: Q + 2*(p % 4)
                body += [f"v_pk_fma_f32 {v(TT+2*(p%4),2)}, {v(BT+2*mt,2)}, {v(b+2*p,2)}, {v(b+32+2*p,2)} op_sel_hi:[0,1,1]" for p in prs]
                body += [f"v_pk_fma_f32 {v(z(p),2)}, {v(AT+2*mt,2)}, {v(z(p),2)}, {v(TT+2*(p%4),2)} op_sel_hi:[0,1,1]" for p in prs]
                body += [f"v_pk_mul_f32 {v(q(p),2)}, {v(z(p),2)}, {v(z(p),2)}" for p in prs]
                body += [f"v_pk_fma_f32 {v(q(p),2)}, {v(q(p),2)}, {s(S_T+4,2)}, {v(C1,2)}" for p in prs]
                body += [f"v_pk_mul_f32 {v(q(p),2)}, {v(q(p),2)}, {v(z(p),2)}" for p in prs]
                for p in prs: body += [f"v_exp_f32 v{q(p)}, v{q(p)}", f"v_exp_f32 v{q(p)+1}, v{q(p)+1}"]
                body += [f"v_pk_add_f32 {v(q(p),2)}, {v(q(p),2)}, 1.0 op_sel_hi:[1,0]" for p in prs]
                for p in prs: body += [f"v_rcp_f32 v{q(p)}, v{q(p)}", f"v_rcp_f32 v{q(p)+1}, v{q(p)+1}"]
                body += [f"v_pk_mul_f32 {v(q(p),2)}, {v(q(p),2)}, {v(z(p),2)}" for p in prs]
                body += [f"v_cvt_pk_bf16_f32 v{po+p%4}, v{q(p)}, v{q(p)+1}" for p in prs]
                body += [f"v_and_or_b32 v{po+p%4}, v{po+p%4}, s{S_NM}, v{PATV}" for p in prs]
                def st_(T3=T3, mt=mt, c=c, po=po):
                    self.last_st = k(f"buffer_store_dwordx4 {v(po,4)}, v{PV}, {WS4}, s{S_T+6+mt} offen offset:{T3*1024+c*512} sc1")
                if Tl < 4: body.append(st_)
                else: held.append(st_)
            if Tl >= 4: fill = [self.p2_aload]*8
            if Tl < 4: fill = fill + self.b2_take(min(int(self.P('g1', 6)), -(-len(self.b2q)//(4 - Tl))))
            self.sprinkle(body, fill, lead=8)
        self.fine2()
        self.emit(held)
        self.fine2()
        self.stamp(6)
        self.phase2(1)

    RING, NR, ACS, ACO = 16, 19, 92, 172
    def p2_addr(self, side):
        k = self.k
        S = [40, 48][side]; KS = [10, 12][side]
        self.side = side; self.KS = KS
        hfS = side; hfO = 1 - side
        k(f"""s_mul_i32 s45, s{S_I}, {8*S}
        s_mul_i32 s46, s{S_W}, {KS}
        s_add_u32 s45, s45, s46
        s_lshl_b32 s45, s45, 10
        s_add_u32 s45, s45, {WS_A2[side]}""")
        for t4 in range(4):
            k(f"s_add_u32 s{36+t4}, s45, {(4*hfS+t4)*S*1024}")
            k(f"s_add_u32 s{40+t4}, s45, {(4*hfO+t4)*S*1024}")
        self.seq = [(0, ss, t4) for ss in self.order for t4 in range(4)] + [(1, ss, t4) for t4 in range(4) for ss in range(KS)]
        self.atok = {}; self.areg = {}; self.nxt = 0
        self.free_ring = [self.RING + 4*i for i in range(self.NR)]
        self.free_big = [self.ACO + 4*i for i in range(20)] if side == 0 else []
    def a_instr(self, idx):
        p, ss, t4 = self.seq[idx]
        so = 36 + 4*p + t4; pre = ""
        if ss >= 4:
            pre = f"s_add_u32 s45, s{so}, {(ss//4)*4096}\n"; so = 45
        return pre + f"buffer_load_dwordx4 {v(self.areg[idx],4)}, v{self.LV}, {WS4}, s{so} offen offset:{(ss%4)*1024} sc1"
    def p2_can(self):
        if self.nxt >= len(self.seq): return False
        if self.seq[self.nxt][0] == 0 and self.free_big: return True
        return bool(self.free_ring)
    def p2_aload(self):
        idx = self.nxt
        if self.seq[idx][0] == 0 and self.free_big: r = self.free_big.pop(0)
        else: r = self.free_ring.pop(0)
        self.areg[idx] = r
        self.atok[idx] = self.k(self.a_instr(idx))
        self.nxt += 1

    def phase2(self, side):
        k = self.k
        if self.early_stop("p1"): return
        KS = self.KS; nper = 4*KS
        ACS, ACO, LV = self.ACS, self.ACO, self.LV
        hfS = side; hfO = 1 - side
        RW, RR, OO, VA, FV, T1 = 5, 6, 11, 1, 2, 253
        k.c(f"================ phase 2 (side {side})")
        if side == 1: self.free_big = [self.ACO + 4*i for i in range(20)]
        while self.nxt < (20 if side == 0 else 16): self.p2_aload()
        self.stamp(8)
        def vcheck(j, lst):
            regs = [self.areg[4*j+t]+e for t in range(4) for e in range(4)]
            L = [f"v_xor_b32 v{VA}, s{S_PAT}, v{regs[0]}"]
            L += [f"v_bitop3_b32 v{VA}, s{S_PAT}, v{r}, v{VA} bitop3:0xbe" for r in regs[1:]]
            L += [f"v_and_b32 v{VA}, 0x10001, v{VA}", f"v_cmp_ne_u32 vcc, 0, v{VA}"]
            return L
        def vfinish(j):
            hi = min(self.nxt, nper)
            ins = [self.a_instr(i) for i in range(4*j, hi)]
            chk = vcheck(j, None)
            def reload():
                self.emit(ins); k("s_waitcnt vmcnt(0)")
            self.verify(lambda: self.emit(chk), reload, "va", checked=True)
        a1 = [f"v_and_b32 v{FV}, 7, v0\nv_lshlrev_b32 v{FV}, 6, v{FV}", f"s_lshl_b32 s44, s{S_I}, 5\ns_lshl_b32 s46, s{S_W}, 3",
              f"s_add_u32 s44, s44, s46\ns_lshl_b32 s44, s44, 6", f"s_add_u32 s44, s44, {WS_FA + side*512*FLS}",
              f"v_and_b32 v{T1}, 15, v0", f"v_mul_u32_u24 v{RW}, {RED_RS}, v{T1}", f"v_lshrrev_b32 v{T1}, 4, v0",
              f"v_lshl_add_u32 v{RW}, v{T1}, 4, v{RW}", f"s_mul_i32 s{S_T}, s{S_W}, {RED_W}\ns_add_u32 s{S_T}, s{S_T}, {LDS_RED}",
              f"v_add_u32 v{RW}, s{S_T}, v{RW}", f"s_mul_i32 s{S_T}, s{S_W}, {16*RED_RS}\ns_add_u32 s{S_T}, s{S_T}, {LDS_RED}",
              f"s_movk_i32 s{S_T+1}, {RED_RS}\ns_movk_i32 s{S_T+2}, 2560"]
        for it in range(5):
            a1 += [f"v_add_u32 v{T1}, {64*it}, v0"] + self.div20(OO+it, RR+it, T1) + [f"v_lshlrev_b32 v{T1}, 4, v{RR+it}",
                   f"v_mad_u32_u24 v{RR+it}, v{OO+it}, s{S_T+1}, v{T1}", f"v_add_u32 v{RR+it}, s{S_T}, v{RR+it}",
                   f"v_mad_u32_u24 v{OO+it}, v{OO+it}, s{S_T+2}, v{T1}"]
        a1 += [
               f"s_lshr_b32 s{S_T}, s{S_PW}, 2\ns_mul_i32 s{S_T}, s{S_T}, 20480", f"s_mul_i32 s{S_T+1}, s{S_W}, 5120\ns_add_u32 s{S_T}, s{S_T}, s{S_T+1}",
               f"s_add_u32 s{S_T+3}, s{S_T}, {WS_PART + (1-side)*128*20480}\ns_add_u32 s{S_T+4}, s{S_T+3}, 4096",
               f"s_add_u32 s{S_T+5}, s{S_T}, {WS_PART + side*128*20480}\ns_add_u32 s{S_T+6}, s{S_T+5}, 4096",
               f"s_add_u32 s{S_T+7}, s{S_T+1}, {L_R}\nv_mov_b32 v3, s{S_PAT32}",
               f"s_lshl_b32 s{S_T}, s{S_I}, 7\ns_lshl_b32 s{S_T+1}, s{S_W}, 4", f"s_add_u32 s{S_T}, s{S_T}, s{S_T+1}\ns_add_u32 s{S_T}, s{S_T}, {64*hfO}",
               f"s_mul_i32 s{S_T}, s{S_T}, 2560\ns_mul_i32 s{S_T+1}, s{S_J}, 320", f"s_add_u32 s{S_OUT}, s{S_T}, s{S_T+1}\ns_mov_b32 s{S_NM}, -4",
               f"s_mov_b32 s{SRD_OUT}, s{P0+28}\ns_mov_b32 s{SRD_OUT+1}, s{P0+29}", f"s_mov_b32 s{SRD_OUT+2}, 5242880\ns_mov_b32 s{SRD_OUT+3}, 0x20000"]
        if side == 0:
            self.emit(a1); a1 = []
        tk = {}
        gate = [lambda j: nper, lambda j: 32 if j < 3 else nper][side]
        k.wait_vm(self.atok[3])
        self.emit(vcheck(0, None)); vfinish(0)
        o_ok = False
        for j in range(KS):
            self.fine(36 + j)
            ss = self.order[j]
            while (ss, 4) not in self.b2tok: self.b2q.pop(0)()
            k.wait_vm(self.b2tok[ss, 4])
            vq = None
            misc = []
            if side == 1 and j == int(self.P('jfl', 3)):
                def f():
                    k.wait_vm(self.last_st)
                    k(f"s_add_u32 s{S_T+10}, s{S_FLAG}, {WS_FA + 512*FLS}")
                    self.set_flag(S_T+10, 4)
                misc.append(f)
            if j == [3, int(self.P('jpo', 7))][side]:
                def f(): tk['fa'] = k(f"buffer_load_dword v4, v{FV}, {WS4}, s44 offen sc1")
                misc.append(f)
            if j == [5, int(self.P('jck', 9))][side]:
                k.wait_vm(tk['fa'])
                def rl(): k(f"buffer_load_dword v4, v{FV}, {WS4}, s44 offen sc1\ns_waitcnt vmcnt(0)")
                self.verify(lambda: k(f"v_cmp_ne_u32 vcc, s{S_TAG}, v4"), rl, "fa")
                o_ok = True
            for t4 in range(4):
                idx = 4*j + t4
                for cc in range(5):
                    g_ = 5*t4 + cc
                    d = ACS + (t4*5 + cc)*4
                    k(f"v_mfma_f32_16x16x32_bf16 {v(d,4)}, {a((ss*5+cc)*4,4)}, {v(self.areg[idx],4)}, {'0' if j == 0 else v(d,4)}")
                    lim = gate(j) if not o_ok else 2*nper
                    if g_ % 3 == 0 and self.p2_can() and self.nxt < lim and self.nxt < idx + 22:
                        self.p2_aload()
                    elif g_ in (1, 10) and self.b2q:
                        self.b2q.pop(0)()
                    elif g_ >= 4 and j + 1 < KS:
                        if vq is None:
                            k.wait_vm(self.atok[4*j+7]); vq = vcheck(j+1, None)
                        self.emit(vq[:2]); vq = vq[2:]
                        if not vq and (misc or a1): self.emit([(misc or a1).pop(0)])
                    elif misc or a1:
                        self.emit([(misc or a1).pop(0)])
                r = self.areg[idx]
                (self.free_ring if r < ACS else self.free_big).append(r) if (r < ACS or self.nxt < nper - 8) else None
            self.emit(misc)
            if j + 1 < KS:
                self.emit(vq); vfinish(j+1)
        self.emit(a1)
        self.stamp(9)
        nsrc = 5 if side == 0 else 4
        fill = []
        for t4 in range(4):
            for cc in range(5):
                fill += [f"ds_write_b128 v{RW}, {v(ACS+(t4*5+cc)*4,4)} offset:{t4*16*RED_RS+cc*64}", NOP] + [NOP]*side
        fill += ["s_waitcnt lgkmcnt(0)\ns_barrier"]
        if side == 0: fill += [f"v_add_u32 v4, s{S_T+7}, v{LV}"]
        RB = self.RING
        for it in range(5):
            b = ACS + it*16
            for sw in range(4):
                def f(it=it, sw=sw): tk['r', it] = k(f"ds_read_b128 {v(ACS+(it*4+sw)*4,4)}, v{RR+it} offset:{sw*RED_W}")
                fill.append(f)
        fill += ["s_waitcnt lgkmcnt(0)\ns_barrier"]
        for it in range(5):
            b = ACS + it*16
            fill += [f"v_add_f32 v{b+e}, v{b+e}, v{b+4+e}\nv_add_f32 v{b+8+e}, v{b+8+e}, v{b+12+e}" for e in range(4)]
            if side == 0:
                def f(it=it, b=b): tk['R', it] = k(f"ds_read_b128 {v(b+4,4)}, v4 offset:{hfS*20480+it*1024}")
                fill.append(f)
            fill += [f"v_add_f32 v{b+e}, v{b+e}, v{b+8+e}\nv_add_f32 v{b+e+1}, v{b+e+1}, v{b+9+e}" for e in (0, 2)]
        for it in range(5):
            b = ACS + it*16
            if side == 0:
                fill.append(lambda it=it: k.wait_lg(tk['R', it]))
                fill += [f"v_add_f32 v{b+e}, v{b+e}, v{b+4+e}\nv_add_f32 v{b+e+1}, v{b+e+1}, v{b+5+e}" for e in (0, 2)]
            fill += [f"v_and_or_b32 v{b+e}, v{b+e}, s{S_NM}, v3\nv_and_or_b32 v{b+e+1}, v{b+e+1}, s{S_NM}, v3" for e in (0, 2)]
            fill.append(f"buffer_store_dwordx4 {v(b,4)}, v{LV}, {WS4}, s{S_T+5+it//4} offen offset:{(it%4)*1024} sc1")
        nS = len(fill)
        owr = {t4: [f"ds_write_b128 v{RW}, {v(ACO+(t4*5+cc)*4,4)} offset:{t4*16*RED_RS+cc*64}" for cc in range(5)] for t4 in range(4)}
        oq = []
        def ploads():
            return [k(f"buffer_load_dwordx4 {v(ACS+it*16+12,4)}, v{LV}, {WS4}, s{S_T+3+it//4} offen offset:{(it%4)*1024} sc1") for it in range(5)]
        slot = 0
        for j in range(nper):
            idx = nper + j
            _, ss, t4 = self.seq[idx]
            if j % 4 == 0: self.fine(36 + KS + j//4)
            if ss == 1 and t4 > 0: oq += [x for w_ in owr[t4-1] for x in (w_, NOP)]
            while idx not in self.atok: self.p2_aload()
            k.wait_vm(self.atok[idx])
            for cc in range(5):
                d = ACO + (t4*5 + cc)*4
                k(f"v_mfma_f32_16x16x32_bf16 {v(d,4)}, {a((ss*5+cc)*4,4)}, {v(self.areg[idx],4)}, {'0' if ss == 0 else v(d,4)}")
                if cc == 0 and self.p2_can(): self.p2_aload()
                elif fill: self.emit([fill.pop(0)])
                elif oq: self.emit([oq.pop(0)])
            self.free_ring.append(self.areg[idx])
            if j == nper - 3: ptoks = ploads()
        assert not fill
        self.stamp(10)
        rest = [x for x in oq if x is not NOP] + owr[3]
        if side == 0:
            for it in range(5): k(f"ds_read_b128 {v(ACS+it*16+4,4)}, v4 offset:{hfO*20480+it*1024}")
        self.emit(rest)
        def pcheck():
            regs = [ACS+it*16+12+e for it in range(5) for e in range(4)]
            k(f"v_xor_b32 v{VA}, s{S_PAT32}, v{regs[0]}")
            for r in regs[1:]: k(f"v_bitop3_b32 v{VA}, s{S_PAT32}, v{r}, v{VA} bitop3:0xbe")
            k(f"v_and_b32 v{VA}, 3, v{VA}\nv_cmp_ne_u32 vcc, 0, v{VA}")
        k("s_waitcnt lgkmcnt(0)\ns_barrier")
        toks = []
        for it in range(5):
            for sw in range(4):
                toks.append(k(f"ds_read_b128 {v(ACO+(it*4+sw)*4,4)}, v{RR+it} offset:{sw*RED_W}"))
        k.wait_vm(ptoks[4])
        def rl():
            ploads(); k("s_waitcnt vmcnt(0)")
        self.verify(pcheck, rl, "pp")
        self.stamp(11)
        if side == 0:
            for it in range(5):
                for h in range(2):
                    k(f"v_pk_add_f32 {v(ACS+it*16+12+2*h,2)}, {v(ACS+it*16+12+2*h,2)}, {v(ACS+it*16+4+2*h,2)}")
        for it in range(5):
            b = ACO + it*16
            k.wait_lg(toks[4*it+3])
            for h in range(2):
                k(f"v_pk_add_f32 {v(b+2*h,2)}, {v(b+2*h,2)}, {v(b+4+2*h,2)}")
                k(f"v_pk_add_f32 {v(b+8+2*h,2)}, {v(b+8+2*h,2)}, {v(b+12+2*h,2)}")
            for h in range(2):
                k(f"v_pk_add_f32 {v(b+2*h,2)}, {v(b+2*h,2)}, {v(ACS+it*16+12+2*h,2)}")
            for h in range(2):
                k(f"v_pk_add_f32 {v(b+2*h,2)}, {v(b+2*h,2)}, {v(b+8+2*h,2)}")
            k(f"buffer_store_dwordx4 {v(b,4)}, v{OO+it}, {s(SRD_OUT,4)}, s{S_OUT} offen {'sc1' if 'outsc1' in self.opt else 'nt' if 'outnt' in self.opt else ''}")
        self.stamp(12)
        self.finish_wg(side)

    def finish_wg(self, side):
        k = self.k
        if side == 0:
            k(f"""s_cmp_lg_u32 s{S_PW}, 0
            s_cbranch_scc1 L_fin0
            v_lshlrev_b32 v13, 8, v0""")
            def loads():
                for q in range(4):
                    k(f"s_mov_b32 s{S_T+1}, {WS_FA + q*64*4*FLS}")
                    k(f"buffer_load_dword v{16+q}, v13, {WS4}, s{S_T+1} offen sc1")
                k("s_waitcnt vmcnt(0)")
            def check():
                k(f"v_xor_b32 v14, s{S_TAG}, v16")
                for q in range(1, 4): k(f"v_bitop3_b32 v14, s{S_TAG}, v{16+q}, v14 bitop3:0xbe")
                k("v_cmp_ne_u32 vcc, 0, v14")
            loads()
            self.verify(check, loads, "pe")
            k(f"s_mov_b32 s{S_T}, {WS_EPOCH}")
            self.set_flag(S_T, 14)
            k.label("L_fin0")
        if self.spin:
            lb = k.newlabel("spin")
            k(f"s_add_u32 s101, s101, {self.spin}")
            k.label(lb)
            k(f"""s_memrealtime s[98:99]
            s_waitcnt lgkmcnt(0)
            s_sub_u32 s98, s98, s100
            s_cmp_lt_u32 s98, s101
            s_cbranch_scc1 {lb}""")
        if self.ts:
            k("s_waitcnt vmcnt(0)"); self.stamp(13); self.stamp_flush()
        k("s_endpgm")

    def build(self):
        k = self.k
        self.prologue()
        st = k.state()
        self.ssm()
        self.flush_slow()
        k.set_state(st)
        self.mlp()
        self.flush_slow()
        k.label("L_end")
        k("s_endpgm")
        if 'noa2' in self.opt:
            out = []; inp2 = False
            for x in k.ins:
                if 'phase 2 (side' in x.text: inp2 = True
                if x.op == 's_endpgm': inp2 = False
                if inp2 and (x.op == 's_cbranch_vccnz' or (x.op == 'buffer_load_dwordx4' and 'sc1' in x.text and ' a[' not in x.text)): continue
                out.append(x)
            k.ins = out
        if self.opt & {'nomfma', 'noread', 'nobar', 'nofill'}:
            out = []; inloop = False
            for x in k.ins:
                if 'k-step' in x.text: inloop = True
                if 'loop end' in x.text: inloop = False
                if inloop:
                    if 'nomfma' in self.opt and x.kind == 'mfma': continue
                    if 'noread' in self.opt and x.kind == 'ds': continue
                    if 'nobar' in self.opt and x.op == 's_barrier': continue
                    if 'nofill' in self.opt and (x.op == 's_cbranch_vccnz' or (x.kind == 'vmem' and not x.lds_dma) or 'v253' in x.text): continue
                out.append(x)
            k.ins = out
        body = k.finish()
        hdr = open("header.txt").read()
        return (hdr + f"""; @launch grid=(256,1,1) block=(256,1,1) lds=163840
.amdgcn_target "amdgcn-amd-amdhsa--gfx950"
.text
.globl {NAME}
.p2align 8
.type {NAME},@function
{NAME}:
""" + body + f""".section .rodata,"a"
.p2align 6
.amdhsa_kernel {NAME}
  .amdhsa_next_free_vgpr 512
  .amdhsa_next_free_sgpr 102
  .amdhsa_accum_offset 256
  .amdhsa_group_segment_fixed_size 0
  .amdhsa_kernarg_size 136
  .amdhsa_user_sgpr_count 2
  .amdhsa_user_sgpr_kernarg_segment_ptr 1
  .amdhsa_system_sgpr_workgroup_id_x 1
.end_amdhsa_kernel
""")

if __name__ == "__main__":
    import argparse
    ap = argparse.ArgumentParser()
    ap.add_argument("-o", default="k4.s")
    ap.add_argument("--stop", default=None)
    ap.add_argument("--ts", action="store_true")
    ap.add_argument("--spin", type=int, default=0)
    ap.add_argument("--seg", type=int, default=None)
    ap.add_argument("--opt", default="")
    a_ = ap.parse_args()
    g = G(stop=a_.stop, ts=a_.ts, spin=a_.spin, seg=a_.seg, opt=a_.opt.split(","))
    txt = g.build()
    open(a_.o, "w").write(txt)
    print("written", a_.o, "nops inserted:", g.k.nops, "lines:", txt.count("\n"), g.info)
```

```python
import sys, math, struct
sys.path.insert(0, "gen")
from emit import *

NAME = "parallel_sum__ssm_conv_s5__mixer_channel_mlp__prompt_kernel"
WS_EPOCH = 0
WS_FB = 0x1000
WS_FA = 0x11000
WS_AGG = 0x31000
WS_STG = 0x59000
WS_WSG = 0x61000
WS_B2S = [0x70000, 0x200000]
WS_A2 = [0x400000, 0x900000]
WS_PART = 0xF00000
WS_TS = 0x1400000
WS_SIZE = 0x1500000
FLS = 64
S_W = 3
SRD_X, SRD_W, SRD_WS, SRD_OUT, SRD_T1, SRD_T2 = 4, 8, 12, 16, 20, 24
S_TAG, S_TAG2, S_I, S_J, S_PAT = 28, 29, 30, 31, 32
S_PW = 33
S_FLAG = 34
S_OUT = 35
S_XO = 36
S_WO = 40
S_MX, S_MW = 45, 46
S_B2 = 47
S_T = 48
P0 = 64
def ptr(n): return s(P0 + 2*n, 2)
S_PAT32 = P0 + 18
S_NM = P0 + 19
S_WRAP, S_ST1, S_ST2 = 2, 0, 1
S_TS = 98
S_ST1K, S_ST2K = P0 + 2, P0 + 3
LOG2E = 1.4426950408889634
EPS = 1e-5
def fbits(x): return "0x%08x" % struct.unpack("<I", struct.pack("<f", x))[0]
POLL_MAX = 20000
LDS_RED = 16384
RED_RS = 336
RED_W = 64 * RED_RS
L_R = 106496
WS4 = s(SRD_WS, 4)
NOP = lambda: None

class C5:
    def __init__(self, re, im=None, st=1):
        self.re = re; self.im = re + 1 if im is None else im; self.st = 2 if im is None else st
    def r(self, b): return self.re + self.st*b
    def i(self, b): return self.im + self.st*b

class G:
    def __init__(self, stop=None, ts=False, spin=0, seg=None, opt=()):
        self.k = Emit(); self.slow = []; self.stop = stop; self.ts = ts; self.spin = spin; self.seg = seg; self.opt = set(opt)

    def P(self, name, default):
        for o in self.opt:
            if o.startswith(name + "="): return float(o.split("=")[1])
        return default
    def stamp(self, idx):
        k = self.k
        if self.seg == idx:
            k("s_memrealtime s[98:99]\ns_waitcnt lgkmcnt(0)\ns_sub_u32 s101, s98, s100")
        if not self.ts: return
        k(f"{'s_memtime' if 'cyc' in self.opt else 's_memrealtime'} {s(S_TS,2)}")
        k("s_waitcnt lgkmcnt(0)")
        k(f"v_writelane_b32 v255, s{S_TS}, {idx}")
    def fine(self, idx):
        if 'fine' in self.opt: self.stamp(idx)
    def fine3(self):
        if 'fine3' in self.opt:
            self.stamp(16 + self.nf3); self.nf3 += 1
    def fine2(self):
        if 'fine2' in self.opt:
            self.stamp(16 + self.nf2); self.nf2 += 1
    def stamp_flush(self):
        if not self.ts: return
        self.k(f"""s_lshl_b32 s{S_T}, s99, 2
        v_readlane_b32 s{S_T}, v255, 63
        s_nop 3
        s_lshl_b32 s{S_T}, s{S_T}, 2
        s_add_u32 s{S_T}, s{S_T}, s{S_W}
        s_lshl_b32 s{S_T}, s{S_T}, 8
        s_add_u32 s{S_T}, s{S_T}, {WS_TS}
        v_mbcnt_lo_u32_b32 v254, -1, 0
        v_mbcnt_hi_u32_b32 v254, -1, v254
        v_lshlrev_b32 v254, 2, v254
        buffer_store_dword v255, v254, {WS4}, s{S_T} offen""")
    def early_stop(self, name):
        if self.stop != name: return False
        self.k("s_waitcnt vmcnt(0)"); self.stamp(13); self.stamp_flush(); self.k("s_endpgm")
        return True

    def srd(self, base, pn, size):
        self.k(f"""s_mov_b32 s{base}, s{P0+2*pn}
        s_and_b32 s{base+1}, s{P0+2*pn+1}, 0xffff
        s_mov_b32 s{base+2}, {size}
        s_mov_b32 s{base+3}, 0x20000""")
    def verify(self, check, reload, name, checked=False):
        k = self.k
        slow = k.newlabel(name); done = k.newlabel(name + "d")
        if not checked: check()
        k(f"s_cbranch_vccnz {slow}")
        k.label(done)
        self.slow.append((slow, done, check, reload))
    def flush_slow(self):
        k = self.k
        for slow, done, check, reload in self.slow:
            top = k.newlabel(slow + "t")
            k.label(slow)
            if self.ts:
                bit = {'pb': 1, 'pg': 2, 'ps': 2, 'pc': 4, 'va': 8, 'fa': 16, 'pp': 32, 'pe': 64}[slow[:2]]
                k(f"v_readlane_b32 s{S_T+15}, v255, 15\ns_nop 3\ns_or_b32 s{S_T+15}, s{S_T+15}, {bit}\nv_writelane_b32 v255, s{S_T+15}, 15")
            k(f"s_mov_b32 s{S_T+15}, {POLL_MAX}")
            k.label(top)
            reload()
            check()
            k(f"""s_cbranch_vccz {done}
            s_sub_u32 s{S_T+15}, s{S_T+15}, 1
            s_cmp_lg_u32 s{S_T+15}, 0
            s_cbranch_scc1 {top}
            s_branch {done}""")
        self.slow = []
    def set_flag(self, soff, vtmp, off=0):
        return self.k(f"""v_mov_b32 v{vtmp}, s{S_TAG}
        s_mov_b64 exec, 1
        buffer_store_dword v{vtmp}, off, {WS4}, s{soff} offset:{off} sc1
        s_mov_b64 exec, -1""")
    def capture(self, fn):
        real = self.k; rec = Emit(); rec._lab = real._lab
        self.k = rec
        try: fn(rec)
        finally: self.k = real
        L = [x.text for x in rec.ins]
        assert all(x.kind in ("salu", "valu", "trans") and not x.op.startswith("s_waitcnt") for x in rec.ins)
        out = []; i = 0
        while i < len(L):
            if L[i].startswith(("s_cmp", "s_bitcmp")):
                j = i + 1; last = i
                while j < len(L) and L[j].startswith(("s_cselect", "s_mov")):
                    if L[j].startswith("s_cselect"): last = j
                    j += 1
                out.append("\n".join(L[i:last+1])); i = last + 1
            else:
                out.append(L[i]); i += 1
        return out
    def emit(self, L):
        for x in L:
            x() if callable(x) else self.k(x)
    def sprinkle(self, work, q, lead=0):
        k = self.k; q = list(q); n0 = len(q); masked = False
        for i, w_ in enumerate(work):
            self.emit([w_])
            if isinstance(w_, str):
                if w_.startswith(("s_mov_b32 exec", "s_cselect_b64 exec", "s_mov_b64 exec, s")): masked = True
                if w_.startswith("s_mov_b64 exec, -1"): masked = False
            while q and not masked and i >= lead and (n0 - len(q) + 1)*(len(work) - lead) <= (i - lead + 1)*(n0 + 1) + n0:
                q.pop(0)()
        for f in q: f()
    def cpow(self, dre, dim, n, zr, zi, t):
        return [f"v_mul_f32 v{t}, {n}, v{zi}", f"v_mul_f32 v{dre}, {n}, v{zr}", f"v_fract_f32 v{t}, v{t}",
                f"v_exp_f32 v{dre}, v{dre}", f"v_sin_f32 v{dim}, v{t}", f"v_cos_f32 v{t}, v{t}",
                f"v_mul_f32 v{dim}, v{dim}, v{dre}", f"v_mul_f32 v{dre}, v{t}, v{dre}"]
    def cmul5(self, d, x, y, c=None):
        L = []
        for b in range(5):
            L.append(f"v_mul_f32 v{d.r(b)}, v{x.r(b)}, v{y.r(b)}" if c is None else f"v_fma_f32 v{d.r(b)}, v{x.r(b)}, v{y.r(b)}, v{c.r(b)}")
            L.append(f"v_mul_f32 v{d.i(b)}, v{x.r(b)}, v{y.i(b)}" if c is None else f"v_fma_f32 v{d.i(b)}, v{x.r(b)}, v{y.i(b)}, v{c.i(b)}")
        for b in range(5):
            L.append(f"v_fma_f32 v{d.r(b)}, -v{x.i(b)}, v{y.i(b)}, v{d.r(b)}")
            L.append(f"v_fma_f32 v{d.i(b)}, v{x.i(b)}, v{y.r(b)}, v{d.i(b)}")
        return L
    def div20(self, q, r, x):
        return [f"v_mul_u32_u24 v{q}, 3277, v{x}", f"v_lshrrev_b32 v{q}, 16, v{q}", f"v_mul_u32_u24 v{r}, 20, v{q}", f"v_sub_u32 v{r}, v{x}, v{r}"]

    def prologue(self):
        k = self.k
        k(f"""s_cmp_ge_u32 s2, 256
        s_cbranch_scc1 L_end""")
        if self.spin: k("s_memrealtime s[100:101]")
        if 'align' in self.opt:
            k("""s_memrealtime s[98:99]
            s_waitcnt lgkmcnt(0)
            s_add_u32 s100, s98, 300
            s_and_b32 s100, s100, 0xfffffc00
            s_add_u32 s100, s100, 1024""")
            k.label("L_align")
            k("""s_memrealtime s[98:99]
            s_waitcnt lgkmcnt(0)
            s_cmp_lt_u32 s98, s100
            s_cbranch_scc1 L_align""")
        k(f"""s_load_dwordx16 {s(P0,16)}, s[0:1], 0
        s_load_dwordx16 {s(P0+16,16)}, s[0:1], 64
        s_load_dwordx2 {s(P0+32,2)}, s[0:1], 128""")
        if 'nopf' not in self.opt:
            k(f"""s_getpc_b64 {s(S_T,2)}""")
            k.label("L_pc")
            k(f"""s_bitcmp1_b32 s2, 0
            s_cselect_b32 s{S_T+2}, L_mlp-L_pc, 0
            s_add_u32 s{S_T}, s{S_T}, s{S_T+2}
            s_addc_u32 s{S_T+1}, s{S_T+1}, 0
            s_lshr_b32 s{S_T+2}, s2, 3
            s_lshl_b32 s{S_T+2}, s{S_T+2}, 10
            v_lshl_add_u32 v254, v0, 2, s{S_T+2}
            global_load_dword v254, v254, {s(S_T,2)}""")
        k(f"""v_lshrrev_b32 v1, 6, v0
        v_and_b32 v0, 63, v0
        v_readfirstlane_b32 s{S_W}, v1
        s_bfe_u32 s{S_T}, s2, 0x20001
        s_lshr_b32 s{S_T+1}, s2, 6           ; c = id>>6
        s_lshl_b32 s{S_I}, s{S_T+1}, 2
        s_add_u32 s{S_I}, s{S_I}, s{S_T}
        s_bfe_u32 s{S_J}, s2, 0x30003        ; j = (id>>3)&7
        s_lshl_b32 s{S_T}, s{S_I}, 3
        s_add_u32 s{S_T}, s{S_T}, s{S_J}
        s_lshl_b32 s{S_T}, s{S_T}, 2
        s_add_u32 s{S_PW}, s{S_T}, s{S_W}    ; (i*8+j)*4+w
        s_lshl_b32 s{S_FLAG}, s{S_PW}, 6
        s_lshl_b32 s{S_MX}, s{S_W}, 12
        s_lshl_b32 s{S_T+2}, s{S_I}, 7
        s_lshl_b32 s{S_T+3}, s{S_W}, 5
        s_add_u32 s{S_T+2}, s{S_T+2}, s{S_T+3}
        s_mul_i32 s{S_XO}, s{S_T+2}, 1280
        v_lshrrev_b32 v11, 4, v0                 ; g
        v_and_b32 v13, 7, v0
        v_xor_b32 v12, v13, v11
        v_lshlrev_b32 v12, 4, v12
        v_lshrrev_b32 v3, 3, v0
        v_mul_u32_u24 v3, 1280, v3
        v_lshl_add_u32 v253, v13, 4, v3          ; (l>>3)*1280 + (l&7)*16
        v_add_u32 v3, v3, v12                    ; (l>>3)*1280 + swz
        v_lshlrev_b32 v252, 4, v0
        s_bitcmp1_b32 s2, 0""")
        if self.ts: k("v_mov_b32 v255, 0\nv_writelane_b32 v255, s2, 63")
        k("s_waitcnt lgkmcnt(0)")
        if self.spin: k("s_mov_b32 s101, 0")
        k(f"s_load_dword s{S_TAG}, {ptr(16)}, {WS_EPOCH}")
        k(f"""s_mov_b32 s{SRD_X}, s{P0}
        s_mov_b32 s{SRD_X+1}, s{P0+1}
        s_mov_b32 s{SRD_X+2}, 2621440
        s_mov_b32 s{SRD_X+3}, 0x20000
        s_mov_b32 s{SRD_WS}, s{P0+32}
        s_mov_b32 s{SRD_WS+1}, s{P0+33}
        s_mov_b32 s{SRD_WS+2}, {WS_SIZE}
        s_mov_b32 s{SRD_WS+3}, 0x20000
        s_cbranch_scc1 L_mlp""")
        self.LV = 252; self.PV = 253

    def make_tag(self):
        self.k(f"""s_waitcnt lgkmcnt(0)
        s_bitcmp1_b32 s{S_TAG}, 0
        s_cselect_b32 s{S_PAT}, 0x10000, 1        ; payload tag bits alternate from launch to launch
        s_cselect_b32 s{S_PAT32}, 2, 1
        s_mul_i32 s{S_TAG}, s{S_TAG}, 0x9E3779B1
        s_add_u32 s{S_TAG}, s{S_TAG}, 0x7F4A7C15
        s_and_b32 s{S_TAG}, s{S_TAG}, 0xfffefffc
        s_or_b32 s{S_TAG}, s{S_TAG}, s{S_PAT}
        s_or_b32 s{S_TAG}, s{S_TAG}, s{S_PAT32}
        s_xor_b32 s{S_TAG2}, s{S_TAG}, 0x5bd1e995
        s_brev_b32 s{S_TAG2}, s{S_TAG2}
        s_mov_b32 s{S_NM}, 0xfffefffe""")

    def rowstat_setup(self, s_row, s_cl, va, vr):
        self.k(f"""v_min_u32 v{vr}, s{s_cl}, v11
        v_mul_u32_u24 v{va}, 1280, v{vr}
        v_and_b32 v13, 15, v0
        v_lshl_add_u32 v{va}, v13, 4, v{va}
        v_lshlrev_b32 v{vr}, 4, v{vr}
        s_mul_i32 s{s_row}, s{s_row}, 1280""")
    def rowstat_loads(self, srd, s_row, va, R0):
        L = []
        for q in range(5):
            def f(q=q): self.rs_tok[q] = self.k(f"buffer_load_dwordx4 {v(R0+4*q,4)}, v{va}, {s(srd,4)}, s{s_row} offen offset:{256*q}")
            L.append(f)
        self.rs_tok = {}
        return L
    def rowstat_fill(self, R0, A0, T0, vr, s_dst, sq=True):
        k = self.k; L = []
        for q in range(20):
            if q % 4 == 0: L.append(lambda q=q: k.wait_vm(self.rs_tok[q//4]))
            t0, t1 = T0 + 2*(q % 2), T0 + 2*(q % 2) + 1
            L += [f"v_lshlrev_b32 v{t0}, 16, v{R0+q}", f"v_and_b32 v{t1}, 0xffff0000, v{R0+q}"]
            if q == 0: L += [f"v_add_f32 v{A0}, v{t0}, v{t1}", f"v_mul_f32 v{A0+2}, v{t0}, v{t0}", f"v_fmac_f32 v{A0+2}, v{t1}, v{t1}"]
            else: L += [f"v_add_f32 v{A0}, v{A0}, v{t0}", f"v_fmac_f32 v{A0+2}, v{t0}, v{t0}", f"v_add_f32 v{A0}, v{A0}, v{t1}", f"v_fmac_f32 v{A0+2}, v{t1}, v{t1}"]
        L += [f"v_mov_b32 v{A0+1}, s{S_TAG}", f"v_mov_b32 v{A0+3}, s{S_TAG2}"]
        for r in (8, 4, 2, 1):
            L += [f"v_add_f32_dpp v{A0}, v{A0}, v{A0} row_ror:{r} row_mask:0xf bank_mask:0xf", f"v_add_f32_dpp v{A0+2}, v{A0+2}, v{A0+2} row_ror:{r} row_mask:0xf bank_mask:0xf"]
        if not sq: L = [x for x in L if callable(x) or not x.split(",")[0].endswith((f"v{A0+2}", f"v{A0+3}"))]
        L.append(lambda: k(f"""s_mov_b32 exec_lo, 0x00010001
        s_mov_b32 exec_hi, 0x00010001
        buffer_store_dwordx{4 if sq else 2} {v(A0,4 if sq else 2)}, v{vr}, {WS4}, s{s_dst} offen sc1
        s_mov_b64 exec, -1"""))
        return L
    @staticmethod
    def cost(x):
        if callable(x): return 1
        if x.startswith(("v_exp", "v_rcp", "v_rsq", "v_sin", "v_cos")): return 2
        return 1
    def take_fill(self, fq, n, cap):
        out = []
        while fq:
            x = fq[0]
            if isinstance(x, tuple):
                if x[0] == 'at':
                    if n < x[1]: break
                    fq.pop(0); continue
                if x[0] == 'mark':
                    self.marks[x[1]] = n; fq.pop(0); continue
            c = self.cost(x)
            if cap <= 0 or (c > cap and out): break
            cap -= c; out.append(fq.pop(0))
        return out
    def dma_reset(self):
        self.m0 = None; self.vstage = {}; self.sstage = 0
    def tile_of(self, t, dst):
        o = self.opt; r = S_WRAP
        if 'blk4' in o:
            if t < 8: return f"s_add_u32 s{dst}, s{r}, {t}\ns_and_b32 s{dst}, s{dst}, 3\ns_or_b32 s{dst}, s{dst}, {t & ~3}"
            return f"s_and_b32 s{dst}, s{r}, 1\ns_xor_b32 s{dst}, s{dst}, {t}"
        if 'blk5' in o:
            return f"s_add_u32 s{dst}, s{r}, {t % 5}\ns_cmp_ge_u32 s{dst}, 5\ns_cselect_b32 s{S_ST2K}, 5, 0\ns_sub_u32 s{dst}, s{dst}, s{S_ST2K}\ns_add_u32 s{dst}, s{dst}, {t - t % 5}"
        if 'rotlat' in o:
            return f"s_add_u32 s{dst}, s{r}, {t}\ns_cmp_ge_u32 s{dst}, 10\ns_cselect_b32 s{S_ST2K}, 10, 0\ns_sub_u32 s{dst}, s{dst}, s{S_ST2K}"
        return f"s_xor_b32 s{dst}, s{r}, {t}"
    def rot_setup(self, regs128, regsW):
        k = self.k; o = self.opt; r = S_WRAP
        k(f"s_lshr_b32 s{S_T}, s{S_I}, 2")
        if 'rot0' in o: k(f"s_mov_b32 s{r}, 0")
        elif 'blk4' in o: k(f"s_add_u32 s{r}, s{S_T}, s{S_J}\ns_and_b32 s{r}, s{r}, 3")
        elif 'blk5' in o: k(f"s_add_u32 s{r}, s{S_T}, s{S_J}\ns_and_b32 s{r}, s{r}, 3")
        elif 'rotlat' in o: k(f"s_lshl_b32 s{S_T}, s{S_T}, 1\ns_add_u32 s{S_T}, s{S_T}, s{S_J}\ns_and_b32 s{S_T}, s{S_T}, 7\ns_mul_i32 s{S_T}, s{S_T}, 5\ns_lshr_b32 s{r}, s{S_T}, 2")
        else: k(f"s_add_u32 s{r}, s{S_T}, s{S_J}\ns_and_b32 s{r}, s{r}, 1")
        k(f"s_mov_b32 s{S_ST1}, s{r}\ns_lshl_b32 s{S_ST2}, s{r}, 7")
        for x in regs128: k(f"v_add_u32 v{x}, s{S_ST2}, v{x}")
        if regsW: k(f"s_mul_i32 s{S_ST2}, s{S_ST2}, 1536")
    def dma(self, m0, ld, vreg=None, t=0, step=0):
        k = self.k
        def pre():
            if self.m0 != m0:
                k(f"s_add_u32 m0, s{m0[0]}, {m0[1]}"); self.m0 = m0
            if vreg is not None and self.vstage.get(vreg, 0) != t:
                assert self.vstage.get(vreg, 0) == t - 1
                if self.sstage != t:
                    k(self.tile_of(t, S_ST2))
                    k(f"s_sub_u32 s{S_ST1K}, s{S_ST2}, s{S_ST1}\ns_mov_b32 s{S_ST1}, s{S_ST2}\ns_lshl_b32 s{S_ST1K}, s{S_ST1K}, 7")
                    if self.has_w: k(f"s_mul_i32 s{S_ST2K}, s{S_ST1K}, 1536")
                    self.sstage = t
                k(f"v_add_u32 v{vreg}, s{S_ST1K if step == 128 else S_ST2K}, v{vreg}"); self.vstage[vreg] = t
        return pre, ld

    def unit_decode(self, nunits, U):
        self.k(f"""s_sub_u32 s{S_T}, s{S_PW}, {nunits}
        s_cmp_lt_u32 s{S_PW}, {nunits}
        s_cselect_b32 s{U}, s{S_PW}, s{S_T}
        s_mul_i32 s{S_T+2}, s{U}, 6554
        s_lshr_b32 s{S_T+2}, s{S_T+2}, 16
        s_mul_i32 s{S_T}, s{S_T+2}, 10
        s_sub_u32 s{S_T}, s{U}, s{S_T}""")

    def b2_setup(self, side):
        k = self.k; vl = self.PV
        S = [40, 48][side]; KS = [10, 12][side]
        if side == 0:
            V = f"""v_min_u32 v{vl}, 14, v0
            v_mul_u32_u24 v{vl+1}, 86, v{vl}
            v_lshrrev_b32 v{vl+1}, 8, v{vl+1}
            v_mul_u32_u24 v{vl+1}, 7, v{vl+1}
            v_add_lshl_u32 v{vl}, v{vl}, v{vl+1}, 6"""
            L = f"""s_mul_i32 s{S_T+12}, s{S_W}, 10
            s_lshr_b32 s{S_T+12}, s{S_T+12}, 2
            s_mul_i32 s{S_T+3}, s{S_J}, 50"""
        else:
            V = f"""v_min_u32 v{vl}, 23, v0
            v_lshrrev_b32 v{vl+1}, 1, v{vl}
            v_lshlrev_b32 v{vl+1}, 3, v{vl+1}
            v_add_lshl_u32 v{vl}, v{vl}, v{vl+1}, 6"""
            L = f"""s_mul_i32 s{S_T+12}, s{S_W}, 120
            s_mul_i32 s{S_T+3}, s{S_J}, 5
            s_lshr_b32 s{S_T+3}, s{S_T+3}, 2"""
        k(L + f"""
        s_add_u32 s{S_T+12}, s{S_T+12}, s{S_T+3}
        s_lshl_b32 s{S_T+12}, s{S_T+12}, 6
        s_add_u32 s{S_T+12}, s{S_T+12}, {WS_FB + side*512*FLS}
        s_mul_i32 s{S_B2}, s{S_J}, {5*S}
        s_mul_i32 s{S_T+3}, s{S_W}, {KS}
        s_add_u32 s{S_B2}, s{S_B2}, s{S_T+3}
        s_lshl_b32 s{S_B2}, s{S_B2}, 10
        s_add_u32 s{S_B2}, s{S_B2}, {WS_B2S[side]}""")
        self.order = [list(range(10)), [0, 3, 6, 9, 1, 4, 7, 10, 2, 5, 8, 11]][side]
        self.b2tok = {}; self.b2q = []
        for ss in self.order:
            for cc in range(5):
                def ld(ss=ss, cc=cc):
                    k = self.k
                    k(f"s_add_u32 s{P0+30}, s{S_B2}, {(cc*S + ss)*1024}")
                    self.b2tok[ss, cc] = k(f"buffer_load_dwordx4 {a((ss*5+cc)*4,4)}, v{self.LV}, {WS4}, s{P0+30} offen sc1")
                self.b2q.append(ld)
        return [x.strip() for x in V.split("\n")]
    def b2_take(self, n):
        out = self.b2q[:n]; self.b2q = self.b2q[n:]
        return out
    def b2_poll(self):
        self.pbtok = self.k(f"buffer_load_dword v254, v{self.PV}, {WS4}, s{S_T+12} offen sc1")
    def b2_check(self):
        k = self.k
        k.wait_vm(self.pbtok)
        def rl(): k(f"buffer_load_dword v254, v{self.PV}, {WS4}, s{S_T+12} offen sc1\ns_waitcnt vmcnt(0)")
        self.verify(lambda: k(f"v_cmp_ne_u32 vcc, s{S_TAG}, v254"), rl, "pb")

    TB_RS = 184
    def ssm(self):
        k = self.k
        ACC = 16; FR = [96, 144]
        XE, XO, WA, WB = 1, 2, 3, 4
        PV = self.PV; LV = self.LV; RS = self.TB_RS
        STG0, STGS = 16384, 36864
        S_RSROW, SW0, S_GW, S_GT, D2, S_RSDST, S_FB = S_T+5, S_T+6, S_T+8, S_T+9, S_T+10, S_T+13, S_T+14
        acc = lambda a_, tt: ACC + (a_*10 + tt)*4
        k.c("================ SSM side, phase 1")
        self.stamp(0); self.nf3 = 0; self.fine3(); self.marks = {}
        k(f"""v_lshrrev_b32 v13, 3, v0
        v_and_b32 v13, 3, v13
        v_lshrrev_b32 v15, 5, v0
        v_lshl_add_u32 v13, v15, 3, v13
        v_mul_u32_u24 v{XE}, 1280, v13
        v_add_u32 v{XE}, v{XE}, v12
        v_xor_b32 v{XO}, 64, v{XE}
        s_and_b32 s{S_T+4}, s{S_W}, 1
        s_lshl_b32 s{S_T+1}, s{S_T+4}, 6
        v_xor_b32 v{WA}, s{S_T+1}, v{WA}
        v_xor_b32 v{WB}, 64, v{WA}
        s_add_u32 s{S_XO+1}, s{S_XO}, {16*1280 - 1024}
        s_add_u32 s{S_XO+2}, s{S_XO}, {4*1280 - 2048}
        s_add_u32 s{S_XO+3}, s{S_XO}, {20*1280 - 3072}""")
        stage_tok = {}; stage_cnt = {}
        self.dma_reset(); self.has_w = False
        self.rot_setup([XE, XO, WA, WB], False)
        def dma_list(t):
            base = STG0 + (t % 4)*STGS
            L = []
            def mk(ld):
                def f():
                    stage_tok[t] = k(ld); stage_cnt[t] = stage_cnt.get(t, 0) + 1
                return f
            for e in range(4):
                vr = XE if e % 2 == 0 else XO
                L.append(self.dma((S_MX, base), mk(f"buffer_load_dwordx4 v{vr}, {s(SRD_X,4)}, s{S_XO+e} offen offset:{e*1024} lds"), vr, t, 128))
            for e in range(5):
                vr = WA if e % 2 == 0 else WB
                L.append(self.dma((S_MW, base + 16384 + (e//4)*4096), mk(f"buffer_load_dwordx4 v{vr}, {s(SRD_W,4)}, s{S_WO+e} offen offset:{(e%4)*1024} lds"), vr, t, 128))
            return L
        d0 = dma_list(0)
        for p in d0[:4]: self.emit(p)
        k(f"""s_cmp_lt_u32 s{S_W}, 2
        s_cselect_b32 s{SRD_W}, s{P0+6}, s{P0+8}
        s_cselect_b32 s{SRD_W+1}, s{P0+7}, s{P0+9}
        s_mov_b32 s{SRD_W+2}, 819200
        s_mov_b32 s{SRD_W+3}, 0x20000
        s_mul_i32 s{S_T+7}, s{S_J}, 80
        s_mul_i32 s{S_T+3}, s{S_T+4}, 40
        s_add_u32 s{S_T+2}, s{S_T+7}, s{S_T+3}
        s_mul_i32 s{S_WO}, s{S_T+2}, 1280
        s_add_u32 s{S_WO+1}, s{S_WO}, {8*1280 - 1024}
        s_add_u32 s{S_WO+2}, s{S_WO}, {16*1280 - 2048}
        s_add_u32 s{S_WO+3}, s{S_WO}, {24*1280 - 3072}
        s_add_u32 s{S_WO+4}, s{S_WO}, {32*1280}
        s_mul_i32 s{S_MW}, s{S_W}, 5120""")
        self.emit(d0[4])
        VLR, VLI, VDT, ZR, ZI, VT, VP, TA, TB_ = 218, 219, 220, 221, 222, 223, 224, 225, 226
        self.emit(self.div20(VT, VP, 0))
        k(f"""s_mul_i32 s{S_T+1}, s{S_W}, 20
        v_add_u32 v{VP}, s{S_T+1}, v{VP}
        v_add_lshl_u32 v{VDT}, v{VP}, s{S_T+7}, 1""")
        def vec():
            k(f"global_load_ushort v{VLR}, v{VDT}, {ptr(1)}\nglobal_load_ushort v{VLI}, v{VDT}, {ptr(2)}")
            self.vec_tok = k(f"global_load_ushort v{VDT}, v{VDT}, {ptr(7)}")
        d1 = dma_list(1)
        R0, A0, T0 = 192, 212, 227
        rs = self.rowstat_loads(SRD_T1, S_RSROW, 15, R0)
        def setup(k):
            k(f"""s_cmp_lt_u32 s{S_I}, 8
            s_cselect_b32 s{SRD_T1}, s{P0+6}, s{P0+8}
            s_cselect_b32 s{SRD_T1+1}, s{P0+7}, s{P0+9}
            s_mov_b32 s{SRD_T1+2}, 819200
            s_mov_b32 s{SRD_T1+3}, 0x20000
            s_mul_i32 s{S_T+4}, s{S_W}, 3
            s_and_b32 s{S_T+2}, s{S_I}, 7
            s_mul_i32 s{S_T+2}, s{S_T+2}, 10
            s_add_u32 s{S_T+2}, s{S_T+2}, s{S_T+7}
            s_add_u32 s{S_RSROW}, s{S_T+2}, s{S_T+4}     ; rows 80j + 10(i%8) + 3w + ..
            s_mul_i32 s{S_T+3}, s{S_J}, 160
            s_mul_i32 s{S_T+6}, s{S_I}, 10
            s_add_u32 s{S_T+3}, s{S_T+3}, s{S_T+6}
            s_add_u32 s{S_T+3}, s{S_T+3}, s{S_T+4}
            s_lshl_b32 s{S_T+3}, s{S_T+3}, 4
            s_add_u32 s{S_RSDST}, s{S_T+3}, {WS_WSG}
            s_cmp_eq_u32 s{S_W}, 3
            s_cselect_b32 s{S_T+1}, 0, 2""")

            self.rowstat_setup(S_RSROW, S_T+1, 15, 14)

            self.unit_decode(400, S_FB)
            k(f"""s_mul_i32 s{S_T+1}, s{S_T+2}, {16*1280}
            s_lshl_b32 s{S_T+3}, s{S_T}, 7
            s_add_u32 s{SW0}, s{S_T+1}, s{S_T+3}
            s_add_u32 s{SW0+1}, s{SW0}, {8*1280 - 1024}
            s_mul_i32 s{S_T+3}, s{S_T+2}, 40
            s_lshl_b32 s{S_T+4}, s{S_T}, 2
            s_add_u32 s{S_T+3}, s{S_T+3}, s{S_T+4}
            s_lshl_b32 s{S_T+3}, s{S_T+3}, 10
            s_add_u32 s{D2}, s{S_T+3}, {WS_B2S[0]}
            s_lshl_b32 s{S_FB}, s{S_FB}, 6
            s_add_u32 s{S_FB}, s{S_FB}, {WS_FB}
            s_mul_i32 s{S_GW}, s{S_J}, 2560
            s_mul_i32 s{S_T}, s{S_W}, 640
            s_add_u32 s{S_GW}, s{S_GW}, s{S_T}
            s_add_u32 s{S_GW}, s{S_GW}, {WS_WSG}
            s_lshl_b32 s{S_GT}, s{S_I}, 11
            s_lshl_b32 s{S_T}, s{S_W}, 9
            s_add_u32 s{S_GT}, s{S_GT}, s{S_T}
            s_add_u32 s{S_GT}, s{S_GT}, {WS_STG}
            v_and_b32 v11, 15, v0
            v_lshrrev_b32 v12, 4, v0
            v_lshrrev_b32 v13, 1, v11
            v_xor_b32 v13, v13, v12
            v_lshlrev_b32 v13, 4, v13
            v_lshl_add_u32 v13, v11, 7, v13
            v_add_u32 v5, {STG0}, v13
            v_add_u32 v5, s{S_MX}, v5
            v_xor_b32 v6, 64, v5
            v_add_u32 v7, {STG0+16384}, v13
            v_xor_b32 v8, 64, v7
            v_add_u32 v9, {2*STGS}, v5
            v_add_u32 v10, {2*STGS}, v6
            v_add_u32 v250, {2*STGS}, v7
            v_add_u32 v251, {2*STGS}, v8
            v_lshlrev_b32 v13, 7, v11
            v_lshrrev_b32 v12, 5, v0
            v_lshl_add_u32 v13, v12, 11, v13
            v_bfe_u32 v12, v0, 4, 1
            v_lshl_add_u32 v13, v12, 4, v13
            v_add_u32 v13, s{S_MX}, v13
            v_mul_u32_u24 v11, {RS}, v11             ; table row of this lane's column
            v_min_u32 v{VT}, 2, v{VT}
            v_mul_u32_u24 v{TA}, {RS}, v{VP}
            v_lshl_add_u32 v{TB_}, v{VT}, 3, v{TA}
            v_lshlrev_b32 v{VT}, 3, v{VT}
            v_cvt_f32_u32 v{VT}, v{VT}
            v_and_b32 v216, 31, v0
            v_lshlrev_b32 v216, 4, v216
            v_min_u32 v217, 39, v0
            v_lshlrev_b32 v217, 4, v217""")
            self.b2v = self.b2_setup(0)
            self.srd(SRD_T2, 5, 819200)
            self.srd(SRD_OUT, 6, 819200)
        pre_mem = [(lambda p=p: self.emit(p)) for p in d0[5:]] + [vec] + [(lambda p=p: self.emit(p)) for p in d1[:7]]
        self.sprinkle(self.capture(setup), pre_mem)
        b2v = self.b2v; vec_tok = self.vec_tok
        tk = {}
        swq = []
        for e in range(4):
            def f(e=e): tk['d2'] = k(f"buffer_load_dwordx4 v{PV}, {s(SRD_T2 if e < 2 else SRD_OUT,4)}, s{SW0+e%2} offen offset:{(e%2)*1024} lds")
            swq.append(self.dma((S_MX, (e//2)*2048), f))
        self.make_tag()
        RXA = [[5, 6], [9, 10]]; RWA = [[7, 8], [250, 251]]
        rtok = {}
        def mkreads(n):
            st = FR[n % 2]; ks = n % 2; sl = (n//2) % 4; o = (sl % 2)*STGS
            R = [f"ds_read_b128 {v(st+4*a_,4)}, v{RXA[sl//2][ks]} offset:{o+a_*2048}" for a_ in range(2)]
            R += [f"ds_read_b128 {v(st+8+4*tt,4)}, v{RWA[sl//2][ks]} offset:{o+tt*2048}" for tt in range(10)]
            L = []
            for i, r in enumerate(R):
                def f(i=i, r=r): rtok[n, i] = k(r)
                L.append(f)
            return L
        self.fine3()
        k.wait_vm(stage_tok[0])
        self.fine3()
        k("s_barrier")
        self.fine3()
        self.stamp(1)
        k.label("L_ssm_code")
        self.emit(mkreads(0))
        LAM, LAM2, LAM4, WSUM = C5(192), C5(202), C5(212), C5(222)
        AT, BT, TG = 232, 240, 192
        L_AB = 14720
        mq = [[0, 1, p_, l_] for p_, l_ in d1[7:]]
        def q_stage(t):
            for p_, l_ in dma_list(t): mq.append([max(2*(t-3), 0), 1, p_, l_])
        def sw_store(cc):
            def f():
                k.wait_lg(tk['r2'])
                tk['s2'] = k(f"buffer_store_dwordx4 {a(220+4*cc,4)}, v{LV}, {WS4}, s{D2} offen offset:{1024*cc} sc1")
            return f
        def gl1(): k(f"buffer_load_dwordx4 {v(TG,4)}, v216, {WS4}, s{S_GT} offen sc1")
        def gl2(): tk['gr'] = k(f"buffer_load_dwordx2 {v(TG+4,2)}, v217, {WS4}, s{S_GW} offen sc1")
        NSW, NFLAG, NGL, NGC, NPOLL, NCHK = [int(self.P(a_, b_)) for a_, b_ in (('snsw', 3), ('snfl', 9), ('sngl', 13), ('sngc', 16), ('snpo', 14), ('snck', 17))]
        prs, psw, pst = int(self.P('prs', 1)), int(self.P('psw', 2)), int(self.P('pst', 4))
        for t in range(1, 10):
            if t > 1: q_stage(t)
            if t == prs: mq += [[0, 1, None, f] for f in rs]
            if t == psw: mq += [[0, 1, p_, l_] for p_, l_ in swq]
            if t == pst: mq += [[NSW+1, 2, None, sw_store(cc)] for cc in range(4)]
        late = {NGL: [[NGL, 1, None, gl1], [NGL, 1, None, gl2]]}
        late[NPOLL] = late.get(NPOLL, []) + [[NPOLL, 0.5, None, self.b2_poll]]
        def swr():
            k.wait_vm(tk['d2'])
            for ss in range(4): tk['r2'] = k(f"ds_read_b128 {a(220+4*ss,4)}, v13 offset:{32*ss}")
        fq = [lambda: k.wait_vm(vec_tok)]
        fq += [x.strip() for x in f"""v_lshlrev_b32 v{VDT}, 16, v{VDT}
        v_mul_f32 v{VDT}, {fbits(LOG2E)}, v{VDT}
        v_exp_f32 v{VDT}, v{VDT}
        v_lshlrev_b32 v{VLR}, 16, v{VLR}
        v_lshlrev_b32 v{VLI}, 16, v{VLI}
        v_cvt_pk_bf16_f32 v{VDT}, v{VDT}, v{VDT}
        v_and_b32 v{VDT}, 0xffff0000, v{VDT}
        v_mul_f32 v{ZR}, v{VLR}, v{VDT}
        v_mul_f32 v{ZI}, v{VLI}, v{VDT}
        v_mul_f32 v{ZR}, {fbits(LOG2E)}, v{ZR}
        v_mul_f32 v{ZI}, 0.15915494, v{ZI}
        v_accvgpr_write_b32 a250, v{ZR}
        v_accvgpr_write_b32 a251, v{ZI}
        v_mov_b32 v231, {fbits(128.0)}
        v_mov_b32 v232, {fbits(8.0)}""".split("\n")]
        LM = 240
        P = [self.cpow(LM, LM+1, "1.0", ZR, ZI, 233), self.cpow(236, 237, "v231", ZR, ZI, 234), self.cpow(248, 249, "v232", ZR, ZI, 235)]
        fq += [x[i] for i in range(8) for x in P]
        fq += [x.strip() for x in f"""v_accvgpr_write_b32 a252, v236
        v_accvgpr_write_b32 a253, v237
        v_mul_f32 v231, v{VLR}, v{VLR}
        v_fma_f32 v231, v{VLI}, v{VLI}, v231
        v_rcp_f32 v231, v231
        v_mul_f32 v{LM+2}, v{LM}, v{LM}
        v_mul_f32 v{LM+3}, v{LM}, v{LM+1}
        v_fma_f32 v{LM+2}, -v{LM+1}, v{LM+1}, v{LM+2}
        v_add_f32 v{LM+3}, v{LM+3}, v{LM+3}
        v_add_f32 v232, -1.0, v{LM}
        v_add_f32 v231, v231, v231
        v_mul_f32 v{LM+4}, v{LM+2}, v{LM+2}
        v_mul_f32 v{LM+5}, v{LM+2}, v{LM+3}
        v_fma_f32 v{LM+4}, -v{LM+3}, v{LM+3}, v{LM+4}
        v_add_f32 v{LM+5}, v{LM+5}, v{LM+5}
        v_mul_f32 v{LM+6}, v232, v{VLR}
        v_mul_f32 v{LM+7}, v{LM+1}, v{VLR}
        v_fma_f32 v{LM+6}, v{LM+1}, v{VLI}, v{LM+6}
        v_fma_f32 v{LM+7}, -v232, v{VLI}, v{LM+7}
        v_mul_f32 v{LM+6}, v{LM+6}, v231
        v_mul_f32 v{LM+7}, v{LM+7}, v231""".split("\n")]
        rsf = self.rowstat_fill(R0, A0, T0, 14, S_RSDST, sq=False)
        fq += [('at', int(self.P('srs', 2)))] + rsf + [('mark', 'rs')]
        fq += b2v + [('mark', 'gaddr')]
        fq += [('at', (NSW | 1) + 1 + (NSW & 1)*2)] + [f"ds_write_b64 v{TA}, {v(LM+2*q,2)} offset:{144+8*q}" for q in range(4)]
        for g3 in range(2):
            P = [[f"v_add_f32 v{237+q}, {fbits(24.0*(3*g3+q))}, v{VT}"] + self.cpow(231+2*q - 0, 232+2*q, f"v{237+q}", ZR, ZI, 227+q) for q in range(3)]
            P = [[f"v_add_f32 v{238+q}, {fbits(24.0*(3*g3+q))}, v{VT}"] + self.cpow(232+2*q, 233+2*q, f"v{238+q}", ZR, ZI, 227+q) for q in range(3)]
            fq += [x[i] for i in range(9) for x in P]
            fq += [f"ds_write_b64 v{TB_}, {v(232+2*q,2)} offset:{24*(3*g3+q)}" for q in range(3)]
        fq += [('mark', 'table')]
        def flg():
            k.wait_vm(tk['s2']); self.set_flag(S_FB, 15)
        flags = {NFLAG: flg, NSW: swr}
        pre_st = [x.strip() for x in f"""s_lshl_b32 s{S_T}, s{S_W}, 7
        v_lshrrev_b32 v12, 2, v216
        v_add_u32 v12, s{S_T}, v12
        v_add_u32 v12, {L_AB}, v12
        v_lshrrev_b32 v14, 4, v0
        v_lshl_add_u32 v239, v14, 5, s{S_T}
        s_and_b32 s{S_T}, s{S_W}, 1
        s_mul_i32 s{S_T}, s{S_T}, 40
        v_lshrrev_b32 v13, 4, v217
        v_add_u32 v13, s{S_T}, v13
        v_mul_u32_u24 v13, {RS}, v13
        s_lshr_b32 s{S_T}, s{S_W}, 1
        s_lshl_b32 s{S_T}, s{S_T}, 2
        v_add_u32 v13, s{S_T}, v13
        s_mov_b32 s{S_T}, {fbits(1.0/640)}""".split("\n")]
        stq = [x.strip() for x in f"""ds_write_b32 v13, v{TG+4} offset:176
        v_mul_f32 v{TG}, s{S_T}, v{TG}
        v_mul_f32 v15, v{TG}, v{TG}
        v_fma_f32 v15, v{TG+2}, s{S_T}, -v15
        v_max_f32 v15, 0, v15
        v_add_f32 v15, {fbits(EPS)}, v15
        v_rsq_f32 v15, v15
        v_mul_f32_e64 v{TG}, v{TG}, -v15
        ds_write2st64_b32 v12, v15, v{TG} offset0:0 offset1:2""".split("\n")]
        fq += pre_st + [('at', 14)] + [f"ds_read_b64 {v(LAM2.r(b),2)}, v11 offset:{16*b*RS+152}" for b in range(5)]
        fq += [('at', NGC)] + stq + [('mark', 'stats')]
        fq += [f"ds_read_b64 {v(LAM4.r(b),2)}, v11 offset:{16*b*RS+160}" for b in range(5)]
        NRD = int(self.P('snrd', 18))
        fq += [('at', NRD)] + [f"ds_read_b64 {v(LAM.r(b),2)}, v11 offset:{16*b*RS+144}" for b in range(5)]
        fq += [f"ds_read_b128 {v(AT+4*q,4)}, v239 offset:{L_AB+16*(q%2)+512*(q//2)}" for q in (3, 2, 0, 1)]
        fq += [f"ds_read_b64 {v(WSUM.r(b),2)}, v11 offset:{16*b*RS+176}" for b in range(5)]
        credit = 0.0; b2on = False
        for n in range(20):
            st = FR[n % 2]
            k.c(f"---- ssm k-step {n}")
            self.fine(16 + n)
            if n == NGC:
                k.wait_vm(tk['gr'])
                def check():
                    k(f"""v_xor_b32 v15, s{S_TAG}, v{TG+1}
                    v_bitop3_b32 v15, s{S_TAG2}, v{TG+3}, v15 bitop3:0xbe
                    v_bitop3_b32 v15, s{S_TAG}, v{TG+5}, v15 bitop3:0xbe
                    v_cmp_ne_u32 vcc, 0, v15""")
                def rl():
                    gl1(); gl2(); k("s_waitcnt vmcnt(0)")
                self.verify(check, rl, "pg")
            if n == NCHK:
                self.b2_check(); b2on = True
            if n == NGL: assert self.marks['rs'] < n
            if n == NPOLL: assert self.marks['gaddr'] < n
            mq[0:0] = late.get(n, [])
            mem = []
            mmax = int(self.P('smax', 9)) if n < self.P('sfast', 2) else int(self.P('scap', 5))
            while len(mem) < mmax:
                if mq and mq[0][0] <= n: it_ = mq.pop(0)
                elif b2on and self.b2q and len(mem) < self.P('sb2', 5): it_ = [n, 1, None, self.b2q.pop(0)]
                else: break
                mem.append(it_)
            rd = mkreads(n+1) if n + 1 < 20 else []
            slots = [[] for _ in range(20)]
            if n % 2 == 0:
                rslots = [0, 1, 3, 4, 6, 7, 9, 10, 12, 13, 15, 16]; pref = [2, 8, 14, 19, 5, 11, 17, 18, 0, 6, 12, 3, 9, 15, 1, 4]
            else:
                rslots = [4, 5, 6, 8, 9, 10, 12, 13, 14, 16, 17, 18]; pref = [0, 7, 15, 2, 11, 19, 1, 5, 9, 13, 17, 4, 8, 12, 16, 6]
                if n + 1 < 20:
                    T_ = (n + 1)//2
                    def f(T_=T_):
                        assert stage_cnt[T_] == 9
                        k.wait_both(stage_tok[T_], k.lg_issued)
                        k("s_barrier")
                    slots[3] += [f]
            mslots = sorted(pref[:len(mem)])
            cap = [2]*20
            for sl, r in zip(rslots, rd): slots[sl].append(r); cap[sl] = 1
            for sl, it_ in zip(mslots, mem):
                slots[sl] = [it_[3]] + slots[sl]; cap[sl] -= 1
            if n % 2 == 1 and n + 1 < 20: cap[3] = 0
            i = 0
            for tt in range(10):
                for a_ in range(2):
                    if i in mslots[:len(mem)] and i == 0 and mem[0][2]: mem[0][2]()
                    grp = {0: 1, 2: 9} if n % 2 == 1 else {0: tt, 1: tt, 2: tt, 3: tt, 4: tt, 5: tt, 6: tt, 7: tt, 8: tt, 9: tt} if n == 0 else {0: 3, 4: 6, 7: 9}
                    if a_ == 0 and tt in grp: k.wait_lg(rtok[n, 2+grp[tt]])
                    assert k.lg_done >= rtok[n, 2+tt]
                    c_ = "0" if n == 0 else v(acc(a_, tt), 4)
                    k(f"v_mfma_f32_16x16x32_bf16 {v(acc(a_,tt),4)}, {v(st+4*a_,4)}, {v(st+8+4*tt,4)}, {c_}")
                    self.emit(slots[i])
                    c0 = cap[i]
                    if i + 1 in mslots[:len(mem)]:
                        n0 = len(k.ins); pre_ = mem[mslots.index(i+1)][2]
                        if pre_: pre_()
                        c0 -= len(k.ins) - n0
                    if c0 > 0 and (cap[i] == 2 or i % int(self.P('sden', 1)) == 0): self.emit(self.take_fill(fq, n, c0))
                    if i == 19 and n in flags: flags[n]()
                    i += 1
        self.emit([x for x in fq if not isinstance(x, tuple)])
        assert not mq and self.marks['table'] <= 12 and self.marks['stats'] <= NRD - 2 + (NRD & 1), self.marks
        self.info = f"ssm b2 left {len(self.b2q)} marks {self.marks} tail {len(fq)}"
        k.c('loop end')
        self.stamp(2)
        if self.early_stop("loop"): return
        self.ssm_epilogue(ACC, AT, BT, LAM, LAM2, LAM4, WSUM, L_AB)

    def ssm_epilogue(self, ACC, AT, BT, LAM, LAM2, LAM4, WSUM, L_AB):
        k = self.k; RS = self.TB_RS; LV = self.LV
        acc = lambda a_, tt: ACC + (a_*10 + tt)*4
        tok = lambda r, tt: acc(r//4, tt) + r % 4
        L_E, L_C = 16384, 102400
        TM, SEG = 146, 15
        def bc(r): return v(r & ~1, 2), r & 1
        k.c("================ SSM epilogue")
        self.nf2 = 0; self.fine2()
        self.emit(self.div20(8, 9, 0))
        k(f"""v_and_b32 v11, 15, v0
        s_lshl_b32 s{S_T}, s{S_W}, 2
        v_add_u32 v{SEG}, s{S_T}, v14
        v_mul_u32_u24 v13, 768, v{SEG}
        v_mul_u32_u24 v12, 48, v11
        v_add_u32 v13, v13, v12                  ; E[s][col]
        s_mul_i32 s{S_T}, s{S_W}, 20
        v_add_u32 v9, s{S_T}, v9
        v_and_b32 v10, 15, v9
        v_mul_u32_u24 v10, 48, v10
        v_lshrrev_b32 v7, 4, v9
        v_lshl_add_u32 v10, v7, 3, v10           ; E[.][p_local]
        s_waitcnt lgkmcnt(0)""")
        sec = []
        for tt in list(range(10)):
            ws = WSUM.r(tt % 5); hi = tt // 5
            for a_ in range(2):
                for h in range(2):
                    t_ = TM + 2*(a_*2 + h) + 8*(tt % 2)
                    sec.append(f"v_pk_mul_f32 {v(t_,2)}, {v(BT+4*a_+2*h,2)}, {v(ws,2)} op_sel:[0,{hi}] op_sel_hi:[1,{hi}]")
            for a_ in range(2):
                for h in range(2):
                    d = acc(a_, tt) + 2*h; t_ = TM + 2*(a_*2 + h) + 8*(tt % 2)
                    sec.append(f"v_pk_fma_f32 {v(d,2)}, {v(AT+4*a_+2*h,2)}, {v(d,2)}, {v(t_,2)}")
        V1 = 96; EE = C5(136)
        def pkc(dr, di, ar, ai, cr_, ci_, lr, li):
            (pr, sr), (pi, si) = bc(lr), bc(li)
            return [f"v_pk_fma_f32 {v(dr,2)}, {v(ar,2)}, {pr}, {v(cr_,2)} op_sel:[0,{sr},0] op_sel_hi:[1,{sr},1]",
                    f"v_pk_fma_f32 {v(di,2)}, {v(ai,2)}, {pr}, {v(ci_,2)} op_sel:[0,{sr},0] op_sel_hi:[1,{sr},1]",
                    f"v_pk_fma_f32 {v(dr,2)}, {v(ai,2)}, {pi}, {v(dr,2)} op_sel:[0,{si},0] op_sel_hi:[1,{si},1] neg_lo:[1,0,0] neg_hi:[1,0,0]",
                    f"v_pk_fma_f32 {v(di,2)}, {v(ar,2)}, {pi}, {v(di,2)} op_sel:[0,{si},0] op_sel_hi:[1,{si},1]"]
        LL = [pkc(V1+8*b+2*h, V1+8*b+4+2*h, acc(0,b)+2*h, acc(0,5+b)+2*h, acc(1,b)+2*h, acc(1,5+b)+2*h, LAM4.r(b), LAM4.i(b))
              for b in range(5) for h in range(2)]
        sec += [x[i] for i in range(4) for x in LL]
        LL = [pkc(V1+8*b+2, V1+8*b+6, V1+8*b, V1+8*b+4, V1+8*b+2, V1+8*b+6, LAM2.r(b), LAM2.i(b)) for b in range(5)]
        sec += [x[i] for i in range(4) for x in LL]
        sec += self.cmul5(EE, LAM, C5(V1+2, V1+6, 8), C5(V1+3, V1+7, 8))
        self.sprinkle(sec, self.b2_take(int(self.P('e1', 8))))
        k(f"""ds_write_b128 v13, {v(136,4)} offset:{L_E}
        ds_write_b128 v13, {v(140,4)} offset:{L_E+16}
        ds_write_b64 v13, {v(144,2)} offset:{L_E+32}
        v_lshlrev_b32 v6, 4, v9
        s_lshl_b32 s{S_T}, s{S_J}, 4
        s_add_u32 s{S_T+1}, s{S_T}, s{S_I}
        s_mul_i32 s{S_T+1}, s{S_T+1}, 1280
        s_add_u32 s{S_T+1}, s{S_T+1}, {WS_AGG}
        v_mov_b32 v129, s{S_TAG}
        v_mov_b32 v131, s{S_TAG2}
        s_waitcnt lgkmcnt(0)
        s_barrier""")
        self.fine2()
        CH = 96; L8R, L8I = 248, 249
        ct = [k(f"ds_read_b64 {v(CH+2*q,2)}, v10 offset:{L_E+768*q}") for q in range(16)]
        for q in range(1, 16):
            k.wait_lg(ct[q])
            er, ei, pr, pi = CH+2*q, CH+2*q+1, CH+2*q-2, CH+2*q-1
            if q < 15:
                k(f"v_fmac_f32 v{er}, v{L8R}, v{pr}\nv_fmac_f32 v{ei}, v{L8R}, v{pi}\nv_fma_f32 v{er}, -v{L8I}, v{pi}, v{er}\nv_fmac_f32 v{ei}, v{L8I}, v{pr}")
            else:
                k(f"v_fmac_f32 v{er}, v{L8R}, v{pr}\nv_fmac_f32 v{ei}, v{L8R}, v{pi}\nv_fma_f32 v128, -v{L8I}, v{pi}, v{er}\nv_fma_f32 v130, v{L8I}, v{pr}, v{ei}")
        k(f"""s_mov_b64 exec, 0xfffff
        buffer_store_dwordx4 v[128:131], v6, {WS4}, s{S_T+1} offen sc1
        s_mov_b64 exec, -1""")
        self.stamp(3); self.fine2()
        KK, US, CS, VV, DD = C5(202), C5(212), C5(136), C5(146, 151), C5(156, 161)
        work = [f"ds_write_b64 v10, {v(CH+2*q,2)} offset:{L_E+768*q}" for q in range(1, 15)]
        work += [f"v_mul_u32_u24 v7, {RS}, v11", f"v_lshl_add_u32 v5, v{SEG}, 3, v7"]
        work += [f"ds_read_b64 {v(KK.r(b),2)}, v7 offset:{16*b*RS+168}" for b in range(5)]
        work += [f"ds_read_b64 {v(US.r(b),2)}, v5 offset:{16*b*RS}" for b in range(5)]
        GB = 96
        BZR, BZI, BLR, BLI, BQR, BQI, BT_ = 116, 117, 118, 119, 120, 121, 122
        MK = 36
        work += [f"v_min_u32 v8, 2, v8", f"v_mul_u32_u24 v7, 5, v8", f"v_mul_u32_u24 v5, 1280, v7", f"v_add_u32 v6, v6, v5",
                 f"s_mul_i32 s{S_T+4}, s{S_J}, {16*1280}", f"s_add_u32 s{S_T+4}, s{S_T+4}, {WS_AGG}", f"s_add_u32 s{S_T+5}, s{S_T+4}, 3840",
                 "s_waitcnt lgkmcnt(0)", "s_barrier",
                 f"ds_read_b128 {v(136,4)}, v13 offset:{L_E-768}", f"ds_read_b128 {v(140,4)}, v13 offset:{L_E-768+16}", f"ds_read_b64 {v(144,2)}, v13 offset:{L_E-768+32}",
                 f"v_accvgpr_read_b32 v{BZR}, a250", f"v_accvgpr_read_b32 v{BZI}, a251", f"v_accvgpr_read_b32 v{BLR}, a252", f"v_accvgpr_read_b32 v{BLI}, a253",
                 f"v_add_u32 v10, 5, v7", f"v_min_u32 v10, s{S_I}, v10", f"v_sub_u32 v10, s{S_I}, v10", f"v_lshlrev_b32 v10, 7, v10", f"v_cvt_f32_u32 v10, v10"]
        work += self.cpow(BQR, BQI, "v10", BZR, BZI, BT_)
        for q in range(5): work += [f"v_add_u32 v10, {q}, v7", f"v_cmp_gt_u32 {s(MK+2*q,2)}, s{S_I}, v10"]
        ku = []
        for b in range(5):
            (kr, sr), (ki, si) = bc(KK.r(b)), bc(KK.i(b))
            for h in range(4):
                ur = tok(2*h, b); ui = tok(2*h, 5+b); t_ = 166 + 4*(h % 2)
                ku += [f"v_pk_mul_f32 {v(t_,2)}, {v(ur,2)}, {kr} op_sel:[0,{sr}] op_sel_hi:[1,{sr}]",
                       f"v_pk_mul_f32 {v(t_+2,2)}, {v(ur,2)}, {ki} op_sel:[0,{si}] op_sel_hi:[1,{si}]",
                       f"v_pk_fma_f32 {v(ur,2)}, {v(ui,2)}, {ki}, {v(t_,2)} op_sel:[0,{si},0] op_sel_hi:[1,{si},1] neg_lo:[1,0,0] neg_hi:[1,0,0]",
                       f"v_pk_fma_f32 {v(ui,2)}, {v(ui,2)}, {kr}, {v(t_+2,2)} op_sel:[0,{sr},0] op_sel_hi:[1,{sr},1]"]
        work += ku
        self.sprinkle(work, self.b2_take(int(self.P('e2', 11))))
        self.fine2()
        def gloads():
            for q in range(5):
                t = k(f"buffer_load_dwordx4 {v(GB+4*q,4)}, v6, {WS4}, s{S_T+4+(q//3)} offen offset:{1280*(q%3)} sc1")
            return t
        gt = {}
        def gl_(): gt['t'] = gloads()
        w2 = ["s_waitcnt lgkmcnt(0)", f"s_cmp_eq_u32 s{S_W}, 0", "s_cselect_b64 exec, 0xffff, 0"]
        w2 += [f"v_mov_b32 v{136+q}, 0" for q in range(10)] + ["s_mov_b64 exec, -1"]
        w2 += self.cmul5(VV, KK, US) + self.cmul5(DD, KK, CS)
        w2 += [x.strip() for x in f"""v_and_b32 v5, 15, v9
        v_mul_u32_u24 v5, 160, v5
        v_lshrrev_b32 v4, 4, v9
        v_lshlrev_b32 v4, 5, v4
        v_lshl_add_u32 v4, v8, 3, v4
        v_add_u32 v5, v5, v4
        v_add_u32 v5, {L_C}, v5
        v_mul_u32_u24 v12, 160, v11
        v_add_u32 v12, {L_C}, v12
        v_mov_b32 v{BZR}, 0
        v_mov_b32 v{BZI}, 0
        s_mul_i32 s{S_T}, s{S_W}, {RED_W}
        s_add_u32 s{S_T}, s{S_T}, {LDS_RED}
        v_mul_u32_u24 v13, 80, v11
        v_lshl_add_u32 v13, v14, 4, v13
        v_add_u32 v13, s{S_T}, v13
        v_lshrrev_b32 v4, 2, v11
        v_lshl_add_u32 v4, v14, 3, v4
        v_mul_u32_u24 v4, 80, v4
        v_and_b32 v3, 3, v11
        v_lshl_add_u32 v4, v3, 3, v4
        v_add_u32 v4, s{S_T}, v4
        v_and_b32 v3, 1, v11
        v_lshlrev_b32 v3, 4, v3
        v_lshrrev_b32_e64 v3, v3, s{S_PAT}
        v_and_b32 v3, 1, v3
        v_mul_u32_u24 v3, 0x10001, v3
        s_lshl_b32 s{S_T}, s{S_I}, 3
        s_lshl_b32 s{S_T+1}, s{S_W}, 1
        s_add_u32 s{S_T}, s{S_T}, s{S_T+1}
        s_mul_i32 s{S_T}, s{S_T}, 40
        s_mul_i32 s{S_T+1}, s{S_J}, 5
        s_add_u32 s{S_T}, s{S_T}, s{S_T+1}
        s_lshl_b32 s{S_T}, s{S_T}, 10
        s_add_u32 s{S_T+8}, s{S_T}, {WS_A2[0]}
        s_add_u32 s{S_T+9}, s{S_T+8}, 4096
        s_add_u32 s{S_T+10}, s{S_T+8}, {40*1024}
        s_add_u32 s{S_T+11}, s{S_T+8}, {40*1024+4096}""".split("\n")]
        rq = self.resid_loads()
        gpos = int(self.P('gpos', 6))
        self.sprinkle(w2, rq[:gpos] + [gl_] + rq[gpos:] + self.b2_take(int(self.P('e3', 3))))
        gtok = gt['t']
        self.stamp(4); self.fine2()
        k.wait_vm(gtok)
        def check():
            for q in range(5):
                k(f"v_xor_b32 v10, s{S_TAG}, v{GB+4*q+1}")
                k(f"v_bitop3_b32 v10, s{S_TAG2}, v{GB+4*q+3}, v10 bitop3:0xbe")
                k(f"v_cmp_ne_u32 {s(S_T+2,2)}, 0, v10")
                k(f"s_and_b64 {'vcc' if q == 0 else s(S_T+2,2)}, {s(S_T+2,2)}, {s(MK+2*q,2)}")
                if q: k(f"s_or_b64 vcc, vcc, {s(S_T+2,2)}")
        def reload():
            gloads(); k("s_waitcnt vmcnt(0)")
        self.verify(check, reload, "pc")
        self.stamp(5); self.fine2()
        for q in range(5):
            er, ei = GB+4*q, GB+4*q+2
            k(f"""s_mov_b64 exec, {s(MK+2*q,2)}
            v_fmac_f32 v{er}, v{BLR}, v{BZR}
            v_fmac_f32 v{ei}, v{BLR}, v{BZI}
            v_fmac_f32 v{ei}, v{BLI}, v{BZR}
            v_fma_f32 v{BZR}, -v{BLI}, v{BZI}, v{er}
            v_mov_b32 v{BZI}, v{ei}""")
        k(f"""s_mov_b64 exec, -1
        v_mul_f32 v126, v{BQR}, v{BZR}
        v_mul_f32 v127, v{BQR}, v{BZI}
        v_fma_f32 v126, -v{BQI}, v{BZI}, v126
        v_fmac_f32 v127, v{BQI}, v{BZR}
        ds_write_b64 v5, v[126:127]
        s_waitcnt lgkmcnt(0)
        s_barrier""")
        CB = 96
        ct = []
        for b in range(5):
            k(f"ds_read_b128 {v(CB+6*b,4)}, v12 offset:{32*b}")
            ct.append(k(f"ds_read_b64 {v(CB+6*b+4,2)}, v12 offset:{32*b+16}"))
        for b in range(5):
            k.wait_lg(ct[b])
            k(f"v_pk_add_f32 {v(CB+6*b,2)}, {v(CB+6*b,2)}, {v(CB+6*b+2,2)}")
        for b in range(5):
            k(f"v_pk_add_f32 {v(CB+6*b,2)}, {v(CB+6*b,2)}, {v(CB+6*b+4,2)}")
        self.sprinkle(self.cmul5(DD, VV, C5(CB, CB+1, 6), DD), self.b2_take(int(self.P('e4', 2))))
        self.fine2()
        PK = 96
        frg = lambda b, tt2: (136 + 4*(2*b + tt2)) if 2*b + tt2 < 5 else (202 + 4*(2*b + tt2 - 5))
        wt = {}; rt = {}
        def scan(bs):
            L = []
            for r in range(8):
                pr = lambda b: DD.r(b) if r == 0 else tok(r-1, b)
                pi = lambda b: DD.i(b) if r == 0 else tok(r-1, 5+b)
                for b in bs: L += [f"v_fmac_f32 v{tok(r,b)}, v{LAM.r(b)}, v{pr(b)}", f"v_fmac_f32 v{tok(r,5+b)}, v{LAM.r(b)}, v{pi(b)}"]
                for b in bs: L += [f"v_fma_f32 v{tok(r,b)}, -v{LAM.i(b)}, v{pi(b)}, v{tok(r,b)}", f"v_fmac_f32 v{tok(r,5+b)}, v{LAM.i(b)}, v{pr(b)}"]
            for b in bs:
                for comp in range(2):
                    d = PK + 4*(2*b + comp); ng = "-" if comp else ""
                    L += [f"v_cvt_pk_bf16_f32 v{d+h}, {ng}v{tok(2*h,5*comp+b)}, {ng}v{tok(2*h+1,5*comp+b)}" for h in range(4)]
                    L += [f"v_and_or_b32 v{d+h}, v{d+h}, s{S_NM}, v3" for h in range(4)]
                    def f(b=b, d=d, comp=comp): wt[b] = k(f"ds_write_b128 v13, {v(d,4)} offset:{(32*b+16*comp)*80}")
                    L.append(f)
            return L
        def outq(bs):
            L = []
            for b in bs:
                def trr(b=b):
                    k.wait_lg(wt[b])
                    for tt2 in range(2):
                        d = frg(b, tt2)
                        k(f"ds_read_b64_tr_b16 {v(d,2)}, v4 offset:{(32*b)*80+32*tt2}")
                        rt[b, tt2] = k(f"ds_read_b64_tr_b16 {v(d+2,2)}, v4 offset:{(32*b+4)*80+32*tt2}")
                L.append(trr)
            for b in bs:
                for tt2 in range(2):
                    def sto(b=b, tt2=tt2):
                        k.wait_lg(rt[b, tt2])
                        so = S_T + 8 + 2*tt2 + (1 if b == 4 else 0)
                        self.last_st = k(f"buffer_store_dwordx4 {v(frg(b,tt2),4)}, v{LV}, {WS4}, s{so} offen offset:{1024*(b%4)} sc1")
                    L.append(sto)
            return L
        self.sprinkle(scan([0, 1]), self.b2_take(int(self.P('e5', 4))))
        self.sprinkle(scan([2, 3]), outq([0, 1]), lead=4)
        self.sprinkle(scan([4]), outq([2, 3]), lead=4)
        self.emit(outq([4]))
        self.stamp(6); self.fine2()
        self.resid_compute(L_AB)
        self.fine2()
        self.p2_addr(0)
        k(f"s_add_u32 s{S_T}, s{S_FLAG}, {WS_FA}")
        k.wait_vm(self.last_st)
        self.set_flag(S_T, 13)
        self.stamp(7)
        self.phase2(0)

    def resid_loads(self):
        k = self.k
        self.srd(SRD_T1, 8, 1280)
        self.srd(SRD_T2, 13, 1280)
        k(f"""s_lshl_b32 s{S_T+12}, s{S_I}, 7
        s_lshl_b32 s{S_T+13}, s{S_W}, 4
        s_add_u32 s{S_T+12}, s{S_T+12}, s{S_T+13}
        s_mul_i32 s{S_T+12}, s{S_T+12}, 1280
        s_mul_i32 s{S_T+14}, s{S_J}, 160
        s_add_u32 s{S_T+12}, s{S_T+12}, s{S_T+14}
        s_mul_i32 s{S_T+13}, s{S_W}, 5120
        s_add_u32 s{S_T+13}, s{S_T+13}, {L_R}""")
        L = []
        for it in range(5):
            def f(it=it):
                k(f"""v_add_u32 v1, {64*it}, v0
                v_mul_u32_u24 v2, 6554, v1
                v_lshrrev_b32 v2, 16, v2             ; row (0..31)
                v_mul_u32_u24 v7, 10, v2
                v_sub_u32 v1, v1, v7
                v_lshrrev_b32 v7, 4, v2
                v_mul_u32_u24 v7, 48, v7
                v_add_u32 v2, v2, v7
                v_mul_u32_u24 v2, 1280, v2
                v_lshl_add_u32 v1, v1, 4, v2
                s_add_u32 m0, s{S_T+13}, {1024*it}
                buffer_load_dwordx4 v1, {s(SRD_X,4)}, s{S_T+12} offen lds""")
            L.append(f)
        def g():
            k(f"""v_lshlrev_b32 v1, 2, v0
            s_add_u32 m0, s{S_T+13}, 20480
            buffer_load_dword v1, {s(SRD_T1,4)}, s{S_T+14} offen lds
            s_add_u32 m0, s{S_T+13}, {20480+256}""")
            self.rl_tok = k(f"buffer_load_dword v1, {s(SRD_T2,4)}, s{S_T+14} offen lds")
        return L + [g]
    def resid_compute(self, L_AB):
        k = self.k
        ST, XB, DB, BB, T = 16, 36, 56, 66, 166
        k(f"s_lshl_b32 s{S_T+4}, s{S_W}, 6\ns_add_u32 s{S_T+4}, s{S_T+4}, {L_AB}")
        k.wait_vm(self.rl_tok)
        for it in range(5):
            k(f"v_add_u32 v1, {64*it}, v0")
            self.emit(self.div20(2, 7, 1))
            k(f"""v_lshl_add_u32 v1, v2, 2, s{S_T+4}
            v_lshl_add_u32 v7, v7, 3, s{S_T+13}
            v_mad_u32_u24 v2, v2, s{S_T+15}, v7""".replace(f"v_mad_u32_u24 v2, v2, s{S_T+15}, v7", f"v_mul_u32_u24 v2, 160, v2\nv_add_u32 v2, v2, v7"))
            k(f"""ds_read2st64_b32 {v(ST+2*it,2)}, v1 offset0:0 offset1:2
            ds_read2st64_b32 {v(ST+10+2*it,2)}, v1 offset0:1 offset1:3
            ds_read_b64 {v(XB+2*it,2)}, v2
            ds_read_b64 {v(XB+10+2*it,2)}, v2 offset:2560
            ds_read_b64 {v(DB+2*it,2)}, v7 offset:20480
            ds_read_b64 {v(BB+2*it,2)}, v7 offset:{20480+256}""")
        k(f"v_add_u32 v10, s{S_T+13}, v{self.LV}")
        k("s_waitcnt lgkmcnt(0)")
        for it in range(5):
            dd, bb = [76, 100][it % 2], [76, 100][it % 2] + 4
            for (src, dst) in ((DB+2*it, dd), (BB+2*it, bb)):
                for h in range(2):
                    k(f"v_lshlrev_b32 v{dst+2*h}, 16, v{src+h}\nv_and_b32 v{dst+2*h+1}, 0xffff0000, v{src+h}")
            for hf in range(2):
                xx = dd + 8 + 8*hf
                for h in range(2):
                    k(f"v_lshlrev_b32 v{xx+2*h}, 16, v{XB+10*hf+2*it+h}\nv_and_b32 v{xx+2*h+1}, 0xffff0000, v{XB+10*hf+2*it+h}")
            for hf in range(2):
                xx = dd + 8 + 8*hf; rr = xx + 4; st = ST + 10*hf + 2*it
                for h in range(2):
                    k(f"""v_pk_add_f32 {v(rr+2*h,2)}, {v(bb+2*h,2)}, {v(xx+2*h,2)}
                    v_pk_fma_f32 {v(xx+2*h,2)}, {v(xx+2*h,2)}, {v(st,2)}, {v(st,2)} op_sel:[0,0,1] op_sel_hi:[1,0,1]""")
            for hf in range(2):
                xx = dd + 8 + 8*hf; rr = xx + 4
                for h in range(2):
                    k(f"v_pk_fma_f32 {v(rr+2*h,2)}, {v(xx+2*h,2)}, {v(dd+2*h,2)}, {v(rr+2*h,2)}")
                k(f"ds_write_b128 v10, {v(rr,4)} offset:{hf*20480+it*1024}")

    def mlp(self):
        k = self.k
        ACC = 16; WSA = 112; ONE = 124; FR = [128, 148]
        B1R = 126; GS = 168
        XE, XO, W0 = 3, 2, 4
        RXB, AEB, AOB = 176, 180, 184
        PV = self.PV; LV = self.LV
        STGS = 40960
        S_MH, S_NH = 42, 43
        L_WS = 110592
        k.label("L_mlp")
        k.c("================ MLP side, phase 1")
        self.stamp(0); self.nf3 = 0; self.fine3()
        self.marks = {}
        S_RSROW, SW0, S_GT, D1, S_RSDST, S_FB = S_T+5, S_T+6, S_T+9, S_T+10, S_T+8, S_T+14
        k(f"""v_xor_b32 v{XO}, 64, v{XE}
        s_add_u32 s{S_XO+1}, s{S_XO}, {8*1280 - 1024}
        s_add_u32 s{S_XO+2}, s{S_XO}, {16*1280 - 2048}
        s_add_u32 s{S_XO+3}, s{S_XO}, {24*1280 - 3072}""")
        stage_tok = {}; stage_cnt = {}
        self.dma_reset(); self.has_w = True
        self.rot_setup([XE, XO], True)
        WSO = [S_WO, S_WO, S_WO, S_WO+1, S_WO+4, S_WO+4]
        def dma_list(t):
            base = (t % 4)*STGS
            L = []
            def mk(ld):
                def f():
                    stage_tok[t] = k(ld); stage_cnt[t] = stage_cnt.get(t, 0) + 1
                return f
            for e in range(4):
                vr = XE if e % 2 == 0 else XO
                L.append(self.dma((S_MX, base + 24576), mk(f"buffer_load_dwordx4 v{vr}, {s(SRD_X,4)}, s{S_XO+e} offen offset:{e*1024} lds"), vr, t, 128))
            for n in range(6):
                L.append(self.dma((S_MW, base + (n//4)*4096), mk(f"buffer_load_dwordx4 v{W0+n%3}, {s(SRD_W,4)}, s{WSO[n]} offen offset:{(n%4)*1024} lds"), W0+n%3, t, 64*3072))
            return L
        d0 = dma_list(0)
        for p in d0[:4]: self.emit(p)
        self.srd(SRD_W, 10, 1966080)
        k(f"""s_mul_i32 s{S_MW}, s{S_W}, 6144
        s_mul_i32 s{S_WO}, s{S_W}, {16*3072}
        s_mul_i32 s{S_T}, s{S_J}, 384
        s_add_u32 s{S_WO}, s{S_WO}, s{S_T}
        s_add_u32 s{S_WO+1}, s{S_WO}, {24576 - 3072}
        s_add_u32 s{S_WO+4}, s{S_WO}, {24576 + 1024}""")
        for n in range(3):
            k(f"""v_add_u32 v10, {64*n}, v0
            v_mul_u32_u24 v12, 2731, v10
            v_lshrrev_b32 v12, 16, v12
            v_mul_u32_u24 v13, 24, v12
            v_sub_u32 v13, v10, v13
            v_bfe_u32 v40, v12, 1, 1
            v_lshlrev_b32 v40, 2, v40
            v_xor_b32 v13, v13, v40
            v_mul_u32_u24 v12, 3072, v12
            v_lshl_add_u32 v{W0+n}, v13, 4, v12""")
            if n: k(f"v_subrev_u32 v{W0+n}, {1024*n}, v{W0+n}")
            k(f"v_add_u32 v{W0+n}, s{S_ST2}, v{W0+n}")
            self.emit(d0[4+n])
        d1 = dma_list(1)
        R0, A0, T0 = 200, 220, 224
        SCR = 3*STGS + 24576
        rs = self.rowstat_loads(SRD_X, S_RSROW, 8, R0)
        def setup(k):
            k(f"""s_lshr_b32 s{S_MH}, s{S_W}, 1
            s_and_b32 s{S_NH}, s{S_W}, 1
            s_lshl_b32 s{S_T+2}, s{S_W}, 2
            s_lshl_b32 s{S_T}, s{S_I}, 7
            s_lshl_b32 s{S_T+1}, s{S_J}, 4
            s_add_u32 s{S_T}, s{S_T}, s{S_T+1}
            s_add_u32 s{S_RSROW}, s{S_T}, s{S_T+2}
            s_lshl_b32 s{S_RSDST}, s{S_RSROW}, 4
            s_add_u32 s{S_RSDST}, s{S_RSDST}, {WS_STG}
            s_mov_b32 s{S_T+1}, 3""")

            self.rowstat_setup(S_RSROW, S_T+1, 8, 9)

            self.srd(SRD_T2, 12, 1966080)
            self.unit_decode(480, S_FB)

            k(f"""s_mul_i32 s{S_T+1}, s{S_T+2}, {32*1280}
            s_lshl_b32 s{S_T+3}, s{S_T}, 7
            s_add_u32 s{SW0}, s{S_T+1}, s{S_T+3}
            s_mul_i32 s{S_T+3}, s{S_T}, {4*48}
            s_add_u32 s{S_T+3}, s{S_T+3}, s{S_T+2}
            s_lshl_b32 s{S_T+3}, s{S_T+3}, 10
            s_add_u32 s{D1}, s{S_T+3}, {WS_B2S[1]}
            s_lshl_b32 s{S_FB}, s{S_FB}, 6
            s_add_u32 s{S_FB}, s{S_FB}, {WS_FB + 512*FLS}
            s_lshl_b32 s{S_GT}, s{S_I}, 11
            s_lshl_b32 s{S_T}, s{S_MH}, 10
            s_add_u32 s{S_GT}, s{S_GT}, s{S_T}
            s_add_u32 s{S_GT}, s{S_GT}, {WS_STG}
            v_and_b32 v11, 31, v0
            v_lshrrev_b32 v12, 5, v0
            v_bfe_u32 v13, v0, 1, 3
            v_xor_b32 v13, v13, v12
            v_lshlrev_b32 v13, 4, v13
            v_lshl_add_u32 v13, v11, 7, v13
            s_lshl_b32 s{S_T}, s{S_MH}, 13
            s_add_u32 s{S_T}, s{S_T}, 24576
            v_add_u32 v10, s{S_T}, v13
            v_bfe_u32 v13, v0, 2, 2
            v_lshl_add_u32 v40, v12, 3, v13
            v_mul_u32_u24 v40, 384, v40
            v_bfe_u32 v15, v0, 4, 1
            v_lshl_add_u32 v40, v15, 5, v40
            v_and_b32 v41, 3, v0
            v_lshl_add_u32 v40, v41, 3, v40
            v_lshlrev_b32 v7, 4, v12
            v_lshl_add_u32 v7, v15, 2, v7
            v_add_u32 v7, v7, v13
            v_lshlrev_b32 v7, 7, v7
            v_lshl_add_u32 v7, v41, 3, v7
            v_add_u32 v7, s{S_MX}, v7
            v_add_u32 v7, {SCR}, v7
            s_mul_i32 s{S_T}, s{S_NH}, 192
            v_add_u32 v40, s{S_T}, v40
            v_bfe_u32 v13, v0, 3, 1
            v_lshlrev_b32 v13, 6, v13
            s_cmp_eq_u32 s{S_NH}, 0
            s_cselect_b32 s{S_T}, 1, -1
            v_mul_lo_u32 v13, v13, s{S_T}
            v_add_u32 v15, v40, v13
            v_sub_u32 v40, v40, v13
            v_mov_b32 v{ONE}, 0x3f803f80
            v_mov_b32 v{ONE+1}, 0x3f803f80""")
            for ls in range(4):
                k(f"""s_lshl_b32 s{S_T}, s{S_MH}, 1
                s_add_u32 s{S_T}, s{S_T}, {ls}
                s_and_b32 s{S_T}, s{S_T}, 3
                s_lshl_b32 s{S_T+1}, s{S_T}, 5
                s_mul_i32 s{S_T}, s{S_T}, 6144
                v_xor_b32 v{RXB+ls}, s{S_T+1}, v10
                v_add_u32 v{AEB+ls}, s{S_T}, v15
                v_add_u32 v{AOB+ls}, s{S_T}, v40""")
            for q in range(12): k(f"v_add_u32 v{RXB+12+q}, {2*STGS}, v{RXB+q}")
            k(f"""v_lshlrev_b32 v10, 4, v11
            v_min_u32 v11, 47, v0
            s_mul_i32 s{S_T}, s{S_J}, 192
            s_mul_i32 s{S_T+1}, s{S_W}, 48
            s_add_u32 s{S_T}, s{S_T}, s{S_T+1}
            v_add_lshl_u32 v12, v11, s{S_T}, 1
            v_add_lshl_u32 v11, v11, s{S_T+1}, 2
            v_add_u32 v11, {L_WS}, v11""")
            self.b2v = self.b2_setup(1)
        su = self.capture(setup)
        self.sprinkle(su[:20], [(lambda p=p: self.emit(p)) for p in d0[7:]])
        self.sprinkle(su[20:], [(lambda p=p: self.emit(p)) for p in d1[:2]] + rs + [(lambda p=p: self.emit(p)) for p in d1[2:4]])
        b2v = self.b2v
        tk = {}
        swq = []
        for e in range(4):
            def f(e=e):
                k(f"s_add_u32 s{S_T+2}, s{SW0}, {e*8*1280}")
                tk['d1'] = k(f"buffer_load_dwordx4 v{PV}, {s(SRD_T2,4)}, s{S_T+2} offen lds")
            swq.append(self.dma((S_MX, SCR + e*1024), f))
        self.make_tag()
        rtok = {}
        def mkreads(n):
            st = FR[n % 2]; ls = n % 4; sl = (n//4) % 4; o = (sl % 2)*STGS; h_ = 12*(sl//2)
            ra, ae, ao = RXB+ls+h_, AEB+ls+h_, AOB+ls+h_
            R = [f"ds_read_b128 {v(st,4)}, v{ra} offset:{o}",
                 f"ds_read_b64_tr_b16 {v(st+8,2)}, v{ae} offset:{o}", f"ds_read_b64_tr_b16 {v(st+10,2)}, v{ae} offset:{o+1536}",
                 f"ds_read_b128 {v(st+4,4)}, v{ra} offset:{o+4096}",
                 f"ds_read_b64_tr_b16 {v(st+12,2)}, v{ao} offset:{o+64}", f"ds_read_b64_tr_b16 {v(st+14,2)}, v{ao} offset:{o+1600}",
                 f"ds_read_b64_tr_b16 {v(st+16,2)}, v{ae} offset:{o+128}", f"ds_read_b64_tr_b16 {v(st+18,2)}, v{ae} offset:{o+1664}"]
            L = []
            for i, r in enumerate(R):
                def f(i=i, r=r): rtok[n, i] = k(r)
                L.append(f)
            return L
        self.fine3()
        k.wait_vm(stage_tok[0])
        self.fine3()
        k("s_barrier")
        self.fine3()
        self.stamp(1)
        k.label("L_mlp_code")
        self.emit(mkreads(0))
        NSW, NFLAG, NPOLL, NCHK = [int(self.P(a_, b_)) for a_, b_ in (('mnsw', 4), ('mnfl', 12), ('mnpo', 21), ('mnck', 26))]
        mq = [[0, 1, p_, l_] for p_, l_ in d1[4:] + swq]
        def q_stage(t):
            for j_, (p_, l_) in enumerate(dma_list(t)): mq.append([max(4*(t-3), NSW+2 if (t == 3 and j_ < 4) else 0), 1, p_, l_])
        def sw_store(cc):
            def f():
                k.wait_lg(tk['r1'])
                k(f"s_add_u32 s{S_T}, s{D1}, {cc*48*1024}")
                tk['s1'] = k(f"buffer_store_dwordx4 {a(240+4*cc,4)}, v{LV}, {WS4}, s{S_T} offen sc1")
            return f
        def b1l(): tk['b1'] = k(f"global_load_ushort v{B1R}, v12, {ptr(11)}")
        def gs1(): k(f"buffer_load_dwordx4 {v(GS,4)}, v10, {WS4}, s{S_GT} offen sc1")
        def gs2(): tk['gs'] = k(f"buffer_load_dwordx4 {v(GS+4,4)}, v10, {WS4}, s{S_GT} offen offset:512 sc1")
        q_stage(2)
        for cc in range(4): mq.append([NSW+1, 2, None, sw_store(cc)])
        q_stage(3); q_stage(4); mq.append([0, 0.5, None, b1l])
        for t in range(5, 10): q_stage(t)
        late = {NPOLL: [[NPOLL, 0.5, None, self.b2_poll]], 30: [[30, 1, None, gs1], [30, 1, None, gs2]]}
        def swr():
            k.wait_vm(tk['d1'])
            for cc in range(4):
                for e in range(2):
                    tk['r1'] = k(f"ds_read_b64_tr_b16 {a(240+4*cc+2*e,2)}, v7 offset:{e*1024+cc*32}")
        def flg():
            k.wait_vm(tk['s1']); self.set_flag(S_FB, 13)
        hooks = {NSW: swr, NFLAG: flg}
        fq = [('at', 1)] + self.rowstat_fill(R0, A0, T0, 9, S_RSDST) + [('mark', 'rs')] + b2v + [('mark', 'b2s')]
        fq += [('at', 28), lambda: k.wait_vm(tk['b1']), f"v_lshlrev_b32 v{B1R}, 16, v{B1R}", f"ds_write_b32 v11, v{B1R} offset:1536"]
        credit = 0.0; b2on = False
        for n in range(40):
            st = FR[n % 2]
            k.c(f"---- mlp k-step {n}")
            if n % 2 == 0: self.fine(16 + n//2)
            if n == NCHK:
                self.b2_check(); b2on = True
            if n == NSW + 2: k.wait_lg(tk['r1'])
            mq[0:0] = late.get(n, [])
            mem = []
            mmax = int(self.P('mtail', 4) + (0.5 if n % 4 < 2 else 0)) if n >= 28 else int(self.P('mmax', 5)) if n < self.P('mfast', 4) else int(self.P('mcap', 3)) + (1 if n % 4 < 2 and self.P('mcap', 3) % 1 else 0)
            while len(mem) < mmax:
                if mq and mq[0][0] <= n: it_ = mq.pop(0)
                elif b2on and self.b2q and len(mem) < self.P('mb2', 5) + (0.5 if n % 4 < 2 else -0.5): it_ = [n, 1, None, self.b2q.pop(0)]
                else: break
                mem.append(it_)
            rd = mkreads(n+1) if n + 1 < 40 else []
            small = []
            if n % 4 < 2:
                for hh in range(2):
                    for T in range(3):
                        c_ = "0" if (n == 0 and hh == 0) else v(WSA+4*T, 4)
                        small.append(f"v_mfma_f32_4x4x4_16b_bf16 {v(WSA+4*T,4)}, {v(ONE,2)}, {v(st+8+4*T+2*hh,2)}, {c_}")
            bar = n % 4 == 3 and n + 1 < 40
            cnt = [0, 3, 3, 2, 0, 0] if bar else [3, 3, 2, 0, 0, 0]
            pref = [4, 0, 5, 3, 2, 1] if bar else [4, 5, 2, 3, 0, 1]
            nper_ = [0]*6
            for j_ in range(len(mem)): nper_[pref[j_ % 6]] += 1
            dep = {0: 2, 1: 3, 2: 5, 4: 7}
            for i in range(6):
                T3, mt = i//2, i % 2
                if nper_[i] and mem[0][2]: mem[0][2]()
                if i in dep: k.wait_lg(rtok[n, dep[i]])
                d = ACC + 16*i
                k(f"v_mfma_f32_32x32x16_bf16 {v(d,16)}, {v(st+8+4*T3,4)}, {v(st+4*mt,4)}, {'0' if n == 0 else v(d,16)}")
                n0 = len(k.ins)
                for j_ in range(nper_[i]):
                    it_ = mem.pop(0)
                    if j_ and it_[2]: it_[2]()
                    it_[3]()
                if bar and i == 1:
                    assert stage_cnt[(n+1)//4] == 10
                    k.wait_both(stage_tok[(n+1)//4], k.lg_issued)
                    k("s_barrier")
                for _ in range(cnt[i]):
                    if rd: rd.pop(0)()
                self.emit(self.take_fill(fq, n, int(self.P('mden', 5)) - (len(k.ins) - n0)))
            if n in hooks: hooks[n]()
            self.emit(small)
            assert not rd and not mem
        assert not mq and not fq and self.marks['b2s'] < NPOLL
        self.info += f" mlp b2 left {len(self.b2q)} marks {self.marks}"
        k.c('loop end')
        self.stamp(2)
        if self.early_stop("loop"): return
        k.c("================ MLP epilogue")
        self.nf2 = 0
        TM = 128
        AT, BT = 176, 180
        for T in range(3): k(f"v_permlane32_swap_b32 v{WSA+4*T}, v{WSA+4*T+1}")
        k(f"""v_and_b32 v11, 31, v0
        s_mul_i32 s{S_T}, s{S_MH}, 768
        s_mul_i32 s{S_T+1}, s{S_NH}, 384
        s_add_u32 s{S_T}, s{S_T}, s{S_T+1}
        v_lshl_add_u32 v12, v11, 2, s{S_T}
        v_add_u32 v12, {L_WS}, v12""")
        for T in range(3):
            k(f"v_add_f32 v{WSA+4*T}, v{WSA+4*T}, v{WSA+4*T+1}\nds_write_b32 v12, v{WSA+4*T} offset:{128*T}")
        k.wait_vm(tk['gs'])
        def check():
            k(f"""v_xor_b32 v13, s{S_TAG}, v{GS+1}
            v_bitop3_b32 v13, s{S_TAG2}, v{GS+3}, v13 bitop3:0xbe
            v_bitop3_b32 v13, s{S_TAG}, v{GS+5}, v13 bitop3:0xbe
            v_bitop3_b32 v13, s{S_TAG2}, v{GS+7}, v13 bitop3:0xbe
            v_cmp_ne_u32 vcc, 0, v13""")
        def rl():
            k(f"""buffer_load_dwordx4 {v(GS,4)}, v10, {WS4}, s{S_GT} offen sc1
            buffer_load_dwordx4 {v(GS+4,4)}, v10, {WS4}, s{S_GT} offen offset:512 sc1
            s_waitcnt vmcnt(0)""")
        self.verify(check, rl, "ps")
        c1 = -2*LOG2E*math.sqrt(2/math.pi)
        k(f"s_mov_b32 s{S_T}, {fbits(1.0/640)}")
        seqs = []
        for mt in range(2):
            g_ = GS + 4*mt; t_ = TM + mt
            seqs.append([f"v_mul_f32 v{g_}, s{S_T}, v{g_}", f"v_mul_f32 v{t_}, v{g_}, v{g_}", f"v_fma_f32 v{g_+2}, v{g_+2}, s{S_T}, -v{t_}",
                         f"v_max_f32 v{g_+2}, 0, v{g_+2}", f"v_add_f32 v{t_}, {fbits(EPS)}, v{g_+2}", f"v_rsq_f32 v{g_+1}, v{t_}",
                         f"v_mul_f32 v{t_}, v{g_+1}, v{g_+1}", f"v_mul_f32 v{t_}, v{t_}, v{g_+2}", f"v_add_f32 v{t_}, {fbits(EPS)}, v{t_}",
                         f"v_rsq_f32 v{t_}, v{t_}", f"v_mul_f32 v{AT+2*mt}, v{t_}, v{g_+1}", f"v_mul_f32_e64 v{BT+2*mt}, v{g_}, -v{AT+2*mt}"])
        for x, y in zip(*seqs): k(x); k(y)
        C1 = 184; PATV = 15
        k(f"""v_lshrrev_b32 v14, 5, v0
        s_mul_i32 s{S_T}, s{S_NH}, 384
        v_lshl_add_u32 v12, v14, 4, s{S_T}
        v_add_u32 v12, {L_WS}, v12
        v_lshrrev_b32 v13, 4, v11
        v_mul_u32_u24 v13, {48*1024}, v13
        v_and_b32 v15, 15, v0
        v_lshl_add_u32 v13, v15, 4, v13
        v_lshl_add_u32 v{PV}, v14, 8, v13
        s_lshl_b32 s{S_T}, s{S_I}, 3
        s_lshl_b32 s{S_T+1}, s{S_MH}, 2
        s_add_u32 s{S_T}, s{S_T}, s{S_T+1}
        s_mul_i32 s{S_T}, s{S_T}, 48
        s_mul_i32 s{S_T+1}, s{S_J}, 6
        s_add_u32 s{S_T}, s{S_T}, s{S_T+1}
        s_mul_i32 s{S_T+1}, s{S_NH}, 3
        s_add_u32 s{S_T}, s{S_T}, s{S_T+1}
        s_lshl_b32 s{S_T}, s{S_T}, 10
        s_add_u32 s{S_T+6}, s{S_T}, {WS_A2[1]}
        s_add_u32 s{S_T+7}, s{S_T+6}, {96*1024}
        s_mov_b32 s{S_T+4}, {fbits(c1*0.044715)}
        s_mov_b32 s{S_T+5}, s{S_T+4}
        v_mov_b32 v{C1}, {fbits(c1)}
        v_mov_b32 v{C1+1}, {fbits(c1)}
        v_mov_b32 v{PATV}, s{S_PAT}
        s_waitcnt lgkmcnt(0)
        s_barrier""")
        self.stamp(3)
        WB = [112, 186]
        Q = 160; PKO = [168, 172, 234, 238]; TT = 242
        def wreads(T3):
            b = WB[T3 % 2]
            return [f"ds_read_b128 {v(b+16*a_+4*q4,4)}, v12 offset:{768*a_+(32*T3+8*q4)*4}" for q4 in range(4) for a_ in range(3)]
        self.emit(wreads(0))
        self.p2_addr(1)
        held = []
        for Tl in range(6):
            T3, mt = Tl//2, Tl % 2
            self.fine2()
            b = WB[T3 % 2]
            fill = []; body = []
            if mt == 0:
                k("s_waitcnt lgkmcnt(0)")
                body += [f"v_pk_add_f32 {v(b+2*p,2)}, {v(b+2*p,2)}, {v(b+16+2*p,2)}" for p in range(8)]
                if T3 < 2: fill = [lambda x=x: k(x) for x in wreads(T3+1)]
            for c in range(2):
                po = PKO[(2*Tl + c) % 4]; prs = range(4*c, 4*c+4)
                z = lambda p: ACC + 16*Tl + 2*p
                q = lambda p: Q + 2*(p % 4)
                body += [f"v_pk_fma_f32 {v(TT+2*(p%4),2)}, {v(BT+2*mt,2)}, {v(b+2*p,2)}, {v(b+32+2*p,2)} op_sel_hi:[0,1,1]" for p in prs]
                body += [f"v_pk_fma_f32 {v(z(p),2)}, {v(AT+2*mt,2)}, {v(z(p),2)}, {v(TT+2*(p%4),2)} op_sel_hi:[0,1,1]" for p in prs]
                body += [f"v_pk_mul_f32 {v(q(p),2)}, {v(z(p),2)}, {v(z(p),2)}" for p in prs]
                body += [f"v_pk_fma_f32 {v(q(p),2)}, {v(q(p),2)}, {s(S_T+4,2)}, {v(C1,2)}" for p in prs]
                body += [f"v_pk_mul_f32 {v(q(p),2)}, {v(q(p),2)}, {v(z(p),2)}" for p in prs]
                for p in prs: body += [f"v_exp_f32 v{q(p)}, v{q(p)}", f"v_exp_f32 v{q(p)+1}, v{q(p)+1}"]
                body += [f"v_pk_add_f32 {v(q(p),2)}, {v(q(p),2)}, 1.0 op_sel_hi:[1,0]" for p in prs]
                for p in prs: body += [f"v_rcp_f32 v{q(p)}, v{q(p)}", f"v_rcp_f32 v{q(p)+1}, v{q(p)+1}"]
                body += [f"v_pk_mul_f32 {v(q(p),2)}, {v(q(p),2)}, {v(z(p),2)}" for p in prs]
                body += [f"v_cvt_pk_bf16_f32 v{po+p%4}, v{q(p)}, v{q(p)+1}" for p in prs]
                body += [f"v_and_or_b32 v{po+p%4}, v{po+p%4}, s{S_NM}, v{PATV}" for p in prs]
                def st_(T3=T3, mt=mt, c=c, po=po):
                    self.last_st = k(f"buffer_store_dwordx4 {v(po,4)}, v{PV}, {WS4}, s{S_T+6+mt} offen offset:{T3*1024+c*512} sc1")
                if Tl < 4: body.append(st_)
                else: held.append(st_)
            if Tl >= 4: fill = [self.p2_aload]*8
            if Tl < 4: fill = fill + self.b2_take(min(int(self.P('g1', 4)), -(-len(self.b2q)//(4 - Tl))))
            self.sprinkle(body, fill, lead=8)
        self.fine2()
        self.emit(held)
        self.fine2()
        self.stamp(6)
        self.phase2(1)

    RING, NR, ACS, ACO = 16, 19, 92, 172
    def p2_addr(self, side):
        k = self.k
        S = [40, 48][side]; KS = [10, 12][side]
        self.side = side; self.KS = KS
        hfS = side; hfO = 1 - side
        k(f"""s_mul_i32 s45, s{S_I}, {8*S}
        s_mul_i32 s46, s{S_W}, {KS}
        s_add_u32 s45, s45, s46
        s_lshl_b32 s45, s45, 10
        s_add_u32 s45, s45, {WS_A2[side]}""")
        for t4 in range(4):
            k(f"s_add_u32 s{36+t4}, s45, {(4*hfS+t4)*S*1024}")
            k(f"s_add_u32 s{40+t4}, s45, {(4*hfO+t4)*S*1024}")
        self.seq = [(0, ss, t4) for ss in self.order for t4 in range(4)] + [(1, ss, t4) for t4 in range(4) for ss in range(KS)]
        self.atok = {}; self.areg = {}; self.nxt = 0
        self.free_ring = [self.RING + 4*i for i in range(self.NR)]
        self.free_big = [self.ACO + 4*i for i in range(20)] if side == 0 else []
    def a_instr(self, idx):
        p, ss, t4 = self.seq[idx]
        so = 36 + 4*p + t4; pre = ""
        if ss >= 4:
            pre = f"s_add_u32 s45, s{so}, {(ss//4)*4096}\n"; so = 45
        return pre + f"buffer_load_dwordx4 {v(self.areg[idx],4)}, v{self.LV}, {WS4}, s{so} offen offset:{(ss%4)*1024} sc1"
    def p2_can(self):
        if self.nxt >= len(self.seq): return False
        if self.seq[self.nxt][0] == 0 and self.free_big: return True
        return bool(self.free_ring)
    def p2_aload(self):
        idx = self.nxt
        if self.seq[idx][0] == 0 and self.free_big: r = self.free_big.pop(0)
        else: r = self.free_ring.pop(0)
        self.areg[idx] = r
        self.atok[idx] = self.k(self.a_instr(idx))
        self.nxt += 1

    def phase2(self, side):
        k = self.k
        if self.early_stop("p1"): return
        KS = self.KS; nper = 4*KS
        ACS, ACO, LV = self.ACS, self.ACO, self.LV
        hfS = side; hfO = 1 - side
        RW, RR, OO, VA, FV, T1 = 5, 6, 11, 1, 2, 253
        k.c(f"================ phase 2 (side {side})")
        if side == 1: self.free_big = [self.ACO + 4*i for i in range(20)]
        while self.nxt < (20 if side == 0 else 16): self.p2_aload()
        self.stamp(8)
        def vcheck(j, lst):
            regs = [self.areg[4*j+t]+e for t in range(4) for e in range(4)]
            L = [f"v_xor_b32 v{VA}, s{S_PAT}, v{regs[0]}"]
            L += [f"v_bitop3_b32 v{VA}, s{S_PAT}, v{r}, v{VA} bitop3:0xbe" for r in regs[1:]]
            L += [f"v_and_b32 v{VA}, 0x10001, v{VA}", f"v_cmp_ne_u32 vcc, 0, v{VA}"]
            return L
        def vfinish(j):
            hi = min(self.nxt, nper)
            ins = [self.a_instr(i) for i in range(4*j, hi)]
            chk = vcheck(j, None)
            def reload():
                self.emit(ins); k("s_waitcnt vmcnt(0)")
            self.verify(lambda: self.emit(chk), reload, "va", checked=True)
        a1 = [f"v_and_b32 v{FV}, 7, v0\nv_lshlrev_b32 v{FV}, 6, v{FV}", f"s_lshl_b32 s44, s{S_I}, 5\ns_lshl_b32 s46, s{S_W}, 3",
              f"s_add_u32 s44, s44, s46\ns_lshl_b32 s44, s44, 6", f"s_add_u32 s44, s44, {WS_FA + side*512*FLS}",
              f"v_and_b32 v{T1}, 15, v0", f"v_mul_u32_u24 v{RW}, {RED_RS}, v{T1}", f"v_lshrrev_b32 v{T1}, 4, v0",
              f"v_lshl_add_u32 v{RW}, v{T1}, 4, v{RW}", f"s_mul_i32 s{S_T}, s{S_W}, {RED_W}\ns_add_u32 s{S_T}, s{S_T}, {LDS_RED}",
              f"v_add_u32 v{RW}, s{S_T}, v{RW}", f"s_mul_i32 s{S_T}, s{S_W}, {16*RED_RS}\ns_add_u32 s{S_T}, s{S_T}, {LDS_RED}",
              f"s_movk_i32 s{S_T+1}, {RED_RS}\ns_movk_i32 s{S_T+2}, 2560"]
        for it in range(5):
            a1 += [f"v_add_u32 v{T1}, {64*it}, v0"] + self.div20(OO+it, RR+it, T1) + [f"v_lshlrev_b32 v{T1}, 4, v{RR+it}",
                   f"v_mad_u32_u24 v{RR+it}, v{OO+it}, s{S_T+1}, v{T1}", f"v_add_u32 v{RR+it}, s{S_T}, v{RR+it}",
                   f"v_mad_u32_u24 v{OO+it}, v{OO+it}, s{S_T+2}, v{T1}"]
        a1 += [
               f"s_lshr_b32 s{S_T}, s{S_PW}, 2\ns_mul_i32 s{S_T}, s{S_T}, 20480", f"s_mul_i32 s{S_T+1}, s{S_W}, 5120\ns_add_u32 s{S_T}, s{S_T}, s{S_T+1}",
               f"s_add_u32 s{S_T+3}, s{S_T}, {WS_PART + (1-side)*128*20480}\ns_add_u32 s{S_T+4}, s{S_T+3}, 4096",
               f"s_add_u32 s{S_T+5}, s{S_T}, {WS_PART + side*128*20480}\ns_add_u32 s{S_T+6}, s{S_T+5}, 4096",
               f"s_add_u32 s{S_T+7}, s{S_T+1}, {L_R}\nv_mov_b32 v3, s{S_PAT32}",
               f"s_lshl_b32 s{S_T}, s{S_I}, 7\ns_lshl_b32 s{S_T+1}, s{S_W}, 4", f"s_add_u32 s{S_T}, s{S_T}, s{S_T+1}\ns_add_u32 s{S_T}, s{S_T}, {64*hfO}",
               f"s_mul_i32 s{S_T}, s{S_T}, 2560\ns_mul_i32 s{S_T+1}, s{S_J}, 320", f"s_add_u32 s{S_OUT}, s{S_T}, s{S_T+1}\ns_mov_b32 s{S_NM}, -4",
               f"s_mov_b32 s{SRD_OUT}, s{P0+28}\ns_mov_b32 s{SRD_OUT+1}, s{P0+29}", f"s_mov_b32 s{SRD_OUT+2}, 5242880\ns_mov_b32 s{SRD_OUT+3}, 0x20000"]
        if side == 0:
            self.emit(a1); a1 = []
        tk = {}
        gate = [lambda j: nper, lambda j: 32 if j < 3 else nper][side]
        k.wait_vm(self.atok[3])
        self.emit(vcheck(0, None)); vfinish(0)
        o_ok = False
        for j in range(KS):
            self.fine(36 + j)
            ss = self.order[j]
            while (ss, 4) not in self.b2tok: self.b2q.pop(0)()
            k.wait_vm(self.b2tok[ss, 4])
            vq = None
            misc = []
            if side == 1 and j == int(self.P('jfl', 3)):
                def f():
                    k.wait_vm(self.last_st)
                    k(f"s_add_u32 s{S_T+10}, s{S_FLAG}, {WS_FA + 512*FLS}")
                    self.set_flag(S_T+10, 4)
                misc.append(f)
            if j == [3, int(self.P('jpo', 7))][side]:
                def f(): tk['fa'] = k(f"buffer_load_dword v4, v{FV}, {WS4}, s44 offen sc1")
                misc.append(f)
            if j == [5, int(self.P('jck', 9))][side]:
                k.wait_vm(tk['fa'])
                def rl(): k(f"buffer_load_dword v4, v{FV}, {WS4}, s44 offen sc1\ns_waitcnt vmcnt(0)")
                self.verify(lambda: k(f"v_cmp_ne_u32 vcc, s{S_TAG}, v4"), rl, "fa")
                o_ok = True
            for t4 in range(4):
                idx = 4*j + t4
                for cc in range(5):
                    g_ = 5*t4 + cc
                    d = ACS + (t4*5 + cc)*4
                    k(f"v_mfma_f32_16x16x32_bf16 {v(d,4)}, {a((ss*5+cc)*4,4)}, {v(self.areg[idx],4)}, {'0' if j == 0 else v(d,4)}")
                    lim = gate(j) if not o_ok else 2*nper
                    if g_ % 3 == 0 and self.p2_can() and self.nxt < lim and self.nxt < idx + 22:
                        self.p2_aload()
                    elif g_ in (1, 10) and self.b2q:
                        self.b2q.pop(0)()
                    elif g_ >= 4 and j + 1 < KS:
                        if vq is None:
                            k.wait_vm(self.atok[4*j+7]); vq = vcheck(j+1, None)
                        self.emit(vq[:2]); vq = vq[2:]
                        if not vq and (misc or a1): self.emit([(misc or a1).pop(0)])
                    elif misc or a1:
                        self.emit([(misc or a1).pop(0)])
                r = self.areg[idx]
                (self.free_ring if r < ACS else self.free_big).append(r) if (r < ACS or self.nxt < nper - 8) else None
            self.emit(misc)
            if j + 1 < KS:
                self.emit(vq); vfinish(j+1)
        self.emit(a1)
        self.stamp(9)
        nsrc = 5 if side == 0 else 4
        fill = []
        for t4 in range(4):
            for cc in range(5):
                fill += [f"ds_write_b128 v{RW}, {v(ACS+(t4*5+cc)*4,4)} offset:{t4*16*RED_RS+cc*64}", NOP] + [NOP]*side
        fill += ["s_waitcnt lgkmcnt(0)\ns_barrier"]
        if side == 0: fill += [f"v_add_u32 v4, s{S_T+7}, v{LV}"]
        RB = self.RING
        for it in range(5):
            b = ACS + it*16
            for sw in range(4):
                def f(it=it, sw=sw): tk['r', it] = k(f"ds_read_b128 {v(ACS+(it*4+sw)*4,4)}, v{RR+it} offset:{sw*RED_W}")
                fill.append(f)
        fill += ["s_waitcnt lgkmcnt(0)\ns_barrier"]
        for it in range(5):
            b = ACS + it*16
            fill += [f"v_add_f32 v{b+e}, v{b+e}, v{b+4+e}\nv_add_f32 v{b+8+e}, v{b+8+e}, v{b+12+e}" for e in range(4)]
            if side == 0:
                def f(it=it, b=b): tk['R', it] = k(f"ds_read_b128 {v(b+4,4)}, v4 offset:{hfS*20480+it*1024}")
                fill.append(f)
            fill += [f"v_add_f32 v{b+e}, v{b+e}, v{b+8+e}\nv_add_f32 v{b+e+1}, v{b+e+1}, v{b+9+e}" for e in (0, 2)]
        for it in range(5):
            b = ACS + it*16
            if side == 0:
                fill.append(lambda it=it: k.wait_lg(tk['R', it]))
                fill += [f"v_add_f32 v{b+e}, v{b+e}, v{b+4+e}\nv_add_f32 v{b+e+1}, v{b+e+1}, v{b+5+e}" for e in (0, 2)]
            fill += [f"v_and_or_b32 v{b+e}, v{b+e}, s{S_NM}, v3\nv_and_or_b32 v{b+e+1}, v{b+e+1}, s{S_NM}, v3" for e in (0, 2)]
            fill.append(f"buffer_store_dwordx4 {v(b,4)}, v{LV}, {WS4}, s{S_T+5+it//4} offen offset:{(it%4)*1024} sc1")
        nS = len(fill)
        owr = {t4: [f"ds_write_b128 v{RW}, {v(ACO+(t4*5+cc)*4,4)} offset:{t4*16*RED_RS+cc*64}" for cc in range(5)] for t4 in range(4)}
        oq = []
        def ploads():
            return [k(f"buffer_load_dwordx4 {v(ACS+it*16+12,4)}, v{LV}, {WS4}, s{S_T+3+it//4} offen offset:{(it%4)*1024} sc1") for it in range(5)]
        slot = 0
        for j in range(nper):
            idx = nper + j
            _, ss, t4 = self.seq[idx]
            if j % 4 == 0: self.fine(36 + KS + j//4)
            if ss == 1 and t4 > 0: oq += [x for w_ in owr[t4-1] for x in (w_, NOP)]
            while idx not in self.atok: self.p2_aload()
            k.wait_vm(self.atok[idx])
            for cc in range(5):
                d = ACO + (t4*5 + cc)*4
                k(f"v_mfma_f32_16x16x32_bf16 {v(d,4)}, {a((ss*5+cc)*4,4)}, {v(self.areg[idx],4)}, {'0' if ss == 0 else v(d,4)}")
                if cc == 0 and self.p2_can(): self.p2_aload()
                elif fill: self.emit([fill.pop(0)])
                elif oq: self.emit([oq.pop(0)])
            self.free_ring.append(self.areg[idx])
            if j == nper - 3: ptoks = ploads()
        assert not fill
        self.stamp(10)
        rest = [x for x in oq if x is not NOP] + owr[3]
        if side == 0:
            for it in range(5): k(f"ds_read_b128 {v(ACS+it*16+4,4)}, v4 offset:{hfO*20480+it*1024}")
        self.emit(rest)
        def pcheck():
            regs = [ACS+it*16+12+e for it in range(5) for e in range(4)]
            k(f"v_xor_b32 v{VA}, s{S_PAT32}, v{regs[0]}")
            for r in regs[1:]: k(f"v_bitop3_b32 v{VA}, s{S_PAT32}, v{r}, v{VA} bitop3:0xbe")
            k(f"v_and_b32 v{VA}, 3, v{VA}\nv_cmp_ne_u32 vcc, 0, v{VA}")
        k("s_waitcnt lgkmcnt(0)\ns_barrier")
        toks = []
        for it in range(5):
            for sw in range(4):
                toks.append(k(f"ds_read_b128 {v(ACO+(it*4+sw)*4,4)}, v{RR+it} offset:{sw*RED_W}"))
        k.wait_vm(ptoks[4])
        def rl():
            ploads(); k("s_waitcnt vmcnt(0)")
        self.verify(pcheck, rl, "pp")
        self.stamp(11)
        if side == 0:
            for it in range(5):
                for h in range(2):
                    k(f"v_pk_add_f32 {v(ACS+it*16+12+2*h,2)}, {v(ACS+it*16+12+2*h,2)}, {v(ACS+it*16+4+2*h,2)}")
        for it in range(5):
            b = ACO + it*16
            k.wait_lg(toks[4*it+3])
            for h in range(2):
                k(f"v_pk_add_f32 {v(b+2*h,2)}, {v(b+2*h,2)}, {v(b+4+2*h,2)}")
                k(f"v_pk_add_f32 {v(b+8+2*h,2)}, {v(b+8+2*h,2)}, {v(b+12+2*h,2)}")
            for h in range(2):
                k(f"v_pk_add_f32 {v(b+2*h,2)}, {v(b+2*h,2)}, {v(ACS+it*16+12+2*h,2)}")
            for h in range(2):
                k(f"v_pk_add_f32 {v(b+2*h,2)}, {v(b+2*h,2)}, {v(b+8+2*h,2)}")
            k(f"buffer_store_dwordx4 {v(b,4)}, v{OO+it}, {s(SRD_OUT,4)}, s{S_OUT} offen {'sc1' if 'outsc1' in self.opt else 'nt' if 'outnt' in self.opt else ''}")
        self.stamp(12)
        self.finish_wg(side)

    def finish_wg(self, side):
        k = self.k
        if side == 0:
            k(f"""s_cmp_lg_u32 s{S_PW}, 0
            s_cbranch_scc1 L_fin0
            v_lshlrev_b32 v13, 8, v0""")
            def loads():
                for q in range(4):
                    k(f"s_mov_b32 s{S_T+1}, {WS_FA + q*64*4*FLS}")
                    k(f"buffer_load_dword v{16+q}, v13, {WS4}, s{S_T+1} offen sc1")
                k("s_waitcnt vmcnt(0)")
            def check():
                k(f"v_xor_b32 v14, s{S_TAG}, v16")
                for q in range(1, 4): k(f"v_bitop3_b32 v14, s{S_TAG}, v{16+q}, v14 bitop3:0xbe")
                k("v_cmp_ne_u32 vcc, 0, v14")
            loads()
            self.verify(check, loads, "pe")
            k(f"s_mov_b32 s{S_T}, {WS_EPOCH}")
            self.set_flag(S_T, 14)
            k.label("L_fin0")
        if self.spin:
            lb = k.newlabel("spin")
            k(f"s_add_u32 s101, s101, {self.spin}")
            k.label(lb)
            k(f"""s_memrealtime s[98:99]
            s_waitcnt lgkmcnt(0)
            s_sub_u32 s98, s98, s100
            s_cmp_lt_u32 s98, s101
            s_cbranch_scc1 {lb}""")
        if self.ts:
            k("s_waitcnt vmcnt(0)"); self.stamp(13); self.stamp_flush()
        k("s_endpgm")

    def build(self):
        k = self.k
        self.prologue()
        st = k.state()
        self.ssm()
        self.flush_slow()
        k.set_state(st)
        self.mlp()
        self.flush_slow()
        k.label("L_end")
        k("s_endpgm")
        if 'noa2' in self.opt:
            out = []; inp2 = False
            for x in k.ins:
                if 'phase 2 (side' in x.text: inp2 = True
                if x.op == 's_endpgm': inp2 = False
                if inp2 and (x.op == 's_cbranch_vccnz' or (x.op == 'buffer_load_dwordx4' and 'sc1' in x.text and ' a[' not in x.text)): continue
                out.append(x)
            k.ins = out
        if self.opt & {'nomfma', 'noread', 'nobar', 'nofill'}:
            out = []; inloop = False
            for x in k.ins:
                if 'k-step' in x.text: inloop = True
                if 'loop end' in x.text: inloop = False
                if inloop:
                    if 'nomfma' in self.opt and x.kind == 'mfma': continue
                    if 'noread' in self.opt and x.kind == 'ds': continue
                    if 'nobar' in self.opt and x.op == 's_barrier': continue
                    if 'nofill' in self.opt and (x.op == 's_cbranch_vccnz' or (x.kind == 'vmem' and not x.lds_dma) or 'v253' in x.text): continue
                out.append(x)
            k.ins = out
        body = k.finish()
        hdr = open("header.txt").read()
        return (hdr + f"""; @launch grid=(256,1,1) block=(256,1,1) lds=163840
.amdgcn_target "amdgcn-amd-amdhsa--gfx950"
.text
.globl {NAME}
.p2align 8
.type {NAME},@function
{NAME}:
""" + body + f""".section .rodata,"a"
.p2align 6
.amdhsa_kernel {NAME}
  .amdhsa_next_free_vgpr 512
  .amdhsa_next_free_sgpr 102
  .amdhsa_accum_offset 256
  .amdhsa_group_segment_fixed_size 0
  .amdhsa_kernarg_size 136
  .amdhsa_user_sgpr_count 2
  .amdhsa_user_sgpr_kernarg_segment_ptr 1
  .amdhsa_system_sgpr_workgroup_id_x 1
.end_amdhsa_kernel
""")

if __name__ == "__main__":
    import argparse
    ap = argparse.ArgumentParser()
    ap.add_argument("-o", default="k4.s")
    ap.add_argument("--stop", default=None)
    ap.add_argument("--ts", action="store_true")
    ap.add_argument("--spin", type=int, default=0)
    ap.add_argument("--seg", type=int, default=None)
    ap.add_argument("--opt", default="")
    a_ = ap.parse_args()
    g = G(stop=a_.stop, ts=a_.ts, spin=a_.spin, seg=a_.seg, opt=a_.opt.split(","))
    txt = g.build()
    open(a_.o, "w").write(txt)
    print("written", a_.o, "nops inserted:", g.k.nops, "lines:", txt.count("\n"), g.info)
```

```python
import sys, math, struct
sys.path.insert(0, "gen")
from emit import *

NAME = "parallel_sum__ssm_conv_s5__mixer_channel_mlp__prompt_kernel"
WS_EPOCH = 0
WS_FB = 0x1000
WS_FA = 0x11000
WS_AGG = 0x31000
WS_STG = 0x59000
WS_WSG = 0x61000
WS_B2S = [0x70000, 0x200000]
WS_A2 = [0x400000, 0x900000]
WS_PART = 0xF00000
WS_TS = 0x1400000
WS_SIZE = 0x1500000
FLS = 64
S_W = 3
SRD_X, SRD_W, SRD_WS, SRD_OUT, SRD_T1, SRD_T2 = 4, 8, 12, 16, 20, 24
S_TAG, S_TAG2, S_I, S_J, S_PAT = 28, 29, 30, 31, 32
S_PW = 33
S_FLAG = 34
S_OUT = 35
S_XO = 36
S_WO = 40
S_MX, S_MW = 45, 46
S_B2 = 47
S_T = 48
P0 = 64
def ptr(n): return s(P0 + 2*n, 2)
S_PAT32 = P0 + 18
S_NM = P0 + 19
S_WRAP, S_ST1, S_ST2 = 2, 0, 1
S_TS = 98
S_ST1K, S_ST2K = P0 + 2, P0 + 3
LOG2E = 1.4426950408889634
EPS = 1e-5
def fbits(x): return "0x%08x" % struct.unpack("<I", struct.pack("<f", x))[0]
POLL_MAX = 20000
LDS_RED = 16384
RED_RS = 336
RED_W = 64 * RED_RS
L_R = 106496
WS4 = s(SRD_WS, 4)
NOP = lambda: None

class C5:
    def __init__(self, re, im=None, st=1):
        self.re = re; self.im = re + 1 if im is None else im; self.st = 2 if im is None else st
    def r(self, b): return self.re + self.st*b
    def i(self, b): return self.im + self.st*b

class G:
    def __init__(self, stop=None, ts=False, spin=0, seg=None, opt=()):
        self.k = Emit(); self.slow = []; self.stop = stop; self.ts = ts; self.spin = spin; self.seg = seg; self.opt = set(opt)

    def P(self, name, default):
        for o in self.opt:
            if o.startswith(name + "="): return float(o.split("=")[1])
        return default
    def stamp(self, idx):
        k = self.k
        if self.seg == idx:
            k("s_memrealtime s[98:99]\ns_waitcnt lgkmcnt(0)\ns_sub_u32 s101, s98, s100")
        if not self.ts: return
        k(f"{'s_memtime' if 'cyc' in self.opt else 's_memrealtime'} {s(S_TS,2)}")
        k("s_waitcnt lgkmcnt(0)")
        k(f"v_writelane_b32 v255, s{S_TS}, {idx}")
    def fine(self, idx):
        if 'fine' in self.opt: self.stamp(idx)
    def fine3(self):
        if 'fine3' in self.opt:
            self.stamp(16 + self.nf3); self.nf3 += 1
    def fine2(self):
        if 'fine2' in self.opt:
            self.stamp(16 + self.nf2); self.nf2 += 1
    def stamp_flush(self):
        if not self.ts: return
        self.k(f"""s_lshl_b32 s{S_T}, s99, 2
        v_readlane_b32 s{S_T}, v255, 63
        s_nop 3
        s_lshl_b32 s{S_T}, s{S_T}, 2
        s_add_u32 s{S_T}, s{S_T}, s{S_W}
        s_lshl_b32 s{S_T}, s{S_T}, 8
        s_add_u32 s{S_T}, s{S_T}, {WS_TS}
        v_mbcnt_lo_u32_b32 v254, -1, 0
        v_mbcnt_hi_u32_b32 v254, -1, v254
        v_lshlrev_b32 v254, 2, v254
        buffer_store_dword v255, v254, {WS4}, s{S_T} offen""")
    def early_stop(self, name):
        if self.stop != name: return False
        self.k("s_waitcnt vmcnt(0)"); self.stamp(13); self.stamp_flush(); self.k("s_endpgm")
        return True

    def srd(self, base, pn, size):
        self.k(f"""s_mov_b32 s{base}, s{P0+2*pn}
        s_and_b32 s{base+1}, s{P0+2*pn+1}, 0xffff
        s_mov_b32 s{base+2}, {size}
        s_mov_b32 s{base+3}, 0x20000""")
    def verify(self, check, reload, name, checked=False):
        k = self.k
        slow = k.newlabel(name); done = k.newlabel(name + "d")
        if not checked: check()
        k(f"s_cbranch_vccnz {slow}")
        k.label(done)
        self.slow.append((slow, done, check, reload))
    def flush_slow(self):
        k = self.k
        for slow, done, check, reload in self.slow:
            top = k.newlabel(slow + "t")
            k.label(slow)
            if self.ts:
                bit = {'pb': 1, 'pg': 2, 'ps': 2, 'pc': 4, 'va': 8, 'fa': 16, 'pp': 32, 'pe': 64}[slow[:2]]
                k(f"v_readlane_b32 s{S_T+15}, v255, 15\ns_nop 3\ns_or_b32 s{S_T+15}, s{S_T+15}, {bit}\nv_writelane_b32 v255, s{S_T+15}, 15")
            k(f"s_mov_b32 s{S_T+15}, {POLL_MAX}")
            k.label(top)
            reload()
            check()
            k(f"""s_cbranch_vccz {done}
            s_sub_u32 s{S_T+15}, s{S_T+15}, 1
            s_cmp_lg_u32 s{S_T+15}, 0
            s_cbranch_scc1 {top}
            s_branch {done}""")
        self.slow = []
    def set_flag(self, soff, vtmp, off=0):
        return self.k(f"""v_mov_b32 v{vtmp}, s{S_TAG}
        s_mov_b64 exec, 1
        buffer_store_dword v{vtmp}, off, {WS4}, s{soff} offset:{off} sc1
        s_mov_b64 exec, -1""")
    def capture(self, fn):
        real = self.k; rec = Emit(); rec._lab = real._lab
        self.k = rec
        try: fn(rec)
        finally: self.k = real
        L = [x.text for x in rec.ins]
        assert all(x.kind in ("salu", "valu", "trans") and not x.op.startswith("s_waitcnt") for x in rec.ins)
        out = []; i = 0
        while i < len(L):
            if L[i].startswith(("s_cmp", "s_bitcmp")):
                j = i + 1; last = i
                while j < len(L) and L[j].startswith(("s_cselect", "s_mov")):
                    if L[j].startswith("s_cselect"): last = j
                    j += 1
                out.append("\n".join(L[i:last+1])); i = last + 1
            else:
                out.append(L[i]); i += 1
        return out
    def emit(self, L):
        for x in L:
            x() if callable(x) else self.k(x)
    def sprinkle(self, work, q, lead=0):
        k = self.k; q = list(q); n0 = len(q); masked = False
        for i, w_ in enumerate(work):
            self.emit([w_])
            if isinstance(w_, str):
                if w_.startswith(("s_mov_b32 exec", "s_mov_b64 exec, s")) or "s_cselect_b64 exec" in w_: masked = True
                if w_.startswith("s_mov_b64 exec, -1"): masked = False
            while q and not masked and i >= lead and (n0 - len(q) + 1)*(len(work) - lead) <= (i - lead + 1)*(n0 + 1) + n0:
                q.pop(0)()
        for f in q: f()
    def cpow(self, dre, dim, n, zr, zi, t):
        return [f"v_mul_f32 v{t}, {n}, v{zi}", f"v_mul_f32 v{dre}, {n}, v{zr}", f"v_fract_f32 v{t}, v{t}",
                f"v_exp_f32 v{dre}, v{dre}", f"v_sin_f32 v{dim}, v{t}", f"v_cos_f32 v{t}, v{t}",
                f"v_mul_f32 v{dim}, v{dim}, v{dre}", f"v_mul_f32 v{dre}, v{t}, v{dre}"]
    def cmul5(self, d, x, y, c=None):
        L = []
        for b in range(5):
            L.append(f"v_mul_f32 v{d.r(b)}, v{x.r(b)}, v{y.r(b)}" if c is None else f"v_fma_f32 v{d.r(b)}, v{x.r(b)}, v{y.r(b)}, v{c.r(b)}")
            L.append(f"v_mul_f32 v{d.i(b)}, v{x.r(b)}, v{y.i(b)}" if c is None else f"v_fma_f32 v{d.i(b)}, v{x.r(b)}, v{y.i(b)}, v{c.i(b)}")
        for b in range(5):
            L.append(f"v_fma_f32 v{d.r(b)}, -v{x.i(b)}, v{y.i(b)}, v{d.r(b)}")
            L.append(f"v_fma_f32 v{d.i(b)}, v{x.i(b)}, v{y.r(b)}, v{d.i(b)}")
        return L
    def div20(self, q, r, x):
        return [f"v_mul_u32_u24 v{q}, 3277, v{x}", f"v_lshrrev_b32 v{q}, 16, v{q}", f"v_mul_u32_u24 v{r}, 20, v{q}", f"v_sub_u32 v{r}, v{x}, v{r}"]

    def prologue(self):
        k = self.k
        k(f"""s_cmp_ge_u32 s2, 256
        s_cbranch_scc1 L_end""")
        if self.spin: k("s_memrealtime s[100:101]")
        if 'align' in self.opt:
            k("""s_memrealtime s[98:99]
            s_waitcnt lgkmcnt(0)
            s_add_u32 s100, s98, 300
            s_and_b32 s100, s100, 0xfffffc00
            s_add_u32 s100, s100, 1024""")
            k.label("L_align")
            k("""s_memrealtime s[98:99]
            s_waitcnt lgkmcnt(0)
            s_cmp_lt_u32 s98, s100
            s_cbranch_scc1 L_align""")
        k(f"""s_load_dwordx16 {s(P0,16)}, s[0:1], 0
        s_load_dwordx16 {s(P0+16,16)}, s[0:1], 64
        s_load_dwordx2 {s(P0+32,2)}, s[0:1], 128""")
        if 'nopf' not in self.opt:
            k(f"""s_getpc_b64 {s(S_T,2)}""")
            k.label("L_pc")
            k(f"""s_bitcmp1_b32 s2, 0
            s_cselect_b32 s{S_T+2}, L_mlp-L_pc, 0
            s_add_u32 s{S_T}, s{S_T}, s{S_T+2}
            s_addc_u32 s{S_T+1}, s{S_T+1}, 0
            s_lshr_b32 s{S_T+2}, s2, 3
            s_lshl_b32 s{S_T+2}, s{S_T+2}, 10
            v_lshl_add_u32 v254, v0, 2, s{S_T+2}
            global_load_dword v254, v254, {s(S_T,2)}""")
        k(f"""v_lshrrev_b32 v1, 6, v0
        v_and_b32 v0, 63, v0
        v_readfirstlane_b32 s{S_W}, v1
        s_bfe_u32 s{S_T}, s2, 0x20001
        s_lshr_b32 s{S_T+1}, s2, 6           ; c = id>>6
        s_lshl_b32 s{S_I}, s{S_T+1}, 2
        s_add_u32 s{S_I}, s{S_I}, s{S_T}
        s_bfe_u32 s{S_J}, s2, 0x30003        ; j = (id>>3)&7
        s_lshl_b32 s{S_T}, s{S_I}, 3
        s_add_u32 s{S_T}, s{S_T}, s{S_J}
        s_lshl_b32 s{S_T}, s{S_T}, 2
        s_add_u32 s{S_PW}, s{S_T}, s{S_W}    ; (i*8+j)*4+w
        s_lshl_b32 s{S_FLAG}, s{S_PW}, 6
        s_lshl_b32 s{S_MX}, s{S_W}, 12
        s_lshl_b32 s{S_T+2}, s{S_I}, 7
        s_lshl_b32 s{S_T+3}, s{S_W}, 5
        s_add_u32 s{S_T+2}, s{S_T+2}, s{S_T+3}
        s_mul_i32 s{S_XO}, s{S_T+2}, 1280
        v_lshrrev_b32 v11, 4, v0                 ; g
        v_and_b32 v13, 7, v0
        v_xor_b32 v12, v13, v11
        v_lshlrev_b32 v12, 4, v12
        v_lshrrev_b32 v3, 3, v0
        v_mul_u32_u24 v3, 1280, v3
        v_lshl_add_u32 v253, v13, 4, v3          ; (l>>3)*1280 + (l&7)*16
        v_add_u32 v3, v3, v12                    ; (l>>3)*1280 + swz
        v_lshlrev_b32 v252, 4, v0
        s_bitcmp1_b32 s2, 0""")
        if self.ts: k("v_mov_b32 v255, 0\nv_writelane_b32 v255, s2, 63")
        k("s_waitcnt lgkmcnt(0)")
        if self.spin: k("s_mov_b32 s101, 0")
        k(f"s_load_dword s{S_TAG}, {ptr(16)}, {WS_EPOCH}")
        k(f"""s_mov_b32 s{SRD_X}, s{P0}
        s_mov_b32 s{SRD_X+1}, s{P0+1}
        s_mov_b32 s{SRD_X+2}, 2621440
        s_mov_b32 s{SRD_X+3}, 0x20000
        s_mov_b32 s{SRD_WS}, s{P0+32}
        s_mov_b32 s{SRD_WS+1}, s{P0+33}
        s_mov_b32 s{SRD_WS+2}, {WS_SIZE}
        s_mov_b32 s{SRD_WS+3}, 0x20000
        s_cbranch_scc1 L_mlp""")
        self.LV = 252; self.PV = 253

    def make_tag(self):
        self.k(f"""s_waitcnt lgkmcnt(0)
        s_bitcmp1_b32 s{S_TAG}, 0
        s_cselect_b32 s{S_PAT}, 0x10000, 1        ; payload tag bits alternate from launch to launch
        s_cselect_b32 s{S_PAT32}, 2, 1
        s_mul_i32 s{S_TAG}, s{S_TAG}, 0x9E3779B1
        s_add_u32 s{S_TAG}, s{S_TAG}, 0x7F4A7C15
        s_and_b32 s{S_TAG}, s{S_TAG}, 0xfffefffc
        s_or_b32 s{S_TAG}, s{S_TAG}, s{S_PAT}
        s_or_b32 s{S_TAG}, s{S_TAG}, s{S_PAT32}
        s_xor_b32 s{S_TAG2}, s{S_TAG}, 0x5bd1e995
        s_brev_b32 s{S_TAG2}, s{S_TAG2}
        s_mov_b32 s{S_NM}, 0xfffefffe""")

    def rowstat_setup(self, s_row, s_cl, va, vr):
        self.k(f"""v_min_u32 v{vr}, s{s_cl}, v11
        v_mul_u32_u24 v{va}, 1280, v{vr}
        v_and_b32 v13, 15, v0
        v_lshl_add_u32 v{va}, v13, 4, v{va}
        v_lshlrev_b32 v{vr}, 4, v{vr}
        s_mul_i32 s{s_row}, s{s_row}, 1280""")
    def rowstat_loads(self, srd, s_row, va, R0):
        L = []
        for q in range(5):
            def f(q=q): self.rs_tok[q] = self.k(f"buffer_load_dwordx4 {v(R0+4*q,4)}, v{va}, {s(srd,4)}, s{s_row} offen offset:{256*q}")
            L.append(f)
        self.rs_tok = {}
        return L
    def rowstat_fill(self, R0, A0, T0, vr, s_dst, sq=True):
        k = self.k; L = []
        for q in range(20):
            if q % 4 == 0: L.append(lambda q=q: k.wait_vm(self.rs_tok[q//4]))
            t0, t1 = T0 + 2*(q % 2), T0 + 2*(q % 2) + 1
            L += [f"v_lshlrev_b32 v{t0}, 16, v{R0+q}", f"v_and_b32 v{t1}, 0xffff0000, v{R0+q}"]
            if q == 0: L += [f"v_add_f32 v{A0}, v{t0}, v{t1}", f"v_mul_f32 v{A0+2}, v{t0}, v{t0}", f"v_fmac_f32 v{A0+2}, v{t1}, v{t1}"]
            else: L += [f"v_add_f32 v{A0}, v{A0}, v{t0}", f"v_fmac_f32 v{A0+2}, v{t0}, v{t0}", f"v_add_f32 v{A0}, v{A0}, v{t1}", f"v_fmac_f32 v{A0+2}, v{t1}, v{t1}"]
        L += [f"v_mov_b32 v{A0+1}, s{S_TAG}", f"v_mov_b32 v{A0+3}, s{S_TAG2}"]
        for r in (8, 4, 2, 1):
            L += [f"v_add_f32_dpp v{A0}, v{A0}, v{A0} row_ror:{r} row_mask:0xf bank_mask:0xf", f"v_add_f32_dpp v{A0+2}, v{A0+2}, v{A0+2} row_ror:{r} row_mask:0xf bank_mask:0xf"]
        if not sq: L = [x for x in L if callable(x) or not x.split(",")[0].endswith((f"v{A0+2}", f"v{A0+3}"))]
        L.append(lambda: k(f"""s_mov_b32 exec_lo, 0x00010001
        s_mov_b32 exec_hi, 0x00010001
        buffer_store_dwordx{4 if sq else 2} {v(A0,4 if sq else 2)}, v{vr}, {WS4}, s{s_dst} offen sc1
        s_mov_b64 exec, -1"""))
        return L
    @staticmethod
    def cost(x):
        if callable(x): return 1
        if x.startswith(("v_exp", "v_rcp", "v_rsq", "v_sin", "v_cos")): return 2
        return 1
    def take_fill(self, fq, n, cap):
        out = []
        while fq:
            x = fq[0]
            if isinstance(x, tuple):
                if x[0] == 'at':
                    if n < x[1]: break
                    fq.pop(0); continue
                if x[0] == 'mark':
                    self.marks[x[1]] = n; fq.pop(0); continue
            c = self.cost(x)
            if cap <= 0 or (c > cap and out): break
            cap -= c; out.append(fq.pop(0))
        return out
    def dma_reset(self):
        self.m0 = None; self.vstage = {}; self.sstage = 0
    def tile_of(self, t, dst):
        o = self.opt; r = S_WRAP
        if 'blk4' in o:
            if t < 8: return f"s_add_u32 s{dst}, s{r}, {t}\ns_and_b32 s{dst}, s{dst}, 3\ns_or_b32 s{dst}, s{dst}, {t & ~3}"
            return f"s_and_b32 s{dst}, s{r}, 1\ns_xor_b32 s{dst}, s{dst}, {t}"
        if 'blk5' in o:
            return f"s_add_u32 s{dst}, s{r}, {t % 5}\ns_cmp_ge_u32 s{dst}, 5\ns_cselect_b32 s{S_ST2K}, 5, 0\ns_sub_u32 s{dst}, s{dst}, s{S_ST2K}\ns_add_u32 s{dst}, s{dst}, {t - t % 5}"
        if 'rotlat' in o:
            return f"s_add_u32 s{dst}, s{r}, {t}\ns_cmp_ge_u32 s{dst}, 10\ns_cselect_b32 s{S_ST2K}, 10, 0\ns_sub_u32 s{dst}, s{dst}, s{S_ST2K}"
        return f"s_xor_b32 s{dst}, s{r}, {t}"
    def rot_setup(self, regs128, regsW):
        k = self.k; o = self.opt; r = S_WRAP
        k(f"s_lshr_b32 s{S_T}, s{S_I}, 2")
        if 'rot0' in o: k(f"s_mov_b32 s{r}, 0")
        elif 'blk4' in o: k(f"s_add_u32 s{r}, s{S_T}, s{S_J}\ns_and_b32 s{r}, s{r}, 3")
        elif 'blk5' in o: k(f"s_add_u32 s{r}, s{S_T}, s{S_J}\ns_and_b32 s{r}, s{r}, 3")
        elif 'rotlat' in o: k(f"s_lshl_b32 s{S_T}, s{S_T}, 1\ns_add_u32 s{S_T}, s{S_T}, s{S_J}\ns_and_b32 s{S_T}, s{S_T}, 7\ns_mul_i32 s{S_T}, s{S_T}, 5\ns_lshr_b32 s{r}, s{S_T}, 2")
        else: k(f"s_add_u32 s{r}, s{S_T}, s{S_J}\ns_and_b32 s{r}, s{r}, 1")
        k(f"s_mov_b32 s{S_ST1}, s{r}\ns_lshl_b32 s{S_ST2}, s{r}, 7")
        for x in regs128: k(f"v_add_u32 v{x}, s{S_ST2}, v{x}")
        if regsW: k(f"s_mul_i32 s{S_ST2}, s{S_ST2}, 1536")
    def dma(self, m0, ld, vreg=None, t=0, step=0):
        k = self.k
        def pre():
            if self.m0 != m0:
                k(f"s_add_u32 m0, s{m0[0]}, {m0[1]}"); self.m0 = m0
            if vreg is not None and self.vstage.get(vreg, 0) != t:
                assert self.vstage.get(vreg, 0) == t - 1
                if self.sstage != t:
                    k(self.tile_of(t, S_ST2))
                    k(f"s_sub_u32 s{S_ST1K}, s{S_ST2}, s{S_ST1}\ns_mov_b32 s{S_ST1}, s{S_ST2}\ns_lshl_b32 s{S_ST1K}, s{S_ST1K}, 7")
                    if self.has_w: k(f"s_mul_i32 s{S_ST2K}, s{S_ST1K}, 1536")
                    self.sstage = t
                k(f"v_add_u32 v{vreg}, s{S_ST1K if step == 128 else S_ST2K}, v{vreg}"); self.vstage[vreg] = t
        return pre, ld

    def unit_decode(self, nunits, U):
        self.k(f"""s_sub_u32 s{S_T}, s{S_PW}, {nunits}
        s_cmp_lt_u32 s{S_PW}, {nunits}
        s_cselect_b32 s{U}, s{S_PW}, s{S_T}
        s_mul_i32 s{S_T+2}, s{U}, 6554
        s_lshr_b32 s{S_T+2}, s{S_T+2}, 16
        s_mul_i32 s{S_T}, s{S_T+2}, 10
        s_sub_u32 s{S_T}, s{U}, s{S_T}""")

    def b2_setup(self, side):
        k = self.k; vl = self.PV
        S = [40, 48][side]; KS = [10, 12][side]
        if side == 0:
            V = f"""v_min_u32 v{vl}, 14, v0
            v_mul_u32_u24 v{vl+1}, 86, v{vl}
            v_lshrrev_b32 v{vl+1}, 8, v{vl+1}
            v_mul_u32_u24 v{vl+1}, 7, v{vl+1}
            v_add_lshl_u32 v{vl}, v{vl}, v{vl+1}, 6"""
            L = f"""s_mul_i32 s{S_T+12}, s{S_W}, 10
            s_lshr_b32 s{S_T+12}, s{S_T+12}, 2
            s_mul_i32 s{S_T+3}, s{S_J}, 50"""
        else:
            V = f"""v_min_u32 v{vl}, 23, v0
            v_lshrrev_b32 v{vl+1}, 1, v{vl}
            v_lshlrev_b32 v{vl+1}, 3, v{vl+1}
            v_add_lshl_u32 v{vl}, v{vl}, v{vl+1}, 6"""
            L = f"""s_mul_i32 s{S_T+12}, s{S_W}, 120
            s_mul_i32 s{S_T+3}, s{S_J}, 5
            s_lshr_b32 s{S_T+3}, s{S_T+3}, 2"""
        k(L + f"""
        s_add_u32 s{S_T+12}, s{S_T+12}, s{S_T+3}
        s_lshl_b32 s{S_T+12}, s{S_T+12}, 6
        s_add_u32 s{S_T+12}, s{S_T+12}, {WS_FB + side*512*FLS}
        s_mul_i32 s{S_B2}, s{S_J}, {5*S}
        s_mul_i32 s{S_T+3}, s{S_W}, {KS}
        s_add_u32 s{S_B2}, s{S_B2}, s{S_T+3}
        s_lshl_b32 s{S_B2}, s{S_B2}, 10
        s_add_u32 s{S_B2}, s{S_B2}, {WS_B2S[side]}""")
        self.order = [[0, 5, 1, 6, 2, 7, 3, 8, 4, 9], [0, 3, 6, 9, 1, 4, 7, 10, 2, 5, 8, 11]][side]
        self.b2tok = {}; self.b2q = []
        for ss in self.order:
            for cc in range(5):
                def ld(ss=ss, cc=cc):
                    k = self.k
                    k(f"s_add_u32 s{P0+30}, s{S_B2}, {(cc*S + ss)*1024}")
                    self.b2tok[ss, cc] = k(f"buffer_load_dwordx4 {a((ss*5+cc)*4,4)}, v{self.LV}, {WS4}, s{P0+30} offen sc1")
                self.b2q.append(ld)
        return [x.strip() for x in V.split("\n")]
    def b2_take(self, n):
        out = self.b2q[:n]; self.b2q = self.b2q[n:]
        return out
    def b2_poll(self):
        self.pbtok = self.k(f"buffer_load_dword v254, v{self.PV}, {WS4}, s{S_T+12} offen sc1")
    def b2_check(self):
        k = self.k
        k.wait_vm(self.pbtok)
        def rl(): k(f"buffer_load_dword v254, v{self.PV}, {WS4}, s{S_T+12} offen sc1\ns_waitcnt vmcnt(0)")
        self.verify(lambda: k(f"v_cmp_ne_u32 vcc, s{S_TAG}, v254"), rl, "pb")

    TB_RS = 184
    def ssm(self):
        k = self.k
        ACC = 16; FR = [96, 144]
        XE, XO, WA, WB = 1, 2, 3, 4
        PV = self.PV; LV = self.LV; RS = self.TB_RS
        STG0, STGS = 16384, 36864
        S_RSROW, SW0, S_GW, S_GT, D2, S_RSDST, S_FB = S_T+5, S_T+6, S_T+8, S_T+9, S_T+10, S_T+13, S_T+14
        acc = lambda a_, tt: ACC + (a_*10 + tt)*4
        k.c("================ SSM side, phase 1")
        self.stamp(0); self.nf3 = 0; self.fine3(); self.marks = {}
        k(f"""v_lshrrev_b32 v13, 3, v0
        v_and_b32 v13, 3, v13
        v_lshrrev_b32 v15, 5, v0
        v_lshl_add_u32 v13, v15, 3, v13
        v_mul_u32_u24 v{XE}, 1280, v13
        v_add_u32 v{XE}, v{XE}, v12
        v_xor_b32 v{XO}, 64, v{XE}
        s_and_b32 s{S_T+4}, s{S_W}, 1
        s_lshl_b32 s{S_T+1}, s{S_T+4}, 6
        v_xor_b32 v{WA}, s{S_T+1}, v{WA}
        v_xor_b32 v{WB}, 64, v{WA}
        s_add_u32 s{S_XO+1}, s{S_XO}, {16*1280 - 1024}
        s_add_u32 s{S_XO+2}, s{S_XO}, {4*1280 - 2048}
        s_add_u32 s{S_XO+3}, s{S_XO}, {20*1280 - 3072}""")
        stage_tok = {}; stage_cnt = {}
        self.dma_reset(); self.has_w = False
        self.rot_setup([XE, XO, WA, WB], False)
        def dma_list(t):
            base = STG0 + (t % 4)*STGS
            L = []
            def mk(ld):
                def f():
                    stage_tok[t] = k(ld); stage_cnt[t] = stage_cnt.get(t, 0) + 1
                return f
            for e in range(4):
                vr = XE if e % 2 == 0 else XO
                L.append(self.dma((S_MX, base), mk(f"buffer_load_dwordx4 v{vr}, {s(SRD_X,4)}, s{S_XO+e} offen offset:{e*1024} lds"), vr, t, 128))
            for e in range(5):
                vr = WA if e % 2 == 0 else WB
                L.append(self.dma((S_MW, base + 16384 + (e//4)*4096), mk(f"buffer_load_dwordx4 v{vr}, {s(SRD_W,4)}, s{S_WO+e} offen offset:{(e%4)*1024} lds"), vr, t, 128))
            return L
        d0 = dma_list(0)
        for p in d0[:4]: self.emit(p)
        k(f"""s_cmp_lt_u32 s{S_W}, 2
        s_cselect_b32 s{SRD_W}, s{P0+6}, s{P0+8}
        s_cselect_b32 s{SRD_W+1}, s{P0+7}, s{P0+9}
        s_mov_b32 s{SRD_W+2}, 819200
        s_mov_b32 s{SRD_W+3}, 0x20000
        s_mul_i32 s{S_T+7}, s{S_J}, 80
        s_mul_i32 s{S_T+3}, s{S_T+4}, 40
        s_add_u32 s{S_T+2}, s{S_T+7}, s{S_T+3}
        s_mul_i32 s{S_WO}, s{S_T+2}, 1280
        s_add_u32 s{S_WO+1}, s{S_WO}, {8*1280 - 1024}
        s_add_u32 s{S_WO+2}, s{S_WO}, {16*1280 - 2048}
        s_add_u32 s{S_WO+3}, s{S_WO}, {24*1280 - 3072}
        s_add_u32 s{S_WO+4}, s{S_WO}, {32*1280}
        s_mul_i32 s{S_MW}, s{S_W}, 5120""")
        self.emit(d0[4])
        VLR, VLI, VDT, ZR, ZI, VT, VP, TA, TB_ = 218, 219, 220, 221, 222, 223, 224, 225, 226
        self.emit(self.div20(VT, VP, 0))
        k(f"""s_mul_i32 s{S_T+1}, s{S_W}, 20
        v_add_u32 v{VP}, s{S_T+1}, v{VP}
        v_add_lshl_u32 v{VDT}, v{VP}, s{S_T+7}, 1""")
        def vec():
            k(f"global_load_ushort v{VLR}, v{VDT}, {ptr(1)}\nglobal_load_ushort v{VLI}, v{VDT}, {ptr(2)}")
            self.vec_tok = k(f"global_load_ushort v{VDT}, v{VDT}, {ptr(7)}")
        d1 = dma_list(1)
        R0, A0, T0 = 192, 212, 227
        rs = self.rowstat_loads(SRD_T1, S_RSROW, 15, R0)
        def setup(k):
            k(f"""s_cmp_lt_u32 s{S_I}, 8
            s_cselect_b32 s{SRD_T1}, s{P0+6}, s{P0+8}
            s_cselect_b32 s{SRD_T1+1}, s{P0+7}, s{P0+9}
            s_mov_b32 s{SRD_T1+2}, 819200
            s_mov_b32 s{SRD_T1+3}, 0x20000
            s_mul_i32 s{S_T+4}, s{S_W}, 3
            s_and_b32 s{S_T+2}, s{S_I}, 7
            s_mul_i32 s{S_T+2}, s{S_T+2}, 10
            s_add_u32 s{S_T+2}, s{S_T+2}, s{S_T+7}
            s_add_u32 s{S_RSROW}, s{S_T+2}, s{S_T+4}     ; rows 80j + 10(i%8) + 3w + ..
            s_mul_i32 s{S_T+3}, s{S_J}, 160
            s_mul_i32 s{S_T+6}, s{S_I}, 10
            s_add_u32 s{S_T+3}, s{S_T+3}, s{S_T+6}
            s_add_u32 s{S_T+3}, s{S_T+3}, s{S_T+4}
            s_lshl_b32 s{S_T+3}, s{S_T+3}, 4
            s_add_u32 s{S_RSDST}, s{S_T+3}, {WS_WSG}
            s_cmp_eq_u32 s{S_W}, 3
            s_cselect_b32 s{S_T+1}, 0, 2""")

            self.rowstat_setup(S_RSROW, S_T+1, 15, 14)

            self.unit_decode(400, S_FB)
            k(f"""s_mul_i32 s{S_T+1}, s{S_T+2}, {16*1280}
            s_lshl_b32 s{S_T+3}, s{S_T}, 7
            s_add_u32 s{SW0}, s{S_T+1}, s{S_T+3}
            s_add_u32 s{SW0+1}, s{SW0}, {8*1280 - 1024}
            s_mul_i32 s{S_T+3}, s{S_T+2}, 40
            s_lshl_b32 s{S_T+4}, s{S_T}, 2
            s_add_u32 s{S_T+3}, s{S_T+3}, s{S_T+4}
            s_lshl_b32 s{S_T+3}, s{S_T+3}, 10
            s_add_u32 s{D2}, s{S_T+3}, {WS_B2S[0]}
            s_lshl_b32 s{S_FB}, s{S_FB}, 6
            s_add_u32 s{S_FB}, s{S_FB}, {WS_FB}
            s_mul_i32 s{S_GW}, s{S_J}, 2560
            s_mul_i32 s{S_T}, s{S_W}, 640
            s_add_u32 s{S_GW}, s{S_GW}, s{S_T}
            s_add_u32 s{S_GW}, s{S_GW}, {WS_WSG}
            s_lshl_b32 s{S_GT}, s{S_I}, 11
            s_lshl_b32 s{S_T}, s{S_W}, 9
            s_add_u32 s{S_GT}, s{S_GT}, s{S_T}
            s_add_u32 s{S_GT}, s{S_GT}, {WS_STG}
            v_and_b32 v11, 15, v0
            v_lshrrev_b32 v12, 4, v0
            v_lshrrev_b32 v13, 1, v11
            v_xor_b32 v13, v13, v12
            v_lshlrev_b32 v13, 4, v13
            v_lshl_add_u32 v13, v11, 7, v13
            v_add_u32 v5, {STG0}, v13
            v_add_u32 v5, s{S_MX}, v5
            v_xor_b32 v6, 64, v5
            v_add_u32 v7, {STG0+16384}, v13
            v_xor_b32 v8, 64, v7
            v_add_u32 v9, {2*STGS}, v5
            v_add_u32 v10, {2*STGS}, v6
            v_add_u32 v250, {2*STGS}, v7
            v_add_u32 v251, {2*STGS}, v8
            v_lshlrev_b32 v13, 7, v11
            v_lshrrev_b32 v12, 5, v0
            v_lshl_add_u32 v13, v12, 11, v13
            v_bfe_u32 v12, v0, 4, 1
            v_lshl_add_u32 v13, v12, 4, v13
            v_add_u32 v13, s{S_MX}, v13
            v_mul_u32_u24 v11, {RS}, v11             ; table row of this lane's column
            v_mul_u32_u24 v{TA}, {RS}, v{VP}
            v_and_b32 v216, 31, v0
            v_lshlrev_b32 v216, 4, v216
            v_min_u32 v217, 39, v0
            v_lshlrev_b32 v217, 4, v217""")
            self.b2v = self.b2_setup(0)
            self.srd(SRD_T2, 5, 819200)
            self.srd(SRD_OUT, 6, 819200)
        pre_mem = [(lambda p=p: self.emit(p)) for p in d0[5:]] + [vec] + [(lambda p=p: self.emit(p)) for p in d1[:7]]
        self.sprinkle(self.capture(setup), pre_mem)
        b2v = self.b2v; vec_tok = self.vec_tok
        tk = {}
        swq = []
        for e in range(4):
            def f(e=e): tk['d2'] = k(f"buffer_load_dwordx4 v{PV}, {s(SRD_T2 if e < 2 else SRD_OUT,4)}, s{SW0+e%2} offen offset:{(e%2)*1024} lds")
            swq.append(self.dma((S_MX, (e//2)*2048), f))
        self.make_tag()
        RXA = [[5, 6], [9, 10]]; RWA = [[7, 8], [250, 251]]
        rtok = {}
        def mkreads(n):
            st = FR[n % 2]; ks = n % 2; sl = (n//2) % 4; o = (sl % 2)*STGS
            R = [f"ds_read_b128 {v(st+4*a_,4)}, v{RXA[sl//2][ks]} offset:{o+a_*2048}" for a_ in range(2)]
            R += [f"ds_read_b128 {v(st+8+4*tt,4)}, v{RWA[sl//2][ks]} offset:{o+tt*2048}" for tt in range(10)]
            L = []
            for i, r in enumerate(R):
                def f(i=i, r=r): rtok[n, i] = k(r)
                L.append(f)
            return L
        self.fine3()
        k.wait_vm(stage_tok[0])
        self.fine3()
        k("s_barrier")
        self.fine3()
        self.stamp(1)
        k.label("L_ssm_code")
        self.emit(mkreads(0))
        LAM, LAM2, LAM4, WSUM = C5(192), C5(202), C5(212), C5(222)
        AT, BT, TG = 232, 240, 192
        L_AB = 14720
        mq = [[0, 1, p_, l_] for p_, l_ in d1[7:]]
        def q_stage(t):
            for p_, l_ in dma_list(t): mq.append([max(2*(t-3), 0), 1, p_, l_])
        def sw_store(cc):
            def f():
                k.wait_lg(tk['r2'])
                tk['s2'] = k(f"buffer_store_dwordx4 {a(220+4*cc,4)}, v{LV}, {WS4}, s{D2} offen offset:{1024*cc} sc1")
            return f
        def gl1(): k(f"buffer_load_dwordx4 {v(TG,4)}, v216, {WS4}, s{S_GT} offen sc1")
        def gl2(): tk['gr'] = k(f"buffer_load_dwordx2 {v(TG+4,2)}, v217, {WS4}, s{S_GW} offen sc1")
        NSW, NFLAG, NGL, NGC, NPOLL, NCHK = [int(self.P(a_, b_)) for a_, b_ in (('snsw', 3), ('snfl', 9), ('sngl', 13), ('sngc', 16), ('snpo', 14), ('snck', 17))]
        prs, psw, pst = int(self.P('prs', 1)), int(self.P('psw', 2)), int(self.P('pst', 4))
        for t in range(1, 10):
            if t > 1: q_stage(t)
            if t == prs: mq += [[0, 1, None, f] for f in rs]
            if t == psw: mq += [[0, 1, p_, l_] for p_, l_ in swq]
            if t == pst: mq += [[NSW+1, 2, None, sw_store(cc)] for cc in range(4)]
        late = {NGL: [[NGL, 1, None, gl1], [NGL, 1, None, gl2]]}
        late[NPOLL] = late.get(NPOLL, []) + [[NPOLL, 0.5, None, self.b2_poll]]
        def swr():
            k.wait_vm(tk['d2'])
            for ss in range(4): tk['r2'] = k(f"ds_read_b128 {a(220+4*ss,4)}, v13 offset:{32*ss}")
        fq = [lambda: k.wait_vm(vec_tok)]
        fq += [x.strip() for x in f"""v_lshlrev_b32 v{VDT}, 16, v{VDT}
        v_mul_f32 v{VDT}, {fbits(LOG2E)}, v{VDT}
        v_exp_f32 v{VDT}, v{VDT}
        v_lshlrev_b32 v{VLR}, 16, v{VLR}
        v_lshlrev_b32 v{VLI}, 16, v{VLI}
        v_cvt_pk_bf16_f32 v{VDT}, v{VDT}, v{VDT}
        v_and_b32 v{VDT}, 0xffff0000, v{VDT}
        v_mul_f32 v{ZR}, v{VLR}, v{VDT}
        v_mul_f32 v{ZI}, v{VLI}, v{VDT}
        v_mul_f32 v{ZR}, {fbits(LOG2E)}, v{ZR}
        v_mul_f32 v{ZI}, 0.15915494, v{ZI}
        v_accvgpr_write_b32 a250, v{ZR}
        v_accvgpr_write_b32 a251, v{ZI}
        v_accvgpr_write_b32 a252, v{VLR}
        v_accvgpr_write_b32 a253, v{VLI}
        v_mov_b32 v232, {fbits(8.0)}""".split("\n")]
        LM = 240
        P = [self.cpow(LM, LM+1, "1.0", ZR, ZI, 233), self.cpow(248, 249, "v232", ZR, ZI, 235)]
        fq += [x[i] for i in range(8) for x in P]
        fq += [x.strip() for x in f"""v_accvgpr_write_b32 a254, v{LM}
        v_accvgpr_write_b32 a255, v{LM+1}
        v_mul_f32 v{LM+2}, v{LM}, v{LM}
        v_mul_f32 v{LM+3}, v{LM}, v{LM+1}
        v_fma_f32 v{LM+2}, -v{LM+1}, v{LM+1}, v{LM+2}
        v_add_f32 v{LM+3}, v{LM+3}, v{LM+3}
        v_mul_f32 v{LM+4}, v{LM+2}, v{LM+2}
        v_mul_f32 v{LM+5}, v{LM+2}, v{LM+3}
        v_fma_f32 v{LM+4}, -v{LM+3}, v{LM+3}, v{LM+4}
        v_add_f32 v{LM+5}, v{LM+5}, v{LM+5}""".split("\n")]
        rsf = self.rowstat_fill(R0, A0, T0, 14, S_RSDST, sq=False)
        fq += [('at', int(self.P('srs', 2)))] + rsf + [('mark', 'rs')]
        fq += b2v + [('mark', 'gaddr')]
        fq += [('at', (NSW | 1) + 1 + (NSW & 1)*2)] + [f"ds_write_b64 v{TA}, {v(LM+2*q,2)} offset:{144+8*q}" for q in range(3)]
        fq += [('mark', 'table')]
        def flg():
            k.wait_vm(tk['s2']); self.set_flag(S_FB, 15)
        flags = {NFLAG: flg, NSW: swr}
        pre_st = [x.strip() for x in f"""s_lshl_b32 s{S_T}, s{S_W}, 7
        v_lshrrev_b32 v12, 2, v216
        v_add_u32 v12, s{S_T}, v12
        v_add_u32 v12, {L_AB}, v12
        v_lshrrev_b32 v14, 4, v0
        v_lshl_add_u32 v239, v14, 5, s{S_T}
        s_and_b32 s{S_T}, s{S_W}, 1
        s_mul_i32 s{S_T}, s{S_T}, 40
        v_lshrrev_b32 v13, 4, v217
        v_add_u32 v13, s{S_T}, v13
        v_mul_u32_u24 v13, {RS}, v13
        s_lshr_b32 s{S_T}, s{S_W}, 1
        s_lshl_b32 s{S_T}, s{S_T}, 2
        v_add_u32 v13, s{S_T}, v13
        s_mov_b32 s{S_T}, {fbits(1.0/640)}""".split("\n")]
        stq = [x.strip() for x in f"""ds_write_b32 v13, v{TG+4} offset:176
        v_mul_f32 v{TG}, s{S_T}, v{TG}
        v_mul_f32 v15, v{TG}, v{TG}
        v_fma_f32 v15, v{TG+2}, s{S_T}, -v15
        v_max_f32 v15, 0, v15
        v_add_f32 v15, {fbits(EPS)}, v15
        v_rsq_f32 v15, v15
        v_mul_f32_e64 v{TG}, v{TG}, -v15
        ds_write2st64_b32 v12, v15, v{TG} offset0:0 offset1:2""".split("\n")]
        fq += pre_st + [('at', 14)] + [f"ds_read_b64 {v(LAM2.r(b),2)}, v11 offset:{16*b*RS+152}" for b in range(5)]
        fq += [('at', NGC)] + stq + [('mark', 'stats')]
        fq += [f"ds_read_b64 {v(LAM4.r(b),2)}, v11 offset:{16*b*RS+160}" for b in range(5)]
        NRD = int(self.P('snrd', 18))
        fq += [('at', NRD)] + [f"ds_read_b64 {v(LAM.r(b),2)}, v11 offset:{16*b*RS+144}" for b in range(5)]
        fq += [f"ds_read_b128 {v(AT+4*q,4)}, v239 offset:{L_AB+16*(q%2)+512*(q//2)}" for q in (3, 2, 0, 1)]
        fq += [f"ds_read_b64 {v(WSUM.r(b),2)}, v11 offset:{16*b*RS+176}" for b in range(5)]
        credit = 0.0; b2on = False
        for n in range(20):
            st = FR[n % 2]
            k.c(f"---- ssm k-step {n}")
            self.fine(16 + n)
            if n == NGC:
                k.wait_vm(tk['gr'])
                def check():
                    k(f"""v_xor_b32 v15, s{S_TAG}, v{TG+1}
                    v_bitop3_b32 v15, s{S_TAG2}, v{TG+3}, v15 bitop3:0xbe
                    v_bitop3_b32 v15, s{S_TAG}, v{TG+5}, v15 bitop3:0xbe
                    v_cmp_ne_u32 vcc, 0, v15""")
                def rl():
                    gl1(); gl2(); k("s_waitcnt vmcnt(0)")
                self.verify(check, rl, "pg")
            if n == NCHK:
                self.b2_check(); b2on = True
            if n == NGL: assert self.marks['rs'] < n
            if n == NPOLL: assert self.marks['gaddr'] < n
            mq[0:0] = late.get(n, [])
            mem = []
            mmax = int(self.P('smax', 9)) if n < self.P('sfast', 2) else int(self.P('scap', 5))
            while len(mem) < mmax:
                if mq and mq[0][0] <= n: it_ = mq.pop(0)
                elif b2on and self.b2q and len(mem) < self.P('sb2', 5): it_ = [n, 1, None, self.b2q.pop(0)]
                else: break
                mem.append(it_)
            rd = mkreads(n+1) if n + 1 < 20 else []
            slots = [[] for _ in range(20)]
            if n % 2 == 0:
                rslots = [0, 1, 3, 4, 6, 7, 9, 10, 12, 13, 15, 16]; pref = [2, 8, 14, 19, 5, 11, 17, 18, 0, 6, 12, 3, 9, 15, 1, 4]
            else:
                rslots = [4, 5, 6, 8, 9, 10, 12, 13, 14, 16, 17, 18]; pref = [0, 7, 15, 2, 11, 19, 1, 5, 9, 13, 17, 4, 8, 12, 16, 6]
                if n + 1 < 20:
                    T_ = (n + 1)//2
                    def f(T_=T_):
                        assert stage_cnt[T_] == 9
                        k.wait_both(stage_tok[T_], k.lg_issued)
                        k("s_barrier")
                    slots[3] += [f]
            mslots = sorted(pref[:len(mem)])
            cap = [2]*20
            for sl, r in zip(rslots, rd): slots[sl].append(r); cap[sl] = 1
            for sl, it_ in zip(mslots, mem):
                slots[sl] = [it_[3]] + slots[sl]; cap[sl] -= 1
            if n % 2 == 1 and n + 1 < 20: cap[3] = 0
            i = 0
            for tt in range(10):
                for a_ in range(2):
                    if i in mslots[:len(mem)] and i == 0 and mem[0][2]: mem[0][2]()
                    grp = {0: 1, 2: 9} if n % 2 == 1 else {0: tt, 1: tt, 2: tt, 3: tt, 4: tt, 5: tt, 6: tt, 7: tt, 8: tt, 9: tt} if n == 0 else {0: 3, 4: 6, 7: 9}
                    if a_ == 0 and tt in grp: k.wait_lg(rtok[n, 2+grp[tt]])
                    assert k.lg_done >= rtok[n, 2+tt]
                    c_ = "0" if n == 0 else v(acc(a_, tt), 4)
                    k(f"v_mfma_f32_16x16x32_bf16 {v(acc(a_,tt),4)}, {v(st+4*a_,4)}, {v(st+8+4*tt,4)}, {c_}")
                    self.emit(slots[i])
                    c0 = cap[i]
                    if i + 1 in mslots[:len(mem)]:
                        n0 = len(k.ins); pre_ = mem[mslots.index(i+1)][2]
                        if pre_: pre_()
                        c0 -= len(k.ins) - n0
                    if c0 > 0 and (cap[i] == 2 or i % int(self.P('sden', 1)) == 0): self.emit(self.take_fill(fq, n, c0))
                    if i == 19 and n in flags: flags[n]()
                    i += 1
        self.emit([x for x in fq if not isinstance(x, tuple)])
        assert not mq and self.marks['table'] <= 12 and self.marks['stats'] <= NRD - 2 + (NRD & 1), self.marks
        self.info = f"ssm b2 left {len(self.b2q)} marks {self.marks} tail {len(fq)}"
        k.c('loop end')
        self.stamp(2)
        if self.early_stop("loop"): return
        self.ssm_epilogue(ACC, AT, BT, LAM, LAM2, LAM4, WSUM, L_AB)

    def ssm_epilogue(self, ACC, AT, BT, LAM, LAM2, LAM4, WSUM, L_AB):
        k = self.k; RS = self.TB_RS; LV = self.LV
        acc = lambda a_, tt: ACC + (a_*10 + tt)*4
        tok = lambda r, tt: acc(r//4, tt) + r % 4
        L_E, L_C = 16384, 102400
        TM, SEG = 146, 15
        def bc(r): return v(r & ~1, 2), r & 1
        k.c("================ SSM epilogue")
        self.nf2 = 0; self.fine2()
        self.emit(self.div20(8, 9, 0))
        k(f"""v_and_b32 v11, 15, v0
        s_lshl_b32 s{S_T}, s{S_W}, 2
        v_add_u32 v{SEG}, s{S_T}, v14
        v_mul_u32_u24 v13, 768, v{SEG}
        v_mul_u32_u24 v12, 48, v11
        v_add_u32 v13, v13, v12                  ; E[s][col]
        s_mul_i32 s{S_T}, s{S_W}, 20
        v_add_u32 v9, s{S_T}, v9
        v_and_b32 v10, 15, v9
        v_mul_u32_u24 v10, 48, v10
        v_lshrrev_b32 v7, 4, v9
        v_lshl_add_u32 v10, v7, 3, v10           ; E[.][p_local]
        s_waitcnt lgkmcnt(0)""")
        sec = []
        for tt in list(range(10)):
            ws = WSUM.r(tt % 5); hi = tt // 5
            for a_ in range(2):
                for h in range(2):
                    t_ = TM + 2*(a_*2 + h) + 8*(tt % 2)
                    sec.append(f"v_pk_mul_f32 {v(t_,2)}, {v(BT+4*a_+2*h,2)}, {v(ws,2)} op_sel:[0,{hi}] op_sel_hi:[1,{hi}]")
            for a_ in range(2):
                for h in range(2):
                    d = acc(a_, tt) + 2*h; t_ = TM + 2*(a_*2 + h) + 8*(tt % 2)
                    sec.append(f"v_pk_fma_f32 {v(d,2)}, {v(AT+4*a_+2*h,2)}, {v(d,2)}, {v(t_,2)}")
        V1 = 96; EE = C5(136)
        def pkc(dr, di, ar, ai, cr_, ci_, lr, li):
            (pr, sr), (pi, si) = bc(lr), bc(li)
            return [f"v_pk_fma_f32 {v(dr,2)}, {v(ar,2)}, {pr}, {v(cr_,2)} op_sel:[0,{sr},0] op_sel_hi:[1,{sr},1]",
                    f"v_pk_fma_f32 {v(di,2)}, {v(ai,2)}, {pr}, {v(ci_,2)} op_sel:[0,{sr},0] op_sel_hi:[1,{sr},1]",
                    f"v_pk_fma_f32 {v(dr,2)}, {v(ai,2)}, {pi}, {v(dr,2)} op_sel:[0,{si},0] op_sel_hi:[1,{si},1] neg_lo:[1,0,0] neg_hi:[1,0,0]",
                    f"v_pk_fma_f32 {v(di,2)}, {v(ar,2)}, {pi}, {v(di,2)} op_sel:[0,{si},0] op_sel_hi:[1,{si},1]"]
        LL = [pkc(V1+8*b+2*h, V1+8*b+4+2*h, acc(0,b)+2*h, acc(0,5+b)+2*h, acc(1,b)+2*h, acc(1,5+b)+2*h, LAM4.r(b), LAM4.i(b))
              for b in range(5) for h in range(2)]
        sec += [x[i] for i in range(4) for x in LL]
        LL = [pkc(V1+8*b+2, V1+8*b+6, V1+8*b, V1+8*b+4, V1+8*b+2, V1+8*b+6, LAM2.r(b), LAM2.i(b)) for b in range(5)]
        sec += [x[i] for i in range(4) for x in LL]
        sec += self.cmul5(EE, LAM, C5(V1+2, V1+6, 8), C5(V1+3, V1+7, 8))
        self.sprinkle(sec, self.b2_take(int(self.P('e1', 10))))
        k(f"""ds_write_b128 v13, {v(136,4)} offset:{L_E}
        ds_write_b128 v13, {v(140,4)} offset:{L_E+16}
        ds_write_b64 v13, {v(144,2)} offset:{L_E+32}
        v_lshlrev_b32 v6, 4, v9
        s_lshl_b32 s{S_T}, s{S_J}, 4
        s_add_u32 s{S_T+1}, s{S_T}, s{S_I}
        s_mul_i32 s{S_T+1}, s{S_T+1}, 1280
        s_add_u32 s{S_T+1}, s{S_T+1}, {WS_AGG}
        v_mov_b32 v129, s{S_TAG}
        v_mov_b32 v131, s{S_TAG2}
        s_waitcnt lgkmcnt(0)
        s_barrier""")
        self.fine2()
        CH = 96; L8R, L8I = 248, 249
        ct = [k(f"ds_read_b64 {v(CH+2*q,2)}, v10 offset:{L_E+768*q}") for q in range(16)]
        for q in range(1, 16):
            k.wait_lg(ct[q])
            er, ei, pr, pi = CH+2*q, CH+2*q+1, CH+2*q-2, CH+2*q-1
            if q < 15:
                k(f"v_fmac_f32 v{er}, v{L8R}, v{pr}\nv_fmac_f32 v{ei}, v{L8R}, v{pi}\nv_fma_f32 v{er}, -v{L8I}, v{pi}, v{er}\nv_fmac_f32 v{ei}, v{L8I}, v{pr}")
            else:
                k(f"v_fmac_f32 v{er}, v{L8R}, v{pr}\nv_fmac_f32 v{ei}, v{L8R}, v{pi}\nv_fma_f32 v128, -v{L8I}, v{pi}, v{er}\nv_fma_f32 v130, v{L8I}, v{pr}, v{ei}")
        k(f"""s_mov_b64 exec, 0xfffff
        buffer_store_dwordx4 v[128:131], v6, {WS4}, s{S_T+1} offen sc1
        s_mov_b64 exec, -1""")
        self.stamp(3); self.fine2()
        KK, CS, VV, DD = C5(202), C5(136), C5(146), C5(156, 161)
        work = [f"ds_write_b64 v10, {v(CH+2*q,2)} offset:{L_E+768*q}" for q in range(1, 15)]
        KB = 166
        work += [x.strip() for x in f"""v_accvgpr_read_b32 v132, a252
        v_accvgpr_read_b32 v133, a253
        v_accvgpr_read_b32 v134, a254
        v_accvgpr_read_b32 v135, a255
        v_mul_u32_u24 v5, {RS}, v9
        v_mul_f32 v174, v132, v132
        v_fma_f32 v174, v133, v133, v174
        v_rcp_f32 v174, v174
        v_add_f32 v134, -1.0, v134
        v_mul_f32 v{KB}, v134, v132
        v_mul_f32 v{KB+1}, v135, v132
        v_add_f32 v174, v174, v174
        v_fma_f32 v{KB}, v135, v133, v{KB}
        v_fma_f32 v{KB+1}, -v134, v133, v{KB+1}
        v_mul_f32 v{KB}, v{KB}, v174
        v_mul_f32 v{KB+1}, v{KB+1}, v174""".split("\n")]
        for q in range(16):
            c_ = KB + 2*(q % 4); n_ = KB + 2*((q+1) % 4)
            work += [f"ds_write_b64 v5, {v(c_,2)} offset:{8*q}"]
            if q < 15: work += [f"v_mul_f32 v{n_}, v{L8R}, v{c_}", f"v_mul_f32 v{n_+1}, v{L8R}, v{c_+1}",
                                f"v_fma_f32 v{n_}, -v{L8I}, v{c_+1}, v{n_}", f"v_fmac_f32 v{n_+1}, v{L8I}, v{c_}"]
        GB = 96
        BZR, BZI, BLR, BLI, BQR, BQI, BT_ = 116, 117, 118, 119, 120, 121, 122
        MK = 36
        work += [f"v_min_u32 v8, 2, v8", f"v_mul_u32_u24 v7, 5, v8", f"v_mul_u32_u24 v5, 1280, v7", f"v_add_u32 v6, v6, v5",
                 f"s_mul_i32 s{S_T+4}, s{S_J}, {16*1280}", f"s_add_u32 s{S_T+4}, s{S_T+4}, {WS_AGG}", f"s_add_u32 s{S_T+5}, s{S_T+4}, 3840",
                 f"v_mul_u32_u24 v4, {RS}, v11", f"v_lshl_add_u32 v5, v{SEG}, 3, v4",
                 "s_waitcnt lgkmcnt(0)", "s_barrier"]
        work += [f"ds_read_b64 {v(KK.r(b),2)}, v4 offset:{16*b*RS}" for b in range(5)]
        work += [f"ds_read_b128 {v(136,4)}, v13 offset:{L_E-768}", f"ds_read_b128 {v(140,4)}, v13 offset:{L_E-768+16}", f"ds_read_b64 {v(144,2)}, v13 offset:{L_E-768+32}"]
        work += [f"ds_read_b64 {v(VV.r(b),2)}, v5 offset:{16*b*RS}" for b in range(5)]
        work += [f"v_accvgpr_read_b32 v{BZR}, a250", f"v_accvgpr_read_b32 v{BZI}, a251", f"v_mov_b32 v123, {fbits(128.0)}",
                 f"v_add_u32 v10, 5, v7", f"v_min_u32 v10, s{S_I}, v10", f"v_sub_u32 v10, s{S_I}, v10", f"v_lshlrev_b32 v10, 7, v10", f"v_cvt_f32_u32 v10, v10"]
        work += [y for x in zip(self.cpow(BQR, BQI, "v10", BZR, BZI, BT_), self.cpow(BLR, BLI, "v123", BZR, BZI, 124)) for y in x]
        for q in range(5): work += [f"v_add_u32 v10, {q}, v7", f"v_cmp_gt_u32 {s(MK+2*q,2)}, s{S_I}, v10"]
        ku = []
        for b in range(5):
            (kr, sr), (ki, si) = bc(KK.r(b)), bc(KK.i(b))
            for h in range(4):
                ur = tok(2*h, b); ui = tok(2*h, 5+b); t_ = 166 + 4*(h % 2)
                ku += [f"v_pk_mul_f32 {v(t_,2)}, {v(ur,2)}, {kr} op_sel:[0,{sr}] op_sel_hi:[1,{sr}]",
                       f"v_pk_mul_f32 {v(t_+2,2)}, {v(ur,2)}, {ki} op_sel:[0,{si}] op_sel_hi:[1,{si}]",
                       f"v_pk_fma_f32 {v(ur,2)}, {v(ui,2)}, {ki}, {v(t_,2)} op_sel:[0,{si},0] op_sel_hi:[1,{si},1] neg_lo:[1,0,0] neg_hi:[1,0,0]",
                       f"v_pk_fma_f32 {v(ui,2)}, {v(ui,2)}, {kr}, {v(t_+2,2)} op_sel:[0,{sr},0] op_sel_hi:[1,{sr},1]"]
        nku = int(self.P('nku', 0))
        work += ["s_waitcnt lgkmcnt(8)"] + ku[:nku]
        self.sprinkle(work, self.b2_take(int(self.P('e2', 6))))
        self.fine2()
        def gloads():
            for q in range(5):
                t = k(f"buffer_load_dwordx4 {v(GB+4*q,4)}, v6, {WS4}, s{S_T+4+(q//3)} offen offset:{1280*(q%3)} sc1")
            return t
        gt = {}
        def gl_(): gt['t'] = gloads()
        w2 = ku[nku:] + ["s_waitcnt lgkmcnt(0)", f"s_cmp_eq_u32 s{S_W}, 0\ns_cselect_b64 exec, 0xffff, 0"]
        w2 += [f"v_mov_b32 v{136+q}, 0" for q in range(10)] + ["s_mov_b64 exec, -1"]
        w2 += self.cmul5(DD, KK, CS)
        w2 += [x.strip() for x in f"""v_and_b32 v5, 15, v9
        v_mul_u32_u24 v5, 160, v5
        v_lshrrev_b32 v4, 4, v9
        v_lshlrev_b32 v4, 5, v4
        v_lshl_add_u32 v4, v8, 3, v4
        v_add_u32 v5, v5, v4
        v_add_u32 v5, {L_C}, v5
        v_mul_u32_u24 v12, 160, v11
        v_add_u32 v12, {L_C}, v12
        v_mov_b32 v{BZR}, 0
        v_mov_b32 v{BZI}, 0
        s_mul_i32 s{S_T}, s{S_W}, {RED_W}
        s_add_u32 s{S_T}, s{S_T}, {LDS_RED}
        v_mul_u32_u24 v13, 80, v11
        v_lshl_add_u32 v13, v14, 4, v13
        v_add_u32 v13, s{S_T}, v13
        v_lshrrev_b32 v4, 2, v11
        v_lshl_add_u32 v4, v14, 3, v4
        v_mul_u32_u24 v4, 80, v4
        v_and_b32 v3, 3, v11
        v_lshl_add_u32 v4, v3, 3, v4
        v_add_u32 v4, s{S_T}, v4
        v_and_b32 v3, 1, v11
        v_lshlrev_b32 v3, 4, v3
        v_lshrrev_b32_e64 v3, v3, s{S_PAT}
        v_and_b32 v3, 1, v3
        v_mul_u32_u24 v3, 0x10001, v3
        s_lshl_b32 s{S_T}, s{S_I}, 3
        s_lshl_b32 s{S_T+1}, s{S_W}, 1
        s_add_u32 s{S_T}, s{S_T}, s{S_T+1}
        s_mul_i32 s{S_T}, s{S_T}, 40
        s_mul_i32 s{S_T+1}, s{S_J}, 5
        s_add_u32 s{S_T}, s{S_T}, s{S_T+1}
        s_lshl_b32 s{S_T}, s{S_T}, 10
        s_add_u32 s{S_T+8}, s{S_T}, {WS_A2[0]}
        s_add_u32 s{S_T+9}, s{S_T+8}, 4096
        s_add_u32 s{S_T+10}, s{S_T+8}, {40*1024}
        s_add_u32 s{S_T+11}, s{S_T+8}, {40*1024+4096}""".split("\n")]
        rq = self.resid_loads()
        gpos = int(self.P('gpos', 0))
        if gpos == 0: gl_()
        self.sprinkle(w2, rq[:gpos] + ([gl_] if gpos else []) + rq[gpos:] + self.b2_take(int(self.P('e3', 8))))
        gtok = gt['t']
        self.stamp(4); self.fine2()
        k.wait_vm(gtok)
        def check():
            for q in range(5):
                k(f"v_xor_b32 v10, s{S_TAG}, v{GB+4*q+1}")
                k(f"v_bitop3_b32 v10, s{S_TAG2}, v{GB+4*q+3}, v10 bitop3:0xbe")
                k(f"v_cmp_ne_u32 {s(S_T+2,2)}, 0, v10")
                k(f"s_and_b64 {'vcc' if q == 0 else s(S_T+2,2)}, {s(S_T+2,2)}, {s(MK+2*q,2)}")
                if q: k(f"s_or_b64 vcc, vcc, {s(S_T+2,2)}")
        def reload():
            gloads(); k("s_waitcnt vmcnt(0)")
        self.verify(check, reload, "pc")
        self.stamp(5); self.fine2()
        for q in range(5):
            er, ei = GB+4*q, GB+4*q+2
            k(f"""s_mov_b64 exec, {s(MK+2*q,2)}
            v_fmac_f32 v{er}, v{BLR}, v{BZR}
            v_fmac_f32 v{ei}, v{BLR}, v{BZI}
            v_fmac_f32 v{ei}, v{BLI}, v{BZR}
            v_fma_f32 v{BZR}, -v{BLI}, v{BZI}, v{er}
            v_mov_b32 v{BZI}, v{ei}""")
        k(f"""s_mov_b64 exec, -1
        v_mul_f32 v126, v{BQR}, v{BZR}
        v_mul_f32 v127, v{BQR}, v{BZI}
        v_fma_f32 v126, -v{BQI}, v{BZI}, v126
        v_fmac_f32 v127, v{BQI}, v{BZR}
        ds_write_b64 v5, v[126:127]
        s_waitcnt lgkmcnt(0)
        s_barrier""")
        CB = 96
        ct = []
        for b in range(5):
            k(f"ds_read_b128 {v(CB+6*b,4)}, v12 offset:{32*b}")
            ct.append(k(f"ds_read_b64 {v(CB+6*b+4,2)}, v12 offset:{32*b+16}"))
        for b in range(5):
            k.wait_lg(ct[b])
            k(f"v_pk_add_f32 {v(CB+6*b,2)}, {v(CB+6*b,2)}, {v(CB+6*b+2,2)}")
        for b in range(5):
            k(f"v_pk_add_f32 {v(CB+6*b,2)}, {v(CB+6*b,2)}, {v(CB+6*b+4,2)}")
        self.sprinkle(self.cmul5(DD, VV, C5(CB, CB+1, 6), DD), self.b2_take(int(self.P('e4', 2))))
        self.fine2()
        PK = 96
        frg = lambda b, tt2: (136 + 4*(2*b + tt2)) if 2*b + tt2 < 5 else (202 + 4*(2*b + tt2 - 5))
        wt = {}; rt = {}
        def scan(bs):
            L = []
            for r in range(8):
                pr = lambda b: DD.r(b) if r == 0 else tok(r-1, b)
                pi = lambda b: DD.i(b) if r == 0 else tok(r-1, 5+b)
                for b in bs: L += [f"v_fmac_f32 v{tok(r,b)}, v{LAM.r(b)}, v{pr(b)}", f"v_fmac_f32 v{tok(r,5+b)}, v{LAM.r(b)}, v{pi(b)}"]
                for b in bs: L += [f"v_fma_f32 v{tok(r,b)}, -v{LAM.i(b)}, v{pi(b)}, v{tok(r,b)}", f"v_fmac_f32 v{tok(r,5+b)}, v{LAM.i(b)}, v{pr(b)}"]
            for b in bs:
                for comp in range(2):
                    d = PK + 4*(2*b + comp); ng = "-" if comp else ""
                    L += [f"v_cvt_pk_bf16_f32 v{d+h}, {ng}v{tok(2*h,5*comp+b)}, {ng}v{tok(2*h+1,5*comp+b)}" for h in range(4)]
                    L += [f"v_and_or_b32 v{d+h}, v{d+h}, s{S_NM}, v3" for h in range(4)]
                    def f(b=b, d=d, comp=comp): wt[b] = k(f"ds_write_b128 v13, {v(d,4)} offset:{(32*b+16*comp)*80}")
                    L.append(f)
            return L
        def outq(bs):
            L = []
            for b in bs:
                def trr(b=b):
                    k.wait_lg(wt[b])
                    for tt2 in range(2):
                        d = frg(b, tt2)
                        k(f"ds_read_b64_tr_b16 {v(d,2)}, v4 offset:{(32*b)*80+32*tt2}")
                        rt[b, tt2] = k(f"ds_read_b64_tr_b16 {v(d+2,2)}, v4 offset:{(32*b+4)*80+32*tt2}")
                L.append(trr)
            for b in bs:
                for tt2 in range(2):
                    def sto(b=b, tt2=tt2):
                        k.wait_lg(rt[b, tt2])
                        so = S_T + 8 + 2*tt2 + (1 if b == 4 else 0)
                        self.last_st = k(f"buffer_store_dwordx4 {v(frg(b,tt2),4)}, v{LV}, {WS4}, s{so} offen offset:{1024*(b%4)} sc1")
                    L.append(sto)
            return L
        self.sprinkle(scan([0, 1]), self.b2_take(int(self.P('e5', 4))))
        self.sprinkle(scan([2, 3]), outq([0, 1]), lead=4)
        self.sprinkle(scan([4]), outq([2, 3]), lead=4)
        self.emit(outq([4]))
        self.stamp(6); self.fine2()
        self.p2_addr(0)
        self.free_big = [r for r in self.free_big if not (202 <= r < 222)] + [r for r in self.free_big if 202 <= r < 222]
        self.resid_compute(L_AB, [self.p2_aload]*int(self.P('na0', 12)))
        self.fine2()
        self.stamp(7)
        self.phase2(0)

    def resid_loads(self):
        k = self.k
        self.srd(SRD_T1, 8, 1280)
        self.srd(SRD_T2, 13, 1280)
        k(f"""s_lshl_b32 s{S_T+12}, s{S_I}, 7
        s_lshl_b32 s{S_T+13}, s{S_W}, 4
        s_add_u32 s{S_T+12}, s{S_T+12}, s{S_T+13}
        s_mul_i32 s{S_T+12}, s{S_T+12}, 1280
        s_mul_i32 s{S_T+14}, s{S_J}, 160
        s_add_u32 s{S_T+12}, s{S_T+12}, s{S_T+14}
        s_mul_i32 s{S_T+13}, s{S_W}, 5120
        s_add_u32 s{S_T+13}, s{S_T+13}, {L_R}""")
        L = []
        for it in range(5):
            def f(it=it):
                k(f"""v_add_u32 v1, {64*it}, v0
                v_mul_u32_u24 v2, 6554, v1
                v_lshrrev_b32 v2, 16, v2             ; row (0..31)
                v_mul_u32_u24 v7, 10, v2
                v_sub_u32 v1, v1, v7
                v_lshrrev_b32 v7, 4, v2
                v_mul_u32_u24 v7, 48, v7
                v_add_u32 v2, v2, v7
                v_mul_u32_u24 v2, 1280, v2
                v_lshl_add_u32 v1, v1, 4, v2
                s_add_u32 m0, s{S_T+13}, {1024*it}
                buffer_load_dwordx4 v1, {s(SRD_X,4)}, s{S_T+12} offen lds""")
            L.append(f)
        def g():
            k(f"""v_lshlrev_b32 v1, 2, v0
            s_add_u32 m0, s{S_T+13}, 20480
            buffer_load_dword v1, {s(SRD_T1,4)}, s{S_T+14} offen lds
            s_add_u32 m0, s{S_T+13}, {20480+256}""")
            self.rl_tok = k(f"buffer_load_dword v1, {s(SRD_T2,4)}, s{S_T+14} offen lds")
        return L + [g]
    def resid_compute(self, L_AB, memq):
        k = self.k
        ST, XB, DB, BB, T = 16, 36, 56, 66, 166
        k.wait_vm(self.rl_tok)
        W = [f"s_lshl_b32 s{S_T+4}, s{S_W}, 6", f"s_add_u32 s{S_T+4}, s{S_T+4}, {L_AB}"]
        for it in range(5):
            W += [f"v_add_u32 v1, {64*it}, v0"] + self.div20(2, 7, 1)
            W += [f"v_lshl_add_u32 v1, v2, 2, s{S_T+4}", f"v_lshl_add_u32 v7, v7, 3, s{S_T+13}", f"v_mul_u32_u24 v2, 160, v2", f"v_add_u32 v2, v2, v7",
                  f"ds_read2st64_b32 {v(ST+2*it,2)}, v1 offset0:0 offset1:2", f"ds_read2st64_b32 {v(ST+10+2*it,2)}, v1 offset0:1 offset1:3",
                  f"ds_read_b64 {v(XB+2*it,2)}, v2", f"ds_read_b64 {v(XB+10+2*it,2)}, v2 offset:2560",
                  f"ds_read_b64 {v(DB+2*it,2)}, v7 offset:20480", f"ds_read_b64 {v(BB+2*it,2)}, v7 offset:{20480+256}"]
        W += [f"v_add_u32 v10, s{S_T+13}, v{self.LV}", "s_waitcnt lgkmcnt(0)"]
        for it in range(5):
            dd, bb = [76, 100][it % 2], [76, 100][it % 2] + 4
            for (src, dst) in ((DB+2*it, dd), (BB+2*it, bb)):
                for h in range(2):
                    W += [f"v_lshlrev_b32 v{dst+2*h}, 16, v{src+h}", f"v_and_b32 v{dst+2*h+1}, 0xffff0000, v{src+h}"]
            for hf in range(2):
                xx = dd + 8 + 8*hf
                for h in range(2):
                    W += [f"v_lshlrev_b32 v{xx+2*h}, 16, v{XB+10*hf+2*it+h}", f"v_and_b32 v{xx+2*h+1}, 0xffff0000, v{XB+10*hf+2*it+h}"]
            for hf in range(2):
                xx = dd + 8 + 8*hf; rr = xx + 4; st = ST + 10*hf + 2*it
                for h in range(2):
                    W += [f"v_pk_add_f32 {v(rr+2*h,2)}, {v(bb+2*h,2)}, {v(xx+2*h,2)}",
                          f"v_pk_fma_f32 {v(xx+2*h,2)}, {v(xx+2*h,2)}, {v(st,2)}, {v(st,2)} op_sel:[0,0,1] op_sel_hi:[1,0,1]"]
            for hf in range(2):
                xx = dd + 8 + 8*hf; rr = xx + 4
                for h in range(2):
                    W += [f"v_pk_fma_f32 {v(rr+2*h,2)}, {v(xx+2*h,2)}, {v(dd+2*h,2)}, {v(rr+2*h,2)}"]
                W += [f"ds_write_b128 v10, {v(rr,4)} offset:{hf*20480+it*1024}"]
        self.sprinkle(W, memq, lead=int(self.P('rlead', 0)))

    def mlp(self):
        k = self.k
        ACC = 16; WSA = 112; ONE = 124; FR = [128, 148]
        B1R = 126; GS = 168
        XE, XO, W0 = 3, 2, 4
        RXB, AEB, AOB = 176, 180, 184
        PV = self.PV; LV = self.LV
        STGS = 40960
        S_MH, S_NH = 42, 43
        L_WS = 110592
        k.label("L_mlp")
        k.c("================ MLP side, phase 1")
        self.stamp(0); self.nf3 = 0; self.fine3()
        self.marks = {}
        S_RSROW, SW0, S_GT, D1, S_RSDST, S_FB = S_T+5, S_T+6, S_T+9, S_T+10, S_T+8, S_T+14
        k(f"""v_xor_b32 v{XO}, 64, v{XE}
        s_add_u32 s{S_XO+1}, s{S_XO}, {8*1280 - 1024}
        s_add_u32 s{S_XO+2}, s{S_XO}, {16*1280 - 2048}
        s_add_u32 s{S_XO+3}, s{S_XO}, {24*1280 - 3072}""")
        stage_tok = {}; stage_cnt = {}
        self.dma_reset(); self.has_w = True
        self.rot_setup([XE, XO], True)
        WSO = [S_WO, S_WO, S_WO, S_WO+1, S_WO+4, S_WO+4]
        def dma_list(t):
            base = (t % 4)*STGS
            L = []
            def mk(ld):
                def f():
                    stage_tok[t] = k(ld); stage_cnt[t] = stage_cnt.get(t, 0) + 1
                return f
            for e in range(4):
                vr = XE if e % 2 == 0 else XO
                L.append(self.dma((S_MX, base + 24576), mk(f"buffer_load_dwordx4 v{vr}, {s(SRD_X,4)}, s{S_XO+e} offen offset:{e*1024} lds"), vr, t, 128))
            for n in range(6):
                L.append(self.dma((S_MW, base + (n//4)*4096), mk(f"buffer_load_dwordx4 v{W0+n%3}, {s(SRD_W,4)}, s{WSO[n]} offen offset:{(n%4)*1024} lds"), W0+n%3, t, 64*3072))
            return L
        d0 = dma_list(0)
        for p in d0[:4]: self.emit(p)
        self.srd(SRD_W, 10, 1966080)
        k(f"""s_mul_i32 s{S_MW}, s{S_W}, 6144
        s_mul_i32 s{S_WO}, s{S_W}, {16*3072}
        s_mul_i32 s{S_T}, s{S_J}, 384
        s_add_u32 s{S_WO}, s{S_WO}, s{S_T}
        s_add_u32 s{S_WO+1}, s{S_WO}, {24576 - 3072}
        s_add_u32 s{S_WO+4}, s{S_WO}, {24576 + 1024}""")
        for n in range(3):
            k(f"""v_add_u32 v10, {64*n}, v0
            v_mul_u32_u24 v12, 2731, v10
            v_lshrrev_b32 v12, 16, v12
            v_mul_u32_u24 v13, 24, v12
            v_sub_u32 v13, v10, v13
            v_bfe_u32 v40, v12, 1, 1
            v_lshlrev_b32 v40, 2, v40
            v_xor_b32 v13, v13, v40
            v_mul_u32_u24 v12, 3072, v12
            v_lshl_add_u32 v{W0+n}, v13, 4, v12""")
            if n: k(f"v_subrev_u32 v{W0+n}, {1024*n}, v{W0+n}")
            k(f"v_add_u32 v{W0+n}, s{S_ST2}, v{W0+n}")
            self.emit(d0[4+n])
        d1 = dma_list(1)
        R0, A0, T0 = 200, 220, 224
        TS = int(self.P('mts', 3))
        SCR = (TS % 4)*STGS + 24576
        rs = self.rowstat_loads(SRD_X, S_RSROW, 8, R0)
        def setup(k):
            k(f"""s_lshr_b32 s{S_MH}, s{S_W}, 1
            s_and_b32 s{S_NH}, s{S_W}, 1
            s_lshl_b32 s{S_T+2}, s{S_W}, 2
            s_lshl_b32 s{S_T}, s{S_I}, 7
            s_lshl_b32 s{S_T+1}, s{S_J}, 4
            s_add_u32 s{S_T}, s{S_T}, s{S_T+1}
            s_add_u32 s{S_RSROW}, s{S_T}, s{S_T+2}
            s_lshl_b32 s{S_RSDST}, s{S_RSROW}, 4
            s_add_u32 s{S_RSDST}, s{S_RSDST}, {WS_STG}
            s_mov_b32 s{S_T+1}, 3""")

            self.rowstat_setup(S_RSROW, S_T+1, 8, 9)

            self.srd(SRD_T2, 12, 1966080)
            self.unit_decode(480, S_FB)

            k(f"""s_mul_i32 s{S_T+1}, s{S_T+2}, {32*1280}
            s_lshl_b32 s{S_T+3}, s{S_T}, 7
            s_add_u32 s{SW0}, s{S_T+1}, s{S_T+3}
            s_mul_i32 s{S_T+3}, s{S_T}, {4*48}
            s_add_u32 s{S_T+3}, s{S_T+3}, s{S_T+2}
            s_lshl_b32 s{S_T+3}, s{S_T+3}, 10
            s_add_u32 s{D1}, s{S_T+3}, {WS_B2S[1]}
            s_lshl_b32 s{S_FB}, s{S_FB}, 6
            s_add_u32 s{S_FB}, s{S_FB}, {WS_FB + 512*FLS}
            s_lshl_b32 s{S_GT}, s{S_I}, 11
            s_lshl_b32 s{S_T}, s{S_MH}, 10
            s_add_u32 s{S_GT}, s{S_GT}, s{S_T}
            s_add_u32 s{S_GT}, s{S_GT}, {WS_STG}
            v_and_b32 v11, 31, v0
            v_lshrrev_b32 v12, 5, v0
            v_bfe_u32 v13, v0, 1, 3
            v_xor_b32 v13, v13, v12
            v_lshlrev_b32 v13, 4, v13
            v_lshl_add_u32 v13, v11, 7, v13
            s_lshl_b32 s{S_T}, s{S_MH}, 13
            s_add_u32 s{S_T}, s{S_T}, 24576
            v_add_u32 v10, s{S_T}, v13
            v_bfe_u32 v13, v0, 2, 2
            v_lshl_add_u32 v40, v12, 3, v13
            v_mul_u32_u24 v40, 384, v40
            v_bfe_u32 v15, v0, 4, 1
            v_lshl_add_u32 v40, v15, 5, v40
            v_and_b32 v41, 3, v0
            v_lshl_add_u32 v40, v41, 3, v40
            v_lshlrev_b32 v7, 4, v12
            v_lshl_add_u32 v7, v15, 2, v7
            v_add_u32 v7, v7, v13
            v_lshlrev_b32 v7, 7, v7
            v_lshl_add_u32 v7, v41, 3, v7
            v_add_u32 v7, s{S_MX}, v7
            v_add_u32 v7, {SCR}, v7
            s_mul_i32 s{S_T}, s{S_NH}, 192
            v_add_u32 v40, s{S_T}, v40
            v_bfe_u32 v13, v0, 3, 1
            v_lshlrev_b32 v13, 6, v13
            s_cmp_eq_u32 s{S_NH}, 0
            s_cselect_b32 s{S_T}, 1, -1
            v_mul_lo_u32 v13, v13, s{S_T}
            v_add_u32 v15, v40, v13
            v_sub_u32 v40, v40, v13
            v_mov_b32 v{ONE}, 0x3f803f80
            v_mov_b32 v{ONE+1}, 0x3f803f80""")
            for ls in range(4):
                k(f"""s_lshl_b32 s{S_T}, s{S_MH}, 1
                s_add_u32 s{S_T}, s{S_T}, {ls}
                s_and_b32 s{S_T}, s{S_T}, 3
                s_lshl_b32 s{S_T+1}, s{S_T}, 5
                s_mul_i32 s{S_T}, s{S_T}, 6144
                v_xor_b32 v{RXB+ls}, s{S_T+1}, v10
                v_add_u32 v{AEB+ls}, s{S_T}, v15
                v_add_u32 v{AOB+ls}, s{S_T}, v40""")
            for q in range(12): k(f"v_add_u32 v{RXB+12+q}, {2*STGS}, v{RXB+q}")
            k(f"""v_lshlrev_b32 v10, 4, v11
            v_min_u32 v11, 47, v0
            s_mul_i32 s{S_T}, s{S_J}, 192
            s_mul_i32 s{S_T+1}, s{S_W}, 48
            s_add_u32 s{S_T}, s{S_T}, s{S_T+1}
            v_add_lshl_u32 v12, v11, s{S_T}, 1
            v_add_lshl_u32 v11, v11, s{S_T+1}, 2
            v_add_u32 v11, {L_WS}, v11""")
            self.b2v = self.b2_setup(1)
        su = self.capture(setup)
        self.sprinkle(su[:20], [(lambda p=p: self.emit(p)) for p in d0[7:]])
        mprs = int(self.P('mprs', 0))
        n1 = 4 if mprs == 0 else 8
        self.sprinkle(su[20:], [(lambda p=p: self.emit(p)) for p in d1[:2]] + (rs if mprs == 0 else []) + [(lambda p=p: self.emit(p)) for p in d1[2:n1]])
        b2v = self.b2v
        tk = {}
        swq = []
        for e in range(4):
            def f(e=e):
                k(f"s_add_u32 s{S_T+2}, s{SW0}, {e*8*1280}")
                tk['d1'] = k(f"buffer_load_dwordx4 v{PV}, {s(SRD_T2,4)}, s{S_T+2} offen lds")
            swq.append(self.dma((S_MX, SCR + e*1024), f))
        self.make_tag()
        rtok = {}
        def mkreads(n):
            st = FR[n % 2]; ls = n % 4; sl = (n//4) % 4; o = (sl % 2)*STGS; h_ = 12*(sl//2)
            ra, ae, ao = RXB+ls+h_, AEB+ls+h_, AOB+ls+h_
            R = [f"ds_read_b128 {v(st,4)}, v{ra} offset:{o}",
                 f"ds_read_b64_tr_b16 {v(st+8,2)}, v{ae} offset:{o}", f"ds_read_b64_tr_b16 {v(st+10,2)}, v{ae} offset:{o+1536}",
                 f"ds_read_b128 {v(st+4,4)}, v{ra} offset:{o+4096}",
                 f"ds_read_b64_tr_b16 {v(st+12,2)}, v{ao} offset:{o+64}", f"ds_read_b64_tr_b16 {v(st+14,2)}, v{ao} offset:{o+1600}",
                 f"ds_read_b64_tr_b16 {v(st+16,2)}, v{ae} offset:{o+128}", f"ds_read_b64_tr_b16 {v(st+18,2)}, v{ae} offset:{o+1664}"]
            L = []
            for i, r in enumerate(R):
                def f(i=i, r=r): rtok[n, i] = k(r)
                L.append(f)
            return L
        self.fine3()
        k.wait_vm(stage_tok[0])
        self.fine3()
        k("s_barrier")
        self.fine3()
        self.stamp(1)
        k.label("L_mlp_code")
        self.emit(mkreads(0))
        NSW, NFLAG, NPOLL, NCHK = [int(self.P(a_, b_)) for a_, b_ in (('mnsw', 4), ('mnfl', 12), ('mnpo', 21), ('mnck', 26))]
        mq = [[0, 1, p_, l_] for p_, l_ in d1[n1:]]
        def q_stage(t):
            L = [[max(4*(t-3), NSW+2 if (t == TS and j_ < 4) else 0), 1, p_, l_] for j_, (p_, l_) in enumerate(dma_list(t))]
            mq.extend(L[4:] + L[:4] if t == TS else L)
        def sw_store(cc):
            def f():
                k.wait_lg(tk['r1'])
                k(f"s_add_u32 s{S_T}, s{D1}, {cc*48*1024}")
                tk['s1'] = k(f"buffer_store_dwordx4 {a(240+4*cc,4)}, v{LV}, {WS4}, s{S_T} offen sc1")
            return f
        def b1l(): tk['b1'] = k(f"global_load_ushort v{B1R}, v12, {ptr(11)}")
        def gs1(): k(f"buffer_load_dwordx4 {v(GS,4)}, v10, {WS4}, s{S_GT} offen sc1")
        def gs2(): tk['gs'] = k(f"buffer_load_dwordx4 {v(GS+4,4)}, v10, {WS4}, s{S_GT} offen offset:512 sc1")
        mpsw, mpst = int(self.P('mpsw', 1)), int(self.P('mpst', 2))
        for t in range(1, 10):
            if t > 1: q_stage(t)
            if t == mprs: mq += [[0, 1, None, f] for f in rs]
            if t == mpsw: mq += [[4*(TS-3), 1, p_, l_] for p_, l_ in swq]
            if t == mpst: mq += [[NSW+1, 2, None, sw_store(cc)] for cc in range(4)]
            if t == 4: mq.append([0, 0.5, None, b1l])
        late = {NPOLL: [[NPOLL, 0.5, None, self.b2_poll]], 30: [[30, 1, None, gs1], [30, 1, None, gs2]]}
        def swr():
            k.wait_vm(tk['d1'])
            for cc in range(4):
                for e in range(2):
                    tk['r1'] = k(f"ds_read_b64_tr_b16 {a(240+4*cc+2*e,2)}, v7 offset:{e*1024+cc*32}")
        def flg():
            k.wait_vm(tk['s1']); self.set_flag(S_FB, 13)
        hooks = {NSW: swr, NFLAG: flg}
        rsf = self.rowstat_fill(R0, A0, T0, 9, S_RSDST)
        fq = [('at', int(self.P('mrs', 1)))] + rsf[:30] + [('at', NSW + 1)] + b2v + [('mark', 'b2s')] + rsf[30:] + [('mark', 'rs')]
        fq += [('at', 28), lambda: k.wait_vm(tk['b1']), f"v_lshlrev_b32 v{B1R}, 16, v{B1R}", f"ds_write_b32 v11, v{B1R} offset:1536"]
        credit = 0.0; b2on = False
        for n in range(40):
            st = FR[n % 2]
            k.c(f"---- mlp k-step {n}")
            if n % 2 == 0: self.fine(16 + n//2)
            if n == NCHK:
                self.b2_check(); b2on = True
            if n == NSW + 2: k.wait_lg(tk['r1'])
            mq[0:0] = late.get(n, [])
            mem = []
            mmax = int(self.P('mtail', 4) + (0.5 if n % 4 < 2 else 0)) if n >= 28 else int(self.P('mmax', 5)) if n < self.P('mfast', 4) else int(self.P('mcap', 3)) + (1 if n % 4 < 2 and self.P('mcap', 3) % 1 else 0)
            while len(mem) < mmax:
                if mq and mq[0][0] <= n: it_ = mq.pop(0)
                elif b2on and self.b2q and len(mem) < self.P('mb2', 5) + (0.5 if n % 4 < 2 else -0.5): it_ = [n, 1, None, self.b2q.pop(0)]
                else: break
                mem.append(it_)
            rd = mkreads(n+1) if n + 1 < 40 else []
            small = []
            if n % 4 < 2:
                for hh in range(2):
                    for T in range(3):
                        c_ = "0" if (n == 0 and hh == 0) else v(WSA+4*T, 4)
                        small.append(f"v_mfma_f32_4x4x4_16b_bf16 {v(WSA+4*T,4)}, {v(ONE,2)}, {v(st+8+4*T+2*hh,2)}, {c_}")
            bar = n % 4 == 3 and n + 1 < 40
            cnt = [0, 3, 3, 2, 0, 0] if bar else [3, 3, 2, 0, 0, 0]
            pref = [4, 0, 5, 3, 2, 1] if bar else [4, 5, 2, 3, 0, 1]
            nper_ = [0]*6
            for j_ in range(len(mem)): nper_[pref[j_ % 6]] += 1
            dep = {0: 2, 1: 3, 2: 5, 4: 7}
            for i in range(6):
                T3, mt = i//2, i % 2
                if nper_[i] and mem[0][2]: mem[0][2]()
                if i in dep: k.wait_lg(rtok[n, dep[i]])
                d = ACC + 16*i
                k(f"v_mfma_f32_32x32x16_bf16 {v(d,16)}, {v(st+8+4*T3,4)}, {v(st+4*mt,4)}, {'0' if n == 0 else v(d,16)}")
                n0 = len(k.ins)
                for j_ in range(nper_[i]):
                    it_ = mem.pop(0)
                    if j_ and it_[2]: it_[2]()
                    it_[3]()
                if bar and i == 1:
                    assert stage_cnt[(n+1)//4] == 10
                    k.wait_both(stage_tok[(n+1)//4], k.lg_issued)
                    k("s_barrier")
                for _ in range(cnt[i]):
                    if rd: rd.pop(0)()
                self.emit(self.take_fill(fq, n, int(self.P('mden', 5)) - (len(k.ins) - n0)))
            if n in hooks: hooks[n]()
            self.emit(small)
            assert not rd and not mem
        assert not mq and not fq and self.marks['b2s'] < NPOLL
        self.info += f" mlp b2 left {len(self.b2q)} marks {self.marks}"
        k.c('loop end')
        self.stamp(2)
        if self.early_stop("loop"): return
        k.c("================ MLP epilogue")
        self.nf2 = 0
        TM = 128
        AT, BT = 176, 180
        for T in range(3): k(f"v_permlane32_swap_b32 v{WSA+4*T}, v{WSA+4*T+1}")
        k(f"""v_and_b32 v11, 31, v0
        s_mul_i32 s{S_T}, s{S_MH}, 768
        s_mul_i32 s{S_T+1}, s{S_NH}, 384
        s_add_u32 s{S_T}, s{S_T}, s{S_T+1}
        v_lshl_add_u32 v12, v11, 2, s{S_T}
        v_add_u32 v12, {L_WS}, v12""")
        for T in range(3):
            k(f"v_add_f32 v{WSA+4*T}, v{WSA+4*T}, v{WSA+4*T+1}\nds_write_b32 v12, v{WSA+4*T} offset:{128*T}")
        k.wait_vm(tk['gs'])
        def check():
            k(f"""v_xor_b32 v13, s{S_TAG}, v{GS+1}
            v_bitop3_b32 v13, s{S_TAG2}, v{GS+3}, v13 bitop3:0xbe
            v_bitop3_b32 v13, s{S_TAG}, v{GS+5}, v13 bitop3:0xbe
            v_bitop3_b32 v13, s{S_TAG2}, v{GS+7}, v13 bitop3:0xbe
            v_cmp_ne_u32 vcc, 0, v13""")
        def rl():
            k(f"""buffer_load_dwordx4 {v(GS,4)}, v10, {WS4}, s{S_GT} offen sc1
            buffer_load_dwordx4 {v(GS+4,4)}, v10, {WS4}, s{S_GT} offen offset:512 sc1
            s_waitcnt vmcnt(0)""")
        self.verify(check, rl, "ps")
        c1 = -2*LOG2E*math.sqrt(2/math.pi)
        k(f"s_mov_b32 s{S_T}, {fbits(1.0/640)}")
        seqs = []
        for mt in range(2):
            g_ = GS + 4*mt; t_ = TM + mt
            seqs.append([f"v_mul_f32 v{g_}, s{S_T}, v{g_}", f"v_mul_f32 v{t_}, v{g_}, v{g_}", f"v_fma_f32 v{g_+2}, v{g_+2}, s{S_T}, -v{t_}",
                         f"v_max_f32 v{g_+2}, 0, v{g_+2}", f"v_add_f32 v{t_}, {fbits(EPS)}, v{g_+2}", f"v_rsq_f32 v{g_+1}, v{t_}",
                         f"v_mul_f32 v{t_}, v{g_+1}, v{g_+1}", f"v_mul_f32 v{t_}, v{t_}, v{g_+2}", f"v_add_f32 v{t_}, {fbits(EPS)}, v{t_}",
                         f"v_rsq_f32 v{t_}, v{t_}", f"v_mul_f32 v{AT+2*mt}, v{t_}, v{g_+1}", f"v_mul_f32_e64 v{BT+2*mt}, v{g_}, -v{AT+2*mt}"])
        for x, y in zip(*seqs): k(x); k(y)
        C1 = 184; PATV = 15
        k(f"""v_lshrrev_b32 v14, 5, v0
        s_mul_i32 s{S_T}, s{S_NH}, 384
        v_lshl_add_u32 v12, v14, 4, s{S_T}
        v_add_u32 v12, {L_WS}, v12
        v_lshrrev_b32 v13, 4, v11
        v_mul_u32_u24 v13, {48*1024}, v13
        v_and_b32 v15, 15, v0
        v_lshl_add_u32 v13, v15, 4, v13
        v_lshl_add_u32 v{PV}, v14, 8, v13
        s_lshl_b32 s{S_T}, s{S_I}, 3
        s_lshl_b32 s{S_T+1}, s{S_MH}, 2
        s_add_u32 s{S_T}, s{S_T}, s{S_T+1}
        s_mul_i32 s{S_T}, s{S_T}, 48
        s_mul_i32 s{S_T+1}, s{S_J}, 6
        s_add_u32 s{S_T}, s{S_T}, s{S_T+1}
        s_mul_i32 s{S_T+1}, s{S_NH}, 3
        s_add_u32 s{S_T}, s{S_T}, s{S_T+1}
        s_lshl_b32 s{S_T}, s{S_T}, 10
        s_add_u32 s{S_T+6}, s{S_T}, {WS_A2[1]}
        s_add_u32 s{S_T+7}, s{S_T+6}, {96*1024}
        s_mov_b32 s{S_T+4}, {fbits(c1*0.044715)}
        s_mov_b32 s{S_T+5}, s{S_T+4}
        v_mov_b32 v{C1}, {fbits(c1)}
        v_mov_b32 v{C1+1}, {fbits(c1)}
        v_mov_b32 v{PATV}, s{S_PAT}
        s_waitcnt lgkmcnt(0)
        s_barrier""")
        self.stamp(3)
        WB = [112, 186]
        Q = 160; PKO = [168, 172, 234, 238]; TT = 242
        def wreads(T3):
            b = WB[T3 % 2]
            return [f"ds_read_b128 {v(b+16*a_+4*q4,4)}, v12 offset:{768*a_+(32*T3+8*q4)*4}" for q4 in range(4) for a_ in range(3)]
        self.emit(wreads(0))
        self.p2_addr(1)
        held = []
        for Tl in range(6):
            T3, mt = Tl//2, Tl % 2
            self.fine2()
            b = WB[T3 % 2]
            fill = []; body = []
            if mt == 0:
                k("s_waitcnt lgkmcnt(0)")
                body += [f"v_pk_add_f32 {v(b+2*p,2)}, {v(b+2*p,2)}, {v(b+16+2*p,2)}" for p in range(8)]
                if T3 < 2: fill = [lambda x=x: k(x) for x in wreads(T3+1)]
            for c in range(2):
                po = PKO[(2*Tl + c) % 4]; prs = range(4*c, 4*c+4)
                z = lambda p: ACC + 16*Tl + 2*p
                q = lambda p: Q + 2*(p % 4)
                body += [f"v_pk_fma_f32 {v(TT+2*(p%4),2)}, {v(BT+2*mt,2)}, {v(b+2*p,2)}, {v(b+32+2*p,2)} op_sel_hi:[0,1,1]" for p in prs]
                body += [f"v_pk_fma_f32 {v(z(p),2)}, {v(AT+2*mt,2)}, {v(z(p),2)}, {v(TT+2*(p%4),2)} op_sel_hi:[0,1,1]" for p in prs]
                body += [f"v_pk_mul_f32 {v(q(p),2)}, {v(z(p),2)}, {v(z(p),2)}" for p in prs]
                body += [f"v_pk_fma_f32 {v(q(p),2)}, {v(q(p),2)}, {s(S_T+4,2)}, {v(C1,2)}" for p in prs]
                body += [f"v_pk_mul_f32 {v(q(p),2)}, {v(q(p),2)}, {v(z(p),2)}" for p in prs]
                for p in prs: body += [f"v_exp_f32 v{q(p)}, v{q(p)}", f"v_exp_f32 v{q(p)+1}, v{q(p)+1}"]
                body += [f"v_pk_add_f32 {v(q(p),2)}, {v(q(p),2)}, 1.0 op_sel_hi:[1,0]" for p in prs]
                for p in prs: body += [f"v_rcp_f32 v{q(p)}, v{q(p)}", f"v_rcp_f32 v{q(p)+1}, v{q(p)+1}"]
                body += [f"v_pk_mul_f32 {v(q(p),2)}, {v(q(p),2)}, {v(z(p),2)}" for p in prs]
                body += [f"v_cvt_pk_bf16_f32 v{po+p%4}, v{q(p)}, v{q(p)+1}" for p in prs]
                body += [f"v_and_or_b32 v{po+p%4}, v{po+p%4}, s{S_NM}, v{PATV}" for p in prs]
                def st_(T3=T3, mt=mt, c=c, po=po):
                    self.last_st = k(f"buffer_store_dwordx4 {v(po,4)}, v{PV}, {WS4}, s{S_T+6+mt} offen offset:{T3*1024+c*512} sc1")
                if Tl < 4: body.append(st_)
                else: held.append(st_)
            if Tl >= 4: fill = [self.p2_aload]*8
            if Tl < 4: fill = fill + self.b2_take(min(int(self.P('g1', 4)), -(-len(self.b2q)//(4 - Tl))))
            self.sprinkle(body, fill, lead=8)
        self.fine2()
        self.emit(held)
        self.fine2()
        self.stamp(6)
        self.phase2(1)

    RING, NR, ACS, ACO = 16, 19, 92, 172
    def p2_addr(self, side):
        k = self.k
        S = [40, 48][side]; KS = [10, 12][side]
        self.side = side; self.KS = KS
        hfS = side; hfO = 1 - side
        k(f"""s_mul_i32 s45, s{S_I}, {8*S}
        s_mul_i32 s46, s{S_W}, {KS}
        s_add_u32 s45, s45, s46
        s_lshl_b32 s45, s45, 10
        s_add_u32 s45, s45, {WS_A2[side]}""")
        for t4 in range(4):
            k(f"s_add_u32 s{36+t4}, s45, {(4*hfS+t4)*S*1024}")
            k(f"s_add_u32 s{40+t4}, s45, {(4*hfO+t4)*S*1024}")
        self.seq = [(0, ss, t4) for ss in self.order for t4 in range(4)] + [(1, ss, t4) for t4 in range(4) for ss in range(KS)]
        self.atok = {}; self.areg = {}; self.nxt = 0
        self.free_ring = [self.RING + 4*i for i in range(self.NR)]
        self.free_big = [self.ACO + 4*i for i in range(20)] if side == 0 else []
    def a_instr(self, idx):
        p, ss, t4 = self.seq[idx]
        so = 36 + 4*p + t4; pre = ""
        if ss >= 4:
            pre = f"s_add_u32 s45, s{so}, {(ss//4)*4096}\n"; so = 45
        return pre + f"buffer_load_dwordx4 {v(self.areg[idx],4)}, v{self.LV}, {WS4}, s{so} offen offset:{(ss%4)*1024} sc1"
    def p2_can(self):
        if self.nxt >= len(self.seq): return False
        if self.seq[self.nxt][0] == 0 and self.free_big: return True
        return bool(self.free_ring)
    def p2_aload(self):
        idx = self.nxt
        if self.seq[idx][0] == 0 and self.free_big: r = self.free_big.pop(0)
        else: r = self.free_ring.pop(0)
        self.areg[idx] = r
        self.atok[idx] = self.k(self.a_instr(idx))
        self.nxt += 1

    def phase2(self, side):
        k = self.k
        if self.early_stop("p1"): return
        KS = self.KS; nper = 4*KS
        ACS, ACO, LV = self.ACS, self.ACO, self.LV
        hfS = side; hfO = 1 - side
        RW, RR, OO, VA, FV, T1 = 5, 6, 11, 1, 2, 253
        k.c(f"================ phase 2 (side {side})")
        if side == 1: self.free_big = [self.ACO + 4*i for i in range(20)]
        while self.nxt < 16: self.p2_aload()
        self.stamp(8)
        def vcheck(j, lst):
            regs = [self.areg[4*j+t]+e for t in range(4) for e in range(4)]
            L = [f"v_xor_b32 v{VA}, s{S_PAT}, v{regs[0]}"]
            L += [f"v_bitop3_b32 v{VA}, s{S_PAT}, v{r}, v{VA} bitop3:0xbe" for r in regs[1:]]
            L += [f"v_and_b32 v{VA}, 0x10001, v{VA}", f"v_cmp_ne_u32 vcc, 0, v{VA}"]
            return L
        def vfinish(j):
            hi = min(self.nxt, nper)
            ins = [self.a_instr(i) for i in range(4*j, hi)]
            chk = vcheck(j, None)
            def reload():
                self.emit(ins); k("s_waitcnt vmcnt(0)")
            self.verify(lambda: self.emit(chk), reload, "va", checked=True)
        a1 = [f"v_and_b32 v{FV}, 7, v0\nv_lshlrev_b32 v{FV}, 6, v{FV}", f"s_lshl_b32 s44, s{S_I}, 5\ns_lshl_b32 s46, s{S_W}, 3",
              f"s_add_u32 s44, s44, s46\ns_lshl_b32 s44, s44, 6", f"s_add_u32 s44, s44, {WS_FA + side*512*FLS}",
              f"v_and_b32 v{T1}, 15, v0", f"v_mul_u32_u24 v{RW}, {RED_RS}, v{T1}", f"v_lshrrev_b32 v{T1}, 4, v0",
              f"v_lshl_add_u32 v{RW}, v{T1}, 4, v{RW}", f"s_mul_i32 s{S_T}, s{S_W}, {RED_W}\ns_add_u32 s{S_T}, s{S_T}, {LDS_RED}",
              f"v_add_u32 v{RW}, s{S_T}, v{RW}", f"s_mul_i32 s{S_T}, s{S_W}, {16*RED_RS}\ns_add_u32 s{S_T}, s{S_T}, {LDS_RED}",
              f"s_movk_i32 s{S_T+1}, {RED_RS}\ns_movk_i32 s{S_T+2}, 2560"]
        for it in range(5):
            a1 += [f"v_add_u32 v{T1}, {64*it}, v0"] + self.div20(OO+it, RR+it, T1) + [f"v_lshlrev_b32 v{T1}, 4, v{RR+it}",
                   f"v_mad_u32_u24 v{RR+it}, v{OO+it}, s{S_T+1}, v{T1}", f"v_add_u32 v{RR+it}, s{S_T}, v{RR+it}",
                   f"v_mad_u32_u24 v{OO+it}, v{OO+it}, s{S_T+2}, v{T1}"]
        a1 += [
               f"s_lshr_b32 s{S_T}, s{S_PW}, 2\ns_mul_i32 s{S_T}, s{S_T}, 20480", f"s_mul_i32 s{S_T+1}, s{S_W}, 5120\ns_add_u32 s{S_T}, s{S_T}, s{S_T+1}",
               f"s_add_u32 s{S_T+3}, s{S_T}, {WS_PART + (1-side)*128*20480}\ns_add_u32 s{S_T+4}, s{S_T+3}, 4096",
               f"s_add_u32 s{S_T+5}, s{S_T}, {WS_PART + side*128*20480}\ns_add_u32 s{S_T+6}, s{S_T+5}, 4096",
               f"s_add_u32 s{S_T+7}, s{S_T+1}, {L_R}\nv_mov_b32 v3, s{S_PAT32}",
               f"s_lshl_b32 s{S_T}, s{S_I}, 7\ns_lshl_b32 s{S_T+1}, s{S_W}, 4", f"s_add_u32 s{S_T}, s{S_T}, s{S_T+1}\ns_add_u32 s{S_T}, s{S_T}, {64*hfO}",
               f"s_mul_i32 s{S_T}, s{S_T}, 2560\ns_mul_i32 s{S_T+1}, s{S_J}, 320", f"s_add_u32 s{S_OUT}, s{S_T}, s{S_T+1}\ns_mov_b32 s{S_NM}, -4",
               f"s_mov_b32 s{SRD_OUT}, s{P0+28}\ns_mov_b32 s{SRD_OUT+1}, s{P0+29}", f"s_mov_b32 s{SRD_OUT+2}, 5242880\ns_mov_b32 s{SRD_OUT+3}, 0x20000"]
        if side == 0:
            self.emit(a1); a1 = []
        tk = {}
        gate = [lambda j: nper, lambda j: 32 if j < 3 else nper][side]
        k.wait_vm(self.atok[3])
        self.emit(vcheck(0, None)); vfinish(0)
        o_ok = False
        for j in range(KS):
            self.fine(36 + j)
            ss = self.order[j]
            while (ss, 4) not in self.b2tok: self.b2q.pop(0)()
            k.wait_vm(self.b2tok[ss, 4])
            vq = None
            misc = []
            if j == [0, int(self.P('jfl', 3))][side]:
                def f():
                    k.wait_vm(self.last_st)
                    k(f"s_add_u32 s{S_T+10}, s{S_FLAG}, {WS_FA + side*512*FLS}")
                    self.set_flag(S_T+10, 4)
                misc.append(f)
            if j == [int(self.P('jpo0', 4)), int(self.P('jpo', 7))][side]:
                def f(): tk['fa'] = k(f"buffer_load_dword v4, v{FV}, {WS4}, s44 offen sc1")
                misc.append(f)
            if j == [int(self.P('jck0', 6)), int(self.P('jck', 9))][side]:
                k.wait_vm(tk['fa'])
                def rl(): k(f"buffer_load_dword v4, v{FV}, {WS4}, s44 offen sc1\ns_waitcnt vmcnt(0)")
                self.verify(lambda: k(f"v_cmp_ne_u32 vcc, s{S_TAG}, v4"), rl, "fa")
                o_ok = True
            for t4 in range(4):
                idx = 4*j + t4
                for cc in range(5):
                    g_ = 5*t4 + cc
                    d = ACS + (t4*5 + cc)*4
                    k(f"v_mfma_f32_16x16x32_bf16 {v(d,4)}, {a((ss*5+cc)*4,4)}, {v(self.areg[idx],4)}, {'0' if j == 0 else v(d,4)}")
                    lim = gate(j) if not o_ok else 2*nper
                    if g_ % 3 == 0 and self.p2_can() and self.nxt < lim and self.nxt < idx + 22:
                        self.p2_aload()
                    elif g_ in (1, 10) and self.b2q and j >= [1, 3][side]:
                        self.b2q.pop(0)()
                    elif g_ >= 4 and j + 1 < KS:
                        if vq is None:
                            k.wait_vm(self.atok[4*j+7]); vq = vcheck(j+1, None)
                        self.emit(vq[:2]); vq = vq[2:]
                        if not vq and (misc or a1): self.emit([(misc or a1).pop(0)])
                    elif misc or a1:
                        self.emit([(misc or a1).pop(0)])
                r = self.areg[idx]
                (self.free_ring if r < ACS else self.free_big).append(r) if (r < ACS or self.nxt < nper - 8) else None
            self.emit(misc)
            if j + 1 < KS:
                self.emit(vq); vfinish(j+1)
        self.emit(a1)
        self.stamp(9)
        nsrc = 5 if side == 0 else 4
        fill = []
        def wr(r, off):
            if 'w64' in self.opt: return [f"ds_write_b64 v{RW}, {v(r,2)} offset:{off}", f"ds_write_b64 v{RW}, {v(r+2,2)} offset:{off+8}"]
            return [f"ds_write_b128 v{RW}, {v(r,4)} offset:{off}", NOP]
        for t4 in range(4):
            for cc in range(5):
                fill += wr(ACS+(t4*5+cc)*4, t4*16*RED_RS+cc*64) + [NOP]*int(self.P('wpad', 2)*side)
        fill += [NOP]*int(self.P('bpad', 3)) + ["s_waitcnt lgkmcnt(0)\ns_barrier"]
        if side == 0: fill += [f"v_add_u32 v4, s{S_T+7}, v{LV}"]
        rds = []
        for it in range(5):
            for sw in range(4):
                def f(it=it, sw=sw): tk['r', it] = k(f"ds_read_b128 {v(ACS+(it*4+sw)*4,4)}, v{RR+it} offset:{sw*RED_W}")
                rds.append(f)
        fill += rds[:8]
        for it in range(5):
            b = ACS + it*16
            ad = [f"v_add_f32 v{b+e}, v{b+e}, v{b+4+e}\nv_add_f32 v{b+8+e}, v{b+8+e}, v{b+12+e}" for e in range(4)]
            nx = rds[8+4*it:12+4*it]
            fill.append(lambda it=it, a0=ad[0]: (k.wait_lg(tk['r', it]), k(a0)))
            for q in range(1, 4):
                if nx: fill.append(nx.pop(0))
                fill.append(ad[q])
            fill += nx
            if side == 0:
                def f(it=it, b=b): tk['R', it] = k(f"ds_read_b128 {v(b+4,4)}, v4 offset:{hfS*20480+it*1024}")
                fill.append(f)
            fill += [f"v_add_f32 v{b+e}, v{b+e}, v{b+8+e}\nv_add_f32 v{b+e+1}, v{b+e+1}, v{b+9+e}" for e in (0, 2)]
        fill += ["s_barrier"]
        for it in range(5):
            b = ACS + it*16
            if side == 0:
                fill.append(lambda it=it: k.wait_lg(tk['R', it]))
                fill += [f"v_add_f32 v{b+e}, v{b+e}, v{b+4+e}\nv_add_f32 v{b+e+1}, v{b+e+1}, v{b+5+e}" for e in (0, 2)]
            fill += [f"v_and_or_b32 v{b+e}, v{b+e}, s{S_NM}, v3\nv_and_or_b32 v{b+e+1}, v{b+e+1}, s{S_NM}, v3" for e in (0, 2)]
            fill.append(f"buffer_store_dwordx4 {v(b,4)}, v{LV}, {WS4}, s{S_T+5+it//4} offen offset:{(it%4)*1024} sc1")
        nS = len(fill)
        owr = {t4: [f"ds_write_b128 v{RW}, {v(ACO+(t4*5+cc)*4,4)} offset:{t4*16*RED_RS+cc*64}" for cc in range(5)] for t4 in range(4)}
        oq = []
        def ploads():
            return [k(f"buffer_load_dwordx4 {v(ACS+it*16+12,4)}, v{LV}, {WS4}, s{S_T+3+it//4} offen offset:{(it%4)*1024} sc1") for it in range(5)]
        slot = 0
        for j in range(nper):
            idx = nper + j
            _, ss, t4 = self.seq[idx]
            if j % 4 == 0: self.fine(36 + KS + j//4)
            if ss == 1 and t4 > 0: oq += [x for cc in range(5) for x in wr(ACO+((t4-1)*5+cc)*4, (t4-1)*16*RED_RS+cc*64)]
            while idx not in self.atok: self.p2_aload()
            k.wait_vm(self.atok[idx])
            for cc in range(5):
                d = ACO + (t4*5 + cc)*4
                k(f"v_mfma_f32_16x16x32_bf16 {v(d,4)}, {a((ss*5+cc)*4,4)}, {v(self.areg[idx],4)}, {'0' if ss == 0 else v(d,4)}")
                if cc == 0 and self.p2_can(): self.p2_aload()
                elif fill: self.emit([fill.pop(0)])
                elif oq: self.emit([oq.pop(0)])
            self.free_ring.append(self.areg[idx])
            if j == nper - 3: ptoks = ploads()
        assert not fill
        self.stamp(10)
        rest = [x for x in oq if x is not NOP] + owr[3]
        if side == 0:
            for it in range(5): k(f"ds_read_b128 {v(ACS+it*16+4,4)}, v4 offset:{hfO*20480+it*1024}")
        self.emit(rest)
        def pcheck():
            regs = [ACS+it*16+12+e for it in range(5) for e in range(4)]
            k(f"v_xor_b32 v{VA}, s{S_PAT32}, v{regs[0]}")
            for r in regs[1:]: k(f"v_bitop3_b32 v{VA}, s{S_PAT32}, v{r}, v{VA} bitop3:0xbe")
            k(f"v_and_b32 v{VA}, 3, v{VA}\nv_cmp_ne_u32 vcc, 0, v{VA}")
        k("s_waitcnt lgkmcnt(0)\ns_barrier")
        toks = []
        for it in range(5):
            for sw in range(4):
                toks.append(k(f"ds_read_b128 {v(ACO+(it*4+sw)*4,4)}, v{RR+it} offset:{sw*RED_W}"))
        k.wait_vm(ptoks[4])
        def rl():
            ploads(); k("s_waitcnt vmcnt(0)")
        self.verify(pcheck, rl, "pp")
        self.stamp(11)
        if side == 0:
            for it in range(5):
                for h in range(2):
                    k(f"v_pk_add_f32 {v(ACS+it*16+12+2*h,2)}, {v(ACS+it*16+12+2*h,2)}, {v(ACS+it*16+4+2*h,2)}")
        for it in range(5):
            b = ACO + it*16
            k.wait_lg(toks[4*it+3])
            for h in range(2):
                k(f"v_pk_add_f32 {v(b+2*h,2)}, {v(b+2*h,2)}, {v(b+4+2*h,2)}")
                k(f"v_pk_add_f32 {v(b+8+2*h,2)}, {v(b+8+2*h,2)}, {v(b+12+2*h,2)}")
            for h in range(2):
                k(f"v_pk_add_f32 {v(b+2*h,2)}, {v(b+2*h,2)}, {v(ACS+it*16+12+2*h,2)}")
            for h in range(2):
                k(f"v_pk_add_f32 {v(b+2*h,2)}, {v(b+2*h,2)}, {v(b+8+2*h,2)}")
            k(f"buffer_store_dwordx4 {v(b,4)}, v{OO+it}, {s(SRD_OUT,4)}, s{S_OUT} offen {'sc1' if 'outsc1' in self.opt else 'nt' if 'outnt' in self.opt else ''}")
        self.stamp(12)
        self.finish_wg(side)

    def finish_wg(self, side):
        k = self.k
        if side == 0:
            k(f"""s_cmp_lg_u32 s{S_PW}, 0
            s_cbranch_scc1 L_fin0
            v_lshlrev_b32 v13, 8, v0""")
            def loads():
                for q in range(4):
                    k(f"s_mov_b32 s{S_T+1}, {WS_FA + q*64*4*FLS}")
                    k(f"buffer_load_dword v{16+q}, v13, {WS4}, s{S_T+1} offen sc1")
                k("s_waitcnt vmcnt(0)")
            def check():
                k(f"v_xor_b32 v14, s{S_TAG}, v16")
                for q in range(1, 4): k(f"v_bitop3_b32 v14, s{S_TAG}, v{16+q}, v14 bitop3:0xbe")
                k("v_cmp_ne_u32 vcc, 0, v14")
            loads()
            self.verify(check, loads, "pe")
            k(f"s_mov_b32 s{S_T}, {WS_EPOCH}")
            self.set_flag(S_T, 14)
            k.label("L_fin0")
        if self.spin:
            lb = k.newlabel("spin")
            k(f"s_add_u32 s101, s101, {self.spin}")
            k.label(lb)
            k(f"""s_memrealtime s[98:99]
            s_waitcnt lgkmcnt(0)
            s_sub_u32 s98, s98, s100
            s_cmp_lt_u32 s98, s101
            s_cbranch_scc1 {lb}""")
        if self.ts:
            k("s_waitcnt vmcnt(0)"); self.stamp(13); self.stamp_flush()
        k("s_endpgm")

    def build(self):
        k = self.k
        self.prologue()
        st = k.state()
        self.ssm()
        self.flush_slow()
        k.set_state(st)
        self.mlp()
        self.flush_slow()
        k.label("L_end")
        k("s_endpgm")
        if 'noa2' in self.opt:
            out = []; inp2 = False
            for x in k.ins:
                if 'phase 2 (side' in x.text: inp2 = True
                if x.op == 's_endpgm': inp2 = False
                if inp2 and (x.op == 's_cbranch_vccnz' or (x.op == 'buffer_load_dwordx4' and 'sc1' in x.text and ' a[' not in x.text)): continue
                out.append(x)
            k.ins = out
        if self.opt & {'nomfma', 'noread', 'nobar', 'nofill'}:
            out = []; inloop = False
            for x in k.ins:
                if 'k-step' in x.text: inloop = True
                if 'loop end' in x.text: inloop = False
                if inloop:
                    if 'nomfma' in self.opt and x.kind == 'mfma': continue
                    if 'noread' in self.opt and x.kind == 'ds': continue
                    if 'nobar' in self.opt and x.op == 's_barrier': continue
                    if 'nofill' in self.opt and (x.op == 's_cbranch_vccnz' or (x.kind == 'vmem' and not x.lds_dma) or 'v253' in x.text): continue
                out.append(x)
            k.ins = out
        body = k.finish()
        hdr = open("header.txt").read()
        return (hdr + f"""; @launch grid=(256,1,1) block=(256,1,1) lds=163840
.amdgcn_target "amdgcn-amd-amdhsa--gfx950"
.text
.globl {NAME}
.p2align 8
.type {NAME},@function
{NAME}:
""" + body + f""".section .rodata,"a"
.p2align 6
.amdhsa_kernel {NAME}
  .amdhsa_next_free_vgpr 512
  .amdhsa_next_free_sgpr 102
  .amdhsa_accum_offset 256
  .amdhsa_group_segment_fixed_size 0
  .amdhsa_kernarg_size 136
  .amdhsa_user_sgpr_count 2
  .amdhsa_user_sgpr_kernarg_segment_ptr 1
  .amdhsa_system_sgpr_workgroup_id_x 1
.end_amdhsa_kernel
""")

if __name__ == "__main__":
    import argparse
    ap = argparse.ArgumentParser()
    ap.add_argument("-o", default="k4.s")
    ap.add_argument("--stop", default=None)
    ap.add_argument("--ts", action="store_true")
    ap.add_argument("--spin", type=int, default=0)
    ap.add_argument("--seg", type=int, default=None)
    ap.add_argument("--opt", default="")
    a_ = ap.parse_args()
    g = G(stop=a_.stop, ts=a_.ts, spin=a_.spin, seg=a_.seg, opt=a_.opt.split(","))
    txt = g.build()
    open(a_.o, "w").write(txt)
    print("written", a_.o, "nops inserted:", g.k.nops, "lines:", txt.count("\n"), g.info)
```

```python
import sys, math, struct
sys.path.insert(0, "gen")
from emit import *

NAME = "parallel_sum__ssm_conv_s5__mixer_channel_mlp__prompt_kernel"
WS_EPOCH = 0
WS_FB = 0x1000
WS_FA = 0x11000
WS_AGG = 0x31000
WS_STG = 0x59000
WS_WSG = 0x61000
WS_B2S = [0x70000, 0x200000]
WS_A2 = [0x400000, 0x900000]
WS_PART = 0xF00000
WS_TS = 0x1400000
WS_SIZE = 0x1500000
FLS = 64
S_W = 3
SRD_X, SRD_W, SRD_WS, SRD_OUT, SRD_T1, SRD_T2 = 4, 8, 12, 16, 20, 24
S_TAG, S_TAG2, S_I, S_J, S_PAT = 28, 29, 30, 31, 32
S_PW = 33
S_FLAG = 34
S_OUT = 35
S_XO = 36
S_WO = 40
S_MX, S_MW = 45, 46
S_B2 = 47
S_T = 48
P0 = 64
def ptr(n): return s(P0 + 2*n, 2)
S_PAT32 = P0 + 18
S_NM = P0 + 19
S_WRAP, S_ST1, S_ST2 = 2, 0, 1
S_TS = 98
S_ST1K, S_ST2K = P0 + 2, P0 + 3
LOG2E = 1.4426950408889634
EPS = 1e-5
def fbits(x): return "0x%08x" % struct.unpack("<I", struct.pack("<f", x))[0]
POLL_MAX = 20000
LDS_RED = 16384
RED_RS = 336
RED_W = 64 * RED_RS
L_R = 106496
WS4 = s(SRD_WS, 4)
NOP = lambda: None

ST = dict(E=200, CH=201, PUB=202, TB=203, GA=204, VA=205, QE=206, CW=207, CR=208, TW=209, TR=210, PAT=211,
          RD=212, ROW=236, C4=241, RW=246)
S_MK = 68
S_AG1, S_AG4, S_A2B, S_RX, S_RL, S_RJ = 78, 79, 84, 85, 86, 87
class C5:
    def __init__(self, re, im=None, st=1):
        self.re = re; self.im = re + 1 if im is None else im; self.st = 2 if im is None else st
    def r(self, b): return self.re + self.st*b
    def i(self, b): return self.im + self.st*b

class G:
    def __init__(self, stop=None, ts=False, spin=0, seg=None, opt=()):
        self.k = Emit(); self.slow = []; self.stop = stop; self.ts = ts; self.spin = spin; self.seg = seg; self.opt = set(opt)

    def P(self, name, default):
        for o in self.opt:
            if o.startswith(name + "="): return float(o.split("=")[1])
        return default
    def stamp(self, idx):
        k = self.k
        if self.seg == idx:
            k("s_memrealtime s[98:99]\ns_waitcnt lgkmcnt(0)\ns_sub_u32 s101, s98, s100")
        if not self.ts: return
        k(f"{'s_memtime' if 'cyc' in self.opt else 's_memrealtime'} {s(S_TS,2)}")
        k("s_waitcnt lgkmcnt(0)")
        k(f"v_writelane_b32 v255, s{S_TS}, {idx}")
    def fine(self, idx):
        if 'fine' in self.opt: self.stamp(idx)
    def fine3(self):
        if 'fine3' in self.opt:
            self.stamp(16 + self.nf3); self.nf3 += 1
    def fine2(self):
        if 'fine2' in self.opt:
            self.stamp(16 + self.nf2); self.nf2 += 1
    def stamp_flush(self):
        if not self.ts: return
        self.k(f"""s_lshl_b32 s{S_T}, s99, 2
        v_readlane_b32 s{S_T}, v255, 63
        s_nop 3
        s_lshl_b32 s{S_T}, s{S_T}, 2
        s_add_u32 s{S_T}, s{S_T}, s{S_W}
        s_lshl_b32 s{S_T}, s{S_T}, 8
        s_add_u32 s{S_T}, s{S_T}, {WS_TS}
        v_mbcnt_lo_u32_b32 v254, -1, 0
        v_mbcnt_hi_u32_b32 v254, -1, v254
        v_lshlrev_b32 v254, 2, v254
        buffer_store_dword v255, v254, {WS4}, s{S_T} offen""")
    def early_stop(self, name):
        if self.stop != name: return False
        self.k("s_waitcnt vmcnt(0)"); self.stamp(13); self.stamp_flush(); self.k("s_endpgm")
        return True

    def srd(self, base, pn, size):
        self.k(f"""s_mov_b32 s{base}, s{P0+2*pn}
        s_and_b32 s{base+1}, s{P0+2*pn+1}, 0xffff
        s_mov_b32 s{base+2}, {size}
        s_mov_b32 s{base+3}, 0x20000""")
    def verify(self, check, reload, name, checked=False):
        k = self.k
        slow = k.newlabel(name); done = k.newlabel(name + "d")
        if not checked: check()
        k(f"s_cbranch_vccnz {slow}")
        k.label(done)
        self.slow.append((slow, done, check, reload))
    def flush_slow(self):
        k = self.k
        for slow, done, check, reload in self.slow:
            top = k.newlabel(slow + "t")
            k.label(slow)
            if self.ts:
                bit = {'pb': 1, 'pg': 2, 'ps': 2, 'pc': 4, 'va': 8, 'fa': 16, 'pp': 32, 'pe': 64}[slow[:2]]
                k(f"v_readlane_b32 s{S_T+15}, v255, 15\ns_nop 3\ns_or_b32 s{S_T+15}, s{S_T+15}, {bit}\nv_writelane_b32 v255, s{S_T+15}, 15")
            k(f"s_mov_b32 s{S_T+15}, {POLL_MAX}")
            k.label(top)
            reload()
            check()
            k(f"""s_cbranch_vccz {done}
            s_sub_u32 s{S_T+15}, s{S_T+15}, 1
            s_cmp_lg_u32 s{S_T+15}, 0
            s_cbranch_scc1 {top}
            s_branch {done}""")
        self.slow = []
    def set_flag(self, soff, vtmp, off=0):
        return self.k(f"""v_mov_b32 v{vtmp}, s{S_TAG}
        s_mov_b64 exec, 1
        buffer_store_dword v{vtmp}, off, {WS4}, s{soff} offset:{off} sc1
        s_mov_b64 exec, -1""")
    def capture(self, fn):
        real = self.k; rec = Emit(); rec._lab = real._lab
        self.k = rec
        try: fn(rec)
        finally: self.k = real
        L = [x.text for x in rec.ins]
        assert all(x.kind in ("salu", "valu", "trans") and not x.op.startswith("s_waitcnt") for x in rec.ins)
        out = []; i = 0
        while i < len(L):
            if L[i].startswith(("s_cmp", "s_bitcmp")):
                j = i + 1; last = i
                while j < len(L) and L[j].startswith(("s_cselect", "s_mov")):
                    if L[j].startswith("s_cselect"): last = j
                    j += 1
                out.append("\n".join(L[i:last+1])); i = last + 1
            else:
                out.append(L[i]); i += 1
        return out
    def emit(self, L):
        for x in L:
            x() if callable(x) else self.k(x)
    def sprinkle(self, work, q, lead=0):
        k = self.k; q = list(q); n0 = len(q); masked = False
        for i, w_ in enumerate(work):
            self.emit([w_])
            if isinstance(w_, str):
                if w_.startswith(("s_mov_b32 exec", "s_mov_b64 exec, s")) or "s_cselect_b64 exec" in w_: masked = True
                if w_.startswith("s_mov_b64 exec, -1"): masked = False
            while q and not masked and i >= lead and (n0 - len(q) + 1)*(len(work) - lead) <= (i - lead + 1)*(n0 + 1) + n0:
                q.pop(0)()
        for f in q: f()
    def cpow(self, dre, dim, n, zr, zi, t):
        return [f"v_mul_f32 v{t}, {n}, v{zi}", f"v_mul_f32 v{dre}, {n}, v{zr}", f"v_fract_f32 v{t}, v{t}",
                f"v_exp_f32 v{dre}, v{dre}", f"v_sin_f32 v{dim}, v{t}", f"v_cos_f32 v{t}, v{t}",
                f"v_mul_f32 v{dim}, v{dim}, v{dre}", f"v_mul_f32 v{dre}, v{t}, v{dre}"]
    def cmul5(self, d, x, y, c=None):
        L = []
        for b in range(5):
            L.append(f"v_mul_f32 v{d.r(b)}, v{x.r(b)}, v{y.r(b)}" if c is None else f"v_fma_f32 v{d.r(b)}, v{x.r(b)}, v{y.r(b)}, v{c.r(b)}")
            L.append(f"v_mul_f32 v{d.i(b)}, v{x.r(b)}, v{y.i(b)}" if c is None else f"v_fma_f32 v{d.i(b)}, v{x.r(b)}, v{y.i(b)}, v{c.i(b)}")
        for b in range(5):
            L.append(f"v_fma_f32 v{d.r(b)}, -v{x.i(b)}, v{y.i(b)}, v{d.r(b)}")
            L.append(f"v_fma_f32 v{d.i(b)}, v{x.i(b)}, v{y.r(b)}, v{d.i(b)}")
        return L
    def div20(self, q, r, x):
        return [f"v_mul_u32_u24 v{q}, 3277, v{x}", f"v_lshrrev_b32 v{q}, 16, v{q}", f"v_mul_u32_u24 v{r}, 20, v{q}", f"v_sub_u32 v{r}, v{x}, v{r}"]

    def prologue(self):
        k = self.k
        k(f"""s_cmp_ge_u32 s2, 256
        s_cbranch_scc1 L_end""")
        if self.spin: k("s_memrealtime s[100:101]")
        if 'align' in self.opt:
            k("""s_memrealtime s[98:99]
            s_waitcnt lgkmcnt(0)
            s_add_u32 s100, s98, 300
            s_and_b32 s100, s100, 0xfffffc00
            s_add_u32 s100, s100, 1024""")
            k.label("L_align")
            k("""s_memrealtime s[98:99]
            s_waitcnt lgkmcnt(0)
            s_cmp_lt_u32 s98, s100
            s_cbranch_scc1 L_align""")
        k(f"""s_load_dwordx16 {s(P0,16)}, s[0:1], 0
        s_load_dwordx16 {s(P0+16,16)}, s[0:1], 64
        s_load_dwordx2 {s(P0+32,2)}, s[0:1], 128""")
        if 'nopf' not in self.opt:
            k(f"""s_getpc_b64 {s(S_T,2)}""")
            k.label("L_pc")
            k(f"""s_bitcmp1_b32 s2, 0
            s_cselect_b32 s{S_T+2}, L_mlp-L_pc, 0
            s_add_u32 s{S_T}, s{S_T}, s{S_T+2}
            s_addc_u32 s{S_T+1}, s{S_T+1}, 0
            s_lshr_b32 s{S_T+2}, s2, 3
            s_lshl_b32 s{S_T+2}, s{S_T+2}, 10
            v_lshl_add_u32 v254, v0, 2, s{S_T+2}
            global_load_dword v254, v254, {s(S_T,2)}""")
        k("s_bitcmp1_b32 s2, 0\ns_cbranch_scc1 L_mlp")
        self.LV = 252; self.PV = 253

    def common_a(self):
        k = self.k
        if self.ts: k("v_mov_b32 v255, 0\nv_writelane_b32 v255, s2, 63")
        k(f"""v_lshrrev_b32 v1, 6, v0
        v_and_b32 v0, 63, v0
        v_readfirstlane_b32 s{S_W}, v1
        s_bfe_u32 s{S_T}, s2, 0x20001
        s_lshr_b32 s{S_T+1}, s2, 6           ; c = id>>6
        s_lshl_b32 s{S_I}, s{S_T+1}, 2
        s_add_u32 s{S_I}, s{S_I}, s{S_T}
        s_bfe_u32 s{S_J}, s2, 0x30003        ; j = (id>>3)&7
        s_lshl_b32 s{S_T}, s{S_I}, 3
        s_add_u32 s{S_T}, s{S_T}, s{S_J}
        s_lshl_b32 s{S_T}, s{S_T}, 2
        s_add_u32 s{S_PW}, s{S_T}, s{S_W}    ; (i*8+j)*4+w
        s_lshl_b32 s{S_FLAG}, s{S_PW}, 6
        s_lshl_b32 s{S_MX}, s{S_W}, 12
        s_lshl_b32 s{S_T+2}, s{S_I}, 7
        s_lshl_b32 s{S_T+3}, s{S_W}, 5
        s_add_u32 s{S_T+2}, s{S_T+2}, s{S_T+3}
        s_mul_i32 s{S_XO}, s{S_T+2}, 1280
        v_lshrrev_b32 v11, 4, v0                 ; g
        v_and_b32 v13, 7, v0
        v_xor_b32 v12, v13, v11
        v_lshlrev_b32 v12, 4, v12
        v_lshrrev_b32 v3, 3, v0
        v_mul_u32_u24 v3, 1280, v3
        v_lshl_add_u32 v253, v13, 4, v3          ; (l>>3)*1280 + (l&7)*16
        v_add_u32 v3, v3, v12                    ; (l>>3)*1280 + swz
        v_lshlrev_b32 v252, 4, v0
        """)
    def common_b(self):
        k = self.k
        k("s_waitcnt lgkmcnt(0)")
        if self.spin: k("s_mov_b32 s101, 0")
        k(f"s_load_dword s{S_TAG}, {ptr(16)}, {WS_EPOCH}")
        k(f"""s_mov_b32 s{SRD_X}, s{P0}
        s_mov_b32 s{SRD_X+1}, s{P0+1}
        s_mov_b32 s{SRD_X+2}, 2621440
        s_mov_b32 s{SRD_X+3}, 0x20000
        s_mov_b32 s{SRD_WS}, s{P0+32}
        s_mov_b32 s{SRD_WS+1}, s{P0+33}
        s_mov_b32 s{SRD_WS+2}, {WS_SIZE}
        s_mov_b32 s{SRD_WS+3}, 0x20000""")

    def make_tag(self):
        self.k(f"""s_waitcnt lgkmcnt(0)
        s_bitcmp1_b32 s{S_TAG}, 0
        s_cselect_b32 s{S_PAT}, 0x10000, 1        ; payload tag bits alternate from launch to launch
        s_cselect_b32 s{S_PAT32}, 2, 1
        s_mul_i32 s{S_TAG}, s{S_TAG}, 0x9E3779B1
        s_add_u32 s{S_TAG}, s{S_TAG}, 0x7F4A7C15
        s_and_b32 s{S_TAG}, s{S_TAG}, 0xfffefffc
        s_or_b32 s{S_TAG}, s{S_TAG}, s{S_PAT}
        s_or_b32 s{S_TAG}, s{S_TAG}, s{S_PAT32}
        s_xor_b32 s{S_TAG2}, s{S_TAG}, 0x5bd1e995
        s_brev_b32 s{S_TAG2}, s{S_TAG2}
        s_mov_b32 s{S_NM}, 0xfffefffe""")

    def rowstat_setup(self, s_row, s_cl, va, vr):
        self.k(f"""v_min_u32 v{vr}, s{s_cl}, v11
        v_mul_u32_u24 v{va}, 1280, v{vr}
        v_and_b32 v13, 15, v0
        v_lshl_add_u32 v{va}, v13, 4, v{va}
        v_lshlrev_b32 v{vr}, 4, v{vr}
        s_mul_i32 s{s_row}, s{s_row}, 1280""")
    def rowstat_loads(self, srd, s_row, va, R0):
        L = []
        for q in range(5):
            def f(q=q): self.rs_tok[q] = self.k(f"buffer_load_dwordx4 {v(R0+4*q,4)}, v{va}, {s(srd,4)}, s{s_row} offen offset:{256*q}")
            L.append(f)
        self.rs_tok = {}
        return L
    def rowstat_fill(self, R0, A0, T0, vr, s_dst, sq=True):
        k = self.k; L = []
        for q in range(20):
            if q % 4 == 0: L.append(lambda q=q: k.wait_vm(self.rs_tok[q//4]))
            t0, t1 = T0 + 2*(q % 2), T0 + 2*(q % 2) + 1
            L += [f"v_lshlrev_b32 v{t0}, 16, v{R0+q}", f"v_and_b32 v{t1}, 0xffff0000, v{R0+q}"]
            if q == 0: L += [f"v_add_f32 v{A0}, v{t0}, v{t1}", f"v_mul_f32 v{A0+2}, v{t0}, v{t0}", f"v_fmac_f32 v{A0+2}, v{t1}, v{t1}"]
            else: L += [f"v_add_f32 v{A0}, v{A0}, v{t0}", f"v_fmac_f32 v{A0+2}, v{t0}, v{t0}", f"v_add_f32 v{A0}, v{A0}, v{t1}", f"v_fmac_f32 v{A0+2}, v{t1}, v{t1}"]
        L += [f"v_mov_b32 v{A0+1}, s{S_TAG}", f"v_mov_b32 v{A0+3}, s{S_TAG2}"]
        for r in (8, 4, 2, 1):
            L += [f"v_add_f32_dpp v{A0}, v{A0}, v{A0} row_ror:{r} row_mask:0xf bank_mask:0xf", f"v_add_f32_dpp v{A0+2}, v{A0+2}, v{A0+2} row_ror:{r} row_mask:0xf bank_mask:0xf"]
        if not sq: L = [x for x in L if callable(x) or not x.split(",")[0].endswith((f"v{A0+2}", f"v{A0+3}"))]
        L.append(lambda: k(f"""s_mov_b32 exec_lo, 0x00010001
        s_mov_b32 exec_hi, 0x00010001
        buffer_store_dwordx{4 if sq else 2} {v(A0,4 if sq else 2)}, v{vr}, {WS4}, s{s_dst} offen sc1
        s_mov_b64 exec, -1"""))
        return L
    @staticmethod
    def cost(x):
        if callable(x): return 1
        if x.startswith(("v_exp", "v_rcp", "v_rsq", "v_sin", "v_cos")): return 2
        return 1
    def take_fill(self, fq, n, cap):
        out = []
        while fq:
            x = fq[0]
            if isinstance(x, tuple):
                if x[0] == 'at':
                    if n < x[1]: break
                    fq.pop(0); continue
                if x[0] == 'mark':
                    self.marks[x[1]] = n; fq.pop(0); continue
            c = self.cost(x)
            if cap <= 0 or (c > cap and out): break
            cap -= c; out.append(fq.pop(0))
        return out
    def dma_reset(self):
        self.m0 = None; self.vstage = {}; self.sstage = 0
    def tile_of(self, t, dst):
        o = self.opt; r = S_WRAP
        if 'blk4' in o:
            if t < 8: return f"s_add_u32 s{dst}, s{r}, {t}\ns_and_b32 s{dst}, s{dst}, 3\ns_or_b32 s{dst}, s{dst}, {t & ~3}"
            return f"s_and_b32 s{dst}, s{r}, 1\ns_xor_b32 s{dst}, s{dst}, {t}"
        if 'blk5' in o:
            return f"s_add_u32 s{dst}, s{r}, {t % 5}\ns_cmp_ge_u32 s{dst}, 5\ns_cselect_b32 s{S_ST2K}, 5, 0\ns_sub_u32 s{dst}, s{dst}, s{S_ST2K}\ns_add_u32 s{dst}, s{dst}, {t - t % 5}"
        if 'rotlat' in o:
            return f"s_add_u32 s{dst}, s{r}, {t}\ns_cmp_ge_u32 s{dst}, 10\ns_cselect_b32 s{S_ST2K}, 10, 0\ns_sub_u32 s{dst}, s{dst}, s{S_ST2K}"
        return f"s_xor_b32 s{dst}, s{r}, {t}"
    def rot_setup(self, regs128, regsW):
        k = self.k; o = self.opt; r = S_WRAP
        k(f"s_lshr_b32 s{S_T}, s{S_I}, 2")
        if 'rot0' in o: k(f"s_mov_b32 s{r}, 0")
        elif 'blk4' in o: k(f"s_add_u32 s{r}, s{S_T}, s{S_J}\ns_and_b32 s{r}, s{r}, 3")
        elif 'blk5' in o: k(f"s_add_u32 s{r}, s{S_T}, s{S_J}\ns_and_b32 s{r}, s{r}, 3")
        elif 'rotlat' in o: k(f"s_lshl_b32 s{S_T}, s{S_T}, 1\ns_add_u32 s{S_T}, s{S_T}, s{S_J}\ns_and_b32 s{S_T}, s{S_T}, 7\ns_mul_i32 s{S_T}, s{S_T}, 5\ns_lshr_b32 s{r}, s{S_T}, 2")
        else: k(f"s_add_u32 s{r}, s{S_T}, s{S_J}\ns_and_b32 s{r}, s{r}, 1")
        k(f"s_mov_b32 s{S_ST1}, s{r}\ns_lshl_b32 s{S_ST2}, s{r}, 7")
        for x in regs128: k(f"v_add_u32 v{x}, s{S_ST2}, v{x}")
        if regsW: k(f"s_mul_i32 s{S_ST2}, s{S_ST2}, 1536")
    def dma(self, m0, ld, vreg=None, t=0, step=0):
        k = self.k
        def pre():
            if self.m0 != m0:
                k(f"s_add_u32 m0, s{m0[0]}, {m0[1]}"); self.m0 = m0
            if vreg is not None and self.vstage.get(vreg, 0) != t:
                assert self.vstage.get(vreg, 0) == t - 1
                if self.sstage != t:
                    k(self.tile_of(t, S_ST2))
                    k(f"s_sub_u32 s{S_ST1K}, s{S_ST2}, s{S_ST1}\ns_mov_b32 s{S_ST1}, s{S_ST2}\ns_lshl_b32 s{S_ST1K}, s{S_ST1K}, 7")
                    if self.has_w: k(f"s_mul_i32 s{S_ST2K}, s{S_ST1K}, 1536")
                    self.sstage = t
                k(f"v_add_u32 v{vreg}, s{S_ST1K if step == 128 else S_ST2K}, v{vreg}"); self.vstage[vreg] = t
        return pre, ld

    def unit_decode(self, nunits, U):
        self.k(f"""s_sub_u32 s{S_T}, s{S_PW}, {nunits}
        s_cmp_lt_u32 s{S_PW}, {nunits}
        s_cselect_b32 s{U}, s{S_PW}, s{S_T}
        s_mul_i32 s{S_T+2}, s{U}, 6554
        s_lshr_b32 s{S_T+2}, s{S_T+2}, 16
        s_mul_i32 s{S_T}, s{S_T+2}, 10
        s_sub_u32 s{S_T}, s{U}, s{S_T}""")

    def b2_setup(self, side):
        k = self.k; vl = self.PV
        S = [40, 48][side]; KS = [10, 12][side]
        if side == 0:
            V = f"""v_min_u32 v{vl}, 14, v0
            v_mul_u32_u24 v{vl+1}, 86, v{vl}
            v_lshrrev_b32 v{vl+1}, 8, v{vl+1}
            v_mul_u32_u24 v{vl+1}, 7, v{vl+1}
            v_add_lshl_u32 v{vl}, v{vl}, v{vl+1}, 6"""
            L = f"""s_mul_i32 s{S_T+12}, s{S_W}, 10
            s_lshr_b32 s{S_T+12}, s{S_T+12}, 2
            s_mul_i32 s{S_T+3}, s{S_J}, 50"""
        else:
            V = f"""v_min_u32 v{vl}, 23, v0
            v_lshrrev_b32 v{vl+1}, 1, v{vl}
            v_lshlrev_b32 v{vl+1}, 3, v{vl+1}
            v_add_lshl_u32 v{vl}, v{vl}, v{vl+1}, 6"""
            L = f"""s_mul_i32 s{S_T+12}, s{S_W}, 120
            s_mul_i32 s{S_T+3}, s{S_J}, 5
            s_lshr_b32 s{S_T+3}, s{S_T+3}, 2"""
        k(L + f"""
        s_add_u32 s{S_T+12}, s{S_T+12}, s{S_T+3}
        s_lshl_b32 s{S_T+12}, s{S_T+12}, 6
        s_add_u32 s{S_T+12}, s{S_T+12}, {WS_FB + side*512*FLS}
        s_mul_i32 s{S_B2}, s{S_J}, {5*S}
        s_mul_i32 s{S_T+3}, s{S_W}, {KS}
        s_add_u32 s{S_B2}, s{S_B2}, s{S_T+3}
        s_lshl_b32 s{S_B2}, s{S_B2}, 10
        s_add_u32 s{S_B2}, s{S_B2}, {WS_B2S[side]}""")
        self.order = [[0, 5, 1, 6, 2, 7, 3, 8, 4, 9], [0, 3, 6, 9, 1, 4, 7, 10, 2, 5, 8, 11]][side]
        self.b2tok = {}; self.b2q = []
        for ss in self.order:
            for cc in range(5):
                def ld(ss=ss, cc=cc):
                    k = self.k
                    k(f"s_add_u32 s{P0+30}, s{S_B2}, {(cc*S + ss)*1024}")
                    self.b2tok[ss, cc] = k(f"buffer_load_dwordx4 {a((ss*5+cc)*4,4)}, v{self.LV}, {WS4}, s{P0+30} offen sc1")
                self.b2q.append(ld)
        return [x.strip() for x in V.split("\n")]
    def touch(self, side, vt):
        k = self.k
        nx = 20; nw = [25, 30][side]
        def f1():
            k(f"""s_add_u32 s{S_T}, s{S_PW}, {512*side}
            s_mul_i32 s{S_T}, s{S_T}, {nx*128}
            v_min_u32 v{vt}, {nx-1}, v0
            v_lshlrev_b32 v{vt}, 7, v{vt}
            buffer_load_dword v{vt}, v{vt}, {s(SRD_X,4)}, s{S_T} offen""")
        def f2():
            if side == 0: k(f"s_lshr_b32 s{S_T}, s{S_PW}, 2\ns_lshl_b32 s{S_T}, s{S_T}, 1\ns_and_b32 s{S_T+1}, s{S_W}, 1\ns_add_u32 s{S_T}, s{S_T}, s{S_T+1}")
            else: k(f"s_mov_b32 s{S_T}, s{S_PW}")
            k(f"""s_mul_i32 s{S_T}, s{S_T}, {nw*128}
            v_min_u32 v{vt+1}, {nw-1}, v0
            v_lshlrev_b32 v{vt+1}, 7, v{vt+1}
            buffer_load_dword v{vt+1}, v{vt+1}, {s(SRD_W,4)}, s{S_T} offen""")
        def f3():
            k(f"""v_min_u32 v{vt}, 9, v0
            v_lshlrev_b32 v{vt}, 21, v{vt}
            v_min_u32 v{vt+1}, 2, v0
            v_lshlrev_b32 v{vt+1}, 21, v{vt+1}
            buffer_load_dword v{vt}, v{vt}, {WS4}, 0 offen offset:2048
            global_load_dword v{vt+1}, v{vt+1}, {ptr(14)}""")
            if side == 0:
                k(f"""v_mov_b32 v{vt-2}, 0
                global_load_dword v{vt-1}, v{vt-2}, {ptr(8)}
                global_load_dword v{vt-2}, v{vt-2}, {ptr(13)}""")
        if 'tlb' in self.opt: return [f3]
        return [f1, f2] if 'touch' in self.opt else []
    def b2_take(self, n):
        out = self.b2q[:n]; self.b2q = self.b2q[n:]
        return out
    def b2_poll(self):
        self.pbtok = self.k(f"buffer_load_dword v254, v{self.PV}, {WS4}, s{S_T+12} offen sc1")
    def b2_check(self):
        k = self.k
        k.wait_vm(self.pbtok)
        def rl(): k(f"buffer_load_dword v254, v{self.PV}, {WS4}, s{S_T+12} offen sc1\ns_waitcnt vmcnt(0)")
        self.verify(lambda: k(f"v_cmp_ne_u32 vcc, s{S_TAG}, v254"), rl, "pb")

    TB_RS = 184
    def ssm(self):
        k = self.k
        ACC = 16; FR = [96, 144]
        XE, XO, WA, WB = 1, 2, 3, 4
        PV = self.PV; LV = self.LV; RS = self.TB_RS
        STG0, STGS = 16384, 36864
        S_RSROW, SW0, S_GW, S_GT, D2, S_RSDST, S_FB = S_T+5, S_T+6, S_T+8, S_T+9, S_T+10, S_T+13, S_T+14
        acc = lambda a_, tt: ACC + (a_*10 + tt)*4
        k.c("================ SSM side, phase 1")
        self.common_a()
        self.nf3 = 0; self.marks = {}
        k(f"""v_lshrrev_b32 v13, 3, v0
        v_and_b32 v13, 3, v13
        v_lshrrev_b32 v15, 5, v0
        v_lshl_add_u32 v13, v15, 3, v13
        v_mul_u32_u24 v{XE}, 1280, v13
        v_add_u32 v{XE}, v{XE}, v12
        v_xor_b32 v{XO}, 64, v{XE}
        s_and_b32 s{S_T+4}, s{S_W}, 1
        s_lshl_b32 s{S_T+1}, s{S_T+4}, 6
        v_xor_b32 v{WA}, s{S_T+1}, v{WA}
        v_xor_b32 v{WB}, 64, v{WA}
        s_add_u32 s{S_XO+1}, s{S_XO}, {16*1280 - 1024}
        s_add_u32 s{S_XO+2}, s{S_XO}, {4*1280 - 2048}
        s_add_u32 s{S_XO+3}, s{S_XO}, {20*1280 - 3072}""")
        stage_tok = {}; stage_cnt = {}
        self.dma_reset(); self.has_w = False
        self.rot_setup([XE, XO, WA, WB], False)
        self.common_b()
        self.stamp(0); self.fine3()
        def dma_list(t):
            base = STG0 + (t % 4)*STGS
            L = []
            def mk(ld):
                def f():
                    stage_tok[t] = k(ld); stage_cnt[t] = stage_cnt.get(t, 0) + 1
                return f
            for e in range(4):
                vr = XE if e % 2 == 0 else XO
                L.append(self.dma((S_MX, base), mk(f"buffer_load_dwordx4 v{vr}, {s(SRD_X,4)}, s{S_XO+e} offen offset:{e*1024} lds"), vr, t, 128))
            for e in range(5):
                vr = WA if e % 2 == 0 else WB
                L.append(self.dma((S_MW, base + 16384 + (e//4)*4096), mk(f"buffer_load_dwordx4 v{vr}, {s(SRD_W,4)}, s{S_WO+e} offen offset:{(e%4)*1024} lds"), vr, t, 128))
            return L
        d0 = dma_list(0)
        for p in d0[:4]: self.emit(p)
        k(f"""s_cmp_lt_u32 s{S_W}, 2
        s_cselect_b32 s{SRD_W}, s{P0+6}, s{P0+8}
        s_cselect_b32 s{SRD_W+1}, s{P0+7}, s{P0+9}
        s_mov_b32 s{SRD_W+2}, 819200
        s_mov_b32 s{SRD_W+3}, 0x20000
        s_mul_i32 s{S_T+7}, s{S_J}, 80
        s_mul_i32 s{S_T+3}, s{S_T+4}, 40
        s_add_u32 s{S_T+2}, s{S_T+7}, s{S_T+3}
        s_mul_i32 s{S_WO}, s{S_T+2}, 1280
        s_add_u32 s{S_WO+1}, s{S_WO}, {8*1280 - 1024}
        s_add_u32 s{S_WO+2}, s{S_WO}, {16*1280 - 2048}
        s_add_u32 s{S_WO+3}, s{S_WO}, {24*1280 - 3072}
        s_add_u32 s{S_WO+4}, s{S_WO}, {32*1280}
        s_mul_i32 s{S_MW}, s{S_W}, 5120""")
        self.emit(d0[4])
        VLR, VLI, VDT, ZR, ZI, VT, VP, TA, TB_ = 218, 219, 220, 221, 222, 223, 224, 225, 226
        self.emit(self.div20(VT, VP, 0))
        k(f"""s_mul_i32 s{S_T+1}, s{S_W}, 20
        v_add_u32 v{VP}, s{S_T+1}, v{VP}
        v_add_lshl_u32 v{VDT}, v{VP}, s{S_T+7}, 1""")
        def vec():
            k(f"global_load_ushort v{VLR}, v{VDT}, {ptr(1)}\nglobal_load_ushort v{VLI}, v{VDT}, {ptr(2)}")
            self.vec_tok = k(f"global_load_ushort v{VDT}, v{VDT}, {ptr(7)}")
        d1 = dma_list(1)
        R0, A0, T0 = 192, 212, 227
        rs = self.rowstat_loads(SRD_T1, S_RSROW, 15, R0)
        def setup(k):
            k(f"""s_cmp_lt_u32 s{S_I}, 8
            s_cselect_b32 s{SRD_T1}, s{P0+6}, s{P0+8}
            s_cselect_b32 s{SRD_T1+1}, s{P0+7}, s{P0+9}
            s_mov_b32 s{SRD_T1+2}, 819200
            s_mov_b32 s{SRD_T1+3}, 0x20000
            s_mul_i32 s{S_T+4}, s{S_W}, 3
            s_and_b32 s{S_T+2}, s{S_I}, 7
            s_mul_i32 s{S_T+2}, s{S_T+2}, 10
            s_add_u32 s{S_T+2}, s{S_T+2}, s{S_T+7}
            s_add_u32 s{S_RSROW}, s{S_T+2}, s{S_T+4}     ; rows 80j + 10(i%8) + 3w + ..
            s_mul_i32 s{S_T+3}, s{S_J}, 160
            s_mul_i32 s{S_T+6}, s{S_I}, 10
            s_add_u32 s{S_T+3}, s{S_T+3}, s{S_T+6}
            s_add_u32 s{S_T+3}, s{S_T+3}, s{S_T+4}
            s_lshl_b32 s{S_T+3}, s{S_T+3}, 4
            s_add_u32 s{S_RSDST}, s{S_T+3}, {WS_WSG}
            s_cmp_eq_u32 s{S_W}, 3
            s_cselect_b32 s{S_T+1}, 0, 2""")

            self.rowstat_setup(S_RSROW, S_T+1, 15, 14)

            self.unit_decode(400, S_FB)
            k(f"""s_mul_i32 s{S_T+1}, s{S_T+2}, {16*1280}
            s_lshl_b32 s{S_T+3}, s{S_T}, 7
            s_add_u32 s{SW0}, s{S_T+1}, s{S_T+3}
            s_add_u32 s{SW0+1}, s{SW0}, {8*1280 - 1024}
            s_mul_i32 s{S_T+3}, s{S_T+2}, 40
            s_lshl_b32 s{S_T+4}, s{S_T}, 2
            s_add_u32 s{S_T+3}, s{S_T+3}, s{S_T+4}
            s_lshl_b32 s{S_T+3}, s{S_T+3}, 10
            s_add_u32 s{D2}, s{S_T+3}, {WS_B2S[0]}
            s_lshl_b32 s{S_FB}, s{S_FB}, 6
            s_add_u32 s{S_FB}, s{S_FB}, {WS_FB}
            s_mul_i32 s{S_GW}, s{S_J}, 2560
            s_mul_i32 s{S_T}, s{S_W}, 640
            s_add_u32 s{S_GW}, s{S_GW}, s{S_T}
            s_add_u32 s{S_GW}, s{S_GW}, {WS_WSG}
            s_lshl_b32 s{S_GT}, s{S_I}, 11
            s_lshl_b32 s{S_T}, s{S_W}, 9
            s_add_u32 s{S_GT}, s{S_GT}, s{S_T}
            s_add_u32 s{S_GT}, s{S_GT}, {WS_STG}
            v_and_b32 v11, 15, v0
            v_lshrrev_b32 v12, 4, v0
            v_lshrrev_b32 v13, 1, v11
            v_xor_b32 v13, v13, v12
            v_lshlrev_b32 v13, 4, v13
            v_lshl_add_u32 v13, v11, 7, v13
            v_add_u32 v5, {STG0}, v13
            v_add_u32 v5, s{S_MX}, v5
            v_xor_b32 v6, 64, v5
            v_add_u32 v7, {STG0+16384}, v13
            v_xor_b32 v8, 64, v7
            v_add_u32 v9, {2*STGS}, v5
            v_add_u32 v10, {2*STGS}, v6
            v_add_u32 v250, {2*STGS}, v7
            v_add_u32 v251, {2*STGS}, v8
            v_lshlrev_b32 v13, 7, v11
            v_lshrrev_b32 v12, 5, v0
            v_lshl_add_u32 v13, v12, 11, v13
            v_bfe_u32 v12, v0, 4, 1
            v_lshl_add_u32 v13, v12, 4, v13
            v_add_u32 v13, s{S_MX}, v13
            v_mul_u32_u24 v11, {RS}, v11             ; table row of this lane's column
            v_mul_u32_u24 v{TA}, {RS}, v{VP}
            v_and_b32 v216, 31, v0
            v_lshlrev_b32 v216, 4, v216
            v_min_u32 v217, 39, v0
            v_lshlrev_b32 v217, 4, v217""")
            self.b2v = self.b2_setup(0)
            self.srd(SRD_T2, 5, 819200)
            self.srd(SRD_OUT, 6, 819200)
            self.ssm_stash(k, VT, VP)
        pre_mem = [(lambda p=p: self.emit(p)) for p in d0[5:]] + [vec] + [(lambda p=p: self.emit(p)) for p in d1[:7]]
        su = self.capture(setup)
        nA = [i for i, x in enumerate(su) if x.startswith("v_and_b32 v19")][0]
        self.sprinkle(su[:nA], pre_mem[:int(self.P('npre', 7))])
        self.sprinkle(su[nA:], pre_mem[int(self.P('npre', 7)):] + [(lambda p=p: self.emit(p)) for p in d1[7:]])
        b2v = self.b2v; vec_tok = self.vec_tok
        tk = {}
        swq = []
        for e in range(4):
            def f(e=e): tk['d2'] = k(f"buffer_load_dwordx4 v{PV}, {s(SRD_T2 if e < 2 else SRD_OUT,4)}, s{SW0+e%2} offen offset:{(e%2)*1024} lds")
            swq.append(self.dma((S_MX, (e//2)*2048), f))
        self.make_tag()
        k(f"""v_and_b32 v16, 1, v0
        v_lshlrev_b32 v16, 4, v16
        v_lshrrev_b32_e64 v16, v16, s{S_PAT}
        v_and_b32 v16, 1, v16
        v_mul_u32_u24 v16, 0x10001, v16
        v_accvgpr_write_b32 a{ST['PAT']}, v16""")
        RXA = [[5, 6], [9, 10]]; RWA = [[7, 8], [250, 251]]
        rtok = {}
        def mkreads(n):
            st = FR[n % 2]; ks = n % 2; sl = (n//2) % 4; o = (sl % 2)*STGS
            R = [f"ds_read_b128 {v(st+4*a_,4)}, v{RXA[sl//2][ks]} offset:{o+a_*2048}" for a_ in range(2)]
            R += [f"ds_read_b128 {v(st+8+4*tt,4)}, v{RWA[sl//2][ks]} offset:{o+tt*2048}" for tt in range(10)]
            L = []
            for i, r in enumerate(R):
                def f(i=i, r=r): rtok[n, i] = k(r)
                L.append(f)
            return L
        self.fine3()
        k.wait_vm(stage_tok[0])
        self.fine3()
        k("s_barrier")
        self.fine3()
        self.stamp(1)
        k.label("L_ssm_code")
        self.emit(mkreads(0))
        LAM, LAM2, LAM4, WSUM = C5(192), C5(202), C5(212), C5(222)
        AT, BT, TG = 232, 240, 192
        L_AB = 14720
        mq = []
        def q_stage(t):
            for p_, l_ in dma_list(t): mq.append([max(2*(t-3), 0), 1, p_, l_])
        def sw_store(cc):
            def f():
                k.wait_lg(tk['r2'])
                tk['s2'] = k(f"buffer_store_dwordx4 {a(220+4*cc,4)}, v{LV}, {WS4}, s{D2} offen offset:{1024*cc} sc1")
            return f
        def gl1(): k(f"buffer_load_dwordx4 {v(TG,4)}, v216, {WS4}, s{S_GT} offen sc1")
        def gl2(): tk['gr'] = k(f"buffer_load_dwordx2 {v(TG+4,2)}, v217, {WS4}, s{S_GW} offen sc1")
        NSW, NFLAG, NGL, NGC, NPOLL, NCHK = [int(self.P(a_, b_)) for a_, b_ in (('snsw', 3), ('snfl', 9), ('sngl', 13), ('sngc', 16), ('snpo', 14), ('snck', 17))]
        prs, psw, pst = int(self.P('prs', 1)), int(self.P('psw', 2)), int(self.P('pst', 4))
        for t in range(1, 10):
            if t > 1: q_stage(t)
            if t == prs: mq += [[0, 1, None, f] for f in rs]
            if t == psw: mq += [[0, 1, p_, l_] for p_, l_ in swq]
            if t == pst: mq += [[NSW+1, 2, None, sw_store(cc)] for cc in range(4)]
        late = {NGL: [[NGL, 1, None, gl1], [NGL, 1, None, gl2]]}
        late[NPOLL] = late.get(NPOLL, []) + [[NPOLL, 0.5, None, self.b2_poll]]
        def swr():
            k.wait_vm(tk['d2'])
            for ss in range(4): tk['r2'] = k(f"ds_read_b128 {a(220+4*ss,4)}, v13 offset:{32*ss}")
        fq = [lambda: k.wait_vm(vec_tok)]
        fq += [x.strip() for x in f"""v_lshlrev_b32 v{VDT}, 16, v{VDT}
        v_mul_f32 v{VDT}, {fbits(LOG2E)}, v{VDT}
        v_exp_f32 v{VDT}, v{VDT}
        v_lshlrev_b32 v{VLR}, 16, v{VLR}
        v_lshlrev_b32 v{VLI}, 16, v{VLI}
        v_cvt_pk_bf16_f32 v{VDT}, v{VDT}, v{VDT}
        v_and_b32 v{VDT}, 0xffff0000, v{VDT}
        v_mul_f32 v{ZR}, v{VLR}, v{VDT}
        v_mul_f32 v{ZI}, v{VLI}, v{VDT}
        v_mul_f32 v{ZR}, {fbits(LOG2E)}, v{ZR}
        v_mul_f32 v{ZI}, 0.15915494, v{ZI}
        v_accvgpr_write_b32 a250, v{ZR}
        v_accvgpr_write_b32 a251, v{ZI}
        v_accvgpr_write_b32 a252, v{VLR}
        v_accvgpr_write_b32 a253, v{VLI}
        v_mov_b32 v232, {fbits(8.0)}""".split("\n")]
        LM = 240
        P = [self.cpow(LM, LM+1, "1.0", ZR, ZI, 233), self.cpow(248, 249, "v232", ZR, ZI, 235)]
        fq += [x[i] for i in range(8) for x in P]
        fq += [x.strip() for x in f"""v_accvgpr_write_b32 a254, v{LM}
        v_accvgpr_write_b32 a255, v{LM+1}
        v_mul_f32 v{LM+2}, v{LM}, v{LM}
        v_mul_f32 v{LM+3}, v{LM}, v{LM+1}
        v_fma_f32 v{LM+2}, -v{LM+1}, v{LM+1}, v{LM+2}
        v_add_f32 v{LM+3}, v{LM+3}, v{LM+3}
        v_mul_f32 v{LM+4}, v{LM+2}, v{LM+2}
        v_mul_f32 v{LM+5}, v{LM+2}, v{LM+3}
        v_fma_f32 v{LM+4}, -v{LM+3}, v{LM+3}, v{LM+4}
        v_add_f32 v{LM+5}, v{LM+5}, v{LM+5}""".split("\n")]
        rsf = self.rowstat_fill(R0, A0, T0, 14, S_RSDST, sq=False)
        fq += [('at', int(self.P('srs', 2)))] + rsf + [('mark', 'rs')]
        fq += b2v + [('mark', 'gaddr')]
        fq += [('at', (NSW | 1) + 1 + (NSW & 1)*2)] + [f"ds_write_b64 v{TA}, {v(LM+2*q,2)} offset:{144+8*q}" for q in range(3)]
        fq += [('mark', 'table')]
        def flg():
            k.wait_vm(tk['s2']); self.set_flag(S_FB, 15)
        flags = {NFLAG: flg, NSW: swr}
        pre_st = [x.strip() for x in f"""s_lshl_b32 s{S_T}, s{S_W}, 7
        v_lshrrev_b32 v12, 2, v216
        v_add_u32 v12, s{S_T}, v12
        v_add_u32 v12, {L_AB}, v12
        v_lshrrev_b32 v14, 4, v0
        v_lshl_add_u32 v239, v14, 5, s{S_T}
        s_and_b32 s{S_T}, s{S_W}, 1
        s_mul_i32 s{S_T}, s{S_T}, 40
        v_lshrrev_b32 v13, 4, v217
        v_add_u32 v13, s{S_T}, v13
        v_mul_u32_u24 v13, {RS}, v13
        s_lshr_b32 s{S_T}, s{S_W}, 1
        s_lshl_b32 s{S_T}, s{S_T}, 2
        v_add_u32 v13, s{S_T}, v13
        s_mov_b32 s{S_T}, {fbits(1.0/640)}""".split("\n")]
        stq = [x.strip() for x in f"""ds_write_b32 v13, v{TG+4} offset:176
        v_mul_f32 v{TG}, s{S_T}, v{TG}
        v_mul_f32 v15, v{TG}, v{TG}
        v_fma_f32 v15, v{TG+2}, s{S_T}, -v15
        v_max_f32 v15, 0, v15
        v_add_f32 v15, {fbits(EPS)}, v15
        v_rsq_f32 v15, v15
        v_mul_f32_e64 v{TG}, v{TG}, -v15
        ds_write2st64_b32 v12, v15, v{TG} offset0:0 offset1:2""".split("\n")]
        fq += pre_st + [('at', 14)] + [f"ds_read_b64 {v(LAM2.r(b),2)}, v11 offset:{16*b*RS+152}" for b in range(5)]
        fq += [('at', NGC)] + stq + [('mark', 'stats')]
        fq += [f"ds_read_b64 {v(LAM4.r(b),2)}, v11 offset:{16*b*RS+160}" for b in range(5)]
        NRD = int(self.P('snrd', 18))
        fq += [('at', NRD)] + [f"ds_read_b64 {v(LAM.r(b),2)}, v11 offset:{16*b*RS+144}" for b in range(5)]
        fq += [f"ds_read_b128 {v(AT+4*q,4)}, v239 offset:{L_AB+16*(q%2)+512*(q//2)}" for q in (3, 2, 0, 1)]
        fq += [f"ds_read_b64 {v(WSUM.r(b),2)}, v11 offset:{16*b*RS+176}" for b in range(5)]
        credit = 0.0; b2on = False
        for n in range(20):
            st = FR[n % 2]
            k.c(f"---- ssm k-step {n}")
            self.fine(16 + n)
            if n == NGC:
                k.wait_vm(tk['gr'])
                def check():
                    k(f"""v_xor_b32 v15, s{S_TAG}, v{TG+1}
                    v_bitop3_b32 v15, s{S_TAG2}, v{TG+3}, v15 bitop3:0xbe
                    v_bitop3_b32 v15, s{S_TAG}, v{TG+5}, v15 bitop3:0xbe
                    v_cmp_ne_u32 vcc, 0, v15""")
                def rl():
                    gl1(); gl2(); k("s_waitcnt vmcnt(0)")
                self.verify(check, rl, "pg")
            if n == NCHK:
                self.b2_check(); b2on = True
            if n == NGL: assert self.marks['rs'] < n
            if n == NPOLL: assert self.marks['gaddr'] < n
            mq[0:0] = late.get(n, [])
            mem = []
            mmax = int(self.P('smax', 9)) if n < self.P('sfast', 2) else int(self.P('scap', 5))
            while len(mem) < mmax:
                if mq and mq[0][0] <= n: it_ = mq.pop(0)
                elif b2on and self.b2q and len(mem) < self.P('sb2', 5): it_ = [n, 1, None, self.b2q.pop(0)]
                else: break
                mem.append(it_)
            rd = mkreads(n+1) if n + 1 < 20 else []
            slots = [[] for _ in range(20)]
            if n % 2 == 0:
                rslots = [0, 1, 3, 4, 6, 7, 9, 10, 12, 13, 15, 16]; pref = [2, 8, 14, 19, 5, 11, 17, 18, 0, 6, 12, 3, 9, 15, 1, 4]
            else:
                rslots = [4, 5, 6, 8, 9, 10, 12, 13, 14, 16, 17, 18]; pref = [0, 7, 15, 2, 11, 19, 1, 5, 9, 13, 17, 4, 8, 12, 16, 6]
                if n + 1 < 20:
                    T_ = (n + 1)//2
                    def f(T_=T_):
                        assert stage_cnt[T_] == 9
                        k.wait_both(stage_tok[T_], k.lg_issued)
                        k("s_barrier")
                    slots[3] += [f]
            mslots = sorted(pref[:len(mem)])
            cap = [2]*20
            for sl, r in zip(rslots, rd): slots[sl].append(r); cap[sl] = 1
            for sl, it_ in zip(mslots, mem):
                slots[sl] = [it_[3]] + slots[sl]; cap[sl] -= 1
            if n % 2 == 1 and n + 1 < 20: cap[3] = 0
            i = 0
            for tt in range(10):
                for a_ in range(2):
                    if i in mslots[:len(mem)] and i == 0 and mem[0][2]: mem[0][2]()
                    grp = {0: 1, 2: 9} if n % 2 == 1 else {0: tt, 1: tt, 2: tt, 3: tt, 4: tt, 5: tt, 6: tt, 7: tt, 8: tt, 9: tt} if n == 0 else {0: 3, 4: 6, 7: 9}
                    if a_ == 0 and tt in grp: k.wait_lg(rtok[n, 2+grp[tt]])
                    assert k.lg_done >= rtok[n, 2+tt]
                    c_ = "0" if n == 0 else v(acc(a_, tt), 4)
                    k(f"v_mfma_f32_16x16x32_bf16 {v(acc(a_,tt),4)}, {v(st+4*a_,4)}, {v(st+8+4*tt,4)}, {c_}")
                    self.emit(slots[i])
                    c0 = cap[i]
                    if i + 1 in mslots[:len(mem)]:
                        n0 = len(k.ins); pre_ = mem[mslots.index(i+1)][2]
                        if pre_: pre_()
                        c0 -= len(k.ins) - n0
                    if c0 > 0 and (cap[i] == 2 or i % int(self.P('sden', 1)) == 0): self.emit(self.take_fill(fq, n, c0))
                    if i == 19 and n in flags: flags[n]()
                    i += 1
        self.emit([x for x in fq if not isinstance(x, tuple)])
        assert not mq and self.marks['table'] <= 12 and self.marks['stats'] <= NRD - 2 + (NRD & 1), self.marks
        self.info = f"ssm b2 left {len(self.b2q)} marks {self.marks} tail {len(fq)}"
        k.c('loop end')
        self.stamp(2)
        if self.early_stop("loop"): return
        self.ssm_epilogue(ACC, AT, BT, LAM, LAM2, LAM4, WSUM, L_AB)

    def ssm_stash(self, k, VT, VP):
        RS = self.TB_RS; L_C = 102400
        t0, t1, t2, col, g, seg = 16, 17, 18, 19, 20, 21
        put = lambda n, r: k(f"v_accvgpr_write_b32 a{n}, v{r}")
        k(f"""v_and_b32 v{col}, 15, v0
        v_lshrrev_b32 v{g}, 4, v0
        s_lshl_b32 s{S_T}, s{S_W}, 2
        v_add_u32 v{seg}, s{S_T}, v{g}
        v_mul_u32_u24 v{t0}, 768, v{seg}
        v_mul_u32_u24 v{t1}, 48, v{col}
        v_add_u32 v{t0}, v{t0}, v{t1}""")
        put(ST['E'], t0)
        k(f"""v_and_b32 v{t0}, 15, v{VP}
        v_lshrrev_b32 v{t2}, 4, v{VP}
        v_mul_u32_u24 v{t1}, 48, v{t0}
        v_lshl_add_u32 v{t1}, v{t2}, 3, v{t1}""")
        put(ST['CH'], t1)
        k(f"""v_min_u32 v{VT}, 2, v{VT}
        v_mul_u32_u24 v{t0}, 160, v{t0}
        v_lshlrev_b32 v{t2}, 5, v{t2}
        v_lshl_add_u32 v{t2}, v{VT}, 3, v{t2}
        v_add3_u32 v{t0}, v{t0}, v{t2}, 0
        v_add_u32 v{t0}, {L_C}, v{t0}""")
        put(ST['CW'], t0)
        k(f"v_lshlrev_b32 v{t0}, 4, v{VP}"); put(ST['PUB'], t0)
        k(f"v_mul_u32_u24 v{t2}, 5, v{VT}\nv_mul_u32_u24 v{t1}, 1280, v{t2}\nv_add_u32 v{t0}, v{t0}, v{t1}"); put(ST['GA'], t0)
        k(f"""v_add_u32 v{t0}, 5, v{t2}
        v_min_u32 v{t0}, s{S_I}, v{t0}
        v_sub_u32 v{t0}, s{S_I}, v{t0}
        v_lshlrev_b32 v{t0}, 7, v{t0}
        v_cvt_f32_u32 v{t0}, v{t0}""")
        put(ST['QE'], t0)
        for q in range(5): k(f"v_add_u32 v{t0}, {q}, v{t2}\nv_cmp_gt_u32 {s(S_MK+2*q,2)}, s{S_I}, v{t0}")
        k(f"v_mul_u32_u24 v{t0}, {RS}, v{VP}"); put(ST['TB'], t0)
        k(f"v_mul_u32_u24 v{t0}, {RS}, v{col}\nv_lshl_add_u32 v{t0}, v{seg}, 3, v{t0}"); put(ST['VA'], t0)
        k(f"v_mul_u32_u24 v{t0}, 160, v{col}\nv_add_u32 v{t0}, {L_C}, v{t0}"); put(ST['CR'], t0)
        k(f"""s_mul_i32 s{S_T}, s{S_W}, {RED_W}
        s_add_u32 s{S_T}, s{S_T}, {LDS_RED}
        v_mul_u32_u24 v{t0}, 80, v{col}
        v_lshl_add_u32 v{t0}, v{g}, 4, v{t0}
        v_add_u32 v{t0}, s{S_T}, v{t0}""")
        put(ST['TW'], t0)
        k(f"""v_lshrrev_b32 v{t0}, 2, v{col}
        v_lshl_add_u32 v{t0}, v{g}, 3, v{t0}
        v_mul_u32_u24 v{t0}, 80, v{t0}
        v_and_b32 v{t1}, 3, v{col}
        v_lshl_add_u32 v{t0}, v{t1}, 3, v{t0}
        v_add_u32 v{t0}, s{S_T}, v{t0}""")
        put(ST['TR'], t0)
        k(f"""v_mul_u32_u24 v{t0}, {RED_RS}, v{col}
        v_lshl_add_u32 v{t0}, v{g}, 4, v{t0}
        v_add_u32 v{t0}, s{S_T}, v{t0}""")
        put(ST['RW'], t0)
        for it in range(5):
            k(f"""v_add_u32 v{t0}, {64*it}, v0
            v_mul_u32_u24 v{t1}, 6554, v{t0}
            v_lshrrev_b32 v{t1}, 16, v{t1}
            v_mul_u32_u24 v{t2}, 10, v{t1}
            v_sub_u32 v{t2}, v{t0}, v{t2}
            v_lshrrev_b32 v{seg}, 4, v{t1}
            v_mul_u32_u24 v{seg}, 48, v{seg}
            v_add_u32 v{t1}, v{t1}, v{seg}
            v_mul_u32_u24 v{t1}, 1280, v{t1}
            v_lshl_add_u32 v{t1}, v{t2}, 4, v{t1}""")
            put(ST['RD']+it, t1)
            for x in self.div20(t1, t2, t0): k(x)
            put(ST['ROW']+it, t1); put(ST['C4']+it, t2)
        k(f"""s_mul_i32 s{S_AG4}, s{S_J}, {16*1280}
        s_add_u32 s{S_AG4}, s{S_AG4}, {WS_AGG}
        s_mul_i32 s{S_AG1}, s{S_I}, 1280
        s_add_u32 s{S_AG1}, s{S_AG1}, s{S_AG4}
        s_lshl_b32 s{S_T}, s{S_I}, 3
        s_lshl_b32 s{S_T+1}, s{S_W}, 1
        s_add_u32 s{S_T}, s{S_T}, s{S_T+1}
        s_mul_i32 s{S_T}, s{S_T}, 40
        s_mul_i32 s{S_T+1}, s{S_J}, 5
        s_add_u32 s{S_T}, s{S_T}, s{S_T+1}
        s_lshl_b32 s{S_T}, s{S_T}, 10
        s_add_u32 s{S_A2B}, s{S_T}, {WS_A2[0]}
        s_lshl_b32 s{S_RX}, s{S_I}, 7
        s_lshl_b32 s{S_T}, s{S_W}, 4
        s_add_u32 s{S_RX}, s{S_RX}, s{S_T}
        s_mul_i32 s{S_RX}, s{S_RX}, 1280
        s_mul_i32 s{S_RJ}, s{S_J}, 160
        s_add_u32 s{S_RX}, s{S_RX}, s{S_RJ}
        s_mul_i32 s{S_RL}, s{S_W}, 5120
        s_add_u32 s{S_RL}, s{S_RL}, {L_R}""")

    def ssm_epilogue(self, ACC, AT, BT, LAM, LAM2, LAM4, WSUM, L_AB):
        k = self.k; RS = self.TB_RS; LV = self.LV
        acc = lambda a_, tt: ACC + (a_*10 + tt)*4
        tok = lambda r, tt: acc(r//4, tt) + r % 4
        L_E, L_C = 16384, 102400
        TM, SEG = 146, 15
        def bc(r): return v(r & ~1, 2), r & 1
        k.c("================ SSM epilogue")
        self.nf2 = 0; self.fine2()
        k(f"""v_accvgpr_read_b32 v13, a{ST['E']}
        v_accvgpr_read_b32 v10, a{ST['CH']}
        v_accvgpr_read_b32 v6, a{ST['PUB']}
        v_mov_b32 v1, s{S_TAG}
        s_waitcnt lgkmcnt(0)""")
        sec = []
        for tt in list(range(10)):
            ws = WSUM.r(tt % 5); hi = tt // 5
            for a_ in range(2):
                for h in range(2):
                    t_ = TM + 2*(a_*2 + h) + 8*(tt % 2)
                    sec.append(f"v_pk_mul_f32 {v(t_,2)}, {v(BT+4*a_+2*h,2)}, {v(ws,2)} op_sel:[0,{hi}] op_sel_hi:[1,{hi}]")
            for a_ in range(2):
                for h in range(2):
                    d = acc(a_, tt) + 2*h; t_ = TM + 2*(a_*2 + h) + 8*(tt % 2)
                    sec.append(f"v_pk_fma_f32 {v(d,2)}, {v(AT+4*a_+2*h,2)}, {v(d,2)}, {v(t_,2)}")
        V1 = 96; EE = C5(136)
        def pkc(dr, di, ar, ai, cr_, ci_, lr, li):
            (pr, sr), (pi, si) = bc(lr), bc(li)
            return [f"v_pk_fma_f32 {v(dr,2)}, {v(ar,2)}, {pr}, {v(cr_,2)} op_sel:[0,{sr},0] op_sel_hi:[1,{sr},1]",
                    f"v_pk_fma_f32 {v(di,2)}, {v(ai,2)}, {pr}, {v(ci_,2)} op_sel:[0,{sr},0] op_sel_hi:[1,{sr},1]",
                    f"v_pk_fma_f32 {v(dr,2)}, {v(ai,2)}, {pi}, {v(dr,2)} op_sel:[0,{si},0] op_sel_hi:[1,{si},1] neg_lo:[1,0,0] neg_hi:[1,0,0]",
                    f"v_pk_fma_f32 {v(di,2)}, {v(ar,2)}, {pi}, {v(di,2)} op_sel:[0,{si},0] op_sel_hi:[1,{si},1]"]
        LL = [pkc(V1+8*b+2*h, V1+8*b+4+2*h, acc(0,b)+2*h, acc(0,5+b)+2*h, acc(1,b)+2*h, acc(1,5+b)+2*h, LAM4.r(b), LAM4.i(b))
              for b in range(5) for h in range(2)]
        sec += [x[i] for i in range(4) for x in LL]
        LL = [pkc(V1+8*b+2, V1+8*b+6, V1+8*b, V1+8*b+4, V1+8*b+2, V1+8*b+6, LAM2.r(b), LAM2.i(b)) for b in range(5)]
        sec += [x[i] for i in range(4) for x in LL]
        sec += self.cmul5(EE, LAM, C5(V1+2, V1+6, 8), C5(V1+3, V1+7, 8))
        self.sprinkle(sec, self.b2_take(int(self.P('e1', 10))))
        k(f"""ds_write_b128 v13, {v(136,4)} offset:{L_E}
        ds_write_b128 v13, {v(140,4)} offset:{L_E+16}
        ds_write_b64 v13, {v(144,2)} offset:{L_E+32}
        v_mov_b32 v129, s{S_TAG}
        v_mov_b32 v131, s{S_TAG2}
        s_waitcnt lgkmcnt(0)
        s_barrier""")
        self.fine2()
        CH = 96; L8R, L8I = 248, 249
        ct = [k(f"ds_read_b64 {v(CH+2*q,2)}, v10 offset:{L_E+768*q}") for q in range(16)]
        for q in range(1, 16):
            k.wait_lg(ct[q])
            er, ei, pr, pi = CH+2*q, CH+2*q+1, CH+2*q-2, CH+2*q-1
            if q < 15:
                k(f"v_fmac_f32 v{er}, v{L8R}, v{pr}\nv_fmac_f32 v{ei}, v{L8R}, v{pi}\nv_fma_f32 v{er}, -v{L8I}, v{pi}, v{er}\nv_fmac_f32 v{ei}, v{L8I}, v{pr}")
            else:
                k(f"v_fmac_f32 v{er}, v{L8R}, v{pr}\nv_fmac_f32 v{ei}, v{L8R}, v{pi}\nv_fma_f32 v128, -v{L8I}, v{pi}, v{er}\nv_fma_f32 v130, v{L8I}, v{pr}, v{ei}")
        k(f"""s_mov_b64 exec, 0xfffff
        buffer_store_dwordx4 v[128:131], v6, {WS4}, s{S_AG1} offen sc1
        s_mov_b64 exec, -1""")
        self.stamp(3); self.fine2()
        KK, CS, VV, DD = C5(202), C5(136), C5(146), C5(156, 161)
        work = [f"ds_write_b64 v10, {v(CH+2*q,2)} offset:{L_E+768*q}" for q in range(1, 15)]
        KB = 166
        work += [x.strip() for x in f"""v_accvgpr_read_b32 v132, a252
        v_accvgpr_read_b32 v133, a253
        v_accvgpr_read_b32 v134, a254
        v_accvgpr_read_b32 v135, a255
        v_accvgpr_read_b32 v5, a{ST['TB']}
        v_mul_f32 v174, v132, v132
        v_fma_f32 v174, v133, v133, v174
        v_rcp_f32 v174, v174
        v_add_f32 v134, -1.0, v134
        v_mul_f32 v{KB}, v134, v132
        v_mul_f32 v{KB+1}, v135, v132
        v_add_f32 v174, v174, v174
        v_fma_f32 v{KB}, v135, v133, v{KB}
        v_fma_f32 v{KB+1}, -v134, v133, v{KB+1}
        v_mul_f32 v{KB}, v{KB}, v174
        v_mul_f32 v{KB+1}, v{KB+1}, v174""".split("\n")]
        for q in range(16):
            c_ = KB + 2*(q % 4); n_ = KB + 2*((q+1) % 4)
            work += [f"ds_write_b64 v5, {v(c_,2)} offset:{8*q}"]
            if q < 15: work += [f"v_mul_f32 v{n_}, v{L8R}, v{c_}", f"v_mul_f32 v{n_+1}, v{L8R}, v{c_+1}",
                                f"v_fma_f32 v{n_}, -v{L8I}, v{c_+1}, v{n_}", f"v_fmac_f32 v{n_+1}, v{L8I}, v{c_}"]
        GB = 96
        BZR, BZI, BLR, BLI, BQR, BQI, BT_ = 116, 117, 118, 119, 120, 121, 122
        MK = S_MK
        work += [f"v_accvgpr_read_b32 v6, a{ST['GA']}", f"s_add_u32 s{S_T+5}, s{S_AG4}, 3840", f"s_mov_b32 s{S_T+4}, s{S_AG4}", f"v_accvgpr_read_b32 v5, a{ST['VA']}",
                 "s_waitcnt lgkmcnt(0)", "s_barrier"]
        work += [f"ds_read_b64 {v(KK.r(b),2)}, v11 offset:{16*b*RS}" for b in range(5)]
        work += [f"ds_read_b128 {v(136,4)}, v13 offset:{L_E-768}", f"ds_read_b128 {v(140,4)}, v13 offset:{L_E-768+16}", f"ds_read_b64 {v(144,2)}, v13 offset:{L_E-768+32}"]
        work += [f"ds_read_b64 {v(VV.r(b),2)}, v5 offset:{16*b*RS}" for b in range(5)]
        work += [f"v_accvgpr_read_b32 v{BZR}, a250", f"v_accvgpr_read_b32 v{BZI}, a251", f"v_mov_b32 v123, {fbits(128.0)}",
                 f"v_accvgpr_read_b32 v10, a{ST['QE']}"]
        work += [y for x in zip(self.cpow(BQR, BQI, "v10", BZR, BZI, BT_), self.cpow(BLR, BLI, "v123", BZR, BZI, 124)) for y in x]
        ku = []
        for b in range(5):
            (kr, sr), (ki, si) = bc(KK.r(b)), bc(KK.i(b))
            for h in range(4):
                ur = tok(2*h, b); ui = tok(2*h, 5+b); t_ = 166 + 4*(h % 2)
                ku += [f"v_pk_mul_f32 {v(t_,2)}, {v(ur,2)}, {kr} op_sel:[0,{sr}] op_sel_hi:[1,{sr}]",
                       f"v_pk_mul_f32 {v(t_+2,2)}, {v(ur,2)}, {ki} op_sel:[0,{si}] op_sel_hi:[1,{si}]",
                       f"v_pk_fma_f32 {v(ur,2)}, {v(ui,2)}, {ki}, {v(t_,2)} op_sel:[0,{si},0] op_sel_hi:[1,{si},1] neg_lo:[1,0,0] neg_hi:[1,0,0]",
                       f"v_pk_fma_f32 {v(ui,2)}, {v(ui,2)}, {kr}, {v(t_+2,2)} op_sel:[0,{sr},0] op_sel_hi:[1,{sr},1]"]
        nku = int(self.P('nku', 40))
        work += ["s_waitcnt lgkmcnt(8)"] + ku[:nku]
        self.sprinkle(work, self.b2_take(int(self.P('e2', 6))))
        self.fine2()
        def gloads():
            for q in range(5):
                t = k(f"buffer_load_dwordx4 {v(GB+4*q,4)}, v6, {WS4}, s{S_T+4+(q//3)} offen offset:{1280*(q%3)} sc1")
            return t
        gt = {}
        def gl_(): gt['t'] = gloads()
        w2 = ku[nku:] + ["s_waitcnt lgkmcnt(0)", f"s_cmp_eq_u32 s{S_W}, 0\ns_cselect_b64 exec, 0xffff, 0"]
        w2 += [f"v_mov_b32 v{136+q}, 0" for q in range(10)] + ["s_mov_b64 exec, -1"]
        w2 += self.cmul5(DD, KK, CS)
        w2 += [f"v_accvgpr_read_b32 v5, a{ST['CW']}", f"v_accvgpr_read_b32 v12, a{ST['CR']}", f"v_accvgpr_read_b32 v13, a{ST['TW']}", f"v_accvgpr_read_b32 v4, a{ST['TR']}", f"v_accvgpr_read_b32 v3, a{ST['PAT']}",
               f"v_mov_b32 v{BZR}, 0", f"v_mov_b32 v{BZI}, 0",
               f"s_mov_b32 s{S_T+8}, s{S_A2B}", f"s_add_u32 s{S_T+9}, s{S_A2B}, 4096",
               f"s_add_u32 s{S_T+10}, s{S_A2B}, {40*1024}", f"s_add_u32 s{S_T+11}, s{S_A2B}, {40*1024+4096}"]
        rq = self.resid_loads()
        gpos = int(self.P('gpos', 0))
        if gpos == 0: gl_()
        self.sprinkle(w2, rq[:gpos] + ([gl_] if gpos else []) + rq[gpos:] + self.b2_take(int(self.P('e3', 8))))
        gtok = gt['t']
        self.stamp(4); self.fine2()
        k.wait_vm(gtok)
        def check():
            for q in range(5):
                k(f"v_xor_b32 v10, s{S_TAG}, v{GB+4*q+1}")
                k(f"v_bitop3_b32 v10, s{S_TAG2}, v{GB+4*q+3}, v10 bitop3:0xbe")
                k(f"v_cmp_ne_u32 {s(S_T+2,2)}, 0, v10")
                k(f"s_and_b64 {'vcc' if q == 0 else s(S_T+2,2)}, {s(S_T+2,2)}, {s(MK+2*q,2)}")
                if q: k(f"s_or_b64 vcc, vcc, {s(S_T+2,2)}")
        def reload():
            gloads(); k("s_waitcnt vmcnt(0)")
        self.verify(check, reload, "pc")
        self.stamp(5); self.fine2()
        for q in range(5):
            er, ei = GB+4*q, GB+4*q+2
            k(f"""s_mov_b64 exec, {s(MK+2*q,2)}
            v_fmac_f32 v{er}, v{BLR}, v{BZR}
            v_fmac_f32 v{ei}, v{BLR}, v{BZI}
            v_fmac_f32 v{ei}, v{BLI}, v{BZR}
            v_fma_f32 v{BZR}, -v{BLI}, v{BZI}, v{er}
            v_mov_b32 v{BZI}, v{ei}""")
        k(f"""s_mov_b64 exec, -1
        v_mul_f32 v126, v{BQR}, v{BZR}
        v_mul_f32 v127, v{BQR}, v{BZI}
        v_fma_f32 v126, -v{BQI}, v{BZI}, v126
        v_fmac_f32 v127, v{BQI}, v{BZR}
        ds_write_b64 v5, v[126:127]
        s_waitcnt lgkmcnt(0)
        s_barrier""")
        CB = 96
        ct = []
        for b in range(5):
            k(f"ds_read_b128 {v(CB+6*b,4)}, v12 offset:{32*b}")
            ct.append(k(f"ds_read_b64 {v(CB+6*b+4,2)}, v12 offset:{32*b+16}"))
        for b in range(5):
            k.wait_lg(ct[b])
            k(f"v_pk_add_f32 {v(CB+6*b,2)}, {v(CB+6*b,2)}, {v(CB+6*b+2,2)}")
        for b in range(5):
            k(f"v_pk_add_f32 {v(CB+6*b,2)}, {v(CB+6*b,2)}, {v(CB+6*b+4,2)}")
        self.sprinkle(self.cmul5(DD, VV, C5(CB, CB+1, 6), DD), self.b2_take(int(self.P('e4', 2))))
        self.fine2()
        PK = 96
        frg = lambda b, tt2: (136 + 4*(2*b + tt2)) if 2*b + tt2 < 5 else (202 + 4*(2*b + tt2 - 5))
        wt = {}; rt = {}
        def scan(bs):
            L = []
            for r in range(8):
                pr = lambda b: DD.r(b) if r == 0 else tok(r-1, b)
                pi = lambda b: DD.i(b) if r == 0 else tok(r-1, 5+b)
                for b in bs: L += [f"v_fmac_f32 v{tok(r,b)}, v{LAM.r(b)}, v{pr(b)}", f"v_fmac_f32 v{tok(r,5+b)}, v{LAM.r(b)}, v{pi(b)}"]
                for b in bs: L += [f"v_fma_f32 v{tok(r,b)}, -v{LAM.i(b)}, v{pi(b)}, v{tok(r,b)}", f"v_fmac_f32 v{tok(r,5+b)}, v{LAM.i(b)}, v{pr(b)}"]
            for b in bs:
                for comp in range(2):
                    d = PK + 4*(2*b + comp); ng = "-" if comp else ""
                    L += [f"v_cvt_pk_bf16_f32 v{d+h}, {ng}v{tok(2*h,5*comp+b)}, {ng}v{tok(2*h+1,5*comp+b)}" for h in range(4)]
                    L += [f"v_and_or_b32 v{d+h}, v{d+h}, s{S_NM}, v3" for h in range(4)]
                    def f(b=b, d=d, comp=comp): wt[b] = k(f"ds_write_b128 v13, {v(d,4)} offset:{(32*b+16*comp)*80}")
                    L.append(f)
            return L
        def outq(bs):
            L = []
            for b in bs:
                def trr(b=b):
                    k.wait_lg(wt[b])
                    for tt2 in range(2):
                        d = frg(b, tt2)
                        k(f"ds_read_b64_tr_b16 {v(d,2)}, v4 offset:{(32*b)*80+32*tt2}")
                        rt[b, tt2] = k(f"ds_read_b64_tr_b16 {v(d+2,2)}, v4 offset:{(32*b+4)*80+32*tt2}")
                L.append(trr)
            for b in bs:
                for tt2 in range(2):
                    def sto(b=b, tt2=tt2):
                        k.wait_lg(rt[b, tt2])
                        so = S_T + 8 + 2*tt2 + (1 if b == 4 else 0)
                        self.last_st = k(f"buffer_store_dwordx4 {v(frg(b,tt2),4)}, v{LV}, {WS4}, s{so} offen offset:{1024*(b%4)} sc1")
                    L.append(sto)
            return L
        self.sprinkle(scan([0, 1]), self.b2_take(int(self.P('e5', 4))))
        self.sprinkle(scan([2, 3]), outq([0, 1]), lead=4)
        self.sprinkle(scan([4]), outq([2, 3]), lead=4)
        self.emit(outq([4]))
        self.stamp(6); self.fine2()
        self.p2_addr(0)
        self.free_big = [r for r in self.free_big if not (202 <= r < 222)] + [r for r in self.free_big if 202 <= r < 222]
        self.resid_compute(L_AB, [self.p2_aload]*int(self.P('na0', 12)))
        self.fine2()
        self.stamp(7)
        self.phase2(0)

    def resid_loads(self):
        k = self.k
        self.srd(SRD_T1, 8, 1280)
        self.srd(SRD_T2, 13, 1280)
        L = []
        for it in range(5):
            def f(it=it):
                k(f"""v_accvgpr_read_b32 v1, a{ST['RD']+it}
                s_add_u32 m0, s{S_RL}, {1024*it}
                buffer_load_dwordx4 v1, {s(SRD_X,4)}, s{S_RX} offen lds""")
            L.append(f)
        def g():
            k(f"""v_lshlrev_b32 v1, 2, v0
            s_add_u32 m0, s{S_RL}, 20480
            buffer_load_dword v1, {s(SRD_T1,4)}, s{S_RJ} offen lds
            s_add_u32 m0, s{S_RL}, {20480+256}""")
            self.rl_tok = k(f"buffer_load_dword v1, {s(SRD_T2,4)}, s{S_RJ} offen lds")
        return L + [g]
    def resid_compute(self, L_AB, memq):
        k = self.k
        ST, XB, DB, BB, T = 16, 36, 56, 66, 166
        k.wait_vm(self.rl_tok)
        self.STROW, self.STC4 = globals()['ST']['ROW'], globals()['ST']['C4']
        W = [f"s_lshl_b32 s{S_T+4}, s{S_W}, 6", f"s_add_u32 s{S_T+4}, s{S_T+4}, {L_AB}", f"s_movk_i32 s{S_T+5}, 160"]
        for it in range(5):
            W += [f"v_accvgpr_read_b32 v{11+it}, a{self.STROW+it}", f"v_accvgpr_read_b32 v{6+it}, a{self.STC4+it}"]
            W += [f"v_lshl_add_u32 v1, v{11+it}, 2, s{S_T+4}", f"v_lshl_add_u32 v3, v{6+it}, 3, s{S_RL}", f"v_mad_u32_u24 v2, v{11+it}, s{S_T+5}, v3",
                  f"ds_read2st64_b32 {v(ST+2*it,2)}, v1 offset0:0 offset1:2", f"ds_read2st64_b32 {v(ST+10+2*it,2)}, v1 offset0:1 offset1:3",
                  f"ds_read_b64 {v(XB+2*it,2)}, v2", f"ds_read_b64 {v(XB+10+2*it,2)}, v2 offset:2560",
                  f"ds_read_b64 {v(DB+2*it,2)}, v3 offset:20480", f"ds_read_b64 {v(BB+2*it,2)}, v3 offset:{20480+256}"]
        W += [f"v_add_u32 v4, s{S_RL}, v{self.LV}", "s_waitcnt lgkmcnt(0)"]
        for it in range(5):
            dd, bb = [76, 100][it % 2], [76, 100][it % 2] + 4
            for (src, dst) in ((DB+2*it, dd), (BB+2*it, bb)):
                for h in range(2):
                    W += [f"v_lshlrev_b32 v{dst+2*h}, 16, v{src+h}", f"v_and_b32 v{dst+2*h+1}, 0xffff0000, v{src+h}"]
            for hf in range(2):
                xx = dd + 8 + 8*hf
                for h in range(2):
                    W += [f"v_lshlrev_b32 v{xx+2*h}, 16, v{XB+10*hf+2*it+h}", f"v_and_b32 v{xx+2*h+1}, 0xffff0000, v{XB+10*hf+2*it+h}"]
            for hf in range(2):
                xx = dd + 8 + 8*hf; rr = xx + 4; st = ST + 10*hf + 2*it
                for h in range(2):
                    W += [f"v_pk_add_f32 {v(rr+2*h,2)}, {v(bb+2*h,2)}, {v(xx+2*h,2)}",
                          f"v_pk_fma_f32 {v(xx+2*h,2)}, {v(xx+2*h,2)}, {v(st,2)}, {v(st,2)} op_sel:[0,0,1] op_sel_hi:[1,0,1]"]
            for hf in range(2):
                xx = dd + 8 + 8*hf; rr = xx + 4
                for h in range(2):
                    W += [f"v_pk_fma_f32 {v(rr+2*h,2)}, {v(xx+2*h,2)}, {v(dd+2*h,2)}, {v(rr+2*h,2)}"]
                W += [f"ds_write_b128 v4, {v(rr,4)} offset:{hf*20480+it*1024}"]
        self.sprinkle(W, memq, lead=int(self.P('rlead', 0)))

    def mlp(self):
        k = self.k
        ACC = 16; WSA = 112; ONE = 124; FR = [128, 148]
        B1R = 126; GS = 168
        XE, XO, W0 = 3, 2, 4
        RXB, AEB, AOB = 176, 180, 184
        PV = self.PV; LV = self.LV
        STGS = 40960
        S_MH, S_NH = 42, 43
        L_WS = 110592
        k.label("L_mlp")
        k.c("================ MLP side, phase 1")
        self.common_a()
        self.nf3 = 0
        self.marks = {}
        S_RSROW, SW0, S_GT, D1, S_RSDST, S_FB = S_T+5, S_T+6, S_T+9, S_T+10, S_T+8, S_T+14
        k(f"""v_xor_b32 v{XO}, 64, v{XE}
        s_add_u32 s{S_XO+1}, s{S_XO}, {8*1280 - 1024}
        s_add_u32 s{S_XO+2}, s{S_XO}, {16*1280 - 2048}
        s_add_u32 s{S_XO+3}, s{S_XO}, {24*1280 - 3072}""")
        stage_tok = {}; stage_cnt = {}
        self.dma_reset(); self.has_w = True
        self.rot_setup([XE, XO], True)
        for n in range(3):
            k(f"""v_add_u32 v10, {64*n}, v0
            v_mul_u32_u24 v12, 2731, v10
            v_lshrrev_b32 v12, 16, v12
            v_mul_u32_u24 v13, 24, v12
            v_sub_u32 v13, v10, v13
            v_bfe_u32 v40, v12, 1, 1
            v_lshlrev_b32 v40, 2, v40
            v_xor_b32 v13, v13, v40
            v_mul_u32_u24 v12, 3072, v12
            v_lshl_add_u32 v{W0+n}, v13, 4, v12""")
            if n: k(f"v_subrev_u32 v{W0+n}, {1024*n}, v{W0+n}")
            k(f"v_add_u32 v{W0+n}, s{S_ST2}, v{W0+n}")
        k(f"""s_mul_i32 s{S_MW}, s{S_W}, 6144
        s_mul_i32 s{S_WO}, s{S_W}, {16*3072}
        s_mul_i32 s{S_T}, s{S_J}, 384
        s_add_u32 s{S_WO}, s{S_WO}, s{S_T}
        s_add_u32 s{S_WO+1}, s{S_WO}, {24576 - 3072}
        s_add_u32 s{S_WO+4}, s{S_WO}, {24576 + 1024}""")
        self.common_b()
        self.stamp(0); self.fine3()
        WSO = [S_WO, S_WO, S_WO, S_WO+1, S_WO+4, S_WO+4]
        def dma_list(t):
            base = (t % 4)*STGS
            L = []
            def mk(ld):
                def f():
                    stage_tok[t] = k(ld); stage_cnt[t] = stage_cnt.get(t, 0) + 1
                return f
            for e in range(4):
                vr = XE if e % 2 == 0 else XO
                L.append(self.dma((S_MX, base + 24576), mk(f"buffer_load_dwordx4 v{vr}, {s(SRD_X,4)}, s{S_XO+e} offen offset:{e*1024} lds"), vr, t, 128))
            for n in range(6):
                L.append(self.dma((S_MW, base + (n//4)*4096), mk(f"buffer_load_dwordx4 v{W0+n%3}, {s(SRD_W,4)}, s{WSO[n]} offen offset:{(n%4)*1024} lds"), W0+n%3, t, 64*3072))
            return L
        d0 = dma_list(0)
        for p in d0[:4]: self.emit(p)
        self.srd(SRD_W, 10, 1966080)
        for p in d0[4:7]: self.emit(p)
        d1 = dma_list(1)
        R0, A0, T0 = 200, 220, 224
        TS = int(self.P('mts', 3))
        SCR = (TS % 4)*STGS + 24576
        rs = self.rowstat_loads(SRD_X, S_RSROW, 8, R0)
        def setup(k):
            k(f"""s_lshr_b32 s{S_MH}, s{S_W}, 1
            s_and_b32 s{S_NH}, s{S_W}, 1
            s_lshl_b32 s{S_T+2}, s{S_W}, 2
            s_lshl_b32 s{S_T}, s{S_I}, 7
            s_lshl_b32 s{S_T+1}, s{S_J}, 4
            s_add_u32 s{S_T}, s{S_T}, s{S_T+1}
            s_add_u32 s{S_RSROW}, s{S_T}, s{S_T+2}
            s_lshl_b32 s{S_RSDST}, s{S_RSROW}, 4
            s_add_u32 s{S_RSDST}, s{S_RSDST}, {WS_STG}
            s_mov_b32 s{S_T+1}, 3""")

            self.rowstat_setup(S_RSROW, S_T+1, 8, 9)

            self.srd(SRD_T2, 12, 1966080)
            self.unit_decode(480, S_FB)

            k(f"""s_mul_i32 s{S_T+1}, s{S_T+2}, {32*1280}
            s_lshl_b32 s{S_T+3}, s{S_T}, 7
            s_add_u32 s{SW0}, s{S_T+1}, s{S_T+3}
            s_mul_i32 s{S_T+3}, s{S_T}, {4*48}
            s_add_u32 s{S_T+3}, s{S_T+3}, s{S_T+2}
            s_lshl_b32 s{S_T+3}, s{S_T+3}, 10
            s_add_u32 s{D1}, s{S_T+3}, {WS_B2S[1]}
            s_lshl_b32 s{S_FB}, s{S_FB}, 6
            s_add_u32 s{S_FB}, s{S_FB}, {WS_FB + 512*FLS}
            s_lshl_b32 s{S_GT}, s{S_I}, 11
            s_lshl_b32 s{S_T}, s{S_MH}, 10
            s_add_u32 s{S_GT}, s{S_GT}, s{S_T}
            s_add_u32 s{S_GT}, s{S_GT}, {WS_STG}
            v_and_b32 v11, 31, v0
            v_lshrrev_b32 v12, 5, v0
            v_bfe_u32 v13, v0, 1, 3
            v_xor_b32 v13, v13, v12
            v_lshlrev_b32 v13, 4, v13
            v_lshl_add_u32 v13, v11, 7, v13
            s_lshl_b32 s{S_T}, s{S_MH}, 13
            s_add_u32 s{S_T}, s{S_T}, 24576
            v_add_u32 v10, s{S_T}, v13
            v_bfe_u32 v13, v0, 2, 2
            v_lshl_add_u32 v40, v12, 3, v13
            v_mul_u32_u24 v40, 384, v40
            v_bfe_u32 v15, v0, 4, 1
            v_lshl_add_u32 v40, v15, 5, v40
            v_and_b32 v41, 3, v0
            v_lshl_add_u32 v40, v41, 3, v40
            v_lshlrev_b32 v7, 4, v12
            v_lshl_add_u32 v7, v15, 2, v7
            v_add_u32 v7, v7, v13
            v_lshlrev_b32 v7, 7, v7
            v_lshl_add_u32 v7, v41, 3, v7
            v_add_u32 v7, s{S_MX}, v7
            v_add_u32 v7, {SCR}, v7
            s_mul_i32 s{S_T}, s{S_NH}, 192
            v_add_u32 v40, s{S_T}, v40
            v_bfe_u32 v13, v0, 3, 1
            v_lshlrev_b32 v13, 6, v13
            s_cmp_eq_u32 s{S_NH}, 0
            s_cselect_b32 s{S_T}, 1, -1
            v_mul_lo_u32 v13, v13, s{S_T}
            v_add_u32 v15, v40, v13
            v_sub_u32 v40, v40, v13
            v_mov_b32 v{ONE}, 0x3f803f80
            v_mov_b32 v{ONE+1}, 0x3f803f80""")
            for ls in range(4):
                k(f"""s_lshl_b32 s{S_T}, s{S_MH}, 1
                s_add_u32 s{S_T}, s{S_T}, {ls}
                s_and_b32 s{S_T}, s{S_T}, 3
                s_lshl_b32 s{S_T+1}, s{S_T}, 5
                s_mul_i32 s{S_T}, s{S_T}, 6144
                v_xor_b32 v{RXB+ls}, s{S_T+1}, v10
                v_add_u32 v{AEB+ls}, s{S_T}, v15
                v_add_u32 v{AOB+ls}, s{S_T}, v40""")
            for q in range(12): k(f"v_add_u32 v{RXB+12+q}, {2*STGS}, v{RXB+q}")
            k(f"""v_lshlrev_b32 v10, 4, v11
            v_min_u32 v11, 47, v0
            s_mul_i32 s{S_T}, s{S_J}, 192
            s_mul_i32 s{S_T+1}, s{S_W}, 48
            s_add_u32 s{S_T}, s{S_T}, s{S_T+1}
            v_add_lshl_u32 v12, v11, s{S_T}, 1
            v_add_lshl_u32 v11, v11, s{S_T+1}, 2
            v_add_u32 v11, {L_WS}, v11""")
            self.b2v = self.b2_setup(1)
        su = self.capture(setup)
        self.sprinkle(su[:20], [(lambda p=p: self.emit(p)) for p in d0[7:]])
        mprs = int(self.P('mprs', 0))
        n1 = 4 if mprs == 0 else 8
        self.sprinkle(su[20:], [(lambda p=p: self.emit(p)) for p in d1[:2]] + (rs if mprs == 0 else []) + [(lambda p=p: self.emit(p)) for p in d1[2:n1]])
        b2v = self.b2v
        tk = {}
        swq = []
        for e in range(4):
            def f(e=e):
                k(f"s_add_u32 s{S_T+2}, s{SW0}, {e*8*1280}")
                tk['d1'] = k(f"buffer_load_dwordx4 v{PV}, {s(SRD_T2,4)}, s{S_T+2} offen lds")
            swq.append(self.dma((S_MX, SCR + e*1024), f))
        self.make_tag()
        self.emit(self.touch(1, 246))
        rtok = {}
        def mkreads(n):
            st = FR[n % 2]; ls = n % 4; sl = (n//4) % 4; o = (sl % 2)*STGS; h_ = 12*(sl//2)
            ra, ae, ao = RXB+ls+h_, AEB+ls+h_, AOB+ls+h_
            R = [f"ds_read_b128 {v(st,4)}, v{ra} offset:{o}",
                 f"ds_read_b64_tr_b16 {v(st+8,2)}, v{ae} offset:{o}", f"ds_read_b64_tr_b16 {v(st+10,2)}, v{ae} offset:{o+1536}",
                 f"ds_read_b128 {v(st+4,4)}, v{ra} offset:{o+4096}",
                 f"ds_read_b64_tr_b16 {v(st+12,2)}, v{ao} offset:{o+64}", f"ds_read_b64_tr_b16 {v(st+14,2)}, v{ao} offset:{o+1600}",
                 f"ds_read_b64_tr_b16 {v(st+16,2)}, v{ae} offset:{o+128}", f"ds_read_b64_tr_b16 {v(st+18,2)}, v{ae} offset:{o+1664}"]
            L = []
            for i, r in enumerate(R):
                def f(i=i, r=r): rtok[n, i] = k(r)
                L.append(f)
            return L
        self.fine3()
        k.wait_vm(stage_tok[0])
        self.fine3()
        k("s_barrier")
        self.fine3()
        self.stamp(1)
        k.label("L_mlp_code")
        self.emit(mkreads(0))
        NSW, NFLAG, NPOLL, NCHK = [int(self.P(a_, b_)) for a_, b_ in (('mnsw', 4), ('mnfl', 12), ('mnpo', 21), ('mnck', 26))]
        mq = [[0, 1, p_, l_] for p_, l_ in d1[n1:]]
        def q_stage(t):
            L = [[max(4*(t-3), NSW+2 if (t == TS and j_ < 4) else 0), 1, p_, l_] for j_, (p_, l_) in enumerate(dma_list(t))]
            mq.extend(L[4:] + L[:4] if t == TS else L)
        def sw_store(cc):
            def f():
                k.wait_lg(tk['r1'])
                k(f"s_add_u32 s{S_T}, s{D1}, {cc*48*1024}")
                tk['s1'] = k(f"buffer_store_dwordx4 {a(240+4*cc,4)}, v{LV}, {WS4}, s{S_T} offen sc1")
            return f
        def b1l(): tk['b1'] = k(f"global_load_ushort v{B1R}, v12, {ptr(11)}")
        def gs1(): k(f"buffer_load_dwordx4 {v(GS,4)}, v10, {WS4}, s{S_GT} offen sc1")
        def gs2(): tk['gs'] = k(f"buffer_load_dwordx4 {v(GS+4,4)}, v10, {WS4}, s{S_GT} offen offset:512 sc1")
        mpsw, mpst = int(self.P('mpsw', 1)), int(self.P('mpst', 2))
        for t in range(1, 10):
            if t > 1: q_stage(t)
            if t == mprs: mq += [[0, 1, None, f] for f in rs]
            if t == mpsw: mq += [[4*(TS-3), 1, p_, l_] for p_, l_ in swq]
            if t == mpst: mq += [[NSW+1, 2, None, sw_store(cc)] for cc in range(4)]
            if t == 4: mq.append([0, 0.5, None, b1l])
        late = {NPOLL: [[NPOLL, 0.5, None, self.b2_poll]], 30: [[30, 1, None, gs1], [30, 1, None, gs2]]}
        def swr():
            k.wait_vm(tk['d1'])
            for cc in range(4):
                for e in range(2):
                    tk['r1'] = k(f"ds_read_b64_tr_b16 {a(240+4*cc+2*e,2)}, v7 offset:{e*1024+cc*32}")
        def flg():
            k.wait_vm(tk['s1']); self.set_flag(S_FB, 13)
        hooks = {NSW: swr, NFLAG: flg}
        rsf = self.rowstat_fill(R0, A0, T0, 9, S_RSDST)
        fq = [('at', int(self.P('mrs', 1)))] + rsf[:30] + [('at', NSW + 1)] + b2v + [('mark', 'b2s')] + rsf[30:] + [('mark', 'rs')]
        fq += [('at', 28), lambda: k.wait_vm(tk['b1']), f"v_lshlrev_b32 v{B1R}, 16, v{B1R}", f"ds_write_b32 v11, v{B1R} offset:1536"]
        credit = 0.0; b2on = False
        for n in range(40):
            st = FR[n % 2]
            k.c(f"---- mlp k-step {n}")
            if n % 2 == 0: self.fine(16 + n//2)
            if n == NCHK:
                self.b2_check(); b2on = True
            if n == NSW + 2: k.wait_lg(tk['r1'])
            mq[0:0] = late.get(n, [])
            mem = []
            mmax = int(self.P('mtail', 4) + (0.5 if n % 4 < 2 else 0)) if n >= 28 else int(self.P('mmax', 5)) if n < self.P('mfast', 4) else int(self.P('mcap', 3)) + (1 if n % 4 < 2 and self.P('mcap', 3) % 1 else 0)
            while len(mem) < mmax:
                if mq and mq[0][0] <= n: it_ = mq.pop(0)
                elif b2on and self.b2q and len(mem) < self.P('mb2', 5) + (0.5 if n % 4 < 2 else -0.5): it_ = [n, 1, None, self.b2q.pop(0)]
                else: break
                mem.append(it_)
            rd = mkreads(n+1) if n + 1 < 40 else []
            small = []
            if n % 4 < 2:
                for hh in range(2):
                    for T in range(3):
                        c_ = "0" if (n == 0 and hh == 0) else v(WSA+4*T, 4)
                        small.append(f"v_mfma_f32_4x4x4_16b_bf16 {v(WSA+4*T,4)}, {v(ONE,2)}, {v(st+8+4*T+2*hh,2)}, {c_}")
            bar = n % 4 == 3 and n + 1 < 40
            cnt = [0, 3, 3, 2, 0, 0] if bar else [3, 3, 2, 0, 0, 0]
            pref = [4, 0, 5, 3, 2, 1] if bar else [4, 5, 2, 3, 0, 1]
            nper_ = [0]*6
            for j_ in range(len(mem)): nper_[pref[j_ % 6]] += 1
            dep = {0: 2, 1: 3, 2: 5, 4: 7}
            for i in range(6):
                T3, mt = i//2, i % 2
                if nper_[i] and mem[0][2]: mem[0][2]()
                if i in dep: k.wait_lg(rtok[n, dep[i]])
                d = ACC + 16*i
                k(f"v_mfma_f32_32x32x16_bf16 {v(d,16)}, {v(st+8+4*T3,4)}, {v(st+4*mt,4)}, {'0' if n == 0 else v(d,16)}")
                n0 = len(k.ins)
                for j_ in range(nper_[i]):
                    it_ = mem.pop(0)
                    if j_ and it_[2]: it_[2]()
                    it_[3]()
                if bar and i == 1:
                    assert stage_cnt[(n+1)//4] == 10
                    k.wait_both(stage_tok[(n+1)//4], k.lg_issued)
                    k("s_barrier")
                for _ in range(cnt[i]):
                    if rd: rd.pop(0)()
                self.emit(self.take_fill(fq, n, int(self.P('mden', 5)) - (len(k.ins) - n0)))
            if n in hooks: hooks[n]()
            self.emit(small)
            assert not rd and not mem
        assert not mq and not fq and self.marks['b2s'] < NPOLL
        self.info += f" mlp b2 left {len(self.b2q)} marks {self.marks}"
        k.c('loop end')
        self.stamp(2)
        if self.early_stop("loop"): return
        k.c("================ MLP epilogue")
        self.nf2 = 0
        TM = 128
        AT, BT = 176, 180
        for T in range(3): k(f"v_permlane32_swap_b32 v{WSA+4*T}, v{WSA+4*T+1}")
        k(f"""v_and_b32 v11, 31, v0
        s_mul_i32 s{S_T}, s{S_MH}, 768
        s_mul_i32 s{S_T+1}, s{S_NH}, 384
        s_add_u32 s{S_T}, s{S_T}, s{S_T+1}
        v_lshl_add_u32 v12, v11, 2, s{S_T}
        v_add_u32 v12, {L_WS}, v12""")
        for T in range(3):
            k(f"v_add_f32 v{WSA+4*T}, v{WSA+4*T}, v{WSA+4*T+1}\nds_write_b32 v12, v{WSA+4*T} offset:{128*T}")
        k.wait_vm(tk['gs'])
        def check():
            k(f"""v_xor_b32 v13, s{S_TAG}, v{GS+1}
            v_bitop3_b32 v13, s{S_TAG2}, v{GS+3}, v13 bitop3:0xbe
            v_bitop3_b32 v13, s{S_TAG}, v{GS+5}, v13 bitop3:0xbe
            v_bitop3_b32 v13, s{S_TAG2}, v{GS+7}, v13 bitop3:0xbe
            v_cmp_ne_u32 vcc, 0, v13""")
        def rl():
            k(f"""buffer_load_dwordx4 {v(GS,4)}, v10, {WS4}, s{S_GT} offen sc1
            buffer_load_dwordx4 {v(GS+4,4)}, v10, {WS4}, s{S_GT} offen offset:512 sc1
            s_waitcnt vmcnt(0)""")
        self.verify(check, rl, "ps")
        c1 = -2*LOG2E*math.sqrt(2/math.pi)
        k(f"s_mov_b32 s{S_T}, {fbits(1.0/640)}")
        seqs = []
        for mt in range(2):
            g_ = GS + 4*mt; t_ = TM + mt
            seqs.append([f"v_mul_f32 v{g_}, s{S_T}, v{g_}", f"v_mul_f32 v{t_}, v{g_}, v{g_}", f"v_fma_f32 v{g_+2}, v{g_+2}, s{S_T}, -v{t_}",
                         f"v_max_f32 v{g_+2}, 0, v{g_+2}", f"v_add_f32 v{t_}, {fbits(EPS)}, v{g_+2}", f"v_rsq_f32 v{g_+1}, v{t_}",
                         f"v_mul_f32 v{t_}, v{g_+1}, v{g_+1}", f"v_mul_f32 v{t_}, v{t_}, v{g_+2}", f"v_add_f32 v{t_}, {fbits(EPS)}, v{t_}",
                         f"v_rsq_f32 v{t_}, v{t_}", f"v_mul_f32 v{AT+2*mt}, v{t_}, v{g_+1}", f"v_mul_f32_e64 v{BT+2*mt}, v{g_}, -v{AT+2*mt}"])
        for x, y in zip(*seqs): k(x); k(y)
        C1 = 184; PATV = 15
        k(f"""v_lshrrev_b32 v14, 5, v0
        s_mul_i32 s{S_T}, s{S_NH}, 384
        v_lshl_add_u32 v12, v14, 4, s{S_T}
        v_add_u32 v12, {L_WS}, v12
        v_lshrrev_b32 v13, 4, v11
        v_mul_u32_u24 v13, {48*1024}, v13
        v_and_b32 v15, 15, v0
        v_lshl_add_u32 v13, v15, 4, v13
        v_lshl_add_u32 v{PV}, v14, 8, v13
        s_lshl_b32 s{S_T}, s{S_I}, 3
        s_lshl_b32 s{S_T+1}, s{S_MH}, 2
        s_add_u32 s{S_T}, s{S_T}, s{S_T+1}
        s_mul_i32 s{S_T}, s{S_T}, 48
        s_mul_i32 s{S_T+1}, s{S_J}, 6
        s_add_u32 s{S_T}, s{S_T}, s{S_T+1}
        s_mul_i32 s{S_T+1}, s{S_NH}, 3
        s_add_u32 s{S_T}, s{S_T}, s{S_T+1}
        s_lshl_b32 s{S_T}, s{S_T}, 10
        s_add_u32 s{S_T+6}, s{S_T}, {WS_A2[1]}
        s_add_u32 s{S_T+7}, s{S_T+6}, {96*1024}
        s_mov_b32 s{S_T+4}, {fbits(c1*0.044715)}
        s_mov_b32 s{S_T+5}, s{S_T+4}
        v_mov_b32 v{C1}, {fbits(c1)}
        v_mov_b32 v{C1+1}, {fbits(c1)}
        v_mov_b32 v{PATV}, s{S_PAT}
        s_waitcnt lgkmcnt(0)
        s_barrier""")
        self.stamp(3)
        WB = [112, 186]
        Q = 160; PKO = [168, 172, 234, 238]; TT = 242
        def wreads(T3):
            b = WB[T3 % 2]
            return [f"ds_read_b128 {v(b+16*a_+4*q4,4)}, v12 offset:{768*a_+(32*T3+8*q4)*4}" for q4 in range(4) for a_ in range(3)]
        self.emit(wreads(0))
        self.p2_addr(1)
        held = []
        for Tl in range(6):
            T3, mt = Tl//2, Tl % 2
            self.fine2()
            b = WB[T3 % 2]
            fill = []; body = []
            if mt == 0:
                k("s_waitcnt lgkmcnt(0)")
                body += [f"v_pk_add_f32 {v(b+2*p,2)}, {v(b+2*p,2)}, {v(b+16+2*p,2)}" for p in range(8)]
                if T3 < 2: fill = [lambda x=x: k(x) for x in wreads(T3+1)]
            for c in range(2):
                po = PKO[(2*Tl + c) % 4]; prs = range(4*c, 4*c+4)
                z = lambda p: ACC + 16*Tl + 2*p
                q = lambda p: Q + 2*(p % 4)
                body += [f"v_pk_fma_f32 {v(TT+2*(p%4),2)}, {v(BT+2*mt,2)}, {v(b+2*p,2)}, {v(b+32+2*p,2)} op_sel_hi:[0,1,1]" for p in prs]
                body += [f"v_pk_fma_f32 {v(z(p),2)}, {v(AT+2*mt,2)}, {v(z(p),2)}, {v(TT+2*(p%4),2)} op_sel_hi:[0,1,1]" for p in prs]
                body += [f"v_pk_mul_f32 {v(q(p),2)}, {v(z(p),2)}, {v(z(p),2)}" for p in prs]
                body += [f"v_pk_fma_f32 {v(q(p),2)}, {v(q(p),2)}, {s(S_T+4,2)}, {v(C1,2)}" for p in prs]
                body += [f"v_pk_mul_f32 {v(q(p),2)}, {v(q(p),2)}, {v(z(p),2)}" for p in prs]
                for p in prs: body += [f"v_exp_f32 v{q(p)}, v{q(p)}", f"v_exp_f32 v{q(p)+1}, v{q(p)+1}"]
                body += [f"v_pk_add_f32 {v(q(p),2)}, {v(q(p),2)}, 1.0 op_sel_hi:[1,0]" for p in prs]
                for p in prs: body += [f"v_rcp_f32 v{q(p)}, v{q(p)}", f"v_rcp_f32 v{q(p)+1}, v{q(p)+1}"]
                body += [f"v_pk_mul_f32 {v(q(p),2)}, {v(q(p),2)}, {v(z(p),2)}" for p in prs]
                body += [f"v_cvt_pk_bf16_f32 v{po+p%4}, v{q(p)}, v{q(p)+1}" for p in prs]
                body += [f"v_and_or_b32 v{po+p%4}, v{po+p%4}, s{S_NM}, v{PATV}" for p in prs]
                def st_(T3=T3, mt=mt, c=c, po=po):
                    self.last_st = k(f"buffer_store_dwordx4 {v(po,4)}, v{PV}, {WS4}, s{S_T+6+mt} offen offset:{T3*1024+c*512} sc1")
                if Tl < 4: body.append(st_)
                else: held.append(st_)
            if Tl >= 4: fill = [self.p2_aload]*8
            if Tl < 4: fill = fill + self.b2_take(min(int(self.P('g1', 4)), -(-len(self.b2q)//(4 - Tl))))
            self.sprinkle(body, fill, lead=8)
        self.fine2()
        self.emit(held)
        self.fine2()
        self.stamp(6)
        self.phase2(1)

    RING, NR, ACS, ACO = 16, 19, 92, 172
    def p2_addr(self, side):
        k = self.k
        S = [40, 48][side]; KS = [10, 12][side]
        self.side = side; self.KS = KS
        hfS = side; hfO = 1 - side
        k(f"""s_mul_i32 s45, s{S_I}, {8*S}
        s_mul_i32 s46, s{S_W}, {KS}
        s_add_u32 s45, s45, s46
        s_lshl_b32 s45, s45, 10
        s_add_u32 s45, s45, {WS_A2[side]}""")
        for t4 in range(4):
            k(f"s_add_u32 s{36+t4}, s45, {(4*hfS+t4)*S*1024}")
            k(f"s_add_u32 s{40+t4}, s45, {(4*hfO+t4)*S*1024}")
        self.seq = [(0, ss, t4) for ss in self.order for t4 in range(4)] + [(1, ss, t4) for t4 in range(4) for ss in range(KS)]
        self.atok = {}; self.areg = {}; self.nxt = 0
        self.free_ring = [self.RING + 4*i for i in range(self.NR)]
        self.free_big = [self.ACO + 4*i for i in range(20)] if side == 0 else []
    def a_instr(self, idx):
        p, ss, t4 = self.seq[idx]
        so = 36 + 4*p + t4; pre = ""
        if ss >= 4:
            pre = f"s_add_u32 s45, s{so}, {(ss//4)*4096}\n"; so = 45
        return pre + f"buffer_load_dwordx4 {v(self.areg[idx],4)}, v{self.LV}, {WS4}, s{so} offen offset:{(ss%4)*1024} sc1"
    def p2_can(self):
        if self.nxt >= len(self.seq): return False
        if self.seq[self.nxt][0] == 0 and self.free_big: return True
        return bool(self.free_ring)
    def p2_aload(self):
        idx = self.nxt
        if self.seq[idx][0] == 0 and self.free_big: r = self.free_big.pop(0)
        else: r = self.free_ring.pop(0)
        self.areg[idx] = r
        self.atok[idx] = self.k(self.a_instr(idx))
        self.nxt += 1

    def phase2(self, side):
        k = self.k
        if self.early_stop("p1"): return
        KS = self.KS; nper = 4*KS
        ACS, ACO, LV = self.ACS, self.ACO, self.LV
        hfS = side; hfO = 1 - side
        RW, RR, OO, VA, FV, T1 = 5, 6, 11, 1, 2, 253
        k.c(f"================ phase 2 (side {side})")
        if side == 1: self.free_big = [self.ACO + 4*i for i in range(20)]
        while self.nxt < 16: self.p2_aload()
        self.stamp(8)
        def vcheck(j, lst):
            regs = [self.areg[4*j+t]+e for t in range(4) for e in range(4)]
            L = [f"v_xor_b32 v{VA}, s{S_PAT}, v{regs[0]}"]
            L += [f"v_bitop3_b32 v{VA}, s{S_PAT}, v{r}, v{VA} bitop3:0xbe" for r in regs[1:]]
            L += [f"v_and_b32 v{VA}, 0x10001, v{VA}", f"v_cmp_ne_u32 vcc, 0, v{VA}"]
            return L
        def vfinish(j):
            hi = min(self.nxt, nper)
            ins = [self.a_instr(i) for i in range(4*j, hi)]
            chk = vcheck(j, None)
            def reload():
                self.emit(ins); k("s_waitcnt vmcnt(0)")
            self.verify(lambda: self.emit(chk), reload, "va", checked=True)
        a1 = [f"v_and_b32 v{FV}, 7, v0\nv_lshlrev_b32 v{FV}, 6, v{FV}", f"s_lshl_b32 s44, s{S_I}, 5\ns_lshl_b32 s46, s{S_W}, 3",
              f"s_add_u32 s44, s44, s46\ns_lshl_b32 s44, s44, 6", f"s_add_u32 s44, s44, {WS_FA + side*512*FLS}",
              f"s_movk_i32 s{S_T+1}, {RED_RS}\ns_movk_i32 s{S_T+2}, 2560"]
        if side == 1:
            a1 += [f"v_and_b32 v{T1}, 15, v0", f"v_mul_u32_u24 v{RW}, {RED_RS}, v{T1}", f"v_lshrrev_b32 v{T1}, 4, v0",
                   f"v_lshl_add_u32 v{RW}, v{T1}, 4, v{RW}", f"s_mul_i32 s{S_T}, s{S_W}, {RED_W}\ns_add_u32 s{S_T}, s{S_T}, {LDS_RED}",
                   f"v_add_u32 v{RW}, s{S_T}, v{RW}"]
        else:
            a1 += [f"v_accvgpr_read_b32 v{RW}, a{ST['RW']}"]
        a1 += [f"s_mul_i32 s{S_T}, s{S_W}, {16*RED_RS}\ns_add_u32 s{S_T}, s{S_T}, {LDS_RED}"]
        for it in range(5):
            if side == 1: a1 += [f"v_add_u32 v{T1}, {64*it}, v0"] + self.div20(OO+it, RR+it, T1)
            a1 += [f"v_lshlrev_b32 v{T1}, 4, v{RR+it}",
                   f"v_mad_u32_u24 v{RR+it}, v{OO+it}, s{S_T+1}, v{T1}", f"v_add_u32 v{RR+it}, s{S_T}, v{RR+it}",
                   f"v_mad_u32_u24 v{OO+it}, v{OO+it}, s{S_T+2}, v{T1}"]
        a1 += [
               f"s_lshr_b32 s{S_T}, s{S_PW}, 2\ns_mul_i32 s{S_T}, s{S_T}, 20480", f"s_mul_i32 s{S_T+1}, s{S_W}, 5120\ns_add_u32 s{S_T}, s{S_T}, s{S_T+1}",
               f"s_add_u32 s{S_T+3}, s{S_T}, {WS_PART + (1-side)*128*20480}\ns_add_u32 s{S_T+4}, s{S_T+3}, 4096",
               f"s_add_u32 s{S_T+5}, s{S_T}, {WS_PART + side*128*20480}\ns_add_u32 s{S_T+6}, s{S_T+5}, 4096",
               f"s_add_u32 s{S_T+7}, s{S_T+1}, {L_R}\nv_mov_b32 v3, s{S_PAT32}",
               f"s_lshl_b32 s{S_T}, s{S_I}, 7\ns_lshl_b32 s{S_T+1}, s{S_W}, 4", f"s_add_u32 s{S_T}, s{S_T}, s{S_T+1}\ns_add_u32 s{S_T}, s{S_T}, {64*hfO}",
               f"s_mul_i32 s{S_T}, s{S_T}, 2560\ns_mul_i32 s{S_T+1}, s{S_J}, 320", f"s_add_u32 s{S_OUT}, s{S_T}, s{S_T+1}\ns_mov_b32 s{S_NM}, -4",
               f"s_mov_b32 s{SRD_OUT}, s{P0+28}\ns_mov_b32 s{SRD_OUT+1}, s{P0+29}", f"s_mov_b32 s{SRD_OUT+2}, 5242880\ns_mov_b32 s{SRD_OUT+3}, 0x20000"]
        tk = {}
        gate = [lambda j: nper, lambda j: 32 if j < 3 else nper][side]
        k.wait_vm(self.atok[3])
        self.emit(vcheck(0, None)); vfinish(0)
        o_ok = False
        for j in range(KS):
            self.fine(36 + j)
            ss = self.order[j]
            while (ss, 4) not in self.b2tok: self.b2q.pop(0)()
            k.wait_vm(self.b2tok[ss, 4])
            vq = None
            misc = []
            if j == [0, int(self.P('jfl', 3))][side]:
                def f():
                    k.wait_vm(self.last_st)
                    k(f"s_add_u32 s{S_T+10}, s{S_FLAG}, {WS_FA + side*512*FLS}")
                    self.set_flag(S_T+10, 4)
                misc.append(f)
            if j == [int(self.P('jpo0', 4)), int(self.P('jpo', 7))][side]:
                def f(): tk['fa'] = k(f"buffer_load_dword v4, v{FV}, {WS4}, s44 offen sc1")
                misc.append(f)
            if j == [int(self.P('jck0', 6)), int(self.P('jck', 9))][side]:
                k.wait_vm(tk['fa'])
                def rl(): k(f"buffer_load_dword v4, v{FV}, {WS4}, s44 offen sc1\ns_waitcnt vmcnt(0)")
                self.verify(lambda: k(f"v_cmp_ne_u32 vcc, s{S_TAG}, v4"), rl, "fa")
                o_ok = True
            for t4 in range(4):
                idx = 4*j + t4
                for cc in range(5):
                    g_ = 5*t4 + cc
                    d = ACS + (t4*5 + cc)*4
                    k(f"v_mfma_f32_16x16x32_bf16 {v(d,4)}, {a((ss*5+cc)*4,4)}, {v(self.areg[idx],4)}, {'0' if j == 0 else v(d,4)}")
                    lim = gate(j) if not o_ok else 2*nper
                    if g_ % 3 == 0 and self.p2_can() and self.nxt < lim and self.nxt < idx + 22:
                        self.p2_aload()
                    elif g_ in (1, 10) and self.b2q and j >= [1, 3][side]:
                        self.b2q.pop(0)()
                    elif g_ >= 4 and j + 1 < KS:
                        if vq is None:
                            k.wait_vm(self.atok[4*j+7]); vq = vcheck(j+1, None)
                        self.emit(vq[:2]); vq = vq[2:]
                        if not vq and (misc or a1): self.emit([(misc or a1).pop(0)])
                    elif misc or a1:
                        self.emit([(misc or a1).pop(0)])
                r = self.areg[idx]
                (self.free_ring if r < ACS else self.free_big).append(r) if (r < ACS or self.nxt < nper - 8) else None
            self.emit(misc)
            if j + 1 < KS:
                self.emit(vq); vfinish(j+1)
        self.emit(a1)
        self.stamp(9)
        nsrc = 5 if side == 0 else 4
        fill = []
        def wr(r, off):
            if 'w64' in self.opt: return [f"ds_write_b64 v{RW}, {v(r,2)} offset:{off}", f"ds_write_b64 v{RW}, {v(r+2,2)} offset:{off+8}"]
            return [f"ds_write_b128 v{RW}, {v(r,4)} offset:{off}", NOP]
        for t4 in range(4):
            for cc in range(5):
                fill += wr(ACS+(t4*5+cc)*4, t4*16*RED_RS+cc*64) + [NOP]*int(self.P('wpad', 2)*side)
        fill += [NOP]*int(self.P('bpad', 3)) + ["s_waitcnt lgkmcnt(0)\ns_barrier"]
        if side == 0: fill += [f"v_add_u32 v4, s{S_T+7}, v{LV}"]
        rds = []
        for it in range(5):
            for sw in range(4):
                def f(it=it, sw=sw): tk['r', it] = k(f"ds_read_b128 {v(ACS+(it*4+sw)*4,4)}, v{RR+it} offset:{sw*RED_W}")
                rds.append(f)
        fill += rds[:8]
        for it in range(5):
            b = ACS + it*16
            ad = [f"v_add_f32 v{b+e}, v{b+e}, v{b+4+e}\nv_add_f32 v{b+8+e}, v{b+8+e}, v{b+12+e}" for e in range(4)]
            nx = rds[8+4*it:12+4*it]
            fill.append(lambda it=it, a0=ad[0]: (k.wait_lg(tk['r', it]), k(a0)))
            for q in range(1, 4):
                if nx: fill.append(nx.pop(0))
                fill.append(ad[q])
            fill += nx
            if side == 0:
                def f(it=it, b=b): tk['R', it] = k(f"ds_read_b128 {v(b+4,4)}, v4 offset:{hfS*20480+it*1024}")
                fill.append(f)
            fill += [f"v_add_f32 v{b+e}, v{b+e}, v{b+8+e}\nv_add_f32 v{b+e+1}, v{b+e+1}, v{b+9+e}" for e in (0, 2)]
        fill += ["s_barrier"]
        for it in range(5):
            b = ACS + it*16
            if side == 0:
                fill.append(lambda it=it: k.wait_lg(tk['R', it]))
                fill += [f"v_add_f32 v{b+e}, v{b+e}, v{b+4+e}\nv_add_f32 v{b+e+1}, v{b+e+1}, v{b+5+e}" for e in (0, 2)]
            fill += [f"v_and_or_b32 v{b+e}, v{b+e}, s{S_NM}, v3\nv_and_or_b32 v{b+e+1}, v{b+e+1}, s{S_NM}, v3" for e in (0, 2)]
            fill.append(f"buffer_store_dwordx4 {v(b,4)}, v{LV}, {WS4}, s{S_T+5+it//4} offen offset:{(it%4)*1024} sc1")
        nS = len(fill)
        owr = {t4: [f"ds_write_b128 v{RW}, {v(ACO+(t4*5+cc)*4,4)} offset:{t4*16*RED_RS+cc*64}" for cc in range(5)] for t4 in range(4)}
        oq = []
        def ploads():
            return [k(f"buffer_load_dwordx4 {v(ACS+it*16+12,4)}, v{LV}, {WS4}, s{S_T+3+it//4} offen offset:{(it%4)*1024} sc1") for it in range(5)]
        slot = 0
        for j in range(nper):
            idx = nper + j
            _, ss, t4 = self.seq[idx]
            if j % 4 == 0: self.fine(36 + KS + j//4)
            if ss == 1 and t4 > 0: oq += [x for cc in range(5) for x in wr(ACO+((t4-1)*5+cc)*4, (t4-1)*16*RED_RS+cc*64)]
            while idx not in self.atok: self.p2_aload()
            k.wait_vm(self.atok[idx])
            for cc in range(5):
                d = ACO + (t4*5 + cc)*4
                k(f"v_mfma_f32_16x16x32_bf16 {v(d,4)}, {a((ss*5+cc)*4,4)}, {v(self.areg[idx],4)}, {'0' if ss == 0 else v(d,4)}")
                if cc == 0 and self.p2_can(): self.p2_aload()
                elif fill: self.emit([fill.pop(0)])
                elif oq: self.emit([oq.pop(0)])
            self.free_ring.append(self.areg[idx])
            if j == nper - 3: ptoks = ploads()
        assert not fill
        self.stamp(10)
        rest = [x for x in oq if x is not NOP] + owr[3]
        if side == 0:
            for it in range(5): k(f"ds_read_b128 {v(ACS+it*16+4,4)}, v4 offset:{hfO*20480+it*1024}")
        self.emit(rest)
        def pcheck():
            regs = [ACS+it*16+12+e for it in range(5) for e in range(4)]
            k(f"v_xor_b32 v{VA}, s{S_PAT32}, v{regs[0]}")
            for r in regs[1:]: k(f"v_bitop3_b32 v{VA}, s{S_PAT32}, v{r}, v{VA} bitop3:0xbe")
            k(f"v_and_b32 v{VA}, 3, v{VA}\nv_cmp_ne_u32 vcc, 0, v{VA}")
        k("s_waitcnt lgkmcnt(0)\ns_barrier")
        toks = []
        for it in range(5):
            for sw in range(4):
                toks.append(k(f"ds_read_b128 {v(ACO+(it*4+sw)*4,4)}, v{RR+it} offset:{sw*RED_W}"))
        k.wait_vm(ptoks[4])
        def rl():
            ploads(); k("s_waitcnt vmcnt(0)")
        self.verify(pcheck, rl, "pp")
        self.stamp(11)
        if side == 0:
            for it in range(5):
                for h in range(2):
                    k(f"v_pk_add_f32 {v(ACS+it*16+12+2*h,2)}, {v(ACS+it*16+12+2*h,2)}, {v(ACS+it*16+4+2*h,2)}")
        for it in range(5):
            b = ACO + it*16
            k.wait_lg(toks[4*it+3])
            for h in range(2):
                k(f"v_pk_add_f32 {v(b+2*h,2)}, {v(b+2*h,2)}, {v(b+4+2*h,2)}")
                k(f"v_pk_add_f32 {v(b+8+2*h,2)}, {v(b+8+2*h,2)}, {v(b+12+2*h,2)}")
            for h in range(2):
                k(f"v_pk_add_f32 {v(b+2*h,2)}, {v(b+2*h,2)}, {v(ACS+it*16+12+2*h,2)}")
            for h in range(2):
                k(f"v_pk_add_f32 {v(b+2*h,2)}, {v(b+2*h,2)}, {v(b+8+2*h,2)}")
            k(f"buffer_store_dwordx4 {v(b,4)}, v{OO+it}, {s(SRD_OUT,4)}, s{S_OUT} offen {'sc1' if 'outsc1' in self.opt else 'nt' if 'outnt' in self.opt else ''}")
        self.stamp(12)
        self.finish_wg(side)

    def finish_wg(self, side):
        k = self.k
        if side == 0:
            k(f"""s_cmp_lg_u32 s{S_PW}, 0
            s_cbranch_scc1 L_fin0
            v_lshlrev_b32 v13, 8, v0""")
            def loads():
                for q in range(4):
                    k(f"s_mov_b32 s{S_T+1}, {WS_FA + q*64*4*FLS}")
                    k(f"buffer_load_dword v{16+q}, v13, {WS4}, s{S_T+1} offen sc1")
                k("s_waitcnt vmcnt(0)")
            def check():
                k(f"v_xor_b32 v14, s{S_TAG}, v16")
                for q in range(1, 4): k(f"v_bitop3_b32 v14, s{S_TAG}, v{16+q}, v14 bitop3:0xbe")
                k("v_cmp_ne_u32 vcc, 0, v14")
            loads()
            self.verify(check, loads, "pe")
            k(f"s_mov_b32 s{S_T}, {WS_EPOCH}")
            self.set_flag(S_T, 14)
            k.label("L_fin0")
        if self.spin:
            lb = k.newlabel("spin")
            k(f"s_add_u32 s101, s101, {self.spin}")
            k.label(lb)
            k(f"""s_memrealtime s[98:99]
            s_waitcnt lgkmcnt(0)
            s_sub_u32 s98, s98, s100
            s_cmp_lt_u32 s98, s101
            s_cbranch_scc1 {lb}""")
        if self.ts:
            k("s_waitcnt vmcnt(0)"); self.stamp(13); self.stamp_flush()
        k("s_endpgm")

    def build(self):
        k = self.k
        self.prologue()
        st = k.state()
        self.ssm()
        self.flush_slow()
        k.set_state(st)
        self.mlp()
        self.flush_slow()
        k.label("L_end")
        k("s_endpgm")
        if 'nob2' in self.opt:
            k.ins = [x for x in k.ins if not (x.op == 'buffer_load_dwordx4' and ' a[' in x.text)]
        if 'b2hot' in self.opt:
            for x in k.ins:
                if x.op == 's_add_u32' and x.text.startswith(f's_add_u32 s{P0+30},'): x.text = f's_add_u32 s{P0+30}, s{S_B2}, 0'
        if 'noa2' in self.opt:
            out = []; inp2 = False
            for x in k.ins:
                if 'phase 2 (side' in x.text: inp2 = True
                if x.op == 's_endpgm': inp2 = False
                if inp2 and (x.op == 's_cbranch_vccnz' or (x.op == 'buffer_load_dwordx4' and 'sc1' in x.text and ' a[' not in x.text)): continue
                out.append(x)
            k.ins = out
        if self.opt & {'nomfma', 'noread', 'nobar', 'nofill'}:
            out = []; inloop = False
            for x in k.ins:
                if 'k-step' in x.text: inloop = True
                if 'loop end' in x.text: inloop = False
                if inloop:
                    if 'nomfma' in self.opt and x.kind == 'mfma': continue
                    if 'noread' in self.opt and x.kind == 'ds': continue
                    if 'nobar' in self.opt and x.op == 's_barrier': continue
                    if 'nofill' in self.opt and (x.op == 's_cbranch_vccnz' or (x.kind == 'vmem' and not x.lds_dma) or 'v253' in x.text): continue
                out.append(x)
            k.ins = out
        body = k.finish()
        hdr = open("header.txt").read()
        return (hdr + f"""; @launch grid=(256,1,1) block=(256,1,1) lds=163840
.amdgcn_target "amdgcn-amd-amdhsa--gfx950"
.text
.globl {NAME}
.p2align 8
.type {NAME},@function
{NAME}:
""" + body + f""".section .rodata,"a"
.p2align 6
.amdhsa_kernel {NAME}
  .amdhsa_next_free_vgpr 512
  .amdhsa_next_free_sgpr 102
  .amdhsa_accum_offset 256
  .amdhsa_group_segment_fixed_size 0
  .amdhsa_kernarg_size 136
  .amdhsa_user_sgpr_count 2
  .amdhsa_user_sgpr_kernarg_segment_ptr 1
  .amdhsa_system_sgpr_workgroup_id_x 1
.end_amdhsa_kernel
""")

if __name__ == "__main__":
    import argparse
    ap = argparse.ArgumentParser()
    ap.add_argument("-o", default="k4.s")
    ap.add_argument("--stop", default=None)
    ap.add_argument("--ts", action="store_true")
    ap.add_argument("--spin", type=int, default=0)
    ap.add_argument("--seg", type=int, default=None)
    ap.add_argument("--opt", default="")
    a_ = ap.parse_args()
    g = G(stop=a_.stop, ts=a_.ts, spin=a_.spin, seg=a_.seg, opt=a_.opt.split(","))
    txt = g.build()
    open(a_.o, "w").write(txt)
    print("written", a_.o, "nops inserted:", g.k.nops, "lines:", txt.count("\n"), g.info)
```

```python
import sys, math, struct
sys.path.insert(0, "gen")
from emit import *

NAME = "parallel_sum__ssm_conv_s5__mixer_channel_mlp__prompt_kernel"
WS_EPOCH = 0
WS_FB = 0x1000
WS_FA = 0x11000
WS_AGG = 0x31000
WS_STG = 0x59000
WS_WSG = 0x61000
WS_B2S = [0x70000, 0x200000]
WS_A2 = [0x400000, 0x900000]
WS_PART = 0xF00000
WS_TS = 0x1400000
WS_SIZE = 0x1500000
FLS = 64
S_W = 3
SRD_X, SRD_W, SRD_WS, SRD_OUT, SRD_T1, SRD_T2 = 4, 8, 12, 16, 20, 24
S_TAG, S_TAG2, S_I, S_J, S_PAT = 28, 29, 30, 31, 32
S_PW = 33
S_FLAG = 34
S_OUT = 35
S_XO = 36
S_WO = 40
S_MX, S_MW = 45, 46
S_B2 = 47
S_T = 48
P0 = 64
def ptr(n): return s(P0 + 2*n, 2)
S_PAT32 = P0 + 18
S_NM = P0 + 19
S_WRAP, S_ST1, S_ST2 = 2, 0, 1
S_TS = 98
S_ST1K, S_ST2K = P0 + 2, P0 + 3
LOG2E = 1.4426950408889634
EPS = 1e-5
def fbits(x): return "0x%08x" % struct.unpack("<I", struct.pack("<f", x))[0]
POLL_MAX = 20000
LDS_RED = 16384
RED_RS = 336
RED_W = 64 * RED_RS
L_R = 106496
WS4 = s(SRD_WS, 4)
NOP = lambda: None

ST = dict(E=200, CH=201, PUB=202, TB=203, GA=204, VA=205, QE=206, CW=207, CR=208, TW=209, TR=210, PAT=211,
          RD=212, ROW=236, C4=241, RW=246)
S_MK = 68
S_AG1, S_AG4, S_A2B, S_RX, S_RL, S_RJ = 78, 79, 84, 85, 86, 87
class C5:
    def __init__(self, re, im=None, st=1):
        self.re = re; self.im = re + 1 if im is None else im; self.st = 2 if im is None else st
    def r(self, b): return self.re + self.st*b
    def i(self, b): return self.im + self.st*b

class G:
    def __init__(self, stop=None, ts=False, spin=0, seg=None, opt=()):
        self.k = Emit(); self.slow = []; self.stop = stop; self.ts = ts; self.spin = spin; self.seg = seg; self.opt = set(opt)

    def P(self, name, default):
        for o in self.opt:
            if o.startswith(name + "="): return float(o.split("=")[1])
        return default
    def stamp(self, idx):
        k = self.k
        if self.seg == idx:
            k("s_memrealtime s[98:99]\ns_waitcnt lgkmcnt(0)\ns_sub_u32 s101, s98, s100")
        if not self.ts: return
        k(f"{'s_memtime' if 'cyc' in self.opt else 's_memrealtime'} {s(S_TS,2)}")
        k("s_waitcnt lgkmcnt(0)")
        k(f"v_writelane_b32 v255, s{S_TS}, {idx}")
    def fine(self, idx):
        if 'fine' in self.opt: self.stamp(idx)
    def fine3(self):
        if 'fine3' in self.opt:
            self.stamp(16 + self.nf3); self.nf3 += 1
    def fine2(self):
        if 'fine2' in self.opt:
            self.stamp(16 + self.nf2); self.nf2 += 1
    def stamp_flush(self):
        if not self.ts: return
        self.k(f"""s_lshl_b32 s{S_T}, s99, 2
        v_readlane_b32 s{S_T}, v255, 63
        s_nop 3
        s_lshl_b32 s{S_T}, s{S_T}, 2
        s_add_u32 s{S_T}, s{S_T}, s{S_W}
        s_lshl_b32 s{S_T}, s{S_T}, 8
        s_add_u32 s{S_T}, s{S_T}, {WS_TS}
        v_mbcnt_lo_u32_b32 v254, -1, 0
        v_mbcnt_hi_u32_b32 v254, -1, v254
        v_lshlrev_b32 v254, 2, v254
        buffer_store_dword v255, v254, {WS4}, s{S_T} offen""")
    def early_stop(self, name):
        if self.stop != name: return False
        self.k("s_waitcnt vmcnt(0)"); self.stamp(13); self.stamp_flush(); self.k("s_endpgm")
        return True

    def srd(self, base, pn, size):
        self.k(f"""s_mov_b32 s{base}, s{P0+2*pn}
        s_and_b32 s{base+1}, s{P0+2*pn+1}, 0xffff
        s_mov_b32 s{base+2}, {size}
        s_mov_b32 s{base+3}, 0x20000""")
    def verify(self, check, reload, name, checked=False):
        k = self.k
        slow = k.newlabel(name); done = k.newlabel(name + "d")
        if not checked: check()
        k(f"s_cbranch_vccnz {slow}")
        k.label(done)
        self.slow.append((slow, done, check, reload))
    def flush_slow(self):
        k = self.k
        for slow, done, check, reload in self.slow:
            top = k.newlabel(slow + "t")
            k.label(slow)
            if self.ts:
                bit = {'pb': 1, 'pg': 2, 'ps': 2, 'pc': 4, 'va': 8, 'fa': 16, 'pp': 32, 'pe': 64}[slow[:2]]
                k(f"v_readlane_b32 s{S_T+15}, v255, 15\ns_nop 3\ns_or_b32 s{S_T+15}, s{S_T+15}, {bit}\nv_writelane_b32 v255, s{S_T+15}, 15")
            k(f"s_mov_b32 s{S_T+15}, {POLL_MAX}")
            k.label(top)
            reload()
            check()
            k(f"""s_cbranch_vccz {done}
            s_sub_u32 s{S_T+15}, s{S_T+15}, 1
            s_cmp_lg_u32 s{S_T+15}, 0
            s_cbranch_scc1 {top}
            s_branch {done}""")
        self.slow = []
    def set_flag(self, soff, vtmp, off=0):
        return self.k(f"""v_mov_b32 v{vtmp}, s{S_TAG}
        s_mov_b64 exec, 1
        buffer_store_dword v{vtmp}, off, {WS4}, s{soff} offset:{off} sc1
        s_mov_b64 exec, -1""")
    def capture(self, fn):
        real = self.k; rec = Emit(); rec._lab = real._lab
        self.k = rec
        try: fn(rec)
        finally: self.k = real
        L = [x.text for x in rec.ins]
        assert all(x.kind in ("salu", "valu", "trans") and not x.op.startswith("s_waitcnt") for x in rec.ins)
        out = []; i = 0
        while i < len(L):
            if L[i].startswith(("s_cmp", "s_bitcmp")):
                j = i + 1; last = i
                while j < len(L) and L[j].startswith(("s_cselect", "s_mov")):
                    if L[j].startswith("s_cselect"): last = j
                    j += 1
                out.append("\n".join(L[i:last+1])); i = last + 1
            else:
                out.append(L[i]); i += 1
        return out
    def emit(self, L):
        for x in L:
            x() if callable(x) else self.k(x)
    def sprinkle(self, work, q, lead=0):
        k = self.k; q = list(q); n0 = len(q); masked = False
        for i, w_ in enumerate(work):
            self.emit([w_])
            if isinstance(w_, str):
                if w_.startswith(("s_mov_b32 exec", "s_mov_b64 exec, s")) or "s_cselect_b64 exec" in w_: masked = True
                if w_.startswith("s_mov_b64 exec, -1"): masked = False
            while q and not masked and i >= lead and (n0 - len(q) + 1)*(len(work) - lead) <= (i - lead + 1)*(n0 + 1) + n0:
                q.pop(0)()
        for f in q: f()
    def cpow(self, dre, dim, n, zr, zi, t):
        return [f"v_mul_f32 v{t}, {n}, v{zi}", f"v_mul_f32 v{dre}, {n}, v{zr}", f"v_fract_f32 v{t}, v{t}",
                f"v_exp_f32 v{dre}, v{dre}", f"v_sin_f32 v{dim}, v{t}", f"v_cos_f32 v{t}, v{t}",
                f"v_mul_f32 v{dim}, v{dim}, v{dre}", f"v_mul_f32 v{dre}, v{t}, v{dre}"]
    def cmul5(self, d, x, y, c=None):
        L = []
        for b in range(5):
            L.append(f"v_mul_f32 v{d.r(b)}, v{x.r(b)}, v{y.r(b)}" if c is None else f"v_fma_f32 v{d.r(b)}, v{x.r(b)}, v{y.r(b)}, v{c.r(b)}")
            L.append(f"v_mul_f32 v{d.i(b)}, v{x.r(b)}, v{y.i(b)}" if c is None else f"v_fma_f32 v{d.i(b)}, v{x.r(b)}, v{y.i(b)}, v{c.i(b)}")
        for b in range(5):
            L.append(f"v_fma_f32 v{d.r(b)}, -v{x.i(b)}, v{y.i(b)}, v{d.r(b)}")
            L.append(f"v_fma_f32 v{d.i(b)}, v{x.i(b)}, v{y.r(b)}, v{d.i(b)}")
        return L
    def div20(self, q, r, x):
        return [f"v_mul_u32_u24 v{q}, 3277, v{x}", f"v_lshrrev_b32 v{q}, 16, v{q}", f"v_mul_u32_u24 v{r}, 20, v{q}", f"v_sub_u32 v{r}, v{x}, v{r}"]

    def prologue(self):
        k = self.k
        k(f"""s_cmp_ge_u32 s2, 256
        s_cbranch_scc1 L_end""")
        if self.spin: k("s_memrealtime s[100:101]")
        if 'align' in self.opt:
            k("""s_memrealtime s[98:99]
            s_waitcnt lgkmcnt(0)
            s_add_u32 s100, s98, 300
            s_and_b32 s100, s100, 0xfffffc00
            s_add_u32 s100, s100, 1024""")
            k.label("L_align")
            k("""s_memrealtime s[98:99]
            s_waitcnt lgkmcnt(0)
            s_cmp_lt_u32 s98, s100
            s_cbranch_scc1 L_align""")
        k(f"""s_load_dwordx16 {s(P0,16)}, s[0:1], 0
        s_load_dwordx16 {s(P0+16,16)}, s[0:1], 64
        s_load_dwordx2 {s(P0+32,2)}, s[0:1], 128""")
        if 'nopf' not in self.opt:
            k(f"""s_getpc_b64 {s(S_T,2)}""")
            k.label("L_pc")
            k(f"""s_bitcmp1_b32 s2, 0
            s_cselect_b32 s{S_T+2}, L_mlp-L_pc, 0
            s_add_u32 s{S_T}, s{S_T}, s{S_T+2}
            s_addc_u32 s{S_T+1}, s{S_T+1}, 0
            s_lshr_b32 s{S_T+2}, s2, 3
            s_lshl_b32 s{S_T+2}, s{S_T+2}, 10
            v_lshl_add_u32 v254, v0, 2, s{S_T+2}
            global_load_dword v254, v254, {s(S_T,2)}""")
        k("s_bitcmp1_b32 s2, 0\ns_cbranch_scc1 L_mlp")
        self.LV = 252; self.PV = 253

    def common_a(self):
        k = self.k
        if self.ts: k("v_mov_b32 v255, 0\nv_writelane_b32 v255, s2, 63")
        k(f"""v_lshrrev_b32 v1, 6, v0
        v_and_b32 v0, 63, v0
        v_readfirstlane_b32 s{S_W}, v1
        s_bfe_u32 s{S_T}, s2, 0x20001
        s_lshr_b32 s{S_T+1}, s2, 6           ; c = id>>6
        s_lshl_b32 s{S_I}, s{S_T+1}, 2
        s_add_u32 s{S_I}, s{S_I}, s{S_T}
        s_bfe_u32 s{S_J}, s2, 0x30003        ; j = (id>>3)&7
        s_lshl_b32 s{S_T}, s{S_I}, 3
        s_add_u32 s{S_T}, s{S_T}, s{S_J}
        s_lshl_b32 s{S_T}, s{S_T}, 2
        s_add_u32 s{S_PW}, s{S_T}, s{S_W}    ; (i*8+j)*4+w
        s_lshl_b32 s{S_FLAG}, s{S_PW}, 6
        s_lshl_b32 s{S_MX}, s{S_W}, 12
        s_lshl_b32 s{S_T+2}, s{S_I}, 7
        s_lshl_b32 s{S_T+3}, s{S_W}, 5
        s_add_u32 s{S_T+2}, s{S_T+2}, s{S_T+3}
        s_mul_i32 s{S_XO}, s{S_T+2}, 1280
        v_lshrrev_b32 v11, 4, v0                 ; g
        v_and_b32 v13, 7, v0
        v_xor_b32 v12, v13, v11
        v_lshlrev_b32 v12, 4, v12
        v_lshrrev_b32 v3, 3, v0
        v_mul_u32_u24 v3, 1280, v3
        v_lshl_add_u32 v253, v13, 4, v3          ; (l>>3)*1280 + (l&7)*16
        v_add_u32 v3, v3, v12                    ; (l>>3)*1280 + swz
        v_lshlrev_b32 v252, 4, v0
        """)
    def common_b(self):
        k = self.k
        k("s_waitcnt lgkmcnt(0)")
        if self.spin: k("s_mov_b32 s101, 0")
        k(f"s_load_dword s{S_TAG}, {ptr(16)}, {WS_EPOCH}")
        k(f"""s_mov_b32 s{SRD_X}, s{P0}
        s_mov_b32 s{SRD_X+1}, s{P0+1}
        s_mov_b32 s{SRD_X+2}, 2621440
        s_mov_b32 s{SRD_X+3}, 0x20000
        s_mov_b32 s{SRD_WS}, s{P0+32}
        s_mov_b32 s{SRD_WS+1}, s{P0+33}
        s_mov_b32 s{SRD_WS+2}, {WS_SIZE}
        s_mov_b32 s{SRD_WS+3}, 0x20000""")

    def make_tag(self):
        self.k(f"""s_waitcnt lgkmcnt(0)
        s_bitcmp1_b32 s{S_TAG}, 0
        s_cselect_b32 s{S_PAT}, 0x10000, 1        ; payload tag bits alternate from launch to launch
        s_cselect_b32 s{S_PAT32}, 2, 1
        s_mul_i32 s{S_TAG}, s{S_TAG}, 0x9E3779B1
        s_add_u32 s{S_TAG}, s{S_TAG}, 0x7F4A7C15
        s_and_b32 s{S_TAG}, s{S_TAG}, 0xfffefffc
        s_or_b32 s{S_TAG}, s{S_TAG}, s{S_PAT}
        s_or_b32 s{S_TAG}, s{S_TAG}, s{S_PAT32}
        s_xor_b32 s{S_TAG2}, s{S_TAG}, 0x5bd1e995
        s_brev_b32 s{S_TAG2}, s{S_TAG2}
        s_mov_b32 s{S_NM}, 0xfffefffe""")

    def rowstat_setup(self, s_row, s_cl, va, vr):
        self.k(f"""v_min_u32 v{vr}, s{s_cl}, v11
        v_mul_u32_u24 v{va}, 1280, v{vr}
        v_and_b32 v13, 15, v0
        v_lshl_add_u32 v{va}, v13, 4, v{va}
        v_lshlrev_b32 v{vr}, 4, v{vr}
        s_mul_i32 s{s_row}, s{s_row}, 1280""")
    def rowstat_loads(self, srd, s_row, va, R0):
        L = []
        for q in range(5):
            def f(q=q): self.rs_tok[q] = self.k(f"buffer_load_dwordx4 {v(R0+4*q,4)}, v{va}, {s(srd,4)}, s{s_row} offen offset:{256*q}")
            L.append(f)
        self.rs_tok = {}
        return L
    def rowstat_fill(self, R0, A0, T0, vr, s_dst, sq=True):
        k = self.k; L = []
        for q in range(20):
            if q % 4 == 0: L.append(lambda q=q: k.wait_vm(self.rs_tok[q//4]))
            t0, t1 = T0 + 2*(q % 2), T0 + 2*(q % 2) + 1
            L += [f"v_lshlrev_b32 v{t0}, 16, v{R0+q}", f"v_and_b32 v{t1}, 0xffff0000, v{R0+q}"]
            if q == 0: L += [f"v_add_f32 v{A0}, v{t0}, v{t1}", f"v_mul_f32 v{A0+2}, v{t0}, v{t0}", f"v_fmac_f32 v{A0+2}, v{t1}, v{t1}"]
            else: L += [f"v_add_f32 v{A0}, v{A0}, v{t0}", f"v_fmac_f32 v{A0+2}, v{t0}, v{t0}", f"v_add_f32 v{A0}, v{A0}, v{t1}", f"v_fmac_f32 v{A0+2}, v{t1}, v{t1}"]
        L += [f"v_mov_b32 v{A0+1}, s{S_TAG}", f"v_mov_b32 v{A0+3}, s{S_TAG2}"]
        for r in (8, 4, 2, 1):
            L += [f"v_add_f32_dpp v{A0}, v{A0}, v{A0} row_ror:{r} row_mask:0xf bank_mask:0xf", f"v_add_f32_dpp v{A0+2}, v{A0+2}, v{A0+2} row_ror:{r} row_mask:0xf bank_mask:0xf"]
        if not sq: L = [x for x in L if callable(x) or not x.split(",")[0].endswith((f"v{A0+2}", f"v{A0+3}"))]
        L.append(lambda: k(f"""s_mov_b32 exec_lo, 0x00010001
        s_mov_b32 exec_hi, 0x00010001
        buffer_store_dwordx{4 if sq else 2} {v(A0,4 if sq else 2)}, v{vr}, {WS4}, s{s_dst} offen sc1
        s_mov_b64 exec, -1"""))
        return L
    def rowstat_batch(self, R0, A0, vr, s_dst, sq=True):
        k = self.k
        k.wait_vm(self.rs_tok[4])
        k(f"s_mov_b32 s{S_T+4}, 0x3f803f80\nv_mov_b32 v{A0+1}, s{S_TAG}")
        if sq: k(f"v_mov_b32 v{A0+3}, s{S_TAG2}")
        for q in range(20):
            k(f"v_dot2_f32_bf16 v{A0}, v{R0+q}, s{S_T+4}, {'0' if q == 0 else v(A0)}")
            if sq: k(f"v_dot2_f32_bf16 v{A0+2}, v{R0+q}, v{R0+q}, {'0' if q == 0 else v(A0+2)}")
        for r in (8, 4, 2, 1):
            k(f"v_add_f32_dpp v{A0}, v{A0}, v{A0} row_ror:{r} row_mask:0xf bank_mask:0xf")
            if sq: k(f"v_add_f32_dpp v{A0+2}, v{A0+2}, v{A0+2} row_ror:{r} row_mask:0xf bank_mask:0xf")
        k(f"""s_mov_b32 exec_lo, 0x00010001
        s_mov_b32 exec_hi, 0x00010001
        buffer_store_dwordx{4 if sq else 2} {v(A0,4 if sq else 2)}, v{vr}, {WS4}, s{s_dst} offen sc1
        s_mov_b64 exec, -1""")
    @staticmethod
    def cost(x):
        if callable(x): return 1
        if x.startswith(("v_exp", "v_rcp", "v_rsq", "v_sin", "v_cos")): return 2
        return 1
    def take_fill(self, fq, n, cap):
        out = []
        while fq:
            x = fq[0]
            if isinstance(x, tuple):
                if x[0] == 'at':
                    if n < x[1]: break
                    fq.pop(0); continue
                if x[0] == 'mark':
                    self.marks[x[1]] = n; fq.pop(0); continue
            c = self.cost(x)
            if cap <= 0 or (c > cap and out): break
            cap -= c; out.append(fq.pop(0))
        return out
    def dma_reset(self):
        self.m0 = None; self.vstage = {}; self.sstage = 0
    def tile_of(self, t, dst):
        o = self.opt; r = S_WRAP
        if 'blk4' in o:
            if t < 8: return f"s_add_u32 s{dst}, s{r}, {t}\ns_and_b32 s{dst}, s{dst}, 3\ns_or_b32 s{dst}, s{dst}, {t & ~3}"
            return f"s_and_b32 s{dst}, s{r}, 1\ns_xor_b32 s{dst}, s{dst}, {t}"
        if 'blk5' in o:
            return f"s_add_u32 s{dst}, s{r}, {t % 5}\ns_cmp_ge_u32 s{dst}, 5\ns_cselect_b32 s{S_ST2K}, 5, 0\ns_sub_u32 s{dst}, s{dst}, s{S_ST2K}\ns_add_u32 s{dst}, s{dst}, {t - t % 5}"
        if 'rotlat' in o:
            return f"s_add_u32 s{dst}, s{r}, {t}\ns_cmp_ge_u32 s{dst}, 10\ns_cselect_b32 s{S_ST2K}, 10, 0\ns_sub_u32 s{dst}, s{dst}, s{S_ST2K}"
        return f"s_xor_b32 s{dst}, s{r}, {t}"
    def rot_setup(self, regs128, regsW):
        k = self.k; o = self.opt; r = S_WRAP
        k(f"s_lshr_b32 s{S_T}, s{S_I}, 2")
        if 'rot0' in o: k(f"s_mov_b32 s{r}, 0")
        elif 'blk4' in o: k(f"s_add_u32 s{r}, s{S_T}, s{S_J}\ns_and_b32 s{r}, s{r}, 3")
        elif 'blk5' in o: k(f"s_add_u32 s{r}, s{S_T}, s{S_J}\ns_and_b32 s{r}, s{r}, 3")
        elif 'rotlat' in o: k(f"s_lshl_b32 s{S_T}, s{S_T}, 1\ns_add_u32 s{S_T}, s{S_T}, s{S_J}\ns_and_b32 s{S_T}, s{S_T}, 7\ns_mul_i32 s{S_T}, s{S_T}, 5\ns_lshr_b32 s{r}, s{S_T}, 2")
        else: k(f"s_add_u32 s{r}, s{S_T}, s{S_J}\ns_and_b32 s{r}, s{r}, 1")
        k(f"s_mov_b32 s{S_ST1}, s{r}\ns_lshl_b32 s{S_ST2}, s{r}, 7")
        for x in regs128: k(f"v_add_u32 v{x}, s{S_ST2}, v{x}")
        if regsW: k(f"s_mul_i32 s{S_ST2}, s{S_ST2}, 1536")
    def dma(self, m0, ld, vreg=None, t=0, step=0):
        k = self.k
        def pre():
            if self.m0 != m0:
                k(f"s_add_u32 m0, s{m0[0]}, {m0[1]}"); self.m0 = m0
            if vreg is not None and self.vstage.get(vreg, 0) != t:
                assert self.vstage.get(vreg, 0) == t - 1
                if self.sstage != t:
                    k(self.tile_of(t, S_ST2))
                    k(f"s_sub_u32 s{S_ST1K}, s{S_ST2}, s{S_ST1}\ns_mov_b32 s{S_ST1}, s{S_ST2}\ns_lshl_b32 s{S_ST1K}, s{S_ST1K}, 7")
                    if self.has_w: k(f"s_mul_i32 s{S_ST2K}, s{S_ST1K}, 1536")
                    self.sstage = t
                k(f"v_add_u32 v{vreg}, s{S_ST1K if step == 128 else S_ST2K}, v{vreg}"); self.vstage[vreg] = t
        return pre, ld

    def unit_decode(self, nunits, U):
        self.k(f"""s_sub_u32 s{S_T}, s{S_PW}, {nunits}
        s_cmp_lt_u32 s{S_PW}, {nunits}
        s_cselect_b32 s{U}, s{S_PW}, s{S_T}
        s_mul_i32 s{S_T+2}, s{U}, 6554
        s_lshr_b32 s{S_T+2}, s{S_T+2}, 16
        s_mul_i32 s{S_T}, s{S_T+2}, 10
        s_sub_u32 s{S_T}, s{U}, s{S_T}""")

    def b2_setup(self, side):
        k = self.k; vl = self.PV
        S = [40, 48][side]; KS = [10, 12][side]
        if side == 0:
            V = f"""v_min_u32 v{vl}, 14, v0
            v_mul_u32_u24 v{vl+1}, 86, v{vl}
            v_lshrrev_b32 v{vl+1}, 8, v{vl+1}
            v_mul_u32_u24 v{vl+1}, 7, v{vl+1}
            v_add_lshl_u32 v{vl}, v{vl}, v{vl+1}, 6"""
            L = f"""s_mul_i32 s{S_T+12}, s{S_W}, 10
            s_lshr_b32 s{S_T+12}, s{S_T+12}, 2
            s_mul_i32 s{S_T+3}, s{S_J}, 50"""
        else:
            V = f"""v_min_u32 v{vl}, 23, v0
            v_lshrrev_b32 v{vl+1}, 1, v{vl}
            v_lshlrev_b32 v{vl+1}, 3, v{vl+1}
            v_add_lshl_u32 v{vl}, v{vl}, v{vl+1}, 6"""
            L = f"""s_mul_i32 s{S_T+12}, s{S_W}, 120
            s_mul_i32 s{S_T+3}, s{S_J}, 5
            s_lshr_b32 s{S_T+3}, s{S_T+3}, 2"""
        k(L + f"""
        s_add_u32 s{S_T+12}, s{S_T+12}, s{S_T+3}
        s_lshl_b32 s{S_T+12}, s{S_T+12}, 6
        s_add_u32 s{S_T+12}, s{S_T+12}, {WS_FB + side*512*FLS}
        s_mul_i32 s{S_B2}, s{S_J}, {5*S}
        s_mul_i32 s{S_T+3}, s{S_W}, {KS}
        s_add_u32 s{S_B2}, s{S_B2}, s{S_T+3}
        s_lshl_b32 s{S_B2}, s{S_B2}, 10
        s_add_u32 s{S_B2}, s{S_B2}, {WS_B2S[side]}""")
        self.order = [[0, 5, 1, 6, 2, 7, 3, 8, 4, 9], [0, 3, 6, 9, 1, 4, 7, 10, 2, 5, 8, 11]][side]
        self.b2tok = {}; self.b2q = []
        for ss in self.order:
            for cc in range(5):
                def ld(ss=ss, cc=cc):
                    k = self.k
                    k(f"s_add_u32 s{P0+30}, s{S_B2}, {(cc*S + ss)*1024}")
                    self.b2tok[ss, cc] = k(f"buffer_load_dwordx4 {a((ss*5+cc)*4,4)}, v{self.LV}, {WS4}, s{P0+30} offen sc1")
                self.b2q.append(ld)
        return [x.strip() for x in V.split("\n")]
    def touch(self, side, vt):
        k = self.k
        nx = 20; nw = [25, 30][side]
        def f1():
            k(f"""s_add_u32 s{S_T}, s{S_PW}, {512*side}
            s_mul_i32 s{S_T}, s{S_T}, {nx*128}
            v_min_u32 v{vt}, {nx-1}, v0
            v_lshlrev_b32 v{vt}, 7, v{vt}
            buffer_load_dword v{vt}, v{vt}, {s(SRD_X,4)}, s{S_T} offen""")
        def f2():
            if side == 0: k(f"s_lshr_b32 s{S_T}, s{S_PW}, 2\ns_lshl_b32 s{S_T}, s{S_T}, 1\ns_and_b32 s{S_T+1}, s{S_W}, 1\ns_add_u32 s{S_T}, s{S_T}, s{S_T+1}")
            else: k(f"s_mov_b32 s{S_T}, s{S_PW}")
            k(f"""s_mul_i32 s{S_T}, s{S_T}, {nw*128}
            v_min_u32 v{vt+1}, {nw-1}, v0
            v_lshlrev_b32 v{vt+1}, 7, v{vt+1}
            buffer_load_dword v{vt+1}, v{vt+1}, {s(SRD_W,4)}, s{S_T} offen""")
        def f3():
            k(f"""v_min_u32 v{vt}, 9, v0
            v_lshlrev_b32 v{vt}, 21, v{vt}
            v_min_u32 v{vt+1}, 2, v0
            v_lshlrev_b32 v{vt+1}, 21, v{vt+1}
            buffer_load_dword v{vt}, v{vt}, {WS4}, 0 offen offset:2048
            global_load_dword v{vt+1}, v{vt+1}, {ptr(14)}""")
            if side == 0:
                k(f"""v_mov_b32 v{vt-2}, 0
                global_load_dword v{vt-1}, v{vt-2}, {ptr(8)}
                global_load_dword v{vt-2}, v{vt-2}, {ptr(13)}""")
        if 'tlb' in self.opt: return [f3]
        return [f1, f2] if 'touch' in self.opt else []
    def b2_take(self, n):
        out = self.b2q[:n]; self.b2q = self.b2q[n:]
        return out
    def b2_poll(self):
        self.pbtok = self.k(f"buffer_load_dword v254, v{self.PV}, {WS4}, s{S_T+12} offen sc1")
    def b2_check(self):
        k = self.k
        k.wait_vm(self.pbtok)
        def rl(): k(f"buffer_load_dword v254, v{self.PV}, {WS4}, s{S_T+12} offen sc1\ns_waitcnt vmcnt(0)")
        self.verify(lambda: k(f"v_cmp_ne_u32 vcc, s{S_TAG}, v254"), rl, "pb")

    TB_RS = 184
    def ssm(self):
        k = self.k
        ACC = 16; FR = [96, 144]
        XE, XO, WA, WB = 1, 2, 3, 4
        PV = self.PV; LV = self.LV; RS = self.TB_RS
        STG0, STGS = 16384, 36864
        S_RSROW, SW0, S_GW, S_GT, D2, S_RSDST, S_FB = S_T+5, S_T+6, S_T+8, S_T+9, S_T+10, S_T+13, S_T+14
        acc = lambda a_, tt: ACC + (a_*10 + tt)*4
        k.c("================ SSM side, phase 1")
        self.common_a()
        self.nf3 = 0; self.marks = {}
        k(f"""v_lshrrev_b32 v13, 3, v0
        v_and_b32 v13, 3, v13
        v_lshrrev_b32 v15, 5, v0
        v_lshl_add_u32 v13, v15, 3, v13
        v_mul_u32_u24 v{XE}, 1280, v13
        v_add_u32 v{XE}, v{XE}, v12
        v_xor_b32 v{XO}, 64, v{XE}
        s_and_b32 s{S_T+4}, s{S_W}, 1
        s_lshl_b32 s{S_T+1}, s{S_T+4}, 6
        v_xor_b32 v{WA}, s{S_T+1}, v{WA}
        v_xor_b32 v{WB}, 64, v{WA}
        s_add_u32 s{S_XO+1}, s{S_XO}, {16*1280 - 1024}
        s_add_u32 s{S_XO+2}, s{S_XO}, {4*1280 - 2048}
        s_add_u32 s{S_XO+3}, s{S_XO}, {20*1280 - 3072}""")
        stage_tok = {}; stage_cnt = {}
        self.dma_reset(); self.has_w = False
        self.rot_setup([XE, XO, WA, WB], False)
        self.common_b()
        self.stamp(0); self.fine3()
        def dma_list(t):
            base = STG0 + (t % 4)*STGS
            L = []
            def mk(ld):
                def f():
                    stage_tok[t] = k(ld); stage_cnt[t] = stage_cnt.get(t, 0) + 1
                return f
            for e in range(4):
                vr = XE if e % 2 == 0 else XO
                L.append(self.dma((S_MX, base), mk(f"buffer_load_dwordx4 v{vr}, {s(SRD_X,4)}, s{S_XO+e} offen offset:{e*1024} lds"), vr, t, 128))
            for e in range(5):
                vr = WA if e % 2 == 0 else WB
                L.append(self.dma((S_MW, base + 16384 + (e//4)*4096), mk(f"buffer_load_dwordx4 v{vr}, {s(SRD_W,4)}, s{S_WO+e} offen offset:{(e%4)*1024} lds"), vr, t, 128))
            return L
        d0 = dma_list(0)
        for p in d0[:4]: self.emit(p)
        k(f"""s_cmp_lt_u32 s{S_W}, 2
        s_cselect_b32 s{SRD_W}, s{P0+6}, s{P0+8}
        s_cselect_b32 s{SRD_W+1}, s{P0+7}, s{P0+9}
        s_mov_b32 s{SRD_W+2}, 819200
        s_mov_b32 s{SRD_W+3}, 0x20000
        s_mul_i32 s{S_T+7}, s{S_J}, 80
        s_mul_i32 s{S_T+3}, s{S_T+4}, 40
        s_add_u32 s{S_T+2}, s{S_T+7}, s{S_T+3}
        s_mul_i32 s{S_WO}, s{S_T+2}, 1280
        s_add_u32 s{S_WO+1}, s{S_WO}, {8*1280 - 1024}
        s_add_u32 s{S_WO+2}, s{S_WO}, {16*1280 - 2048}
        s_add_u32 s{S_WO+3}, s{S_WO}, {24*1280 - 3072}
        s_add_u32 s{S_WO+4}, s{S_WO}, {32*1280}
        s_mul_i32 s{S_MW}, s{S_W}, 5120""")
        self.emit(d0[4])
        VLR, VLI, VDT, ZR, ZI, VT, VP, TA, TB_ = 218, 219, 220, 221, 222, 223, 224, 225, 226
        self.emit(self.div20(VT, VP, 0))
        k(f"""s_mul_i32 s{S_T+1}, s{S_W}, 20
        v_add_u32 v{VP}, s{S_T+1}, v{VP}
        v_add_lshl_u32 v{VDT}, v{VP}, s{S_T+7}, 1""")
        def vec():
            k(f"global_load_ushort v{VLR}, v{VDT}, {ptr(1)}\nglobal_load_ushort v{VLI}, v{VDT}, {ptr(2)}")
            self.vec_tok = k(f"global_load_ushort v{VDT}, v{VDT}, {ptr(7)}")
        d1 = dma_list(1)
        R0, A0, T0 = 192, 212, 227
        rs = self.rowstat_loads(SRD_T1, S_RSROW, 15, R0)
        def setup(k):
            k(f"""s_cmp_lt_u32 s{S_I}, 8
            s_cselect_b32 s{SRD_T1}, s{P0+6}, s{P0+8}
            s_cselect_b32 s{SRD_T1+1}, s{P0+7}, s{P0+9}
            s_mov_b32 s{SRD_T1+2}, 819200
            s_mov_b32 s{SRD_T1+3}, 0x20000
            s_mul_i32 s{S_T+4}, s{S_W}, 3
            s_and_b32 s{S_T+2}, s{S_I}, 7
            s_mul_i32 s{S_T+2}, s{S_T+2}, 10
            s_add_u32 s{S_T+2}, s{S_T+2}, s{S_T+7}
            s_add_u32 s{S_RSROW}, s{S_T+2}, s{S_T+4}     ; rows 80j + 10(i%8) + 3w + ..
            s_mul_i32 s{S_T+3}, s{S_J}, 160
            s_mul_i32 s{S_T+6}, s{S_I}, 10
            s_add_u32 s{S_T+3}, s{S_T+3}, s{S_T+6}
            s_add_u32 s{S_T+3}, s{S_T+3}, s{S_T+4}
            s_lshl_b32 s{S_T+3}, s{S_T+3}, 4
            s_add_u32 s{S_RSDST}, s{S_T+3}, {WS_WSG}
            s_cmp_eq_u32 s{S_W}, 3
            s_cselect_b32 s{S_T+1}, 0, 2""")

            self.rowstat_setup(S_RSROW, S_T+1, 15, 14)

            self.unit_decode(400, S_FB)
            k(f"""s_mul_i32 s{S_T+1}, s{S_T+2}, {16*1280}
            s_lshl_b32 s{S_T+3}, s{S_T}, 7
            s_add_u32 s{SW0}, s{S_T+1}, s{S_T+3}
            s_add_u32 s{SW0+1}, s{SW0}, {8*1280 - 1024}
            s_mul_i32 s{S_T+3}, s{S_T+2}, 40
            s_lshl_b32 s{S_T+4}, s{S_T}, 2
            s_add_u32 s{S_T+3}, s{S_T+3}, s{S_T+4}
            s_lshl_b32 s{S_T+3}, s{S_T+3}, 10
            s_add_u32 s{D2}, s{S_T+3}, {WS_B2S[0]}
            s_lshl_b32 s{S_FB}, s{S_FB}, 6
            s_add_u32 s{S_FB}, s{S_FB}, {WS_FB}
            s_mul_i32 s{S_GW}, s{S_J}, 2560
            s_mul_i32 s{S_T}, s{S_W}, 640
            s_add_u32 s{S_GW}, s{S_GW}, s{S_T}
            s_add_u32 s{S_GW}, s{S_GW}, {WS_WSG}
            s_lshl_b32 s{S_GT}, s{S_I}, 11
            s_lshl_b32 s{S_T}, s{S_W}, 9
            s_add_u32 s{S_GT}, s{S_GT}, s{S_T}
            s_add_u32 s{S_GT}, s{S_GT}, {WS_STG}
            v_and_b32 v11, 15, v0
            v_lshrrev_b32 v12, 4, v0
            v_lshrrev_b32 v13, 1, v11
            v_xor_b32 v13, v13, v12
            v_lshlrev_b32 v13, 4, v13
            v_lshl_add_u32 v13, v11, 7, v13
            v_add_u32 v5, {STG0}, v13
            v_add_u32 v5, s{S_MX}, v5
            v_xor_b32 v6, 64, v5
            v_add_u32 v7, {STG0+16384}, v13
            v_xor_b32 v8, 64, v7
            v_add_u32 v9, {2*STGS}, v5
            v_add_u32 v10, {2*STGS}, v6
            v_add_u32 v250, {2*STGS}, v7
            v_add_u32 v251, {2*STGS}, v8
            v_lshlrev_b32 v13, 7, v11
            v_lshrrev_b32 v12, 5, v0
            v_lshl_add_u32 v13, v12, 11, v13
            v_bfe_u32 v12, v0, 4, 1
            v_lshl_add_u32 v13, v12, 4, v13
            v_add_u32 v13, s{S_MX}, v13
            v_mul_u32_u24 v11, {RS}, v11             ; table row of this lane's column
            v_mul_u32_u24 v{TA}, {RS}, v{VP}
            v_and_b32 v216, 31, v0
            v_lshlrev_b32 v216, 4, v216
            v_min_u32 v217, 39, v0
            v_lshlrev_b32 v217, 4, v217""")
            self.b2v = self.b2_setup(0)
            self.srd(SRD_T2, 5, 819200)
            self.srd(SRD_OUT, 6, 819200)
            self.ssm_stash(k, VT, VP)
        pre_mem = [(lambda p=p: self.emit(p)) for p in d0[5:]] + [vec] + [(lambda p=p: self.emit(p)) for p in d1[:7]]
        su = self.capture(setup)
        nA = [i for i, x in enumerate(su) if x.startswith("v_and_b32 v19")][0]
        self.sprinkle(su[:nA], pre_mem[:int(self.P('npre', 7))])
        self.sprinkle(su[nA:], pre_mem[int(self.P('npre', 7)):] + [(lambda p=p: self.emit(p)) for p in d1[7:]])
        b2v = self.b2v; vec_tok = self.vec_tok
        tk = {}
        swq = []
        for e in range(4):
            def f(e=e): tk['d2'] = k(f"buffer_load_dwordx4 v{PV}, {s(SRD_T2 if e < 2 else SRD_OUT,4)}, s{SW0+e%2} offen offset:{(e%2)*1024} lds")
            swq.append(self.dma((S_MX, (e//2)*2048), f))
        self.make_tag()
        k(f"""v_and_b32 v16, 1, v0
        v_lshlrev_b32 v16, 4, v16
        v_lshrrev_b32_e64 v16, v16, s{S_PAT}
        v_and_b32 v16, 1, v16
        v_mul_u32_u24 v16, 0x10001, v16
        v_accvgpr_write_b32 a{ST['PAT']}, v16""")
        RXA = [[5, 6], [9, 10]]; RWA = [[7, 8], [250, 251]]
        rtok = {}
        def mkreads(n):
            st = FR[n % 2]; ks = n % 2; sl = (n//2) % 4; o = (sl % 2)*STGS
            R = [f"ds_read_b128 {v(st+4*a_,4)}, v{RXA[sl//2][ks]} offset:{o+a_*2048}" for a_ in range(2)]
            R += [f"ds_read_b128 {v(st+8+4*tt,4)}, v{RWA[sl//2][ks]} offset:{o+tt*2048}" for tt in range(10)]
            L = []
            for i, r in enumerate(R):
                def f(i=i, r=r): rtok[n, i] = k(r)
                L.append(f)
            return L
        self.fine3()
        k.wait_vm(stage_tok[0])
        self.fine3()
        k("s_barrier")
        self.fine3()
        self.stamp(1)
        k.label("L_ssm_code")
        self.emit(mkreads(0))
        LAM, LAM2, LAM4, WSUM = C5(192), C5(202), C5(212), C5(222)
        AT, BT, TG = 232, 240, 192
        L_AB = 14720
        mq = []
        def q_stage(t):
            for p_, l_ in dma_list(t): mq.append([max(2*(t-3), 0), 1, p_, l_])
        def sw_store(cc):
            def f():
                k.wait_lg(tk['r2'])
                tk['s2'] = k(f"buffer_store_dwordx4 {a(220+4*cc,4)}, v{LV}, {WS4}, s{D2} offen offset:{1024*cc} sc1")
            return f
        def gl1(): k(f"buffer_load_dwordx4 {v(TG,4)}, v216, {WS4}, s{S_GT} offen sc1")
        def gl2(): tk['gr'] = k(f"buffer_load_dwordx2 {v(TG+4,2)}, v217, {WS4}, s{S_GW} offen sc1")
        NSW, NFLAG, NGL, NGC, NPOLL, NCHK = [int(self.P(a_, b_)) for a_, b_ in (('snsw', 3), ('snfl', 9), ('sngl', 13), ('sngc', 16), ('snpo', 14), ('snck', 17))]
        prs, psw, pst = int(self.P('prs', 1)), int(self.P('psw', 2)), int(self.P('pst', 4))
        for t in range(1, 10):
            if t > 1: q_stage(t)
            if t == prs: mq += [[0, 1, None, f] for f in rs]
            if t == psw: mq += [[0, 1, p_, l_] for p_, l_ in swq]
            if t == pst: mq += [[NSW+1, 2, None, sw_store(cc)] for cc in range(4)]
        late = {NGL: [[NGL, 1, None, gl1], [NGL, 1, None, gl2]]}
        late[NPOLL] = late.get(NPOLL, []) + [[NPOLL, 0.5, None, self.b2_poll]]
        def swr():
            k.wait_vm(tk['d2'])
            for ss in range(4): tk['r2'] = k(f"ds_read_b128 {a(220+4*ss,4)}, v13 offset:{32*ss}")
        fq = [lambda: k.wait_vm(vec_tok)]
        fq += [x.strip() for x in f"""v_lshlrev_b32 v{VDT}, 16, v{VDT}
        v_mul_f32 v{VDT}, {fbits(LOG2E)}, v{VDT}
        v_exp_f32 v{VDT}, v{VDT}
        v_lshlrev_b32 v{VLR}, 16, v{VLR}
        v_lshlrev_b32 v{VLI}, 16, v{VLI}
        v_cvt_pk_bf16_f32 v{VDT}, v{VDT}, v{VDT}
        v_and_b32 v{VDT}, 0xffff0000, v{VDT}
        v_mul_f32 v{ZR}, v{VLR}, v{VDT}
        v_mul_f32 v{ZI}, v{VLI}, v{VDT}
        v_mul_f32 v{ZR}, {fbits(LOG2E)}, v{ZR}
        v_mul_f32 v{ZI}, 0.15915494, v{ZI}
        v_accvgpr_write_b32 a250, v{ZR}
        v_accvgpr_write_b32 a251, v{ZI}
        v_accvgpr_write_b32 a252, v{VLR}
        v_accvgpr_write_b32 a253, v{VLI}
        v_mov_b32 v232, {fbits(8.0)}""".split("\n")]
        LM = 240
        P = [self.cpow(LM, LM+1, "1.0", ZR, ZI, 233), self.cpow(248, 249, "v232", ZR, ZI, 235)]
        fq += [x[i] for i in range(8) for x in P]
        fq += [x.strip() for x in f"""v_accvgpr_write_b32 a254, v{LM}
        v_accvgpr_write_b32 a255, v{LM+1}
        v_mul_f32 v{LM+2}, v{LM}, v{LM}
        v_mul_f32 v{LM+3}, v{LM}, v{LM+1}
        v_fma_f32 v{LM+2}, -v{LM+1}, v{LM+1}, v{LM+2}
        v_add_f32 v{LM+3}, v{LM+3}, v{LM+3}
        v_mul_f32 v{LM+4}, v{LM+2}, v{LM+2}
        v_mul_f32 v{LM+5}, v{LM+2}, v{LM+3}
        v_fma_f32 v{LM+4}, -v{LM+3}, v{LM+3}, v{LM+4}
        v_add_f32 v{LM+5}, v{LM+5}, v{LM+5}""".split("\n")]
        rsf = self.rowstat_fill(R0, A0, T0, 14, S_RSDST, sq=False)
        fq += [('at', 3), ('mark', 'rs')]
        NRB = int(self.P('snrb', 3))
        fq += b2v + [('mark', 'gaddr')]
        fq += [('at', (NSW | 1) + 1 + (NSW & 1)*2)] + [f"ds_write_b64 v{TA}, {v(LM+2*q,2)} offset:{144+8*q}" for q in range(3)]
        fq += [('mark', 'table')]
        def flg():
            k.wait_vm(tk['s2']); self.set_flag(S_FB, 15)
        flags = {NFLAG: flg, NSW: swr}
        pre_st = [x.strip() for x in f"""s_lshl_b32 s{S_T}, s{S_W}, 7
        v_lshrrev_b32 v12, 2, v216
        v_add_u32 v12, s{S_T}, v12
        v_add_u32 v12, {L_AB}, v12
        v_lshrrev_b32 v14, 4, v0
        v_lshl_add_u32 v239, v14, 5, s{S_T}
        s_and_b32 s{S_T}, s{S_W}, 1
        s_mul_i32 s{S_T}, s{S_T}, 40
        v_lshrrev_b32 v13, 4, v217
        v_add_u32 v13, s{S_T}, v13
        v_mul_u32_u24 v13, {RS}, v13
        s_lshr_b32 s{S_T}, s{S_W}, 1
        s_lshl_b32 s{S_T}, s{S_T}, 2
        v_add_u32 v13, s{S_T}, v13
        s_mov_b32 s{S_T}, {fbits(1.0/640)}""".split("\n")]
        stq = [x.strip() for x in f"""ds_write_b32 v13, v{TG+4} offset:176
        v_mul_f32 v{TG}, s{S_T}, v{TG}
        v_mul_f32 v15, v{TG}, v{TG}
        v_fma_f32 v15, v{TG+2}, s{S_T}, -v15
        v_max_f32 v15, 0, v15
        v_add_f32 v15, {fbits(EPS)}, v15
        v_rsq_f32 v15, v15
        v_mul_f32_e64 v{TG}, v{TG}, -v15
        ds_write2st64_b32 v12, v15, v{TG} offset0:0 offset1:2""".split("\n")]
        fq += pre_st + [('at', 14)] + [f"ds_read_b64 {v(LAM2.r(b),2)}, v11 offset:{16*b*RS+152}" for b in range(5)]
        fq += [('at', NGC)] + stq + [('mark', 'stats')]
        fq += [f"ds_read_b64 {v(LAM4.r(b),2)}, v11 offset:{16*b*RS+160}" for b in range(5)]
        NRD = int(self.P('snrd', 18))
        fq += [('at', NRD)] + [f"ds_read_b64 {v(LAM.r(b),2)}, v11 offset:{16*b*RS+144}" for b in range(5)]
        fq += [f"ds_read_b128 {v(AT+4*q,4)}, v239 offset:{L_AB+16*(q%2)+512*(q//2)}" for q in (3, 2, 0, 1)]
        fq += [f"ds_read_b64 {v(WSUM.r(b),2)}, v11 offset:{16*b*RS+176}" for b in range(5)]
        credit = 0.0; b2on = False
        for n in range(20):
            st = FR[n % 2]
            k.c(f"---- ssm k-step {n}")
            self.fine(16 + n)
            if n == NGC:
                k.wait_vm(tk['gr'])
                def check():
                    k(f"""v_xor_b32 v15, s{S_TAG}, v{TG+1}
                    v_bitop3_b32 v15, s{S_TAG2}, v{TG+3}, v15 bitop3:0xbe
                    v_bitop3_b32 v15, s{S_TAG}, v{TG+5}, v15 bitop3:0xbe
                    v_cmp_ne_u32 vcc, 0, v15""")
                def rl():
                    gl1(); gl2(); k("s_waitcnt vmcnt(0)")
                self.verify(check, rl, "pg")
            if n == NCHK:
                self.b2_check(); b2on = True
            if n == NGL: assert self.marks['rs'] < n
            if n == NPOLL: assert self.marks['gaddr'] < n
            mq[0:0] = late.get(n, [])
            mem = []
            mmax = int(self.P('smax', 9)) if n < self.P('sfast', 2) else int(self.P('scap', 5))
            while len(mem) < mmax:
                if mq and mq[0][0] <= n: it_ = mq.pop(0)
                elif b2on and self.b2q and len(mem) < self.P('sb2', 5): it_ = [n, 1, None, self.b2q.pop(0)]
                else: break
                mem.append(it_)
            rd = mkreads(n+1) if n + 1 < 20 else []
            slots = [[] for _ in range(20)]
            if n % 2 == 0:
                rslots = [0, 1, 3, 4, 6, 7, 9, 10, 12, 13, 15, 16]; pref = [2, 8, 14, 19, 5, 11, 17, 18, 0, 6, 12, 3, 9, 15, 1, 4]
            else:
                rslots = [4, 5, 6, 8, 9, 10, 12, 13, 14, 16, 17, 18]; pref = [0, 7, 15, 2, 11, 19, 1, 5, 9, 13, 17, 4, 8, 12, 16, 6]
                if n + 1 < 20:
                    T_ = (n + 1)//2
                    def f(T_=T_):
                        assert stage_cnt[T_] == 9
                        if 2*T_ - 1 == NRB: self.rowstat_batch(R0, A0, 14, S_RSDST, sq=False)
                        k.wait_both(stage_tok[T_], k.lg_issued)
                        k("s_barrier")
                    slots[3] += [f]
            mslots = sorted(pref[:len(mem)])
            cap = [2]*20
            for sl, r in zip(rslots, rd): slots[sl].append(r); cap[sl] = 1
            for sl, it_ in zip(mslots, mem):
                slots[sl] = [it_[3]] + slots[sl]; cap[sl] -= 1
            if n % 2 == 1 and n + 1 < 20: cap[3] = 0
            i = 0
            for tt in range(10):
                for a_ in range(2):
                    if i in mslots[:len(mem)] and i == 0 and mem[0][2]: mem[0][2]()
                    grp = {0: 1, 2: 9} if n % 2 == 1 else {0: tt, 1: tt, 2: tt, 3: tt, 4: tt, 5: tt, 6: tt, 7: tt, 8: tt, 9: tt} if n == 0 else {0: 3, 4: 6, 7: 9}
                    if a_ == 0 and tt in grp: k.wait_lg(rtok[n, 2+grp[tt]])
                    assert k.lg_done >= rtok[n, 2+tt]
                    c_ = "0" if n == 0 else v(acc(a_, tt), 4)
                    k(f"v_mfma_f32_16x16x32_bf16 {v(acc(a_,tt),4)}, {v(st+4*a_,4)}, {v(st+8+4*tt,4)}, {c_}")
                    self.emit(slots[i])
                    c0 = cap[i]
                    if i + 1 in mslots[:len(mem)]:
                        n0 = len(k.ins); pre_ = mem[mslots.index(i+1)][2]
                        if pre_: pre_()
                        c0 -= len(k.ins) - n0
                    if c0 > 0 and (cap[i] == 2 or i % int(self.P('sden', 1)) == 0): self.emit(self.take_fill(fq, n, c0))
                    if i == 19 and n in flags: flags[n]()
                    i += 1
        self.emit([x for x in fq if not isinstance(x, tuple)])
        assert not mq and self.marks['table'] <= 12 and self.marks['stats'] <= NRD - 2 + (NRD & 1), self.marks
        self.info = f"ssm b2 left {len(self.b2q)} marks {self.marks} tail {len(fq)}"
        k.c('loop end')
        self.stamp(2)
        if self.early_stop("loop"): return
        self.ssm_epilogue(ACC, AT, BT, LAM, LAM2, LAM4, WSUM, L_AB)

    def ssm_stash(self, k, VT, VP):
        RS = self.TB_RS; L_C = 102400
        t0, t1, t2, col, g, seg = 16, 17, 18, 19, 20, 21
        put = lambda n, r: k(f"v_accvgpr_write_b32 a{n}, v{r}")
        k(f"""v_and_b32 v{col}, 15, v0
        v_lshrrev_b32 v{g}, 4, v0
        s_lshl_b32 s{S_T}, s{S_W}, 2
        v_add_u32 v{seg}, s{S_T}, v{g}
        v_mul_u32_u24 v{t0}, 768, v{seg}
        v_mul_u32_u24 v{t1}, 48, v{col}
        v_add_u32 v{t0}, v{t0}, v{t1}""")
        put(ST['E'], t0)
        k(f"""v_and_b32 v{t0}, 15, v{VP}
        v_lshrrev_b32 v{t2}, 4, v{VP}
        v_mul_u32_u24 v{t1}, 48, v{t0}
        v_lshl_add_u32 v{t1}, v{t2}, 3, v{t1}""")
        put(ST['CH'], t1)
        k(f"""v_min_u32 v{VT}, 2, v{VT}
        v_mul_u32_u24 v{t0}, 160, v{t0}
        v_lshlrev_b32 v{t2}, 5, v{t2}
        v_lshl_add_u32 v{t2}, v{VT}, 3, v{t2}
        v_add3_u32 v{t0}, v{t0}, v{t2}, 0
        v_add_u32 v{t0}, {L_C}, v{t0}""")
        put(ST['CW'], t0)
        k(f"v_lshlrev_b32 v{t0}, 4, v{VP}"); put(ST['PUB'], t0)
        k(f"v_mul_u32_u24 v{t2}, 5, v{VT}\nv_mul_u32_u24 v{t1}, 1280, v{t2}\nv_add_u32 v{t0}, v{t0}, v{t1}"); put(ST['GA'], t0)
        k(f"""v_add_u32 v{t0}, 5, v{t2}
        v_min_u32 v{t0}, s{S_I}, v{t0}
        v_sub_u32 v{t0}, s{S_I}, v{t0}
        v_lshlrev_b32 v{t0}, 7, v{t0}
        v_cvt_f32_u32 v{t0}, v{t0}""")
        put(ST['QE'], t0)
        for q in range(5): k(f"v_add_u32 v{t0}, {q}, v{t2}\nv_cmp_gt_u32 {s(S_MK+2*q,2)}, s{S_I}, v{t0}")
        k(f"v_mul_u32_u24 v{t0}, {RS}, v{VP}"); put(ST['TB'], t0)
        k(f"v_mul_u32_u24 v{t0}, {RS}, v{col}\nv_lshl_add_u32 v{t0}, v{seg}, 3, v{t0}"); put(ST['VA'], t0)
        k(f"v_mul_u32_u24 v{t0}, 160, v{col}\nv_add_u32 v{t0}, {L_C}, v{t0}"); put(ST['CR'], t0)
        k(f"""s_mul_i32 s{S_T}, s{S_W}, {RED_W}
        s_add_u32 s{S_T}, s{S_T}, {LDS_RED}
        v_mul_u32_u24 v{t0}, 80, v{col}
        v_lshl_add_u32 v{t0}, v{g}, 4, v{t0}
        v_add_u32 v{t0}, s{S_T}, v{t0}""")
        put(ST['TW'], t0)
        k(f"""v_lshrrev_b32 v{t0}, 2, v{col}
        v_lshl_add_u32 v{t0}, v{g}, 3, v{t0}
        v_mul_u32_u24 v{t0}, 80, v{t0}
        v_and_b32 v{t1}, 3, v{col}
        v_lshl_add_u32 v{t0}, v{t1}, 3, v{t0}
        v_add_u32 v{t0}, s{S_T}, v{t0}""")
        put(ST['TR'], t0)
        k(f"""v_mul_u32_u24 v{t0}, {RED_RS}, v{col}
        v_lshl_add_u32 v{t0}, v{g}, 4, v{t0}
        v_add_u32 v{t0}, s{S_T}, v{t0}""")
        put(ST['RW'], t0)
        for it in range(5):
            k(f"""v_add_u32 v{t0}, {64*it}, v0
            v_mul_u32_u24 v{t1}, 6554, v{t0}
            v_lshrrev_b32 v{t1}, 16, v{t1}
            v_mul_u32_u24 v{t2}, 10, v{t1}
            v_sub_u32 v{t2}, v{t0}, v{t2}
            v_lshrrev_b32 v{seg}, 4, v{t1}
            v_mul_u32_u24 v{seg}, 48, v{seg}
            v_add_u32 v{t1}, v{t1}, v{seg}
            v_mul_u32_u24 v{t1}, 1280, v{t1}
            v_lshl_add_u32 v{t1}, v{t2}, 4, v{t1}""")
            put(ST['RD']+it, t1)
            for x in self.div20(t1, t2, t0): k(x)
            put(ST['ROW']+it, t1); put(ST['C4']+it, t2)
        k(f"""s_mul_i32 s{S_AG4}, s{S_J}, {16*1280}
        s_add_u32 s{S_AG4}, s{S_AG4}, {WS_AGG}
        s_mul_i32 s{S_AG1}, s{S_I}, 1280
        s_add_u32 s{S_AG1}, s{S_AG1}, s{S_AG4}
        s_lshl_b32 s{S_T}, s{S_I}, 3
        s_lshl_b32 s{S_T+1}, s{S_W}, 1
        s_add_u32 s{S_T}, s{S_T}, s{S_T+1}
        s_mul_i32 s{S_T}, s{S_T}, 40
        s_mul_i32 s{S_T+1}, s{S_J}, 5
        s_add_u32 s{S_T}, s{S_T}, s{S_T+1}
        s_lshl_b32 s{S_T}, s{S_T}, 10
        s_add_u32 s{S_A2B}, s{S_T}, {WS_A2[0]}
        s_lshl_b32 s{S_RX}, s{S_I}, 7
        s_lshl_b32 s{S_T}, s{S_W}, 4
        s_add_u32 s{S_RX}, s{S_RX}, s{S_T}
        s_mul_i32 s{S_RX}, s{S_RX}, 1280
        s_mul_i32 s{S_RJ}, s{S_J}, 160
        s_add_u32 s{S_RX}, s{S_RX}, s{S_RJ}
        s_mul_i32 s{S_RL}, s{S_W}, 5120
        s_add_u32 s{S_RL}, s{S_RL}, {L_R}""")

    def ssm_epilogue(self, ACC, AT, BT, LAM, LAM2, LAM4, WSUM, L_AB):
        k = self.k; RS = self.TB_RS; LV = self.LV
        acc = lambda a_, tt: ACC + (a_*10 + tt)*4
        tok = lambda r, tt: acc(r//4, tt) + r % 4
        L_E, L_C = 16384, 102400
        TM, SEG = 146, 15
        def bc(r): return v(r & ~1, 2), r & 1
        k.c("================ SSM epilogue")
        self.nf2 = 0; self.fine2()
        k(f"""v_accvgpr_read_b32 v13, a{ST['E']}
        v_accvgpr_read_b32 v10, a{ST['CH']}
        v_accvgpr_read_b32 v6, a{ST['PUB']}
        v_mov_b32 v1, s{S_TAG}
        s_waitcnt lgkmcnt(0)""")
        sec = []
        for tt in list(range(10)):
            ws = WSUM.r(tt % 5); hi = tt // 5
            for a_ in range(2):
                for h in range(2):
                    t_ = TM + 2*(a_*2 + h) + 8*(tt % 2)
                    sec.append(f"v_pk_mul_f32 {v(t_,2)}, {v(BT+4*a_+2*h,2)}, {v(ws,2)} op_sel:[0,{hi}] op_sel_hi:[1,{hi}]")
            for a_ in range(2):
                for h in range(2):
                    d = acc(a_, tt) + 2*h; t_ = TM + 2*(a_*2 + h) + 8*(tt % 2)
                    sec.append(f"v_pk_fma_f32 {v(d,2)}, {v(AT+4*a_+2*h,2)}, {v(d,2)}, {v(t_,2)}")
        V1 = 96; EE = C5(136)
        def pkc(dr, di, ar, ai, cr_, ci_, lr, li):
            (pr, sr), (pi, si) = bc(lr), bc(li)
            return [f"v_pk_fma_f32 {v(dr,2)}, {v(ar,2)}, {pr}, {v(cr_,2)} op_sel:[0,{sr},0] op_sel_hi:[1,{sr},1]",
                    f"v_pk_fma_f32 {v(di,2)}, {v(ai,2)}, {pr}, {v(ci_,2)} op_sel:[0,{sr},0] op_sel_hi:[1,{sr},1]",
                    f"v_pk_fma_f32 {v(dr,2)}, {v(ai,2)}, {pi}, {v(dr,2)} op_sel:[0,{si},0] op_sel_hi:[1,{si},1] neg_lo:[1,0,0] neg_hi:[1,0,0]",
                    f"v_pk_fma_f32 {v(di,2)}, {v(ar,2)}, {pi}, {v(di,2)} op_sel:[0,{si},0] op_sel_hi:[1,{si},1]"]
        LL = [pkc(V1+8*b+2*h, V1+8*b+4+2*h, acc(0,b)+2*h, acc(0,5+b)+2*h, acc(1,b)+2*h, acc(1,5+b)+2*h, LAM4.r(b), LAM4.i(b))
              for b in range(5) for h in range(2)]
        sec += [x[i] for i in range(4) for x in LL]
        LL = [pkc(V1+8*b+2, V1+8*b+6, V1+8*b, V1+8*b+4, V1+8*b+2, V1+8*b+6, LAM2.r(b), LAM2.i(b)) for b in range(5)]
        sec += [x[i] for i in range(4) for x in LL]
        sec += self.cmul5(EE, LAM, C5(V1+2, V1+6, 8), C5(V1+3, V1+7, 8))
        self.sprinkle(sec, self.b2_take(int(self.P('e1', 10))))
        k(f"""ds_write_b128 v13, {v(136,4)} offset:{L_E}
        ds_write_b128 v13, {v(140,4)} offset:{L_E+16}
        ds_write_b64 v13, {v(144,2)} offset:{L_E+32}
        v_mov_b32 v129, s{S_TAG}
        v_mov_b32 v131, s{S_TAG2}
        s_waitcnt lgkmcnt(0)
        s_barrier""")
        self.fine2()
        CH = 96; L8R, L8I = 248, 249
        ct = [k(f"ds_read_b64 {v(CH+2*q,2)}, v10 offset:{L_E+768*q}") for q in range(16)]
        for q in range(1, 16):
            k.wait_lg(ct[q])
            er, ei, pr, pi = CH+2*q, CH+2*q+1, CH+2*q-2, CH+2*q-1
            if q < 15:
                k(f"v_fmac_f32 v{er}, v{L8R}, v{pr}\nv_fmac_f32 v{ei}, v{L8R}, v{pi}\nv_fma_f32 v{er}, -v{L8I}, v{pi}, v{er}\nv_fmac_f32 v{ei}, v{L8I}, v{pr}")
            else:
                k(f"v_fmac_f32 v{er}, v{L8R}, v{pr}\nv_fmac_f32 v{ei}, v{L8R}, v{pi}\nv_fma_f32 v128, -v{L8I}, v{pi}, v{er}\nv_fma_f32 v130, v{L8I}, v{pr}, v{ei}")
        k(f"""s_mov_b64 exec, 0xfffff
        buffer_store_dwordx4 v[128:131], v6, {WS4}, s{S_AG1} offen sc1
        s_mov_b64 exec, -1""")
        self.stamp(3); self.fine2()
        KK, CS, VV, DD = C5(202), C5(136), C5(146), C5(156, 161)
        work = [f"ds_write_b64 v10, {v(CH+2*q,2)} offset:{L_E+768*q}" for q in range(1, 15)]
        KB = 166
        work += [x.strip() for x in f"""v_accvgpr_read_b32 v132, a252
        v_accvgpr_read_b32 v133, a253
        v_accvgpr_read_b32 v134, a254
        v_accvgpr_read_b32 v135, a255
        v_accvgpr_read_b32 v5, a{ST['TB']}
        v_mul_f32 v174, v132, v132
        v_fma_f32 v174, v133, v133, v174
        v_rcp_f32 v174, v174
        v_add_f32 v134, -1.0, v134
        v_mul_f32 v{KB}, v134, v132
        v_mul_f32 v{KB+1}, v135, v132
        v_add_f32 v174, v174, v174
        v_fma_f32 v{KB}, v135, v133, v{KB}
        v_fma_f32 v{KB+1}, -v134, v133, v{KB+1}
        v_mul_f32 v{KB}, v{KB}, v174
        v_mul_f32 v{KB+1}, v{KB+1}, v174""".split("\n")]
        for q in range(16):
            c_ = KB + 2*(q % 4); n_ = KB + 2*((q+1) % 4)
            work += [f"ds_write_b64 v5, {v(c_,2)} offset:{8*q}"]
            if q < 15: work += [f"v_mul_f32 v{n_}, v{L8R}, v{c_}", f"v_mul_f32 v{n_+1}, v{L8R}, v{c_+1}",
                                f"v_fma_f32 v{n_}, -v{L8I}, v{c_+1}, v{n_}", f"v_fmac_f32 v{n_+1}, v{L8I}, v{c_}"]
        GB = 96
        BZR, BZI, BLR, BLI, BQR, BQI, BT_ = 116, 117, 118, 119, 120, 121, 122
        MK = S_MK
        work += [f"v_accvgpr_read_b32 v6, a{ST['GA']}", f"s_add_u32 s{S_T+5}, s{S_AG4}, 3840", f"s_mov_b32 s{S_T+4}, s{S_AG4}", f"v_accvgpr_read_b32 v5, a{ST['VA']}",
                 "s_waitcnt lgkmcnt(0)", "s_barrier"]
        work += [f"ds_read_b64 {v(KK.r(b),2)}, v11 offset:{16*b*RS}" for b in range(5)]
        work += [f"ds_read_b128 {v(136,4)}, v13 offset:{L_E-768}", f"ds_read_b128 {v(140,4)}, v13 offset:{L_E-768+16}", f"ds_read_b64 {v(144,2)}, v13 offset:{L_E-768+32}"]
        work += [f"ds_read_b64 {v(VV.r(b),2)}, v5 offset:{16*b*RS}" for b in range(5)]
        work += [f"v_accvgpr_read_b32 v{BZR}, a250", f"v_accvgpr_read_b32 v{BZI}, a251", f"v_mov_b32 v123, {fbits(128.0)}",
                 f"v_accvgpr_read_b32 v10, a{ST['QE']}"]
        work += [y for x in zip(self.cpow(BQR, BQI, "v10", BZR, BZI, BT_), self.cpow(BLR, BLI, "v123", BZR, BZI, 124)) for y in x]
        ku = []
        for b in range(5):
            (kr, sr), (ki, si) = bc(KK.r(b)), bc(KK.i(b))
            for h in range(4):
                ur = tok(2*h, b); ui = tok(2*h, 5+b); t_ = 166 + 4*(h % 2)
                ku += [f"v_pk_mul_f32 {v(t_,2)}, {v(ur,2)}, {kr} op_sel:[0,{sr}] op_sel_hi:[1,{sr}]",
                       f"v_pk_mul_f32 {v(t_+2,2)}, {v(ur,2)}, {ki} op_sel:[0,{si}] op_sel_hi:[1,{si}]",
                       f"v_pk_fma_f32 {v(ur,2)}, {v(ui,2)}, {ki}, {v(t_,2)} op_sel:[0,{si},0] op_sel_hi:[1,{si},1] neg_lo:[1,0,0] neg_hi:[1,0,0]",
                       f"v_pk_fma_f32 {v(ui,2)}, {v(ui,2)}, {kr}, {v(t_+2,2)} op_sel:[0,{sr},0] op_sel_hi:[1,{sr},1]"]
        nku = int(self.P('nku', 40))
        work += ["s_waitcnt lgkmcnt(8)"] + ku[:nku]
        self.sprinkle(work, self.b2_take(int(self.P('e2', 6))))
        self.fine2()
        def gloads():
            for q in range(5):
                t = k(f"buffer_load_dwordx4 {v(GB+4*q,4)}, v6, {WS4}, s{S_T+4+(q//3)} offen offset:{1280*(q%3)} sc1")
            return t
        gt = {}
        def gl_(): gt['t'] = gloads()
        w2 = ku[nku:] + ["s_waitcnt lgkmcnt(0)", f"s_cmp_eq_u32 s{S_W}, 0\ns_cselect_b64 exec, 0xffff, 0"]
        w2 += [f"v_mov_b32 v{136+q}, 0" for q in range(10)] + ["s_mov_b64 exec, -1"]
        w2 += self.cmul5(DD, KK, CS)
        w2 += [f"v_accvgpr_read_b32 v5, a{ST['CW']}", f"v_accvgpr_read_b32 v12, a{ST['CR']}", f"v_accvgpr_read_b32 v13, a{ST['TW']}", f"v_accvgpr_read_b32 v4, a{ST['TR']}", f"v_accvgpr_read_b32 v3, a{ST['PAT']}",
               f"v_mov_b32 v{BZR}, 0", f"v_mov_b32 v{BZI}, 0",
               f"s_mov_b32 s{S_T+8}, s{S_A2B}", f"s_add_u32 s{S_T+9}, s{S_A2B}, 4096",
               f"s_add_u32 s{S_T+10}, s{S_A2B}, {40*1024}", f"s_add_u32 s{S_T+11}, s{S_A2B}, {40*1024+4096}"]
        rq = self.resid_loads()
        gpos = int(self.P('gpos', 0))
        if gpos == 0: gl_()
        self.sprinkle(w2, rq[:gpos] + ([gl_] if gpos else []) + rq[gpos:] + self.b2_take(int(self.P('e3', 8))))
        gtok = gt['t']
        self.stamp(4); self.fine2()
        k.wait_vm(gtok)
        def check():
            for q in range(5):
                k(f"v_xor_b32 v10, s{S_TAG}, v{GB+4*q+1}")
                k(f"v_bitop3_b32 v10, s{S_TAG2}, v{GB+4*q+3}, v10 bitop3:0xbe")
                k(f"v_cmp_ne_u32 {s(S_T+2,2)}, 0, v10")
                k(f"s_and_b64 {'vcc' if q == 0 else s(S_T+2,2)}, {s(S_T+2,2)}, {s(MK+2*q,2)}")
                if q: k(f"s_or_b64 vcc, vcc, {s(S_T+2,2)}")
        def reload():
            gloads(); k("s_waitcnt vmcnt(0)")
        self.verify(check, reload, "pc")
        self.stamp(5); self.fine2()
        for q in range(5):
            er, ei = GB+4*q, GB+4*q+2
            k(f"""s_mov_b64 exec, {s(MK+2*q,2)}
            v_fmac_f32 v{er}, v{BLR}, v{BZR}
            v_fmac_f32 v{ei}, v{BLR}, v{BZI}
            v_fmac_f32 v{ei}, v{BLI}, v{BZR}
            v_fma_f32 v{BZR}, -v{BLI}, v{BZI}, v{er}
            v_mov_b32 v{BZI}, v{ei}""")
        k(f"""s_mov_b64 exec, -1
        v_mul_f32 v126, v{BQR}, v{BZR}
        v_mul_f32 v127, v{BQR}, v{BZI}
        v_fma_f32 v126, -v{BQI}, v{BZI}, v126
        v_fmac_f32 v127, v{BQI}, v{BZR}
        ds_write_b64 v5, v[126:127]
        s_waitcnt lgkmcnt(0)
        s_barrier""")
        CB = 96
        ct = []
        for b in range(5):
            k(f"ds_read_b128 {v(CB+6*b,4)}, v12 offset:{32*b}")
            ct.append(k(f"ds_read_b64 {v(CB+6*b+4,2)}, v12 offset:{32*b+16}"))
        for b in range(5):
            k.wait_lg(ct[b])
            k(f"v_pk_add_f32 {v(CB+6*b,2)}, {v(CB+6*b,2)}, {v(CB+6*b+2,2)}")
        for b in range(5):
            k(f"v_pk_add_f32 {v(CB+6*b,2)}, {v(CB+6*b,2)}, {v(CB+6*b+4,2)}")
        self.sprinkle(self.cmul5(DD, VV, C5(CB, CB+1, 6), DD), self.b2_take(int(self.P('e4', 2))))
        self.fine2()
        PK = 96
        frg = lambda b, tt2: (136 + 4*(2*b + tt2)) if 2*b + tt2 < 5 else (202 + 4*(2*b + tt2 - 5))
        wt = {}; rt = {}
        def scan(bs):
            L = []
            for r in range(8):
                pr = lambda b: DD.r(b) if r == 0 else tok(r-1, b)
                pi = lambda b: DD.i(b) if r == 0 else tok(r-1, 5+b)
                for b in bs: L += [f"v_fmac_f32 v{tok(r,b)}, v{LAM.r(b)}, v{pr(b)}", f"v_fmac_f32 v{tok(r,5+b)}, v{LAM.r(b)}, v{pi(b)}"]
                for b in bs: L += [f"v_fma_f32 v{tok(r,b)}, -v{LAM.i(b)}, v{pi(b)}, v{tok(r,b)}", f"v_fmac_f32 v{tok(r,5+b)}, v{LAM.i(b)}, v{pr(b)}"]
            for b in bs:
                for comp in range(2):
                    d = PK + 4*(2*b + comp); ng = "-" if comp else ""
                    L += [f"v_cvt_pk_bf16_f32 v{d+h}, {ng}v{tok(2*h,5*comp+b)}, {ng}v{tok(2*h+1,5*comp+b)}" for h in range(4)]
                    L += [f"v_and_or_b32 v{d+h}, v{d+h}, s{S_NM}, v3" for h in range(4)]
                    def f(b=b, d=d, comp=comp): wt[b] = k(f"ds_write_b128 v13, {v(d,4)} offset:{(32*b+16*comp)*80}")
                    L.append(f)
            return L
        def outq(bs):
            L = []
            for b in bs:
                def trr(b=b):
                    k.wait_lg(wt[b])
                    for tt2 in range(2):
                        d = frg(b, tt2)
                        k(f"ds_read_b64_tr_b16 {v(d,2)}, v4 offset:{(32*b)*80+32*tt2}")
                        rt[b, tt2] = k(f"ds_read_b64_tr_b16 {v(d+2,2)}, v4 offset:{(32*b+4)*80+32*tt2}")
                L.append(trr)
            for b in bs:
                for tt2 in range(2):
                    def sto(b=b, tt2=tt2):
                        k.wait_lg(rt[b, tt2])
                        so = S_T + 8 + 2*tt2 + (1 if b == 4 else 0)
                        self.last_st = k(f"buffer_store_dwordx4 {v(frg(b,tt2),4)}, v{LV}, {WS4}, s{so} offen offset:{1024*(b%4)} sc1")
                    L.append(sto)
            return L
        self.sprinkle(scan([0, 1]), self.b2_take(int(self.P('e5', 4))))
        self.sprinkle(scan([2, 3]), outq([0, 1]), lead=4)
        self.sprinkle(scan([4]), outq([2, 3]), lead=4)
        self.emit(outq([4]))
        self.stamp(6); self.fine2()
        self.p2_addr(0)
        self.free_big = [r for r in self.free_big if not (202 <= r < 222)] + [r for r in self.free_big if 202 <= r < 222]
        self.resid_compute(L_AB, [self.p2_aload]*int(self.P('na0', 12)))
        self.fine2()
        self.stamp(7)
        self.phase2(0)

    def resid_loads(self):
        k = self.k
        self.srd(SRD_T1, 8, 1280)
        self.srd(SRD_T2, 13, 1280)
        L = []
        for it in range(5):
            def f(it=it):
                k(f"""v_accvgpr_read_b32 v1, a{ST['RD']+it}
                s_add_u32 m0, s{S_RL}, {1024*it}
                buffer_load_dwordx4 v1, {s(SRD_X,4)}, s{S_RX} offen lds""")
            L.append(f)
        def g():
            k(f"""v_lshlrev_b32 v1, 2, v0
            s_add_u32 m0, s{S_RL}, 20480
            buffer_load_dword v1, {s(SRD_T1,4)}, s{S_RJ} offen lds
            s_add_u32 m0, s{S_RL}, {20480+256}""")
            self.rl_tok = k(f"buffer_load_dword v1, {s(SRD_T2,4)}, s{S_RJ} offen lds")
        return L + [g]
    def resid_compute(self, L_AB, memq):
        k = self.k
        ST, XB, DB, BB, T = 16, 36, 56, 66, 166
        k.wait_vm(self.rl_tok)
        self.STROW, self.STC4 = globals()['ST']['ROW'], globals()['ST']['C4']
        W = [f"s_lshl_b32 s{S_T+4}, s{S_W}, 6", f"s_add_u32 s{S_T+4}, s{S_T+4}, {L_AB}", f"s_movk_i32 s{S_T+5}, 160"]
        for it in range(5):
            W += [f"v_accvgpr_read_b32 v{11+it}, a{self.STROW+it}", f"v_accvgpr_read_b32 v{6+it}, a{self.STC4+it}"]
            W += [f"v_lshl_add_u32 v1, v{11+it}, 2, s{S_T+4}", f"v_lshl_add_u32 v3, v{6+it}, 3, s{S_RL}", f"v_mad_u32_u24 v2, v{11+it}, s{S_T+5}, v3",
                  f"ds_read2st64_b32 {v(ST+2*it,2)}, v1 offset0:0 offset1:2", f"ds_read2st64_b32 {v(ST+10+2*it,2)}, v1 offset0:1 offset1:3",
                  f"ds_read_b64 {v(XB+2*it,2)}, v2", f"ds_read_b64 {v(XB+10+2*it,2)}, v2 offset:2560",
                  f"ds_read_b64 {v(DB+2*it,2)}, v3 offset:20480", f"ds_read_b64 {v(BB+2*it,2)}, v3 offset:{20480+256}"]
        W += [f"v_add_u32 v4, s{S_RL}, v{self.LV}", "s_waitcnt lgkmcnt(0)"]
        for it in range(5):
            dd, bb = [76, 100][it % 2], [76, 100][it % 2] + 4
            for (src, dst) in ((DB+2*it, dd), (BB+2*it, bb)):
                for h in range(2):
                    W += [f"v_lshlrev_b32 v{dst+2*h}, 16, v{src+h}", f"v_and_b32 v{dst+2*h+1}, 0xffff0000, v{src+h}"]
            for hf in range(2):
                xx = dd + 8 + 8*hf
                for h in range(2):
                    W += [f"v_lshlrev_b32 v{xx+2*h}, 16, v{XB+10*hf+2*it+h}", f"v_and_b32 v{xx+2*h+1}, 0xffff0000, v{XB+10*hf+2*it+h}"]
            for hf in range(2):
                xx = dd + 8 + 8*hf; rr = xx + 4; st = ST + 10*hf + 2*it
                for h in range(2):
                    W += [f"v_pk_add_f32 {v(rr+2*h,2)}, {v(bb+2*h,2)}, {v(xx+2*h,2)}",
                          f"v_pk_fma_f32 {v(xx+2*h,2)}, {v(xx+2*h,2)}, {v(st,2)}, {v(st,2)} op_sel:[0,0,1] op_sel_hi:[1,0,1]"]
            for hf in range(2):
                xx = dd + 8 + 8*hf; rr = xx + 4
                for h in range(2):
                    W += [f"v_pk_fma_f32 {v(rr+2*h,2)}, {v(xx+2*h,2)}, {v(dd+2*h,2)}, {v(rr+2*h,2)}"]
                W += [f"ds_write_b128 v4, {v(rr,4)} offset:{hf*20480+it*1024}"]
        self.sprinkle(W, memq, lead=int(self.P('rlead', 0)))

    def mlp(self):
        k = self.k
        ACC = 16; WSA = 112; ONE = 124; FR = [128, 148]
        B1R = 126; GS = 168
        XE, XO, W0 = 3, 2, 4
        RXB, AEB, AOB = 176, 180, 184
        PV = self.PV; LV = self.LV
        STGS = 40960
        S_MH, S_NH = 42, 43
        L_WS = 110592
        k.label("L_mlp")
        k.c("================ MLP side, phase 1")
        self.common_a()
        self.nf3 = 0
        self.marks = {}
        S_RSROW, SW0, S_GT, D1, S_RSDST, S_FB = S_T+5, S_T+6, S_T+9, S_T+10, S_T+8, S_T+14
        k(f"""v_xor_b32 v{XO}, 64, v{XE}
        s_add_u32 s{S_XO+1}, s{S_XO}, {8*1280 - 1024}
        s_add_u32 s{S_XO+2}, s{S_XO}, {16*1280 - 2048}
        s_add_u32 s{S_XO+3}, s{S_XO}, {24*1280 - 3072}""")
        stage_tok = {}; stage_cnt = {}
        self.dma_reset(); self.has_w = True
        self.rot_setup([XE, XO], True)
        for n in range(3):
            k(f"""v_add_u32 v10, {64*n}, v0
            v_mul_u32_u24 v12, 2731, v10
            v_lshrrev_b32 v12, 16, v12
            v_mul_u32_u24 v13, 24, v12
            v_sub_u32 v13, v10, v13
            v_bfe_u32 v40, v12, 1, 1
            v_lshlrev_b32 v40, 2, v40
            v_xor_b32 v13, v13, v40
            v_mul_u32_u24 v12, 3072, v12
            v_lshl_add_u32 v{W0+n}, v13, 4, v12""")
            if n: k(f"v_subrev_u32 v{W0+n}, {1024*n}, v{W0+n}")
            k(f"v_add_u32 v{W0+n}, s{S_ST2}, v{W0+n}")
        k(f"""s_mul_i32 s{S_MW}, s{S_W}, 6144
        s_mul_i32 s{S_WO}, s{S_W}, {16*3072}
        s_mul_i32 s{S_T}, s{S_J}, 384
        s_add_u32 s{S_WO}, s{S_WO}, s{S_T}
        s_add_u32 s{S_WO+1}, s{S_WO}, {24576 - 3072}
        s_add_u32 s{S_WO+4}, s{S_WO}, {24576 + 1024}""")
        self.common_b()
        self.stamp(0); self.fine3()
        WSO = [S_WO, S_WO, S_WO, S_WO+1, S_WO+4, S_WO+4]
        def dma_list(t):
            base = (t % 4)*STGS
            L = []
            def mk(ld):
                def f():
                    stage_tok[t] = k(ld); stage_cnt[t] = stage_cnt.get(t, 0) + 1
                return f
            for e in range(4):
                vr = XE if e % 2 == 0 else XO
                L.append(self.dma((S_MX, base + 24576), mk(f"buffer_load_dwordx4 v{vr}, {s(SRD_X,4)}, s{S_XO+e} offen offset:{e*1024} lds"), vr, t, 128))
            for n in range(6):
                L.append(self.dma((S_MW, base + (n//4)*4096), mk(f"buffer_load_dwordx4 v{W0+n%3}, {s(SRD_W,4)}, s{WSO[n]} offen offset:{(n%4)*1024} lds"), W0+n%3, t, 64*3072))
            return L
        d0 = dma_list(0)
        for p in d0[:4]: self.emit(p)
        self.srd(SRD_W, 10, 1966080)
        for p in d0[4:7]: self.emit(p)
        d1 = dma_list(1)
        R0, A0, T0 = 200, 220, 224
        TS = int(self.P('mts', 3))
        SCR = (TS % 4)*STGS + 24576
        rs = self.rowstat_loads(SRD_X, S_RSROW, 8, R0)
        def setup(k):
            k(f"""s_lshr_b32 s{S_MH}, s{S_W}, 1
            s_and_b32 s{S_NH}, s{S_W}, 1
            s_lshl_b32 s{S_T+2}, s{S_W}, 2
            s_lshl_b32 s{S_T}, s{S_I}, 7
            s_lshl_b32 s{S_T+1}, s{S_J}, 4
            s_add_u32 s{S_T}, s{S_T}, s{S_T+1}
            s_add_u32 s{S_RSROW}, s{S_T}, s{S_T+2}
            s_lshl_b32 s{S_RSDST}, s{S_RSROW}, 4
            s_add_u32 s{S_RSDST}, s{S_RSDST}, {WS_STG}
            s_mov_b32 s{S_T+1}, 3""")

            self.rowstat_setup(S_RSROW, S_T+1, 8, 9)

            self.srd(SRD_T2, 12, 1966080)
            self.unit_decode(480, S_FB)

            k(f"""s_mul_i32 s{S_T+1}, s{S_T+2}, {32*1280}
            s_lshl_b32 s{S_T+3}, s{S_T}, 7
            s_add_u32 s{SW0}, s{S_T+1}, s{S_T+3}
            s_mul_i32 s{S_T+3}, s{S_T}, {4*48}
            s_add_u32 s{S_T+3}, s{S_T+3}, s{S_T+2}
            s_lshl_b32 s{S_T+3}, s{S_T+3}, 10
            s_add_u32 s{D1}, s{S_T+3}, {WS_B2S[1]}
            s_lshl_b32 s{S_FB}, s{S_FB}, 6
            s_add_u32 s{S_FB}, s{S_FB}, {WS_FB + 512*FLS}
            s_lshl_b32 s{S_GT}, s{S_I}, 11
            s_lshl_b32 s{S_T}, s{S_MH}, 10
            s_add_u32 s{S_GT}, s{S_GT}, s{S_T}
            s_add_u32 s{S_GT}, s{S_GT}, {WS_STG}
            v_and_b32 v11, 31, v0
            v_lshrrev_b32 v12, 5, v0
            v_bfe_u32 v13, v0, 1, 3
            v_xor_b32 v13, v13, v12
            v_lshlrev_b32 v13, 4, v13
            v_lshl_add_u32 v13, v11, 7, v13
            s_lshl_b32 s{S_T}, s{S_MH}, 13
            s_add_u32 s{S_T}, s{S_T}, 24576
            v_add_u32 v10, s{S_T}, v13
            v_bfe_u32 v13, v0, 2, 2
            v_lshl_add_u32 v40, v12, 3, v13
            v_mul_u32_u24 v40, 384, v40
            v_bfe_u32 v15, v0, 4, 1
            v_lshl_add_u32 v40, v15, 5, v40
            v_and_b32 v41, 3, v0
            v_lshl_add_u32 v40, v41, 3, v40
            v_lshlrev_b32 v7, 4, v12
            v_lshl_add_u32 v7, v15, 2, v7
            v_add_u32 v7, v7, v13
            v_lshlrev_b32 v7, 7, v7
            v_lshl_add_u32 v7, v41, 3, v7
            v_add_u32 v7, s{S_MX}, v7
            v_add_u32 v7, {SCR}, v7
            s_mul_i32 s{S_T}, s{S_NH}, 192
            v_add_u32 v40, s{S_T}, v40
            v_bfe_u32 v13, v0, 3, 1
            v_lshlrev_b32 v13, 6, v13
            s_cmp_eq_u32 s{S_NH}, 0
            s_cselect_b32 s{S_T}, 1, -1
            v_mul_lo_u32 v13, v13, s{S_T}
            v_add_u32 v15, v40, v13
            v_sub_u32 v40, v40, v13
            v_mov_b32 v{ONE}, 0x3f803f80
            v_mov_b32 v{ONE+1}, 0x3f803f80""")
            for ls in range(4):
                k(f"""s_lshl_b32 s{S_T}, s{S_MH}, 1
                s_add_u32 s{S_T}, s{S_T}, {ls}
                s_and_b32 s{S_T}, s{S_T}, 3
                s_lshl_b32 s{S_T+1}, s{S_T}, 5
                s_mul_i32 s{S_T}, s{S_T}, 6144
                v_xor_b32 v{RXB+ls}, s{S_T+1}, v10
                v_add_u32 v{AEB+ls}, s{S_T}, v15
                v_add_u32 v{AOB+ls}, s{S_T}, v40""")
            for q in range(12): k(f"v_add_u32 v{RXB+12+q}, {2*STGS}, v{RXB+q}")
            k(f"""v_lshlrev_b32 v10, 4, v11
            v_min_u32 v11, 47, v0
            s_mul_i32 s{S_T}, s{S_J}, 192
            s_mul_i32 s{S_T+1}, s{S_W}, 48
            s_add_u32 s{S_T}, s{S_T}, s{S_T+1}
            v_add_lshl_u32 v12, v11, s{S_T}, 1
            v_add_lshl_u32 v11, v11, s{S_T+1}, 2
            v_add_u32 v11, {L_WS}, v11""")
            self.b2v = self.b2_setup(1)
        su = self.capture(setup)
        self.sprinkle(su[:20], [(lambda p=p: self.emit(p)) for p in d0[7:]])
        mprs = int(self.P('mprs', 0))
        n1 = 4 if mprs == 0 else 8
        self.sprinkle(su[20:], [(lambda p=p: self.emit(p)) for p in d1[:2]] + (rs if mprs == 0 else []) + [(lambda p=p: self.emit(p)) for p in d1[2:n1]])
        b2v = self.b2v
        tk = {}
        swq = []
        for e in range(4):
            def f(e=e):
                k(f"s_add_u32 s{S_T+2}, s{SW0}, {e*8*1280}")
                tk['d1'] = k(f"buffer_load_dwordx4 v{PV}, {s(SRD_T2,4)}, s{S_T+2} offen lds")
            swq.append(self.dma((S_MX, SCR + e*1024), f))
        self.make_tag()
        self.emit(self.touch(1, 246))
        rtok = {}
        def mkreads(n):
            st = FR[n % 2]; ls = n % 4; sl = (n//4) % 4; o = (sl % 2)*STGS; h_ = 12*(sl//2)
            ra, ae, ao = RXB+ls+h_, AEB+ls+h_, AOB+ls+h_
            R = [f"ds_read_b128 {v(st,4)}, v{ra} offset:{o}",
                 f"ds_read_b64_tr_b16 {v(st+8,2)}, v{ae} offset:{o}", f"ds_read_b64_tr_b16 {v(st+10,2)}, v{ae} offset:{o+1536}",
                 f"ds_read_b128 {v(st+4,4)}, v{ra} offset:{o+4096}",
                 f"ds_read_b64_tr_b16 {v(st+12,2)}, v{ao} offset:{o+64}", f"ds_read_b64_tr_b16 {v(st+14,2)}, v{ao} offset:{o+1600}",
                 f"ds_read_b64_tr_b16 {v(st+16,2)}, v{ae} offset:{o+128}", f"ds_read_b64_tr_b16 {v(st+18,2)}, v{ae} offset:{o+1664}"]
            L = []
            for i, r in enumerate(R):
                def f(i=i, r=r): rtok[n, i] = k(r)
                L.append(f)
            return L
        self.fine3()
        k.wait_vm(stage_tok[0])
        self.fine3()
        k("s_barrier")
        self.fine3()
        self.stamp(1)
        k.label("L_mlp_code")
        self.emit(mkreads(0))
        NSW, NFLAG, NPOLL, NCHK = [int(self.P(a_, b_)) for a_, b_ in (('mnsw', 4), ('mnfl', 12), ('mnpo', 21), ('mnck', 26))]
        mq = [[0, 1, p_, l_] for p_, l_ in d1[n1:]]
        def q_stage(t):
            L = [[max(4*(t-3), NSW+2 if (t == TS and j_ < 4) else 0), 1, p_, l_] for j_, (p_, l_) in enumerate(dma_list(t))]
            mq.extend(L[4:] + L[:4] if t == TS else L)
        def sw_store(cc):
            def f():
                k.wait_lg(tk['r1'])
                k(f"s_add_u32 s{S_T}, s{D1}, {cc*48*1024}")
                tk['s1'] = k(f"buffer_store_dwordx4 {a(240+4*cc,4)}, v{LV}, {WS4}, s{S_T} offen sc1")
            return f
        def b1l(): tk['b1'] = k(f"global_load_ushort v{B1R}, v12, {ptr(11)}")
        def gs1(): k(f"buffer_load_dwordx4 {v(GS,4)}, v10, {WS4}, s{S_GT} offen sc1")
        def gs2(): tk['gs'] = k(f"buffer_load_dwordx4 {v(GS+4,4)}, v10, {WS4}, s{S_GT} offen offset:512 sc1")
        mpsw, mpst = int(self.P('mpsw', 1)), int(self.P('mpst', 2))
        for t in range(1, 10):
            if t > 1: q_stage(t)
            if t == mprs: mq += [[0, 1, None, f] for f in rs]
            if t == mpsw: mq += [[4*(TS-3), 1, p_, l_] for p_, l_ in swq]
            if t == mpst: mq += [[NSW+1, 2, None, sw_store(cc)] for cc in range(4)]
            if t == 4: mq.append([0, 0.5, None, b1l])
        late = {NPOLL: [[NPOLL, 0.5, None, self.b2_poll]], 30: [[30, 1, None, gs1], [30, 1, None, gs2]]}
        def swr():
            k.wait_vm(tk['d1'])
            for cc in range(4):
                for e in range(2):
                    tk['r1'] = k(f"ds_read_b64_tr_b16 {a(240+4*cc+2*e,2)}, v7 offset:{e*1024+cc*32}")
        def flg():
            k.wait_vm(tk['s1']); self.set_flag(S_FB, 13)
        hooks = {NSW: swr, NFLAG: flg}
        rsf = self.rowstat_fill(R0, A0, T0, 9, S_RSDST)
        fq = [('at', NSW + 1)] + b2v + [('mark', 'b2s')]
        NRB = int(self.P('mnrb', 3))
        fq += [('at', 28), lambda: k.wait_vm(tk['b1']), f"v_lshlrev_b32 v{B1R}, 16, v{B1R}", f"ds_write_b32 v11, v{B1R} offset:1536"]
        credit = 0.0; b2on = False
        for n in range(40):
            st = FR[n % 2]
            k.c(f"---- mlp k-step {n}")
            if n % 2 == 0: self.fine(16 + n//2)
            if n == NCHK:
                self.b2_check(); b2on = True
            if n == NSW + 2: k.wait_lg(tk['r1'])
            mq[0:0] = late.get(n, [])
            mem = []
            mmax = int(self.P('mtail', 4) + (0.5 if n % 4 < 2 else 0)) if n >= 28 else int(self.P('mmax', 5)) if n < self.P('mfast', 4) else int(self.P('mcap', 3)) + (1 if n % 4 < 2 and self.P('mcap', 3) % 1 else 0)
            while len(mem) < mmax:
                if mq and mq[0][0] <= n: it_ = mq.pop(0)
                elif b2on and self.b2q and len(mem) < self.P('mb2', 5) + (0.5 if n % 4 < 2 else -0.5): it_ = [n, 1, None, self.b2q.pop(0)]
                else: break
                mem.append(it_)
            rd = mkreads(n+1) if n + 1 < 40 else []
            small = []
            if n % 4 < 2:
                for hh in range(2):
                    for T in range(3):
                        c_ = "0" if (n == 0 and hh == 0) else v(WSA+4*T, 4)
                        small.append(f"v_mfma_f32_4x4x4_16b_bf16 {v(WSA+4*T,4)}, {v(ONE,2)}, {v(st+8+4*T+2*hh,2)}, {c_}")
            bar = n % 4 == 3 and n + 1 < 40
            cnt = [0, 3, 3, 2, 0, 0] if bar else [3, 3, 2, 0, 0, 0]
            pref = [4, 0, 5, 3, 2, 1] if bar else [4, 5, 2, 3, 0, 1]
            nper_ = [0]*6
            for j_ in range(len(mem)): nper_[pref[j_ % 6]] += 1
            dep = {0: 2, 1: 3, 2: 5, 4: 7}
            for i in range(6):
                T3, mt = i//2, i % 2
                if nper_[i] and mem[0][2]: mem[0][2]()
                if i in dep: k.wait_lg(rtok[n, dep[i]])
                d = ACC + 16*i
                k(f"v_mfma_f32_32x32x16_bf16 {v(d,16)}, {v(st+8+4*T3,4)}, {v(st+4*mt,4)}, {'0' if n == 0 else v(d,16)}")
                n0 = len(k.ins)
                for j_ in range(nper_[i]):
                    it_ = mem.pop(0)
                    if j_ and it_[2]: it_[2]()
                    it_[3]()
                if bar and i == 1:
                    assert stage_cnt[(n+1)//4] == 10
                    if n == NRB: self.rowstat_batch(R0, A0, 9, S_RSDST)
                    k.wait_both(stage_tok[(n+1)//4], k.lg_issued)
                    k("s_barrier")
                for _ in range(cnt[i]):
                    if rd: rd.pop(0)()
                self.emit(self.take_fill(fq, n, int(self.P('mden', 5)) - (len(k.ins) - n0)))
            if n in hooks: hooks[n]()
            self.emit(small)
            assert not rd and not mem
        assert not mq and not fq and self.marks['b2s'] < NPOLL
        self.info += f" mlp b2 left {len(self.b2q)} marks {self.marks}"
        k.c('loop end')
        self.stamp(2)
        if self.early_stop("loop"): return
        k.c("================ MLP epilogue")
        self.nf2 = 0
        TM = 128
        AT, BT = 176, 180
        for T in range(3): k(f"v_permlane32_swap_b32 v{WSA+4*T}, v{WSA+4*T+1}")
        k(f"""v_and_b32 v11, 31, v0
        s_mul_i32 s{S_T}, s{S_MH}, 768
        s_mul_i32 s{S_T+1}, s{S_NH}, 384
        s_add_u32 s{S_T}, s{S_T}, s{S_T+1}
        v_lshl_add_u32 v12, v11, 2, s{S_T}
        v_add_u32 v12, {L_WS}, v12""")
        for T in range(3):
            k(f"v_add_f32 v{WSA+4*T}, v{WSA+4*T}, v{WSA+4*T+1}\nds_write_b32 v12, v{WSA+4*T} offset:{128*T}")
        k.wait_vm(tk['gs'])
        def check():
            k(f"""v_xor_b32 v13, s{S_TAG}, v{GS+1}
            v_bitop3_b32 v13, s{S_TAG2}, v{GS+3}, v13 bitop3:0xbe
            v_bitop3_b32 v13, s{S_TAG}, v{GS+5}, v13 bitop3:0xbe
            v_bitop3_b32 v13, s{S_TAG2}, v{GS+7}, v13 bitop3:0xbe
            v_cmp_ne_u32 vcc, 0, v13""")
        def rl():
            k(f"""buffer_load_dwordx4 {v(GS,4)}, v10, {WS4}, s{S_GT} offen sc1
            buffer_load_dwordx4 {v(GS+4,4)}, v10, {WS4}, s{S_GT} offen offset:512 sc1
            s_waitcnt vmcnt(0)""")
        self.verify(check, rl, "ps")
        c1 = -2*LOG2E*math.sqrt(2/math.pi)
        k(f"s_mov_b32 s{S_T}, {fbits(1.0/640)}")
        seqs = []
        for mt in range(2):
            g_ = GS + 4*mt; t_ = TM + mt
            seqs.append([f"v_mul_f32 v{g_}, s{S_T}, v{g_}", f"v_mul_f32 v{t_}, v{g_}, v{g_}", f"v_fma_f32 v{g_+2}, v{g_+2}, s{S_T}, -v{t_}",
                         f"v_max_f32 v{g_+2}, 0, v{g_+2}", f"v_add_f32 v{t_}, {fbits(EPS)}, v{g_+2}", f"v_rsq_f32 v{g_+1}, v{t_}",
                         f"v_mul_f32 v{t_}, v{g_+1}, v{g_+1}", f"v_mul_f32 v{t_}, v{t_}, v{g_+2}", f"v_add_f32 v{t_}, {fbits(EPS)}, v{t_}",
                         f"v_rsq_f32 v{t_}, v{t_}", f"v_mul_f32 v{AT+2*mt}, v{t_}, v{g_+1}", f"v_mul_f32_e64 v{BT+2*mt}, v{g_}, -v{AT+2*mt}"])
        for x, y in zip(*seqs): k(x); k(y)
        C1 = 184; PATV = 15
        k(f"""v_lshrrev_b32 v14, 5, v0
        s_mul_i32 s{S_T}, s{S_NH}, 384
        v_lshl_add_u32 v12, v14, 4, s{S_T}
        v_add_u32 v12, {L_WS}, v12
        v_lshrrev_b32 v13, 4, v11
        v_mul_u32_u24 v13, {48*1024}, v13
        v_and_b32 v15, 15, v0
        v_lshl_add_u32 v13, v15, 4, v13
        v_lshl_add_u32 v{PV}, v14, 8, v13
        s_lshl_b32 s{S_T}, s{S_I}, 3
        s_lshl_b32 s{S_T+1}, s{S_MH}, 2
        s_add_u32 s{S_T}, s{S_T}, s{S_T+1}
        s_mul_i32 s{S_T}, s{S_T}, 48
        s_mul_i32 s{S_T+1}, s{S_J}, 6
        s_add_u32 s{S_T}, s{S_T}, s{S_T+1}
        s_mul_i32 s{S_T+1}, s{S_NH}, 3
        s_add_u32 s{S_T}, s{S_T}, s{S_T+1}
        s_lshl_b32 s{S_T}, s{S_T}, 10
        s_add_u32 s{S_T+6}, s{S_T}, {WS_A2[1]}
        s_add_u32 s{S_T+7}, s{S_T+6}, {96*1024}
        s_mov_b32 s{S_T+4}, {fbits(c1*0.044715)}
        s_mov_b32 s{S_T+5}, s{S_T+4}
        v_mov_b32 v{C1}, {fbits(c1)}
        v_mov_b32 v{C1+1}, {fbits(c1)}
        v_mov_b32 v{PATV}, s{S_PAT}
        s_waitcnt lgkmcnt(0)
        s_barrier""")
        self.stamp(3)
        WB = [112, 186]
        Q = 160; PKO = [168, 172, 234, 238]; TT = 242
        def wreads(T3):
            b = WB[T3 % 2]
            return [f"ds_read_b128 {v(b+16*a_+4*q4,4)}, v12 offset:{768*a_+(32*T3+8*q4)*4}" for q4 in range(4) for a_ in range(3)]
        self.emit(wreads(0))
        self.p2_addr(1)
        held = []
        for Tl in range(6):
            T3, mt = Tl//2, Tl % 2
            self.fine2()
            b = WB[T3 % 2]
            fill = []; body = []
            if mt == 0:
                k("s_waitcnt lgkmcnt(0)")
                body += [f"v_pk_add_f32 {v(b+2*p,2)}, {v(b+2*p,2)}, {v(b+16+2*p,2)}" for p in range(8)]
                if T3 < 2: fill = [lambda x=x: k(x) for x in wreads(T3+1)]
            for c in range(2):
                po = PKO[(2*Tl + c) % 4]; prs = range(4*c, 4*c+4)
                z = lambda p: ACC + 16*Tl + 2*p
                q = lambda p: Q + 2*(p % 4)
                body += [f"v_pk_fma_f32 {v(TT+2*(p%4),2)}, {v(BT+2*mt,2)}, {v(b+2*p,2)}, {v(b+32+2*p,2)} op_sel_hi:[0,1,1]" for p in prs]
                body += [f"v_pk_fma_f32 {v(z(p),2)}, {v(AT+2*mt,2)}, {v(z(p),2)}, {v(TT+2*(p%4),2)} op_sel_hi:[0,1,1]" for p in prs]
                body += [f"v_pk_mul_f32 {v(q(p),2)}, {v(z(p),2)}, {v(z(p),2)}" for p in prs]
                body += [f"v_pk_fma_f32 {v(q(p),2)}, {v(q(p),2)}, {s(S_T+4,2)}, {v(C1,2)}" for p in prs]
                body += [f"v_pk_mul_f32 {v(q(p),2)}, {v(q(p),2)}, {v(z(p),2)}" for p in prs]
                for p in prs: body += [f"v_exp_f32 v{q(p)}, v{q(p)}", f"v_exp_f32 v{q(p)+1}, v{q(p)+1}"]
                body += [f"v_pk_add_f32 {v(q(p),2)}, {v(q(p),2)}, 1.0 op_sel_hi:[1,0]" for p in prs]
                for p in prs: body += [f"v_rcp_f32 v{q(p)}, v{q(p)}", f"v_rcp_f32 v{q(p)+1}, v{q(p)+1}"]
                body += [f"v_pk_mul_f32 {v(q(p),2)}, {v(q(p),2)}, {v(z(p),2)}" for p in prs]
                body += [f"v_cvt_pk_bf16_f32 v{po+p%4}, v{q(p)}, v{q(p)+1}" for p in prs]
                body += [f"v_and_or_b32 v{po+p%4}, v{po+p%4}, s{S_NM}, v{PATV}" for p in prs]
                def st_(T3=T3, mt=mt, c=c, po=po):
                    self.last_st = k(f"buffer_store_dwordx4 {v(po,4)}, v{PV}, {WS4}, s{S_T+6+mt} offen offset:{T3*1024+c*512} sc1")
                if Tl < 4: body.append(st_)
                else: held.append(st_)
            if Tl >= 4: fill = [self.p2_aload]*8
            if Tl < 4: fill = fill + self.b2_take(min(int(self.P('g1', 4)), -(-len(self.b2q)//(4 - Tl))))
            self.sprinkle(body, fill, lead=8)
        self.fine2()
        self.emit(held)
        self.fine2()
        self.stamp(6)
        self.phase2(1)

    RING, NR, ACS, ACO = 16, 19, 92, 172
    def p2_addr(self, side):
        k = self.k
        S = [40, 48][side]; KS = [10, 12][side]
        self.side = side; self.KS = KS
        hfS = side; hfO = 1 - side
        k(f"""s_mul_i32 s45, s{S_I}, {8*S}
        s_mul_i32 s46, s{S_W}, {KS}
        s_add_u32 s45, s45, s46
        s_lshl_b32 s45, s45, 10
        s_add_u32 s45, s45, {WS_A2[side]}""")
        for t4 in range(4):
            k(f"s_add_u32 s{36+t4}, s45, {(4*hfS+t4)*S*1024}")
            k(f"s_add_u32 s{40+t4}, s45, {(4*hfO+t4)*S*1024}")
        self.seq = [(0, ss, t4) for ss in self.order for t4 in range(4)] + [(1, ss, t4) for t4 in range(4) for ss in range(KS)]
        self.atok = {}; self.areg = {}; self.nxt = 0
        self.free_ring = [self.RING + 4*i for i in range(self.NR)]
        self.free_big = [self.ACO + 4*i for i in range(20)] if side == 0 else []
    def a_instr(self, idx):
        p, ss, t4 = self.seq[idx]
        so = 36 + 4*p + t4; pre = ""
        if ss >= 4:
            pre = f"s_add_u32 s45, s{so}, {(ss//4)*4096}\n"; so = 45
        return pre + f"buffer_load_dwordx4 {v(self.areg[idx],4)}, v{self.LV}, {WS4}, s{so} offen offset:{(ss%4)*1024} sc1"
    def p2_can(self):
        if self.nxt >= len(self.seq): return False
        if self.seq[self.nxt][0] == 0 and self.free_big: return True
        return bool(self.free_ring)
    def p2_aload(self):
        idx = self.nxt
        if self.seq[idx][0] == 0 and self.free_big: r = self.free_big.pop(0)
        else: r = self.free_ring.pop(0)
        self.areg[idx] = r
        self.atok[idx] = self.k(self.a_instr(idx))
        self.nxt += 1

    def phase2(self, side):
        k = self.k
        if self.early_stop("p1"): return
        KS = self.KS; nper = 4*KS
        ACS, ACO, LV = self.ACS, self.ACO, self.LV
        hfS = side; hfO = 1 - side
        RW, RR, OO, VA, FV, T1 = 5, 6, 11, 1, 2, 253
        k.c(f"================ phase 2 (side {side})")
        if side == 1: self.free_big = [self.ACO + 4*i for i in range(20)]
        while self.nxt < 16: self.p2_aload()
        self.stamp(8)
        def vcheck(j, lst):
            regs = [self.areg[4*j+t]+e for t in range(4) for e in range(4)]
            L = [f"v_xor_b32 v{VA}, s{S_PAT}, v{regs[0]}"]
            L += [f"v_bitop3_b32 v{VA}, s{S_PAT}, v{r}, v{VA} bitop3:0xbe" for r in regs[1:]]
            L += [f"v_and_b32 v{VA}, 0x10001, v{VA}", f"v_cmp_ne_u32 vcc, 0, v{VA}"]
            return L
        def vfinish(j):
            hi = min(self.nxt, nper)
            ins = [self.a_instr(i) for i in range(4*j, hi)]
            chk = vcheck(j, None)
            def reload():
                self.emit(ins); k("s_waitcnt vmcnt(0)")
            self.verify(lambda: self.emit(chk), reload, "va", checked=True)
        a1 = [f"v_and_b32 v{FV}, 7, v0\nv_lshlrev_b32 v{FV}, 6, v{FV}", f"s_lshl_b32 s44, s{S_I}, 5\ns_lshl_b32 s46, s{S_W}, 3",
              f"s_add_u32 s44, s44, s46\ns_lshl_b32 s44, s44, 6", f"s_add_u32 s44, s44, {WS_FA + side*512*FLS}",
              f"s_movk_i32 s{S_T+1}, {RED_RS}\ns_movk_i32 s{S_T+2}, 2560"]
        if side == 1:
            a1 += [f"v_and_b32 v{T1}, 15, v0", f"v_mul_u32_u24 v{RW}, {RED_RS}, v{T1}", f"v_lshrrev_b32 v{T1}, 4, v0",
                   f"v_lshl_add_u32 v{RW}, v{T1}, 4, v{RW}", f"s_mul_i32 s{S_T}, s{S_W}, {RED_W}\ns_add_u32 s{S_T}, s{S_T}, {LDS_RED}",
                   f"v_add_u32 v{RW}, s{S_T}, v{RW}"]
        else:
            a1 += [f"v_accvgpr_read_b32 v{RW}, a{ST['RW']}"]
        a1 += [f"s_mul_i32 s{S_T}, s{S_W}, {16*RED_RS}\ns_add_u32 s{S_T}, s{S_T}, {LDS_RED}"]
        for it in range(5):
            if side == 1: a1 += [f"v_add_u32 v{T1}, {64*it}, v0"] + self.div20(OO+it, RR+it, T1)
            a1 += [f"v_lshlrev_b32 v{T1}, 4, v{RR+it}",
                   f"v_mad_u32_u24 v{RR+it}, v{OO+it}, s{S_T+1}, v{T1}", f"v_add_u32 v{RR+it}, s{S_T}, v{RR+it}",
                   f"v_mad_u32_u24 v{OO+it}, v{OO+it}, s{S_T+2}, v{T1}"]
        a1 += [
               f"s_lshr_b32 s{S_T}, s{S_PW}, 2\ns_mul_i32 s{S_T}, s{S_T}, 20480", f"s_mul_i32 s{S_T+1}, s{S_W}, 5120\ns_add_u32 s{S_T}, s{S_T}, s{S_T+1}",
               f"s_add_u32 s{S_T+3}, s{S_T}, {WS_PART + (1-side)*128*20480}\ns_add_u32 s{S_T+4}, s{S_T+3}, 4096",
               f"s_add_u32 s{S_T+5}, s{S_T}, {WS_PART + side*128*20480}\ns_add_u32 s{S_T+6}, s{S_T+5}, 4096",
               f"s_add_u32 s{S_T+7}, s{S_T+1}, {L_R}\nv_mov_b32 v3, s{S_PAT32}",
               f"s_lshl_b32 s{S_T}, s{S_I}, 7\ns_lshl_b32 s{S_T+1}, s{S_W}, 4", f"s_add_u32 s{S_T}, s{S_T}, s{S_T+1}\ns_add_u32 s{S_T}, s{S_T}, {64*hfO}",
               f"s_mul_i32 s{S_T}, s{S_T}, 2560\ns_mul_i32 s{S_T+1}, s{S_J}, 320", f"s_add_u32 s{S_OUT}, s{S_T}, s{S_T+1}\ns_mov_b32 s{S_NM}, -4",
               f"s_mov_b32 s{SRD_OUT}, s{P0+28}\ns_mov_b32 s{SRD_OUT+1}, s{P0+29}", f"s_mov_b32 s{SRD_OUT+2}, 5242880\ns_mov_b32 s{SRD_OUT+3}, 0x20000"]
        tk = {}
        gate = [lambda j: nper, lambda j: 32 if j < 3 else nper][side]
        k.wait_vm(self.atok[3])
        self.emit(vcheck(0, None)); vfinish(0)
        o_ok = False
        for j in range(KS):
            self.fine(36 + j)
            ss = self.order[j]
            while (ss, 4) not in self.b2tok: self.b2q.pop(0)()
            k.wait_vm(self.b2tok[ss, 4])
            vq = None
            misc = []
            if j == [0, int(self.P('jfl', 3))][side]:
                def f():
                    k.wait_vm(self.last_st)
                    k(f"s_add_u32 s{S_T+10}, s{S_FLAG}, {WS_FA + side*512*FLS}")
                    self.set_flag(S_T+10, 4)
                misc.append(f)
            if j == [int(self.P('jpo0', 4)), int(self.P('jpo', 7))][side]:
                def f(): tk['fa'] = k(f"buffer_load_dword v4, v{FV}, {WS4}, s44 offen sc1")
                misc.append(f)
            if j == [int(self.P('jck0', 6)), int(self.P('jck', 9))][side]:
                k.wait_vm(tk['fa'])
                def rl(): k(f"buffer_load_dword v4, v{FV}, {WS4}, s44 offen sc1\ns_waitcnt vmcnt(0)")
                self.verify(lambda: k(f"v_cmp_ne_u32 vcc, s{S_TAG}, v4"), rl, "fa")
                o_ok = True
            for t4 in range(4):
                idx = 4*j + t4
                for cc in range(5):
                    g_ = 5*t4 + cc
                    d = ACS + (t4*5 + cc)*4
                    k(f"v_mfma_f32_16x16x32_bf16 {v(d,4)}, {a((ss*5+cc)*4,4)}, {v(self.areg[idx],4)}, {'0' if j == 0 else v(d,4)}")
                    lim = gate(j) if not o_ok else 2*nper
                    if g_ % 3 == 0 and self.p2_can() and self.nxt < lim and self.nxt < idx + 22:
                        self.p2_aload()
                    elif g_ in (1, 10) and self.b2q and j >= [1, 3][side]:
                        self.b2q.pop(0)()
                    elif g_ >= 4 and j + 1 < KS:
                        if vq is None:
                            k.wait_vm(self.atok[4*j+7]); vq = vcheck(j+1, None)
                        self.emit(vq[:2]); vq = vq[2:]
                        if not vq and (misc or a1): self.emit([(misc or a1).pop(0)])
                    elif misc or a1:
                        self.emit([(misc or a1).pop(0)])
                r = self.areg[idx]
                (self.free_ring if r < ACS else self.free_big).append(r) if (r < ACS or self.nxt < nper - 8) else None
            self.emit(misc)
            if j + 1 < KS:
                self.emit(vq); vfinish(j+1)
        self.emit(a1)
        self.stamp(9)
        nsrc = 5 if side == 0 else 4
        fill = []
        def wr(r, off):
            if 'w64' in self.opt: return [f"ds_write_b64 v{RW}, {v(r,2)} offset:{off}", f"ds_write_b64 v{RW}, {v(r+2,2)} offset:{off+8}"]
            return [f"ds_write_b128 v{RW}, {v(r,4)} offset:{off}", NOP]
        for t4 in range(4):
            for cc in range(5):
                fill += wr(ACS+(t4*5+cc)*4, t4*16*RED_RS+cc*64) + [NOP]*int(self.P('wpad', 2)*side)
        fill += [NOP]*int(self.P('bpad', 3)) + ["s_waitcnt lgkmcnt(0)\ns_barrier"]
        if side == 0: fill += [f"v_add_u32 v4, s{S_T+7}, v{LV}"]
        rds = []
        for it in range(5):
            for sw in range(4):
                def f(it=it, sw=sw): tk['r', it] = k(f"ds_read_b128 {v(ACS+(it*4+sw)*4,4)}, v{RR+it} offset:{sw*RED_W}")
                rds.append(f)
        fill += rds[:8]
        for it in range(5):
            b = ACS + it*16
            ad = [f"v_add_f32 v{b+e}, v{b+e}, v{b+4+e}\nv_add_f32 v{b+8+e}, v{b+8+e}, v{b+12+e}" for e in range(4)]
            nx = rds[8+4*it:12+4*it]
            fill.append(lambda it=it, a0=ad[0]: (k.wait_lg(tk['r', it]), k(a0)))
            for q in range(1, 4):
                if nx: fill.append(nx.pop(0))
                fill.append(ad[q])
            fill += nx
            if side == 0:
                def f(it=it, b=b): tk['R', it] = k(f"ds_read_b128 {v(b+4,4)}, v4 offset:{hfS*20480+it*1024}")
                fill.append(f)
            fill += [f"v_add_f32 v{b+e}, v{b+e}, v{b+8+e}\nv_add_f32 v{b+e+1}, v{b+e+1}, v{b+9+e}" for e in (0, 2)]
        fill += ["s_barrier"]
        for it in range(5):
            b = ACS + it*16
            if side == 0:
                fill.append(lambda it=it: k.wait_lg(tk['R', it]))
                fill += [f"v_add_f32 v{b+e}, v{b+e}, v{b+4+e}\nv_add_f32 v{b+e+1}, v{b+e+1}, v{b+5+e}" for e in (0, 2)]
            fill += [f"v_and_or_b32 v{b+e}, v{b+e}, s{S_NM}, v3\nv_and_or_b32 v{b+e+1}, v{b+e+1}, s{S_NM}, v3" for e in (0, 2)]
            fill.append(f"buffer_store_dwordx4 {v(b,4)}, v{LV}, {WS4}, s{S_T+5+it//4} offen offset:{(it%4)*1024} sc1")
        nS = len(fill)
        owr = {t4: [f"ds_write_b128 v{RW}, {v(ACO+(t4*5+cc)*4,4)} offset:{t4*16*RED_RS+cc*64}" for cc in range(5)] for t4 in range(4)}
        oq = []
        def ploads():
            return [k(f"buffer_load_dwordx4 {v(ACS+it*16+12,4)}, v{LV}, {WS4}, s{S_T+3+it//4} offen offset:{(it%4)*1024} sc1") for it in range(5)]
        slot = 0
        for j in range(nper):
            idx = nper + j
            _, ss, t4 = self.seq[idx]
            if j % 4 == 0: self.fine(36 + KS + j//4)
            if ss == 1 and t4 > 0: oq += [x for cc in range(5) for x in wr(ACO+((t4-1)*5+cc)*4, (t4-1)*16*RED_RS+cc*64)]
            while idx not in self.atok: self.p2_aload()
            k.wait_vm(self.atok[idx])
            for cc in range(5):
                d = ACO + (t4*5 + cc)*4
                k(f"v_mfma_f32_16x16x32_bf16 {v(d,4)}, {a((ss*5+cc)*4,4)}, {v(self.areg[idx],4)}, {'0' if ss == 0 else v(d,4)}")
                if cc == 0 and self.p2_can(): self.p2_aload()
                elif fill: self.emit([fill.pop(0)])
                elif oq: self.emit([oq.pop(0)])
            self.free_ring.append(self.areg[idx])
            if j == nper - 3: ptoks = ploads()
        assert not fill
        self.stamp(10)
        rest = [x for x in oq if x is not NOP] + owr[3]
        if side == 0:
            for it in range(5): k(f"ds_read_b128 {v(ACS+it*16+4,4)}, v4 offset:{hfO*20480+it*1024}")
        self.emit(rest)
        def pcheck():
            regs = [ACS+it*16+12+e for it in range(5) for e in range(4)]
            k(f"v_xor_b32 v{VA}, s{S_PAT32}, v{regs[0]}")
            for r in regs[1:]: k(f"v_bitop3_b32 v{VA}, s{S_PAT32}, v{r}, v{VA} bitop3:0xbe")
            k(f"v_and_b32 v{VA}, 3, v{VA}\nv_cmp_ne_u32 vcc, 0, v{VA}")
        k("s_waitcnt lgkmcnt(0)\ns_barrier")
        toks = []
        for it in range(5):
            for sw in range(4):
                toks.append(k(f"ds_read_b128 {v(ACO+(it*4+sw)*4,4)}, v{RR+it} offset:{sw*RED_W}"))
        k.wait_vm(ptoks[4])
        def rl():
            ploads(); k("s_waitcnt vmcnt(0)")
        self.verify(pcheck, rl, "pp")
        self.stamp(11)
        if side == 0:
            for it in range(5):
                for h in range(2):
                    k(f"v_pk_add_f32 {v(ACS+it*16+12+2*h,2)}, {v(ACS+it*16+12+2*h,2)}, {v(ACS+it*16+4+2*h,2)}")
        for it in range(5):
            b = ACO + it*16
            k.wait_lg(toks[4*it+3])
            for h in range(2):
                k(f"v_pk_add_f32 {v(b+2*h,2)}, {v(b+2*h,2)}, {v(b+4+2*h,2)}")
                k(f"v_pk_add_f32 {v(b+8+2*h,2)}, {v(b+8+2*h,2)}, {v(b+12+2*h,2)}")
            for h in range(2):
                k(f"v_pk_add_f32 {v(b+2*h,2)}, {v(b+2*h,2)}, {v(ACS+it*16+12+2*h,2)}")
            for h in range(2):
                k(f"v_pk_add_f32 {v(b+2*h,2)}, {v(b+2*h,2)}, {v(b+8+2*h,2)}")
            k(f"buffer_store_dwordx4 {v(b,4)}, v{OO+it}, {s(SRD_OUT,4)}, s{S_OUT} offen {'sc1' if 'outsc1' in self.opt else 'nt' if 'outnt' in self.opt else ''}")
        self.stamp(12)
        self.finish_wg(side)

    def finish_wg(self, side):
        k = self.k
        if side == 0:
            k(f"""s_cmp_lg_u32 s{S_PW}, 0
            s_cbranch_scc1 L_fin0
            v_lshlrev_b32 v13, 8, v0""")
            def loads():
                for q in range(4):
                    k(f"s_mov_b32 s{S_T+1}, {WS_FA + q*64*4*FLS}")
                    k(f"buffer_load_dword v{16+q}, v13, {WS4}, s{S_T+1} offen sc1")
                k("s_waitcnt vmcnt(0)")
            def check():
                k(f"v_xor_b32 v14, s{S_TAG}, v16")
                for q in range(1, 4): k(f"v_bitop3_b32 v14, s{S_TAG}, v{16+q}, v14 bitop3:0xbe")
                k("v_cmp_ne_u32 vcc, 0, v14")
            loads()
            self.verify(check, loads, "pe")
            k(f"s_mov_b32 s{S_T}, {WS_EPOCH}")
            self.set_flag(S_T, 14)
            k.label("L_fin0")
        if self.spin:
            lb = k.newlabel("spin")
            k(f"s_add_u32 s101, s101, {self.spin}")
            k.label(lb)
            k(f"""s_memrealtime s[98:99]
            s_waitcnt lgkmcnt(0)
            s_sub_u32 s98, s98, s100
            s_cmp_lt_u32 s98, s101
            s_cbranch_scc1 {lb}""")
        if self.ts:
            k("s_waitcnt vmcnt(0)"); self.stamp(13); self.stamp_flush()
        k("s_endpgm")

    def build(self):
        k = self.k
        self.prologue()
        st = k.state()
        self.ssm()
        self.flush_slow()
        k.set_state(st)
        self.mlp()
        self.flush_slow()
        k.label("L_end")
        k("s_endpgm")
        if 'nob2' in self.opt:
            k.ins = [x for x in k.ins if not (x.op == 'buffer_load_dwordx4' and ' a[' in x.text)]
        if 'b2hot' in self.opt:
            for x in k.ins:
                if x.op == 's_add_u32' and x.text.startswith(f's_add_u32 s{P0+30},'): x.text = f's_add_u32 s{P0+30}, s{S_B2}, 0'
        if 'noa2' in self.opt:
            out = []; inp2 = False
            for x in k.ins:
                if 'phase 2 (side' in x.text: inp2 = True
                if x.op == 's_endpgm': inp2 = False
                if inp2 and (x.op == 's_cbranch_vccnz' or (x.op == 'buffer_load_dwordx4' and 'sc1' in x.text and ' a[' not in x.text)): continue
                out.append(x)
            k.ins = out
        if self.opt & {'nomfma', 'noread', 'nobar', 'nofill'}:
            out = []; inloop = False
            for x in k.ins:
                if 'k-step' in x.text: inloop = True
                if 'loop end' in x.text: inloop = False
                if inloop:
                    if 'nomfma' in self.opt and x.kind == 'mfma': continue
                    if 'noread' in self.opt and x.kind == 'ds': continue
                    if 'nobar' in self.opt and x.op == 's_barrier': continue
                    if 'nofill' in self.opt and (x.op == 's_cbranch_vccnz' or (x.kind == 'vmem' and not x.lds_dma) or 'v253' in x.text): continue
                out.append(x)
            k.ins = out
        body = k.finish()
        hdr = open("header.txt").read()
        return (hdr + f"""; @launch grid=(256,1,1) block=(256,1,1) lds=163840
.amdgcn_target "amdgcn-amd-amdhsa--gfx950"
.text
.globl {NAME}
.p2align 8
.type {NAME},@function
{NAME}:
""" + body + f""".section .rodata,"a"
.p2align 6
.amdhsa_kernel {NAME}
  .amdhsa_next_free_vgpr 512
  .amdhsa_next_free_sgpr 102
  .amdhsa_accum_offset 256
  .amdhsa_group_segment_fixed_size 0
  .amdhsa_kernarg_size 136
  .amdhsa_user_sgpr_count 2
  .amdhsa_user_sgpr_kernarg_segment_ptr 1
  .amdhsa_system_sgpr_workgroup_id_x 1
.end_amdhsa_kernel
""")

if __name__ == "__main__":
    import argparse
    ap = argparse.ArgumentParser()
    ap.add_argument("-o", default="k4.s")
    ap.add_argument("--stop", default=None)
    ap.add_argument("--ts", action="store_true")
    ap.add_argument("--spin", type=int, default=0)
    ap.add_argument("--seg", type=int, default=None)
    ap.add_argument("--opt", default="")
    a_ = ap.parse_args()
    g = G(stop=a_.stop, ts=a_.ts, spin=a_.spin, seg=a_.seg, opt=a_.opt.split(","))
    txt = g.build()
    open(a_.o, "w").write(txt)
    print("written", a_.o, "nops inserted:", g.k.nops, "lines:", txt.count("\n"), g.info)
```

```python
import sys, math, struct
sys.path.insert(0, "gen")
from emit import *

NAME = "parallel_sum__ssm_conv_s5__mixer_channel_mlp__prompt_kernel"
WS_EPOCH = 0
WS_FB = 0x1000
WS_FA = 0x11000
WS_AGG = 0x31000
WS_STG = 0x59000
WS_WSG = 0x61000
WS_B2S = [0x70000, 0x200000]
WS_A2 = [0x400000, 0x900000]
WS_PART = 0xF00000
WS_TS = 0x1400000
WS_SIZE = 0x1500000
FLS = 64
S_W = 3
SRD_X, SRD_W, SRD_WS, SRD_OUT, SRD_T1, SRD_T2 = 4, 8, 12, 16, 20, 24
S_TAG, S_TAG2, S_I, S_J, S_PAT = 28, 29, 30, 31, 32
S_PW = 33
S_FLAG = 34
S_OUT = 35
S_XO = 36
S_WO = 40
S_MX, S_MW = 45, 46
S_B2 = 47
S_T = 48
P0 = 64
def ptr(n): return s(P0 + 2*n, 2)
S_PAT32 = P0 + 18
S_NM = P0 + 19
S_WRAP, S_ST1, S_ST2 = 2, 0, 1
S_TS = 98
S_ST1K, S_ST2K = P0 + 2, P0 + 3
LOG2E = 1.4426950408889634
EPS = 1e-5
def fbits(x): return "0x%08x" % struct.unpack("<I", struct.pack("<f", x))[0]
POLL_MAX = 20000
LDS_RED = 16384
RED_RS = 336
RED_W = 64 * RED_RS
L_R = 106496
WS4 = s(SRD_WS, 4)
NOP = lambda: None

ST = dict(E=200, CH=201, PUB=202, TB=203, GA=204, VA=205, QE=206, CW=207, CR=208, TW=209, TR=210, PAT=211,
          RD=212, ROW=236, C4=241, RW=246)
S_MK = 68
S_AG1, S_AG4, S_A2B, S_RX, S_RL, S_RJ = 78, 79, 84, 85, 86, 87
class C5:
    def __init__(self, re, im=None, st=1):
        self.re = re; self.im = re + 1 if im is None else im; self.st = 2 if im is None else st
    def r(self, b): return self.re + self.st*b
    def i(self, b): return self.im + self.st*b

class G:
    def __init__(self, stop=None, ts=False, spin=0, seg=None, opt=()):
        self.k = Emit(); self.slow = []; self.stop = stop; self.ts = ts; self.spin = spin; self.seg = seg; self.opt = set(opt)

    def P(self, name, default):
        for o in self.opt:
            if o.startswith(name + "="): return float(o.split("=")[1])
        return default
    def stamp(self, idx):
        k = self.k
        if self.seg == idx:
            k("s_memrealtime s[98:99]\ns_waitcnt lgkmcnt(0)\ns_sub_u32 s101, s98, s100")
        if not self.ts: return
        k(f"{'s_memtime' if 'cyc' in self.opt else 's_memrealtime'} {s(S_TS,2)}")
        k("s_waitcnt lgkmcnt(0)")
        k(f"v_writelane_b32 v255, s{S_TS}, {idx}")
    def fine(self, idx):
        if 'fine' in self.opt: self.stamp(idx)
    def fine3(self):
        if 'fine3' in self.opt:
            self.stamp(16 + self.nf3); self.nf3 += 1
    def fine2(self):
        if 'fine2' in self.opt:
            self.stamp(16 + self.nf2); self.nf2 += 1
    def stamp_flush(self):
        if not self.ts: return
        self.k(f"""s_lshl_b32 s{S_T}, s99, 2
        v_readlane_b32 s{S_T}, v255, 63
        s_nop 3
        s_lshl_b32 s{S_T}, s{S_T}, 2
        s_add_u32 s{S_T}, s{S_T}, s{S_W}
        s_lshl_b32 s{S_T}, s{S_T}, 8
        s_add_u32 s{S_T}, s{S_T}, {WS_TS}
        v_mbcnt_lo_u32_b32 v254, -1, 0
        v_mbcnt_hi_u32_b32 v254, -1, v254
        v_lshlrev_b32 v254, 2, v254
        buffer_store_dword v255, v254, {WS4}, s{S_T} offen""")
    def early_stop(self, name):
        if self.stop != name: return False
        self.k("s_waitcnt vmcnt(0)"); self.stamp(13); self.stamp_flush(); self.k("s_endpgm")
        return True

    def srd(self, base, pn, size):
        self.k(f"""s_mov_b32 s{base}, s{P0+2*pn}
        s_and_b32 s{base+1}, s{P0+2*pn+1}, 0xffff
        s_mov_b32 s{base+2}, {size}
        s_mov_b32 s{base+3}, 0x20000""")
    def verify(self, check, reload, name, checked=False):
        k = self.k
        slow = k.newlabel(name); done = k.newlabel(name + "d")
        if not checked: check()
        k(f"s_cbranch_vccnz {slow}")
        k.label(done)
        self.slow.append((slow, done, check, reload))
    def flush_slow(self):
        k = self.k
        for slow, done, check, reload in self.slow:
            top = k.newlabel(slow + "t")
            k.label(slow)
            if self.ts:
                bit = {'pb': 1, 'pg': 2, 'ps': 2, 'pc': 4, 'va': 8, 'fa': 16, 'pp': 32, 'pe': 64}[slow[:2]]
                k(f"v_readlane_b32 s{S_T+15}, v255, 15\ns_nop 3\ns_or_b32 s{S_T+15}, s{S_T+15}, {bit}\nv_writelane_b32 v255, s{S_T+15}, 15")
            k(f"s_mov_b32 s{S_T+15}, {POLL_MAX}")
            k.label(top)
            reload()
            check()
            k(f"""s_cbranch_vccz {done}
            s_sub_u32 s{S_T+15}, s{S_T+15}, 1
            s_cmp_lg_u32 s{S_T+15}, 0
            s_cbranch_scc1 {top}
            s_branch {done}""")
        self.slow = []
    def set_flag(self, soff, vtmp, off=0):
        return self.k(f"""v_mov_b32 v{vtmp}, s{S_TAG}
        s_mov_b64 exec, 1
        buffer_store_dword v{vtmp}, off, {WS4}, s{soff} offset:{off} sc1
        s_mov_b64 exec, -1""")
    def capture(self, fn):
        real = self.k; rec = Emit(); rec._lab = real._lab
        self.k = rec
        try: fn(rec)
        finally: self.k = real
        L = [x.text for x in rec.ins]
        assert all(x.kind in ("salu", "valu", "trans") and not x.op.startswith("s_waitcnt") for x in rec.ins)
        out = []; i = 0
        while i < len(L):
            if L[i].startswith(("s_cmp", "s_bitcmp")):
                j = i + 1; last = i
                while j < len(L) and L[j].startswith(("s_cselect", "s_mov")):
                    if L[j].startswith("s_cselect"): last = j
                    j += 1
                out.append("\n".join(L[i:last+1])); i = last + 1
            else:
                out.append(L[i]); i += 1
        return out
    def emit(self, L):
        for x in L:
            x() if callable(x) else self.k(x)
    def sprinkle(self, work, q, lead=0):
        k = self.k; q = list(q); n0 = len(q); masked = False
        for i, w_ in enumerate(work):
            self.emit([w_])
            if isinstance(w_, str):
                if w_.startswith(("s_mov_b32 exec", "s_mov_b64 exec, s")) or "s_cselect_b64 exec" in w_: masked = True
                if w_.startswith("s_mov_b64 exec, -1"): masked = False
            while q and not masked and i >= lead and (n0 - len(q) + 1)*(len(work) - lead) <= (i - lead + 1)*(n0 + 1) + n0:
                q.pop(0)()
        for f in q: f()
    def cpow(self, dre, dim, n, zr, zi, t):
        return [f"v_mul_f32 v{t}, {n}, v{zi}", f"v_mul_f32 v{dre}, {n}, v{zr}", f"v_fract_f32 v{t}, v{t}",
                f"v_exp_f32 v{dre}, v{dre}", f"v_sin_f32 v{dim}, v{t}", f"v_cos_f32 v{t}, v{t}",
                f"v_mul_f32 v{dim}, v{dim}, v{dre}", f"v_mul_f32 v{dre}, v{t}, v{dre}"]
    def cmul5(self, d, x, y, c=None):
        L = []
        for b in range(5):
            L.append(f"v_mul_f32 v{d.r(b)}, v{x.r(b)}, v{y.r(b)}" if c is None else f"v_fma_f32 v{d.r(b)}, v{x.r(b)}, v{y.r(b)}, v{c.r(b)}")
            L.append(f"v_mul_f32 v{d.i(b)}, v{x.r(b)}, v{y.i(b)}" if c is None else f"v_fma_f32 v{d.i(b)}, v{x.r(b)}, v{y.i(b)}, v{c.i(b)}")
        for b in range(5):
            L.append(f"v_fma_f32 v{d.r(b)}, -v{x.i(b)}, v{y.i(b)}, v{d.r(b)}")
            L.append(f"v_fma_f32 v{d.i(b)}, v{x.i(b)}, v{y.r(b)}, v{d.i(b)}")
        return L
    def div20(self, q, r, x):
        return [f"v_mul_u32_u24 v{q}, 3277, v{x}", f"v_lshrrev_b32 v{q}, 16, v{q}", f"v_mul_u32_u24 v{r}, 20, v{q}", f"v_sub_u32 v{r}, v{x}, v{r}"]

    def prologue(self):
        k = self.k
        k(f"""s_cmp_ge_u32 s2, 256
        s_cbranch_scc1 L_end""")
        if self.spin: k("s_memrealtime s[100:101]")
        if 'align' in self.opt:
            k("""s_memrealtime s[98:99]
            s_waitcnt lgkmcnt(0)
            s_add_u32 s100, s98, 300
            s_and_b32 s100, s100, 0xfffffc00
            s_add_u32 s100, s100, 1024""")
            k.label("L_align")
            k("""s_memrealtime s[98:99]
            s_waitcnt lgkmcnt(0)
            s_cmp_lt_u32 s98, s100
            s_cbranch_scc1 L_align""")
        k(f"""s_load_dwordx16 {s(P0,16)}, s[0:1], 0
        s_load_dwordx16 {s(P0+16,16)}, s[0:1], 64
        s_load_dwordx2 {s(P0+32,2)}, s[0:1], 128""")
        if 'nopf' not in self.opt:
            k(f"""s_getpc_b64 {s(S_T,2)}""")
            k.label("L_pc")
            k(f"""s_bitcmp1_b32 s2, 0
            s_cselect_b32 s{S_T+2}, L_mlp-L_pc, 0
            s_add_u32 s{S_T}, s{S_T}, s{S_T+2}
            s_addc_u32 s{S_T+1}, s{S_T+1}, 0
            s_lshr_b32 s{S_T+2}, s2, 3
            s_lshl_b32 s{S_T+2}, s{S_T+2}, 10
            v_lshl_add_u32 v254, v0, 2, s{S_T+2}
            global_load_dword v254, v254, {s(S_T,2)}""")
        k("s_bitcmp1_b32 s2, 0\ns_cbranch_scc1 L_mlp")
        self.LV = 252; self.PV = 253

    def common_a(self):
        k = self.k
        if self.ts: k("v_mov_b32 v255, 0\nv_writelane_b32 v255, s2, 63")
        k(f"""v_lshrrev_b32 v1, 6, v0
        v_and_b32 v0, 63, v0
        v_readfirstlane_b32 s{S_W}, v1
        s_bfe_u32 s{S_T}, s2, 0x20001
        s_lshr_b32 s{S_T+1}, s2, 6           ; c = id>>6
        s_lshl_b32 s{S_I}, s{S_T+1}, 2
        s_add_u32 s{S_I}, s{S_I}, s{S_T}
        s_bfe_u32 s{S_J}, s2, 0x30003        ; j = (id>>3)&7
        s_lshl_b32 s{S_T}, s{S_I}, 3
        s_add_u32 s{S_T}, s{S_T}, s{S_J}
        s_lshl_b32 s{S_T}, s{S_T}, 2
        s_add_u32 s{S_PW}, s{S_T}, s{S_W}    ; (i*8+j)*4+w
        s_lshl_b32 s{S_FLAG}, s{S_PW}, 6
        s_lshl_b32 s{S_MX}, s{S_W}, 12
        s_lshl_b32 s{S_T+2}, s{S_I}, 7
        s_lshl_b32 s{S_T+3}, s{S_W}, 5
        s_add_u32 s{S_T+2}, s{S_T+2}, s{S_T+3}
        s_mul_i32 s{S_XO}, s{S_T+2}, 1280
        v_lshrrev_b32 v11, 4, v0                 ; g
        v_and_b32 v13, 7, v0
        v_xor_b32 v12, v13, v11
        v_lshlrev_b32 v12, 4, v12
        v_lshrrev_b32 v3, 3, v0
        v_mul_u32_u24 v3, 1280, v3
        v_lshl_add_u32 v253, v13, 4, v3          ; (l>>3)*1280 + (l&7)*16
        v_add_u32 v3, v3, v12                    ; (l>>3)*1280 + swz
        v_lshlrev_b32 v252, 4, v0
        """)
    def common_b(self):
        k = self.k
        k("s_waitcnt lgkmcnt(0)")
        if self.spin: k("s_mov_b32 s101, 0")
        k(f"s_load_dword s{S_TAG}, {ptr(16)}, {WS_EPOCH}")
        k(f"""s_mov_b32 s{SRD_X}, s{P0}
        s_mov_b32 s{SRD_X+1}, s{P0+1}
        s_mov_b32 s{SRD_X+2}, 2621440
        s_mov_b32 s{SRD_X+3}, 0x20000
        s_mov_b32 s{SRD_WS}, s{P0+32}
        s_mov_b32 s{SRD_WS+1}, s{P0+33}
        s_mov_b32 s{SRD_WS+2}, {WS_SIZE}
        s_mov_b32 s{SRD_WS+3}, 0x20000""")

    def make_tag(self):
        self.k(f"""s_waitcnt lgkmcnt(0)
        s_bitcmp1_b32 s{S_TAG}, 0
        s_cselect_b32 s{S_PAT}, 0x10000, 1        ; payload tag bits alternate from launch to launch
        s_cselect_b32 s{S_PAT32}, 2, 1
        s_mul_i32 s{S_TAG}, s{S_TAG}, 0x9E3779B1
        s_add_u32 s{S_TAG}, s{S_TAG}, 0x7F4A7C15
        s_and_b32 s{S_TAG}, s{S_TAG}, 0xfffefffc
        s_or_b32 s{S_TAG}, s{S_TAG}, s{S_PAT}
        s_or_b32 s{S_TAG}, s{S_TAG}, s{S_PAT32}
        s_xor_b32 s{S_TAG2}, s{S_TAG}, 0x5bd1e995
        s_brev_b32 s{S_TAG2}, s{S_TAG2}
        s_mov_b32 s{S_NM}, 0xfffefffe""")

    def rowstat_setup(self, s_row, s_cl, va, vr):
        self.k(f"""v_min_u32 v{vr}, s{s_cl}, v11
        v_mul_u32_u24 v{va}, 1280, v{vr}
        v_and_b32 v13, 15, v0
        v_lshl_add_u32 v{va}, v13, 4, v{va}
        v_lshlrev_b32 v{vr}, 4, v{vr}
        s_mul_i32 s{s_row}, s{s_row}, 1280""")
    def rowstat_loads(self, srd, s_row, va, R0):
        L = []
        for q in range(5):
            def f(q=q): self.rs_tok[q] = self.k(f"buffer_load_dwordx4 {v(R0+4*q,4)}, v{va}, {s(srd,4)}, s{s_row} offen offset:{256*q}")
            L.append(f)
        self.rs_tok = {}
        return L
    def rowstat_fill(self, R0, A0, T0, vr, s_dst, sq=True):
        k = self.k; L = []
        for q in range(20):
            if q % 4 == 0: L.append(lambda q=q: k.wait_vm(self.rs_tok[q//4]))
            t0, t1 = T0 + 2*(q % 2), T0 + 2*(q % 2) + 1
            L += [f"v_lshlrev_b32 v{t0}, 16, v{R0+q}", f"v_and_b32 v{t1}, 0xffff0000, v{R0+q}"]
            if q == 0: L += [f"v_add_f32 v{A0}, v{t0}, v{t1}", f"v_mul_f32 v{A0+2}, v{t0}, v{t0}", f"v_fmac_f32 v{A0+2}, v{t1}, v{t1}"]
            else: L += [f"v_add_f32 v{A0}, v{A0}, v{t0}", f"v_fmac_f32 v{A0+2}, v{t0}, v{t0}", f"v_add_f32 v{A0}, v{A0}, v{t1}", f"v_fmac_f32 v{A0+2}, v{t1}, v{t1}"]
        L += [f"v_mov_b32 v{A0+1}, s{S_TAG}", f"v_mov_b32 v{A0+3}, s{S_TAG2}"]
        for r in (8, 4, 2, 1):
            L += [f"v_add_f32_dpp v{A0}, v{A0}, v{A0} row_ror:{r} row_mask:0xf bank_mask:0xf", f"v_add_f32_dpp v{A0+2}, v{A0+2}, v{A0+2} row_ror:{r} row_mask:0xf bank_mask:0xf"]
        if not sq: L = [x for x in L if callable(x) or not x.split(",")[0].endswith((f"v{A0+2}", f"v{A0+3}"))]
        L.append(lambda: k(f"""s_mov_b32 exec_lo, 0x00010001
        s_mov_b32 exec_hi, 0x00010001
        buffer_store_dwordx{4 if sq else 2} {v(A0,4 if sq else 2)}, v{vr}, {WS4}, s{s_dst} offen sc1
        s_mov_b64 exec, -1"""))
        return L
    def rowstat_batch(self, R0, A0, vr, s_dst, sq=True):
        k = self.k
        k.wait_vm(self.rs_tok[4])
        k(f"s_mov_b32 s{S_T+4}, 0x3f803f80\nv_mov_b32 v{A0+1}, s{S_TAG}")
        if sq: k(f"v_mov_b32 v{A0+3}, s{S_TAG2}")
        for q in range(20):
            k(f"v_dot2_f32_bf16 v{A0}, v{R0+q}, s{S_T+4}, {'0' if q == 0 else v(A0)}")
            if sq: k(f"v_dot2_f32_bf16 v{A0+2}, v{R0+q}, v{R0+q}, {'0' if q == 0 else v(A0+2)}")
        for r in (8, 4, 2, 1):
            k(f"v_add_f32_dpp v{A0}, v{A0}, v{A0} row_ror:{r} row_mask:0xf bank_mask:0xf")
            if sq: k(f"v_add_f32_dpp v{A0+2}, v{A0+2}, v{A0+2} row_ror:{r} row_mask:0xf bank_mask:0xf")
        k(f"""s_mov_b32 exec_lo, 0x00010001
        s_mov_b32 exec_hi, 0x00010001
        buffer_store_dwordx{4 if sq else 2} {v(A0,4 if sq else 2)}, v{vr}, {WS4}, s{s_dst} offen sc1
        s_mov_b64 exec, -1""")
    @staticmethod
    def cost(x):
        if callable(x): return 1
        if x.startswith(("v_exp", "v_rcp", "v_rsq", "v_sin", "v_cos")): return 2
        return 1
    def take_fill(self, fq, n, cap):
        out = []
        while fq:
            x = fq[0]
            if isinstance(x, tuple):
                if x[0] == 'at':
                    if n < x[1]: break
                    fq.pop(0); continue
                if x[0] == 'mark':
                    self.marks[x[1]] = n; fq.pop(0); continue
            c = self.cost(x)
            if cap <= 0 or (c > cap and out): break
            cap -= c; out.append(fq.pop(0))
        return out
    def dma_reset(self):
        self.m0 = None; self.vstage = {}; self.sstage = 0
    def tile_of(self, t, dst):
        o = self.opt; r = S_WRAP
        if 'blk4' in o:
            if t < 8: return f"s_add_u32 s{dst}, s{r}, {t}\ns_and_b32 s{dst}, s{dst}, 3\ns_or_b32 s{dst}, s{dst}, {t & ~3}"
            return f"s_and_b32 s{dst}, s{r}, 1\ns_xor_b32 s{dst}, s{dst}, {t}"
        if 'blk5' in o:
            return f"s_add_u32 s{dst}, s{r}, {t % 5}\ns_cmp_ge_u32 s{dst}, 5\ns_cselect_b32 s{S_ST2K}, 5, 0\ns_sub_u32 s{dst}, s{dst}, s{S_ST2K}\ns_add_u32 s{dst}, s{dst}, {t - t % 5}"
        if 'rotlat' in o:
            return f"s_add_u32 s{dst}, s{r}, {t}\ns_cmp_ge_u32 s{dst}, 10\ns_cselect_b32 s{S_ST2K}, 10, 0\ns_sub_u32 s{dst}, s{dst}, s{S_ST2K}"
        return f"s_xor_b32 s{dst}, s{r}, {t}"
    def rot_setup(self, regs128, regsW):
        k = self.k; o = self.opt; r = S_WRAP
        k(f"s_lshr_b32 s{S_T}, s{S_I}, 2")
        if 'rot0' in o: k(f"s_mov_b32 s{r}, 0")
        elif 'blk4' in o: k(f"s_add_u32 s{r}, s{S_T}, s{S_J}\ns_and_b32 s{r}, s{r}, 3")
        elif 'blk5' in o: k(f"s_add_u32 s{r}, s{S_T}, s{S_J}\ns_and_b32 s{r}, s{r}, 3")
        elif 'rotlat' in o: k(f"s_lshl_b32 s{S_T}, s{S_T}, 1\ns_add_u32 s{S_T}, s{S_T}, s{S_J}\ns_and_b32 s{S_T}, s{S_T}, 7\ns_mul_i32 s{S_T}, s{S_T}, 5\ns_lshr_b32 s{r}, s{S_T}, 2")
        else: k(f"s_add_u32 s{r}, s{S_T}, s{S_J}\ns_and_b32 s{r}, s{r}, 1")
        k(f"s_mov_b32 s{S_ST1}, s{r}\ns_lshl_b32 s{S_ST2}, s{r}, 7")
        for x in regs128: k(f"v_add_u32 v{x}, s{S_ST2}, v{x}")
        if regsW: k(f"s_mul_i32 s{S_ST2}, s{S_ST2}, 1536")
    def dma(self, m0, ld, vreg=None, t=0, step=0):
        k = self.k
        def pre():
            if self.m0 != m0:
                k(f"s_add_u32 m0, s{m0[0]}, {m0[1]}"); self.m0 = m0
            if vreg is not None and self.vstage.get(vreg, 0) != t:
                assert self.vstage.get(vreg, 0) == t - 1
                if self.sstage != t:
                    k(self.tile_of(t, S_ST2))
                    k(f"s_sub_u32 s{S_ST1K}, s{S_ST2}, s{S_ST1}\ns_mov_b32 s{S_ST1}, s{S_ST2}\ns_lshl_b32 s{S_ST1K}, s{S_ST1K}, 7")
                    if self.has_w: k(f"s_mul_i32 s{S_ST2K}, s{S_ST1K}, 1536")
                    self.sstage = t
                k(f"v_add_u32 v{vreg}, s{S_ST1K if step == 128 else S_ST2K}, v{vreg}"); self.vstage[vreg] = t
        return pre, ld

    def unit_decode(self, nunits, U):
        self.k(f"""s_sub_u32 s{S_T}, s{S_PW}, {nunits}
        s_cmp_lt_u32 s{S_PW}, {nunits}
        s_cselect_b32 s{U}, s{S_PW}, s{S_T}
        s_mul_i32 s{S_T+2}, s{U}, 6554
        s_lshr_b32 s{S_T+2}, s{S_T+2}, 16
        s_mul_i32 s{S_T}, s{S_T+2}, 10
        s_sub_u32 s{S_T}, s{U}, s{S_T}""")

    def b2_setup(self, side):
        k = self.k; vl = self.PV
        S = [40, 48][side]; KS = [10, 12][side]
        if side == 0:
            V = f"""v_min_u32 v{vl}, 14, v0
            v_mul_u32_u24 v{vl+1}, 86, v{vl}
            v_lshrrev_b32 v{vl+1}, 8, v{vl+1}
            v_mul_u32_u24 v{vl+1}, 7, v{vl+1}
            v_add_lshl_u32 v{vl}, v{vl}, v{vl+1}, 6"""
            L = f"""s_mul_i32 s{S_T+12}, s{S_W}, 10
            s_lshr_b32 s{S_T+12}, s{S_T+12}, 2
            s_mul_i32 s{S_T+3}, s{S_J}, 50"""
        else:
            V = f"""v_min_u32 v{vl}, 23, v0
            v_lshrrev_b32 v{vl+1}, 1, v{vl}
            v_lshlrev_b32 v{vl+1}, 3, v{vl+1}
            v_add_lshl_u32 v{vl}, v{vl}, v{vl+1}, 6"""
            L = f"""s_mul_i32 s{S_T+12}, s{S_W}, 120
            s_mul_i32 s{S_T+3}, s{S_J}, 5
            s_lshr_b32 s{S_T+3}, s{S_T+3}, 2"""
        k(L + f"""
        s_add_u32 s{S_T+12}, s{S_T+12}, s{S_T+3}
        s_lshl_b32 s{S_T+12}, s{S_T+12}, 6
        s_add_u32 s{S_T+12}, s{S_T+12}, {WS_FB + side*512*FLS}
        s_mul_i32 s{S_B2}, s{S_J}, {5*S}
        s_mul_i32 s{S_T+3}, s{S_W}, {KS}
        s_add_u32 s{S_B2}, s{S_B2}, s{S_T+3}
        s_lshl_b32 s{S_B2}, s{S_B2}, 10
        s_add_u32 s{S_B2}, s{S_B2}, {WS_B2S[side]}""")
        self.order = [[0, 5, 1, 6, 2, 7, 3, 8, 4, 9], [0, 3, 6, 9, 1, 4, 7, 10, 2, 5, 8, 11]][side]
        self.b2tok = {}; self.b2q = []
        for ss in self.order:
            for cc in range(5):
                def ld(ss=ss, cc=cc):
                    k = self.k
                    k(f"s_add_u32 s{P0+30}, s{S_B2}, {(cc*S + ss)*1024}")
                    self.b2tok[ss, cc] = k(f"buffer_load_dwordx4 {a((ss*5+cc)*4,4)}, v{self.LV}, {WS4}, s{P0+30} offen sc1")
                self.b2q.append(ld)
        return [x.strip() for x in V.split("\n")]
    def touch(self, side, vt):
        k = self.k
        nx = 20; nw = [25, 30][side]
        def f1():
            k(f"""s_add_u32 s{S_T}, s{S_PW}, {512*side}
            s_mul_i32 s{S_T}, s{S_T}, {nx*128}
            v_min_u32 v{vt}, {nx-1}, v0
            v_lshlrev_b32 v{vt}, 7, v{vt}
            buffer_load_dword v{vt}, v{vt}, {s(SRD_X,4)}, s{S_T} offen""")
        def f2():
            if side == 0: k(f"s_lshr_b32 s{S_T}, s{S_PW}, 2\ns_lshl_b32 s{S_T}, s{S_T}, 1\ns_and_b32 s{S_T+1}, s{S_W}, 1\ns_add_u32 s{S_T}, s{S_T}, s{S_T+1}")
            else: k(f"s_mov_b32 s{S_T}, s{S_PW}")
            k(f"""s_mul_i32 s{S_T}, s{S_T}, {nw*128}
            v_min_u32 v{vt+1}, {nw-1}, v0
            v_lshlrev_b32 v{vt+1}, 7, v{vt+1}
            buffer_load_dword v{vt+1}, v{vt+1}, {s(SRD_W,4)}, s{S_T} offen""")
        def f3():
            k(f"""v_min_u32 v{vt}, 9, v0
            v_lshlrev_b32 v{vt}, 21, v{vt}
            v_min_u32 v{vt+1}, 2, v0
            v_lshlrev_b32 v{vt+1}, 21, v{vt+1}
            buffer_load_dword v{vt}, v{vt}, {WS4}, 0 offen offset:2048
            global_load_dword v{vt+1}, v{vt+1}, {ptr(14)}""")
            if side == 0:
                k(f"""v_mov_b32 v{vt-2}, 0
                global_load_dword v{vt-1}, v{vt-2}, {ptr(8)}
                global_load_dword v{vt-2}, v{vt-2}, {ptr(13)}""")
        if 'tlb' in self.opt: return [f3]
        return [f1, f2] if 'touch' in self.opt else []
    def b2_take(self, n):
        out = self.b2q[:n]; self.b2q = self.b2q[n:]
        return out
    def b2_poll(self):
        self.pbtok = self.k(f"buffer_load_dword v254, v{self.PV}, {WS4}, s{S_T+12} offen sc1")
    def b2_check(self):
        k = self.k
        k.wait_vm(self.pbtok)
        def rl(): k(f"buffer_load_dword v254, v{self.PV}, {WS4}, s{S_T+12} offen sc1\ns_waitcnt vmcnt(0)")
        self.verify(lambda: k(f"v_cmp_ne_u32 vcc, s{S_TAG}, v254"), rl, "pb")

    TB_RS = 184
    def ssm(self):
        k = self.k
        ACC = 16; FR = [96, 144]
        XE, XO, WA, WB = 1, 2, 3, 4
        PV = self.PV; LV = self.LV; RS = self.TB_RS
        STG0, STGS = 16384, 36864
        S_RSROW, SW0, S_GW, S_GT, D2, S_RSDST, S_FB = S_T+5, S_T+6, S_T+8, S_T+9, S_T+10, S_T+13, S_T+14
        acc = lambda a_, tt: ACC + (a_*10 + tt)*4
        k.c("================ SSM side, phase 1")
        self.common_a()
        self.nf3 = 0; self.marks = {}
        k(f"""v_lshrrev_b32 v13, 3, v0
        v_and_b32 v13, 3, v13
        v_lshrrev_b32 v15, 5, v0
        v_lshl_add_u32 v13, v15, 3, v13
        v_mul_u32_u24 v{XE}, 1280, v13
        v_add_u32 v{XE}, v{XE}, v12
        v_xor_b32 v{XO}, 64, v{XE}
        s_and_b32 s{S_T+4}, s{S_W}, 1
        s_lshl_b32 s{S_T+1}, s{S_T+4}, 6
        v_xor_b32 v{WA}, s{S_T+1}, v{WA}
        v_xor_b32 v{WB}, 64, v{WA}
        s_add_u32 s{S_XO+1}, s{S_XO}, {16*1280 - 1024}
        s_add_u32 s{S_XO+2}, s{S_XO}, {4*1280 - 2048}
        s_add_u32 s{S_XO+3}, s{S_XO}, {20*1280 - 3072}""")
        stage_tok = {}; stage_cnt = {}
        self.dma_reset(); self.has_w = False
        self.rot_setup([XE, XO, WA, WB], False)
        self.common_b()
        self.stamp(0); self.fine3()
        def dma_list(t):
            base = STG0 + (t % 4)*STGS
            L = []
            def mk(ld):
                def f():
                    stage_tok[t] = k(ld); stage_cnt[t] = stage_cnt.get(t, 0) + 1
                return f
            for e in range(4):
                vr = XE if e % 2 == 0 else XO
                L.append(self.dma((S_MX, base), mk(f"buffer_load_dwordx4 v{vr}, {s(SRD_X,4)}, s{S_XO+e} offen offset:{e*1024} lds"), vr, t, 128))
            for e in range(5):
                vr = WA if e % 2 == 0 else WB
                L.append(self.dma((S_MW, base + 16384 + (e//4)*4096), mk(f"buffer_load_dwordx4 v{vr}, {s(SRD_W,4)}, s{S_WO+e} offen offset:{(e%4)*1024} lds"), vr, t, 128))
            return L
        d0 = dma_list(0)
        for p in d0[:4]: self.emit(p)
        k(f"""s_cmp_lt_u32 s{S_W}, 2
        s_cselect_b32 s{SRD_W}, s{P0+6}, s{P0+8}
        s_cselect_b32 s{SRD_W+1}, s{P0+7}, s{P0+9}
        s_mov_b32 s{SRD_W+2}, 819200
        s_mov_b32 s{SRD_W+3}, 0x20000
        s_mul_i32 s{S_T+7}, s{S_J}, 80
        s_mul_i32 s{S_T+3}, s{S_T+4}, 40
        s_add_u32 s{S_T+2}, s{S_T+7}, s{S_T+3}
        s_mul_i32 s{S_WO}, s{S_T+2}, 1280
        s_add_u32 s{S_WO+1}, s{S_WO}, {8*1280 - 1024}
        s_add_u32 s{S_WO+2}, s{S_WO}, {16*1280 - 2048}
        s_add_u32 s{S_WO+3}, s{S_WO}, {24*1280 - 3072}
        s_add_u32 s{S_WO+4}, s{S_WO}, {32*1280}
        s_mul_i32 s{S_MW}, s{S_W}, 5120""")
        self.emit(d0[4])
        VLR, VLI, VDT, ZR, ZI, VT, VP, TA, TB_ = 218, 219, 220, 221, 222, 223, 224, 225, 226
        self.emit(self.div20(VT, VP, 0))
        k(f"""s_mul_i32 s{S_T+1}, s{S_W}, 20
        v_add_u32 v{VP}, s{S_T+1}, v{VP}
        v_add_lshl_u32 v{VDT}, v{VP}, s{S_T+7}, 1""")
        def vec():
            k(f"global_load_ushort v{VLR}, v{VDT}, {ptr(1)}\nglobal_load_ushort v{VLI}, v{VDT}, {ptr(2)}")
            self.vec_tok = k(f"global_load_ushort v{VDT}, v{VDT}, {ptr(7)}")
        d1 = dma_list(1)
        R0, A0, T0 = 192, 212, 227
        rs = self.rowstat_loads(SRD_T1, S_RSROW, 15, R0)
        def setup(k):
            k(f"""s_cmp_lt_u32 s{S_I}, 8
            s_cselect_b32 s{SRD_T1}, s{P0+6}, s{P0+8}
            s_cselect_b32 s{SRD_T1+1}, s{P0+7}, s{P0+9}
            s_mov_b32 s{SRD_T1+2}, 819200
            s_mov_b32 s{SRD_T1+3}, 0x20000
            s_mul_i32 s{S_T+4}, s{S_W}, 3
            s_and_b32 s{S_T+2}, s{S_I}, 7
            s_mul_i32 s{S_T+2}, s{S_T+2}, 10
            s_add_u32 s{S_T+2}, s{S_T+2}, s{S_T+7}
            s_add_u32 s{S_RSROW}, s{S_T+2}, s{S_T+4}     ; rows 80j + 10(i%8) + 3w + ..
            s_mul_i32 s{S_T+3}, s{S_J}, 160
            s_mul_i32 s{S_T+6}, s{S_I}, 10
            s_add_u32 s{S_T+3}, s{S_T+3}, s{S_T+6}
            s_add_u32 s{S_T+3}, s{S_T+3}, s{S_T+4}
            s_lshl_b32 s{S_T+3}, s{S_T+3}, 4
            s_add_u32 s{S_RSDST}, s{S_T+3}, {WS_WSG}
            s_cmp_eq_u32 s{S_W}, 3
            s_cselect_b32 s{S_T+1}, 0, 2""")

            self.rowstat_setup(S_RSROW, S_T+1, 15, 14)

            self.unit_decode(400, S_FB)
            k(f"""s_mul_i32 s{S_T+1}, s{S_T+2}, {16*1280}
            s_lshl_b32 s{S_T+3}, s{S_T}, 7
            s_add_u32 s{SW0}, s{S_T+1}, s{S_T+3}
            s_add_u32 s{SW0+1}, s{SW0}, {8*1280 - 1024}
            s_mul_i32 s{S_T+3}, s{S_T+2}, 40
            s_lshl_b32 s{S_T+4}, s{S_T}, 2
            s_add_u32 s{S_T+3}, s{S_T+3}, s{S_T+4}
            s_lshl_b32 s{S_T+3}, s{S_T+3}, 10
            s_add_u32 s{D2}, s{S_T+3}, {WS_B2S[0]}
            s_lshl_b32 s{S_FB}, s{S_FB}, 6
            s_add_u32 s{S_FB}, s{S_FB}, {WS_FB}
            s_mul_i32 s{S_GW}, s{S_J}, 2560
            s_mul_i32 s{S_T}, s{S_W}, 640
            s_add_u32 s{S_GW}, s{S_GW}, s{S_T}
            s_add_u32 s{S_GW}, s{S_GW}, {WS_WSG}
            s_lshl_b32 s{S_GT}, s{S_I}, 11
            s_lshl_b32 s{S_T}, s{S_W}, 9
            s_add_u32 s{S_GT}, s{S_GT}, s{S_T}
            s_add_u32 s{S_GT}, s{S_GT}, {WS_STG}
            v_and_b32 v11, 15, v0
            v_lshrrev_b32 v12, 4, v0
            v_lshrrev_b32 v13, 1, v11
            v_xor_b32 v13, v13, v12
            v_lshlrev_b32 v13, 4, v13
            v_lshl_add_u32 v13, v11, 7, v13
            v_add_u32 v5, {STG0}, v13
            v_add_u32 v5, s{S_MX}, v5
            v_xor_b32 v6, 64, v5
            v_add_u32 v7, {STG0+16384}, v13
            v_xor_b32 v8, 64, v7
            v_add_u32 v9, {2*STGS}, v5
            v_add_u32 v10, {2*STGS}, v6
            v_add_u32 v250, {2*STGS}, v7
            v_add_u32 v251, {2*STGS}, v8
            v_lshlrev_b32 v13, 7, v11
            v_lshrrev_b32 v12, 5, v0
            v_lshl_add_u32 v13, v12, 11, v13
            v_bfe_u32 v12, v0, 4, 1
            v_lshl_add_u32 v13, v12, 4, v13
            v_add_u32 v13, s{S_MX}, v13
            v_mul_u32_u24 v11, {RS}, v11             ; table row of this lane's column
            v_mul_u32_u24 v{TA}, {RS}, v{VP}
            v_and_b32 v216, 31, v0
            v_lshlrev_b32 v216, 4, v216
            v_min_u32 v217, 39, v0
            v_lshlrev_b32 v217, 4, v217""")
            self.b2v = self.b2_setup(0)
            self.srd(SRD_T2, 5, 819200)
            self.srd(SRD_OUT, 6, 819200)
            if 'stashpre' in self.opt: self.ssm_stash(k, VT, VP)
        pre_mem = [(lambda p=p: self.emit(p)) for p in d0[5:]] + [vec] + [(lambda p=p: self.emit(p)) for p in d1[:7]]
        su = self.capture(setup)
        nA = ([i for i, x in enumerate(su) if x.startswith("v_and_b32 v230")] + [len(su)*7//12])[0]
        stq_ = [] if 'stashpre' in self.opt else self.capture(lambda k_: self.ssm_stash(k_, VT, VP))
        sbat = [int(x) for x in str(int(self.P('sbat', 579)))]
        self.sprinkle(su[:nA], pre_mem[:int(self.P('npre', 7))])
        self.sprinkle(su[nA:], pre_mem[int(self.P('npre', 7)):] + [(lambda p=p: self.emit(p)) for p in d1[7:]])
        b2v = self.b2v; vec_tok = self.vec_tok
        tk = {}
        swq = []
        for e in range(4):
            def f(e=e): tk['d2'] = k(f"buffer_load_dwordx4 v{PV}, {s(SRD_T2 if e < 2 else SRD_OUT,4)}, s{SW0+e%2} offen offset:{(e%2)*1024} lds")
            swq.append(self.dma((S_MX, (e//2)*2048), f))
        self.make_tag()
        k(f"""v_and_b32 v16, 1, v0
        v_lshlrev_b32 v16, 4, v16
        v_lshrrev_b32_e64 v16, v16, s{S_PAT}
        v_and_b32 v16, 1, v16
        v_mul_u32_u24 v16, 0x10001, v16
        v_accvgpr_write_b32 a{ST['PAT']}, v16""")
        RXA = [[5, 6], [9, 10]]; RWA = [[7, 8], [250, 251]]
        rtok = {}
        def mkreads(n):
            st = FR[n % 2]; ks = n % 2; sl = (n//2) % 4; o = (sl % 2)*STGS
            R = [f"ds_read_b128 {v(st+4*a_,4)}, v{RXA[sl//2][ks]} offset:{o+a_*2048}" for a_ in range(2)]
            R += [f"ds_read_b128 {v(st+8+4*tt,4)}, v{RWA[sl//2][ks]} offset:{o+tt*2048}" for tt in range(10)]
            L = []
            for i, r in enumerate(R):
                def f(i=i, r=r): rtok[n, i] = k(r)
                L.append(f)
            return L
        self.fine3()
        k.wait_vm(stage_tok[0])
        self.fine3()
        k("s_barrier")
        self.fine3()
        self.stamp(1)
        k.label("L_ssm_code")
        self.emit(mkreads(0))
        LAM, LAM2, LAM4, WSUM = C5(192), C5(202), C5(212), C5(222)
        AT, BT, TG = 232, 240, 192
        L_AB = 14720
        mq = []
        def q_stage(t):
            for p_, l_ in dma_list(t): mq.append([max(2*(t-3), 0), 1, p_, l_])
        def sw_store(cc):
            def f():
                k.wait_lg(tk['r2'])
                tk['s2'] = k(f"buffer_store_dwordx4 {a(220+4*cc,4)}, v{LV}, {WS4}, s{D2} offen offset:{1024*cc} sc1")
            return f
        def gl1(): k(f"buffer_load_dwordx4 {v(TG,4)}, v216, {WS4}, s{S_GT} offen sc1")
        def gl2(): tk['gr'] = k(f"buffer_load_dwordx2 {v(TG+4,2)}, v217, {WS4}, s{S_GW} offen sc1")
        NSW, NFLAG, NGL, NGC, NPOLL, NCHK = [int(self.P(a_, b_)) for a_, b_ in (('snsw', 3), ('snfl', 9), ('sngl', 13), ('sngc', 16), ('snpo', 14), ('snck', 17))]
        prs, psw, pst = int(self.P('prs', 1)), int(self.P('psw', 2)), int(self.P('pst', 4))
        for t in range(1, 10):
            if t > 1: q_stage(t)
            if t == prs: mq += [[0, 1, None, f] for f in rs]
            if t == psw: mq += [[0, 1, p_, l_] for p_, l_ in swq]
            if t == pst: mq += [[NSW+1, 2, None, sw_store(cc)] for cc in range(4)]
        late = {NGL: [[NGL, 1, None, gl1], [NGL, 1, None, gl2]]}
        late[NPOLL] = late.get(NPOLL, []) + [[NPOLL, 0.5, None, self.b2_poll]]
        def swr():
            k.wait_vm(tk['d2'])
            for ss in range(4): tk['r2'] = k(f"ds_read_b128 {a(220+4*ss,4)}, v13 offset:{32*ss}")
        fq = [lambda: k.wait_vm(vec_tok)]
        fq += [x.strip() for x in f"""v_lshlrev_b32 v{VDT}, 16, v{VDT}
        v_mul_f32 v{VDT}, {fbits(LOG2E)}, v{VDT}
        v_exp_f32 v{VDT}, v{VDT}
        v_lshlrev_b32 v{VLR}, 16, v{VLR}
        v_lshlrev_b32 v{VLI}, 16, v{VLI}
        v_cvt_pk_bf16_f32 v{VDT}, v{VDT}, v{VDT}
        v_and_b32 v{VDT}, 0xffff0000, v{VDT}
        v_mul_f32 v{ZR}, v{VLR}, v{VDT}
        v_mul_f32 v{ZI}, v{VLI}, v{VDT}
        v_mul_f32 v{ZR}, {fbits(LOG2E)}, v{ZR}
        v_mul_f32 v{ZI}, 0.15915494, v{ZI}
        v_accvgpr_write_b32 a250, v{ZR}
        v_accvgpr_write_b32 a251, v{ZI}
        v_accvgpr_write_b32 a252, v{VLR}
        v_accvgpr_write_b32 a253, v{VLI}
        v_mov_b32 v232, {fbits(8.0)}""".split("\n")]
        LM = 240
        P = [self.cpow(LM, LM+1, "1.0", ZR, ZI, 233), self.cpow(248, 249, "v232", ZR, ZI, 235)]
        fq += [x[i] for i in range(8) for x in P]
        fq += [x.strip() for x in f"""v_accvgpr_write_b32 a254, v{LM}
        v_accvgpr_write_b32 a255, v{LM+1}
        v_mul_f32 v{LM+2}, v{LM}, v{LM}
        v_mul_f32 v{LM+3}, v{LM}, v{LM+1}
        v_fma_f32 v{LM+2}, -v{LM+1}, v{LM+1}, v{LM+2}
        v_add_f32 v{LM+3}, v{LM+3}, v{LM+3}
        v_mul_f32 v{LM+4}, v{LM+2}, v{LM+2}
        v_mul_f32 v{LM+5}, v{LM+2}, v{LM+3}
        v_fma_f32 v{LM+4}, -v{LM+3}, v{LM+3}, v{LM+4}
        v_add_f32 v{LM+5}, v{LM+5}, v{LM+5}""".split("\n")]
        rsf = self.rowstat_fill(R0, A0, T0, 14, S_RSDST, sq=False)
        fq += [('at', 3), ('mark', 'rs')]
        NRB = int(self.P('snrb', 3))
        fq += b2v + [('mark', 'gaddr')]
        fq += [('at', (NSW | 1) + 1 + (NSW & 1)*2)] + [f"ds_write_b64 v{TA}, {v(LM+2*q,2)} offset:{144+8*q}" for q in range(3)]
        fq += [('mark', 'table')]
        def flg():
            k.wait_vm(tk['s2']); self.set_flag(S_FB, 15)
        flags = {NFLAG: flg, NSW: swr}
        pre_st = [x.strip() for x in f"""s_lshl_b32 s{S_T}, s{S_W}, 7
        v_lshrrev_b32 v12, 2, v216
        v_add_u32 v12, s{S_T}, v12
        v_add_u32 v12, {L_AB}, v12
        v_lshrrev_b32 v14, 4, v0
        v_lshl_add_u32 v239, v14, 5, s{S_T}
        s_and_b32 s{S_T}, s{S_W}, 1
        s_mul_i32 s{S_T}, s{S_T}, 40
        v_lshrrev_b32 v13, 4, v217
        v_add_u32 v13, s{S_T}, v13
        v_mul_u32_u24 v13, {RS}, v13
        s_lshr_b32 s{S_T}, s{S_W}, 1
        s_lshl_b32 s{S_T}, s{S_T}, 2
        v_add_u32 v13, s{S_T}, v13
        s_mov_b32 s{S_T}, {fbits(1.0/640)}""".split("\n")]
        stq = [x.strip() for x in f"""ds_write_b32 v13, v{TG+4} offset:176
        v_mul_f32 v{TG}, s{S_T}, v{TG}
        v_mul_f32 v15, v{TG}, v{TG}
        v_fma_f32 v15, v{TG+2}, s{S_T}, -v15
        v_max_f32 v15, 0, v15
        v_add_f32 v15, {fbits(EPS)}, v15
        v_rsq_f32 v15, v15
        v_mul_f32_e64 v{TG}, v{TG}, -v15
        ds_write2st64_b32 v12, v15, v{TG} offset0:0 offset1:2""".split("\n")]
        fq += pre_st + [('at', 14)] + [f"ds_read_b64 {v(LAM2.r(b),2)}, v11 offset:{16*b*RS+152}" for b in range(5)]
        fq += [('at', NGC)] + stq + [('mark', 'stats')]
        fq += [f"ds_read_b64 {v(LAM4.r(b),2)}, v11 offset:{16*b*RS+160}" for b in range(5)]
        NRD = int(self.P('snrd', 18))
        fq += [('at', NRD)] + [f"ds_read_b64 {v(LAM.r(b),2)}, v11 offset:{16*b*RS+144}" for b in range(5)]
        fq += [f"ds_read_b128 {v(AT+4*q,4)}, v239 offset:{L_AB+16*(q%2)+512*(q//2)}" for q in (3, 2, 0, 1)]
        fq += [f"ds_read_b64 {v(WSUM.r(b),2)}, v11 offset:{16*b*RS+176}" for b in range(5)]
        credit = 0.0; b2on = False
        for n in range(20):
            st = FR[n % 2]
            k.c(f"---- ssm k-step {n}")
            self.fine(16 + n)
            if n == NGC:
                k.wait_vm(tk['gr'])
                def check():
                    k(f"""v_xor_b32 v15, s{S_TAG}, v{TG+1}
                    v_bitop3_b32 v15, s{S_TAG2}, v{TG+3}, v15 bitop3:0xbe
                    v_bitop3_b32 v15, s{S_TAG}, v{TG+5}, v15 bitop3:0xbe
                    v_cmp_ne_u32 vcc, 0, v15""")
                def rl():
                    gl1(); gl2(); k("s_waitcnt vmcnt(0)")
                self.verify(check, rl, "pg")
            if n == NCHK:
                self.b2_check(); b2on = True
            if n == NGL: assert self.marks['rs'] < n
            if n == NPOLL: assert self.marks['gaddr'] < n
            mq[0:0] = late.get(n, [])
            mem = []
            mmax = int(self.P('smax', 9)) if n < self.P('sfast', 2) else int(self.P('scap', 5))
            while len(mem) < mmax:
                if mq and mq[0][0] <= n: it_ = mq.pop(0)
                elif b2on and self.b2q and len(mem) < self.P('sb2', 5): it_ = [n, 1, None, self.b2q.pop(0)]
                else: break
                mem.append(it_)
            rd = mkreads(n+1) if n + 1 < 20 else []
            slots = [[] for _ in range(20)]
            if n % 2 == 0:
                rslots = [0, 1, 3, 4, 6, 7, 9, 10, 12, 13, 15, 16]; pref = [2, 8, 14, 19, 5, 11, 17, 18, 0, 6, 12, 3, 9, 15, 1, 4]
            else:
                rslots = [4, 5, 6, 8, 9, 10, 12, 13, 14, 16, 17, 18]; pref = [0, 7, 15, 2, 11, 19, 1, 5, 9, 13, 17, 4, 8, 12, 16, 6]
                if n + 1 < 20:
                    T_ = (n + 1)//2
                    def f(T_=T_):
                        assert stage_cnt[T_] == 9
                        if 2*T_ - 1 == NRB: self.rowstat_batch(R0, A0, 14, S_RSDST, sq=False)
                        if 2*T_ - 1 in sbat:
                            j_ = sbat.index(2*T_ - 1); m_ = -(-len(stq_)//len(sbat))
                            self.emit(stq_[j_*m_:(j_+1)*m_])
                        k.wait_both(stage_tok[T_], k.lg_issued)
                        k("s_barrier")
                    slots[3] += [f]
            mslots = sorted(pref[:len(mem)])
            cap = [2]*20
            for sl, r in zip(rslots, rd): slots[sl].append(r); cap[sl] = 1
            for sl, it_ in zip(mslots, mem):
                slots[sl] = [it_[3]] + slots[sl]; cap[sl] -= 1
            if n % 2 == 1 and n + 1 < 20: cap[3] = 0
            i = 0
            for tt in range(10):
                for a_ in range(2):
                    if i in mslots[:len(mem)] and i == 0 and mem[0][2]: mem[0][2]()
                    grp = {0: 1, 2: 9} if n % 2 == 1 else {0: tt, 1: tt, 2: tt, 3: tt, 4: tt, 5: tt, 6: tt, 7: tt, 8: tt, 9: tt} if n == 0 else {0: 3, 4: 6, 7: 9}
                    if a_ == 0 and tt in grp: k.wait_lg(rtok[n, 2+grp[tt]])
                    assert k.lg_done >= rtok[n, 2+tt]
                    c_ = "0" if n == 0 else v(acc(a_, tt), 4)
                    k(f"v_mfma_f32_16x16x32_bf16 {v(acc(a_,tt),4)}, {v(st+4*a_,4)}, {v(st+8+4*tt,4)}, {c_}")
                    self.emit(slots[i])
                    c0 = cap[i]
                    if i + 1 in mslots[:len(mem)]:
                        n0 = len(k.ins); pre_ = mem[mslots.index(i+1)][2]
                        if pre_: pre_()
                        c0 -= len(k.ins) - n0
                    if c0 > 0 and (cap[i] == 2 or i % int(self.P('sden', 1)) == 0): self.emit(self.take_fill(fq, n, c0))
                    if i == 19 and n in flags: flags[n]()
                    i += 1
        self.emit([x for x in fq if not isinstance(x, tuple)])
        assert not mq and self.marks['table'] <= 12 and self.marks['stats'] <= NRD - 2 + (NRD & 1), self.marks
        self.info = f"ssm b2 left {len(self.b2q)} marks {self.marks} tail {len(fq)}"
        k.c('loop end')
        self.stamp(2)
        if self.early_stop("loop"): return
        self.ssm_epilogue(ACC, AT, BT, LAM, LAM2, LAM4, WSUM, L_AB)

    def ssm_stash(self, k, VT, VP):
        RS = self.TB_RS; L_C = 102400
        t0, t1, t2, col, g, seg = 227, 228, 229, 230, 231, 234
        put = lambda n, r: k(f"v_accvgpr_write_b32 a{n}, v{r}")
        k(f"""v_and_b32 v{col}, 15, v0
        v_lshrrev_b32 v{g}, 4, v0
        s_lshl_b32 s{S_T+2}, s{S_W}, 2
        v_add_u32 v{seg}, s{S_T+2}, v{g}
        v_mul_u32_u24 v{t0}, 768, v{seg}
        v_mul_u32_u24 v{t1}, 48, v{col}
        v_add_u32 v{t0}, v{t0}, v{t1}""")
        put(ST['E'], t0)
        k(f"""v_and_b32 v{t0}, 15, v{VP}
        v_lshrrev_b32 v{t2}, 4, v{VP}
        v_mul_u32_u24 v{t1}, 48, v{t0}
        v_lshl_add_u32 v{t1}, v{t2}, 3, v{t1}""")
        put(ST['CH'], t1)
        k(f"""v_min_u32 v{VT}, 2, v{VT}
        v_mul_u32_u24 v{t0}, 160, v{t0}
        v_lshlrev_b32 v{t2}, 5, v{t2}
        v_lshl_add_u32 v{t2}, v{VT}, 3, v{t2}
        v_add3_u32 v{t0}, v{t0}, v{t2}, 0
        v_add_u32 v{t0}, {L_C}, v{t0}""")
        put(ST['CW'], t0)
        k(f"v_lshlrev_b32 v{t0}, 4, v{VP}"); put(ST['PUB'], t0)
        k(f"v_mul_u32_u24 v{t2}, 5, v{VT}\nv_mul_u32_u24 v{t1}, 1280, v{t2}\nv_add_u32 v{t0}, v{t0}, v{t1}"); put(ST['GA'], t0)
        k(f"""v_add_u32 v{t0}, 5, v{t2}
        v_min_u32 v{t0}, s{S_I}, v{t0}
        v_sub_u32 v{t0}, s{S_I}, v{t0}
        v_lshlrev_b32 v{t0}, 7, v{t0}
        v_cvt_f32_u32 v{t0}, v{t0}""")
        put(ST['QE'], t0)
        for q in range(5): k(f"v_add_u32 v{t0}, {q}, v{t2}\nv_cmp_gt_u32 {s(S_MK+2*q,2)}, s{S_I}, v{t0}")
        k(f"v_mul_u32_u24 v{t0}, {RS}, v{VP}"); put(ST['TB'], t0)
        k(f"v_mul_u32_u24 v{t0}, {RS}, v{col}\nv_lshl_add_u32 v{t0}, v{seg}, 3, v{t0}"); put(ST['VA'], t0)
        k(f"v_mul_u32_u24 v{t0}, 160, v{col}\nv_add_u32 v{t0}, {L_C}, v{t0}"); put(ST['CR'], t0)
        k(f"""s_mul_i32 s{S_T+2}, s{S_W}, {RED_W}
        s_add_u32 s{S_T+2}, s{S_T+2}, {LDS_RED}
        v_mul_u32_u24 v{t0}, 80, v{col}
        v_lshl_add_u32 v{t0}, v{g}, 4, v{t0}
        v_add_u32 v{t0}, s{S_T+2}, v{t0}""")
        put(ST['TW'], t0)
        k(f"""v_lshrrev_b32 v{t0}, 2, v{col}
        v_lshl_add_u32 v{t0}, v{g}, 3, v{t0}
        v_mul_u32_u24 v{t0}, 80, v{t0}
        v_and_b32 v{t1}, 3, v{col}
        v_lshl_add_u32 v{t0}, v{t1}, 3, v{t0}
        v_add_u32 v{t0}, s{S_T+2}, v{t0}""")
        put(ST['TR'], t0)
        k(f"""v_mul_u32_u24 v{t0}, {RED_RS}, v{col}
        v_lshl_add_u32 v{t0}, v{g}, 4, v{t0}
        v_add_u32 v{t0}, s{S_T+2}, v{t0}""")
        put(ST['RW'], t0)
        for it in range(5):
            k(f"""v_add_u32 v{t0}, {64*it}, v0
            v_mul_u32_u24 v{t1}, 6554, v{t0}
            v_lshrrev_b32 v{t1}, 16, v{t1}
            v_mul_u32_u24 v{t2}, 10, v{t1}
            v_sub_u32 v{t2}, v{t0}, v{t2}
            v_lshrrev_b32 v{seg}, 4, v{t1}
            v_mul_u32_u24 v{seg}, 48, v{seg}
            v_add_u32 v{t1}, v{t1}, v{seg}
            v_mul_u32_u24 v{t1}, 1280, v{t1}
            v_lshl_add_u32 v{t1}, v{t2}, 4, v{t1}""")
            put(ST['RD']+it, t1)
            for x in self.div20(t1, t2, t0): k(x)
            put(ST['ROW']+it, t1); put(ST['C4']+it, t2)
        k(f"""s_mul_i32 s{S_AG4}, s{S_J}, {16*1280}
        s_add_u32 s{S_AG4}, s{S_AG4}, {WS_AGG}
        s_mul_i32 s{S_AG1}, s{S_I}, 1280
        s_add_u32 s{S_AG1}, s{S_AG1}, s{S_AG4}
        s_lshl_b32 s{S_T+2}, s{S_I}, 3
        s_lshl_b32 s{S_T+3}, s{S_W}, 1
        s_add_u32 s{S_T+2}, s{S_T+2}, s{S_T+3}
        s_mul_i32 s{S_T+2}, s{S_T+2}, 40
        s_mul_i32 s{S_T+3}, s{S_J}, 5
        s_add_u32 s{S_T+2}, s{S_T+2}, s{S_T+3}
        s_lshl_b32 s{S_T+2}, s{S_T+2}, 10
        s_add_u32 s{S_A2B}, s{S_T+2}, {WS_A2[0]}
        s_lshl_b32 s{S_RX}, s{S_I}, 7
        s_lshl_b32 s{S_T+2}, s{S_W}, 4
        s_add_u32 s{S_RX}, s{S_RX}, s{S_T+2}
        s_mul_i32 s{S_RX}, s{S_RX}, 1280
        s_mul_i32 s{S_RJ}, s{S_J}, 160
        s_add_u32 s{S_RX}, s{S_RX}, s{S_RJ}
        s_mul_i32 s{S_RL}, s{S_W}, 5120
        s_add_u32 s{S_RL}, s{S_RL}, {L_R}""")

    def ssm_epilogue(self, ACC, AT, BT, LAM, LAM2, LAM4, WSUM, L_AB):
        k = self.k; RS = self.TB_RS; LV = self.LV
        acc = lambda a_, tt: ACC + (a_*10 + tt)*4
        tok = lambda r, tt: acc(r//4, tt) + r % 4
        L_E, L_C = 16384, 102400
        TM, SEG = 146, 15
        def bc(r): return v(r & ~1, 2), r & 1
        k.c("================ SSM epilogue")
        self.nf2 = 0; self.fine2()
        k(f"""v_accvgpr_read_b32 v13, a{ST['E']}
        v_accvgpr_read_b32 v10, a{ST['CH']}
        v_accvgpr_read_b32 v6, a{ST['PUB']}
        v_mov_b32 v1, s{S_TAG}
        s_waitcnt lgkmcnt(0)""")
        sec = []
        for tt in list(range(10)):
            ws = WSUM.r(tt % 5); hi = tt // 5
            for a_ in range(2):
                for h in range(2):
                    t_ = TM + 2*(a_*2 + h) + 8*(tt % 2)
                    sec.append(f"v_pk_mul_f32 {v(t_,2)}, {v(BT+4*a_+2*h,2)}, {v(ws,2)} op_sel:[0,{hi}] op_sel_hi:[1,{hi}]")
            for a_ in range(2):
                for h in range(2):
                    d = acc(a_, tt) + 2*h; t_ = TM + 2*(a_*2 + h) + 8*(tt % 2)
                    sec.append(f"v_pk_fma_f32 {v(d,2)}, {v(AT+4*a_+2*h,2)}, {v(d,2)}, {v(t_,2)}")
        V1 = 96; EE = C5(136)
        def pkc(dr, di, ar, ai, cr_, ci_, lr, li):
            (pr, sr), (pi, si) = bc(lr), bc(li)
            return [f"v_pk_fma_f32 {v(dr,2)}, {v(ar,2)}, {pr}, {v(cr_,2)} op_sel:[0,{sr},0] op_sel_hi:[1,{sr},1]",
                    f"v_pk_fma_f32 {v(di,2)}, {v(ai,2)}, {pr}, {v(ci_,2)} op_sel:[0,{sr},0] op_sel_hi:[1,{sr},1]",
                    f"v_pk_fma_f32 {v(dr,2)}, {v(ai,2)}, {pi}, {v(dr,2)} op_sel:[0,{si},0] op_sel_hi:[1,{si},1] neg_lo:[1,0,0] neg_hi:[1,0,0]",
                    f"v_pk_fma_f32 {v(di,2)}, {v(ar,2)}, {pi}, {v(di,2)} op_sel:[0,{si},0] op_sel_hi:[1,{si},1]"]
        LL = [pkc(V1+8*b+2*h, V1+8*b+4+2*h, acc(0,b)+2*h, acc(0,5+b)+2*h, acc(1,b)+2*h, acc(1,5+b)+2*h, LAM4.r(b), LAM4.i(b))
              for b in range(5) for h in range(2)]
        sec += [x[i] for i in range(4) for x in LL]
        LL = [pkc(V1+8*b+2, V1+8*b+6, V1+8*b, V1+8*b+4, V1+8*b+2, V1+8*b+6, LAM2.r(b), LAM2.i(b)) for b in range(5)]
        sec += [x[i] for i in range(4) for x in LL]
        sec += self.cmul5(EE, LAM, C5(V1+2, V1+6, 8), C5(V1+3, V1+7, 8))
        self.sprinkle(sec, self.b2_take(int(self.P('e1', 10))))
        k(f"""ds_write_b128 v13, {v(136,4)} offset:{L_E}
        ds_write_b128 v13, {v(140,4)} offset:{L_E+16}
        ds_write_b64 v13, {v(144,2)} offset:{L_E+32}
        v_mov_b32 v129, s{S_TAG}
        v_mov_b32 v131, s{S_TAG2}
        s_waitcnt lgkmcnt(0)
        s_barrier""")
        self.fine2()
        CH = 96; L8R, L8I = 248, 249
        ct = [k(f"ds_read_b64 {v(CH+2*q,2)}, v10 offset:{L_E+768*q}") for q in range(16)]
        for q in range(1, 16):
            k.wait_lg(ct[q])
            er, ei, pr, pi = CH+2*q, CH+2*q+1, CH+2*q-2, CH+2*q-1
            if q < 15:
                k(f"v_fmac_f32 v{er}, v{L8R}, v{pr}\nv_fmac_f32 v{ei}, v{L8R}, v{pi}\nv_fma_f32 v{er}, -v{L8I}, v{pi}, v{er}\nv_fmac_f32 v{ei}, v{L8I}, v{pr}")
            else:
                k(f"v_fmac_f32 v{er}, v{L8R}, v{pr}\nv_fmac_f32 v{ei}, v{L8R}, v{pi}\nv_fma_f32 v128, -v{L8I}, v{pi}, v{er}\nv_fma_f32 v130, v{L8I}, v{pr}, v{ei}")
        k(f"""s_mov_b64 exec, 0xfffff
        buffer_store_dwordx4 v[128:131], v6, {WS4}, s{S_AG1} offen sc1
        s_mov_b64 exec, -1""")
        self.stamp(3); self.fine2()
        KK, CS, VV, DD = C5(202), C5(136), C5(146), C5(156, 161)
        work = [f"ds_write_b64 v10, {v(CH+2*q,2)} offset:{L_E+768*q}" for q in range(1, 15)]
        KB = 166
        work += [x.strip() for x in f"""v_accvgpr_read_b32 v132, a252
        v_accvgpr_read_b32 v133, a253
        v_accvgpr_read_b32 v134, a254
        v_accvgpr_read_b32 v135, a255
        v_accvgpr_read_b32 v5, a{ST['TB']}
        v_mul_f32 v174, v132, v132
        v_fma_f32 v174, v133, v133, v174
        v_rcp_f32 v174, v174
        v_add_f32 v134, -1.0, v134
        v_mul_f32 v{KB}, v134, v132
        v_mul_f32 v{KB+1}, v135, v132
        v_add_f32 v174, v174, v174
        v_fma_f32 v{KB}, v135, v133, v{KB}
        v_fma_f32 v{KB+1}, -v134, v133, v{KB+1}
        v_mul_f32 v{KB}, v{KB}, v174
        v_mul_f32 v{KB+1}, v{KB+1}, v174""".split("\n")]
        for q in range(16):
            c_ = KB + 2*(q % 4); n_ = KB + 2*((q+1) % 4)
            work += [f"ds_write_b64 v5, {v(c_,2)} offset:{8*q}"]
            if q < 15: work += [f"v_mul_f32 v{n_}, v{L8R}, v{c_}", f"v_mul_f32 v{n_+1}, v{L8R}, v{c_+1}",
                                f"v_fma_f32 v{n_}, -v{L8I}, v{c_+1}, v{n_}", f"v_fmac_f32 v{n_+1}, v{L8I}, v{c_}"]
        GB = 96
        BZR, BZI, BLR, BLI, BQR, BQI, BT_ = 116, 117, 118, 119, 120, 121, 122
        MK = S_MK
        work += [f"v_accvgpr_read_b32 v6, a{ST['GA']}", f"s_add_u32 s{S_T+5}, s{S_AG4}, 3840", f"s_mov_b32 s{S_T+4}, s{S_AG4}", f"v_accvgpr_read_b32 v5, a{ST['VA']}",
                 "s_waitcnt lgkmcnt(0)", "s_barrier"]
        work += [f"ds_read_b64 {v(KK.r(b),2)}, v11 offset:{16*b*RS}" for b in range(5)]
        work += [f"ds_read_b128 {v(136,4)}, v13 offset:{L_E-768}", f"ds_read_b128 {v(140,4)}, v13 offset:{L_E-768+16}", f"ds_read_b64 {v(144,2)}, v13 offset:{L_E-768+32}"]
        work += [f"ds_read_b64 {v(VV.r(b),2)}, v5 offset:{16*b*RS}" for b in range(5)]
        work += [f"v_accvgpr_read_b32 v{BZR}, a250", f"v_accvgpr_read_b32 v{BZI}, a251", f"v_mov_b32 v123, {fbits(128.0)}",
                 f"v_accvgpr_read_b32 v10, a{ST['QE']}"]
        work += [y for x in zip(self.cpow(BQR, BQI, "v10", BZR, BZI, BT_), self.cpow(BLR, BLI, "v123", BZR, BZI, 124)) for y in x]
        ku = []
        for b in range(5):
            (kr, sr), (ki, si) = bc(KK.r(b)), bc(KK.i(b))
            for h in range(4):
                ur = tok(2*h, b); ui = tok(2*h, 5+b); t_ = 166 + 4*(h % 2)
                ku += [f"v_pk_mul_f32 {v(t_,2)}, {v(ur,2)}, {kr} op_sel:[0,{sr}] op_sel_hi:[1,{sr}]",
                       f"v_pk_mul_f32 {v(t_+2,2)}, {v(ur,2)}, {ki} op_sel:[0,{si}] op_sel_hi:[1,{si}]",
                       f"v_pk_fma_f32 {v(ur,2)}, {v(ui,2)}, {ki}, {v(t_,2)} op_sel:[0,{si},0] op_sel_hi:[1,{si},1] neg_lo:[1,0,0] neg_hi:[1,0,0]",
                       f"v_pk_fma_f32 {v(ui,2)}, {v(ui,2)}, {kr}, {v(t_+2,2)} op_sel:[0,{sr},0] op_sel_hi:[1,{sr},1]"]
        nku = int(self.P('nku', 40))
        work += ["s_waitcnt lgkmcnt(8)"] + ku[:nku]
        self.sprinkle(work, self.b2_take(int(self.P('e2', 6))))
        self.fine2()
        def gloads():
            for q in range(5):
                t = k(f"buffer_load_dwordx4 {v(GB+4*q,4)}, v6, {WS4}, s{S_T+4+(q//3)} offen offset:{1280*(q%3)} sc1")
            return t
        gt = {}
        def gl_(): gt['t'] = gloads()
        w2 = ku[nku:] + ["s_waitcnt lgkmcnt(0)", f"s_cmp_eq_u32 s{S_W}, 0\ns_cselect_b64 exec, 0xffff, 0"]
        w2 += [f"v_mov_b32 v{136+q}, 0" for q in range(10)] + ["s_mov_b64 exec, -1"]
        w2 += self.cmul5(DD, KK, CS)
        w2 += [f"v_accvgpr_read_b32 v5, a{ST['CW']}", f"v_accvgpr_read_b32 v12, a{ST['CR']}", f"v_accvgpr_read_b32 v13, a{ST['TW']}", f"v_accvgpr_read_b32 v4, a{ST['TR']}", f"v_accvgpr_read_b32 v3, a{ST['PAT']}",
               f"v_mov_b32 v{BZR}, 0", f"v_mov_b32 v{BZI}, 0",
               f"s_mov_b32 s{S_T+8}, s{S_A2B}", f"s_add_u32 s{S_T+9}, s{S_A2B}, 4096",
               f"s_add_u32 s{S_T+10}, s{S_A2B}, {40*1024}", f"s_add_u32 s{S_T+11}, s{S_A2B}, {40*1024+4096}"]
        rq = self.resid_loads()
        gpos = int(self.P('gpos', 0))
        if gpos == 0: gl_()
        self.sprinkle(w2, rq[:gpos] + ([gl_] if gpos else []) + rq[gpos:] + self.b2_take(int(self.P('e3', 8))))
        gtok = gt['t']
        self.stamp(4); self.fine2()
        k.wait_vm(gtok)
        def check():
            for q in range(5):
                k(f"v_xor_b32 v10, s{S_TAG}, v{GB+4*q+1}")
                k(f"v_bitop3_b32 v10, s{S_TAG2}, v{GB+4*q+3}, v10 bitop3:0xbe")
                k(f"v_cmp_ne_u32 {s(S_T+2,2)}, 0, v10")
                k(f"s_and_b64 {'vcc' if q == 0 else s(S_T+2,2)}, {s(S_T+2,2)}, {s(MK+2*q,2)}")
                if q: k(f"s_or_b64 vcc, vcc, {s(S_T+2,2)}")
        def reload():
            gloads(); k("s_waitcnt vmcnt(0)")
        self.verify(check, reload, "pc")
        self.stamp(5); self.fine2()
        for q in range(5):
            er, ei = GB+4*q, GB+4*q+2
            k(f"""s_mov_b64 exec, {s(MK+2*q,2)}
            v_fmac_f32 v{er}, v{BLR}, v{BZR}
            v_fmac_f32 v{ei}, v{BLR}, v{BZI}
            v_fmac_f32 v{ei}, v{BLI}, v{BZR}
            v_fma_f32 v{BZR}, -v{BLI}, v{BZI}, v{er}
            v_mov_b32 v{BZI}, v{ei}""")
        k(f"""s_mov_b64 exec, -1
        v_mul_f32 v126, v{BQR}, v{BZR}
        v_mul_f32 v127, v{BQR}, v{BZI}
        v_fma_f32 v126, -v{BQI}, v{BZI}, v126
        v_fmac_f32 v127, v{BQI}, v{BZR}
        ds_write_b64 v5, v[126:127]
        s_waitcnt lgkmcnt(0)
        s_barrier""")
        CB = 96
        ct = []
        for b in range(5):
            k(f"ds_read_b128 {v(CB+6*b,4)}, v12 offset:{32*b}")
            ct.append(k(f"ds_read_b64 {v(CB+6*b+4,2)}, v12 offset:{32*b+16}"))
        for b in range(5):
            k.wait_lg(ct[b])
            k(f"v_pk_add_f32 {v(CB+6*b,2)}, {v(CB+6*b,2)}, {v(CB+6*b+2,2)}")
        for b in range(5):
            k(f"v_pk_add_f32 {v(CB+6*b,2)}, {v(CB+6*b,2)}, {v(CB+6*b+4,2)}")
        self.sprinkle(self.cmul5(DD, VV, C5(CB, CB+1, 6), DD), self.b2_take(int(self.P('e4', 2))))
        self.fine2()
        PK = 96
        frg = lambda b, tt2: (136 + 4*(2*b + tt2)) if 2*b + tt2 < 5 else (202 + 4*(2*b + tt2 - 5))
        wt = {}; rt = {}
        def scan(bs):
            L = []
            for r in range(8):
                pr = lambda b: DD.r(b) if r == 0 else tok(r-1, b)
                pi = lambda b: DD.i(b) if r == 0 else tok(r-1, 5+b)
                for b in bs: L += [f"v_fmac_f32 v{tok(r,b)}, v{LAM.r(b)}, v{pr(b)}", f"v_fmac_f32 v{tok(r,5+b)}, v{LAM.r(b)}, v{pi(b)}"]
                for b in bs: L += [f"v_fma_f32 v{tok(r,b)}, -v{LAM.i(b)}, v{pi(b)}, v{tok(r,b)}", f"v_fmac_f32 v{tok(r,5+b)}, v{LAM.i(b)}, v{pr(b)}"]
            for b in bs:
                for comp in range(2):
                    d = PK + 4*(2*b + comp); ng = "-" if comp else ""
                    L += [f"v_cvt_pk_bf16_f32 v{d+h}, {ng}v{tok(2*h,5*comp+b)}, {ng}v{tok(2*h+1,5*comp+b)}" for h in range(4)]
                    L += [f"v_and_or_b32 v{d+h}, v{d+h}, s{S_NM}, v3" for h in range(4)]
                    def f(b=b, d=d, comp=comp): wt[b] = k(f"ds_write_b128 v13, {v(d,4)} offset:{(32*b+16*comp)*80}")
                    L.append(f)
            return L
        def outq(bs):
            L = []
            for b in bs:
                def trr(b=b):
                    k.wait_lg(wt[b])
                    for tt2 in range(2):
                        d = frg(b, tt2)
                        k(f"ds_read_b64_tr_b16 {v(d,2)}, v4 offset:{(32*b)*80+32*tt2}")
                        rt[b, tt2] = k(f"ds_read_b64_tr_b16 {v(d+2,2)}, v4 offset:{(32*b+4)*80+32*tt2}")
                L.append(trr)
            for b in bs:
                for tt2 in range(2):
                    def sto(b=b, tt2=tt2):
                        k.wait_lg(rt[b, tt2])
                        so = S_T + 8 + 2*tt2 + (1 if b == 4 else 0)
                        self.last_st = k(f"buffer_store_dwordx4 {v(frg(b,tt2),4)}, v{LV}, {WS4}, s{so} offen offset:{1024*(b%4)} sc1")
                    L.append(sto)
            return L
        self.sprinkle(scan([0, 1]), self.b2_take(int(self.P('e5', 4))))
        self.sprinkle(scan([2, 3]), outq([0, 1]), lead=4)
        self.sprinkle(scan([4]), outq([2, 3]), lead=4)
        self.emit(outq([4]))
        self.stamp(6); self.fine2()
        self.p2_addr(0)
        self.free_big = [r for r in self.free_big if not (202 <= r < 222)] + [r for r in self.free_big if 202 <= r < 222]
        self.resid_compute(L_AB, [self.p2_aload]*int(self.P('na0', 12)))
        self.fine2()
        self.stamp(7)
        self.phase2(0)

    def resid_loads(self):
        k = self.k
        self.srd(SRD_T1, 8, 1280)
        self.srd(SRD_T2, 13, 1280)
        L = []
        for it in range(5):
            def f(it=it):
                k(f"""v_accvgpr_read_b32 v1, a{ST['RD']+it}
                s_add_u32 m0, s{S_RL}, {1024*it}
                buffer_load_dwordx4 v1, {s(SRD_X,4)}, s{S_RX} offen lds""")
            L.append(f)
        def g():
            k(f"""v_lshlrev_b32 v1, 2, v0
            s_add_u32 m0, s{S_RL}, 20480
            buffer_load_dword v1, {s(SRD_T1,4)}, s{S_RJ} offen lds
            s_add_u32 m0, s{S_RL}, {20480+256}""")
            self.rl_tok = k(f"buffer_load_dword v1, {s(SRD_T2,4)}, s{S_RJ} offen lds")
        return L + [g]
    def resid_compute(self, L_AB, memq):
        k = self.k
        ST, XB, DB, BB, T = 16, 36, 56, 66, 166
        k.wait_vm(self.rl_tok)
        self.STROW, self.STC4 = globals()['ST']['ROW'], globals()['ST']['C4']
        W = [f"s_lshl_b32 s{S_T+4}, s{S_W}, 6", f"s_add_u32 s{S_T+4}, s{S_T+4}, {L_AB}", f"s_movk_i32 s{S_T+5}, 160"]
        for it in range(5):
            W += [f"v_accvgpr_read_b32 v{11+it}, a{self.STROW+it}", f"v_accvgpr_read_b32 v{6+it}, a{self.STC4+it}"]
            W += [f"v_lshl_add_u32 v1, v{11+it}, 2, s{S_T+4}", f"v_lshl_add_u32 v3, v{6+it}, 3, s{S_RL}", f"v_mad_u32_u24 v2, v{11+it}, s{S_T+5}, v3",
                  f"ds_read2st64_b32 {v(ST+2*it,2)}, v1 offset0:0 offset1:2", f"ds_read2st64_b32 {v(ST+10+2*it,2)}, v1 offset0:1 offset1:3",
                  f"ds_read_b64 {v(XB+2*it,2)}, v2", f"ds_read_b64 {v(XB+10+2*it,2)}, v2 offset:2560",
                  f"ds_read_b64 {v(DB+2*it,2)}, v3 offset:20480", f"ds_read_b64 {v(BB+2*it,2)}, v3 offset:{20480+256}"]
        W += [f"v_add_u32 v4, s{S_RL}, v{self.LV}", "s_waitcnt lgkmcnt(0)"]
        for it in range(5):
            dd, bb = [76, 100][it % 2], [76, 100][it % 2] + 4
            for (src, dst) in ((DB+2*it, dd), (BB+2*it, bb)):
                for h in range(2):
                    W += [f"v_lshlrev_b32 v{dst+2*h}, 16, v{src+h}", f"v_and_b32 v{dst+2*h+1}, 0xffff0000, v{src+h}"]
            for hf in range(2):
                xx = dd + 8 + 8*hf
                for h in range(2):
                    W += [f"v_lshlrev_b32 v{xx+2*h}, 16, v{XB+10*hf+2*it+h}", f"v_and_b32 v{xx+2*h+1}, 0xffff0000, v{XB+10*hf+2*it+h}"]
            for hf in range(2):
                xx = dd + 8 + 8*hf; rr = xx + 4; st = ST + 10*hf + 2*it
                for h in range(2):
                    W += [f"v_pk_add_f32 {v(rr+2*h,2)}, {v(bb+2*h,2)}, {v(xx+2*h,2)}",
                          f"v_pk_fma_f32 {v(xx+2*h,2)}, {v(xx+2*h,2)}, {v(st,2)}, {v(st,2)} op_sel:[0,0,1] op_sel_hi:[1,0,1]"]
            for hf in range(2):
                xx = dd + 8 + 8*hf; rr = xx + 4
                for h in range(2):
                    W += [f"v_pk_fma_f32 {v(rr+2*h,2)}, {v(xx+2*h,2)}, {v(dd+2*h,2)}, {v(rr+2*h,2)}"]
                W += [f"ds_write_b128 v4, {v(rr,4)} offset:{hf*20480+it*1024}"]
        self.sprinkle(W, memq, lead=int(self.P('rlead', 0)))

    def mlp(self):
        k = self.k
        ACC = 16; WSA = 112; ONE = 124; FR = [128, 148]
        B1R = 126; GS = 168
        XE, XO, W0 = 3, 2, 4
        RXB, AEB, AOB = 176, 180, 184
        PV = self.PV; LV = self.LV
        STGS = 40960
        S_MH, S_NH = 42, 43
        L_WS = 110592
        k.label("L_mlp")
        k.c("================ MLP side, phase 1")
        self.common_a()
        self.nf3 = 0
        self.marks = {}
        S_RSROW, SW0, S_GT, D1, S_RSDST, S_FB = S_T+5, S_T+6, S_T+9, S_T+10, S_T+8, S_T+14
        k(f"""v_xor_b32 v{XO}, 64, v{XE}
        s_add_u32 s{S_XO+1}, s{S_XO}, {8*1280 - 1024}
        s_add_u32 s{S_XO+2}, s{S_XO}, {16*1280 - 2048}
        s_add_u32 s{S_XO+3}, s{S_XO}, {24*1280 - 3072}""")
        stage_tok = {}; stage_cnt = {}
        self.dma_reset(); self.has_w = True
        self.rot_setup([XE, XO], True)
        for n in range(3):
            k(f"""v_add_u32 v10, {64*n}, v0
            v_mul_u32_u24 v12, 2731, v10
            v_lshrrev_b32 v12, 16, v12
            v_mul_u32_u24 v13, 24, v12
            v_sub_u32 v13, v10, v13
            v_bfe_u32 v40, v12, 1, 1
            v_lshlrev_b32 v40, 2, v40
            v_xor_b32 v13, v13, v40
            v_mul_u32_u24 v12, 3072, v12
            v_lshl_add_u32 v{W0+n}, v13, 4, v12""")
            if n: k(f"v_subrev_u32 v{W0+n}, {1024*n}, v{W0+n}")
            k(f"v_add_u32 v{W0+n}, s{S_ST2}, v{W0+n}")
        k(f"""s_mul_i32 s{S_MW}, s{S_W}, 6144
        s_mul_i32 s{S_WO}, s{S_W}, {16*3072}
        s_mul_i32 s{S_T}, s{S_J}, 384
        s_add_u32 s{S_WO}, s{S_WO}, s{S_T}
        s_add_u32 s{S_WO+1}, s{S_WO}, {24576 - 3072}
        s_add_u32 s{S_WO+4}, s{S_WO}, {24576 + 1024}""")
        self.common_b()
        self.stamp(0); self.fine3()
        WSO = [S_WO, S_WO, S_WO, S_WO+1, S_WO+4, S_WO+4]
        def dma_list(t):
            base = (t % 4)*STGS
            L = []
            def mk(ld):
                def f():
                    stage_tok[t] = k(ld); stage_cnt[t] = stage_cnt.get(t, 0) + 1
                return f
            for e in range(4):
                vr = XE if e % 2 == 0 else XO
                L.append(self.dma((S_MX, base + 24576), mk(f"buffer_load_dwordx4 v{vr}, {s(SRD_X,4)}, s{S_XO+e} offen offset:{e*1024} lds"), vr, t, 128))
            for n in range(6):
                L.append(self.dma((S_MW, base + (n//4)*4096), mk(f"buffer_load_dwordx4 v{W0+n%3}, {s(SRD_W,4)}, s{WSO[n]} offen offset:{(n%4)*1024} lds"), W0+n%3, t, 64*3072))
            return L
        d0 = dma_list(0)
        for p in d0[:4]: self.emit(p)
        self.srd(SRD_W, 10, 1966080)
        for p in d0[4:7]: self.emit(p)
        d1 = dma_list(1)
        R0, A0, T0 = 200, 220, 224
        TS = int(self.P('mts', 3))
        SCR = (TS % 4)*STGS + 24576
        rs = self.rowstat_loads(SRD_X, S_RSROW, 8, R0)
        def setup(k):
            k(f"""s_lshr_b32 s{S_MH}, s{S_W}, 1
            s_and_b32 s{S_NH}, s{S_W}, 1
            s_lshl_b32 s{S_T+2}, s{S_W}, 2
            s_lshl_b32 s{S_T}, s{S_I}, 7
            s_lshl_b32 s{S_T+1}, s{S_J}, 4
            s_add_u32 s{S_T}, s{S_T}, s{S_T+1}
            s_add_u32 s{S_RSROW}, s{S_T}, s{S_T+2}
            s_lshl_b32 s{S_RSDST}, s{S_RSROW}, 4
            s_add_u32 s{S_RSDST}, s{S_RSDST}, {WS_STG}
            s_mov_b32 s{S_T+1}, 3""")

            self.rowstat_setup(S_RSROW, S_T+1, 8, 9)

            self.srd(SRD_T2, 12, 1966080)
            self.unit_decode(480, S_FB)

            k(f"""s_mul_i32 s{S_T+1}, s{S_T+2}, {32*1280}
            s_lshl_b32 s{S_T+3}, s{S_T}, 7
            s_add_u32 s{SW0}, s{S_T+1}, s{S_T+3}
            s_mul_i32 s{S_T+3}, s{S_T}, {4*48}
            s_add_u32 s{S_T+3}, s{S_T+3}, s{S_T+2}
            s_lshl_b32 s{S_T+3}, s{S_T+3}, 10
            s_add_u32 s{D1}, s{S_T+3}, {WS_B2S[1]}
            s_lshl_b32 s{S_FB}, s{S_FB}, 6
            s_add_u32 s{S_FB}, s{S_FB}, {WS_FB + 512*FLS}
            s_lshl_b32 s{S_GT}, s{S_I}, 11
            s_lshl_b32 s{S_T}, s{S_MH}, 10
            s_add_u32 s{S_GT}, s{S_GT}, s{S_T}
            s_add_u32 s{S_GT}, s{S_GT}, {WS_STG}
            v_and_b32 v11, 31, v0
            v_lshrrev_b32 v12, 5, v0
            v_bfe_u32 v13, v0, 1, 3
            v_xor_b32 v13, v13, v12
            v_lshlrev_b32 v13, 4, v13
            v_lshl_add_u32 v13, v11, 7, v13
            s_lshl_b32 s{S_T}, s{S_MH}, 13
            s_add_u32 s{S_T}, s{S_T}, 24576
            v_add_u32 v10, s{S_T}, v13
            v_bfe_u32 v13, v0, 2, 2
            v_lshl_add_u32 v40, v12, 3, v13
            v_mul_u32_u24 v40, 384, v40
            v_bfe_u32 v15, v0, 4, 1
            v_lshl_add_u32 v40, v15, 5, v40
            v_and_b32 v41, 3, v0
            v_lshl_add_u32 v40, v41, 3, v40
            v_lshlrev_b32 v7, 4, v12
            v_lshl_add_u32 v7, v15, 2, v7
            v_add_u32 v7, v7, v13
            v_lshlrev_b32 v7, 7, v7
            v_lshl_add_u32 v7, v41, 3, v7
            v_add_u32 v7, s{S_MX}, v7
            v_add_u32 v7, {SCR}, v7
            s_mul_i32 s{S_T}, s{S_NH}, 192
            v_add_u32 v40, s{S_T}, v40
            v_bfe_u32 v13, v0, 3, 1
            v_lshlrev_b32 v13, 6, v13
            s_cmp_eq_u32 s{S_NH}, 0
            s_cselect_b32 s{S_T}, 1, -1
            v_mul_lo_u32 v13, v13, s{S_T}
            v_add_u32 v15, v40, v13
            v_sub_u32 v40, v40, v13
            v_mov_b32 v{ONE}, 0x3f803f80
            v_mov_b32 v{ONE+1}, 0x3f803f80""")
            for ls in range(4):
                k(f"""s_lshl_b32 s{S_T}, s{S_MH}, 1
                s_add_u32 s{S_T}, s{S_T}, {ls}
                s_and_b32 s{S_T}, s{S_T}, 3
                s_lshl_b32 s{S_T+1}, s{S_T}, 5
                s_mul_i32 s{S_T}, s{S_T}, 6144
                v_xor_b32 v{RXB+ls}, s{S_T+1}, v10
                v_add_u32 v{AEB+ls}, s{S_T}, v15
                v_add_u32 v{AOB+ls}, s{S_T}, v40""")
            for q in range(12): k(f"v_add_u32 v{RXB+12+q}, {2*STGS}, v{RXB+q}")
            k(f"""v_lshlrev_b32 v10, 4, v11
            v_min_u32 v11, 47, v0
            s_mul_i32 s{S_T}, s{S_J}, 192
            s_mul_i32 s{S_T+1}, s{S_W}, 48
            s_add_u32 s{S_T}, s{S_T}, s{S_T+1}
            v_add_lshl_u32 v12, v11, s{S_T}, 1
            v_add_lshl_u32 v11, v11, s{S_T+1}, 2
            v_add_u32 v11, {L_WS}, v11""")
            self.b2v = self.b2_setup(1)
        su = self.capture(setup)
        self.sprinkle(su[:20], [(lambda p=p: self.emit(p)) for p in d0[7:]])
        mprs = int(self.P('mprs', 0))
        n1 = 4 if mprs == 0 else 8
        self.sprinkle(su[20:], [(lambda p=p: self.emit(p)) for p in d1[:2]] + (rs if mprs == 0 else []) + [(lambda p=p: self.emit(p)) for p in d1[2:n1]])
        b2v = self.b2v
        tk = {}
        swq = []
        for e in range(4):
            def f(e=e):
                k(f"s_add_u32 s{S_T+2}, s{SW0}, {e*8*1280}")
                tk['d1'] = k(f"buffer_load_dwordx4 v{PV}, {s(SRD_T2,4)}, s{S_T+2} offen lds")
            swq.append(self.dma((S_MX, SCR + e*1024), f))
        self.make_tag()
        self.emit(self.touch(1, 246))
        rtok = {}
        def mkreads(n):
            st = FR[n % 2]; ls = n % 4; sl = (n//4) % 4; o = (sl % 2)*STGS; h_ = 12*(sl//2)
            ra, ae, ao = RXB+ls+h_, AEB+ls+h_, AOB+ls+h_
            R = [f"ds_read_b128 {v(st,4)}, v{ra} offset:{o}",
                 f"ds_read_b64_tr_b16 {v(st+8,2)}, v{ae} offset:{o}", f"ds_read_b64_tr_b16 {v(st+10,2)}, v{ae} offset:{o+1536}",
                 f"ds_read_b128 {v(st+4,4)}, v{ra} offset:{o+4096}",
                 f"ds_read_b64_tr_b16 {v(st+12,2)}, v{ao} offset:{o+64}", f"ds_read_b64_tr_b16 {v(st+14,2)}, v{ao} offset:{o+1600}",
                 f"ds_read_b64_tr_b16 {v(st+16,2)}, v{ae} offset:{o+128}", f"ds_read_b64_tr_b16 {v(st+18,2)}, v{ae} offset:{o+1664}"]
            L = []
            for i, r in enumerate(R):
                def f(i=i, r=r): rtok[n, i] = k(r)
                L.append(f)
            return L
        self.fine3()
        k.wait_vm(stage_tok[0])
        self.fine3()
        k("s_barrier")
        self.fine3()
        self.stamp(1)
        k.label("L_mlp_code")
        self.emit(mkreads(0))
        NSW, NFLAG, NPOLL, NCHK = [int(self.P(a_, b_)) for a_, b_ in (('mnsw', 4), ('mnfl', 12), ('mnpo', 21), ('mnck', 26))]
        mq = [[0, 1, p_, l_] for p_, l_ in d1[n1:]]
        def q_stage(t):
            L = [[max(4*(t-3), NSW+2 if (t == TS and j_ < 4) else 0), 1, p_, l_] for j_, (p_, l_) in enumerate(dma_list(t))]
            mq.extend(L[4:] + L[:4] if t == TS else L)
        def sw_store(cc):
            def f():
                k.wait_lg(tk['r1'])
                k(f"s_add_u32 s{S_T}, s{D1}, {cc*48*1024}")
                tk['s1'] = k(f"buffer_store_dwordx4 {a(240+4*cc,4)}, v{LV}, {WS4}, s{S_T} offen sc1")
            return f
        def b1l(): tk['b1'] = k(f"global_load_ushort v{B1R}, v12, {ptr(11)}")
        def gs1(): k(f"buffer_load_dwordx4 {v(GS,4)}, v10, {WS4}, s{S_GT} offen sc1")
        def gs2(): tk['gs'] = k(f"buffer_load_dwordx4 {v(GS+4,4)}, v10, {WS4}, s{S_GT} offen offset:512 sc1")
        mpsw, mpst = int(self.P('mpsw', 1)), int(self.P('mpst', 2))
        for t in range(1, 10):
            if t > 1: q_stage(t)
            if t == mprs: mq += [[0, 1, None, f] for f in rs]
            if t == mpsw: mq += [[4*(TS-3), 1, p_, l_] for p_, l_ in swq]
            if t == mpst: mq += [[NSW+1, 2, None, sw_store(cc)] for cc in range(4)]
            if t == 4: mq.append([0, 0.5, None, b1l])
        late = {NPOLL: [[NPOLL, 0.5, None, self.b2_poll]], 30: [[30, 1, None, gs1], [30, 1, None, gs2]]}
        def swr():
            k.wait_vm(tk['d1'])
            for cc in range(4):
                for e in range(2):
                    tk['r1'] = k(f"ds_read_b64_tr_b16 {a(240+4*cc+2*e,2)}, v7 offset:{e*1024+cc*32}")
        def flg():
            k.wait_vm(tk['s1']); self.set_flag(S_FB, 13)
        hooks = {NSW: swr, NFLAG: flg}
        rsf = self.rowstat_fill(R0, A0, T0, 9, S_RSDST)
        fq = [('at', NSW + 1)] + b2v + [('mark', 'b2s')]
        NRB = int(self.P('mnrb', 3))
        fq += [('at', 28), lambda: k.wait_vm(tk['b1']), f"v_lshlrev_b32 v{B1R}, 16, v{B1R}", f"ds_write_b32 v11, v{B1R} offset:1536"]
        credit = 0.0; b2on = False
        for n in range(40):
            st = FR[n % 2]
            k.c(f"---- mlp k-step {n}")
            if n % 2 == 0: self.fine(16 + n//2)
            if n == NCHK:
                self.b2_check(); b2on = True
            if n == NSW + 2: k.wait_lg(tk['r1'])
            mq[0:0] = late.get(n, [])
            mem = []
            mmax = int(self.P('mtail', 4) + (0.5 if n % 4 < 2 else 0)) if n >= 28 else int(self.P('mmax', 5)) if n < self.P('mfast', 4) else int(self.P('mcap', 3)) + (1 if n % 4 < 2 and self.P('mcap', 3) % 1 else 0)
            while len(mem) < mmax:
                if mq and mq[0][0] <= n: it_ = mq.pop(0)
                elif b2on and self.b2q and len(mem) < self.P('mb2', 5) + (0.5 if n % 4 < 2 else -0.5): it_ = [n, 1, None, self.b2q.pop(0)]
                else: break
                mem.append(it_)
            rd = mkreads(n+1) if n + 1 < 40 else []
            small = []
            if n % 4 < 2:
                for hh in range(2):
                    for T in range(3):
                        c_ = "0" if (n == 0 and hh == 0) else v(WSA+4*T, 4)
                        small.append(f"v_mfma_f32_4x4x4_16b_bf16 {v(WSA+4*T,4)}, {v(ONE,2)}, {v(st+8+4*T+2*hh,2)}, {c_}")
            bar = n % 4 == 3 and n + 1 < 40
            cnt = [0, 3, 3, 2, 0, 0] if bar else [3, 3, 2, 0, 0, 0]
            pref = [4, 0, 5, 3, 2, 1] if bar else [4, 5, 2, 3, 0, 1]
            nper_ = [0]*6
            for j_ in range(len(mem)): nper_[pref[j_ % 6]] += 1
            dep = {0: 2, 1: 3, 2: 5, 4: 7}
            for i in range(6):
                T3, mt = i//2, i % 2
                if nper_[i] and mem[0][2]: mem[0][2]()
                if i in dep: k.wait_lg(rtok[n, dep[i]])
                d = ACC + 16*i
                k(f"v_mfma_f32_32x32x16_bf16 {v(d,16)}, {v(st+8+4*T3,4)}, {v(st+4*mt,4)}, {'0' if n == 0 else v(d,16)}")
                n0 = len(k.ins)
                for j_ in range(nper_[i]):
                    it_ = mem.pop(0)
                    if j_ and it_[2]: it_[2]()
                    it_[3]()
                if bar and i == 1:
                    assert stage_cnt[(n+1)//4] == 10
                    if n == NRB: self.rowstat_batch(R0, A0, 9, S_RSDST)
                    k.wait_both(stage_tok[(n+1)//4], k.lg_issued)
                    k("s_barrier")
                for _ in range(cnt[i]):
                    if rd: rd.pop(0)()
                self.emit(self.take_fill(fq, n, int(self.P('mden', 5)) - (len(k.ins) - n0)))
            if n in hooks: hooks[n]()
            self.emit(small)
            assert not rd and not mem
        assert not mq and not fq and self.marks['b2s'] < NPOLL
        self.info += f" mlp b2 left {len(self.b2q)} marks {self.marks}"
        k.c('loop end')
        self.stamp(2)
        if self.early_stop("loop"): return
        k.c("================ MLP epilogue")
        self.nf2 = 0
        TM = 128
        AT, BT = 176, 180
        for T in range(3): k(f"v_permlane32_swap_b32 v{WSA+4*T}, v{WSA+4*T+1}")
        k(f"""v_and_b32 v11, 31, v0
        s_mul_i32 s{S_T}, s{S_MH}, 768
        s_mul_i32 s{S_T+1}, s{S_NH}, 384
        s_add_u32 s{S_T}, s{S_T}, s{S_T+1}
        v_lshl_add_u32 v12, v11, 2, s{S_T}
        v_add_u32 v12, {L_WS}, v12""")
        for T in range(3):
            k(f"v_add_f32 v{WSA+4*T}, v{WSA+4*T}, v{WSA+4*T+1}\nds_write_b32 v12, v{WSA+4*T} offset:{128*T}")
        k.wait_vm(tk['gs'])
        def check():
            k(f"""v_xor_b32 v13, s{S_TAG}, v{GS+1}
            v_bitop3_b32 v13, s{S_TAG2}, v{GS+3}, v13 bitop3:0xbe
            v_bitop3_b32 v13, s{S_TAG}, v{GS+5}, v13 bitop3:0xbe
            v_bitop3_b32 v13, s{S_TAG2}, v{GS+7}, v13 bitop3:0xbe
            v_cmp_ne_u32 vcc, 0, v13""")
        def rl():
            k(f"""buffer_load_dwordx4 {v(GS,4)}, v10, {WS4}, s{S_GT} offen sc1
            buffer_load_dwordx4 {v(GS+4,4)}, v10, {WS4}, s{S_GT} offen offset:512 sc1
            s_waitcnt vmcnt(0)""")
        self.verify(check, rl, "ps")
        c1 = -2*LOG2E*math.sqrt(2/math.pi)
        k(f"s_mov_b32 s{S_T}, {fbits(1.0/640)}")
        seqs = []
        for mt in range(2):
            g_ = GS + 4*mt; t_ = TM + mt
            seqs.append([f"v_mul_f32 v{g_}, s{S_T}, v{g_}", f"v_mul_f32 v{t_}, v{g_}, v{g_}", f"v_fma_f32 v{g_+2}, v{g_+2}, s{S_T}, -v{t_}",
                         f"v_max_f32 v{g_+2}, 0, v{g_+2}", f"v_add_f32 v{t_}, {fbits(EPS)}, v{g_+2}", f"v_rsq_f32 v{g_+1}, v{t_}",
                         f"v_mul_f32 v{t_}, v{g_+1}, v{g_+1}", f"v_mul_f32 v{t_}, v{t_}, v{g_+2}", f"v_add_f32 v{t_}, {fbits(EPS)}, v{t_}",
                         f"v_rsq_f32 v{t_}, v{t_}", f"v_mul_f32 v{AT+2*mt}, v{t_}, v{g_+1}", f"v_mul_f32_e64 v{BT+2*mt}, v{g_}, -v{AT+2*mt}"])
        for x, y in zip(*seqs): k(x); k(y)
        C1 = 184; PATV = 15
        k(f"""v_lshrrev_b32 v14, 5, v0
        s_mul_i32 s{S_T}, s{S_NH}, 384
        v_lshl_add_u32 v12, v14, 4, s{S_T}
        v_add_u32 v12, {L_WS}, v12
        v_lshrrev_b32 v13, 4, v11
        v_mul_u32_u24 v13, {48*1024}, v13
        v_and_b32 v15, 15, v0
        v_lshl_add_u32 v13, v15, 4, v13
        v_lshl_add_u32 v{PV}, v14, 8, v13
        s_lshl_b32 s{S_T}, s{S_I}, 3
        s_lshl_b32 s{S_T+1}, s{S_MH}, 2
        s_add_u32 s{S_T}, s{S_T}, s{S_T+1}
        s_mul_i32 s{S_T}, s{S_T}, 48
        s_mul_i32 s{S_T+1}, s{S_J}, 6
        s_add_u32 s{S_T}, s{S_T}, s{S_T+1}
        s_mul_i32 s{S_T+1}, s{S_NH}, 3
        s_add_u32 s{S_T}, s{S_T}, s{S_T+1}
        s_lshl_b32 s{S_T}, s{S_T}, 10
        s_add_u32 s{S_T+6}, s{S_T}, {WS_A2[1]}
        s_add_u32 s{S_T+7}, s{S_T+6}, {96*1024}
        s_mov_b32 s{S_T+4}, {fbits(c1*0.044715)}
        s_mov_b32 s{S_T+5}, s{S_T+4}
        v_mov_b32 v{C1}, {fbits(c1)}
        v_mov_b32 v{C1+1}, {fbits(c1)}
        v_mov_b32 v{PATV}, s{S_PAT}
        s_waitcnt lgkmcnt(0)
        s_barrier""")
        self.stamp(3)
        WB = [112, 186]
        Q = 160; PKO = [168, 172, 234, 238]; TT = 242
        def wreads(T3):
            b = WB[T3 % 2]
            return [f"ds_read_b128 {v(b+16*a_+4*q4,4)}, v12 offset:{768*a_+(32*T3+8*q4)*4}" for q4 in range(4) for a_ in range(3)]
        self.emit(wreads(0))
        self.p2_addr(1)
        held = []
        for Tl in range(6):
            T3, mt = Tl//2, Tl % 2
            self.fine2()
            b = WB[T3 % 2]
            fill = []; body = []
            if mt == 0:
                k("s_waitcnt lgkmcnt(0)")
                body += [f"v_pk_add_f32 {v(b+2*p,2)}, {v(b+2*p,2)}, {v(b+16+2*p,2)}" for p in range(8)]
                if T3 < 2: fill = [lambda x=x: k(x) for x in wreads(T3+1)]
            for c in range(2):
                po = PKO[(2*Tl + c) % 4]; prs = range(4*c, 4*c+4)
                z = lambda p: ACC + 16*Tl + 2*p
                q = lambda p: Q + 2*(p % 4)
                body += [f"v_pk_fma_f32 {v(TT+2*(p%4),2)}, {v(BT+2*mt,2)}, {v(b+2*p,2)}, {v(b+32+2*p,2)} op_sel_hi:[0,1,1]" for p in prs]
                body += [f"v_pk_fma_f32 {v(z(p),2)}, {v(AT+2*mt,2)}, {v(z(p),2)}, {v(TT+2*(p%4),2)} op_sel_hi:[0,1,1]" for p in prs]
                body += [f"v_pk_mul_f32 {v(q(p),2)}, {v(z(p),2)}, {v(z(p),2)}" for p in prs]
                body += [f"v_pk_fma_f32 {v(q(p),2)}, {v(q(p),2)}, {s(S_T+4,2)}, {v(C1,2)}" for p in prs]
                body += [f"v_pk_mul_f32 {v(q(p),2)}, {v(q(p),2)}, {v(z(p),2)}" for p in prs]
                for p in prs: body += [f"v_exp_f32 v{q(p)}, v{q(p)}", f"v_exp_f32 v{q(p)+1}, v{q(p)+1}"]
                body += [f"v_pk_add_f32 {v(q(p),2)}, {v(q(p),2)}, 1.0 op_sel_hi:[1,0]" for p in prs]
                for p in prs: body += [f"v_rcp_f32 v{q(p)}, v{q(p)}", f"v_rcp_f32 v{q(p)+1}, v{q(p)+1}"]
                body += [f"v_pk_mul_f32 {v(q(p),2)}, {v(q(p),2)}, {v(z(p),2)}" for p in prs]
                body += [f"v_cvt_pk_bf16_f32 v{po+p%4}, v{q(p)}, v{q(p)+1}" for p in prs]
                body += [f"v_and_or_b32 v{po+p%4}, v{po+p%4}, s{S_NM}, v{PATV}" for p in prs]
                def st_(T3=T3, mt=mt, c=c, po=po):
                    self.last_st = k(f"buffer_store_dwordx4 {v(po,4)}, v{PV}, {WS4}, s{S_T+6+mt} offen offset:{T3*1024+c*512} sc1")
                if Tl < 4: body.append(st_)
                else: held.append(st_)
            if Tl >= 4: fill = [self.p2_aload]*8
            if Tl < 4: fill = fill + self.b2_take(min(int(self.P('g1', 4)), -(-len(self.b2q)//(4 - Tl))))
            self.sprinkle(body, fill, lead=8)
        self.fine2()
        self.emit(held)
        self.fine2()
        self.stamp(6)
        self.phase2(1)

    RING, NR, ACS, ACO = 16, 19, 92, 172
    def p2_addr(self, side):
        k = self.k
        S = [40, 48][side]; KS = [10, 12][side]
        self.side = side; self.KS = KS
        hfS = side; hfO = 1 - side
        k(f"""s_mul_i32 s45, s{S_I}, {8*S}
        s_mul_i32 s46, s{S_W}, {KS}
        s_add_u32 s45, s45, s46
        s_lshl_b32 s45, s45, 10
        s_add_u32 s45, s45, {WS_A2[side]}""")
        for t4 in range(4):
            k(f"s_add_u32 s{36+t4}, s45, {(4*hfS+t4)*S*1024}")
            k(f"s_add_u32 s{40+t4}, s45, {(4*hfO+t4)*S*1024}")
        self.seq = [(0, ss, t4) for ss in self.order for t4 in range(4)] + [(1, ss, t4) for t4 in range(4) for ss in range(KS)]
        self.atok = {}; self.areg = {}; self.nxt = 0
        self.free_ring = [self.RING + 4*i for i in range(self.NR)]
        self.free_big = [self.ACO + 4*i for i in range(20)] if side == 0 else []
    def a_instr(self, idx):
        p, ss, t4 = self.seq[idx]
        so = 36 + 4*p + t4; pre = ""
        if ss >= 4:
            pre = f"s_add_u32 s45, s{so}, {(ss//4)*4096}\n"; so = 45
        return pre + f"buffer_load_dwordx4 {v(self.areg[idx],4)}, v{self.LV}, {WS4}, s{so} offen offset:{(ss%4)*1024} sc1"
    def p2_can(self):
        if self.nxt >= len(self.seq): return False
        if self.seq[self.nxt][0] == 0 and self.free_big: return True
        return bool(self.free_ring)
    def p2_aload(self):
        idx = self.nxt
        if self.seq[idx][0] == 0 and self.free_big: r = self.free_big.pop(0)
        else: r = self.free_ring.pop(0)
        self.areg[idx] = r
        self.atok[idx] = self.k(self.a_instr(idx))
        self.nxt += 1

    def phase2(self, side):
        k = self.k
        if self.early_stop("p1"): return
        KS = self.KS; nper = 4*KS
        ACS, ACO, LV = self.ACS, self.ACO, self.LV
        hfS = side; hfO = 1 - side
        RW, RR, OO, VA, FV, T1 = 5, 6, 11, 1, 2, 253
        k.c(f"================ phase 2 (side {side})")
        if side == 1: self.free_big = [self.ACO + 4*i for i in range(20)]
        while self.nxt < 16: self.p2_aload()
        self.stamp(8)
        def vcheck(j, lst):
            regs = [self.areg[4*j+t]+e for t in range(4) for e in range(4)]
            L = [f"v_xor_b32 v{VA}, s{S_PAT}, v{regs[0]}"]
            L += [f"v_bitop3_b32 v{VA}, s{S_PAT}, v{r}, v{VA} bitop3:0xbe" for r in regs[1:]]
            L += [f"v_and_b32 v{VA}, 0x10001, v{VA}", f"v_cmp_ne_u32 vcc, 0, v{VA}"]
            return L
        def vfinish(j):
            hi = min(self.nxt, nper)
            ins = [self.a_instr(i) for i in range(4*j, hi)]
            chk = vcheck(j, None)
            def reload():
                self.emit(ins); k("s_waitcnt vmcnt(0)")
            self.verify(lambda: self.emit(chk), reload, "va", checked=True)
        a1 = [f"v_and_b32 v{FV}, 7, v0\nv_lshlrev_b32 v{FV}, 6, v{FV}", f"s_lshl_b32 s44, s{S_I}, 5\ns_lshl_b32 s46, s{S_W}, 3",
              f"s_add_u32 s44, s44, s46\ns_lshl_b32 s44, s44, 6", f"s_add_u32 s44, s44, {WS_FA + side*512*FLS}",
              f"s_movk_i32 s{S_T+1}, {RED_RS}\ns_movk_i32 s{S_T+2}, 2560"]
        if side == 1:
            a1 += [f"v_and_b32 v{T1}, 15, v0", f"v_mul_u32_u24 v{RW}, {RED_RS}, v{T1}", f"v_lshrrev_b32 v{T1}, 4, v0",
                   f"v_lshl_add_u32 v{RW}, v{T1}, 4, v{RW}", f"s_mul_i32 s{S_T}, s{S_W}, {RED_W}\ns_add_u32 s{S_T}, s{S_T}, {LDS_RED}",
                   f"v_add_u32 v{RW}, s{S_T}, v{RW}"]
        else:
            a1 += [f"v_accvgpr_read_b32 v{RW}, a{ST['RW']}"]
        a1 += [f"s_mul_i32 s{S_T}, s{S_W}, {16*RED_RS}\ns_add_u32 s{S_T}, s{S_T}, {LDS_RED}"]
        for it in range(5):
            if side == 1: a1 += [f"v_add_u32 v{T1}, {64*it}, v0"] + self.div20(OO+it, RR+it, T1)
            a1 += [f"v_lshlrev_b32 v{T1}, 4, v{RR+it}",
                   f"v_mad_u32_u24 v{RR+it}, v{OO+it}, s{S_T+1}, v{T1}", f"v_add_u32 v{RR+it}, s{S_T}, v{RR+it}",
                   f"v_mad_u32_u24 v{OO+it}, v{OO+it}, s{S_T+2}, v{T1}"]
        a1 += [
               f"s_lshr_b32 s{S_T}, s{S_PW}, 2\ns_mul_i32 s{S_T}, s{S_T}, 20480", f"s_mul_i32 s{S_T+1}, s{S_W}, 5120\ns_add_u32 s{S_T}, s{S_T}, s{S_T+1}",
               f"s_add_u32 s{S_T+3}, s{S_T}, {WS_PART + (1-side)*128*20480}\ns_add_u32 s{S_T+4}, s{S_T+3}, 4096",
               f"s_add_u32 s{S_T+5}, s{S_T}, {WS_PART + side*128*20480}\ns_add_u32 s{S_T+6}, s{S_T+5}, 4096",
               f"s_add_u32 s{S_T+7}, s{S_T+1}, {L_R}\nv_mov_b32 v3, s{S_PAT32}",
               f"s_lshl_b32 s{S_T}, s{S_I}, 7\ns_lshl_b32 s{S_T+1}, s{S_W}, 4", f"s_add_u32 s{S_T}, s{S_T}, s{S_T+1}\ns_add_u32 s{S_T}, s{S_T}, {64*hfO}",
               f"s_mul_i32 s{S_T}, s{S_T}, 2560\ns_mul_i32 s{S_T+1}, s{S_J}, 320", f"s_add_u32 s{S_OUT}, s{S_T}, s{S_T+1}\ns_mov_b32 s{S_NM}, -4",
               f"s_mov_b32 s{SRD_OUT}, s{P0+28}\ns_mov_b32 s{SRD_OUT+1}, s{P0+29}", f"s_mov_b32 s{SRD_OUT+2}, 5242880\ns_mov_b32 s{SRD_OUT+3}, 0x20000"]
        tk = {}
        gate = [lambda j: nper, lambda j: 32 if j < 3 else nper][side]
        k.wait_vm(self.atok[3])
        self.emit(vcheck(0, None)); vfinish(0)
        o_ok = False
        for j in range(KS):
            self.fine(36 + j)
            ss = self.order[j]
            while (ss, 4) not in self.b2tok: self.b2q.pop(0)()
            k.wait_vm(self.b2tok[ss, 4])
            vq = None
            misc = []
            if j == [0, int(self.P('jfl', 3))][side]:
                def f():
                    k.wait_vm(self.last_st)
                    k(f"s_add_u32 s{S_T+10}, s{S_FLAG}, {WS_FA + side*512*FLS}")
                    self.set_flag(S_T+10, 4)
                misc.append(f)
            if j == [int(self.P('jpo0', 4)), int(self.P('jpo', 7))][side]:
                def f(): tk['fa'] = k(f"buffer_load_dword v4, v{FV}, {WS4}, s44 offen sc1")
                misc.append(f)
            if j == [int(self.P('jck0', 6)), int(self.P('jck', 9))][side]:
                k.wait_vm(tk['fa'])
                def rl(): k(f"buffer_load_dword v4, v{FV}, {WS4}, s44 offen sc1\ns_waitcnt vmcnt(0)")
                self.verify(lambda: k(f"v_cmp_ne_u32 vcc, s{S_TAG}, v4"), rl, "fa")
                o_ok = True
            for t4 in range(4):
                idx = 4*j + t4
                for cc in range(5):
                    g_ = 5*t4 + cc
                    d = ACS + (t4*5 + cc)*4
                    k(f"v_mfma_f32_16x16x32_bf16 {v(d,4)}, {a((ss*5+cc)*4,4)}, {v(self.areg[idx],4)}, {'0' if j == 0 else v(d,4)}")
                    lim = gate(j) if not o_ok else 2*nper
                    if g_ % 3 == 0 and self.p2_can() and self.nxt < lim and self.nxt < idx + 22:
                        self.p2_aload()
                    elif g_ in (1, 10) and self.b2q and j >= [1, 3][side]:
                        self.b2q.pop(0)()
                    elif g_ >= 4 and j + 1 < KS:
                        if vq is None:
                            k.wait_vm(self.atok[4*j+7]); vq = vcheck(j+1, None)
                        self.emit(vq[:2]); vq = vq[2:]
                        if not vq and (misc or a1): self.emit([(misc or a1).pop(0)])
                    elif misc or a1:
                        self.emit([(misc or a1).pop(0)])
                r = self.areg[idx]
                (self.free_ring if r < ACS else self.free_big).append(r) if (r < ACS or self.nxt < nper - 8) else None
            self.emit(misc)
            if j + 1 < KS:
                self.emit(vq); vfinish(j+1)
        self.emit(a1)
        self.stamp(9)
        nsrc = 5 if side == 0 else 4
        fill = []
        def wr(r, off):
            if 'w64' in self.opt: return [f"ds_write_b64 v{RW}, {v(r,2)} offset:{off}", f"ds_write_b64 v{RW}, {v(r+2,2)} offset:{off+8}"]
            return [f"ds_write_b128 v{RW}, {v(r,4)} offset:{off}", NOP]
        for t4 in range(4):
            for cc in range(5):
                fill += wr(ACS+(t4*5+cc)*4, t4*16*RED_RS+cc*64) + [NOP]*int(self.P('wpad', 2)*side)
        fill += [NOP]*int(self.P('bpad', 3)) + ["s_waitcnt lgkmcnt(0)\ns_barrier"]
        if side == 0: fill += [f"v_add_u32 v4, s{S_T+7}, v{LV}"]
        rds = []
        for it in range(5):
            for sw in range(4):
                def f(it=it, sw=sw): tk['r', it] = k(f"ds_read_b128 {v(ACS+(it*4+sw)*4,4)}, v{RR+it} offset:{sw*RED_W}")
                rds.append(f)
        fill += rds[:8]
        for it in range(5):
            b = ACS + it*16
            ad = [f"v_add_f32 v{b+e}, v{b+e}, v{b+4+e}\nv_add_f32 v{b+8+e}, v{b+8+e}, v{b+12+e}" for e in range(4)]
            nx = rds[8+4*it:12+4*it]
            fill.append(lambda it=it, a0=ad[0]: (k.wait_lg(tk['r', it]), k(a0)))
            for q in range(1, 4):
                if nx: fill.append(nx.pop(0))
                fill.append(ad[q])
            fill += nx
            if side == 0:
                def f(it=it, b=b): tk['R', it] = k(f"ds_read_b128 {v(b+4,4)}, v4 offset:{hfS*20480+it*1024}")
                fill.append(f)
            fill += [f"v_add_f32 v{b+e}, v{b+e}, v{b+8+e}\nv_add_f32 v{b+e+1}, v{b+e+1}, v{b+9+e}" for e in (0, 2)]
        fill += ["s_barrier"]
        for it in range(5):
            b = ACS + it*16
            if side == 0:
                fill.append(lambda it=it: k.wait_lg(tk['R', it]))
                fill += [f"v_add_f32 v{b+e}, v{b+e}, v{b+4+e}\nv_add_f32 v{b+e+1}, v{b+e+1}, v{b+5+e}" for e in (0, 2)]
            fill += [f"v_and_or_b32 v{b+e}, v{b+e}, s{S_NM}, v3\nv_and_or_b32 v{b+e+1}, v{b+e+1}, s{S_NM}, v3" for e in (0, 2)]
            fill.append(f"buffer_store_dwordx4 {v(b,4)}, v{LV}, {WS4}, s{S_T+5+it//4} offen offset:{(it%4)*1024} sc1")
        nS = len(fill)
        owr = {t4: [f"ds_write_b128 v{RW}, {v(ACO+(t4*5+cc)*4,4)} offset:{t4*16*RED_RS+cc*64}" for cc in range(5)] for t4 in range(4)}
        oq = []
        def ploads():
            return [k(f"buffer_load_dwordx4 {v(ACS+it*16+12,4)}, v{LV}, {WS4}, s{S_T+3+it//4} offen offset:{(it%4)*1024} sc1") for it in range(5)]
        slot = 0
        for j in range(nper):
            idx = nper + j
            _, ss, t4 = self.seq[idx]
            if j % 4 == 0: self.fine(36 + KS + j//4)
            if ss == 1 and t4 > 0: oq += [x for cc in range(5) for x in wr(ACO+((t4-1)*5+cc)*4, (t4-1)*16*RED_RS+cc*64)]
            while idx not in self.atok: self.p2_aload()
            k.wait_vm(self.atok[idx])
            for cc in range(5):
                d = ACO + (t4*5 + cc)*4
                k(f"v_mfma_f32_16x16x32_bf16 {v(d,4)}, {a((ss*5+cc)*4,4)}, {v(self.areg[idx],4)}, {'0' if ss == 0 else v(d,4)}")
                if cc == 0 and self.p2_can(): self.p2_aload()
                elif fill: self.emit([fill.pop(0)])
                elif oq: self.emit([oq.pop(0)])
            self.free_ring.append(self.areg[idx])
            if j == nper - 3: ptoks = ploads()
        assert not fill
        self.stamp(10)
        rest = [x for x in oq if x is not NOP] + owr[3]
        if side == 0:
            for it in range(5): k(f"ds_read_b128 {v(ACS+it*16+4,4)}, v4 offset:{hfO*20480+it*1024}")
        self.emit(rest)
        def pcheck():
            regs = [ACS+it*16+12+e for it in range(5) for e in range(4)]
            k(f"v_xor_b32 v{VA}, s{S_PAT32}, v{regs[0]}")
            for r in regs[1:]: k(f"v_bitop3_b32 v{VA}, s{S_PAT32}, v{r}, v{VA} bitop3:0xbe")
            k(f"v_and_b32 v{VA}, 3, v{VA}\nv_cmp_ne_u32 vcc, 0, v{VA}")
        k("s_waitcnt lgkmcnt(0)\ns_barrier")
        toks = []
        for it in range(5):
            for sw in range(4):
                toks.append(k(f"ds_read_b128 {v(ACO+(it*4+sw)*4,4)}, v{RR+it} offset:{sw*RED_W}"))
        k.wait_vm(ptoks[4])
        def rl():
            ploads(); k("s_waitcnt vmcnt(0)")
        self.verify(pcheck, rl, "pp")
        self.stamp(11)
        if side == 0:
            for it in range(5):
                for h in range(2):
                    k(f"v_pk_add_f32 {v(ACS+it*16+12+2*h,2)}, {v(ACS+it*16+12+2*h,2)}, {v(ACS+it*16+4+2*h,2)}")
        for it in range(5):
            b = ACO + it*16
            k.wait_lg(toks[4*it+3])
            for h in range(2):
                k(f"v_pk_add_f32 {v(b+2*h,2)}, {v(b+2*h,2)}, {v(b+4+2*h,2)}")
                k(f"v_pk_add_f32 {v(b+8+2*h,2)}, {v(b+8+2*h,2)}, {v(b+12+2*h,2)}")
            for h in range(2):
                k(f"v_pk_add_f32 {v(b+2*h,2)}, {v(b+2*h,2)}, {v(ACS+it*16+12+2*h,2)}")
            for h in range(2):
                k(f"v_pk_add_f32 {v(b+2*h,2)}, {v(b+2*h,2)}, {v(b+8+2*h,2)}")
            k(f"buffer_store_dwordx4 {v(b,4)}, v{OO+it}, {s(SRD_OUT,4)}, s{S_OUT} offen {'sc1' if 'outsc1' in self.opt else 'nt' if 'outnt' in self.opt else ''}")
        self.stamp(12)
        self.finish_wg(side)

    def finish_wg(self, side):
        k = self.k
        if side == 0:
            k(f"""s_cmp_lg_u32 s{S_PW}, 0
            s_cbranch_scc1 L_fin0
            v_lshlrev_b32 v13, 8, v0""")
            def loads():
                for q in range(4):
                    k(f"s_mov_b32 s{S_T+1}, {WS_FA + q*64*4*FLS}")
                    k(f"buffer_load_dword v{16+q}, v13, {WS4}, s{S_T+1} offen sc1")
                k("s_waitcnt vmcnt(0)")
            def check():
                k(f"v_xor_b32 v14, s{S_TAG}, v16")
                for q in range(1, 4): k(f"v_bitop3_b32 v14, s{S_TAG}, v{16+q}, v14 bitop3:0xbe")
                k("v_cmp_ne_u32 vcc, 0, v14")
            loads()
            self.verify(check, loads, "pe")
            k(f"s_mov_b32 s{S_T}, {WS_EPOCH}")
            self.set_flag(S_T, 14)
            k.label("L_fin0")
        if self.spin:
            lb = k.newlabel("spin")
            k(f"s_add_u32 s101, s101, {self.spin}")
            k.label(lb)
            k(f"""s_memrealtime s[98:99]
            s_waitcnt lgkmcnt(0)
            s_sub_u32 s98, s98, s100
            s_cmp_lt_u32 s98, s101
            s_cbranch_scc1 {lb}""")
        if self.ts:
            k("s_waitcnt vmcnt(0)"); self.stamp(13); self.stamp_flush()
        k("s_endpgm")

    def build(self):
        k = self.k
        self.prologue()
        st = k.state()
        self.ssm()
        self.flush_slow()
        k.set_state(st)
        self.mlp()
        self.flush_slow()
        k.label("L_end")
        k("s_endpgm")
        if 'nob2' in self.opt:
            k.ins = [x for x in k.ins if not (x.op == 'buffer_load_dwordx4' and ' a[' in x.text)]
        if 'b2hot' in self.opt:
            for x in k.ins:
                if x.op == 's_add_u32' and x.text.startswith(f's_add_u32 s{P0+30},'): x.text = f's_add_u32 s{P0+30}, s{S_B2}, 0'
        if 'noa2' in self.opt:
            out = []; inp2 = False
            for x in k.ins:
                if 'phase 2 (side' in x.text: inp2 = True
                if x.op == 's_endpgm': inp2 = False
                if inp2 and (x.op == 's_cbranch_vccnz' or (x.op == 'buffer_load_dwordx4' and 'sc1' in x.text and ' a[' not in x.text)): continue
                out.append(x)
            k.ins = out
        if self.opt & {'nomfma', 'noread', 'nobar', 'nofill'}:
            out = []; inloop = False
            for x in k.ins:
                if 'k-step' in x.text: inloop = True
                if 'loop end' in x.text: inloop = False
                if inloop:
                    if 'nomfma' in self.opt and x.kind == 'mfma': continue
                    if 'noread' in self.opt and x.kind == 'ds': continue
                    if 'nobar' in self.opt and x.op == 's_barrier': continue
                    if 'nofill' in self.opt and (x.op == 's_cbranch_vccnz' or (x.kind == 'vmem' and not x.lds_dma) or 'v253' in x.text): continue
                out.append(x)
            k.ins = out
        body = k.finish()
        hdr = open("header.txt").read()
        return (hdr + f"""; @launch grid=(256,1,1) block=(256,1,1) lds=163840
.amdgcn_target "amdgcn-amd-amdhsa--gfx950"
.text
.globl {NAME}
.p2align 8
.type {NAME},@function
{NAME}:
""" + body + f""".section .rodata,"a"
.p2align 6
.amdhsa_kernel {NAME}
  .amdhsa_next_free_vgpr 512
  .amdhsa_next_free_sgpr 102
  .amdhsa_accum_offset 256
  .amdhsa_group_segment_fixed_size 0
  .amdhsa_kernarg_size 136
  .amdhsa_user_sgpr_count 2
  .amdhsa_user_sgpr_kernarg_segment_ptr 1
  .amdhsa_system_sgpr_workgroup_id_x 1
.end_amdhsa_kernel
""")

if __name__ == "__main__":
    import argparse
    ap = argparse.ArgumentParser()
    ap.add_argument("-o", default="k4.s")
    ap.add_argument("--stop", default=None)
    ap.add_argument("--ts", action="store_true")
    ap.add_argument("--spin", type=int, default=0)
    ap.add_argument("--seg", type=int, default=None)
    ap.add_argument("--opt", default="")
    a_ = ap.parse_args()
    g = G(stop=a_.stop, ts=a_.ts, spin=a_.spin, seg=a_.seg, opt=a_.opt.split(","))
    txt = g.build()
    open(a_.o, "w").write(txt)
    print("written", a_.o, "nops inserted:", g.k.nops, "lines:", txt.count("\n"), g.info)
```

```python
import sys, math, struct
sys.path.insert(0, "gen")
from emit import *

NAME = "parallel_sum__ssm_conv_s5__mixer_channel_mlp__prompt_kernel"
WS_EPOCH = 0
WS_FB = 0x1000
WS_FA = 0x11000
WS_AGG = 0x31000
WS_STG = 0x59000
WS_WSG = 0x61000
WS_B2S = [0x70000, 0x200000]
WS_A2 = [0x400000, 0x900000]
WS_PART = 0xF00000
WS_TS = 0x1400000
WS_SIZE = 0x1500000
FLS = 64
S_W = 3
SRD_X, SRD_W, SRD_WS, SRD_OUT, SRD_T1, SRD_T2 = 4, 8, 12, 16, 20, 24
S_TAG, S_TAG2, S_I, S_J, S_PAT = 28, 29, 30, 31, 32
S_PW = 33
S_FLAG = 34
S_OUT = 35
S_XO = 36
S_WO = 40
S_MX, S_MW = 45, 46
S_B2 = 47
S_T = 48
P0 = 64
def ptr(n): return s(P0 + 2*n, 2)
S_PAT32 = P0 + 18
S_NM = P0 + 19
S_WRAP, S_ST1, S_ST2 = 2, 0, 1
S_TS = 98
S_ST1K, S_ST2K = P0 + 2, P0 + 3
LOG2E = 1.4426950408889634
EPS = 1e-5
def fbits(x): return "0x%08x" % struct.unpack("<I", struct.pack("<f", x))[0]
POLL_MAX = 20000
LDS_RED = 16384
RED_RS = 336
RED_W = 64 * RED_RS
L_R = 106496
WS4 = s(SRD_WS, 4)
NOP = lambda: None
PAD = object()
class W2(str):
    pass

ST = dict(E=200, CH=201, PUB=202, TB=203, GA=204, VA=205, QE=206, CW=207, CR=208, TW=209, TR=210, PAT=211,
          RD=212, ROW=236, C4=241, RW=246)
S_MK = 68
S_FAP, S_RECV, S_SEND = 95, 88, 96
ST_M = 240
S_AG1, S_AG4, S_A2B, S_RX, S_RL, S_RJ = 78, 79, 84, 85, 86, 87
class C5:
    def __init__(self, re, im=None, st=1):
        self.re = re; self.im = re + 1 if im is None else im; self.st = 2 if im is None else st
    def r(self, b): return self.re + self.st*b
    def i(self, b): return self.im + self.st*b

class G:
    def __init__(self, stop=None, ts=False, spin=0, seg=None, opt=()):
        self.k = Emit(); self.slow = []; self.stop = stop; self.ts = ts; self.spin = spin; self.seg = seg; self.opt = set(opt)

    def P(self, name, default):
        for o in self.opt:
            if o.startswith(name + "="): return float(o.split("=")[1])
        return default
    def stamp(self, idx):
        k = self.k
        if self.seg == idx:
            k("s_memrealtime s[98:99]\ns_waitcnt lgkmcnt(0)\ns_sub_u32 s101, s98, s100")
        if not self.ts: return
        k(f"{'s_memtime' if 'cyc' in self.opt else 's_memrealtime'} {s(S_TS,2)}")
        k("s_waitcnt lgkmcnt(0)")
        k(f"v_writelane_b32 v255, s{S_TS}, {idx}")
    def fine(self, idx):
        if 'fine' in self.opt: self.stamp(idx)
    def fine3(self):
        if 'fine3' in self.opt:
            self.stamp(16 + self.nf3); self.nf3 += 1
    def fine2(self):
        if 'fine2' in self.opt:
            self.stamp(16 + self.nf2); self.nf2 += 1
    def stamp_flush(self):
        if not self.ts: return
        self.k(f"""s_lshl_b32 s{S_T}, s99, 2
        v_readlane_b32 s{S_T}, v255, 63
        s_nop 3
        s_lshl_b32 s{S_T}, s{S_T}, 2
        s_add_u32 s{S_T}, s{S_T}, s{S_W}
        s_lshl_b32 s{S_T}, s{S_T}, 8
        s_add_u32 s{S_T}, s{S_T}, {WS_TS}
        v_mbcnt_lo_u32_b32 v254, -1, 0
        v_mbcnt_hi_u32_b32 v254, -1, v254
        v_lshlrev_b32 v254, 2, v254
        buffer_store_dword v255, v254, {WS4}, s{S_T} offen""")
    def early_stop(self, name):
        if self.stop != name: return False
        self.k("s_waitcnt vmcnt(0)"); self.stamp(13); self.stamp_flush(); self.k("s_endpgm")
        return True

    def srd(self, base, pn, size):
        self.k(f"""s_mov_b32 s{base}, s{P0+2*pn}
        s_and_b32 s{base+1}, s{P0+2*pn+1}, 0xffff
        s_mov_b32 s{base+2}, {size}
        s_mov_b32 s{base+3}, 0x20000""")
    def verify(self, check, reload, name, checked=False):
        k = self.k
        slow = k.newlabel(name); done = k.newlabel(name + "d")
        if not checked: check()
        k(f"s_cbranch_vccnz {slow}")
        k.label(done)
        self.slow.append((slow, done, check, reload))
    def flush_slow(self):
        k = self.k
        for slow, done, check, reload in self.slow:
            top = k.newlabel(slow + "t")
            k.label(slow)
            if self.ts:
                bit = {'pb': 1, 'pg': 2, 'ps': 2, 'pc': 4, 'va': 8, 'fa': 16, 'pp': 32, 'pe': 64}[slow[:2]]
                k(f"v_readlane_b32 s{S_T+15}, v255, 15\ns_nop 3\ns_or_b32 s{S_T+15}, s{S_T+15}, {bit}\nv_writelane_b32 v255, s{S_T+15}, 15")
            k(f"s_mov_b32 s{S_T+15}, {POLL_MAX}")
            k.label(top)
            reload()
            check()
            k(f"""s_cbranch_vccz {done}
            s_sub_u32 s{S_T+15}, s{S_T+15}, 1
            s_cmp_lg_u32 s{S_T+15}, 0
            s_cbranch_scc1 {top}
            s_branch {done}""")
        self.slow = []
    def set_flag(self, soff, vtmp, off=0):
        return self.k(f"""v_mov_b32 v{vtmp}, s{S_TAG}
        s_mov_b64 exec, 1
        buffer_store_dword v{vtmp}, off, {WS4}, s{soff} offset:{off} sc1
        s_mov_b64 exec, -1""")
    def capture(self, fn):
        real = self.k; rec = Emit(); rec._lab = real._lab
        self.k = rec
        try: fn(rec)
        finally: self.k = real
        L = [x.text for x in rec.ins]
        assert all(x.kind in ("salu", "valu", "trans") and not x.op.startswith("s_waitcnt") for x in rec.ins)
        out = []; i = 0
        while i < len(L):
            if L[i].startswith(("s_cmp", "s_bitcmp")):
                j = i + 1; last = i
                while j < len(L) and L[j].startswith(("s_cselect", "s_mov")):
                    if L[j].startswith("s_cselect"): last = j
                    j += 1
                out.append("\n".join(L[i:last+1])); i = last + 1
            else:
                out.append(L[i]); i += 1
        return out
    def emit(self, L):
        for x in L:
            x() if callable(x) else self.k(x)
    def sprinkle(self, work, q, lead=0):
        k = self.k; q = list(q); n0 = len(q); masked = False
        for i, w_ in enumerate(work):
            self.emit([w_])
            if isinstance(w_, str):
                if w_.startswith(("s_mov_b32 exec", "s_mov_b64 exec, s")) or "s_cselect_b64 exec" in w_: masked = True
                if w_.startswith("s_mov_b64 exec, -1"): masked = False
            while q and not masked and i >= lead and (n0 - len(q) + 1)*(len(work) - lead) <= (i - lead + 1)*(n0 + 1) + n0:
                q.pop(0)()
        for f in q: f()
    def cpow(self, dre, dim, n, zr, zi, t):
        return [f"v_mul_f32 v{t}, {n}, v{zi}", f"v_mul_f32 v{dre}, {n}, v{zr}", f"v_fract_f32 v{t}, v{t}",
                f"v_exp_f32 v{dre}, v{dre}", f"v_sin_f32 v{dim}, v{t}", f"v_cos_f32 v{t}, v{t}",
                f"v_mul_f32 v{dim}, v{dim}, v{dre}", f"v_mul_f32 v{dre}, v{t}, v{dre}"]
    def cmul5(self, d, x, y, c=None):
        L = []
        for b in range(5):
            L.append(f"v_mul_f32 v{d.r(b)}, v{x.r(b)}, v{y.r(b)}" if c is None else f"v_fma_f32 v{d.r(b)}, v{x.r(b)}, v{y.r(b)}, v{c.r(b)}")
            L.append(f"v_mul_f32 v{d.i(b)}, v{x.r(b)}, v{y.i(b)}" if c is None else f"v_fma_f32 v{d.i(b)}, v{x.r(b)}, v{y.i(b)}, v{c.i(b)}")
        for b in range(5):
            L.append(f"v_fma_f32 v{d.r(b)}, -v{x.i(b)}, v{y.i(b)}, v{d.r(b)}")
            L.append(f"v_fma_f32 v{d.i(b)}, v{x.i(b)}, v{y.r(b)}, v{d.i(b)}")
        return L
    def div20(self, q, r, x):
        return [f"v_mul_u32_u24 v{q}, 3277, v{x}", f"v_lshrrev_b32 v{q}, 16, v{q}", f"v_mul_u32_u24 v{r}, 20, v{q}", f"v_sub_u32 v{r}, v{x}, v{r}"]

    def prologue(self):
        k = self.k
        k(f"""s_cmp_ge_u32 s2, 256
        s_cbranch_scc1 L_end""")
        if self.spin: k("s_memrealtime s[100:101]")
        if 'align' in self.opt:
            k("""s_memrealtime s[98:99]
            s_waitcnt lgkmcnt(0)
            s_add_u32 s100, s98, 300
            s_and_b32 s100, s100, 0xfffffc00
            s_add_u32 s100, s100, 1024""")
            k.label("L_align")
            k("""s_memrealtime s[98:99]
            s_waitcnt lgkmcnt(0)
            s_cmp_lt_u32 s98, s100
            s_cbranch_scc1 L_align""")
        k(f"""s_load_dwordx16 {s(P0,16)}, s[0:1], 0
        s_load_dwordx16 {s(P0+16,16)}, s[0:1], 64
        s_load_dwordx2 {s(P0+32,2)}, s[0:1], 128""")
        if 'nopf' not in self.opt:
            k(f"""s_getpc_b64 {s(S_T,2)}""")
            k.label("L_pc")
            k(f"""s_bitcmp1_b32 s2, 0
            s_cselect_b32 s{S_T+2}, L_mlp-L_pc, 0
            s_add_u32 s{S_T}, s{S_T}, s{S_T+2}
            s_addc_u32 s{S_T+1}, s{S_T+1}, 0
            s_lshr_b32 s{S_T+2}, s2, 3
            s_lshl_b32 s{S_T+2}, s{S_T+2}, 10
            v_lshl_add_u32 v254, v0, 2, s{S_T+2}
            global_load_dword v254, v254, {s(S_T,2)}""")
        k("s_bitcmp1_b32 s2, 0\ns_cbranch_scc1 L_mlp")
        self.LV = 252; self.PV = 253

    def common_a(self):
        k = self.k
        if self.ts: k("v_mov_b32 v255, 0\nv_writelane_b32 v255, s2, 63")
        k(f"""v_lshrrev_b32 v1, 6, v0
        v_and_b32 v0, 63, v0
        v_readfirstlane_b32 s{S_W}, v1
        s_bfe_u32 s{S_T}, s2, 0x20001
        s_lshr_b32 s{S_T+1}, s2, 6           ; c = id>>6
        s_lshl_b32 s{S_I}, s{S_T+1}, 2
        s_add_u32 s{S_I}, s{S_I}, s{S_T}
        s_bfe_u32 s{S_J}, s2, 0x30003        ; j = (id>>3)&7
        s_lshl_b32 s{S_T}, s{S_I}, 3
        s_add_u32 s{S_T}, s{S_T}, s{S_J}
        s_lshl_b32 s{S_T}, s{S_T}, 2
        s_add_u32 s{S_PW}, s{S_T}, s{S_W}    ; (i*8+j)*4+w
        s_lshl_b32 s{S_FLAG}, s{S_PW}, 6
        s_lshl_b32 s{S_MX}, s{S_W}, 12
        s_lshl_b32 s{S_T+2}, s{S_I}, 7
        s_lshl_b32 s{S_T+3}, s{S_W}, 5
        s_add_u32 s{S_T+2}, s{S_T+2}, s{S_T+3}
        s_mul_i32 s{S_XO}, s{S_T+2}, 1280
        v_lshrrev_b32 v11, 4, v0                 ; g
        v_and_b32 v13, 7, v0
        v_xor_b32 v12, v13, v11
        v_lshlrev_b32 v12, 4, v12
        v_lshrrev_b32 v3, 3, v0
        v_mul_u32_u24 v3, 1280, v3
        v_lshl_add_u32 v253, v13, 4, v3          ; (l>>3)*1280 + (l&7)*16
        v_add_u32 v3, v3, v12                    ; (l>>3)*1280 + swz
        v_lshlrev_b32 v252, 4, v0
        """)
    def common_b(self):
        k = self.k
        k("s_waitcnt lgkmcnt(0)")
        if self.spin: k("s_mov_b32 s101, 0")
        k(f"s_load_dword s{S_TAG}, {ptr(16)}, {WS_EPOCH}")
        k(f"""s_mov_b32 s{SRD_X}, s{P0}
        s_mov_b32 s{SRD_X+1}, s{P0+1}
        s_mov_b32 s{SRD_X+2}, 2621440
        s_mov_b32 s{SRD_X+3}, 0x20000
        s_mov_b32 s{SRD_WS}, s{P0+32}
        s_mov_b32 s{SRD_WS+1}, s{P0+33}
        s_mov_b32 s{SRD_WS+2}, {WS_SIZE}
        s_mov_b32 s{SRD_WS+3}, 0x20000""")

    def make_tag(self):
        self.k(f"""s_waitcnt lgkmcnt(0)
        s_bitcmp1_b32 s{S_TAG}, 0
        s_cselect_b32 s{S_PAT}, 0x10000, 1        ; payload tag bits alternate from launch to launch
        s_cselect_b32 s{S_PAT32}, 2, 1
        s_mul_i32 s{S_TAG}, s{S_TAG}, 0x9E3779B1
        s_add_u32 s{S_TAG}, s{S_TAG}, 0x7F4A7C15
        s_and_b32 s{S_TAG}, s{S_TAG}, 0xfffefffc
        s_or_b32 s{S_TAG}, s{S_TAG}, s{S_PAT}
        s_or_b32 s{S_TAG}, s{S_TAG}, s{S_PAT32}
        s_xor_b32 s{S_TAG2}, s{S_TAG}, 0x5bd1e995
        s_brev_b32 s{S_TAG2}, s{S_TAG2}
        s_mov_b32 s{S_NM}, 0xfffefffe""")

    def rowstat_setup(self, s_row, s_cl, va, vr):
        self.k(f"""v_min_u32 v{vr}, s{s_cl}, v11
        v_mul_u32_u24 v{va}, 1280, v{vr}
        v_and_b32 v13, 15, v0
        v_lshl_add_u32 v{va}, v13, 4, v{va}
        v_lshlrev_b32 v{vr}, 4, v{vr}
        s_mul_i32 s{s_row}, s{s_row}, 1280""")
    def rowstat_loads(self, srd, s_row, va, R0):
        L = []
        for q in range(5):
            def f(q=q): self.rs_tok[q] = self.k(f"buffer_load_dwordx4 {v(R0+4*q,4)}, v{va}, {s(srd,4)}, s{s_row} offen offset:{256*q}")
            L.append(f)
        self.rs_tok = {}
        return L
    def rowstat_fill(self, R0, A0, T0, vr, s_dst, sq=True):
        k = self.k; L = []
        for q in range(20):
            if q % 4 == 0: L.append(lambda q=q: k.wait_vm(self.rs_tok[q//4]))
            t0, t1 = T0 + 2*(q % 2), T0 + 2*(q % 2) + 1
            L += [f"v_lshlrev_b32 v{t0}, 16, v{R0+q}", f"v_and_b32 v{t1}, 0xffff0000, v{R0+q}"]
            if q == 0: L += [f"v_add_f32 v{A0}, v{t0}, v{t1}", f"v_mul_f32 v{A0+2}, v{t0}, v{t0}", f"v_fmac_f32 v{A0+2}, v{t1}, v{t1}"]
            else: L += [f"v_add_f32 v{A0}, v{A0}, v{t0}", f"v_fmac_f32 v{A0+2}, v{t0}, v{t0}", f"v_add_f32 v{A0}, v{A0}, v{t1}", f"v_fmac_f32 v{A0+2}, v{t1}, v{t1}"]
        L += [f"v_mov_b32 v{A0+1}, s{S_TAG}", f"v_mov_b32 v{A0+3}, s{S_TAG2}"]
        for r in (8, 4, 2, 1):
            L += [f"v_add_f32_dpp v{A0}, v{A0}, v{A0} row_ror:{r} row_mask:0xf bank_mask:0xf", f"v_add_f32_dpp v{A0+2}, v{A0+2}, v{A0+2} row_ror:{r} row_mask:0xf bank_mask:0xf"]
        if not sq: L = [x for x in L if callable(x) or not x.split(",")[0].endswith((f"v{A0+2}", f"v{A0+3}"))]
        L.append(lambda: k(f"""s_mov_b32 exec_lo, 0x00010001
        s_mov_b32 exec_hi, 0x00010001
        buffer_store_dwordx{4 if sq else 2} {v(A0,4 if sq else 2)}, v{vr}, {WS4}, s{s_dst} offen sc1
        s_mov_b64 exec, -1"""))
        return L
    def rowstat_batch(self, R0, A0, vr, s_dst, sq=True):
        k = self.k
        k.wait_vm(self.rs_tok[4])
        k(f"s_mov_b32 s{S_T+4}, 0x3f803f80\nv_mov_b32 v{A0+1}, s{S_TAG}")
        if sq: k(f"v_mov_b32 v{A0+3}, s{S_TAG2}")
        for q in range(20):
            k(f"v_dot2_f32_bf16 v{A0}, v{R0+q}, s{S_T+4}, {'0' if q == 0 else v(A0)}")
            if sq: k(f"v_dot2_f32_bf16 v{A0+2}, v{R0+q}, v{R0+q}, {'0' if q == 0 else v(A0+2)}")
        for r in (8, 4, 2, 1):
            k(f"v_add_f32_dpp v{A0}, v{A0}, v{A0} row_ror:{r} row_mask:0xf bank_mask:0xf")
            if sq: k(f"v_add_f32_dpp v{A0+2}, v{A0+2}, v{A0+2} row_ror:{r} row_mask:0xf bank_mask:0xf")
        k(f"""s_mov_b32 exec_lo, 0x00010001
        s_mov_b32 exec_hi, 0x00010001
        buffer_store_dwordx{4 if sq else 2} {v(A0,4 if sq else 2)}, v{vr}, {WS4}, s{s_dst} offen sc1
        s_mov_b64 exec, -1""")
    @staticmethod
    def cost(x):
        if callable(x): return 1
        if x.startswith(("v_exp", "v_rcp", "v_rsq", "v_sin", "v_cos")): return 2
        return 1
    def take_fill(self, fq, n, cap):
        out = []
        while fq:
            x = fq[0]
            if isinstance(x, tuple):
                if x[0] == 'at':
                    if n < x[1]: break
                    fq.pop(0); continue
                if x[0] == 'mark':
                    self.marks[x[1]] = n; fq.pop(0); continue
            c = self.cost(x)
            if cap <= 0 or (c > cap and out): break
            cap -= c; out.append(fq.pop(0))
        return out
    def dma_reset(self):
        self.m0 = None; self.vstage = {}; self.sstage = 0
    def tile_of(self, t, dst):
        o = self.opt; r = S_WRAP
        if 'blk4' in o:
            if t < 8: return f"s_add_u32 s{dst}, s{r}, {t}\ns_and_b32 s{dst}, s{dst}, 3\ns_or_b32 s{dst}, s{dst}, {t & ~3}"
            return f"s_and_b32 s{dst}, s{r}, 1\ns_xor_b32 s{dst}, s{dst}, {t}"
        if 'blk5' in o:
            return f"s_add_u32 s{dst}, s{r}, {t % 5}\ns_cmp_ge_u32 s{dst}, 5\ns_cselect_b32 s{S_ST2K}, 5, 0\ns_sub_u32 s{dst}, s{dst}, s{S_ST2K}\ns_add_u32 s{dst}, s{dst}, {t - t % 5}"
        if 'rotlat' in o:
            return f"s_add_u32 s{dst}, s{r}, {t}\ns_cmp_ge_u32 s{dst}, 10\ns_cselect_b32 s{S_ST2K}, 10, 0\ns_sub_u32 s{dst}, s{dst}, s{S_ST2K}"
        return f"s_xor_b32 s{dst}, s{r}, {t}"
    def rot_setup(self, regs128, regsW):
        k = self.k; o = self.opt; r = S_WRAP
        k(f"s_lshr_b32 s{S_T}, s{S_I}, 2")
        if 'rot0' in o: k(f"s_mov_b32 s{r}, 0")
        elif 'blk4' in o: k(f"s_add_u32 s{r}, s{S_T}, s{S_J}\ns_and_b32 s{r}, s{r}, 3")
        elif 'blk5' in o: k(f"s_add_u32 s{r}, s{S_T}, s{S_J}\ns_and_b32 s{r}, s{r}, 3")
        elif 'rotlat' in o: k(f"s_lshl_b32 s{S_T}, s{S_T}, 1\ns_add_u32 s{S_T}, s{S_T}, s{S_J}\ns_and_b32 s{S_T}, s{S_T}, 7\ns_mul_i32 s{S_T}, s{S_T}, 5\ns_lshr_b32 s{r}, s{S_T}, 2")
        else: k(f"s_add_u32 s{r}, s{S_T}, s{S_J}\ns_and_b32 s{r}, s{r}, 1")
        k(f"s_mov_b32 s{S_ST1}, s{r}\ns_lshl_b32 s{S_ST2}, s{r}, 7")
        for x in regs128: k(f"v_add_u32 v{x}, s{S_ST2}, v{x}")
        if regsW: k(f"s_mul_i32 s{S_ST2}, s{S_ST2}, 1536")
    def dma(self, m0, ld, vreg=None, t=0, step=0):
        k = self.k
        def pre():
            if self.m0 != m0:
                k(f"s_add_u32 m0, s{m0[0]}, {m0[1]}"); self.m0 = m0
            if vreg is not None and self.vstage.get(vreg, 0) != t:
                assert self.vstage.get(vreg, 0) == t - 1
                if self.sstage != t:
                    k(self.tile_of(t, S_ST2))
                    k(f"s_sub_u32 s{S_ST1K}, s{S_ST2}, s{S_ST1}\ns_mov_b32 s{S_ST1}, s{S_ST2}\ns_lshl_b32 s{S_ST1K}, s{S_ST1K}, 7")
                    if self.has_w: k(f"s_mul_i32 s{S_ST2K}, s{S_ST1K}, 1536")
                    self.sstage = t
                k(f"v_add_u32 v{vreg}, s{S_ST1K if step == 128 else S_ST2K}, v{vreg}"); self.vstage[vreg] = t
        return pre, ld

    def unit_decode(self, nunits, U):
        self.k(f"""s_sub_u32 s{S_T}, s{S_PW}, {nunits}
        s_cmp_lt_u32 s{S_PW}, {nunits}
        s_cselect_b32 s{U}, s{S_PW}, s{S_T}
        s_mul_i32 s{S_T+2}, s{U}, 6554
        s_lshr_b32 s{S_T+2}, s{S_T+2}, 16
        s_mul_i32 s{S_T}, s{S_T+2}, 10
        s_sub_u32 s{S_T}, s{U}, s{S_T}""")

    def b2_setup(self, side):
        k = self.k; vl = self.PV
        S = [40, 48][side]; KS = [10, 12][side]
        if side == 0:
            V = f"""v_min_u32 v{vl}, 14, v0
            v_mul_u32_u24 v{vl+1}, 86, v{vl}
            v_lshrrev_b32 v{vl+1}, 8, v{vl+1}
            v_mul_u32_u24 v{vl+1}, 7, v{vl+1}
            v_add_lshl_u32 v{vl}, v{vl}, v{vl+1}, 6"""
            L = f"""s_mul_i32 s{S_T+12}, s{S_W}, 10
            s_lshr_b32 s{S_T+12}, s{S_T+12}, 2
            s_mul_i32 s{S_T+3}, s{S_J}, 50"""
        else:
            V = f"""v_min_u32 v{vl}, 23, v0
            v_lshrrev_b32 v{vl+1}, 1, v{vl}
            v_lshlrev_b32 v{vl+1}, 3, v{vl+1}
            v_add_lshl_u32 v{vl}, v{vl}, v{vl+1}, 6"""
            L = f"""s_mul_i32 s{S_T+12}, s{S_W}, 120
            s_mul_i32 s{S_T+3}, s{S_J}, 5
            s_lshr_b32 s{S_T+3}, s{S_T+3}, 2"""
        k(L + f"""
        s_add_u32 s{S_T+12}, s{S_T+12}, s{S_T+3}
        s_lshl_b32 s{S_T+12}, s{S_T+12}, 6
        s_add_u32 s{S_T+12}, s{S_T+12}, {WS_FB + side*512*FLS}
        s_mul_i32 s{S_B2}, s{S_J}, {5*S}
        s_mul_i32 s{S_T+3}, s{S_W}, {KS}
        s_add_u32 s{S_B2}, s{S_B2}, s{S_T+3}
        s_lshl_b32 s{S_B2}, s{S_B2}, 10
        s_add_u32 s{S_B2}, s{S_B2}, {WS_B2S[side]}""")
        self.order = [[0, 5, 1, 6, 2, 7, 3, 8, 4, 9], [0, 3, 6, 9, 1, 4, 7, 10, 2, 5, 8, 11]][side]
        self.b2tok = {}; self.b2q = []
        for ss in self.order:
            for cc in range(5):
                def ld(ss=ss, cc=cc):
                    k = self.k
                    k(f"s_add_u32 s{P0+30}, s{S_B2}, {(cc*S + ss)*1024}")
                    self.b2tok[ss, cc] = k(f"buffer_load_dwordx4 {a((ss*5+cc)*4,4)}, v{self.LV}, {WS4}, s{P0+30} offen sc1")
                self.b2q.append(ld)
        return [x.strip() for x in V.split("\n")]
    def touch(self, side, vt):
        k = self.k
        nx = 20; nw = [25, 30][side]
        def f1():
            k(f"""s_add_u32 s{S_T}, s{S_PW}, {512*side}
            s_mul_i32 s{S_T}, s{S_T}, {nx*128}
            v_min_u32 v{vt}, {nx-1}, v0
            v_lshlrev_b32 v{vt}, 7, v{vt}
            buffer_load_dword v{vt}, v{vt}, {s(SRD_X,4)}, s{S_T} offen""")
        def f2():
            if side == 0: k(f"s_lshr_b32 s{S_T}, s{S_PW}, 2\ns_lshl_b32 s{S_T}, s{S_T}, 1\ns_and_b32 s{S_T+1}, s{S_W}, 1\ns_add_u32 s{S_T}, s{S_T}, s{S_T+1}")
            else: k(f"s_mov_b32 s{S_T}, s{S_PW}")
            k(f"""s_mul_i32 s{S_T}, s{S_T}, {nw*128}
            v_min_u32 v{vt+1}, {nw-1}, v0
            v_lshlrev_b32 v{vt+1}, 7, v{vt+1}
            buffer_load_dword v{vt+1}, v{vt+1}, {s(SRD_W,4)}, s{S_T} offen""")
        def f3():
            k(f"""v_min_u32 v{vt}, 9, v0
            v_lshlrev_b32 v{vt}, 21, v{vt}
            v_min_u32 v{vt+1}, 2, v0
            v_lshlrev_b32 v{vt+1}, 21, v{vt+1}
            buffer_load_dword v{vt}, v{vt}, {WS4}, 0 offen offset:2048
            global_load_dword v{vt+1}, v{vt+1}, {ptr(14)}""")
            if side == 0:
                k(f"""v_mov_b32 v{vt-2}, 0
                global_load_dword v{vt-1}, v{vt-2}, {ptr(8)}
                global_load_dword v{vt-2}, v{vt-2}, {ptr(13)}""")
        if 'tlb' in self.opt: return [f3]
        return [f1, f2] if 'touch' in self.opt else []
    def b2_take(self, n):
        out = self.b2q[:n]; self.b2q = self.b2q[n:]
        return out
    def b2_poll(self):
        self.pbtok = self.k(f"buffer_load_dword v254, v{self.PV}, {WS4}, s{S_T+12} offen sc1")
    def b2_check(self):
        k = self.k
        k.wait_vm(self.pbtok)
        def rl(): k(f"buffer_load_dword v254, v{self.PV}, {WS4}, s{S_T+12} offen sc1\ns_waitcnt vmcnt(0)")
        self.verify(lambda: k(f"v_cmp_ne_u32 vcc, s{S_TAG}, v254"), rl, "pb")

    TB_RS = 184
    def ssm(self):
        k = self.k
        ACC = 16; FR = [96, 144]
        XE, XO, WA, WB = 1, 2, 3, 4
        PV = self.PV; LV = self.LV; RS = self.TB_RS
        STG0, STGS = 16384, 36864
        S_RSROW, SW0, S_GW, S_GT, D2, S_RSDST, S_FB = S_T+5, S_T+6, S_T+8, S_T+9, S_T+10, S_T+13, S_T+14
        acc = lambda a_, tt: ACC + (a_*10 + tt)*4
        k.c("================ SSM side, phase 1")
        self.common_a()
        self.nf3 = 0; self.marks = {}
        k(f"""v_lshrrev_b32 v13, 3, v0
        v_and_b32 v13, 3, v13
        v_lshrrev_b32 v15, 5, v0
        v_lshl_add_u32 v13, v15, 3, v13
        v_mul_u32_u24 v{XE}, 1280, v13
        v_add_u32 v{XE}, v{XE}, v12
        v_xor_b32 v{XO}, 64, v{XE}
        s_and_b32 s{S_T+4}, s{S_W}, 1
        s_lshl_b32 s{S_T+1}, s{S_T+4}, 6
        v_xor_b32 v{WA}, s{S_T+1}, v{WA}
        v_xor_b32 v{WB}, 64, v{WA}
        s_add_u32 s{S_XO+1}, s{S_XO}, {16*1280 - 1024}
        s_add_u32 s{S_XO+2}, s{S_XO}, {4*1280 - 2048}
        s_add_u32 s{S_XO+3}, s{S_XO}, {20*1280 - 3072}""")
        stage_tok = {}; stage_cnt = {}
        self.dma_reset(); self.has_w = False
        self.rot_setup([XE, XO, WA, WB], False)
        self.common_b()
        self.stamp(0); self.fine3()
        def dma_list(t):
            base = STG0 + (t % 4)*STGS
            L = []
            def mk(ld):
                def f():
                    stage_tok[t] = k(ld); stage_cnt[t] = stage_cnt.get(t, 0) + 1
                return f
            for e in range(4):
                vr = XE if e % 2 == 0 else XO
                L.append(self.dma((S_MX, base), mk(f"buffer_load_dwordx4 v{vr}, {s(SRD_X,4)}, s{S_XO+e} offen offset:{e*1024} lds"), vr, t, 128))
            for e in range(5):
                vr = WA if e % 2 == 0 else WB
                L.append(self.dma((S_MW, base + 16384 + (e//4)*4096), mk(f"buffer_load_dwordx4 v{vr}, {s(SRD_W,4)}, s{S_WO+e} offen offset:{(e%4)*1024} lds"), vr, t, 128))
            return L
        d0 = dma_list(0)
        for p in d0[:4]: self.emit(p)
        k(f"""s_cmp_lt_u32 s{S_W}, 2
        s_cselect_b32 s{SRD_W}, s{P0+6}, s{P0+8}
        s_cselect_b32 s{SRD_W+1}, s{P0+7}, s{P0+9}
        s_mov_b32 s{SRD_W+2}, 819200
        s_mov_b32 s{SRD_W+3}, 0x20000
        s_mul_i32 s{S_T+7}, s{S_J}, 80
        s_mul_i32 s{S_T+3}, s{S_T+4}, 40
        s_add_u32 s{S_T+2}, s{S_T+7}, s{S_T+3}
        s_mul_i32 s{S_WO}, s{S_T+2}, 1280
        s_add_u32 s{S_WO+1}, s{S_WO}, {8*1280 - 1024}
        s_add_u32 s{S_WO+2}, s{S_WO}, {16*1280 - 2048}
        s_add_u32 s{S_WO+3}, s{S_WO}, {24*1280 - 3072}
        s_add_u32 s{S_WO+4}, s{S_WO}, {32*1280}
        s_mul_i32 s{S_MW}, s{S_W}, 5120""")
        self.emit(d0[4])
        VLR, VLI, VDT, ZR, ZI, VT, VP, TA, TB_ = 218, 219, 220, 221, 222, 223, 224, 225, 226
        self.emit(self.div20(VT, VP, 0))
        k(f"""s_mul_i32 s{S_T+1}, s{S_W}, 20
        v_add_u32 v{VP}, s{S_T+1}, v{VP}
        v_add_lshl_u32 v{VDT}, v{VP}, s{S_T+7}, 1""")
        def vec():
            k(f"global_load_ushort v{VLR}, v{VDT}, {ptr(1)}\nglobal_load_ushort v{VLI}, v{VDT}, {ptr(2)}")
            self.vec_tok = k(f"global_load_ushort v{VDT}, v{VDT}, {ptr(7)}")
        d1 = dma_list(1)
        R0, A0, T0 = 192, 212, 227
        rs = self.rowstat_loads(SRD_T1, S_RSROW, 15, R0)
        def setup(k):
            k(f"""s_cmp_lt_u32 s{S_I}, 8
            s_cselect_b32 s{SRD_T1}, s{P0+6}, s{P0+8}
            s_cselect_b32 s{SRD_T1+1}, s{P0+7}, s{P0+9}
            s_mov_b32 s{SRD_T1+2}, 819200
            s_mov_b32 s{SRD_T1+3}, 0x20000
            s_mul_i32 s{S_T+4}, s{S_W}, 3
            s_and_b32 s{S_T+2}, s{S_I}, 7
            s_mul_i32 s{S_T+2}, s{S_T+2}, 10
            s_add_u32 s{S_T+2}, s{S_T+2}, s{S_T+7}
            s_add_u32 s{S_RSROW}, s{S_T+2}, s{S_T+4}     ; rows 80j + 10(i%8) + 3w + ..
            s_mul_i32 s{S_T+3}, s{S_J}, 160
            s_mul_i32 s{S_T+6}, s{S_I}, 10
            s_add_u32 s{S_T+3}, s{S_T+3}, s{S_T+6}
            s_add_u32 s{S_T+3}, s{S_T+3}, s{S_T+4}
            s_lshl_b32 s{S_T+3}, s{S_T+3}, 4
            s_add_u32 s{S_RSDST}, s{S_T+3}, {WS_WSG}
            s_cmp_eq_u32 s{S_W}, 3
            s_cselect_b32 s{S_T+1}, 0, 2""")

            self.rowstat_setup(S_RSROW, S_T+1, 15, 14)

            self.unit_decode(400, S_FB)
            k(f"""s_mul_i32 s{S_T+1}, s{S_T+2}, {16*1280}
            s_lshl_b32 s{S_T+3}, s{S_T}, 7
            s_add_u32 s{SW0}, s{S_T+1}, s{S_T+3}
            s_add_u32 s{SW0+1}, s{SW0}, {8*1280 - 1024}
            s_mul_i32 s{S_T+3}, s{S_T+2}, 40
            s_lshl_b32 s{S_T+4}, s{S_T}, 2
            s_add_u32 s{S_T+3}, s{S_T+3}, s{S_T+4}
            s_lshl_b32 s{S_T+3}, s{S_T+3}, 10
            s_add_u32 s{D2}, s{S_T+3}, {WS_B2S[0]}
            s_lshl_b32 s{S_FB}, s{S_FB}, 6
            s_add_u32 s{S_FB}, s{S_FB}, {WS_FB}
            s_mul_i32 s{S_GW}, s{S_J}, 2560
            s_mul_i32 s{S_T}, s{S_W}, 640
            s_add_u32 s{S_GW}, s{S_GW}, s{S_T}
            s_add_u32 s{S_GW}, s{S_GW}, {WS_WSG}
            s_lshl_b32 s{S_GT}, s{S_I}, 11
            s_lshl_b32 s{S_T}, s{S_W}, 9
            s_add_u32 s{S_GT}, s{S_GT}, s{S_T}
            s_add_u32 s{S_GT}, s{S_GT}, {WS_STG}
            v_and_b32 v11, 15, v0
            v_lshrrev_b32 v12, 4, v0
            v_lshrrev_b32 v13, 1, v11
            v_xor_b32 v13, v13, v12
            v_lshlrev_b32 v13, 4, v13
            v_lshl_add_u32 v13, v11, 7, v13
            v_add_u32 v5, {STG0}, v13
            v_add_u32 v5, s{S_MX}, v5
            v_xor_b32 v6, 64, v5
            v_add_u32 v7, {STG0+16384}, v13
            v_xor_b32 v8, 64, v7
            v_add_u32 v9, {2*STGS}, v5
            v_add_u32 v10, {2*STGS}, v6
            v_add_u32 v250, {2*STGS}, v7
            v_add_u32 v251, {2*STGS}, v8
            v_lshlrev_b32 v13, 7, v11
            v_lshrrev_b32 v12, 5, v0
            v_lshl_add_u32 v13, v12, 11, v13
            v_bfe_u32 v12, v0, 4, 1
            v_lshl_add_u32 v13, v12, 4, v13
            v_add_u32 v13, s{S_MX}, v13
            v_mul_u32_u24 v11, {RS}, v11             ; table row of this lane's column
            v_mul_u32_u24 v{TA}, {RS}, v{VP}
            v_and_b32 v216, 31, v0
            v_lshlrev_b32 v216, 4, v216
            v_min_u32 v217, 39, v0
            v_lshlrev_b32 v217, 4, v217""")
            self.b2v = self.b2_setup(0)
            self.srd(SRD_T2, 5, 819200)
            self.srd(SRD_OUT, 6, 819200)
            if 'stashpre' in self.opt: self.ssm_stash(k, VT, VP)
        pre_mem = [(lambda p=p: self.emit(p)) for p in d0[5:]] + [vec] + [(lambda p=p: self.emit(p)) for p in d1[:7]]
        su = self.capture(setup)
        nA = ([i for i, x in enumerate(su) if x.startswith("v_and_b32 v230")] + [len(su)*7//12])[0]
        assert 'stashpre' not in self.opt
        stq_ = self.capture(lambda k_: self.ssm_stash(k_, VT, VP)) + self.p2_scalars(0)
        sbat = [int(x) for x in str(int(self.P('sbat', 579)))]
        self.sprinkle(su[:nA], pre_mem[:int(self.P('npre', 7))])
        self.sprinkle(su[nA:], pre_mem[int(self.P('npre', 7)):] + [(lambda p=p: self.emit(p)) for p in d1[7:]])
        b2v = self.b2v; vec_tok = self.vec_tok
        tk = {}
        swq = []
        for e in range(4):
            def f(e=e): tk['d2'] = k(f"buffer_load_dwordx4 v{PV}, {s(SRD_T2 if e < 2 else SRD_OUT,4)}, s{SW0+e%2} offen offset:{(e%2)*1024} lds")
            swq.append(self.dma((S_MX, (e//2)*2048), f))
        self.make_tag()
        k(f"""v_and_b32 v16, 1, v0
        v_lshlrev_b32 v16, 4, v16
        v_lshrrev_b32_e64 v16, v16, s{S_PAT}
        v_and_b32 v16, 1, v16
        v_mul_u32_u24 v16, 0x10001, v16
        s_cmp_lt_u32 s{S_W}, 2
        s_cselect_b32 s{S_NM}, s{S_NM}, -1
        s_cselect_b32 s{S_T}, -1, 0
        v_and_b32 v16, s{S_T}, v16
        v_accvgpr_write_b32 a{ST['PAT']}, v16""")
        RXA = [[5, 6], [9, 10]]; RWA = [[7, 8], [250, 251]]
        rtok = {}
        def mkreads(n):
            st = FR[n % 2]; ks = n % 2; sl = (n//2) % 4; o = (sl % 2)*STGS
            R = [f"ds_read_b128 {v(st+4*a_,4)}, v{RXA[sl//2][ks]} offset:{o+a_*2048}" for a_ in range(2)]
            R += [f"ds_read_b128 {v(st+8+4*tt,4)}, v{RWA[sl//2][ks]} offset:{o+tt*2048}" for tt in range(10)]
            L = []
            for i, r in enumerate(R):
                def f(i=i, r=r): rtok[n, i] = k(r)
                L.append(f)
            return L
        self.fine3()
        k.wait_vm(stage_tok[0])
        self.fine3()
        k("s_barrier")
        self.fine3()
        self.stamp(1)
        k.label("L_ssm_code")
        self.emit(mkreads(0))
        LAM, LAM2, LAM4, WSUM = C5(192), C5(202), C5(212), C5(222)
        AT, BT, TG = 232, 240, 192
        L_AB = 14720
        mq = []
        def q_stage(t):
            for p_, l_ in dma_list(t): mq.append([max(2*(t-3), 0), 1, p_, l_])
        def sw_store(cc):
            def f():
                k.wait_lg(tk['r2'])
                tk['s2'] = k(f"buffer_store_dwordx4 {a(220+4*cc,4)}, v{LV}, {WS4}, s{D2} offen offset:{1024*cc} sc1")
            return f
        def gl1(): k(f"buffer_load_dwordx4 {v(TG,4)}, v216, {WS4}, s{S_GT} offen sc1")
        def gl2(): tk['gr'] = k(f"buffer_load_dwordx2 {v(TG+4,2)}, v217, {WS4}, s{S_GW} offen sc1")
        NSW, NFLAG, NGL, NGC, NPOLL, NCHK = [int(self.P(a_, b_)) for a_, b_ in (('snsw', 3), ('snfl', 9), ('sngl', 13), ('sngc', 16), ('snpo', 14), ('snck', 17))]
        prs, psw, pst = int(self.P('prs', 1)), int(self.P('psw', 2)), int(self.P('pst', 4))
        for t in range(1, 10):
            if t > 1: q_stage(t)
            if t == prs: mq += [[0, 1, None, f] for f in rs]
            if t == psw: mq += [[0, 1, p_, l_] for p_, l_ in swq]
            if t == pst: mq += [[NSW+1, 2, None, sw_store(cc)] for cc in range(4)]
        late = {NGL: [[NGL, 1, None, gl1], [NGL, 1, None, gl2]]}
        late[NPOLL] = late.get(NPOLL, []) + [[NPOLL, 0.5, None, self.b2_poll]]
        def swr():
            k.wait_vm(tk['d2'])
            for ss in range(4): tk['r2'] = k(f"ds_read_b128 {a(220+4*ss,4)}, v13 offset:{32*ss}")
        fq = [lambda: k.wait_vm(vec_tok)]
        fq += [x.strip() for x in f"""v_lshlrev_b32 v{VDT}, 16, v{VDT}
        v_mul_f32 v{VDT}, {fbits(LOG2E)}, v{VDT}
        v_exp_f32 v{VDT}, v{VDT}
        v_lshlrev_b32 v{VLR}, 16, v{VLR}
        v_lshlrev_b32 v{VLI}, 16, v{VLI}
        v_cvt_pk_bf16_f32 v{VDT}, v{VDT}, v{VDT}
        v_and_b32 v{VDT}, 0xffff0000, v{VDT}
        v_mul_f32 v{ZR}, v{VLR}, v{VDT}
        v_mul_f32 v{ZI}, v{VLI}, v{VDT}
        v_mul_f32 v{ZR}, {fbits(LOG2E)}, v{ZR}
        v_mul_f32 v{ZI}, 0.15915494, v{ZI}
        v_accvgpr_write_b32 a250, v{ZR}
        v_accvgpr_write_b32 a251, v{ZI}
        v_accvgpr_write_b32 a252, v{VLR}
        v_accvgpr_write_b32 a253, v{VLI}
        v_mov_b32 v232, {fbits(8.0)}""".split("\n")]
        LM = 240
        P = [self.cpow(LM, LM+1, "1.0", ZR, ZI, 233), self.cpow(248, 249, "v232", ZR, ZI, 235)]
        fq += [x[i] for i in range(8) for x in P]
        fq += [x.strip() for x in f"""v_accvgpr_write_b32 a254, v{LM}
        v_accvgpr_write_b32 a255, v{LM+1}
        v_mul_f32 v{LM+2}, v{LM}, v{LM}
        v_mul_f32 v{LM+3}, v{LM}, v{LM+1}
        v_fma_f32 v{LM+2}, -v{LM+1}, v{LM+1}, v{LM+2}
        v_add_f32 v{LM+3}, v{LM+3}, v{LM+3}
        v_mul_f32 v{LM+4}, v{LM+2}, v{LM+2}
        v_mul_f32 v{LM+5}, v{LM+2}, v{LM+3}
        v_fma_f32 v{LM+4}, -v{LM+3}, v{LM+3}, v{LM+4}
        v_add_f32 v{LM+5}, v{LM+5}, v{LM+5}""".split("\n")]
        rsf = self.rowstat_fill(R0, A0, T0, 14, S_RSDST, sq=False)
        fq += [('at', 3), ('mark', 'rs')]
        NRB = int(self.P('snrb', 3))
        fq += b2v + [('mark', 'gaddr')]
        fq += [('at', (NSW | 1) + 1 + (NSW & 1)*2)] + [f"ds_write_b64 v{TA}, {v(LM+2*q,2)} offset:{144+8*q}" for q in range(3)]
        fq += [('mark', 'table')]
        def flg():
            k.wait_vm(tk['s2']); self.set_flag(S_FB, 15)
        flags = {NFLAG: flg, NSW: swr}
        pre_st = [x.strip() for x in f"""s_lshl_b32 s{S_T}, s{S_W}, 7
        v_lshrrev_b32 v12, 2, v216
        v_add_u32 v12, s{S_T}, v12
        v_add_u32 v12, {L_AB}, v12
        v_lshrrev_b32 v14, 4, v0
        v_lshl_add_u32 v239, v14, 5, s{S_T}
        s_and_b32 s{S_T}, s{S_W}, 1
        s_mul_i32 s{S_T}, s{S_T}, 40
        v_lshrrev_b32 v13, 4, v217
        v_add_u32 v13, s{S_T}, v13
        v_mul_u32_u24 v13, {RS}, v13
        s_lshr_b32 s{S_T}, s{S_W}, 1
        s_lshl_b32 s{S_T}, s{S_T}, 2
        v_add_u32 v13, s{S_T}, v13
        s_mov_b32 s{S_T}, {fbits(1.0/640)}""".split("\n")]
        stq = [x.strip() for x in f"""ds_write_b32 v13, v{TG+4} offset:176
        v_mul_f32 v{TG}, s{S_T}, v{TG}
        v_mul_f32 v15, v{TG}, v{TG}
        v_fma_f32 v15, v{TG+2}, s{S_T}, -v15
        v_max_f32 v15, 0, v15
        v_add_f32 v15, {fbits(EPS)}, v15
        v_rsq_f32 v15, v15
        v_mul_f32_e64 v{TG}, v{TG}, -v15
        ds_write2st64_b32 v12, v15, v{TG} offset0:0 offset1:2""".split("\n")]
        fq += pre_st + [('at', 14)] + [f"ds_read_b64 {v(LAM2.r(b),2)}, v11 offset:{16*b*RS+152}" for b in range(5)]
        fq += [('at', NGC)] + stq + [('mark', 'stats')]
        fq += [f"ds_read_b64 {v(LAM4.r(b),2)}, v11 offset:{16*b*RS+160}" for b in range(5)]
        NRD = int(self.P('snrd', 18))
        fq += [('at', NRD)] + [f"ds_read_b64 {v(LAM.r(b),2)}, v11 offset:{16*b*RS+144}" for b in range(5)]
        fq += [f"ds_read_b128 {v(AT+4*q,4)}, v239 offset:{L_AB+16*(q%2)+512*(q//2)}" for q in (3, 2, 0, 1)]
        fq += [f"ds_read_b64 {v(WSUM.r(b),2)}, v11 offset:{16*b*RS+176}" for b in range(5)]
        credit = 0.0; b2on = False
        for n in range(20):
            st = FR[n % 2]
            k.c(f"---- ssm k-step {n}")
            self.fine(16 + n)
            if n == NGC:
                k.wait_vm(tk['gr'])
                def check():
                    k(f"""v_xor_b32 v15, s{S_TAG}, v{TG+1}
                    v_bitop3_b32 v15, s{S_TAG2}, v{TG+3}, v15 bitop3:0xbe
                    v_bitop3_b32 v15, s{S_TAG}, v{TG+5}, v15 bitop3:0xbe
                    v_cmp_ne_u32 vcc, 0, v15""")
                def rl():
                    gl1(); gl2(); k("s_waitcnt vmcnt(0)")
                self.verify(check, rl, "pg")
            if n == NCHK:
                self.b2_check(); b2on = True
            if n == NGL: assert self.marks['rs'] < n
            if n == NPOLL: assert self.marks['gaddr'] < n
            mq[0:0] = late.get(n, [])
            mem = []
            mmax = int(self.P('smax', 9)) if n < self.P('sfast', 2) else int(self.P('scap', 5))
            while len(mem) < mmax:
                if mq and mq[0][0] <= n: it_ = mq.pop(0)
                elif b2on and self.b2q and len(mem) < self.P('sb2', 5): it_ = [n, 1, None, self.b2q.pop(0)]
                else: break
                mem.append(it_)
            rd = mkreads(n+1) if n + 1 < 20 else []
            slots = [[] for _ in range(20)]
            if n % 2 == 0:
                rslots = [0, 1, 3, 4, 6, 7, 9, 10, 12, 13, 15, 16]; pref = [2, 8, 14, 19, 5, 11, 17, 18, 0, 6, 12, 3, 9, 15, 1, 4]
            else:
                rslots = [4, 5, 6, 8, 9, 10, 12, 13, 14, 16, 17, 18]; pref = [0, 7, 15, 2, 11, 19, 1, 5, 9, 13, 17, 4, 8, 12, 16, 6]
                if n + 1 < 20:
                    T_ = (n + 1)//2
                    def f(T_=T_):
                        assert stage_cnt[T_] == 9
                        if 2*T_ - 1 == NRB: self.rowstat_batch(R0, A0, 14, S_RSDST, sq=False)
                        if 2*T_ - 1 in sbat:
                            j_ = sbat.index(2*T_ - 1); m_ = -(-len(stq_)//len(sbat))
                            self.emit(stq_[j_*m_:(j_+1)*m_])
                        k.wait_both(stage_tok[T_], k.lg_issued)
                        k("s_barrier")
                    slots[3] += [f]
            mslots = sorted(pref[:len(mem)])
            cap = [2]*20
            for sl, r in zip(rslots, rd): slots[sl].append(r); cap[sl] = 1
            for sl, it_ in zip(mslots, mem):
                slots[sl] = [it_[3]] + slots[sl]; cap[sl] -= 1
            if n % 2 == 1 and n + 1 < 20: cap[3] = 0
            i = 0
            for tt in range(10):
                for a_ in range(2):
                    if i in mslots[:len(mem)] and i == 0 and mem[0][2]: mem[0][2]()
                    grp = {0: 1, 2: 9} if n % 2 == 1 else {0: tt, 1: tt, 2: tt, 3: tt, 4: tt, 5: tt, 6: tt, 7: tt, 8: tt, 9: tt} if n == 0 else {0: 3, 4: 6, 7: 9}
                    if a_ == 0 and tt in grp: k.wait_lg(rtok[n, 2+grp[tt]])
                    assert k.lg_done >= rtok[n, 2+tt]
                    c_ = "0" if n == 0 else v(acc(a_, tt), 4)
                    k(f"v_mfma_f32_16x16x32_bf16 {v(acc(a_,tt),4)}, {v(st+4*a_,4)}, {v(st+8+4*tt,4)}, {c_}")
                    self.emit(slots[i])
                    c0 = cap[i]
                    if i + 1 in mslots[:len(mem)]:
                        n0 = len(k.ins); pre_ = mem[mslots.index(i+1)][2]
                        if pre_: pre_()
                        c0 -= len(k.ins) - n0
                    if c0 > 0 and (cap[i] == 2 or i % int(self.P('sden', 1)) == 0): self.emit(self.take_fill(fq, n, c0))
                    if i == 19 and n in flags: flags[n]()
                    i += 1
        self.emit([x for x in fq if not isinstance(x, tuple)])
        assert not mq and self.marks['table'] <= 12 and self.marks['stats'] <= NRD - 2 + (NRD & 1), self.marks
        self.info = f"ssm b2 left {len(self.b2q)} marks {self.marks} tail {len(fq)}"
        k.c('loop end')
        self.stamp(2)
        if self.early_stop("loop"): return
        self.ssm_epilogue(ACC, AT, BT, LAM, LAM2, LAM4, WSUM, L_AB)

    def ssm_stash(self, k, VT, VP):
        RS = self.TB_RS; L_C = 102400
        t0, t1, t2, col, g, seg = 227, 228, 229, 230, 231, 234
        put = lambda n, r: k(f"v_accvgpr_write_b32 a{n}, v{r}")
        k(f"""v_and_b32 v{col}, 15, v0
        v_lshrrev_b32 v{g}, 4, v0
        s_lshl_b32 s{S_T+2}, s{S_W}, 2
        v_add_u32 v{seg}, s{S_T+2}, v{g}
        v_mul_u32_u24 v{t0}, 768, v{seg}
        v_mul_u32_u24 v{t1}, 48, v{col}
        v_add_u32 v{t0}, v{t0}, v{t1}""")
        put(ST['E'], t0)
        k(f"""v_and_b32 v{t0}, 15, v{VP}
        v_lshrrev_b32 v{t2}, 4, v{VP}
        v_mul_u32_u24 v{t1}, 48, v{t0}
        v_lshl_add_u32 v{t1}, v{t2}, 3, v{t1}""")
        put(ST['CH'], t1)
        k(f"""v_min_u32 v{VT}, 2, v{VT}
        v_mul_u32_u24 v{t0}, 160, v{t0}
        v_lshlrev_b32 v{t2}, 5, v{t2}
        v_lshl_add_u32 v{t2}, v{VT}, 3, v{t2}
        v_add3_u32 v{t0}, v{t0}, v{t2}, 0
        v_add_u32 v{t0}, {L_C}, v{t0}""")
        put(ST['CW'], t0)
        k(f"v_lshlrev_b32 v{t0}, 4, v{VP}"); put(ST['PUB'], t0)
        k(f"v_mul_u32_u24 v{t2}, 5, v{VT}\nv_mul_u32_u24 v{t1}, 1280, v{t2}\nv_add_u32 v{t0}, v{t0}, v{t1}"); put(ST['GA'], t0)
        k(f"""v_add_u32 v{t0}, 5, v{t2}
        v_min_u32 v{t0}, s{S_I}, v{t0}
        v_sub_u32 v{t0}, s{S_I}, v{t0}
        v_lshlrev_b32 v{t0}, 7, v{t0}
        v_cvt_f32_u32 v{t0}, v{t0}""")
        put(ST['QE'], t0)
        for q in range(5): k(f"v_add_u32 v{t0}, {q}, v{t2}\nv_cmp_gt_u32 {s(S_MK+2*q,2)}, s{S_I}, v{t0}")
        k(f"v_mul_u32_u24 v{t0}, {RS}, v{VP}"); put(ST['TB'], t0)
        k(f"v_mul_u32_u24 v{t0}, {RS}, v{col}\nv_lshl_add_u32 v{t0}, v{seg}, 3, v{t0}"); put(ST['VA'], t0)
        k(f"v_mul_u32_u24 v{t0}, 160, v{col}\nv_add_u32 v{t0}, {L_C}, v{t0}"); put(ST['CR'], t0)
        k(f"""s_mul_i32 s{S_T+2}, s{S_W}, {RED_W}
        s_add_u32 s{S_T+2}, s{S_T+2}, {LDS_RED}
        v_mul_u32_u24 v{t0}, 80, v{col}
        v_lshl_add_u32 v{t0}, v{g}, 4, v{t0}
        v_add_u32 v{t0}, s{S_T+2}, v{t0}""")
        put(ST['TW'], t0)
        k(f"""v_lshrrev_b32 v{t0}, 2, v{col}
        v_lshl_add_u32 v{t0}, v{g}, 3, v{t0}
        v_mul_u32_u24 v{t0}, 80, v{t0}
        v_and_b32 v{t1}, 3, v{col}
        v_lshl_add_u32 v{t0}, v{t1}, 3, v{t0}
        v_add_u32 v{t0}, s{S_T+2}, v{t0}""")
        put(ST['TR'], t0)
        k(f"""v_mul_u32_u24 v{t0}, {RED_RS}, v{col}
        v_lshl_add_u32 v{t0}, v{g}, 4, v{t0}
        v_add_u32 v{t0}, s{S_T+2}, v{t0}""")
        put(ST['RW'], t0)
        for it in range(5):
            k(f"""v_add_u32 v{t0}, {64*it}, v0
            v_mul_u32_u24 v{t1}, 6554, v{t0}
            v_lshrrev_b32 v{t1}, 16, v{t1}
            v_mul_u32_u24 v{t2}, 10, v{t1}
            v_sub_u32 v{t2}, v{t0}, v{t2}
            v_lshrrev_b32 v{seg}, 4, v{t1}
            v_mul_u32_u24 v{seg}, 48, v{seg}
            v_add_u32 v{t1}, v{t1}, v{seg}
            v_mul_u32_u24 v{t1}, 1280, v{t1}
            v_lshl_add_u32 v{t1}, v{t2}, 4, v{t1}""")
            put(ST['RD']+it, t1)
            for x in self.div20(t1, t2, t0): k(x)
            put(ST['ROW']+it, t1); put(ST['C4']+it, t2)
        k(f"""s_mul_i32 s{S_AG4}, s{S_J}, {16*1280}
        s_add_u32 s{S_AG4}, s{S_AG4}, {WS_AGG}
        s_mul_i32 s{S_AG1}, s{S_I}, 1280
        s_add_u32 s{S_AG1}, s{S_AG1}, s{S_AG4}
        s_lshl_b32 s{S_T+2}, s{S_I}, 3
        s_lshl_b32 s{S_T+3}, s{S_W}, 1
        s_add_u32 s{S_T+2}, s{S_T+2}, s{S_T+3}
        s_mul_i32 s{S_T+2}, s{S_T+2}, 40
        s_mul_i32 s{S_T+3}, s{S_J}, 5
        s_add_u32 s{S_T+2}, s{S_T+2}, s{S_T+3}
        s_lshl_b32 s{S_T+2}, s{S_T+2}, 10
        s_add_u32 s{S_A2B}, s{S_T+2}, {WS_A2[0]}
        s_lshl_b32 s{S_RX}, s{S_I}, 7
        s_lshl_b32 s{S_T+2}, s{S_W}, 4
        s_add_u32 s{S_RX}, s{S_RX}, s{S_T+2}
        s_mul_i32 s{S_RX}, s{S_RX}, 1280
        s_mul_i32 s{S_RJ}, s{S_J}, 160
        s_add_u32 s{S_RX}, s{S_RX}, s{S_RJ}
        s_mul_i32 s{S_RL}, s{S_W}, 5120
        s_add_u32 s{S_RL}, s{S_RL}, {L_R}""")

    def ssm_epilogue(self, ACC, AT, BT, LAM, LAM2, LAM4, WSUM, L_AB):
        k = self.k; RS = self.TB_RS; LV = self.LV
        acc = lambda a_, tt: ACC + (a_*10 + tt)*4
        tok = lambda r, tt: acc(r//4, tt) + r % 4
        L_E, L_C = 16384, 102400
        TM, SEG = 146, 15
        def bc(r): return v(r & ~1, 2), r & 1
        k.c("================ SSM epilogue")
        self.nf2 = 0; self.fine2()
        k(f"""v_accvgpr_read_b32 v13, a{ST['E']}
        v_accvgpr_read_b32 v10, a{ST['CH']}
        v_accvgpr_read_b32 v6, a{ST['PUB']}
        v_mov_b32 v1, s{S_TAG}
        s_waitcnt lgkmcnt(0)""")
        sec = []
        for tt in list(range(10)):
            ws = WSUM.r(tt % 5); hi = tt // 5
            for a_ in range(2):
                for h in range(2):
                    t_ = TM + 2*(a_*2 + h) + 8*(tt % 2)
                    sec.append(f"v_pk_mul_f32 {v(t_,2)}, {v(BT+4*a_+2*h,2)}, {v(ws,2)} op_sel:[0,{hi}] op_sel_hi:[1,{hi}]")
            for a_ in range(2):
                for h in range(2):
                    d = acc(a_, tt) + 2*h; t_ = TM + 2*(a_*2 + h) + 8*(tt % 2)
                    sec.append(f"v_pk_fma_f32 {v(d,2)}, {v(AT+4*a_+2*h,2)}, {v(d,2)}, {v(t_,2)}")
        V1 = 96; EE = C5(136)
        def pkc(dr, di, ar, ai, cr_, ci_, lr, li):
            (pr, sr), (pi, si) = bc(lr), bc(li)
            return [f"v_pk_fma_f32 {v(dr,2)}, {v(ar,2)}, {pr}, {v(cr_,2)} op_sel:[0,{sr},0] op_sel_hi:[1,{sr},1]",
                    f"v_pk_fma_f32 {v(di,2)}, {v(ai,2)}, {pr}, {v(ci_,2)} op_sel:[0,{sr},0] op_sel_hi:[1,{sr},1]",
                    f"v_pk_fma_f32 {v(dr,2)}, {v(ai,2)}, {pi}, {v(dr,2)} op_sel:[0,{si},0] op_sel_hi:[1,{si},1] neg_lo:[1,0,0] neg_hi:[1,0,0]",
                    f"v_pk_fma_f32 {v(di,2)}, {v(ar,2)}, {pi}, {v(di,2)} op_sel:[0,{si},0] op_sel_hi:[1,{si},1]"]
        LL = [pkc(V1+8*b+2*h, V1+8*b+4+2*h, acc(0,b)+2*h, acc(0,5+b)+2*h, acc(1,b)+2*h, acc(1,5+b)+2*h, LAM4.r(b), LAM4.i(b))
              for b in range(5) for h in range(2)]
        sec += [x[i] for i in range(4) for x in LL]
        LL = [pkc(V1+8*b+2, V1+8*b+6, V1+8*b, V1+8*b+4, V1+8*b+2, V1+8*b+6, LAM2.r(b), LAM2.i(b)) for b in range(5)]
        sec += [x[i] for i in range(4) for x in LL]
        sec += self.cmul5(EE, LAM, C5(V1+2, V1+6, 8), C5(V1+3, V1+7, 8))
        self.sprinkle(sec, self.b2_take(int(self.P('e1', 10))))
        k(f"""ds_write_b128 v13, {v(136,4)} offset:{L_E}
        ds_write_b128 v13, {v(140,4)} offset:{L_E+16}
        ds_write_b64 v13, {v(144,2)} offset:{L_E+32}
        v_mov_b32 v129, s{S_TAG}
        v_mov_b32 v131, s{S_TAG2}
        s_waitcnt lgkmcnt(0)
        s_barrier""")
        self.fine2()
        CH = 96; L8R, L8I = 248, 249
        ct = [k(f"ds_read_b64 {v(CH+2*q,2)}, v10 offset:{L_E+768*q}") for q in range(16)]
        for q in range(1, 16):
            k.wait_lg(ct[q])
            er, ei, pr, pi = CH+2*q, CH+2*q+1, CH+2*q-2, CH+2*q-1
            if q < 15:
                k(f"v_fmac_f32 v{er}, v{L8R}, v{pr}\nv_fmac_f32 v{ei}, v{L8R}, v{pi}\nv_fma_f32 v{er}, -v{L8I}, v{pi}, v{er}\nv_fmac_f32 v{ei}, v{L8I}, v{pr}")
            else:
                k(f"v_fmac_f32 v{er}, v{L8R}, v{pr}\nv_fmac_f32 v{ei}, v{L8R}, v{pi}\nv_fma_f32 v128, -v{L8I}, v{pi}, v{er}\nv_fma_f32 v130, v{L8I}, v{pr}, v{ei}")
        k(f"""s_mov_b64 exec, 0xfffff
        buffer_store_dwordx4 v[128:131], v6, {WS4}, s{S_AG1} offen sc1
        s_mov_b64 exec, -1""")
        self.stamp(3); self.fine2()
        KK, CS, VV, DD = C5(202), C5(136), C5(146), C5(156, 161)
        work = [f"ds_write_b64 v10, {v(CH+2*q,2)} offset:{L_E+768*q}" for q in range(1, 15)]
        KB = 166
        work += [x.strip() for x in f"""v_accvgpr_read_b32 v132, a252
        v_accvgpr_read_b32 v133, a253
        v_accvgpr_read_b32 v134, a254
        v_accvgpr_read_b32 v135, a255
        v_accvgpr_read_b32 v5, a{ST['TB']}
        v_mul_f32 v174, v132, v132
        v_fma_f32 v174, v133, v133, v174
        v_rcp_f32 v174, v174
        v_add_f32 v134, -1.0, v134
        v_mul_f32 v{KB}, v134, v132
        v_mul_f32 v{KB+1}, v135, v132
        v_add_f32 v174, v174, v174
        v_fma_f32 v{KB}, v135, v133, v{KB}
        v_fma_f32 v{KB+1}, -v134, v133, v{KB+1}
        v_mul_f32 v{KB}, v{KB}, v174
        v_mul_f32 v{KB+1}, v{KB+1}, v174""".split("\n")]
        for q in range(16):
            c_ = KB + 2*(q % 4); n_ = KB + 2*((q+1) % 4)
            work += [f"ds_write_b64 v5, {v(c_,2)} offset:{8*q}"]
            if q < 15: work += [f"v_mul_f32 v{n_}, v{L8R}, v{c_}", f"v_mul_f32 v{n_+1}, v{L8R}, v{c_+1}",
                                f"v_fma_f32 v{n_}, -v{L8I}, v{c_+1}, v{n_}", f"v_fmac_f32 v{n_+1}, v{L8I}, v{c_}"]
        GB = 96
        BZR, BZI, BLR, BLI, BQR, BQI, BT_ = 116, 117, 118, 119, 120, 121, 122
        MK = S_MK
        work += [f"v_accvgpr_read_b32 v6, a{ST['GA']}", f"s_add_u32 s{S_T+5}, s{S_AG4}, 3840", f"s_mov_b32 s{S_T+4}, s{S_AG4}", f"v_accvgpr_read_b32 v5, a{ST['VA']}",
                 "s_waitcnt lgkmcnt(0)", "s_barrier"]
        work += [f"ds_read_b64 {v(KK.r(b),2)}, v11 offset:{16*b*RS}" for b in range(5)]
        work += [f"ds_read_b128 {v(136,4)}, v13 offset:{L_E-768}", f"ds_read_b128 {v(140,4)}, v13 offset:{L_E-768+16}", f"ds_read_b64 {v(144,2)}, v13 offset:{L_E-768+32}"]
        work += [f"ds_read_b64 {v(VV.r(b),2)}, v5 offset:{16*b*RS}" for b in range(5)]
        work += [f"v_accvgpr_read_b32 v{BZR}, a250", f"v_accvgpr_read_b32 v{BZI}, a251", f"v_mov_b32 v123, {fbits(128.0)}",
                 f"v_accvgpr_read_b32 v10, a{ST['QE']}"]
        work += [y for x in zip(self.cpow(BQR, BQI, "v10", BZR, BZI, BT_), self.cpow(BLR, BLI, "v123", BZR, BZI, 124)) for y in x]
        ku = []
        for b in range(5):
            (kr, sr), (ki, si) = bc(KK.r(b)), bc(KK.i(b))
            for h in range(4):
                ur = tok(2*h, b); ui = tok(2*h, 5+b); t_ = 166 + 4*(h % 2)
                ku += [f"v_pk_mul_f32 {v(t_,2)}, {v(ur,2)}, {kr} op_sel:[0,{sr}] op_sel_hi:[1,{sr}]",
                       f"v_pk_mul_f32 {v(t_+2,2)}, {v(ur,2)}, {ki} op_sel:[0,{si}] op_sel_hi:[1,{si}]",
                       f"v_pk_fma_f32 {v(ur,2)}, {v(ui,2)}, {ki}, {v(t_,2)} op_sel:[0,{si},0] op_sel_hi:[1,{si},1] neg_lo:[1,0,0] neg_hi:[1,0,0]",
                       f"v_pk_fma_f32 {v(ui,2)}, {v(ui,2)}, {kr}, {v(t_+2,2)} op_sel:[0,{sr},0] op_sel_hi:[1,{sr},1]"]
        nku = int(self.P('nku', 40))
        work += ["s_waitcnt lgkmcnt(8)"] + ku[:nku]
        self.sprinkle(work, self.b2_take(int(self.P('e2', 6))))
        self.fine2()
        def gloads():
            for q in range(5):
                t = k(f"buffer_load_dwordx4 {v(GB+4*q,4)}, v6, {WS4}, s{S_T+4+(q//3)} offen offset:{1280*(q%3)} sc1")
            return t
        gt = {}
        def gl_(): gt['t'] = gloads()
        w2 = ku[nku:] + ["s_waitcnt lgkmcnt(0)", f"s_cmp_eq_u32 s{S_W}, 0\ns_cselect_b64 exec, 0xffff, 0"]
        w2 += [f"v_mov_b32 v{136+q}, 0" for q in range(10)] + ["s_mov_b64 exec, -1"]
        w2 += self.cmul5(DD, KK, CS)
        w2 += [f"v_accvgpr_read_b32 v5, a{ST['CW']}", f"v_accvgpr_read_b32 v12, a{ST['CR']}", f"v_accvgpr_read_b32 v13, a{ST['TW']}", f"v_accvgpr_read_b32 v4, a{ST['TR']}", f"v_accvgpr_read_b32 v3, a{ST['PAT']}",
               f"v_mov_b32 v{BZR}, 0", f"v_mov_b32 v{BZI}, 0",
               f"s_mov_b32 s{S_T+8}, s{S_A2B}", f"s_add_u32 s{S_T+9}, s{S_A2B}, 4096",
               f"s_add_u32 s{S_T+10}, s{S_A2B}, {40*1024}", f"s_add_u32 s{S_T+11}, s{S_A2B}, {40*1024+4096}"]
        rq = self.resid_loads()
        gpos = int(self.P('gpos', 0))
        if gpos == 0: gl_()
        self.sprinkle(w2, rq[:gpos] + ([gl_] if gpos else []) + rq[gpos:] + self.b2_take(int(self.P('e3', 8))))
        gtok = gt['t']
        self.stamp(4); self.fine2()
        k.wait_vm(gtok)
        def check():
            for q in range(5):
                k(f"v_xor_b32 v10, s{S_TAG}, v{GB+4*q+1}")
                k(f"v_bitop3_b32 v10, s{S_TAG2}, v{GB+4*q+3}, v10 bitop3:0xbe")
                k(f"v_cmp_ne_u32 {s(S_T+2,2)}, 0, v10")
                k(f"s_and_b64 {'vcc' if q == 0 else s(S_T+2,2)}, {s(S_T+2,2)}, {s(MK+2*q,2)}")
                if q: k(f"s_or_b64 vcc, vcc, {s(S_T+2,2)}")
        def reload():
            gloads(); k("s_waitcnt vmcnt(0)")
        self.verify(check, reload, "pc")
        self.stamp(5); self.fine2()
        for q in range(5):
            er, ei = GB+4*q, GB+4*q+2
            k(f"""s_mov_b64 exec, {s(MK+2*q,2)}
            v_fmac_f32 v{er}, v{BLR}, v{BZR}
            v_fmac_f32 v{ei}, v{BLR}, v{BZI}
            v_fmac_f32 v{ei}, v{BLI}, v{BZR}
            v_fma_f32 v{BZR}, -v{BLI}, v{BZI}, v{er}
            v_mov_b32 v{BZI}, v{ei}""")
        k(f"""s_mov_b64 exec, -1
        v_mul_f32 v126, v{BQR}, v{BZR}
        v_mul_f32 v127, v{BQR}, v{BZI}
        v_fma_f32 v126, -v{BQI}, v{BZI}, v126
        v_fmac_f32 v127, v{BQI}, v{BZR}
        ds_write_b64 v5, v[126:127]
        s_waitcnt lgkmcnt(0)
        s_barrier""")
        CB = 96
        ct = []
        for b in range(5):
            k(f"ds_read_b128 {v(CB+6*b,4)}, v12 offset:{32*b}")
            ct.append(k(f"ds_read_b64 {v(CB+6*b+4,2)}, v12 offset:{32*b+16}"))
        for b in range(5):
            k.wait_lg(ct[b])
            k(f"v_pk_add_f32 {v(CB+6*b,2)}, {v(CB+6*b,2)}, {v(CB+6*b+2,2)}")
        for b in range(5):
            k(f"v_pk_add_f32 {v(CB+6*b,2)}, {v(CB+6*b,2)}, {v(CB+6*b+4,2)}")
        self.sprinkle(self.cmul5(DD, VV, C5(CB, CB+1, 6), DD), self.b2_take(int(self.P('e4', 2))))
        self.fine2()
        PK = 96
        frg = lambda b, tt2: (136 + 4*(2*b + tt2)) if 2*b + tt2 < 5 else (202 + 4*(2*b + tt2 - 5))
        wt = {}; rt = {}
        def scan(bs):
            L = []
            for r in range(8):
                pr = lambda b: DD.r(b) if r == 0 else tok(r-1, b)
                pi = lambda b: DD.i(b) if r == 0 else tok(r-1, 5+b)
                for b in bs: L += [f"v_fmac_f32 v{tok(r,b)}, v{LAM.r(b)}, v{pr(b)}", f"v_fmac_f32 v{tok(r,5+b)}, v{LAM.r(b)}, v{pi(b)}"]
                for b in bs: L += [f"v_fma_f32 v{tok(r,b)}, -v{LAM.i(b)}, v{pi(b)}, v{tok(r,b)}", f"v_fmac_f32 v{tok(r,5+b)}, v{LAM.i(b)}, v{pr(b)}"]
            for b in bs:
                for comp in range(2):
                    d = PK + 4*(2*b + comp); ng = "-" if comp else ""
                    L += [f"v_cvt_pk_bf16_f32 v{d+h}, {ng}v{tok(2*h,5*comp+b)}, {ng}v{tok(2*h+1,5*comp+b)}" for h in range(4)]
                    L += [f"v_and_or_b32 v{d+h}, v{d+h}, s{S_NM}, v3" for h in range(4)]
                    def f(b=b, d=d, comp=comp): wt[b] = k(f"ds_write_b128 v13, {v(d,4)} offset:{(32*b+16*comp)*80}")
                    L.append(f)
            return L
        def outq(bs):
            L = []
            for b in bs:
                def trr(b=b):
                    k.wait_lg(wt[b])
                    for tt2 in range(2):
                        d = frg(b, tt2)
                        k(f"ds_read_b64_tr_b16 {v(d,2)}, v4 offset:{(32*b)*80+32*tt2}")
                        rt[b, tt2] = k(f"ds_read_b64_tr_b16 {v(d+2,2)}, v4 offset:{(32*b+4)*80+32*tt2}")
                L.append(trr)
            for b in bs:
                for tt2 in range(2):
                    def sto(b=b, tt2=tt2):
                        k.wait_lg(rt[b, tt2])
                        so = S_T + 8 + 2*tt2 + (1 if b == 4 else 0)
                        self.last_st = k(f"buffer_store_dwordx4 {v(frg(b,tt2),4)}, v{LV}, {WS4}, s{so} offen offset:{1024*(b%4)} sc1")
                    L.append(sto)
            return L
        self.sprinkle(scan([0, 1]), self.b2_take(int(self.P('e5', 4))))
        self.sprinkle(scan([2, 3]), outq([0, 1]), lead=4)
        self.sprinkle(scan([4]), outq([2, 3]), lead=4)
        self.emit(outq([4]))
        self.stamp(6); self.fine2()
        self.p2_addr(0)
        self.free_big = [r for r in self.free_big if not (202 <= r < 222)] + [r for r in self.free_big if 202 <= r < 222]
        self.resid_compute(L_AB, [self.p2_aload]*int(self.P('na0', 12)))
        self.fine2()
        self.stamp(7)
        self.phase2(0)

    def resid_loads(self):
        k = self.k
        self.srd(SRD_T1, 8, 1280)
        self.srd(SRD_T2, 13, 1280)
        L = []
        for it in range(5):
            def f(it=it):
                k(f"""v_accvgpr_read_b32 v1, a{ST['RD']+it}
                s_add_u32 m0, s{S_RL}, {1024*it}
                buffer_load_dwordx4 v1, {s(SRD_X,4)}, s{S_RX} offen lds""")
            L.append(f)
        def g():
            k(f"""v_lshlrev_b32 v1, 2, v0
            s_add_u32 m0, s{S_RL}, 20480
            buffer_load_dword v1, {s(SRD_T1,4)}, s{S_RJ} offen lds
            s_add_u32 m0, s{S_RL}, {20480+256}""")
            self.rl_tok = k(f"buffer_load_dword v1, {s(SRD_T2,4)}, s{S_RJ} offen lds")
        return L + [g]
    def resid_compute(self, L_AB, memq):
        k = self.k
        ST, XB, DB, BB, T = 16, 36, 56, 66, 166
        k.wait_vm(self.rl_tok)
        self.STROW, self.STC4 = globals()['ST']['ROW'], globals()['ST']['C4']
        W = [f"s_lshl_b32 s{S_T+4}, s{S_W}, 6", f"s_add_u32 s{S_T+4}, s{S_T+4}, {L_AB}", f"s_movk_i32 s{S_T+5}, 160"]
        for it in range(5):
            W += [f"v_accvgpr_read_b32 v{11+it}, a{self.STROW+it}", f"v_accvgpr_read_b32 v{6+it}, a{self.STC4+it}"]
            W += [f"v_lshl_add_u32 v1, v{11+it}, 2, s{S_T+4}", f"v_lshl_add_u32 v3, v{6+it}, 3, s{S_RL}", f"v_mad_u32_u24 v2, v{11+it}, s{S_T+5}, v3",
                  f"ds_read2st64_b32 {v(ST+2*it,2)}, v1 offset0:0 offset1:2", f"ds_read2st64_b32 {v(ST+10+2*it,2)}, v1 offset0:1 offset1:3",
                  f"ds_read_b64 {v(XB+2*it,2)}, v2", f"ds_read_b64 {v(XB+10+2*it,2)}, v2 offset:2560",
                  f"ds_read_b64 {v(DB+2*it,2)}, v3 offset:20480", f"ds_read_b64 {v(BB+2*it,2)}, v3 offset:{20480+256}"]
        W += [f"v_add_u32 v4, s{S_RL}, v{self.LV}", "s_waitcnt lgkmcnt(0)"]
        for it in range(5):
            dd, bb = [76, 100][it % 2], [76, 100][it % 2] + 4
            for (src, dst) in ((DB+2*it, dd), (BB+2*it, bb)):
                for h in range(2):
                    W += [f"v_lshlrev_b32 v{dst+2*h}, 16, v{src+h}", f"v_and_b32 v{dst+2*h+1}, 0xffff0000, v{src+h}"]
            for hf in range(2):
                xx = dd + 8 + 8*hf
                for h in range(2):
                    W += [f"v_lshlrev_b32 v{xx+2*h}, 16, v{XB+10*hf+2*it+h}", f"v_and_b32 v{xx+2*h+1}, 0xffff0000, v{XB+10*hf+2*it+h}"]
            for hf in range(2):
                xx = dd + 8 + 8*hf; rr = xx + 4; st = ST + 10*hf + 2*it
                for h in range(2):
                    W += [f"v_pk_add_f32 {v(rr+2*h,2)}, {v(bb+2*h,2)}, {v(xx+2*h,2)}",
                          f"v_pk_fma_f32 {v(xx+2*h,2)}, {v(xx+2*h,2)}, {v(st,2)}, {v(st,2)} op_sel:[0,0,1] op_sel_hi:[1,0,1]"]
            for hf in range(2):
                xx = dd + 8 + 8*hf; rr = xx + 4
                for h in range(2):
                    W += [f"v_pk_fma_f32 {v(rr+2*h,2)}, {v(xx+2*h,2)}, {v(dd+2*h,2)}, {v(rr+2*h,2)}"]
                W += [f"ds_write_b128 v4, {v(rr,4)} offset:{hf*20480+it*1024}"]
        self.sprinkle(W, memq, lead=int(self.P('rlead', 0)))

    def mlp(self):
        k = self.k
        ACC = 16; WSA = 112; ONE = 124; FR = [128, 148]
        B1R = 126; GS = 168
        XE, XO, W0 = 3, 2, 4
        RXB, AEB, AOB = 176, 180, 184
        PV = self.PV; LV = self.LV
        STGS = 40960
        S_MH, S_NH = 42, 43
        L_WS = 110592
        k.label("L_mlp")
        k.c("================ MLP side, phase 1")
        self.common_a()
        self.nf3 = 0
        self.marks = {}
        S_RSROW, SW0, S_GT, D1, S_RSDST, S_FB = S_T+5, S_T+6, S_T+9, S_T+10, S_T+8, S_T+14
        k(f"""v_xor_b32 v{XO}, 64, v{XE}
        s_add_u32 s{S_XO+1}, s{S_XO}, {8*1280 - 1024}
        s_add_u32 s{S_XO+2}, s{S_XO}, {16*1280 - 2048}
        s_add_u32 s{S_XO+3}, s{S_XO}, {24*1280 - 3072}""")
        stage_tok = {}; stage_cnt = {}
        self.dma_reset(); self.has_w = True
        self.rot_setup([XE, XO], True)
        for n in range(3):
            k(f"""v_add_u32 v10, {64*n}, v0
            v_mul_u32_u24 v12, 2731, v10
            v_lshrrev_b32 v12, 16, v12
            v_mul_u32_u24 v13, 24, v12
            v_sub_u32 v13, v10, v13
            v_bfe_u32 v40, v12, 1, 1
            v_lshlrev_b32 v40, 2, v40
            v_xor_b32 v13, v13, v40
            v_mul_u32_u24 v12, 3072, v12
            v_lshl_add_u32 v{W0+n}, v13, 4, v12""")
            if n: k(f"v_subrev_u32 v{W0+n}, {1024*n}, v{W0+n}")
            k(f"v_add_u32 v{W0+n}, s{S_ST2}, v{W0+n}")
        k(f"""s_mul_i32 s{S_MW}, s{S_W}, 6144
        s_mul_i32 s{S_WO}, s{S_W}, {16*3072}
        s_mul_i32 s{S_T}, s{S_J}, 384
        s_add_u32 s{S_WO}, s{S_WO}, s{S_T}
        s_add_u32 s{S_WO+1}, s{S_WO}, {24576 - 3072}
        s_add_u32 s{S_WO+4}, s{S_WO}, {24576 + 1024}""")
        self.common_b()
        self.stamp(0); self.fine3()
        WSO = [S_WO, S_WO, S_WO, S_WO+1, S_WO+4, S_WO+4]
        def dma_list(t):
            base = (t % 4)*STGS
            L = []
            def mk(ld):
                def f():
                    stage_tok[t] = k(ld); stage_cnt[t] = stage_cnt.get(t, 0) + 1
                return f
            for e in range(4):
                vr = XE if e % 2 == 0 else XO
                L.append(self.dma((S_MX, base + 24576), mk(f"buffer_load_dwordx4 v{vr}, {s(SRD_X,4)}, s{S_XO+e} offen offset:{e*1024} lds"), vr, t, 128))
            for n in range(6):
                L.append(self.dma((S_MW, base + (n//4)*4096), mk(f"buffer_load_dwordx4 v{W0+n%3}, {s(SRD_W,4)}, s{WSO[n]} offen offset:{(n%4)*1024} lds"), W0+n%3, t, 64*3072))
            return L
        d0 = dma_list(0)
        for p in d0[:4]: self.emit(p)
        self.srd(SRD_W, 10, 1966080)
        for p in d0[4:7]: self.emit(p)
        d1 = dma_list(1)
        R0, A0, T0 = 200, 220, 224
        TS = int(self.P('mts', 3))
        SCR = (TS % 4)*STGS + 24576
        rs = self.rowstat_loads(SRD_X, S_RSROW, 8, R0)
        def setup(k):
            k(f"""s_lshr_b32 s{S_MH}, s{S_W}, 1
            s_and_b32 s{S_NH}, s{S_W}, 1
            s_lshl_b32 s{S_T+2}, s{S_W}, 2
            s_lshl_b32 s{S_T}, s{S_I}, 7
            s_lshl_b32 s{S_T+1}, s{S_J}, 4
            s_add_u32 s{S_T}, s{S_T}, s{S_T+1}
            s_add_u32 s{S_RSROW}, s{S_T}, s{S_T+2}
            s_lshl_b32 s{S_RSDST}, s{S_RSROW}, 4
            s_add_u32 s{S_RSDST}, s{S_RSDST}, {WS_STG}
            s_mov_b32 s{S_T+1}, 3""")

            self.rowstat_setup(S_RSROW, S_T+1, 8, 9)

            self.srd(SRD_T2, 12, 1966080)
            self.unit_decode(480, S_FB)

            k(f"""s_mul_i32 s{S_T+1}, s{S_T+2}, {32*1280}
            s_lshl_b32 s{S_T+3}, s{S_T}, 7
            s_add_u32 s{SW0}, s{S_T+1}, s{S_T+3}
            s_mul_i32 s{S_T+3}, s{S_T}, {4*48}
            s_add_u32 s{S_T+3}, s{S_T+3}, s{S_T+2}
            s_lshl_b32 s{S_T+3}, s{S_T+3}, 10
            s_add_u32 s{D1}, s{S_T+3}, {WS_B2S[1]}
            s_lshl_b32 s{S_FB}, s{S_FB}, 6
            s_add_u32 s{S_FB}, s{S_FB}, {WS_FB + 512*FLS}
            s_lshl_b32 s{S_GT}, s{S_I}, 11
            s_lshl_b32 s{S_T}, s{S_MH}, 10
            s_add_u32 s{S_GT}, s{S_GT}, s{S_T}
            s_add_u32 s{S_GT}, s{S_GT}, {WS_STG}
            v_and_b32 v11, 31, v0
            v_lshrrev_b32 v12, 5, v0
            v_bfe_u32 v13, v0, 1, 3
            v_xor_b32 v13, v13, v12
            v_lshlrev_b32 v13, 4, v13
            v_lshl_add_u32 v13, v11, 7, v13
            s_lshl_b32 s{S_T}, s{S_MH}, 13
            s_add_u32 s{S_T}, s{S_T}, 24576
            v_add_u32 v10, s{S_T}, v13
            v_bfe_u32 v13, v0, 2, 2
            v_lshl_add_u32 v40, v12, 3, v13
            v_mul_u32_u24 v40, 384, v40
            v_bfe_u32 v15, v0, 4, 1
            v_lshl_add_u32 v40, v15, 5, v40
            v_and_b32 v41, 3, v0
            v_lshl_add_u32 v40, v41, 3, v40
            v_lshlrev_b32 v7, 4, v12
            v_lshl_add_u32 v7, v15, 2, v7
            v_add_u32 v7, v7, v13
            v_lshlrev_b32 v7, 7, v7
            v_lshl_add_u32 v7, v41, 3, v7
            v_add_u32 v7, s{S_MX}, v7
            v_add_u32 v7, {SCR}, v7
            s_mul_i32 s{S_T}, s{S_NH}, 192
            v_add_u32 v40, s{S_T}, v40
            v_bfe_u32 v13, v0, 3, 1
            v_lshlrev_b32 v13, 6, v13
            s_cmp_eq_u32 s{S_NH}, 0
            s_cselect_b32 s{S_T}, 1, -1
            v_mul_lo_u32 v13, v13, s{S_T}
            v_add_u32 v15, v40, v13
            v_sub_u32 v40, v40, v13
            v_mov_b32 v{ONE}, 0x3f803f80
            v_mov_b32 v{ONE+1}, 0x3f803f80""")
            for ls in range(4):
                k(f"""s_lshl_b32 s{S_T}, s{S_MH}, 1
                s_add_u32 s{S_T}, s{S_T}, {ls}
                s_and_b32 s{S_T}, s{S_T}, 3
                s_lshl_b32 s{S_T+1}, s{S_T}, 5
                s_mul_i32 s{S_T}, s{S_T}, 6144
                v_xor_b32 v{RXB+ls}, s{S_T+1}, v10
                v_add_u32 v{AEB+ls}, s{S_T}, v15
                v_add_u32 v{AOB+ls}, s{S_T}, v40""")
            for q in range(12): k(f"v_add_u32 v{RXB+12+q}, {2*STGS}, v{RXB+q}")
            k(f"""v_lshlrev_b32 v10, 4, v11
            v_min_u32 v11, 47, v0
            s_mul_i32 s{S_T}, s{S_J}, 192
            s_mul_i32 s{S_T+1}, s{S_W}, 48
            s_add_u32 s{S_T}, s{S_T}, s{S_T+1}
            v_add_lshl_u32 v12, v11, s{S_T}, 1
            v_add_lshl_u32 v11, v11, s{S_T+1}, 2
            v_add_u32 v11, {L_WS}, v11""")
            self.b2v = self.b2_setup(1)
        su = self.capture(setup)
        self.sprinkle(su[:20], [(lambda p=p: self.emit(p)) for p in d0[7:]])
        mprs = int(self.P('mprs', 0))
        n1 = 4 if mprs == 0 else 8
        self.sprinkle(su[20:], [(lambda p=p: self.emit(p)) for p in d1[:2]] + (rs if mprs == 0 else []) + [(lambda p=p: self.emit(p)) for p in d1[2:n1]])
        b2v = self.b2v
        tk = {}
        swq = []
        for e in range(4):
            def f(e=e):
                k(f"s_add_u32 s{S_T+2}, s{SW0}, {e*8*1280}")
                tk['d1'] = k(f"buffer_load_dwordx4 v{PV}, {s(SRD_T2,4)}, s{S_T+2} offen lds")
            swq.append(self.dma((S_MX, SCR + e*1024), f))
        self.make_tag()
        self.emit(self.touch(1, 246))
        rtok = {}
        def mkreads(n):
            st = FR[n % 2]; ls = n % 4; sl = (n//4) % 4; o = (sl % 2)*STGS; h_ = 12*(sl//2)
            ra, ae, ao = RXB+ls+h_, AEB+ls+h_, AOB+ls+h_
            R = [f"ds_read_b128 {v(st,4)}, v{ra} offset:{o}",
                 f"ds_read_b64_tr_b16 {v(st+8,2)}, v{ae} offset:{o}", f"ds_read_b64_tr_b16 {v(st+10,2)}, v{ae} offset:{o+1536}",
                 f"ds_read_b128 {v(st+4,4)}, v{ra} offset:{o+4096}",
                 f"ds_read_b64_tr_b16 {v(st+12,2)}, v{ao} offset:{o+64}", f"ds_read_b64_tr_b16 {v(st+14,2)}, v{ao} offset:{o+1600}",
                 f"ds_read_b64_tr_b16 {v(st+16,2)}, v{ae} offset:{o+128}", f"ds_read_b64_tr_b16 {v(st+18,2)}, v{ae} offset:{o+1664}"]
            L = []
            for i, r in enumerate(R):
                def f(i=i, r=r): rtok[n, i] = k(r)
                L.append(f)
            return L
        self.fine3()
        k.wait_vm(stage_tok[0])
        self.fine3()
        k("s_barrier")
        self.fine3()
        self.stamp(1)
        k.label("L_mlp_code")
        self.emit(mkreads(0))
        NSW, NFLAG, NPOLL, NCHK = [int(self.P(a_, b_)) for a_, b_ in (('mnsw', 4), ('mnfl', 12), ('mnpo', 19), ('mnck', 24))]
        mq = [[0, 1, p_, l_] for p_, l_ in d1[n1:]]
        def q_stage(t):
            L = [[max(4*(t-3), NSW+2 if (t == TS and j_ < 4) else 0), 1, p_, l_] for j_, (p_, l_) in enumerate(dma_list(t))]
            mq.extend(L[4:] + L[:4] if t == TS else L)
        def sw_store(cc):
            def f():
                k.wait_lg(tk['r1'])
                k(f"s_add_u32 s{S_T}, s{D1}, {cc*48*1024}")
                tk['s1'] = k(f"buffer_store_dwordx4 {a(240+4*cc,4)}, v{LV}, {WS4}, s{S_T} offen sc1")
            return f
        def b1l(): tk['b1'] = k(f"global_load_ushort v{B1R}, v12, {ptr(11)}")
        def gs1(): k(f"buffer_load_dwordx4 {v(GS,4)}, v10, {WS4}, s{S_GT} offen sc1")
        def gs2(): tk['gs'] = k(f"buffer_load_dwordx4 {v(GS+4,4)}, v10, {WS4}, s{S_GT} offen offset:512 sc1")
        mpsw, mpst = int(self.P('mpsw', 1)), int(self.P('mpst', 2))
        for t in range(1, 10):
            if t > 1: q_stage(t)
            if t == mprs: mq += [[0, 1, None, f] for f in rs]
            if t == mpsw: mq += [[4*(TS-3), 1, p_, l_] for p_, l_ in swq]
            if t == mpst: mq += [[NSW+1, 2, None, sw_store(cc)] for cc in range(4)]
            if t == 4: mq.append([0, 0.5, None, b1l])
        late = {NPOLL: [[NPOLL, 0.5, None, self.b2_poll]], 30: [[30, 1, None, gs1], [30, 1, None, gs2]]}
        def swr():
            k.wait_vm(tk['d1'])
            for cc in range(4):
                for e in range(2):
                    tk['r1'] = k(f"ds_read_b64_tr_b16 {a(240+4*cc+2*e,2)}, v7 offset:{e*1024+cc*32}")
        def flg():
            k.wait_vm(tk['s1']); self.set_flag(S_FB, 13)
        hooks = {NSW: swr, NFLAG: flg}
        rsf = self.rowstat_fill(R0, A0, T0, 9, S_RSDST)
        fq = [('at', NSW + 1)] + b2v + [('mark', 'b2s')]
        NRB = int(self.P('mnrb', 3))
        pa = [f"v_and_b32 v200, 15, v0", f"v_mul_u32_u24 v201, {RED_RS}, v200", f"v_lshrrev_b32 v200, 4, v0", f"v_lshl_add_u32 v201, v200, 4, v201",
              f"s_mul_i32 s{S_T+2}, s{S_W}, {RED_W}", f"s_add_u32 s{S_T+2}, s{S_T+2}, {LDS_RED}", f"v_add_u32 v201, s{S_T+2}, v201",
              f"v_accvgpr_write_b32 a{ST_M}, v201", f"s_mul_i32 s{S_T+2}, s{S_W}, {16*RED_RS}", f"s_add_u32 s{S_T+2}, s{S_T+2}, {LDS_RED}"]
        for it in range(5):
            pa += [f"v_add_u32 v200, {64*it}, v0"] + self.div20(201, 202, 200) + [f"v_lshlrev_b32 v202, 4, v202",
                   f"v_mul_u32_u24 v203, {RED_RS}, v201", f"v_add3_u32 v203, v203, v202, s{S_T+2}", f"v_accvgpr_write_b32 a{ST_M+1+it}, v203",
                   f"v_mul_u32_u24 v203, 2560, v201", f"v_add_u32 v203, v203, v202", f"v_accvgpr_write_b32 a{ST_M+6+it}, v203"]
        fq += [('at', NFLAG + 1)] + pa + self.p2_scalars(1) + [('mark', 'p2a')]
        fq += [('at', 28), lambda: k.wait_vm(tk['b1']), f"v_lshlrev_b32 v{B1R}, 16, v{B1R}", f"ds_write_b32 v11, v{B1R} offset:1536"]
        AT, BT, C1, PATV, TM = 250, 8, 6, 15, 200
        c1 = -2*LOG2E*math.sqrt(2/math.pi)
        NGS = int(self.P('mngs', 35))
        fq += [x.strip() for x in f"""v_and_b32 v11, 31, v0
        s_mul_i32 s{S_T+2}, s{S_MH}, 768
        s_mul_i32 s{S_T+3}, s{S_NH}, 384
        s_add_u32 s{S_T+2}, s{S_T+2}, s{S_T+3}
        v_lshl_add_u32 v13, v11, 2, s{S_T+2}
        v_add_u32 v13, {L_WS}, v13
        v_lshrrev_b32 v14, 5, v0
        v_lshl_add_u32 v12, v14, 4, s{S_T+3}
        v_add_u32 v12, {L_WS}, v12
        v_lshrrev_b32 v{PV}, 4, v11
        v_mul_u32_u24 v{PV}, {48*1024}, v{PV}
        v_and_b32 v15, 15, v0
        v_lshl_add_u32 v{PV}, v15, 4, v{PV}
        v_lshl_add_u32 v{PV}, v14, 8, v{PV}
        s_lshl_b32 s{S_T+2}, s{S_I}, 3
        s_lshl_b32 s{S_T+3}, s{S_MH}, 2
        s_add_u32 s{S_T+2}, s{S_T+2}, s{S_T+3}
        s_mul_i32 s{S_T+2}, s{S_T+2}, 48
        s_mul_i32 s{S_T+3}, s{S_J}, 6
        s_add_u32 s{S_T+2}, s{S_T+2}, s{S_T+3}
        s_mul_i32 s{S_T+3}, s{S_NH}, 3
        s_add_u32 s{S_T+2}, s{S_T+2}, s{S_T+3}
        s_lshl_b32 s{S_T+2}, s{S_T+2}, 10
        s_add_u32 s{S_T+6}, s{S_T+2}, {WS_A2[1]}
        s_add_u32 s{S_T+7}, s{S_T+6}, {96*1024}
        s_mov_b32 s{S_T+4}, {fbits(c1*0.044715)}
        s_mov_b32 s{S_T+5}, s{S_T+4}""".split("\n")]
        def c1set():
            assert stage_cnt[9] == 10
            k(f"v_mov_b32 v{C1}, {fbits(c1)}\nv_mov_b32 v{C1+1}, {fbits(c1)}")
        fq += [f"s_cmp_ge_u32 s{S_W}, 2\ns_cselect_b32 s{S_NM}, s{S_NM}, -1\ns_cselect_b32 s{S_T+2}, s{S_PAT}, 0", f"v_mov_b32 v{PATV}, s{S_T+2}",
               f"s_mov_b32 s{S_T+2}, {fbits(1.0/640)}", ('at', 32), c1set, ('at', NGS)]
        seqs = []
        for mt in range(2):
            g_ = GS + 4*mt; t_ = TM + mt
            seqs.append([f"v_mul_f32 v{g_}, s{S_T+2}, v{g_}", f"v_mul_f32 v{t_}, v{g_}, v{g_}", f"v_fma_f32 v{g_+2}, v{g_+2}, s{S_T+2}, -v{t_}",
                         f"v_max_f32 v{g_+2}, 0, v{g_+2}", f"v_add_f32 v{t_}, {fbits(EPS)}, v{g_+2}", f"v_rsq_f32 v{g_+1}, v{t_}",
                         f"v_mul_f32 v{t_}, v{g_+1}, v{g_+1}", f"v_mul_f32 v{t_}, v{t_}, v{g_+2}", f"v_add_f32 v{t_}, {fbits(EPS)}, v{t_}",
                         f"v_rsq_f32 v{t_}, v{t_}", f"v_mul_f32 v{AT+mt}, v{t_}, v{g_+1}", f"v_mul_f32_e64 v{BT+mt}, v{g_}, -v{AT+mt}"])
        fq += [y for x in zip(*seqs) for y in x]
        fq += [f"ds_read_b128 {v(218+4*q4,4)}, v12 offset:{1536+32*q4}" for q4 in range(4)]
        credit = 0.0; b2on = False
        for n in range(40):
            st = FR[n % 2]
            k.c(f"---- mlp k-step {n}")
            if n % 2 == 0: self.fine(16 + n//2)
            if n == NCHK:
                self.b2_check(); b2on = True
            if n == NSW + 2: k.wait_lg(tk['r1'])
            if n == NGS:
                k.wait_vm(tk['gs'])
                def check():
                    k(f"""v_xor_b32 v202, s{S_TAG}, v{GS+1}
                    v_bitop3_b32 v202, s{S_TAG2}, v{GS+3}, v202 bitop3:0xbe
                    v_bitop3_b32 v202, s{S_TAG}, v{GS+5}, v202 bitop3:0xbe
                    v_bitop3_b32 v202, s{S_TAG2}, v{GS+7}, v202 bitop3:0xbe
                    v_cmp_ne_u32 vcc, 0, v202""")
                def rl():
                    gs1(); gs2(); k("s_waitcnt vmcnt(0)")
                self.verify(check, rl, "ps")
            mq[0:0] = late.get(n, [])
            mem = []
            mmax = int(self.P('mtail', 4) + (0.5 if n % 4 < 2 else 0)) if n >= 28 else int(self.P('mmax', 5)) if n < self.P('mfast', 4) else int(self.P('mcap', 3.5)) + (1 if n % 4 < 2 and self.P('mcap', 3.5) % 1 else 0)
            while len(mem) < mmax:
                if mq and mq[0][0] <= n: it_ = mq.pop(0)
                elif b2on and self.b2q and len(mem) < self.P('mb2', 5) + (0.5 if n % 4 < 2 else -0.5): it_ = [n, 1, None, self.b2q.pop(0)]
                else: break
                mem.append(it_)
            rd = mkreads(n+1) if n + 1 < 40 else []
            small = []
            if n % 4 < 2:
                for hh in range(2):
                    for T in range(3):
                        c_ = "0" if (n == 0 and hh == 0) else v(WSA+4*T, 4)
                        small.append(f"v_mfma_f32_4x4x4_16b_bf16 {v(WSA+4*T,4)}, {v(ONE,2)}, {v(st+8+4*T+2*hh,2)}, {c_}")
            bar = n % 4 == 3 and n + 1 < 40
            cnt = [0, 3, 3, 2, 0, 0] if bar else [3, 3, 2, 0, 0, 0]
            pref = [4, 0, 5, 3, 2, 1] if bar else [4, 5, 2, 3, 0, 1]
            nper_ = [0]*6
            for j_ in range(len(mem)): nper_[pref[j_ % 6]] += 1
            dep = {0: 2, 1: 3, 2: 5, 4: 7}
            for i in range(6):
                T3, mt = i//2, i % 2
                if nper_[i] and mem[0][2]: mem[0][2]()
                if i in dep: k.wait_lg(rtok[n, dep[i]])
                d = ACC + 16*i
                k(f"v_mfma_f32_32x32x16_bf16 {v(d,16)}, {v(st+8+4*T3,4)}, {v(st+4*mt,4)}, {'0' if n == 0 else v(d,16)}")
                n0 = len(k.ins)
                for j_ in range(nper_[i]):
                    it_ = mem.pop(0)
                    if j_ and it_[2]: it_[2]()
                    it_[3]()
                if bar and i == 1:
                    assert stage_cnt[(n+1)//4] == 10
                    if n == NRB: self.rowstat_batch(R0, A0, 9, S_RSDST)
                    k.wait_both(stage_tok[(n+1)//4], k.lg_issued)
                    k("s_barrier")
                for _ in range(cnt[i]):
                    if rd: rd.pop(0)()
                self.emit(self.take_fill(fq, n, int(self.P('mden', 5)) - (len(k.ins) - n0)))
            if n in hooks: hooks[n]()
            self.emit(small)
            assert not rd and not mem
        assert not mq and not fq and self.marks['b2s'] < NPOLL
        self.info += f" mlp b2 left {len(self.b2q)} marks {self.marks}"
        k.c('loop end')
        self.stamp(2)
        if self.early_stop("loop"): return
        k.c("================ MLP epilogue")
        self.nf2 = 0
        for T in range(3): k(f"v_permlane32_swap_b32 v{WSA+4*T}, v{WSA+4*T+1}")
        for T in range(3):
            k(f"v_add_f32 v{WSA+4*T}, v{WSA+4*T}, v{WSA+4*T+1}\nds_write_b32 v13, v{WSA+4*T} offset:{128*T}")
        WB = [186, 112]
        Q = 160; PKO = [168, 172, 234, 238]
        def wreads(T3, parts=(0, 1, 2)):
            b = WB[T3 % 2]
            return [f"ds_read_b128 {v(b+16*a_+4*q4,4)}, v12 offset:{768*a_+(32*T3+8*q4)*4}" for q4 in range(4) for a_ in parts]
        def zb(Tl, prs):
            b = WB[(Tl//2) % 2]; mt = Tl % 2
            return [f"v_pk_fma_f32 {v(ACC+16*Tl+2*p,2)}, {v(AT,2)}, {v(ACC+16*Tl+2*p,2)}, {v(b+32+2*p,2)} op_sel:[{mt},0,0] op_sel_hi:[{mt},1,1]" for p in prs]
        k("s_waitcnt lgkmcnt(0)\ns_barrier")
        self.stamp(3)
        self.emit(wreads(0, (0, 1)))
        self.emit(zb(0, range(8)) + zb(1, range(8)))
        self.p2_addr(1)
        held = []
        for Tl in range(6):
            T3, mt = Tl//2, Tl % 2
            self.fine2()
            b = WB[T3 % 2]
            fill = []; body = []
            if mt == 0:
                k("s_waitcnt lgkmcnt(0)")
                body += [f"v_pk_add_f32 {v(b+2*p,2)}, {v(b+2*p,2)}, {v(b+16+2*p,2)}" for p in range(8)]
                if T3 < 2: fill = [lambda x=x: k(x) for x in wreads(T3+1)]
            for c in range(2):
                po = PKO[(2*Tl + c) % 4]; prs = range(4*c, 4*c+4)
                z = lambda p: ACC + 16*Tl + 2*p
                q = lambda p: Q + 2*(p % 4)
                if Tl >= 2: body += zb(Tl, prs)
                body += [f"v_pk_fma_f32 {v(z(p),2)}, {v(BT,2)}, {v(b+2*p,2)}, {v(z(p),2)} op_sel:[{mt},0,0] op_sel_hi:[{mt},1,1]" for p in prs]
                body += [f"v_pk_mul_f32 {v(q(p),2)}, {v(z(p),2)}, {v(z(p),2)}" for p in prs]
                body += [f"v_pk_fma_f32 {v(q(p),2)}, {v(q(p),2)}, {s(S_T+4,2)}, {v(C1,2)}" for p in prs]
                body += [f"v_pk_mul_f32 {v(q(p),2)}, {v(q(p),2)}, {v(z(p),2)}" for p in prs]
                for p in prs: body += [f"v_exp_f32 v{q(p)}, v{q(p)}", f"v_exp_f32 v{q(p)+1}, v{q(p)+1}"]
                body += [f"v_pk_add_f32 {v(q(p),2)}, {v(q(p),2)}, 1.0 op_sel_hi:[1,0]" for p in prs]
                for p in prs: body += [f"v_rcp_f32 v{q(p)}, v{q(p)}", f"v_rcp_f32 v{q(p)+1}, v{q(p)+1}"]
                body += [f"v_pk_mul_f32 {v(q(p),2)}, {v(q(p),2)}, {v(z(p),2)}" for p in prs]
                body += [f"v_cvt_pk_bf16_f32 v{po+p%4}, v{q(p)}, v{q(p)+1}" for p in prs]
                body += [f"v_and_or_b32 v{po+p%4}, v{po+p%4}, s{S_NM}, v{PATV}" for p in prs]
                def st_(T3=T3, mt=mt, c=c, po=po):
                    self.last_st = k(f"buffer_store_dwordx4 {v(po,4)}, v{PV}, {WS4}, s{S_T+6+mt} offen offset:{T3*1024+c*512} sc1")
                if Tl < 4: body.append(st_)
                else: held.append(st_)
            if Tl >= 4: fill = [self.p2_aload]*8
            if Tl < 4: fill = fill + self.b2_take(min(int(self.P('g1', 4)), -(-len(self.b2q)//(4 - Tl))))
            self.sprinkle(body, fill, lead=8)
        self.fine2()
        self.emit(held)
        self.fine2()
        self.stamp(6)
        self.phase2(1)

    RING, NR, ACS, ACO = 16, 19, 92, 172
    def p2_scalars(self, side):
        a_, b_ = S_T+2, S_T+3; hfO = 1 - side
        L = f"""s_lshl_b32 s{a_}, s{S_I}, 5
        s_lshl_b32 s{b_}, s{S_W}, 3
        s_add_u32 s{a_}, s{a_}, s{b_}
        s_lshl_b32 s{a_}, s{a_}, 6
        s_add_u32 s{S_FAP}, s{a_}, {WS_FA + side*512*FLS}
        s_lshr_b32 s{a_}, s{S_PW}, 2
        s_mul_i32 s{a_}, s{a_}, 20480
        s_mul_i32 s{b_}, s{S_W}, 5120
        s_add_u32 s{a_}, s{a_}, s{b_}
        s_add_u32 s{S_RECV}, s{a_}, {WS_PART + (1-side)*128*20480}
        s_add_u32 s{S_RECV+1}, s{S_RECV}, 4096
        s_add_u32 s{S_SEND}, s{a_}, {WS_PART + side*128*20480}
        s_add_u32 s{S_SEND+1}, s{S_SEND}, 4096
        s_lshl_b32 s{a_}, s{S_I}, 7
        s_lshl_b32 s{b_}, s{S_W}, 4
        s_add_u32 s{a_}, s{a_}, s{b_}
        s_add_u32 s{a_}, s{a_}, {64*hfO}
        s_mul_i32 s{a_}, s{a_}, 2560
        s_mul_i32 s{b_}, s{S_J}, 320
        s_add_u32 s{S_OUT}, s{a_}, s{b_}
        s_mov_b32 s{SRD_OUT}, s{P0+28}
        s_mov_b32 s{SRD_OUT+1}, s{P0+29}
        s_mov_b32 s{SRD_OUT+2}, 5242880
        s_mov_b32 s{SRD_OUT+3}, 0x20000"""
        return [x.strip() for x in L.split("\n")]
    def p2_addr(self, side):
        k = self.k
        S = [40, 48][side]; KS = [10, 12][side]
        self.side = side; self.KS = KS
        hfS = side; hfO = 1 - side
        k(f"""s_mul_i32 s45, s{S_I}, {8*S}
        s_mul_i32 s46, s{S_W}, {KS}
        s_add_u32 s45, s45, s46
        s_lshl_b32 s45, s45, 10
        s_add_u32 s45, s45, {WS_A2[side]}""")
        for t4 in range(4):
            k(f"s_add_u32 s{36+t4}, s45, {(4*hfS+t4)*S*1024}")
            k(f"s_add_u32 s{40+t4}, s45, {(4*hfO+t4)*S*1024}")
        self.seq = [(0, ss, t4) for ss in self.order for t4 in range(4)] + [(1, ss, t4) for t4 in range(4) for ss in range(KS)]
        self.atok = {}; self.areg = {}; self.nxt = 0
        self.free_ring = [self.RING + 4*i for i in range(self.NR)]
        self.free_big = [self.ACO + 4*i for i in range(20)] if side == 0 else []
    def a_instr(self, idx):
        p, ss, t4 = self.seq[idx]
        so = 36 + 4*p + t4; pre = ""
        if ss >= 4:
            pre = f"s_add_u32 s45, s{so}, {(ss//4)*4096}\n"; so = 45
        return pre + f"buffer_load_dwordx4 {v(self.areg[idx],4)}, v{self.LV}, {WS4}, s{so} offen offset:{(ss%4)*1024} sc1"
    def p2_can(self):
        if self.nxt >= len(self.seq): return False
        if self.seq[self.nxt][0] == 0 and self.free_big: return True
        return bool(self.free_ring)
    def p2_aload(self):
        idx = self.nxt
        if self.seq[idx][0] == 0 and self.free_big: r = self.free_big.pop(0)
        else: r = self.free_ring.pop(0)
        self.areg[idx] = r
        self.atok[idx] = self.k(self.a_instr(idx))
        self.nxt += 1

    def phase2(self, side):
        k = self.k
        if self.early_stop("p1"): return
        KS = self.KS; nper = 4*KS
        ACS, ACO, LV = self.ACS, self.ACO, self.LV
        hfS = side; hfO = 1 - side
        RW, RR, OO, VA, FV, T1 = 5, 6, 11, 1, 2, 253
        k.c(f"================ phase 2 (side {side})")
        if side == 1: self.free_big = [self.ACO + 4*i for i in range(20)]
        while self.nxt < 16: self.p2_aload()
        self.stamp(8)
        def vcheck(j, lst):
            regs = [self.areg[4*j+t]+e for t in range(4) for e in range(4)]
            L = []
            for q in range(0, 16, 2):
                L += [f"v_xor_b32 v{regs[q]}, s{S_PAT}, v{regs[q]}", f"v_xor_b32 v{regs[q+1]}, s{S_PAT}, v{regs[q+1]}",
                      f"v_or_b32 v{VA}, v{regs[0]}, v{regs[1]}" if q == 0 else f"v_or3_b32 v{VA}, v{regs[q]}, v{regs[q+1]}, v{VA}"]
            L += [f"v_and_b32 v{VA}, 0x10001, v{VA}", f"v_cmp_ne_u32 vcc, 0, v{VA}"]
            return L
        def vfinish(j):
            hi = min(self.nxt, nper)
            ins = [self.a_instr(i) for i in range(4*j, hi)]
            chk = vcheck(j, None)
            def reload():
                self.emit(ins); k("s_waitcnt vmcnt(0)")
            self.verify(lambda: self.emit(chk), reload, "va", checked=True)
        k(f"v_and_b32 v{FV}, 7, v0\nv_lshlrev_b32 v{FV}, 6, v{FV}")
        a1 = [f"v_mov_b32 v3, s{S_PAT32}\ns_mov_b32 s{S_NM}, -4"]
        if side == 1:
            regs_ = [RW] + [RR+it for it in range(5)] + [OO+it for it in range(5)]
            rd_ = [f"v_accvgpr_read_b32 v{r}, a{ST_M+q}" for q, r in enumerate(regs_)]
            a1 += ["\n".join(rd_[q:q+2]) for q in range(0, 11, 2)]
        else:
            a1 += [f"v_accvgpr_read_b32 v{RW}, a{ST['RW']}", f"s_movk_i32 s{S_T+1}, {RED_RS}", f"s_movk_i32 s{S_T+2}, 2560",
                   f"s_mul_i32 s{S_T}, s{S_W}, {16*RED_RS}", f"s_add_u32 s{S_T}, s{S_T}, {LDS_RED}"]
            for it in range(5):
                a1 += [f"v_lshlrev_b32 v{T1}, 4, v{RR+it}",
                       f"v_mad_u32_u24 v{RR+it}, v{OO+it}, s{S_T+1}, v{T1}", f"v_add_u32 v{RR+it}, s{S_T}, v{RR+it}",
                       f"v_mad_u32_u24 v{OO+it}, v{OO+it}, s{S_T+2}, v{T1}"]
            self.emit(a1); a1 = []
        tk = {}
        gate = [lambda j: nper, lambda j: 32 if j < 3 else nper][side]
        k.wait_vm(self.atok[3])
        self.emit(vcheck(0, None)); vfinish(0)
        o_ok = False
        if side == 0: k(f"v_add_u32 v254, s{S_RL}, v{LV}")
        swr_left = []
        sw_all = {t4: [x for cc in range(5) for x in [W2(f"ds_write_b128 v{RW}, {v(ACS+(t4*5+cc)*4,4)} offset:{t4*16*RED_RS+cc*64}")] + [PAD]*int(self.P('wpad', 1))] for t4 in range(4)}
        for j in range(KS):
            self.fine(36 + j)
            ss = self.order[j]
            while (ss, 4) not in self.b2tok: self.b2q.pop(0)()
            k.wait_vm(self.b2tok[ss, 4])
            vq = None
            misc = []
            if j == [0, int(self.P('jfl', 3))][side]:
                def f():
                    k.wait_vm(self.last_st)
                    k(f"s_add_u32 s{S_T+10}, s{S_FLAG}, {WS_FA + side*512*FLS}")
                    self.set_flag(S_T+10, 4)
                misc.append(f)
            if j == [int(self.P('jpo0', 5)), int(self.P('jpo', 7))][side]:
                def f(): tk['fa'] = k(f"buffer_load_dword v4, v{FV}, {WS4}, s{S_FAP} offen sc1")
                misc.append(f)
            if j == [int(self.P('jck0', 7)), int(self.P('jck', 9))][side]:
                k.wait_vm(tk['fa'])
                def rl(): k(f"buffer_load_dword v4, v{FV}, {WS4}, s{S_FAP} offen sc1\ns_waitcnt vmcnt(0)")
                self.verify(lambda: k(f"v_cmp_ne_u32 vcc, s{S_TAG}, v4"), rl, "fa")
                o_ok = True
            for t4 in range(4):
                idx = 4*j + t4
                for cc in range(5):
                    g_ = 5*t4 + cc
                    d = ACS + (t4*5 + cc)*4
                    k(f"v_mfma_f32_16x16x32_bf16 {v(d,4)}, {a((ss*5+cc)*4,4)}, {v(self.areg[idx],4)}, {'0' if j == 0 else v(d,4)}")
                    lim = gate(j) if not o_ok else 2*nper
                    if g_ % 3 == 0 and self.p2_can() and self.nxt < lim and self.nxt < idx + 22:
                        self.p2_aload()
                    elif g_ in (1, 10) and self.b2q and j >= [1, 3][side]:
                        self.b2q.pop(0)()
                    elif g_ >= 1 and j + 1 < KS:
                        if vq is None: vq = vcheck(j+1, None); vdone = 0
                        fr = vdone//6
                        if vq and (fr >= 4 or g_ >= 5*fr + int(self.P('vlead', 1)) - (2 if fr == 3 else 0)):
                            if fr < 4 and vdone % 6 == 0: k.wait_vm(self.atok[4*j+4+fr])
                            self.emit(vq[:2]); vq = vq[2:]; vdone += 2
                        elif misc or a1: self.emit([(misc or a1).pop(0)])
                    elif misc or a1:
                        self.emit([(misc or a1).pop(0)])
                    elif j == KS - 1 and swr_left:
                        x = swr_left.pop(0)
                        if x is PAD:
                            if swr_left and swr_left[0] is PAD: swr_left.pop(0)
                        else: k(x)
                    if j == KS - 1 and cc == 2 and t4 > 0: swr_left += sw_all[t4-1]
                r = self.areg[idx]
                (self.free_ring if r < ACS else self.free_big).append(r) if (r < ACS or self.nxt < nper - 8) else None
            self.emit(misc)
            if j + 1 < KS:
                k.wait_vm(self.atok[4*j+7])
                self.emit(vq); vfinish(j+1)
        assert not a1
        swr_left += [PAD]*4 + sw_all[3]
        self.stamp(9)
        fill = list(swr_left)
        fill += [PAD]*int(self.P('bpad', 4)) + [W2("s_waitcnt lgkmcnt(0)\ns_barrier")]
        rds = []
        for it in range(5):
            for sw in range(4):
                def f(it=it, sw=sw): tk['r', it] = k(f"ds_read_b128 {v(ACS+(it*4+sw)*4,4)}, v{RR+it} offset:{sw*RED_W}")
                rds.append(f)
        def tail(it):
            b = ACS + it*16; L = []
            if side == 0:
                L.append(lambda: k.wait_lg(tk['R', it]))
                L += [f"v_add_f32 v{b+e}, v{b+e}, v{b+4+e}" for e in range(4)]
            L += [f"v_and_or_b32 v{b+e}, v{b+e}, s{S_NM}, v3" for e in range(4)]
            L.append(f"buffer_store_dwordx4 {v(b,4)}, v{LV}, {WS4}, s{S_SEND+it//4} offen offset:{(it%4)*1024} sc1")
            return L
        for r_ in rds[:8]: fill += [r_, PAD]
        for it in range(5):
            b = ACS + it*16
            ad = [f"v_add_f32 v{b+e}, v{b+e}, v{b+4+e}" for e in range(4)]
            if side == 0:
                def f(it=it, b=b): tk['R', it] = k(f"ds_read_b128 {v(b+4,4)}, v254 offset:{hfS*20480+it*1024}")
                ad.append(f)
            ad += [f"v_add_f32 v{b+8+e}, v{b+8+e}, v{b+12+e}" for e in range(4)] + [f"v_add_f32 v{b+e}, v{b+e}, v{b+8+e}" for e in range(4)]
            if it > 0: ad += tail(it - 1)
            nx = rds[8+4*it:12+4*it]
            fill.append(lambda it=it: k.wait_lg(tk['r', it]))
            for q, x in enumerate(ad):
                if q % 3 == 0 and nx: fill.append(nx.pop(0))
                fill.append(x)
            if it == 3: pass
        fill += tail(4) + [W2("s_barrier")]
        owr = {t4: [f"ds_write_b128 v{RW}, {v(ACO+(t4*5+cc)*4,4)} offset:{t4*16*RED_RS+cc*64}" for cc in range(5)] for t4 in range(4)}
        oq = []
        def ploads():
            return [k(f"buffer_load_dwordx4 {v(ACS+it*16+12,4)}, v{LV}, {WS4}, s{S_RECV+it//4} offen offset:{(it%4)*1024} sc1") for it in range(5)]
        slot = 0
        for j in range(nper):
            idx = nper + j
            _, ss, t4 = self.seq[idx]
            if j % 4 == 0: self.fine(36 + KS + j//4)
            if ss == 1 and t4 > 0: oq += [x for w_ in owr[t4-1] for x in [W2(w_)] + [PAD]*int(self.P('opad', 2))]
            while idx not in self.atok: self.p2_aload()
            k.wait_vm(self.atok[idx])
            for cc in range(5):
                d = ACO + (t4*5 + cc)*4
                k(f"v_mfma_f32_16x16x32_bf16 {v(d,4)}, {a((ss*5+cc)*4,4)}, {v(self.areg[idx],4)}, {'0' if ss == 0 else v(d,4)}")
                cap = 2
                if cc == 0 and self.p2_can():
                    n0 = len(k.ins); self.p2_aload(); cap -= len(k.ins) - n0
                while cap > 0 and (fill or oq):
                    q_ = fill or oq
                    c_ = 2 if isinstance(q_[0], W2) else 1
                    if c_ > cap: break
                    x = q_.pop(0); cap -= c_
                    if x is not PAD: self.emit([x])
                if fill == [] and 'sent' not in tk: tk['sent'] = 5*j + cc
            self.free_ring.append(self.areg[idx])
            if side == 0 and j == nper - 6:
                assert self.nxt == len(self.seq)
                self.ereg = self.free_ring.pop(0); self.eadr = self.free_ring.pop(0)
                k(f"s_cmp_eq_u32 s{S_PW}, 0\ns_cbranch_scc1 L_ep0")
                k.label("L_ep1")
            if j == nper - 3: ptoks = ploads()
        assert not fill
        self.stamp(10)
        rest = [x for x in oq if x is not PAD] + owr[3]
        self.info += f" sent{side}@{tk['sent']}/{5*nper} rest{len(rest)}"
        if side == 0:
            for it in range(5): k(f"ds_read_b128 {v(ACS+it*16+4,4)}, v254 offset:{hfO*20480+it*1024}")
        self.emit(rest)
        def pcheck():
            regs = [ACS+it*16+12+e for it in range(5) for e in range(4)]
            for q in range(0, 20, 2):
                k(f"v_xor_b32 v{regs[q]}, s{S_PAT32}, v{regs[q]}\nv_xor_b32 v{regs[q+1]}, s{S_PAT32}, v{regs[q+1]}")
                k(f"v_or_b32 v{VA}, v{regs[0]}, v{regs[1]}" if q == 0 else f"v_or3_b32 v{VA}, v{regs[q]}, v{regs[q+1]}, v{VA}")
            k(f"v_and_b32 v{VA}, 3, v{VA}\nv_cmp_ne_u32 vcc, 0, v{VA}")
        k("s_waitcnt lgkmcnt(0)\ns_barrier")
        toks = []
        for it in range(5):
            for sw in range(4):
                toks.append(k(f"ds_read_b128 {v(ACO+(it*4+sw)*4,4)}, v{RR+it} offset:{sw*RED_W}"))
        k.wait_vm(ptoks[4])
        def rl():
            ploads(); k("s_waitcnt vmcnt(0)")
        self.verify(pcheck, rl, "pp")
        self.stamp(11)
        if side == 0:
            for it in range(5):
                for h in range(2):
                    k(f"v_pk_add_f32 {v(ACS+it*16+12+2*h,2)}, {v(ACS+it*16+12+2*h,2)}, {v(ACS+it*16+4+2*h,2)}")
        for it in range(5):
            b = ACO + it*16
            k.wait_lg(toks[4*it+3])
            for h in range(2):
                k(f"v_pk_add_f32 {v(b+2*h,2)}, {v(b+2*h,2)}, {v(b+4+2*h,2)}")
                k(f"v_pk_add_f32 {v(b+8+2*h,2)}, {v(b+8+2*h,2)}, {v(b+12+2*h,2)}")
            for h in range(2):
                k(f"v_pk_add_f32 {v(b+2*h,2)}, {v(b+2*h,2)}, {v(ACS+it*16+12+2*h,2)}")
            for h in range(2):
                k(f"v_pk_add_f32 {v(b+2*h,2)}, {v(b+2*h,2)}, {v(b+8+2*h,2)}")
            k(f"buffer_store_dwordx4 {v(b,4)}, v{OO+it}, {s(SRD_OUT,4)}, s{S_OUT} offen {'sc1' if 'outsc1' in self.opt else 'nt' if 'outnt' in self.opt else ''}")
        self.stamp(12)
        self.finish_wg(side)

    def epoch_loads(self):
        for q in range(4):
            self.k(f"s_mov_b32 s{S_T+1}, {WS_FA + q*64*4*FLS}")
            self.k(f"buffer_load_dword v{self.ereg+q}, v{self.eadr}, {WS4}, s{S_T+1} offen sc1")
    def finish_wg(self, side):
        k = self.k
        if side == 0:
            k(f"""s_cmp_lg_u32 s{S_PW}, 0
            s_cbranch_scc1 L_fin0""")
            e = self.ereg
            def loads():
                self.epoch_loads(); k("s_waitcnt vmcnt(0)")
            def check():
                k(f"v_xor_b32 v14, s{S_TAG}, v{e}")
                for q in range(1, 4): k(f"v_bitop3_b32 v14, s{S_TAG}, v{e+q}, v14 bitop3:0xbe")
                k("v_cmp_ne_u32 vcc, 0, v14")
            self.verify(check, loads, "pe")
            k(f"s_mov_b32 s{S_T}, {WS_EPOCH}")
            self.set_flag(S_T, 14)
            k.label("L_fin0")
        if self.spin:
            lb = k.newlabel("spin")
            k(f"s_add_u32 s101, s101, {self.spin}")
            k.label(lb)
            k(f"""s_memrealtime s[98:99]
            s_waitcnt lgkmcnt(0)
            s_sub_u32 s98, s98, s100
            s_cmp_lt_u32 s98, s101
            s_cbranch_scc1 {lb}""")
        if self.ts:
            k("s_waitcnt vmcnt(0)"); self.stamp(13); self.stamp_flush()
        k("s_endpgm")

    def build(self):
        k = self.k
        self.prologue()
        st = k.state()
        self.ssm()
        if hasattr(self, 'ereg'):
            k.label("L_ep0")
            k(f"v_lshlrev_b32 v{self.eadr}, 8, v0")
            self.epoch_loads()
            k("s_branch L_ep1")
        self.flush_slow()
        k.set_state(st)
        self.mlp()
        self.flush_slow()
        k.label("L_end")
        k("s_endpgm")
        if 'nob2' in self.opt:
            k.ins = [x for x in k.ins if not (x.op == 'buffer_load_dwordx4' and ' a[' in x.text)]
        if 'b2hot' in self.opt:
            for x in k.ins:
                if x.op == 's_add_u32' and x.text.startswith(f's_add_u32 s{P0+30},'): x.text = f's_add_u32 s{P0+30}, s{S_B2}, 0'
        if 'noa2' in self.opt:
            out = []; inp2 = False
            for x in k.ins:
                if 'phase 2 (side' in x.text: inp2 = True
                if x.op == 's_endpgm': inp2 = False
                if inp2 and (x.op == 's_cbranch_vccnz' or (x.op == 'buffer_load_dwordx4' and 'sc1' in x.text and ' a[' not in x.text)): continue
                out.append(x)
            k.ins = out
        if self.opt & {'nomfma', 'noread', 'nobar', 'nofill'}:
            out = []; inloop = False
            for x in k.ins:
                if 'k-step' in x.text: inloop = True
                if 'loop end' in x.text: inloop = False
                if inloop:
                    if 'nomfma' in self.opt and x.kind == 'mfma': continue
                    if 'noread' in self.opt and x.kind == 'ds': continue
                    if 'nobar' in self.opt and x.op == 's_barrier': continue
                    if 'nofill' in self.opt and (x.op == 's_cbranch_vccnz' or (x.kind == 'vmem' and not x.lds_dma) or 'v253' in x.text): continue
                out.append(x)
            k.ins = out
        body = k.finish()
        hdr = open("header.txt").read()
        return (hdr + f"""; @launch grid=(256,1,1) block=(256,1,1) lds=163840
.amdgcn_target "amdgcn-amd-amdhsa--gfx950"
.text
.globl {NAME}
.p2align 8
.type {NAME},@function
{NAME}:
""" + body + f""".section .rodata,"a"
.p2align 6
.amdhsa_kernel {NAME}
  .amdhsa_next_free_vgpr 512
  .amdhsa_next_free_sgpr 102
  .amdhsa_accum_offset 256
  .amdhsa_group_segment_fixed_size 0
  .amdhsa_kernarg_size 136
  .amdhsa_user_sgpr_count 2
  .amdhsa_user_sgpr_kernarg_segment_ptr 1
  .amdhsa_system_sgpr_workgroup_id_x 1
.end_amdhsa_kernel
""")

if __name__ == "__main__":
    import argparse
    ap = argparse.ArgumentParser()
    ap.add_argument("-o", default="k4.s")
    ap.add_argument("--stop", default=None)
    ap.add_argument("--ts", action="store_true")
    ap.add_argument("--spin", type=int, default=0)
    ap.add_argument("--seg", type=int, default=None)
    ap.add_argument("--opt", default="")
    a_ = ap.parse_args()
    g = G(stop=a_.stop, ts=a_.ts, spin=a_.spin, seg=a_.seg, opt=a_.opt.split(","))
    txt = g.build()
    open(a_.o, "w").write(txt)
    print("written", a_.o, "nops inserted:", g.k.nops, "lines:", txt.count("\n"), g.info)
```

```python
import sys, math, struct
sys.path.insert(0, "gen")
from emit import *

NAME = "parallel_sum__ssm_conv_s5__mixer_channel_mlp__prompt_kernel"
WS_EPOCH = 0
WS_FB = 0x1000
WS_FA = 0x11000
WS_AGG = 0x31000
WS_STG = 0x59000
WS_WSG = 0x61000
WS_B2S = [0x70000, 0x200000]
WS_A2 = [0x400000, 0x900000]
WS_PART = 0xF00000
WS_TS = 0x1400000
WS_SIZE = 0x1500000
FLS = 64
S_W = 3
SRD_X, SRD_W, SRD_WS, SRD_OUT, SRD_T1, SRD_T2 = 4, 8, 12, 16, 20, 24
S_TAG, S_TAG2, S_I, S_J, S_PAT = 28, 29, 30, 31, 32
S_PW = 33
S_FLAG = 34
S_OUT = 35
S_XO = 36
S_WO = 40
S_MX, S_MW = 45, 46
S_B2 = 47
S_T = 48
P0 = 64
def ptr(n): return s(P0 + 2*n, 2)
S_PAT32 = P0 + 18
S_NM = P0 + 19
S_WRAP, S_ST1, S_ST2 = 2, 0, 1
S_TS = 98
S_ST1K, S_ST2K = P0 + 2, P0 + 3
LOG2E = 1.4426950408889634
EPS = 1e-5
def fbits(x): return "0x%08x" % struct.unpack("<I", struct.pack("<f", x))[0]
POLL_MAX = 20000
LDS_RED = 16384
RED_RS = 336
RED_W = 64 * RED_RS
L_R = 106496
WS4 = s(SRD_WS, 4)
NOP = lambda: None
PAD = object()
class W2(str):
    pass

ST = dict(E=200, CH=201, PUB=202, TB=203, GA=204, VA=205, QE=206, CW=207, CR=208, TW=209, TR=210, PAT=211,
          RD=212, ROW=236, C4=241, RW=246)
S_MK = 68
S_FAP, S_RECV, S_SEND = 95, 88, 96
ST_M = 240
S_AG1, S_AG4, S_A2B, S_RX, S_RL, S_RJ = 78, 79, 84, 85, 86, 87
class C5:
    def __init__(self, re, im=None, st=1):
        self.re = re; self.im = re + 1 if im is None else im; self.st = 2 if im is None else st
    def r(self, b): return self.re + self.st*b
    def i(self, b): return self.im + self.st*b

class G:
    def __init__(self, stop=None, ts=False, spin=0, seg=None, opt=()):
        self.k = Emit(); self.slow = []; self.stop = stop; self.ts = ts; self.spin = spin; self.seg = seg; self.opt = set(opt)

    def P(self, name, default):
        for o in self.opt:
            if o.startswith(name + "="): return float(o.split("=")[1])
        return default
    def stamp(self, idx):
        k = self.k
        if self.seg == idx:
            k("s_memrealtime s[98:99]\ns_waitcnt lgkmcnt(0)\ns_sub_u32 s101, s98, s100")
        if not self.ts: return
        k(f"{'s_memtime' if 'cyc' in self.opt else 's_memrealtime'} {s(S_TS,2)}")
        k("s_waitcnt lgkmcnt(0)")
        k(f"v_writelane_b32 v255, s{S_TS}, {idx}")
    def fine(self, idx):
        if 'fine' in self.opt: self.stamp(idx)
    def fine3(self):
        if 'fine3' in self.opt:
            self.stamp(16 + self.nf3); self.nf3 += 1
    def fine2(self):
        if 'fine2' in self.opt:
            self.stamp(16 + self.nf2); self.nf2 += 1
    def stamp_flush(self):
        if not self.ts: return
        self.k(f"""s_lshl_b32 s{S_T}, s99, 2
        v_readlane_b32 s{S_T}, v255, 63
        s_nop 3
        s_lshl_b32 s{S_T}, s{S_T}, 2
        s_add_u32 s{S_T}, s{S_T}, s{S_W}
        s_lshl_b32 s{S_T}, s{S_T}, 8
        s_add_u32 s{S_T}, s{S_T}, {WS_TS}
        v_mbcnt_lo_u32_b32 v254, -1, 0
        v_mbcnt_hi_u32_b32 v254, -1, v254
        v_lshlrev_b32 v254, 2, v254
        buffer_store_dword v255, v254, {WS4}, s{S_T} offen""")
    def early_stop(self, name):
        if self.stop != name: return False
        self.k("s_waitcnt vmcnt(0)"); self.stamp(13); self.stamp_flush(); self.k("s_endpgm")
        return True

    def srd(self, base, pn, size):
        self.k(f"""s_mov_b32 s{base}, s{P0+2*pn}
        s_and_b32 s{base+1}, s{P0+2*pn+1}, 0xffff
        s_mov_b32 s{base+2}, {size}
        s_mov_b32 s{base+3}, 0x20000""")
    def verify(self, check, reload, name, checked=False):
        k = self.k
        slow = k.newlabel(name); done = k.newlabel(name + "d")
        if not checked: check()
        k(f"s_cbranch_vccnz {slow}")
        k.label(done)
        self.slow.append((slow, done, check, reload))
    def flush_slow(self):
        k = self.k
        for slow, done, check, reload in self.slow:
            top = k.newlabel(slow + "t")
            k.label(slow)
            if self.ts:
                bit = {'pb': 1, 'pg': 2, 'ps': 2, 'pc': 4, 'va': 8, 'fa': 16, 'pp': 32, 'pe': 64}[slow[:2]]
                k(f"v_readlane_b32 s{S_T+15}, v255, 15\ns_nop 3\ns_or_b32 s{S_T+15}, s{S_T+15}, {bit}\nv_writelane_b32 v255, s{S_T+15}, 15")
            k(f"s_mov_b32 s{S_T+15}, {POLL_MAX}")
            k.label(top)
            reload()
            check()
            k(f"""s_cbranch_vccz {done}
            s_sub_u32 s{S_T+15}, s{S_T+15}, 1
            s_cmp_lg_u32 s{S_T+15}, 0
            s_cbranch_scc1 {top}
            s_branch {done}""")
        self.slow = []
    def set_flag(self, soff, vtmp, off=0):
        return self.k(f"""v_mov_b32 v{vtmp}, s{S_TAG}
        s_mov_b64 exec, 1
        buffer_store_dword v{vtmp}, off, {WS4}, s{soff} offset:{off} sc1
        s_mov_b64 exec, -1""")
    def capture(self, fn):
        real = self.k; rec = Emit(); rec._lab = real._lab
        self.k = rec
        try: fn(rec)
        finally: self.k = real
        L = [x.text for x in rec.ins]
        assert all(x.kind in ("salu", "valu", "trans") and not x.op.startswith("s_waitcnt") for x in rec.ins)
        out = []; i = 0
        while i < len(L):
            if L[i].startswith(("s_cmp", "s_bitcmp")):
                j = i + 1; last = i
                while j < len(L) and L[j].startswith(("s_cselect", "s_mov")):
                    if L[j].startswith("s_cselect"): last = j
                    j += 1
                out.append("\n".join(L[i:last+1])); i = last + 1
            else:
                out.append(L[i]); i += 1
        return out
    def emit(self, L):
        for x in L:
            x() if callable(x) else self.k(x)
    def sprinkle(self, work, q, lead=0):
        k = self.k; q = list(q); n0 = len(q); masked = False
        for i, w_ in enumerate(work):
            self.emit([w_])
            if isinstance(w_, str):
                if w_.startswith(("s_mov_b32 exec", "s_mov_b64 exec, s")) or "s_cselect_b64 exec" in w_: masked = True
                if w_.startswith("s_mov_b64 exec, -1"): masked = False
            while q and not masked and i >= lead and (n0 - len(q) + 1)*(len(work) - lead) <= (i - lead + 1)*(n0 + 1) + n0:
                q.pop(0)()
        for f in q: f()
    def cpow(self, dre, dim, n, zr, zi, t):
        return [f"v_mul_f32 v{t}, {n}, v{zi}", f"v_mul_f32 v{dre}, {n}, v{zr}", f"v_fract_f32 v{t}, v{t}",
                f"v_exp_f32 v{dre}, v{dre}", f"v_sin_f32 v{dim}, v{t}", f"v_cos_f32 v{t}, v{t}",
                f"v_mul_f32 v{dim}, v{dim}, v{dre}", f"v_mul_f32 v{dre}, v{t}, v{dre}"]
    def cmul5(self, d, x, y, c=None):
        L = []
        for b in range(5):
            L.append(f"v_mul_f32 v{d.r(b)}, v{x.r(b)}, v{y.r(b)}" if c is None else f"v_fma_f32 v{d.r(b)}, v{x.r(b)}, v{y.r(b)}, v{c.r(b)}")
            L.append(f"v_mul_f32 v{d.i(b)}, v{x.r(b)}, v{y.i(b)}" if c is None else f"v_fma_f32 v{d.i(b)}, v{x.r(b)}, v{y.i(b)}, v{c.i(b)}")
        for b in range(5):
            L.append(f"v_fma_f32 v{d.r(b)}, -v{x.i(b)}, v{y.i(b)}, v{d.r(b)}")
            L.append(f"v_fma_f32 v{d.i(b)}, v{x.i(b)}, v{y.r(b)}, v{d.i(b)}")
        return L
    def div20(self, q, r, x):
        return [f"v_mul_u32_u24 v{q}, 3277, v{x}", f"v_lshrrev_b32 v{q}, 16, v{q}", f"v_mul_u32_u24 v{r}, 20, v{q}", f"v_sub_u32 v{r}, v{x}, v{r}"]

    def prologue(self):
        k = self.k
        k(f"""s_cmp_ge_u32 s2, 256
        s_cbranch_scc1 L_end""")
        if self.spin: k("s_memrealtime s[100:101]")
        if 'align' in self.opt:
            k("""s_memrealtime s[98:99]
            s_waitcnt lgkmcnt(0)
            s_add_u32 s100, s98, 300
            s_and_b32 s100, s100, 0xfffffc00
            s_add_u32 s100, s100, 1024""")
            k.label("L_align")
            k("""s_memrealtime s[98:99]
            s_waitcnt lgkmcnt(0)
            s_cmp_lt_u32 s98, s100
            s_cbranch_scc1 L_align""")
        k(f"""s_load_dwordx16 {s(P0,16)}, s[0:1], 0
        s_load_dwordx16 {s(P0+16,16)}, s[0:1], 64
        s_load_dwordx2 {s(P0+32,2)}, s[0:1], 128""")
        if 'nopf' not in self.opt:
            k(f"""s_getpc_b64 {s(S_T,2)}""")
            k.label("L_pc")
            k(f"""s_bitcmp1_b32 s2, 0
            s_cselect_b32 s{S_T+2}, L_mlp-L_pc, 0
            s_add_u32 s{S_T}, s{S_T}, s{S_T+2}
            s_addc_u32 s{S_T+1}, s{S_T+1}, 0
            s_lshr_b32 s{S_T+2}, s2, 3
            s_lshl_b32 s{S_T+2}, s{S_T+2}, 10
            v_lshl_add_u32 v254, v0, 2, s{S_T+2}
            v_min_u32 v254, L_end-L_mlp, v254
            global_load_dword v254, v254, {s(S_T,2)}""")
        k("s_bitcmp1_b32 s2, 0\ns_cbranch_scc1 L_mlp")
        self.LV = 252; self.PV = 253

    def common_a(self):
        k = self.k
        if self.ts: k("v_mov_b32 v255, 0\nv_writelane_b32 v255, s2, 63")
        k(f"""v_lshrrev_b32 v1, 6, v0
        v_and_b32 v0, 63, v0
        v_readfirstlane_b32 s{S_W}, v1
        s_bfe_u32 s{S_T}, s2, 0x20001
        s_lshr_b32 s{S_T+1}, s2, 6           ; c = id>>6
        s_lshl_b32 s{S_I}, s{S_T+1}, 2
        s_add_u32 s{S_I}, s{S_I}, s{S_T}
        s_bfe_u32 s{S_J}, s2, 0x30003        ; j = (id>>3)&7
        s_lshl_b32 s{S_T}, s{S_I}, 3
        s_add_u32 s{S_T}, s{S_T}, s{S_J}
        s_lshl_b32 s{S_T}, s{S_T}, 2
        s_add_u32 s{S_PW}, s{S_T}, s{S_W}    ; (i*8+j)*4+w
        s_lshl_b32 s{S_FLAG}, s{S_PW}, 6
        s_lshl_b32 s{S_MX}, s{S_W}, 12
        s_lshl_b32 s{S_T+2}, s{S_I}, 7
        s_lshl_b32 s{S_T+3}, s{S_W}, 5
        s_add_u32 s{S_T+2}, s{S_T+2}, s{S_T+3}
        s_mul_i32 s{S_XO}, s{S_T+2}, 1280
        v_lshrrev_b32 v11, 4, v0                 ; g
        v_and_b32 v13, 7, v0
        v_xor_b32 v12, v13, v11
        v_lshlrev_b32 v12, 4, v12
        v_lshrrev_b32 v3, 3, v0
        v_mul_u32_u24 v3, 1280, v3
        v_lshl_add_u32 v253, v13, 4, v3          ; (l>>3)*1280 + (l&7)*16
        v_add_u32 v3, v3, v12                    ; (l>>3)*1280 + swz
        v_lshlrev_b32 v252, 4, v0
        """)
    def common_b(self):
        k = self.k
        k("s_waitcnt lgkmcnt(0)")
        if self.spin: k("s_mov_b32 s101, 0")
        k(f"s_load_dword s{S_TAG}, {ptr(16)}, {WS_EPOCH}")
        k(f"""s_mov_b32 s{SRD_X}, s{P0}
        s_mov_b32 s{SRD_X+1}, s{P0+1}
        s_mov_b32 s{SRD_X+2}, 2621440
        s_mov_b32 s{SRD_X+3}, 0x20000
        s_mov_b32 s{SRD_WS}, s{P0+32}
        s_mov_b32 s{SRD_WS+1}, s{P0+33}
        s_mov_b32 s{SRD_WS+2}, {WS_SIZE}
        s_mov_b32 s{SRD_WS+3}, 0x20000""")

    def make_tag(self):
        self.k(f"""s_waitcnt lgkmcnt(0)
        s_bitcmp1_b32 s{S_TAG}, 0
        s_cselect_b32 s{S_PAT}, 0x10000, 1        ; payload tag bits alternate from launch to launch
        s_cselect_b32 s{S_PAT32}, 2, 1
        s_mul_i32 s{S_TAG}, s{S_TAG}, 0x9E3779B1
        s_add_u32 s{S_TAG}, s{S_TAG}, 0x7F4A7C15
        s_and_b32 s{S_TAG}, s{S_TAG}, 0xfffefffc
        s_or_b32 s{S_TAG}, s{S_TAG}, s{S_PAT}
        s_or_b32 s{S_TAG}, s{S_TAG}, s{S_PAT32}
        s_xor_b32 s{S_TAG2}, s{S_TAG}, 0x5bd1e995
        s_brev_b32 s{S_TAG2}, s{S_TAG2}
        s_mov_b32 s{S_NM}, 0xfffefffe""")

    def rowstat_setup(self, s_row, s_cl, va, vr):
        self.k(f"""v_min_u32 v{vr}, s{s_cl}, v11
        v_mul_u32_u24 v{va}, 1280, v{vr}
        v_and_b32 v13, 15, v0
        v_lshl_add_u32 v{va}, v13, 4, v{va}
        v_lshlrev_b32 v{vr}, 4, v{vr}
        s_mul_i32 s{s_row}, s{s_row}, 1280""")
    def rowstat_loads(self, srd, s_row, va, R0):
        L = []
        for q in range(5):
            def f(q=q): self.rs_tok[q] = self.k(f"buffer_load_dwordx4 {v(R0+4*q,4)}, v{va}, {s(srd,4)}, s{s_row} offen offset:{256*q}")
            L.append(f)
        self.rs_tok = {}
        return L
    def rowstat_fill(self, R0, A0, T0, vr, s_dst, sq=True):
        k = self.k; L = []
        for q in range(20):
            if q % 4 == 0: L.append(lambda q=q: k.wait_vm(self.rs_tok[q//4]))
            t0, t1 = T0 + 2*(q % 2), T0 + 2*(q % 2) + 1
            L += [f"v_lshlrev_b32 v{t0}, 16, v{R0+q}", f"v_and_b32 v{t1}, 0xffff0000, v{R0+q}"]
            if q == 0: L += [f"v_add_f32 v{A0}, v{t0}, v{t1}", f"v_mul_f32 v{A0+2}, v{t0}, v{t0}", f"v_fmac_f32 v{A0+2}, v{t1}, v{t1}"]
            else: L += [f"v_add_f32 v{A0}, v{A0}, v{t0}", f"v_fmac_f32 v{A0+2}, v{t0}, v{t0}", f"v_add_f32 v{A0}, v{A0}, v{t1}", f"v_fmac_f32 v{A0+2}, v{t1}, v{t1}"]
        L += [f"v_mov_b32 v{A0+1}, s{S_TAG}", f"v_mov_b32 v{A0+3}, s{S_TAG2}"]
        for r in (8, 4, 2, 1):
            L += [f"v_add_f32_dpp v{A0}, v{A0}, v{A0} row_ror:{r} row_mask:0xf bank_mask:0xf", f"v_add_f32_dpp v{A0+2}, v{A0+2}, v{A0+2} row_ror:{r} row_mask:0xf bank_mask:0xf"]
        if not sq: L = [x for x in L if callable(x) or not x.split(",")[0].endswith((f"v{A0+2}", f"v{A0+3}"))]
        L.append(lambda: k(f"""s_mov_b32 exec_lo, 0x00010001
        s_mov_b32 exec_hi, 0x00010001
        buffer_store_dwordx{4 if sq else 2} {v(A0,4 if sq else 2)}, v{vr}, {WS4}, s{s_dst} offen sc1
        s_mov_b64 exec, -1"""))
        return L
    def rowstat_batch(self, R0, A0, vr, s_dst, sq=True):
        k = self.k
        k.wait_vm(self.rs_tok[4])
        k(f"s_mov_b32 s{S_T+4}, 0x3f803f80\nv_mov_b32 v{A0+1}, s{S_TAG}")
        if sq: k(f"v_mov_b32 v{A0+3}, s{S_TAG2}")
        for q in range(20):
            k(f"v_dot2_f32_bf16 v{A0}, v{R0+q}, s{S_T+4}, {'0' if q == 0 else v(A0)}")
            if sq: k(f"v_dot2_f32_bf16 v{A0+2}, v{R0+q}, v{R0+q}, {'0' if q == 0 else v(A0+2)}")
        for r in (8, 4, 2, 1):
            k(f"v_add_f32_dpp v{A0}, v{A0}, v{A0} row_ror:{r} row_mask:0xf bank_mask:0xf")
            if sq: k(f"v_add_f32_dpp v{A0+2}, v{A0+2}, v{A0+2} row_ror:{r} row_mask:0xf bank_mask:0xf")
        k(f"""s_mov_b32 exec_lo, 0x00010001
        s_mov_b32 exec_hi, 0x00010001
        buffer_store_dwordx{4 if sq else 2} {v(A0,4 if sq else 2)}, v{vr}, {WS4}, s{s_dst} offen sc1
        s_mov_b64 exec, -1""")
    @staticmethod
    def cost(x):
        if callable(x): return 1
        if x.startswith(("v_exp", "v_rcp", "v_rsq", "v_sin", "v_cos")): return 2
        return 1
    def take_fill(self, fq, n, cap):
        out = []
        while fq:
            x = fq[0]
            if isinstance(x, tuple):
                if x[0] == 'at':
                    if n < x[1]: break
                    fq.pop(0); continue
                if x[0] == 'mark':
                    self.marks[x[1]] = n; fq.pop(0); continue
            c = self.cost(x)
            if cap <= 0 or (c > cap and out): break
            cap -= c; out.append(fq.pop(0))
        return out
    def dma_reset(self):
        self.m0 = None; self.vstage = {}; self.sstage = 0
    def tile_of(self, t, dst):
        o = self.opt; r = S_WRAP
        if 'blk4' in o:
            if t < 8: return f"s_add_u32 s{dst}, s{r}, {t}\ns_and_b32 s{dst}, s{dst}, 3\ns_or_b32 s{dst}, s{dst}, {t & ~3}"
            return f"s_and_b32 s{dst}, s{r}, 1\ns_xor_b32 s{dst}, s{dst}, {t}"
        if 'blk5' in o:
            return f"s_add_u32 s{dst}, s{r}, {t % 5}\ns_cmp_ge_u32 s{dst}, 5\ns_cselect_b32 s{S_ST2K}, 5, 0\ns_sub_u32 s{dst}, s{dst}, s{S_ST2K}\ns_add_u32 s{dst}, s{dst}, {t - t % 5}"
        if 'rotlat' in o:
            return f"s_add_u32 s{dst}, s{r}, {t}\ns_cmp_ge_u32 s{dst}, 10\ns_cselect_b32 s{S_ST2K}, 10, 0\ns_sub_u32 s{dst}, s{dst}, s{S_ST2K}"
        return f"s_xor_b32 s{dst}, s{r}, {t}"
    def rot_setup(self, regs128, regsW):
        k = self.k; o = self.opt; r = S_WRAP
        k(f"s_lshr_b32 s{S_T}, s{S_I}, 2")
        if 'rot0' in o: k(f"s_mov_b32 s{r}, 0")
        elif 'blk4' in o: k(f"s_add_u32 s{r}, s{S_T}, s{S_J}\ns_and_b32 s{r}, s{r}, 3")
        elif 'blk5' in o: k(f"s_add_u32 s{r}, s{S_T}, s{S_J}\ns_and_b32 s{r}, s{r}, 3")
        elif 'rotlat' in o: k(f"s_lshl_b32 s{S_T}, s{S_T}, 1\ns_add_u32 s{S_T}, s{S_T}, s{S_J}\ns_and_b32 s{S_T}, s{S_T}, 7\ns_mul_i32 s{S_T}, s{S_T}, 5\ns_lshr_b32 s{r}, s{S_T}, 2")
        else: k(f"s_add_u32 s{r}, s{S_T}, s{S_J}\ns_and_b32 s{r}, s{r}, 1")
        k(f"s_mov_b32 s{S_ST1}, s{r}\ns_lshl_b32 s{S_ST2}, s{r}, 7")
        for x in regs128: k(f"v_add_u32 v{x}, s{S_ST2}, v{x}")
        if regsW: k(f"s_mul_i32 s{S_ST2}, s{S_ST2}, 1536")
    def dma(self, m0, ld, vreg=None, t=0, step=0):
        k = self.k
        def pre():
            if self.m0 != m0:
                k(f"s_add_u32 m0, s{m0[0]}, {m0[1]}"); self.m0 = m0
            if vreg is not None and self.vstage.get(vreg, 0) != t:
                assert self.vstage.get(vreg, 0) == t - 1
                if self.sstage != t:
                    k(self.tile_of(t, S_ST2))
                    k(f"s_sub_u32 s{S_ST1K}, s{S_ST2}, s{S_ST1}\ns_mov_b32 s{S_ST1}, s{S_ST2}\ns_lshl_b32 s{S_ST1K}, s{S_ST1K}, 7")
                    if self.has_w: k(f"s_mul_i32 s{S_ST2K}, s{S_ST1K}, 1536")
                    self.sstage = t
                k(f"v_add_u32 v{vreg}, s{S_ST1K if step == 128 else S_ST2K}, v{vreg}"); self.vstage[vreg] = t
        return pre, ld

    def unit_decode(self, nunits, U):
        self.k(f"""s_sub_u32 s{S_T}, s{S_PW}, {nunits}
        s_cmp_lt_u32 s{S_PW}, {nunits}
        s_cselect_b32 s{U}, s{S_PW}, s{S_T}
        s_mul_i32 s{S_T+2}, s{U}, 6554
        s_lshr_b32 s{S_T+2}, s{S_T+2}, 16
        s_mul_i32 s{S_T}, s{S_T+2}, 10
        s_sub_u32 s{S_T}, s{U}, s{S_T}""")

    def b2_setup(self, side):
        k = self.k; vl = self.PV
        S = [40, 48][side]; KS = [10, 12][side]
        if side == 0:
            V = f"""v_min_u32 v{vl}, 14, v0
            v_mul_u32_u24 v{vl+1}, 86, v{vl}
            v_lshrrev_b32 v{vl+1}, 8, v{vl+1}
            v_mul_u32_u24 v{vl+1}, 7, v{vl+1}
            v_add_lshl_u32 v{vl}, v{vl}, v{vl+1}, 6"""
            L = f"""s_mul_i32 s{S_T+12}, s{S_W}, 10
            s_lshr_b32 s{S_T+12}, s{S_T+12}, 2
            s_mul_i32 s{S_T+3}, s{S_J}, 50"""
        else:
            V = f"""v_min_u32 v{vl}, 23, v0
            v_lshrrev_b32 v{vl+1}, 1, v{vl}
            v_lshlrev_b32 v{vl+1}, 3, v{vl+1}
            v_add_lshl_u32 v{vl}, v{vl}, v{vl+1}, 6"""
            L = f"""s_mul_i32 s{S_T+12}, s{S_W}, 120
            s_mul_i32 s{S_T+3}, s{S_J}, 5
            s_lshr_b32 s{S_T+3}, s{S_T+3}, 2"""
        k(L + f"""
        s_add_u32 s{S_T+12}, s{S_T+12}, s{S_T+3}
        s_lshl_b32 s{S_T+12}, s{S_T+12}, 6
        s_add_u32 s{S_T+12}, s{S_T+12}, {WS_FB + side*512*FLS}
        s_mul_i32 s{S_B2}, s{S_J}, {5*S}
        s_mul_i32 s{S_T+3}, s{S_W}, {KS}
        s_add_u32 s{S_B2}, s{S_B2}, s{S_T+3}
        s_lshl_b32 s{S_B2}, s{S_B2}, 10
        s_add_u32 s{S_B2}, s{S_B2}, {WS_B2S[side]}""")
        self.order = [[0, 5, 1, 6, 2, 7, 3, 8, 4, 9], [0, 3, 6, 9, 1, 4, 7, 10, 2, 5, 8, 11]][side]
        self.b2tok = {}; self.b2q = []
        for ss in self.order:
            for cc in range(5):
                def ld(ss=ss, cc=cc):
                    k = self.k
                    k(f"s_add_u32 s{P0+30}, s{S_B2}, {(cc*S + ss)*1024}")
                    self.b2tok[ss, cc] = k(f"buffer_load_dwordx4 {a((ss*5+cc)*4,4)}, v{self.LV}, {WS4}, s{P0+30} offen sc1")
                self.b2q.append(ld)
        return [x.strip() for x in V.split("\n")]
    def touch(self, side, vt):
        k = self.k
        nx = 20; nw = [25, 30][side]
        def f1():
            k(f"""s_add_u32 s{S_T}, s{S_PW}, {512*side}
            s_mul_i32 s{S_T}, s{S_T}, {nx*128}
            v_min_u32 v{vt}, {nx-1}, v0
            v_lshlrev_b32 v{vt}, 7, v{vt}
            buffer_load_dword v{vt}, v{vt}, {s(SRD_X,4)}, s{S_T} offen""")
        def f2():
            if side == 0: k(f"s_lshr_b32 s{S_T}, s{S_PW}, 2\ns_lshl_b32 s{S_T}, s{S_T}, 1\ns_and_b32 s{S_T+1}, s{S_W}, 1\ns_add_u32 s{S_T}, s{S_T}, s{S_T+1}")
            else: k(f"s_mov_b32 s{S_T}, s{S_PW}")
            k(f"""s_mul_i32 s{S_T}, s{S_T}, {nw*128}
            v_min_u32 v{vt+1}, {nw-1}, v0
            v_lshlrev_b32 v{vt+1}, 7, v{vt+1}
            buffer_load_dword v{vt+1}, v{vt+1}, {s(SRD_W,4)}, s{S_T} offen""")
        def f3():
            k(f"""v_min_u32 v{vt}, 9, v0
            v_lshlrev_b32 v{vt}, 21, v{vt}
            v_min_u32 v{vt+1}, 2, v0
            v_lshlrev_b32 v{vt+1}, 21, v{vt+1}
            buffer_load_dword v{vt}, v{vt}, {WS4}, 0 offen offset:2048
            global_load_dword v{vt+1}, v{vt+1}, {ptr(14)}""")
            if side == 0:
                k(f"""v_mov_b32 v{vt-2}, 0
                global_load_dword v{vt-1}, v{vt-2}, {ptr(8)}
                global_load_dword v{vt-2}, v{vt-2}, {ptr(13)}""")
        if 'tlb' in self.opt: return [f3]
        return [f1, f2] if 'touch' in self.opt else []
    def b2_take(self, n):
        out = self.b2q[:n]; self.b2q = self.b2q[n:]
        return out
    def b2_poll(self):
        self.pbtok = self.k(f"buffer_load_dword v254, v{self.PV}, {WS4}, s{S_T+12} offen sc1")
    def b2_check(self):
        k = self.k
        k.wait_vm(self.pbtok)
        def rl(): k(f"buffer_load_dword v254, v{self.PV}, {WS4}, s{S_T+12} offen sc1\ns_waitcnt vmcnt(0)")
        self.verify(lambda: k(f"v_cmp_ne_u32 vcc, s{S_TAG}, v254"), rl, "pb")

    TB_RS = 184
    def ssm(self):
        k = self.k
        ACC = 16; FR = [96, 144]
        XE, XO, WA, WB = 1, 2, 3, 4
        PV = self.PV; LV = self.LV; RS = self.TB_RS
        STG0, STGS = 16384, 36864
        S_RSROW, SW0, S_GW, S_GT, D2, S_RSDST, S_FB = S_T+5, S_T+6, S_T+8, S_T+9, S_T+10, S_T+13, S_T+14
        acc = lambda a_, tt: ACC + (a_*10 + tt)*4
        k.c("================ SSM side, phase 1")
        self.common_a()
        self.nf3 = 0; self.marks = {}
        k(f"""v_lshrrev_b32 v13, 3, v0
        v_and_b32 v13, 3, v13
        v_lshrrev_b32 v15, 5, v0
        v_lshl_add_u32 v13, v15, 3, v13
        v_mul_u32_u24 v{XE}, 1280, v13
        v_add_u32 v{XE}, v{XE}, v12
        v_xor_b32 v{XO}, 64, v{XE}
        s_and_b32 s{S_T+4}, s{S_W}, 1
        s_lshl_b32 s{S_T+1}, s{S_T+4}, 6
        v_xor_b32 v{WA}, s{S_T+1}, v{WA}
        v_xor_b32 v{WB}, 64, v{WA}
        s_add_u32 s{S_XO+1}, s{S_XO}, {16*1280 - 1024}
        s_add_u32 s{S_XO+2}, s{S_XO}, {4*1280 - 2048}
        s_add_u32 s{S_XO+3}, s{S_XO}, {20*1280 - 3072}""")
        stage_tok = {}; stage_cnt = {}
        self.dma_reset(); self.has_w = False
        self.rot_setup([XE, XO, WA, WB], False)
        self.common_b()
        self.stamp(0); self.fine3()
        def dma_list(t):
            base = STG0 + (t % 4)*STGS
            L = []
            def mk(ld):
                def f():
                    stage_tok[t] = k(ld); stage_cnt[t] = stage_cnt.get(t, 0) + 1
                return f
            for e in range(4):
                vr = XE if e % 2 == 0 else XO
                L.append(self.dma((S_MX, base), mk(f"buffer_load_dwordx4 v{vr}, {s(SRD_X,4)}, s{S_XO+e} offen offset:{e*1024} lds"), vr, t, 128))
            for e in range(5):
                vr = WA if e % 2 == 0 else WB
                L.append(self.dma((S_MW, base + 16384 + (e//4)*4096), mk(f"buffer_load_dwordx4 v{vr}, {s(SRD_W,4)}, s{S_WO+e} offen offset:{(e%4)*1024} lds"), vr, t, 128))
            return L
        d0 = dma_list(0)
        for p in d0[:4]: self.emit(p)
        k(f"""s_cmp_lt_u32 s{S_W}, 2
        s_cselect_b32 s{SRD_W}, s{P0+6}, s{P0+8}
        s_cselect_b32 s{SRD_W+1}, s{P0+7}, s{P0+9}
        s_mov_b32 s{SRD_W+2}, 819200
        s_mov_b32 s{SRD_W+3}, 0x20000
        s_mul_i32 s{S_T+7}, s{S_J}, 80
        s_mul_i32 s{S_T+3}, s{S_T+4}, 40
        s_add_u32 s{S_T+2}, s{S_T+7}, s{S_T+3}
        s_mul_i32 s{S_WO}, s{S_T+2}, 1280
        s_add_u32 s{S_WO+1}, s{S_WO}, {8*1280 - 1024}
        s_add_u32 s{S_WO+2}, s{S_WO}, {16*1280 - 2048}
        s_add_u32 s{S_WO+3}, s{S_WO}, {24*1280 - 3072}
        s_add_u32 s{S_WO+4}, s{S_WO}, {32*1280}
        s_mul_i32 s{S_MW}, s{S_W}, 5120""")
        self.emit(d0[4])
        VLR, VLI, VDT, ZR, ZI, VT, VP, TA, TB_ = 218, 219, 220, 221, 222, 223, 224, 225, 226
        self.emit(self.div20(VT, VP, 0))
        k(f"""s_mul_i32 s{S_T+1}, s{S_W}, 20
        v_add_u32 v{VP}, s{S_T+1}, v{VP}
        v_add_lshl_u32 v{VDT}, v{VP}, s{S_T+7}, 1""")
        def vec():
            k(f"global_load_ushort v{VLR}, v{VDT}, {ptr(1)}\nglobal_load_ushort v{VLI}, v{VDT}, {ptr(2)}")
            self.vec_tok = k(f"global_load_ushort v{VDT}, v{VDT}, {ptr(7)}")
        d1 = dma_list(1)
        R0, A0, T0 = 192, 212, 227
        rs = self.rowstat_loads(SRD_T1, S_RSROW, 15, R0)
        def setup(k):
            k(f"""s_cmp_lt_u32 s{S_I}, 8
            s_cselect_b32 s{SRD_T1}, s{P0+6}, s{P0+8}
            s_cselect_b32 s{SRD_T1+1}, s{P0+7}, s{P0+9}
            s_mov_b32 s{SRD_T1+2}, 819200
            s_mov_b32 s{SRD_T1+3}, 0x20000
            s_mul_i32 s{S_T+4}, s{S_W}, 3
            s_and_b32 s{S_T+2}, s{S_I}, 7
            s_mul_i32 s{S_T+2}, s{S_T+2}, 10
            s_add_u32 s{S_T+2}, s{S_T+2}, s{S_T+7}
            s_add_u32 s{S_RSROW}, s{S_T+2}, s{S_T+4}     ; rows 80j + 10(i%8) + 3w + ..
            s_mul_i32 s{S_T+3}, s{S_J}, 160
            s_mul_i32 s{S_T+6}, s{S_I}, 10
            s_add_u32 s{S_T+3}, s{S_T+3}, s{S_T+6}
            s_add_u32 s{S_T+3}, s{S_T+3}, s{S_T+4}
            s_lshl_b32 s{S_T+3}, s{S_T+3}, 4
            s_add_u32 s{S_RSDST}, s{S_T+3}, {WS_WSG}
            s_cmp_eq_u32 s{S_W}, 3
            s_cselect_b32 s{S_T+1}, 0, 2""")

            self.rowstat_setup(S_RSROW, S_T+1, 15, 14)

            self.unit_decode(400, S_FB)
            k(f"""s_mul_i32 s{S_T+1}, s{S_T+2}, {16*1280}
            s_lshl_b32 s{S_T+3}, s{S_T}, 7
            s_add_u32 s{SW0}, s{S_T+1}, s{S_T+3}
            s_add_u32 s{SW0+1}, s{SW0}, {8*1280 - 1024}
            s_mul_i32 s{S_T+3}, s{S_T+2}, 40
            s_lshl_b32 s{S_T+4}, s{S_T}, 2
            s_add_u32 s{S_T+3}, s{S_T+3}, s{S_T+4}
            s_lshl_b32 s{S_T+3}, s{S_T+3}, 10
            s_add_u32 s{D2}, s{S_T+3}, {WS_B2S[0]}
            s_lshl_b32 s{S_FB}, s{S_FB}, 6
            s_add_u32 s{S_FB}, s{S_FB}, {WS_FB}
            s_mul_i32 s{S_GW}, s{S_J}, 2560
            s_mul_i32 s{S_T}, s{S_W}, 640
            s_add_u32 s{S_GW}, s{S_GW}, s{S_T}
            s_add_u32 s{S_GW}, s{S_GW}, {WS_WSG}
            s_lshl_b32 s{S_GT}, s{S_I}, 11
            s_lshl_b32 s{S_T}, s{S_W}, 9
            s_add_u32 s{S_GT}, s{S_GT}, s{S_T}
            s_add_u32 s{S_GT}, s{S_GT}, {WS_STG}
            v_and_b32 v11, 15, v0
            v_lshrrev_b32 v12, 4, v0
            v_lshrrev_b32 v13, 1, v11
            v_xor_b32 v13, v13, v12
            v_lshlrev_b32 v13, 4, v13
            v_lshl_add_u32 v13, v11, 7, v13
            v_add_u32 v5, {STG0}, v13
            v_add_u32 v5, s{S_MX}, v5
            v_xor_b32 v6, 64, v5
            v_add_u32 v7, {STG0+16384}, v13
            v_xor_b32 v8, 64, v7
            v_add_u32 v9, {2*STGS}, v5
            v_add_u32 v10, {2*STGS}, v6
            v_add_u32 v250, {2*STGS}, v7
            v_add_u32 v251, {2*STGS}, v8
            v_lshlrev_b32 v13, 7, v11
            v_lshrrev_b32 v12, 5, v0
            v_lshl_add_u32 v13, v12, 11, v13
            v_bfe_u32 v12, v0, 4, 1
            v_lshl_add_u32 v13, v12, 4, v13
            v_add_u32 v13, s{S_MX}, v13
            v_mul_u32_u24 v11, {RS}, v11             ; table row of this lane's column
            v_mul_u32_u24 v{TA}, {RS}, v{VP}
            v_and_b32 v216, 31, v0
            v_lshlrev_b32 v216, 4, v216
            v_min_u32 v217, 39, v0
            v_lshlrev_b32 v217, 4, v217""")
            self.b2v = self.b2_setup(0)
            self.srd(SRD_T2, 5, 819200)
            self.srd(SRD_OUT, 6, 819200)
            if 'stashpre' in self.opt: self.ssm_stash(k, VT, VP)
        pre_mem = [(lambda p=p: self.emit(p)) for p in d0[5:]] + [vec] + [(lambda p=p: self.emit(p)) for p in d1[:7]]
        su = self.capture(setup)
        nA = ([i for i, x in enumerate(su) if x.startswith("v_and_b32 v230")] + [len(su)*7//12])[0]
        assert 'stashpre' not in self.opt
        stq_ = self.capture(lambda k_: self.ssm_stash(k_, VT, VP)) + self.p2_scalars(0)
        sbat = [int(x) for x in str(int(self.P('sbat', 579)))]
        self.sprinkle(su[:nA], pre_mem[:int(self.P('npre', 7))])
        self.sprinkle(su[nA:], pre_mem[int(self.P('npre', 7)):] + [(lambda p=p: self.emit(p)) for p in d1[7:]])
        b2v = self.b2v; vec_tok = self.vec_tok
        tk = {}
        swq = []
        for e in range(4):
            def f(e=e): tk['d2'] = k(f"buffer_load_dwordx4 v{PV}, {s(SRD_T2 if e < 2 else SRD_OUT,4)}, s{SW0+e%2} offen offset:{(e%2)*1024} lds")
            swq.append(self.dma((S_MX, (e//2)*2048), f))
        self.make_tag()
        k(f"""v_and_b32 v16, 1, v0
        v_lshlrev_b32 v16, 4, v16
        v_lshrrev_b32_e64 v16, v16, s{S_PAT}
        v_and_b32 v16, 1, v16
        v_mul_u32_u24 v16, 0x10001, v16
        s_cmp_lt_u32 s{S_W}, 2
        s_cselect_b32 s{S_NM}, s{S_NM}, -1
        s_cselect_b32 s{S_T}, -1, 0
        v_and_b32 v16, s{S_T}, v16
        v_accvgpr_write_b32 a{ST['PAT']}, v16""")
        RXA = [[5, 6], [9, 10]]; RWA = [[7, 8], [250, 251]]
        rtok = {}
        def mkreads(n):
            st = FR[n % 2]; ks = n % 2; sl = (n//2) % 4; o = (sl % 2)*STGS
            R = [f"ds_read_b128 {v(st+4*a_,4)}, v{RXA[sl//2][ks]} offset:{o+a_*2048}" for a_ in range(2)]
            R += [f"ds_read_b128 {v(st+8+4*tt,4)}, v{RWA[sl//2][ks]} offset:{o+tt*2048}" for tt in range(10)]
            L = []
            for i, r in enumerate(R):
                def f(i=i, r=r): rtok[n, i] = k(r)
                L.append(f)
            return L
        self.fine3()
        k.wait_vm(stage_tok[0])
        self.fine3()
        k("s_barrier")
        self.fine3()
        self.stamp(1)
        k.label("L_ssm_code")
        self.emit(mkreads(0))
        LAM, LAM2, LAM4, WSUM = C5(192), C5(202), C5(212), C5(222)
        AT, BT, TG = 232, 240, 192
        L_AB = 14720
        mq = []
        def q_stage(t):
            for p_, l_ in dma_list(t): mq.append([max(2*(t-3), 0), 1, p_, l_])
        def sw_store(cc):
            def f():
                k.wait_lg(tk['r2'])
                tk['s2'] = k(f"buffer_store_dwordx4 {a(220+4*cc,4)}, v{LV}, {WS4}, s{D2} offen offset:{1024*cc} sc1")
            return f
        def gl1(): k(f"buffer_load_dwordx4 {v(TG,4)}, v216, {WS4}, s{S_GT} offen sc1")
        def gl2(): tk['gr'] = k(f"buffer_load_dwordx2 {v(TG+4,2)}, v217, {WS4}, s{S_GW} offen sc1")
        NSW, NFLAG, NGL, NGC, NPOLL, NCHK = [int(self.P(a_, b_)) for a_, b_ in (('snsw', 3), ('snfl', 9), ('sngl', 13), ('sngc', 16), ('snpo', 14), ('snck', 17))]
        prs, psw, pst = int(self.P('prs', 1)), int(self.P('psw', 2)), int(self.P('pst', 4))
        for t in range(1, 10):
            if t > 1: q_stage(t)
            if t == prs: mq += [[0, 1, None, f] for f in rs]
            if t == psw: mq += [[0, 1, p_, l_] for p_, l_ in swq]
            if t == pst: mq += [[NSW+1, 2, None, sw_store(cc)] for cc in range(4)]
        late = {NGL: [[NGL, 1, None, gl1], [NGL, 1, None, gl2]]}
        late[NPOLL] = late.get(NPOLL, []) + [[NPOLL, 0.5, None, self.b2_poll]]
        def swr():
            k.wait_vm(tk['d2'])
            for ss in range(4): tk['r2'] = k(f"ds_read_b128 {a(220+4*ss,4)}, v13 offset:{32*ss}")
        fq = [lambda: k.wait_vm(vec_tok)]
        fq += [x.strip() for x in f"""v_lshlrev_b32 v{VDT}, 16, v{VDT}
        v_mul_f32 v{VDT}, {fbits(LOG2E)}, v{VDT}
        v_exp_f32 v{VDT}, v{VDT}
        v_lshlrev_b32 v{VLR}, 16, v{VLR}
        v_lshlrev_b32 v{VLI}, 16, v{VLI}
        v_cvt_pk_bf16_f32 v{VDT}, v{VDT}, v{VDT}
        v_and_b32 v{VDT}, 0xffff0000, v{VDT}
        v_mul_f32 v{ZR}, v{VLR}, v{VDT}
        v_mul_f32 v{ZI}, v{VLI}, v{VDT}
        v_mul_f32 v{ZR}, {fbits(LOG2E)}, v{ZR}
        v_mul_f32 v{ZI}, 0.15915494, v{ZI}
        v_accvgpr_write_b32 a250, v{ZR}
        v_accvgpr_write_b32 a251, v{ZI}
        v_accvgpr_write_b32 a252, v{VLR}
        v_accvgpr_write_b32 a253, v{VLI}
        v_mov_b32 v232, {fbits(8.0)}""".split("\n")]
        LM = 240
        P = [self.cpow(LM, LM+1, "1.0", ZR, ZI, 233), self.cpow(248, 249, "v232", ZR, ZI, 235)]
        fq += [x[i] for i in range(8) for x in P]
        fq += [x.strip() for x in f"""v_accvgpr_write_b32 a254, v{LM}
        v_accvgpr_write_b32 a255, v{LM+1}
        v_mul_f32 v{LM+2}, v{LM}, v{LM}
        v_mul_f32 v{LM+3}, v{LM}, v{LM+1}
        v_fma_f32 v{LM+2}, -v{LM+1}, v{LM+1}, v{LM+2}
        v_add_f32 v{LM+3}, v{LM+3}, v{LM+3}
        v_mul_f32 v{LM+4}, v{LM+2}, v{LM+2}
        v_mul_f32 v{LM+5}, v{LM+2}, v{LM+3}
        v_fma_f32 v{LM+4}, -v{LM+3}, v{LM+3}, v{LM+4}
        v_add_f32 v{LM+5}, v{LM+5}, v{LM+5}""".split("\n")]
        rsf = self.rowstat_fill(R0, A0, T0, 14, S_RSDST, sq=False)
        fq += [('at', 3), ('mark', 'rs')]
        NRB = int(self.P('snrb', 3))
        fq += b2v + [('mark', 'gaddr')]
        fq += [('at', (NSW | 1) + 1 + (NSW & 1)*2)] + [f"ds_write_b64 v{TA}, {v(LM+2*q,2)} offset:{144+8*q}" for q in range(3)]
        fq += [('mark', 'table')]
        def flg():
            k.wait_vm(tk['s2']); self.set_flag(S_FB, 15)
        flags = {NFLAG: flg, NSW: swr}
        pre_st = [x.strip() for x in f"""s_lshl_b32 s{S_T}, s{S_W}, 7
        v_lshrrev_b32 v12, 2, v216
        v_add_u32 v12, s{S_T}, v12
        v_add_u32 v12, {L_AB}, v12
        v_lshrrev_b32 v14, 4, v0
        v_lshl_add_u32 v239, v14, 5, s{S_T}
        s_and_b32 s{S_T}, s{S_W}, 1
        s_mul_i32 s{S_T}, s{S_T}, 40
        v_lshrrev_b32 v13, 4, v217
        v_add_u32 v13, s{S_T}, v13
        v_mul_u32_u24 v13, {RS}, v13
        s_lshr_b32 s{S_T}, s{S_W}, 1
        s_lshl_b32 s{S_T}, s{S_T}, 2
        v_add_u32 v13, s{S_T}, v13
        s_mov_b32 s{S_T}, {fbits(1.0/640)}""".split("\n")]
        stq = [x.strip() for x in f"""ds_write_b32 v13, v{TG+4} offset:176
        v_mul_f32 v{TG}, s{S_T}, v{TG}
        v_mul_f32 v15, v{TG}, v{TG}
        v_fma_f32 v15, v{TG+2}, s{S_T}, -v15
        v_max_f32 v15, 0, v15
        v_add_f32 v15, {fbits(EPS)}, v15
        v_rsq_f32 v15, v15
        v_mul_f32_e64 v{TG}, v{TG}, -v15
        ds_write2st64_b32 v12, v15, v{TG} offset0:0 offset1:2""".split("\n")]
        fq += pre_st + [('at', 14)] + [f"ds_read_b64 {v(LAM2.r(b),2)}, v11 offset:{16*b*RS+152}" for b in range(5)]
        fq += [('at', NGC)] + stq + [('mark', 'stats')]
        fq += [f"ds_read_b64 {v(LAM4.r(b),2)}, v11 offset:{16*b*RS+160}" for b in range(5)]
        NRD = int(self.P('snrd', 18))
        fq += [('at', NRD)] + [f"ds_read_b64 {v(LAM.r(b),2)}, v11 offset:{16*b*RS+144}" for b in range(5)]
        fq += [f"ds_read_b128 {v(AT+4*q,4)}, v239 offset:{L_AB+16*(q%2)+512*(q//2)}" for q in (3, 2, 0, 1)]
        fq += [f"ds_read_b64 {v(WSUM.r(b),2)}, v11 offset:{16*b*RS+176}" for b in range(5)]
        credit = 0.0; b2on = False
        for n in range(20):
            st = FR[n % 2]
            k.c(f"---- ssm k-step {n}")
            self.fine(16 + n)
            if n == NGC:
                k.wait_vm(tk['gr'])
                def check():
                    k(f"""v_xor_b32 v15, s{S_TAG}, v{TG+1}
                    v_bitop3_b32 v15, s{S_TAG2}, v{TG+3}, v15 bitop3:0xbe
                    v_bitop3_b32 v15, s{S_TAG}, v{TG+5}, v15 bitop3:0xbe
                    v_cmp_ne_u32 vcc, 0, v15""")
                def rl():
                    gl1(); gl2(); k("s_waitcnt vmcnt(0)")
                self.verify(check, rl, "pg")
            if n == NCHK:
                self.b2_check(); b2on = True
            if n == NGL: assert self.marks['rs'] < n
            if n == NPOLL: assert self.marks['gaddr'] < n
            mq[0:0] = late.get(n, [])
            mem = []
            mmax = int(self.P('smax', 9)) if n < self.P('sfast', 2) else int(self.P('scap', 5))
            while len(mem) < mmax:
                if mq and mq[0][0] <= n: it_ = mq.pop(0)
                elif b2on and self.b2q and len(mem) < self.P('sb2', 5): it_ = [n, 1, None, self.b2q.pop(0)]
                else: break
                mem.append(it_)
            rd = mkreads(n+1) if n + 1 < 20 else []
            slots = [[] for _ in range(20)]
            if n % 2 == 0:
                rslots = [0, 1, 3, 4, 6, 7, 9, 10, 12, 13, 15, 16]; pref = [2, 8, 14, 19, 5, 11, 17, 18, 0, 6, 12, 3, 9, 15, 1, 4]
            else:
                rslots = [4, 5, 6, 8, 9, 10, 12, 13, 14, 16, 17, 18]; pref = [0, 7, 15, 2, 11, 19, 1, 5, 9, 13, 17, 4, 8, 12, 16, 6]
                if n + 1 < 20:
                    T_ = (n + 1)//2
                    def f(T_=T_):
                        assert stage_cnt[T_] == 9
                        if 2*T_ - 1 == NRB: self.rowstat_batch(R0, A0, 14, S_RSDST, sq=False)
                        if 2*T_ - 1 in sbat:
                            j_ = sbat.index(2*T_ - 1); m_ = -(-len(stq_)//len(sbat))
                            self.emit(stq_[j_*m_:(j_+1)*m_])
                        k.wait_both(stage_tok[T_], k.lg_issued)
                        k("s_barrier")
                    slots[3] += [f]
            mslots = sorted(pref[:len(mem)])
            cap = [2]*20
            for sl, r in zip(rslots, rd): slots[sl].append(r); cap[sl] = 1
            for sl, it_ in zip(mslots, mem):
                slots[sl] = [it_[3]] + slots[sl]; cap[sl] -= 1
            if n % 2 == 1 and n + 1 < 20: cap[3] = 0
            i = 0
            for tt in range(10):
                for a_ in range(2):
                    if i in mslots[:len(mem)] and i == 0 and mem[0][2]: mem[0][2]()
                    grp = {0: 1, 2: 9} if n % 2 == 1 else {0: tt, 1: tt, 2: tt, 3: tt, 4: tt, 5: tt, 6: tt, 7: tt, 8: tt, 9: tt} if n == 0 else {0: 3, 4: 6, 7: 9}
                    if a_ == 0 and tt in grp: k.wait_lg(rtok[n, 2+grp[tt]])
                    assert k.lg_done >= rtok[n, 2+tt]
                    c_ = "0" if n == 0 else v(acc(a_, tt), 4)
                    k(f"v_mfma_f32_16x16x32_bf16 {v(acc(a_,tt),4)}, {v(st+4*a_,4)}, {v(st+8+4*tt,4)}, {c_}")
                    self.emit(slots[i])
                    c0 = cap[i]
                    if i + 1 in mslots[:len(mem)]:
                        n0 = len(k.ins); pre_ = mem[mslots.index(i+1)][2]
                        if pre_: pre_()
                        c0 -= len(k.ins) - n0
                    if c0 > 0 and (cap[i] == 2 or i % int(self.P('sden', 1)) == 0): self.emit(self.take_fill(fq, n, c0))
                    if i == 19 and n in flags: flags[n]()
                    i += 1
        self.emit([x for x in fq if not isinstance(x, tuple)])
        assert not mq and self.marks['table'] <= 12 and self.marks['stats'] <= NRD - 2 + (NRD & 1), self.marks
        self.info = f"ssm b2 left {len(self.b2q)} marks {self.marks} tail {len(fq)}"
        k.c('loop end')
        self.stamp(2)
        if self.early_stop("loop"): return
        self.ssm_epilogue(ACC, AT, BT, LAM, LAM2, LAM4, WSUM, L_AB)

    def ssm_stash(self, k, VT, VP):
        RS = self.TB_RS; L_C = 102400
        t0, t1, t2, col, g, seg = 227, 228, 229, 230, 231, 234
        put = lambda n, r: k(f"v_accvgpr_write_b32 a{n}, v{r}")
        k(f"""v_and_b32 v{col}, 15, v0
        v_lshrrev_b32 v{g}, 4, v0
        s_lshl_b32 s{S_T+2}, s{S_W}, 2
        v_add_u32 v{seg}, s{S_T+2}, v{g}
        v_mul_u32_u24 v{t0}, 768, v{seg}
        v_mul_u32_u24 v{t1}, 48, v{col}
        v_add_u32 v{t0}, v{t0}, v{t1}""")
        put(ST['E'], t0)
        k(f"""v_and_b32 v{t0}, 15, v{VP}
        v_lshrrev_b32 v{t2}, 4, v{VP}
        v_mul_u32_u24 v{t1}, 48, v{t0}
        v_lshl_add_u32 v{t1}, v{t2}, 3, v{t1}""")
        put(ST['CH'], t1)
        k(f"""v_min_u32 v{VT}, 2, v{VT}
        v_mul_u32_u24 v{t0}, 160, v{t0}
        v_lshlrev_b32 v{t2}, 5, v{t2}
        v_lshl_add_u32 v{t2}, v{VT}, 3, v{t2}
        v_add3_u32 v{t0}, v{t0}, v{t2}, 0
        v_add_u32 v{t0}, {L_C}, v{t0}""")
        put(ST['CW'], t0)
        k(f"v_lshlrev_b32 v{t0}, 4, v{VP}"); put(ST['PUB'], t0)
        k(f"v_mul_u32_u24 v{t2}, 5, v{VT}\nv_mul_u32_u24 v{t1}, 1280, v{t2}\nv_add_u32 v{t0}, v{t0}, v{t1}"); put(ST['GA'], t0)
        k(f"""v_add_u32 v{t0}, 5, v{t2}
        v_min_u32 v{t0}, s{S_I}, v{t0}
        v_sub_u32 v{t0}, s{S_I}, v{t0}
        v_lshlrev_b32 v{t0}, 7, v{t0}
        v_cvt_f32_u32 v{t0}, v{t0}""")
        put(ST['QE'], t0)
        for q in range(5): k(f"v_add_u32 v{t0}, {q}, v{t2}\nv_cmp_gt_u32 {s(S_MK+2*q,2)}, s{S_I}, v{t0}")
        k(f"v_mul_u32_u24 v{t0}, {RS}, v{VP}"); put(ST['TB'], t0)
        k(f"v_mul_u32_u24 v{t0}, {RS}, v{col}\nv_lshl_add_u32 v{t0}, v{seg}, 3, v{t0}"); put(ST['VA'], t0)
        k(f"v_mul_u32_u24 v{t0}, 160, v{col}\nv_add_u32 v{t0}, {L_C}, v{t0}"); put(ST['CR'], t0)
        k(f"""s_mul_i32 s{S_T+2}, s{S_W}, {RED_W}
        s_add_u32 s{S_T+2}, s{S_T+2}, {LDS_RED}
        v_mul_u32_u24 v{t0}, 80, v{col}
        v_lshl_add_u32 v{t0}, v{g}, 4, v{t0}
        v_add_u32 v{t0}, s{S_T+2}, v{t0}""")
        put(ST['TW'], t0)
        k(f"""v_lshrrev_b32 v{t0}, 2, v{col}
        v_lshl_add_u32 v{t0}, v{g}, 3, v{t0}
        v_mul_u32_u24 v{t0}, 80, v{t0}
        v_and_b32 v{t1}, 3, v{col}
        v_lshl_add_u32 v{t0}, v{t1}, 3, v{t0}
        v_add_u32 v{t0}, s{S_T+2}, v{t0}""")
        put(ST['TR'], t0)
        k(f"""v_mul_u32_u24 v{t0}, {RED_RS}, v{col}
        v_lshl_add_u32 v{t0}, v{g}, 4, v{t0}
        v_add_u32 v{t0}, s{S_T+2}, v{t0}""")
        put(ST['RW'], t0)
        for it in range(5):
            k(f"""v_add_u32 v{t0}, {64*it}, v0
            v_mul_u32_u24 v{t1}, 6554, v{t0}
            v_lshrrev_b32 v{t1}, 16, v{t1}
            v_mul_u32_u24 v{t2}, 10, v{t1}
            v_sub_u32 v{t2}, v{t0}, v{t2}
            v_lshrrev_b32 v{seg}, 4, v{t1}
            v_mul_u32_u24 v{seg}, 48, v{seg}
            v_add_u32 v{t1}, v{t1}, v{seg}
            v_mul_u32_u24 v{t1}, 1280, v{t1}
            v_lshl_add_u32 v{t1}, v{t2}, 4, v{t1}""")
            put(ST['RD']+it, t1)
            for x in self.div20(t1, t2, t0): k(x)
            put(ST['ROW']+it, t1); put(ST['C4']+it, t2)
        k(f"""s_mul_i32 s{S_AG4}, s{S_J}, {16*1280}
        s_add_u32 s{S_AG4}, s{S_AG4}, {WS_AGG}
        s_mul_i32 s{S_AG1}, s{S_I}, 1280
        s_add_u32 s{S_AG1}, s{S_AG1}, s{S_AG4}
        s_lshl_b32 s{S_T+2}, s{S_I}, 3
        s_lshl_b32 s{S_T+3}, s{S_W}, 1
        s_add_u32 s{S_T+2}, s{S_T+2}, s{S_T+3}
        s_mul_i32 s{S_T+2}, s{S_T+2}, 40
        s_mul_i32 s{S_T+3}, s{S_J}, 5
        s_add_u32 s{S_T+2}, s{S_T+2}, s{S_T+3}
        s_lshl_b32 s{S_T+2}, s{S_T+2}, 10
        s_add_u32 s{S_A2B}, s{S_T+2}, {WS_A2[0]}
        s_lshl_b32 s{S_RX}, s{S_I}, 7
        s_lshl_b32 s{S_T+2}, s{S_W}, 4
        s_add_u32 s{S_RX}, s{S_RX}, s{S_T+2}
        s_mul_i32 s{S_RX}, s{S_RX}, 1280
        s_mul_i32 s{S_RJ}, s{S_J}, 160
        s_add_u32 s{S_RX}, s{S_RX}, s{S_RJ}
        s_mul_i32 s{S_RL}, s{S_W}, 5120
        s_add_u32 s{S_RL}, s{S_RL}, {L_R}""")

    def ssm_epilogue(self, ACC, AT, BT, LAM, LAM2, LAM4, WSUM, L_AB):
        k = self.k; RS = self.TB_RS; LV = self.LV
        acc = lambda a_, tt: ACC + (a_*10 + tt)*4
        tok = lambda r, tt: acc(r//4, tt) + r % 4
        L_E, L_C = 16384, 102400
        TM, SEG = 146, 15
        def bc(r): return v(r & ~1, 2), r & 1
        k.c("================ SSM epilogue")
        self.nf2 = 0; self.fine2()
        k(f"""v_accvgpr_read_b32 v13, a{ST['E']}
        v_accvgpr_read_b32 v10, a{ST['CH']}
        v_accvgpr_read_b32 v6, a{ST['PUB']}
        v_mov_b32 v1, s{S_TAG}
        s_waitcnt lgkmcnt(0)""")
        sec = []
        for tt in list(range(10)):
            ws = WSUM.r(tt % 5); hi = tt // 5
            for a_ in range(2):
                for h in range(2):
                    t_ = TM + 2*(a_*2 + h) + 8*(tt % 2)
                    sec.append(f"v_pk_mul_f32 {v(t_,2)}, {v(BT+4*a_+2*h,2)}, {v(ws,2)} op_sel:[0,{hi}] op_sel_hi:[1,{hi}]")
            for a_ in range(2):
                for h in range(2):
                    d = acc(a_, tt) + 2*h; t_ = TM + 2*(a_*2 + h) + 8*(tt % 2)
                    sec.append(f"v_pk_fma_f32 {v(d,2)}, {v(AT+4*a_+2*h,2)}, {v(d,2)}, {v(t_,2)}")
        V1 = 96; EE = C5(136)
        def pkc(dr, di, ar, ai, cr_, ci_, lr, li):
            (pr, sr), (pi, si) = bc(lr), bc(li)
            return [f"v_pk_fma_f32 {v(dr,2)}, {v(ar,2)}, {pr}, {v(cr_,2)} op_sel:[0,{sr},0] op_sel_hi:[1,{sr},1]",
                    f"v_pk_fma_f32 {v(di,2)}, {v(ai,2)}, {pr}, {v(ci_,2)} op_sel:[0,{sr},0] op_sel_hi:[1,{sr},1]",
                    f"v_pk_fma_f32 {v(dr,2)}, {v(ai,2)}, {pi}, {v(dr,2)} op_sel:[0,{si},0] op_sel_hi:[1,{si},1] neg_lo:[1,0,0] neg_hi:[1,0,0]",
                    f"v_pk_fma_f32 {v(di,2)}, {v(ar,2)}, {pi}, {v(di,2)} op_sel:[0,{si},0] op_sel_hi:[1,{si},1]"]
        LL = [pkc(V1+8*b+2*h, V1+8*b+4+2*h, acc(0,b)+2*h, acc(0,5+b)+2*h, acc(1,b)+2*h, acc(1,5+b)+2*h, LAM4.r(b), LAM4.i(b))
              for b in range(5) for h in range(2)]
        sec += [x[i] for i in range(4) for x in LL]
        LL = [pkc(V1+8*b+2, V1+8*b+6, V1+8*b, V1+8*b+4, V1+8*b+2, V1+8*b+6, LAM2.r(b), LAM2.i(b)) for b in range(5)]
        sec += [x[i] for i in range(4) for x in LL]
        sec += self.cmul5(EE, LAM, C5(V1+2, V1+6, 8), C5(V1+3, V1+7, 8))
        self.sprinkle(sec, self.b2_take(int(self.P('e1', 10))))
        k(f"""ds_write_b128 v13, {v(136,4)} offset:{L_E}
        ds_write_b128 v13, {v(140,4)} offset:{L_E+16}
        ds_write_b64 v13, {v(144,2)} offset:{L_E+32}
        v_mov_b32 v129, s{S_TAG}
        v_mov_b32 v131, s{S_TAG2}
        s_waitcnt lgkmcnt(0)
        s_barrier""")
        self.fine2()
        CH = 96; L8R, L8I = 248, 249
        ct = [k(f"ds_read_b64 {v(CH+2*q,2)}, v10 offset:{L_E+768*q}") for q in range(16)]
        for q in range(1, 16):
            k.wait_lg(ct[q])
            er, ei, pr, pi = CH+2*q, CH+2*q+1, CH+2*q-2, CH+2*q-1
            if q < 15:
                k(f"v_fmac_f32 v{er}, v{L8R}, v{pr}\nv_fmac_f32 v{ei}, v{L8R}, v{pi}\nv_fma_f32 v{er}, -v{L8I}, v{pi}, v{er}\nv_fmac_f32 v{ei}, v{L8I}, v{pr}")
            else:
                k(f"v_fmac_f32 v{er}, v{L8R}, v{pr}\nv_fmac_f32 v{ei}, v{L8R}, v{pi}\nv_fma_f32 v128, -v{L8I}, v{pi}, v{er}\nv_fma_f32 v130, v{L8I}, v{pr}, v{ei}")
        k(f"""s_mov_b64 exec, 0xfffff
        buffer_store_dwordx4 v[128:131], v6, {WS4}, s{S_AG1} offen sc1
        s_mov_b64 exec, -1""")
        self.stamp(3); self.fine2()
        KK, CS, VV, DD = C5(202), C5(136), C5(146), C5(156, 161)
        work = [f"ds_write_b64 v10, {v(CH+2*q,2)} offset:{L_E+768*q}" for q in range(1, 15)]
        KB = 166
        work += [x.strip() for x in f"""v_accvgpr_read_b32 v132, a252
        v_accvgpr_read_b32 v133, a253
        v_accvgpr_read_b32 v134, a254
        v_accvgpr_read_b32 v135, a255
        v_accvgpr_read_b32 v5, a{ST['TB']}
        v_mul_f32 v174, v132, v132
        v_fma_f32 v174, v133, v133, v174
        v_rcp_f32 v174, v174
        v_add_f32 v134, -1.0, v134
        v_mul_f32 v{KB}, v134, v132
        v_mul_f32 v{KB+1}, v135, v132
        v_add_f32 v174, v174, v174
        v_fma_f32 v{KB}, v135, v133, v{KB}
        v_fma_f32 v{KB+1}, -v134, v133, v{KB+1}
        v_mul_f32 v{KB}, v{KB}, v174
        v_mul_f32 v{KB+1}, v{KB+1}, v174""".split("\n")]
        for q in range(16):
            c_ = KB + 2*(q % 4); n_ = KB + 2*((q+1) % 4)
            work += [f"ds_write_b64 v5, {v(c_,2)} offset:{8*q}"]
            if q < 15: work += [f"v_mul_f32 v{n_}, v{L8R}, v{c_}", f"v_mul_f32 v{n_+1}, v{L8R}, v{c_+1}",
                                f"v_fma_f32 v{n_}, -v{L8I}, v{c_+1}, v{n_}", f"v_fmac_f32 v{n_+1}, v{L8I}, v{c_}"]
        GB = 96
        BZR, BZI, BLR, BLI, BQR, BQI, BT_ = 116, 117, 118, 119, 120, 121, 122
        MK = S_MK
        work += [f"v_accvgpr_read_b32 v6, a{ST['GA']}", f"s_add_u32 s{S_T+5}, s{S_AG4}, 3840", f"s_mov_b32 s{S_T+4}, s{S_AG4}", f"v_accvgpr_read_b32 v5, a{ST['VA']}",
                 "s_waitcnt lgkmcnt(0)", "s_barrier"]
        work += [f"ds_read_b64 {v(KK.r(b),2)}, v11 offset:{16*b*RS}" for b in range(5)]
        work += [f"ds_read_b128 {v(136,4)}, v13 offset:{L_E-768}", f"ds_read_b128 {v(140,4)}, v13 offset:{L_E-768+16}", f"ds_read_b64 {v(144,2)}, v13 offset:{L_E-768+32}"]
        work += [f"ds_read_b64 {v(VV.r(b),2)}, v5 offset:{16*b*RS}" for b in range(5)]
        work += [f"v_accvgpr_read_b32 v{BZR}, a250", f"v_accvgpr_read_b32 v{BZI}, a251", f"v_mov_b32 v123, {fbits(128.0)}",
                 f"v_accvgpr_read_b32 v10, a{ST['QE']}"]
        work += [y for x in zip(self.cpow(BQR, BQI, "v10", BZR, BZI, BT_), self.cpow(BLR, BLI, "v123", BZR, BZI, 124)) for y in x]
        ku = []
        for b in range(5):
            (kr, sr), (ki, si) = bc(KK.r(b)), bc(KK.i(b))
            for h in range(4):
                ur = tok(2*h, b); ui = tok(2*h, 5+b); t_ = 166 + 4*(h % 2)
                ku += [f"v_pk_mul_f32 {v(t_,2)}, {v(ur,2)}, {kr} op_sel:[0,{sr}] op_sel_hi:[1,{sr}]",
                       f"v_pk_mul_f32 {v(t_+2,2)}, {v(ur,2)}, {ki} op_sel:[0,{si}] op_sel_hi:[1,{si}]",
                       f"v_pk_fma_f32 {v(ur,2)}, {v(ui,2)}, {ki}, {v(t_,2)} op_sel:[0,{si},0] op_sel_hi:[1,{si},1] neg_lo:[1,0,0] neg_hi:[1,0,0]",
                       f"v_pk_fma_f32 {v(ui,2)}, {v(ui,2)}, {kr}, {v(t_+2,2)} op_sel:[0,{sr},0] op_sel_hi:[1,{sr},1]"]
        nku = int(self.P('nku', 40))
        work += ["s_waitcnt lgkmcnt(8)"] + ku[:nku]
        self.sprinkle(work, self.b2_take(int(self.P('e2', 6))))
        self.fine2()
        def gloads():
            for q in range(5):
                t = k(f"buffer_load_dwordx4 {v(GB+4*q,4)}, v6, {WS4}, s{S_T+4+(q//3)} offen offset:{1280*(q%3)} sc1")
            return t
        gt = {}
        def gl_(): gt['t'] = gloads()
        w2 = ku[nku:] + ["s_waitcnt lgkmcnt(0)", f"s_cmp_eq_u32 s{S_W}, 0\ns_cselect_b64 exec, 0xffff, 0"]
        w2 += [f"v_mov_b32 v{136+q}, 0" for q in range(10)] + ["s_mov_b64 exec, -1"]
        w2 += self.cmul5(DD, KK, CS)
        w2 += [f"v_accvgpr_read_b32 v5, a{ST['CW']}", f"v_accvgpr_read_b32 v12, a{ST['CR']}", f"v_accvgpr_read_b32 v13, a{ST['TW']}", f"v_accvgpr_read_b32 v4, a{ST['TR']}", f"v_accvgpr_read_b32 v3, a{ST['PAT']}",
               f"v_mov_b32 v{BZR}, 0", f"v_mov_b32 v{BZI}, 0",
               f"s_mov_b32 s{S_T+8}, s{S_A2B}", f"s_add_u32 s{S_T+9}, s{S_A2B}, 4096",
               f"s_add_u32 s{S_T+10}, s{S_A2B}, {40*1024}", f"s_add_u32 s{S_T+11}, s{S_A2B}, {40*1024+4096}"]
        rq = self.resid_loads()
        gpos = int(self.P('gpos', 0))
        if gpos == 0: gl_()
        self.sprinkle(w2, rq[:gpos] + ([gl_] if gpos else []) + rq[gpos:] + self.b2_take(int(self.P('e3', 8))))
        gtok = gt['t']
        self.stamp(4); self.fine2()
        k.wait_vm(gtok)
        def check():
            for q in range(5):
                k(f"v_xor_b32 v10, s{S_TAG}, v{GB+4*q+1}")
                k(f"v_bitop3_b32 v10, s{S_TAG2}, v{GB+4*q+3}, v10 bitop3:0xbe")
                k(f"v_cmp_ne_u32 {s(S_T+2,2)}, 0, v10")
                k(f"s_and_b64 {'vcc' if q == 0 else s(S_T+2,2)}, {s(S_T+2,2)}, {s(MK+2*q,2)}")
                if q: k(f"s_or_b64 vcc, vcc, {s(S_T+2,2)}")
        def reload():
            gloads(); k("s_waitcnt vmcnt(0)")
        self.verify(check, reload, "pc")
        self.stamp(5); self.fine2()
        for q in range(5):
            er, ei = GB+4*q, GB+4*q+2
            k(f"""s_mov_b64 exec, {s(MK+2*q,2)}
            v_fmac_f32 v{er}, v{BLR}, v{BZR}
            v_fmac_f32 v{ei}, v{BLR}, v{BZI}
            v_fmac_f32 v{ei}, v{BLI}, v{BZR}
            v_fma_f32 v{BZR}, -v{BLI}, v{BZI}, v{er}
            v_mov_b32 v{BZI}, v{ei}""")
        k(f"""s_mov_b64 exec, -1
        v_mul_f32 v126, v{BQR}, v{BZR}
        v_mul_f32 v127, v{BQR}, v{BZI}
        v_fma_f32 v126, -v{BQI}, v{BZI}, v126
        v_fmac_f32 v127, v{BQI}, v{BZR}
        ds_write_b64 v5, v[126:127]
        s_waitcnt lgkmcnt(0)
        s_barrier""")
        CB = 96
        ct = []
        for b in range(5):
            k(f"ds_read_b128 {v(CB+6*b,4)}, v12 offset:{32*b}")
            ct.append(k(f"ds_read_b64 {v(CB+6*b+4,2)}, v12 offset:{32*b+16}"))
        for b in range(5):
            k.wait_lg(ct[b])
            k(f"v_pk_add_f32 {v(CB+6*b,2)}, {v(CB+6*b,2)}, {v(CB+6*b+2,2)}")
        for b in range(5):
            k(f"v_pk_add_f32 {v(CB+6*b,2)}, {v(CB+6*b,2)}, {v(CB+6*b+4,2)}")
        self.sprinkle(self.cmul5(DD, VV, C5(CB, CB+1, 6), DD), self.b2_take(int(self.P('e4', 2))))
        self.fine2()
        PK = 96
        frg = lambda b, tt2: (136 + 4*(2*b + tt2)) if 2*b + tt2 < 5 else (202 + 4*(2*b + tt2 - 5))
        wt = {}; rt = {}
        def scan(bs):
            L = []
            for r in range(8):
                pr = lambda b: DD.r(b) if r == 0 else tok(r-1, b)
                pi = lambda b: DD.i(b) if r == 0 else tok(r-1, 5+b)
                for b in bs: L += [f"v_fmac_f32 v{tok(r,b)}, v{LAM.r(b)}, v{pr(b)}", f"v_fmac_f32 v{tok(r,5+b)}, v{LAM.r(b)}, v{pi(b)}"]
                for b in bs: L += [f"v_fma_f32 v{tok(r,b)}, -v{LAM.i(b)}, v{pi(b)}, v{tok(r,b)}", f"v_fmac_f32 v{tok(r,5+b)}, v{LAM.i(b)}, v{pr(b)}"]
            for b in bs:
                for comp in range(2):
                    d = PK + 4*(2*b + comp); ng = "-" if comp else ""
                    L += [f"v_cvt_pk_bf16_f32 v{d+h}, {ng}v{tok(2*h,5*comp+b)}, {ng}v{tok(2*h+1,5*comp+b)}" for h in range(4)]
                    L += [f"v_and_or_b32 v{d+h}, v{d+h}, s{S_NM}, v3" for h in range(4)]
                    def f(b=b, d=d, comp=comp): wt[b] = k(f"ds_write_b128 v13, {v(d,4)} offset:{(32*b+16*comp)*80}")
                    L.append(f)
            return L
        def outq(bs):
            L = []
            for b in bs:
                def trr(b=b):
                    k.wait_lg(wt[b])
                    for tt2 in range(2):
                        d = frg(b, tt2)
                        k(f"ds_read_b64_tr_b16 {v(d,2)}, v4 offset:{(32*b)*80+32*tt2}")
                        rt[b, tt2] = k(f"ds_read_b64_tr_b16 {v(d+2,2)}, v4 offset:{(32*b+4)*80+32*tt2}")
                L.append(trr)
            for b in bs:
                for tt2 in range(2):
                    def sto(b=b, tt2=tt2):
                        k.wait_lg(rt[b, tt2])
                        so = S_T + 8 + 2*tt2 + (1 if b == 4 else 0)
                        self.last_st = k(f"buffer_store_dwordx4 {v(frg(b,tt2),4)}, v{LV}, {WS4}, s{so} offen offset:{1024*(b%4)} sc1")
                    L.append(sto)
            return L
        self.sprinkle(scan([0, 1]), self.b2_take(int(self.P('e5', 4))))
        self.sprinkle(scan([2, 3]), outq([0, 1]), lead=4)
        self.sprinkle(scan([4]), outq([2, 3]), lead=4)
        self.emit(outq([4]))
        self.stamp(6); self.fine2()
        self.p2_addr(0)
        self.free_big = [r for r in self.free_big if not (202 <= r < 222)] + [r for r in self.free_big if 202 <= r < 222]
        self.resid_compute(L_AB, [self.p2_aload]*int(self.P('na0', 12)))
        self.fine2()
        self.stamp(7)
        self.phase2(0)

    def resid_loads(self):
        k = self.k
        self.srd(SRD_T1, 8, 1280)
        self.srd(SRD_T2, 13, 1280)
        L = []
        for it in range(5):
            def f(it=it):
                k(f"""v_accvgpr_read_b32 v1, a{ST['RD']+it}
                s_add_u32 m0, s{S_RL}, {1024*it}
                buffer_load_dwordx4 v1, {s(SRD_X,4)}, s{S_RX} offen lds""")
            L.append(f)
        def g():
            k(f"""v_lshlrev_b32 v1, 2, v0
            s_add_u32 m0, s{S_RL}, 20480
            buffer_load_dword v1, {s(SRD_T1,4)}, s{S_RJ} offen lds
            s_add_u32 m0, s{S_RL}, {20480+256}""")
            self.rl_tok = k(f"buffer_load_dword v1, {s(SRD_T2,4)}, s{S_RJ} offen lds")
        return L + [g]
    def resid_compute(self, L_AB, memq):
        k = self.k
        ST, XB, DB, BB, T = 16, 36, 56, 66, 166
        k.wait_vm(self.rl_tok)
        self.STROW, self.STC4 = globals()['ST']['ROW'], globals()['ST']['C4']
        W = [f"s_lshl_b32 s{S_T+4}, s{S_W}, 6", f"s_add_u32 s{S_T+4}, s{S_T+4}, {L_AB}", f"s_movk_i32 s{S_T+5}, 160"]
        for it in range(5):
            W += [f"v_accvgpr_read_b32 v{11+it}, a{self.STROW+it}", f"v_accvgpr_read_b32 v{6+it}, a{self.STC4+it}"]
            W += [f"v_lshl_add_u32 v1, v{11+it}, 2, s{S_T+4}", f"v_lshl_add_u32 v3, v{6+it}, 3, s{S_RL}", f"v_mad_u32_u24 v2, v{11+it}, s{S_T+5}, v3",
                  f"ds_read2st64_b32 {v(ST+2*it,2)}, v1 offset0:0 offset1:2", f"ds_read2st64_b32 {v(ST+10+2*it,2)}, v1 offset0:1 offset1:3",
                  f"ds_read_b64 {v(XB+2*it,2)}, v2", f"ds_read_b64 {v(XB+10+2*it,2)}, v2 offset:2560",
                  f"ds_read_b64 {v(DB+2*it,2)}, v3 offset:20480", f"ds_read_b64 {v(BB+2*it,2)}, v3 offset:{20480+256}"]
        W += [f"v_add_u32 v4, s{S_RL}, v{self.LV}", "s_waitcnt lgkmcnt(0)"]
        for it in range(5):
            dd, bb = [76, 100][it % 2], [76, 100][it % 2] + 4
            for (src, dst) in ((DB+2*it, dd), (BB+2*it, bb)):
                for h in range(2):
                    W += [f"v_lshlrev_b32 v{dst+2*h}, 16, v{src+h}", f"v_and_b32 v{dst+2*h+1}, 0xffff0000, v{src+h}"]
            for hf in range(2):
                xx = dd + 8 + 8*hf
                for h in range(2):
                    W += [f"v_lshlrev_b32 v{xx+2*h}, 16, v{XB+10*hf+2*it+h}", f"v_and_b32 v{xx+2*h+1}, 0xffff0000, v{XB+10*hf+2*it+h}"]
            for hf in range(2):
                xx = dd + 8 + 8*hf; rr = xx + 4; st = ST + 10*hf + 2*it
                for h in range(2):
                    W += [f"v_pk_add_f32 {v(rr+2*h,2)}, {v(bb+2*h,2)}, {v(xx+2*h,2)}",
                          f"v_pk_fma_f32 {v(xx+2*h,2)}, {v(xx+2*h,2)}, {v(st,2)}, {v(st,2)} op_sel:[0,0,1] op_sel_hi:[1,0,1]"]
            for hf in range(2):
                xx = dd + 8 + 8*hf; rr = xx + 4
                for h in range(2):
                    W += [f"v_pk_fma_f32 {v(rr+2*h,2)}, {v(xx+2*h,2)}, {v(dd+2*h,2)}, {v(rr+2*h,2)}"]
                W += [f"ds_write_b128 v4, {v(rr,4)} offset:{hf*20480+it*1024}"]
        self.sprinkle(W, memq, lead=int(self.P('rlead', 0)))

    def mlp(self):
        k = self.k
        ACC = 16; WSA = 112; ONE = 124; FR = [128, 148]
        B1R = 126; GS = 168
        XE, XO, W0 = 3, 2, 4
        RXB, AEB, AOB = 176, 180, 184
        PV = self.PV; LV = self.LV
        STGS = 40960
        S_MH, S_NH = 42, 43
        L_WS = 110592
        k.label("L_mlp")
        k.c("================ MLP side, phase 1")
        self.common_a()
        self.nf3 = 0
        self.marks = {}
        S_RSROW, SW0, S_GT, D1, S_RSDST, S_FB = S_T+5, S_T+6, S_T+9, S_T+10, S_T+8, S_T+14
        k(f"""v_xor_b32 v{XO}, 64, v{XE}
        s_add_u32 s{S_XO+1}, s{S_XO}, {8*1280 - 1024}
        s_add_u32 s{S_XO+2}, s{S_XO}, {16*1280 - 2048}
        s_add_u32 s{S_XO+3}, s{S_XO}, {24*1280 - 3072}""")
        stage_tok = {}; stage_cnt = {}
        self.dma_reset(); self.has_w = True
        self.rot_setup([XE, XO], True)
        for n in range(3):
            k(f"""v_add_u32 v10, {64*n}, v0
            v_mul_u32_u24 v12, 2731, v10
            v_lshrrev_b32 v12, 16, v12
            v_mul_u32_u24 v13, 24, v12
            v_sub_u32 v13, v10, v13
            v_bfe_u32 v40, v12, 1, 1
            v_lshlrev_b32 v40, 2, v40
            v_xor_b32 v13, v13, v40
            v_mul_u32_u24 v12, 3072, v12
            v_lshl_add_u32 v{W0+n}, v13, 4, v12""")
            if n: k(f"v_subrev_u32 v{W0+n}, {1024*n}, v{W0+n}")
            k(f"v_add_u32 v{W0+n}, s{S_ST2}, v{W0+n}")
        k(f"""s_mul_i32 s{S_MW}, s{S_W}, 6144
        s_mul_i32 s{S_WO}, s{S_W}, {16*3072}
        s_mul_i32 s{S_T}, s{S_J}, 384
        s_add_u32 s{S_WO}, s{S_WO}, s{S_T}
        s_add_u32 s{S_WO+1}, s{S_WO}, {24576 - 3072}
        s_add_u32 s{S_WO+4}, s{S_WO}, {24576 + 1024}""")
        self.common_b()
        self.stamp(0); self.fine3()
        WSO = [S_WO, S_WO, S_WO, S_WO+1, S_WO+4, S_WO+4]
        def dma_list(t):
            base = (t % 4)*STGS
            L = []
            def mk(ld):
                def f():
                    stage_tok[t] = k(ld); stage_cnt[t] = stage_cnt.get(t, 0) + 1
                return f
            for e in range(4):
                vr = XE if e % 2 == 0 else XO
                L.append(self.dma((S_MX, base + 24576), mk(f"buffer_load_dwordx4 v{vr}, {s(SRD_X,4)}, s{S_XO+e} offen offset:{e*1024} lds"), vr, t, 128))
            for n in range(6):
                L.append(self.dma((S_MW, base + (n//4)*4096), mk(f"buffer_load_dwordx4 v{W0+n%3}, {s(SRD_W,4)}, s{WSO[n]} offen offset:{(n%4)*1024} lds"), W0+n%3, t, 64*3072))
            return L
        d0 = dma_list(0)
        for p in d0[:4]: self.emit(p)
        self.srd(SRD_W, 10, 1966080)
        for p in d0[4:7]: self.emit(p)
        d1 = dma_list(1)
        R0, A0, T0 = 200, 220, 224
        TS = int(self.P('mts', 3))
        SCR = (TS % 4)*STGS + 24576
        rs = self.rowstat_loads(SRD_X, S_RSROW, 8, R0)
        def setup(k):
            k(f"""s_lshr_b32 s{S_MH}, s{S_W}, 1
            s_and_b32 s{S_NH}, s{S_W}, 1
            s_lshl_b32 s{S_T+2}, s{S_W}, 2
            s_lshl_b32 s{S_T}, s{S_I}, 7
            s_lshl_b32 s{S_T+1}, s{S_J}, 4
            s_add_u32 s{S_T}, s{S_T}, s{S_T+1}
            s_add_u32 s{S_RSROW}, s{S_T}, s{S_T+2}
            s_lshl_b32 s{S_RSDST}, s{S_RSROW}, 4
            s_add_u32 s{S_RSDST}, s{S_RSDST}, {WS_STG}
            s_mov_b32 s{S_T+1}, 3""")

            self.rowstat_setup(S_RSROW, S_T+1, 8, 9)

            self.srd(SRD_T2, 12, 1966080)
            self.unit_decode(480, S_FB)

            k(f"""s_mul_i32 s{S_T+1}, s{S_T+2}, {32*1280}
            s_lshl_b32 s{S_T+3}, s{S_T}, 7
            s_add_u32 s{SW0}, s{S_T+1}, s{S_T+3}
            s_mul_i32 s{S_T+3}, s{S_T}, {4*48}
            s_add_u32 s{S_T+3}, s{S_T+3}, s{S_T+2}
            s_lshl_b32 s{S_T+3}, s{S_T+3}, 10
            s_add_u32 s{D1}, s{S_T+3}, {WS_B2S[1]}
            s_lshl_b32 s{S_FB}, s{S_FB}, 6
            s_add_u32 s{S_FB}, s{S_FB}, {WS_FB + 512*FLS}
            s_lshl_b32 s{S_GT}, s{S_I}, 11
            s_lshl_b32 s{S_T}, s{S_MH}, 10
            s_add_u32 s{S_GT}, s{S_GT}, s{S_T}
            s_add_u32 s{S_GT}, s{S_GT}, {WS_STG}
            v_and_b32 v11, 31, v0
            v_lshrrev_b32 v12, 5, v0
            v_bfe_u32 v13, v0, 1, 3
            v_xor_b32 v13, v13, v12
            v_lshlrev_b32 v13, 4, v13
            v_lshl_add_u32 v13, v11, 7, v13
            s_lshl_b32 s{S_T}, s{S_MH}, 13
            s_add_u32 s{S_T}, s{S_T}, 24576
            v_add_u32 v10, s{S_T}, v13
            v_bfe_u32 v13, v0, 2, 2
            v_lshl_add_u32 v40, v12, 3, v13
            v_mul_u32_u24 v40, 384, v40
            v_bfe_u32 v15, v0, 4, 1
            v_lshl_add_u32 v40, v15, 5, v40
            v_and_b32 v41, 3, v0
            v_lshl_add_u32 v40, v41, 3, v40
            v_lshlrev_b32 v7, 4, v12
            v_lshl_add_u32 v7, v15, 2, v7
            v_add_u32 v7, v7, v13
            v_lshlrev_b32 v7, 7, v7
            v_lshl_add_u32 v7, v41, 3, v7
            v_add_u32 v7, s{S_MX}, v7
            v_add_u32 v7, {SCR}, v7
            s_mul_i32 s{S_T}, s{S_NH}, 192
            v_add_u32 v40, s{S_T}, v40
            v_bfe_u32 v13, v0, 3, 1
            v_lshlrev_b32 v13, 6, v13
            s_cmp_eq_u32 s{S_NH}, 0
            s_cselect_b32 s{S_T}, 1, -1
            v_mul_lo_u32 v13, v13, s{S_T}
            v_add_u32 v15, v40, v13
            v_sub_u32 v40, v40, v13
            v_mov_b32 v{ONE}, 0x3f803f80
            v_mov_b32 v{ONE+1}, 0x3f803f80""")
            for ls in range(4):
                k(f"""s_lshl_b32 s{S_T}, s{S_MH}, 1
                s_add_u32 s{S_T}, s{S_T}, {ls}
                s_and_b32 s{S_T}, s{S_T}, 3
                s_lshl_b32 s{S_T+1}, s{S_T}, 5
                s_mul_i32 s{S_T}, s{S_T}, 6144
                v_xor_b32 v{RXB+ls}, s{S_T+1}, v10
                v_add_u32 v{AEB+ls}, s{S_T}, v15
                v_add_u32 v{AOB+ls}, s{S_T}, v40""")
            for q in range(12): k(f"v_add_u32 v{RXB+12+q}, {2*STGS}, v{RXB+q}")
            k(f"""v_lshlrev_b32 v10, 4, v11
            v_min_u32 v11, 47, v0
            s_mul_i32 s{S_T}, s{S_J}, 192
            s_mul_i32 s{S_T+1}, s{S_W}, 48
            s_add_u32 s{S_T}, s{S_T}, s{S_T+1}
            v_add_lshl_u32 v12, v11, s{S_T}, 1
            v_add_lshl_u32 v11, v11, s{S_T+1}, 2
            v_add_u32 v11, {L_WS}, v11""")
            self.b2v = self.b2_setup(1)
        su = self.capture(setup)
        self.sprinkle(su[:20], [(lambda p=p: self.emit(p)) for p in d0[7:]])
        mprs = int(self.P('mprs', 0))
        n1 = 4 if mprs == 0 else 8
        self.sprinkle(su[20:], [(lambda p=p: self.emit(p)) for p in d1[:2]] + (rs if mprs == 0 else []) + [(lambda p=p: self.emit(p)) for p in d1[2:n1]])
        b2v = self.b2v
        tk = {}
        swq = []
        for e in range(4):
            def f(e=e):
                k(f"s_add_u32 s{S_T+2}, s{SW0}, {e*8*1280}")
                tk['d1'] = k(f"buffer_load_dwordx4 v{PV}, {s(SRD_T2,4)}, s{S_T+2} offen lds")
            swq.append(self.dma((S_MX, SCR + e*1024), f))
        self.make_tag()
        self.emit(self.touch(1, 246))
        rtok = {}
        def mkreads(n):
            st = FR[n % 2]; ls = n % 4; sl = (n//4) % 4; o = (sl % 2)*STGS; h_ = 12*(sl//2)
            ra, ae, ao = RXB+ls+h_, AEB+ls+h_, AOB+ls+h_
            R = [f"ds_read_b128 {v(st,4)}, v{ra} offset:{o}",
                 f"ds_read_b64_tr_b16 {v(st+8,2)}, v{ae} offset:{o}", f"ds_read_b64_tr_b16 {v(st+10,2)}, v{ae} offset:{o+1536}",
                 f"ds_read_b128 {v(st+4,4)}, v{ra} offset:{o+4096}",
                 f"ds_read_b64_tr_b16 {v(st+12,2)}, v{ao} offset:{o+64}", f"ds_read_b64_tr_b16 {v(st+14,2)}, v{ao} offset:{o+1600}",
                 f"ds_read_b64_tr_b16 {v(st+16,2)}, v{ae} offset:{o+128}", f"ds_read_b64_tr_b16 {v(st+18,2)}, v{ae} offset:{o+1664}"]
            L = []
            for i, r in enumerate(R):
                def f(i=i, r=r): rtok[n, i] = k(r)
                L.append(f)
            return L
        self.fine3()
        k.wait_vm(stage_tok[0])
        self.fine3()
        k("s_barrier")
        self.fine3()
        self.stamp(1)
        k.label("L_mlp_code")
        self.emit(mkreads(0))
        NSW, NFLAG, NPOLL, NCHK = [int(self.P(a_, b_)) for a_, b_ in (('mnsw', 4), ('mnfl', 12), ('mnpo', 21), ('mnck', 26))]
        mq = [[0, 1, p_, l_] for p_, l_ in d1[n1:]]
        def q_stage(t):
            L = [[max(4*(t-3), NSW+2 if (t == TS and j_ < 4) else 0), 1, p_, l_] for j_, (p_, l_) in enumerate(dma_list(t))]
            mq.extend(L[4:] + L[:4] if t == TS else L)
        def sw_store(cc):
            def f():
                k.wait_lg(tk['r1'])
                k(f"s_add_u32 s{S_T}, s{D1}, {cc*48*1024}")
                tk['s1'] = k(f"buffer_store_dwordx4 {a(240+4*cc,4)}, v{LV}, {WS4}, s{S_T} offen sc1")
            return f
        def b1l(): tk['b1'] = k(f"global_load_ushort v{B1R}, v12, {ptr(11)}")
        def gs1(): k(f"buffer_load_dwordx4 {v(GS,4)}, v10, {WS4}, s{S_GT} offen sc1")
        def gs2(): tk['gs'] = k(f"buffer_load_dwordx4 {v(GS+4,4)}, v10, {WS4}, s{S_GT} offen offset:512 sc1")
        mpsw, mpst = int(self.P('mpsw', 1)), int(self.P('mpst', 2))
        for t in range(1, 10):
            if t > 1: q_stage(t)
            if t == mprs: mq += [[0, 1, None, f] for f in rs]
            if t == mpsw: mq += [[4*(TS-3), 1, p_, l_] for p_, l_ in swq]
            if t == mpst: mq += [[NSW+1, 2, None, sw_store(cc)] for cc in range(4)]
            if t == 4: mq.append([0, 0.5, None, b1l])
        late = {NPOLL: [[NPOLL, 0.5, None, self.b2_poll]], 30: [[30, 1, None, gs1], [30, 1, None, gs2]]}
        def swr():
            k.wait_vm(tk['d1'])
            for cc in range(4):
                for e in range(2):
                    tk['r1'] = k(f"ds_read_b64_tr_b16 {a(240+4*cc+2*e,2)}, v7 offset:{e*1024+cc*32}")
        def flg():
            k.wait_vm(tk['s1']); self.set_flag(S_FB, 13)
        hooks = {NSW: swr, NFLAG: flg}
        rsf = self.rowstat_fill(R0, A0, T0, 9, S_RSDST)
        fq = [('at', NSW + 1)] + b2v + [('mark', 'b2s')]
        NRB = int(self.P('mnrb', 3))
        pa = [f"v_and_b32 v200, 15, v0", f"v_mul_u32_u24 v201, {RED_RS}, v200", f"v_lshrrev_b32 v200, 4, v0", f"v_lshl_add_u32 v201, v200, 4, v201",
              f"s_mul_i32 s{S_T+2}, s{S_W}, {RED_W}", f"s_add_u32 s{S_T+2}, s{S_T+2}, {LDS_RED}", f"v_add_u32 v201, s{S_T+2}, v201",
              f"v_accvgpr_write_b32 a{ST_M}, v201", f"s_mul_i32 s{S_T+2}, s{S_W}, {16*RED_RS}", f"s_add_u32 s{S_T+2}, s{S_T+2}, {LDS_RED}"]
        for it in range(5):
            pa += [f"v_add_u32 v200, {64*it}, v0"] + self.div20(201, 202, 200) + [f"v_lshlrev_b32 v202, 4, v202",
                   f"v_mul_u32_u24 v203, {RED_RS}, v201", f"v_add3_u32 v203, v203, v202, s{S_T+2}", f"v_accvgpr_write_b32 a{ST_M+1+it}, v203",
                   f"v_mul_u32_u24 v203, 2560, v201", f"v_add_u32 v203, v203, v202", f"v_accvgpr_write_b32 a{ST_M+6+it}, v203"]
        fq += [('at', NFLAG + 1)] + pa + self.p2_scalars(1) + [('mark', 'p2a')]
        fq += [('at', 28), lambda: k.wait_vm(tk['b1']), f"v_lshlrev_b32 v{B1R}, 16, v{B1R}", f"ds_write_b32 v11, v{B1R} offset:1536"]
        AT, BT, C1, PATV, TM = 250, 8, 6, 15, 200
        c1 = -2*LOG2E*math.sqrt(2/math.pi)
        NGS = int(self.P('mngs', 35))
        fq += [x.strip() for x in f"""v_and_b32 v11, 31, v0
        s_mul_i32 s{S_T+2}, s{S_MH}, 768
        s_mul_i32 s{S_T+3}, s{S_NH}, 384
        s_add_u32 s{S_T+2}, s{S_T+2}, s{S_T+3}
        v_lshl_add_u32 v13, v11, 2, s{S_T+2}
        v_add_u32 v13, {L_WS}, v13
        v_lshrrev_b32 v14, 5, v0
        v_lshl_add_u32 v12, v14, 4, s{S_T+3}
        v_add_u32 v12, {L_WS}, v12
        v_lshrrev_b32 v{PV}, 4, v11
        v_mul_u32_u24 v{PV}, {48*1024}, v{PV}
        v_and_b32 v15, 15, v0
        v_lshl_add_u32 v{PV}, v15, 4, v{PV}
        v_lshl_add_u32 v{PV}, v14, 8, v{PV}
        s_lshl_b32 s{S_T+2}, s{S_I}, 3
        s_lshl_b32 s{S_T+3}, s{S_MH}, 2
        s_add_u32 s{S_T+2}, s{S_T+2}, s{S_T+3}
        s_mul_i32 s{S_T+2}, s{S_T+2}, 48
        s_mul_i32 s{S_T+3}, s{S_J}, 6
        s_add_u32 s{S_T+2}, s{S_T+2}, s{S_T+3}
        s_mul_i32 s{S_T+3}, s{S_NH}, 3
        s_add_u32 s{S_T+2}, s{S_T+2}, s{S_T+3}
        s_lshl_b32 s{S_T+2}, s{S_T+2}, 10
        s_add_u32 s{S_T+6}, s{S_T+2}, {WS_A2[1]}
        s_add_u32 s{S_T+7}, s{S_T+6}, {96*1024}
        s_mov_b32 s{S_T+4}, {fbits(c1*0.044715)}
        s_mov_b32 s{S_T+5}, s{S_T+4}""".split("\n")]
        def c1set():
            assert stage_cnt[9] == 10
            k(f"v_mov_b32 v{C1}, {fbits(c1)}\nv_mov_b32 v{C1+1}, {fbits(c1)}")
        fq += [f"s_cmp_ge_u32 s{S_W}, 2\ns_cselect_b32 s{S_NM}, s{S_NM}, -1\ns_cselect_b32 s{S_T+2}, s{S_PAT}, 0", f"v_mov_b32 v{PATV}, s{S_T+2}",
               f"s_mov_b32 s{S_T+2}, {fbits(1.0/640)}", ('at', 32), c1set, ('at', NGS)]
        seqs = []
        for mt in range(2):
            g_ = GS + 4*mt; t_ = TM + mt
            seqs.append([f"v_mul_f32 v{g_}, s{S_T+2}, v{g_}", f"v_mul_f32 v{t_}, v{g_}, v{g_}", f"v_fma_f32 v{g_+2}, v{g_+2}, s{S_T+2}, -v{t_}",
                         f"v_max_f32 v{g_+2}, 0, v{g_+2}", f"v_add_f32 v{t_}, {fbits(EPS)}, v{g_+2}", f"v_rsq_f32 v{g_+1}, v{t_}",
                         f"v_mul_f32 v{t_}, v{g_+1}, v{g_+1}", f"v_mul_f32 v{t_}, v{t_}, v{g_+2}", f"v_add_f32 v{t_}, {fbits(EPS)}, v{t_}",
                         f"v_rsq_f32 v{t_}, v{t_}", f"v_mul_f32 v{AT+mt}, v{t_}, v{g_+1}", f"v_mul_f32_e64 v{BT+mt}, v{g_}, -v{AT+mt}"])
        fq += [y for x in zip(*seqs) for y in x]
        fq += [f"ds_read_b128 {v(218+4*q4,4)}, v12 offset:{1536+32*q4}" for q4 in range(4)]
        credit = 0.0; b2on = False
        for n in range(40):
            st = FR[n % 2]
            k.c(f"---- mlp k-step {n}")
            if n % 2 == 0: self.fine(16 + n//2)
            if n == NCHK:
                self.b2_check(); b2on = True
            if n == NSW + 2: k.wait_lg(tk['r1'])
            if n == NGS:
                k.wait_vm(tk['gs'])
                def check():
                    k(f"""v_xor_b32 v202, s{S_TAG}, v{GS+1}
                    v_bitop3_b32 v202, s{S_TAG2}, v{GS+3}, v202 bitop3:0xbe
                    v_bitop3_b32 v202, s{S_TAG}, v{GS+5}, v202 bitop3:0xbe
                    v_bitop3_b32 v202, s{S_TAG2}, v{GS+7}, v202 bitop3:0xbe
                    v_cmp_ne_u32 vcc, 0, v202""")
                def rl():
                    gs1(); gs2(); k("s_waitcnt vmcnt(0)")
                self.verify(check, rl, "ps")
            mq[0:0] = late.get(n, [])
            mem = []
            mmax = int(self.P('mtail', 4) + (0.5 if n % 4 < 2 else 0)) if n >= 28 else int(self.P('mmax', 5)) if n < self.P('mfast', 4) else int(self.P('mcap', 3.5)) + (1 if n % 4 < 2 and self.P('mcap', 3.5) % 1 else 0)
            while len(mem) < mmax:
                if mq and mq[0][0] <= n: it_ = mq.pop(0)
                elif b2on and self.b2q and len(mem) < self.P('mb2', 5) + (0.5 if n % 4 < 2 else -0.5): it_ = [n, 1, None, self.b2q.pop(0)]
                else: break
                mem.append(it_)
            rd = mkreads(n+1) if n + 1 < 40 else []
            small = []
            if n % 4 < 2:
                for hh in range(2):
                    for T in range(3):
                        c_ = "0" if (n == 0 and hh == 0) else v(WSA+4*T, 4)
                        small.append(f"v_mfma_f32_4x4x4_16b_bf16 {v(WSA+4*T,4)}, {v(ONE,2)}, {v(st+8+4*T+2*hh,2)}, {c_}")
            bar = n % 4 == 3 and n + 1 < 40
            cnt = [0, 3, 3, 2, 0, 0] if bar else [3, 3, 2, 0, 0, 0]
            pref = [4, 0, 5, 3, 2, 1] if bar else [4, 5, 2, 3, 0, 1]
            nper_ = [0]*6
            for j_ in range(len(mem)): nper_[pref[j_ % 6]] += 1
            dep = {0: 2, 1: 3, 2: 5, 4: 7}
            for i in range(6):
                T3, mt = i//2, i % 2
                if nper_[i] and mem[0][2]: mem[0][2]()
                if i in dep: k.wait_lg(rtok[n, dep[i]])
                d = ACC + 16*i
                k(f"v_mfma_f32_32x32x16_bf16 {v(d,16)}, {v(st+8+4*T3,4)}, {v(st+4*mt,4)}, {'0' if n == 0 else v(d,16)}")
                n0 = len(k.ins)
                for j_ in range(nper_[i]):
                    it_ = mem.pop(0)
                    if j_ and it_[2]: it_[2]()
                    it_[3]()
                if bar and i == 1:
                    assert stage_cnt[(n+1)//4] == 10
                    if n == NRB: self.rowstat_batch(R0, A0, 9, S_RSDST)
                    k.wait_both(stage_tok[(n+1)//4], k.lg_issued)
                    k("s_barrier")
                for _ in range(cnt[i]):
                    if rd: rd.pop(0)()
                self.emit(self.take_fill(fq, n, int(self.P('mden', 5)) - (len(k.ins) - n0)))
            if n in hooks: hooks[n]()
            self.emit(small)
            assert not rd and not mem
        assert not mq and not fq and self.marks['b2s'] < NPOLL
        self.info += f" mlp b2 left {len(self.b2q)} marks {self.marks}"
        k.c('loop end')
        self.stamp(2)
        if self.early_stop("loop"): return
        k.c("================ MLP epilogue")
        self.nf2 = 0
        for T in range(3): k(f"v_permlane32_swap_b32 v{WSA+4*T}, v{WSA+4*T+1}")
        for T in range(3):
            k(f"v_add_f32 v{WSA+4*T}, v{WSA+4*T}, v{WSA+4*T+1}\nds_write_b32 v13, v{WSA+4*T} offset:{128*T}")
        WB = [186, 112]
        Q = 160; PKO = [168, 172, 234, 238]
        def wreads(T3, parts=(0, 1, 2)):
            b = WB[T3 % 2]
            return [f"ds_read_b128 {v(b+16*a_+4*q4,4)}, v12 offset:{768*a_+(32*T3+8*q4)*4}" for q4 in range(4) for a_ in parts]
        def zb(Tl, prs):
            b = WB[(Tl//2) % 2]; mt = Tl % 2
            return [f"v_pk_fma_f32 {v(ACC+16*Tl+2*p,2)}, {v(AT,2)}, {v(ACC+16*Tl+2*p,2)}, {v(b+32+2*p,2)} op_sel:[{mt},0,0] op_sel_hi:[{mt},1,1]" for p in prs]
        k("s_waitcnt lgkmcnt(0)\ns_barrier")
        self.stamp(3)
        self.emit(wreads(0, (0, 1)))
        self.emit(zb(0, range(8)) + zb(1, range(8)))
        self.p2_addr(1)
        held = []
        for Tl in range(6):
            T3, mt = Tl//2, Tl % 2
            self.fine2()
            b = WB[T3 % 2]
            fill = []; body = []
            if mt == 0:
                k("s_waitcnt lgkmcnt(0)")
                body += [f"v_pk_add_f32 {v(b+2*p,2)}, {v(b+2*p,2)}, {v(b+16+2*p,2)}" for p in range(8)]
                if T3 < 2: fill = [lambda x=x: k(x) for x in wreads(T3+1)]
            for c in range(2):
                po = PKO[(2*Tl + c) % 4]; prs = range(4*c, 4*c+4)
                z = lambda p: ACC + 16*Tl + 2*p
                q = lambda p: Q + 2*(p % 4)
                if Tl >= 2: body += zb(Tl, prs)
                body += [f"v_pk_fma_f32 {v(z(p),2)}, {v(BT,2)}, {v(b+2*p,2)}, {v(z(p),2)} op_sel:[{mt},0,0] op_sel_hi:[{mt},1,1]" for p in prs]
                body += [f"v_pk_mul_f32 {v(q(p),2)}, {v(z(p),2)}, {v(z(p),2)}" for p in prs]
                body += [f"v_pk_fma_f32 {v(q(p),2)}, {v(q(p),2)}, {s(S_T+4,2)}, {v(C1,2)}" for p in prs]
                body += [f"v_pk_mul_f32 {v(q(p),2)}, {v(q(p),2)}, {v(z(p),2)}" for p in prs]
                for p in prs: body += [f"v_exp_f32 v{q(p)}, v{q(p)}", f"v_exp_f32 v{q(p)+1}, v{q(p)+1}"]
                body += [f"v_pk_add_f32 {v(q(p),2)}, {v(q(p),2)}, 1.0 op_sel_hi:[1,0]" for p in prs]
                for p in prs: body += [f"v_rcp_f32 v{q(p)}, v{q(p)}", f"v_rcp_f32 v{q(p)+1}, v{q(p)+1}"]
                body += [f"v_pk_mul_f32 {v(q(p),2)}, {v(q(p),2)}, {v(z(p),2)}" for p in prs]
                body += [f"v_cvt_pk_bf16_f32 v{po+p%4}, v{q(p)}, v{q(p)+1}" for p in prs]
                body += [f"v_and_or_b32 v{po+p%4}, v{po+p%4}, s{S_NM}, v{PATV}" for p in prs]
                def st_(T3=T3, mt=mt, c=c, po=po):
                    self.last_st = k(f"buffer_store_dwordx4 {v(po,4)}, v{PV}, {WS4}, s{S_T+6+mt} offen offset:{T3*1024+c*512} sc1")
                if Tl < 4: body.append(st_)
                else: held.append(st_)
            if Tl >= 4: fill = [self.p2_aload]*8
            if Tl < 4: fill = fill + self.b2_take(min(int(self.P('g1', 4)), -(-len(self.b2q)//(4 - Tl))))
            self.sprinkle(body, fill, lead=8)
        self.fine2()
        self.emit(held)
        self.fine2()
        self.stamp(6)
        self.phase2(1)

    RING, NR, ACS, ACO = 16, 19, 92, 172
    def p2_scalars(self, side):
        a_, b_ = S_T+2, S_T+3; hfO = 1 - side
        L = f"""s_lshl_b32 s{a_}, s{S_I}, 5
        s_lshl_b32 s{b_}, s{S_W}, 3
        s_add_u32 s{a_}, s{a_}, s{b_}
        s_lshl_b32 s{a_}, s{a_}, 6
        s_add_u32 s{S_FAP}, s{a_}, {WS_FA + side*512*FLS}
        s_lshr_b32 s{a_}, s{S_PW}, 2
        s_mul_i32 s{a_}, s{a_}, 20480
        s_mul_i32 s{b_}, s{S_W}, 5120
        s_add_u32 s{a_}, s{a_}, s{b_}
        s_add_u32 s{S_RECV}, s{a_}, {WS_PART + (1-side)*128*20480}
        s_add_u32 s{S_RECV+1}, s{S_RECV}, 4096
        s_add_u32 s{S_SEND}, s{a_}, {WS_PART + side*128*20480}
        s_add_u32 s{S_SEND+1}, s{S_SEND}, 4096
        s_lshl_b32 s{a_}, s{S_I}, 7
        s_lshl_b32 s{b_}, s{S_W}, 4
        s_add_u32 s{a_}, s{a_}, s{b_}
        s_add_u32 s{a_}, s{a_}, {64*hfO}
        s_mul_i32 s{a_}, s{a_}, 2560
        s_mul_i32 s{b_}, s{S_J}, 320
        s_add_u32 s{S_OUT}, s{a_}, s{b_}
        s_mov_b32 s{SRD_OUT}, s{P0+28}
        s_mov_b32 s{SRD_OUT+1}, s{P0+29}
        s_mov_b32 s{SRD_OUT+2}, 5242880
        s_mov_b32 s{SRD_OUT+3}, 0x20000"""
        return [x.strip() for x in L.split("\n")]
    def p2_addr(self, side):
        k = self.k
        S = [40, 48][side]; KS = [10, 12][side]
        self.side = side; self.KS = KS
        hfS = side; hfO = 1 - side
        k(f"""s_mul_i32 s45, s{S_I}, {8*S}
        s_mul_i32 s46, s{S_W}, {KS}
        s_add_u32 s45, s45, s46
        s_lshl_b32 s45, s45, 10
        s_add_u32 s45, s45, {WS_A2[side]}""")
        for t4 in range(4):
            k(f"s_add_u32 s{36+t4}, s45, {(4*hfS+t4)*S*1024}")
            k(f"s_add_u32 s{40+t4}, s45, {(4*hfO+t4)*S*1024}")
        self.seq = [(0, ss, t4) for ss in self.order for t4 in range(4)] + [(1, ss, t4) for t4 in range(4) for ss in range(KS)]
        self.atok = {}; self.areg = {}; self.nxt = 0
        self.free_ring = [self.RING + 4*i for i in range(self.NR)]
        self.free_big = [self.ACO + 4*i for i in range(20)] if side == 0 else []
    def a_instr(self, idx):
        p, ss, t4 = self.seq[idx]
        so = 36 + 4*p + t4; pre = ""
        if ss >= 4:
            pre = f"s_add_u32 s45, s{so}, {(ss//4)*4096}\n"; so = 45
        return pre + f"buffer_load_dwordx4 {v(self.areg[idx],4)}, v{self.LV}, {WS4}, s{so} offen offset:{(ss%4)*1024} sc1"
    def p2_can(self):
        if self.nxt >= len(self.seq): return False
        if self.seq[self.nxt][0] == 0 and self.free_big: return True
        return bool(self.free_ring)
    def p2_aload(self):
        idx = self.nxt
        if self.seq[idx][0] == 0 and self.free_big: r = self.free_big.pop(0)
        else: r = self.free_ring.pop(0)
        self.areg[idx] = r
        self.atok[idx] = self.k(self.a_instr(idx))
        self.nxt += 1

    def phase2(self, side):
        k = self.k
        if self.early_stop("p1"): return
        KS = self.KS; nper = 4*KS
        ACS, ACO, LV = self.ACS, self.ACO, self.LV
        hfS = side; hfO = 1 - side
        RW, RR, OO, VA, FV, T1 = 5, 6, 11, 1, 2, 253
        k.c(f"================ phase 2 (side {side})")
        if side == 1: self.free_big = [self.ACO + 4*i for i in range(20)]
        while self.nxt < 16: self.p2_aload()
        self.stamp(8)
        def vcheck(j, lst):
            regs = [self.areg[4*j+t]+e for t in range(4) for e in range(4)]
            L = []
            for q in range(0, 16, 2):
                L += [f"v_xor_b32 v{regs[q]}, s{S_PAT}, v{regs[q]}", f"v_xor_b32 v{regs[q+1]}, s{S_PAT}, v{regs[q+1]}",
                      f"v_or_b32 v{VA}, v{regs[0]}, v{regs[1]}" if q == 0 else f"v_or3_b32 v{VA}, v{regs[q]}, v{regs[q+1]}, v{VA}"]
            L += [f"v_and_b32 v{VA}, 0x10001, v{VA}", f"v_cmp_ne_u32 vcc, 0, v{VA}"]
            return L
        def vfinish(j):
            hi = min(self.nxt, nper)
            ins = [self.a_instr(i) for i in range(4*j, hi)]
            chk = vcheck(j, None)
            def reload():
                self.emit(ins); k("s_waitcnt vmcnt(0)")
            self.verify(lambda: self.emit(chk), reload, "va", checked=True)
        k(f"v_and_b32 v{FV}, 7, v0\nv_lshlrev_b32 v{FV}, 6, v{FV}")
        a1 = [f"v_mov_b32 v3, s{S_PAT32}\ns_mov_b32 s{S_NM}, -4"]
        if side == 1:
            regs_ = [RW] + [RR+it for it in range(5)] + [OO+it for it in range(5)]
            rd_ = [f"v_accvgpr_read_b32 v{r}, a{ST_M+q}" for q, r in enumerate(regs_)]
            a1 += ["\n".join(rd_[q:q+2]) for q in range(0, 11, 2)]
        else:
            a1 += [f"v_accvgpr_read_b32 v{RW}, a{ST['RW']}", f"s_movk_i32 s{S_T+1}, {RED_RS}", f"s_movk_i32 s{S_T+2}, 2560",
                   f"s_mul_i32 s{S_T}, s{S_W}, {16*RED_RS}", f"s_add_u32 s{S_T}, s{S_T}, {LDS_RED}"]
            for it in range(5):
                a1 += [f"v_lshlrev_b32 v{T1}, 4, v{RR+it}",
                       f"v_mad_u32_u24 v{RR+it}, v{OO+it}, s{S_T+1}, v{T1}", f"v_add_u32 v{RR+it}, s{S_T}, v{RR+it}",
                       f"v_mad_u32_u24 v{OO+it}, v{OO+it}, s{S_T+2}, v{T1}"]
            self.emit(a1); a1 = []
        tk = {}
        gate = [lambda j: nper, lambda j: 32 if j < 3 else nper][side]
        k.wait_vm(self.atok[3])
        self.emit(vcheck(0, None)); vfinish(0)
        o_ok = False
        if side == 0: k(f"v_add_u32 v254, s{S_RL}, v{LV}")
        swr_left = []
        sw_all = {t4: [x for cc in range(5) for x in [W2(f"ds_write_b128 v{RW}, {v(ACS+(t4*5+cc)*4,4)} offset:{t4*16*RED_RS+cc*64}")] + [PAD]*int(self.P('wpad', 1))] for t4 in range(4)}
        for j in range(KS):
            self.fine(36 + j)
            ss = self.order[j]
            while (ss, 4) not in self.b2tok: self.b2q.pop(0)()
            k.wait_vm(self.b2tok[ss, 4])
            vq = None
            misc = []
            if j == [0, int(self.P('jfl', 3))][side]:
                def f():
                    k.wait_vm(self.last_st)
                    k(f"s_add_u32 s{S_T+10}, s{S_FLAG}, {WS_FA + side*512*FLS}")
                    self.set_flag(S_T+10, 4)
                misc.append(f)
            if j == [int(self.P('jpo0', 5)), int(self.P('jpo', 7))][side]:
                def f(): tk['fa'] = k(f"buffer_load_dword v4, v{FV}, {WS4}, s{S_FAP} offen sc1")
                misc.append(f)
            if j == [int(self.P('jck0', 7)), int(self.P('jck', 9))][side]:
                k.wait_vm(tk['fa'])
                def rl(): k(f"buffer_load_dword v4, v{FV}, {WS4}, s{S_FAP} offen sc1\ns_waitcnt vmcnt(0)")
                self.verify(lambda: k(f"v_cmp_ne_u32 vcc, s{S_TAG}, v4"), rl, "fa")
                o_ok = True
            for t4 in range(4):
                idx = 4*j + t4
                for cc in range(5):
                    g_ = 5*t4 + cc
                    d = ACS + (t4*5 + cc)*4
                    k(f"v_mfma_f32_16x16x32_bf16 {v(d,4)}, {a((ss*5+cc)*4,4)}, {v(self.areg[idx],4)}, {'0' if j == 0 else v(d,4)}")
                    lim = gate(j) if not o_ok else 2*nper
                    if g_ % 3 == 0 and self.p2_can() and self.nxt < lim and self.nxt < idx + 22:
                        self.p2_aload()
                    elif g_ in (1, 10) and self.b2q and j >= [1, 3][side]:
                        self.b2q.pop(0)()
                    elif g_ >= 1 and j + 1 < KS:
                        if vq is None: vq = vcheck(j+1, None); vdone = 0
                        fr = vdone//6
                        if vq and (fr >= 4 or g_ >= 5*fr + int(self.P('vlead', 1)) - (2 if fr == 3 else 0)):
                            if fr < 4 and vdone % 6 == 0: k.wait_vm(self.atok[4*j+4+fr])
                            self.emit(vq[:2]); vq = vq[2:]; vdone += 2
                        elif misc or a1: self.emit([(misc or a1).pop(0)])
                    elif misc or a1:
                        self.emit([(misc or a1).pop(0)])
                    elif j == KS - 1 and swr_left:
                        x = swr_left.pop(0)
                        if x is PAD:
                            if swr_left and swr_left[0] is PAD: swr_left.pop(0)
                        else: k(x)
                    if j == KS - 1 and cc == 2 and t4 > 0: swr_left += sw_all[t4-1]
                r = self.areg[idx]
                (self.free_ring if r < ACS else self.free_big).append(r) if (r < ACS or self.nxt < nper - 8) else None
            self.emit(misc)
            if j + 1 < KS:
                k.wait_vm(self.atok[4*j+7])
                self.emit(vq); vfinish(j+1)
        assert not a1
        swr_left += [PAD]*4 + sw_all[3]
        self.stamp(9)
        fill = list(swr_left)
        fill += [PAD]*int(self.P('bpad', 4)) + [W2("s_waitcnt lgkmcnt(0)\ns_barrier")]
        rds = []
        for it in range(5):
            for sw in range(4):
                def f(it=it, sw=sw): tk['r', it] = k(f"ds_read_b128 {v(ACS+(it*4+sw)*4,4)}, v{RR+it} offset:{sw*RED_W}")
                rds.append(f)
        def tail(it):
            b = ACS + it*16; L = []
            if side == 0:
                L.append(lambda: k.wait_lg(tk['R', it]))
                L += [f"v_add_f32 v{b+e}, v{b+e}, v{b+4+e}" for e in range(4)]
            L += [f"v_and_or_b32 v{b+e}, v{b+e}, s{S_NM}, v3" for e in range(4)]
            L.append(f"buffer_store_dwordx4 {v(b,4)}, v{LV}, {WS4}, s{S_SEND+it//4} offen offset:{(it%4)*1024} sc1")
            return L
        for r_ in rds[:8]: fill += [r_, PAD]
        for it in range(5):
            b = ACS + it*16
            ad = [f"v_add_f32 v{b+e}, v{b+e}, v{b+4+e}" for e in range(4)]
            if side == 0:
                def f(it=it, b=b): tk['R', it] = k(f"ds_read_b128 {v(b+4,4)}, v254 offset:{hfS*20480+it*1024}")
                ad.append(f)
            ad += [f"v_add_f32 v{b+8+e}, v{b+8+e}, v{b+12+e}" for e in range(4)] + [f"v_add_f32 v{b+e}, v{b+e}, v{b+8+e}" for e in range(4)]
            if it > 0: ad += tail(it - 1)
            nx = rds[8+4*it:12+4*it]
            fill.append(lambda it=it: k.wait_lg(tk['r', it]))
            for q, x in enumerate(ad):
                if q % 3 == 0 and nx: fill.append(nx.pop(0))
                fill.append(x)
            if it == 3: pass
        fill += tail(4) + [W2("s_barrier")]
        owr = {t4: [f"ds_write_b128 v{RW}, {v(ACO+(t4*5+cc)*4,4)} offset:{t4*16*RED_RS+cc*64}" for cc in range(5)] for t4 in range(4)}
        oq = []
        def ploads():
            return [k(f"buffer_load_dwordx4 {v(ACS+it*16+12,4)}, v{LV}, {WS4}, s{S_RECV+it//4} offen offset:{(it%4)*1024} sc1") for it in range(5)]
        slot = 0
        for j in range(nper):
            idx = nper + j
            _, ss, t4 = self.seq[idx]
            if j % 4 == 0: self.fine(36 + KS + j//4)
            if ss == 1 and t4 > 0: oq += [x for w_ in owr[t4-1] for x in [W2(w_)] + [PAD]*int(self.P('opad', 2))]
            while idx not in self.atok: self.p2_aload()
            k.wait_vm(self.atok[idx])
            for cc in range(5):
                d = ACO + (t4*5 + cc)*4
                k(f"v_mfma_f32_16x16x32_bf16 {v(d,4)}, {a((ss*5+cc)*4,4)}, {v(self.areg[idx],4)}, {'0' if ss == 0 else v(d,4)}")
                cap = 2
                if cc == 0 and self.p2_can():
                    n0 = len(k.ins); self.p2_aload(); cap -= len(k.ins) - n0
                while cap > 0 and (fill or oq):
                    q_ = fill or oq
                    c_ = 2 if isinstance(q_[0], W2) else 1
                    if c_ > cap: break
                    x = q_.pop(0); cap -= c_
                    if x is not PAD: self.emit([x])
                if fill == [] and 'sent' not in tk: tk['sent'] = 5*j + cc
            self.free_ring.append(self.areg[idx])
            if side == 0 and j == nper - 6:
                assert self.nxt == len(self.seq)
                self.ereg = self.free_ring.pop(0); self.eadr = self.free_ring.pop(0)
                k(f"s_cmp_eq_u32 s{S_PW}, 0\ns_cbranch_scc1 L_ep0")
                k.label("L_ep1")
            if j == nper - 3: ptoks = ploads()
        assert not fill
        self.stamp(10)
        rest = [x for x in oq if x is not PAD] + owr[3]
        self.info += f" sent{side}@{tk['sent']}/{5*nper} rest{len(rest)}"
        if side == 0:
            for it in range(5): k(f"ds_read_b128 {v(ACS+it*16+4,4)}, v254 offset:{hfO*20480+it*1024}")
        self.emit(rest)
        def pcheck():
            regs = [ACS+it*16+12+e for it in range(5) for e in range(4)]
            for q in range(0, 20, 2):
                k(f"v_xor_b32 v{regs[q]}, s{S_PAT32}, v{regs[q]}\nv_xor_b32 v{regs[q+1]}, s{S_PAT32}, v{regs[q+1]}")
                k(f"v_or_b32 v{VA}, v{regs[0]}, v{regs[1]}" if q == 0 else f"v_or3_b32 v{VA}, v{regs[q]}, v{regs[q+1]}, v{VA}")
            k(f"v_and_b32 v{VA}, 3, v{VA}\nv_cmp_ne_u32 vcc, 0, v{VA}")
        k("s_waitcnt lgkmcnt(0)\ns_barrier")
        toks = []
        for it in range(5):
            for sw in range(4):
                toks.append(k(f"ds_read_b128 {v(ACO+(it*4+sw)*4,4)}, v{RR+it} offset:{sw*RED_W}"))
        k.wait_vm(ptoks[4])
        def rl():
            ploads(); k("s_waitcnt vmcnt(0)")
        self.verify(pcheck, rl, "pp")
        self.stamp(11)
        if side == 0:
            for it in range(5):
                for h in range(2):
                    k(f"v_pk_add_f32 {v(ACS+it*16+12+2*h,2)}, {v(ACS+it*16+12+2*h,2)}, {v(ACS+it*16+4+2*h,2)}")
        for it in range(5):
            b = ACO + it*16
            k.wait_lg(toks[4*it+3])
            for h in range(2):
                k(f"v_pk_add_f32 {v(b+2*h,2)}, {v(b+2*h,2)}, {v(b+4+2*h,2)}")
                k(f"v_pk_add_f32 {v(b+8+2*h,2)}, {v(b+8+2*h,2)}, {v(b+12+2*h,2)}")
            for h in range(2):
                k(f"v_pk_add_f32 {v(b+2*h,2)}, {v(b+2*h,2)}, {v(ACS+it*16+12+2*h,2)}")
            for h in range(2):
                k(f"v_pk_add_f32 {v(b+2*h,2)}, {v(b+2*h,2)}, {v(b+8+2*h,2)}")
            k(f"buffer_store_dwordx4 {v(b,4)}, v{OO+it}, {s(SRD_OUT,4)}, s{S_OUT} offen {'sc1' if 'outsc1' in self.opt else 'nt' if 'outnt' in self.opt else ''}")
        self.stamp(12)
        self.finish_wg(side)

    def epoch_loads(self):
        for q in range(4):
            self.k(f"s_mov_b32 s{S_T+1}, {WS_FA + q*64*4*FLS}")
            self.k(f"buffer_load_dword v{self.ereg+q}, v{self.eadr}, {WS4}, s{S_T+1} offen sc1")
    def finish_wg(self, side):
        k = self.k
        if side == 0:
            k(f"""s_cmp_lg_u32 s{S_PW}, 0
            s_cbranch_scc1 L_fin0""")
            e = self.ereg
            def loads():
                self.epoch_loads(); k("s_waitcnt vmcnt(0)")
            def check():
                k(f"v_xor_b32 v14, s{S_TAG}, v{e}")
                for q in range(1, 4): k(f"v_bitop3_b32 v14, s{S_TAG}, v{e+q}, v14 bitop3:0xbe")
                k("v_cmp_ne_u32 vcc, 0, v14")
            self.verify(check, loads, "pe")
            k(f"s_mov_b32 s{S_T}, {WS_EPOCH}")
            self.set_flag(S_T, 14)
            k.label("L_fin0")
        if self.spin:
            lb = k.newlabel("spin")
            k(f"s_add_u32 s101, s101, {self.spin}")
            k.label(lb)
            k(f"""s_memrealtime s[98:99]
            s_waitcnt lgkmcnt(0)
            s_sub_u32 s98, s98, s100
            s_cmp_lt_u32 s98, s101
            s_cbranch_scc1 {lb}""")
        if self.ts:
            k("s_waitcnt vmcnt(0)"); self.stamp(13); self.stamp_flush()
        k("s_endpgm")

    def build(self):
        k = self.k
        self.prologue()
        st = k.state()
        self.ssm()
        if hasattr(self, 'ereg'):
            k.label("L_ep0")
            k(f"v_lshlrev_b32 v{self.eadr}, 8, v0")
            self.epoch_loads()
            k("s_branch L_ep1")
        self.flush_slow()
        k.set_state(st)
        self.mlp()
        self.flush_slow()
        k.label("L_end")
        k("s_endpgm")
        if 'nob2' in self.opt:
            k.ins = [x for x in k.ins if not (x.op == 'buffer_load_dwordx4' and ' a[' in x.text)]
        if 'b2hot' in self.opt:
            for x in k.ins:
                if x.op == 's_add_u32' and x.text.startswith(f's_add_u32 s{P0+30},'): x.text = f's_add_u32 s{P0+30}, s{S_B2}, 0'
        if 'noa2' in self.opt:
            out = []; inp2 = False
            for x in k.ins:
                if 'phase 2 (side' in x.text: inp2 = True
                if x.op == 's_endpgm': inp2 = False
                if inp2 and (x.op == 's_cbranch_vccnz' or (x.op == 'buffer_load_dwordx4' and 'sc1' in x.text and ' a[' not in x.text)): continue
                out.append(x)
            k.ins = out
        if self.opt & {'nomfma', 'noread', 'nobar', 'nofill'}:
            out = []; inloop = False
            for x in k.ins:
                if 'k-step' in x.text: inloop = True
                if 'loop end' in x.text: inloop = False
                if inloop:
                    if 'nomfma' in self.opt and x.kind == 'mfma': continue
                    if 'noread' in self.opt and x.kind == 'ds': continue
                    if 'nobar' in self.opt and x.op == 's_barrier': continue
                    if 'nofill' in self.opt and (x.op == 's_cbranch_vccnz' or (x.kind == 'vmem' and not x.lds_dma) or 'v253' in x.text): continue
                out.append(x)
            k.ins = out
        body = k.finish()
        hdr = open("header.txt").read()
        hl = hdr.split("\n"); cut = [i for i, x in enumerate(hl) if x.startswith("; Override launch")][0]
        hdr = "\n".join(hl[:cut]) + "\n" + open("doc.txt").read() + "\n".join(hl[cut:])
        return (hdr + f"""; @launch grid=(256,1,1) block=(256,1,1) lds=163840
.amdgcn_target "amdgcn-amd-amdhsa--gfx950"
.text
.globl {NAME}
.p2align 8
.type {NAME},@function
{NAME}:
""" + body + f""".section .rodata,"a"
.p2align 6
.amdhsa_kernel {NAME}
  .amdhsa_next_free_vgpr 512
  .amdhsa_next_free_sgpr 102
  .amdhsa_accum_offset 256
  .amdhsa_group_segment_fixed_size 0
  .amdhsa_kernarg_size 136
  .amdhsa_user_sgpr_count 2
  .amdhsa_user_sgpr_kernarg_segment_ptr 1
  .amdhsa_system_sgpr_workgroup_id_x 1
.end_amdhsa_kernel
""")

if __name__ == "__main__":
    import argparse
    ap = argparse.ArgumentParser()
    ap.add_argument("-o", default="k4.s")
    ap.add_argument("--stop", default=None)
    ap.add_argument("--ts", action="store_true")
    ap.add_argument("--spin", type=int, default=0)
    ap.add_argument("--seg", type=int, default=None)
    ap.add_argument("--opt", default="")
    a_ = ap.parse_args()
    g = G(stop=a_.stop, ts=a_.ts, spin=a_.spin, seg=a_.seg, opt=a_.opt.split(","))
    txt = g.build()
    open(a_.o, "w").write(txt)
    print("written", a_.o, "nops inserted:", g.k.nops, "lines:", txt.count("\n"), g.info)
```

```python
import re

def v(i, n=1):
    return f"v{i}" if n == 1 else f"v[{i}:{i+n-1}]"
def a(i, n=1):
    return f"a{i}" if n == 1 else f"a[{i}:{i+n-1}]"
def s(i, n=1):
    return f"s{i}" if n == 1 else f"s[{i}:{i+n-1}]"

_REG = re.compile(r"^-?\|?(?:abs\()?([vas])(?:(\d+)|\[(\d+):(\d+)\])\)?\|?$")
def regs_of(op):
    op = op.strip()
    if op == "vcc": return {("s", 106), ("s", 107)}
    if op == "vcc_lo": return {("s", 106)}
    if op == "vcc_hi": return {("s", 107)}
    if op == "exec": return {("s", 126), ("s", 127)}
    if op == "exec_lo": return {("s", 126)}
    if op == "exec_hi": return {("s", 127)}
    if op == "m0": return {("s", 124)}
    m = _REG.match(op)
    if not m: return set()
    k = m.group(1)
    if m.group(2) is not None:
        return {(k, int(m.group(2)))}
    return {(k, r) for r in range(int(m.group(3)), int(m.group(4)) + 1)}

TRANS = ("v_exp_f32", "v_log_f32", "v_rcp_f32", "v_rsq_f32", "v_sqrt_f32", "v_sin_f32", "v_cos_f32")
EXEC = {("s", 126), ("s", 127)}
VCC = {("s", 106), ("s", 107)}
M0 = {("s", 124)}

class Ins:
    __slots__ = ("text", "op", "kind", "wr", "rd", "passes", "srcc", "srcab", "dpp", "wide_data", "lds_dma", "states", "is_label", "target")
    def __init__(self, text):
        self.text = text
        t = text.split(";")[0].strip()
        self.is_label = t.endswith(":")
        self.target = None
        self.wr, self.rd = set(), set()
        self.passes = 0; self.srcc = set(); self.srcab = set()
        self.dpp = False; self.wide_data = set(); self.lds_dma = False
        self.states = 1
        if self.is_label or not t or t.startswith("."):
            self.op = ""; self.kind = "none"; self.states = 0
            return
        parts = t.split(None, 1)
        op = parts[0]; self.op = op
        rest = parts[1] if len(parts) > 1 else ""
        ops = []; depth = 0; cur = ""
        for ch in rest:
            if ch == "[": depth += 1
            if ch == "]": depth -= 1
            if ch == "," and depth == 0:
                ops.append(cur.strip()); cur = ""
            else:
                cur += ch
        if cur.strip(): ops.append(cur.strip())
        mods = ""
        if ops:
            last = ops[-1].split(None, 1)
            ops[-1] = last[0]
            mods = last[1] if len(last) > 1 else ""
        R = [regs_of(o) for o in ops]
        allr = lambda lst: set().union(*lst) if lst else set()
        if op == "s_nop":
            self.kind = "salu"; self.states = int(ops[0], 0) + 1
        elif op.startswith("v_mfma"):
            self.kind = "mfma"
            self.passes = 8 if "32x32x16" in op else 4 if "16x16x32" in op else 2 if "4x4x4" in op else None
            assert self.passes, op
            self.wr = R[0]; self.srcab = R[1] | R[2]; self.srcc = R[3]; self.rd = self.srcab | self.srcc
        elif op.startswith("v_"):
            self.kind = "trans" if op.startswith(TRANS) else "valu"
            self.dpp = "_dpp" in op or "quad_perm" in mods or "row_" in mods
            if op.startswith("v_cmp"):
                self.wr = R[0]; self.rd = allr(R[1:])
                if op.startswith("v_cmpx"): self.wr = self.wr | EXEC
            elif op.startswith("v_permlane") :
                self.wr = R[0] | R[1]; self.rd = R[0] | R[1]; self.kind = "permlane"
            elif op.startswith(("v_add_co", "v_sub_co", "v_addc_co", "v_subb_co")):
                self.wr = R[0] | R[1]; self.rd = allr(R[2:])
            else:
                self.wr = R[0]; self.rd = allr(R[1:])
                if op.startswith(("v_fmac", "v_dot2c", "v_pk_fmac")) or self.dpp: self.rd = self.rd | R[0]
                if op.startswith("v_cndmask") and len(ops) == 3: self.rd = self.rd | VCC
        elif op.startswith("ds_"):
            self.kind = "ds"
            if op.startswith(("ds_read", "ds_bpermute", "ds_permute", "ds_swizzle")):
                self.wr = R[0]; self.rd = allr(R[1:])
            else:
                self.rd = allr(R)
        elif op.startswith(("buffer_", "global_")):
            self.kind = "vmem"
            islds = " lds" in (" " + mods) or "load_lds" in op
            if op in ("buffer_inv", "buffer_wbl2"):
                pass
            elif "load" in op and not islds:
                self.wr = R[0]; self.rd = allr(R[1:])
            elif "atomic" in op and "sc0" in mods:
                self.wr = R[0]; self.rd = allr(R)
            else:
                self.rd = allr(R)
                if islds: self.lds_dma = True; self.rd = self.rd | M0
                if "store" in op and ("x4" in op or "x3" in op):
                    self.wide_data = R[0] if op.startswith("buffer_") else R[1]
        elif op.startswith("s_"):
            self.kind = "salu"
            if op.startswith(("s_cbranch", "s_branch")):
                self.target = ops[0]; self.kind = "branch"
            elif op.startswith(("s_cmp", "s_waitcnt", "s_barrier", "s_endpgm", "s_sleep", "s_setprio", "s_bitcmp")):
                self.rd = allr(R)
            elif op.startswith(("s_load", "s_memtime", "s_memrealtime")):
                self.kind = "smem"; self.wr = R[0]; self.rd = allr(R[1:])
            else:
                self.wr = R[0]; self.rd = allr(R[1:])
                if "saveexec" in op: self.wr = self.wr | EXEC
        else:
            raise ValueError("unknown instruction: " + text)

def need(p, c):
    n = 0
    isv = lambda x: x.kind in ("valu", "trans", "permlane")
    pv = {r for r in p.wr if r[0] in "va"}
    ps = {r for r in p.wr if r[0] == "s"}
    if p.kind == "mfma":
        P = p.passes
        idx = {2: 0, 4: 1, 8: 2, 16: 3}[P]
        if c.kind == "mfma":
            if c.srcc & pv:
                if c.srcc == p.wr and c.passes == P: n = max(n, [2, 0, 0, 0][idx])
                else: n = max(n, [4, 6, 10, 18][idx])
            if c.srcab & pv: n = max(n, [5, 8, 12, 20][idx])
            if (c.wr & pv) and not (c.srcc & pv): n = max(n, [5, 8, 12, 20][idx])
        elif isv(c) or c.kind in ("ds", "vmem"):
            if (c.rd | c.wr) & pv: n = max(n, [5, 8, 12, 20][idx])
        if isv(c) and (c.wr & p.srcc): n = max(n, [1, 3, 7, 15][idx])
    if p.op.startswith("v_dot") and ((c.rd | c.wr) & pv) and c.op != p.op: n = max(n, 3)
    if isv(p):
        if c.kind == "mfma" and (c.rd & pv): n = max(n, 2)
        if c.kind == "mfma" and (ps & EXEC): n = max(n, 4)
        if isv(c) and c.dpp and (c.rd & pv): n = max(n, 2)
        if isv(c) and c.dpp and (ps & EXEC): n = max(n, 5)
        if c.kind == "permlane" and (c.rd & pv): n = max(n, 2)
        if c.op.startswith(("v_readlane", "v_readfirstlane")) and (c.rd & pv): n = max(n, 1)
        if isv(c) and (c.rd & ps): n = max(n, 2)
        if c.op.startswith(("v_readlane", "v_writelane")) and (c.rd & ps): n = max(n, 4)
        if c.kind == "vmem" and (c.rd & ps): n = max(n, 5)
        if c.kind in ("salu", "branch") and (c.rd & ps): n = max(n, 1)
        if c.kind == "branch" and "vcc" in c.op and (ps & VCC): n = max(n, 2)
        if p.kind == "trans" and isv(c) and c.kind != "trans" and (c.rd & pv): n = max(n, 1)
        if p.kind == "trans" and c.kind in ("ds", "vmem") and (c.rd & pv): n = max(n, 1)
    if p.kind == "salu" and (p.wr & M0) and c.kind == "vmem" and c.lds_dma: n = max(n, 1)
    if p.kind == "vmem" and p.wide_data:
        if c.wr & p.wide_data: n = max(n, 2 if isv(c) else 1)
    return n

class Emit:
    def __init__(self):
        self.ins = []
        self.vm_issued = 0; self.vm_done = 0
        self.lg_issued = 0; self.lg_done = 0
        self._lab = 0
    def raw(self, text):
        self.ins.append(Ins("." if False else "; " + text) if False else Ins.__new__(Ins))
        x = self.ins[-1]
        x.text = text; x.op = ""; x.kind = "none"; x.wr = set(); x.rd = set(); x.passes = 0; x.srcc = set(); x.srcab = set()
        x.dpp = False; x.wide_data = set(); x.lds_dma = False; x.states = 0; x.is_label = False; x.target = None
    def __call__(self, text):
        last = None
        for line in text.strip("\n").split("\n"):
            line = line.strip()
            if not line: continue
            x = Ins(line)
            if x.kind == "vmem" and self.vm_issued - self.vm_done >= 62:
                self.ins.append(Ins("s_waitcnt vmcnt(52)")); self.vm_done = self.vm_issued - 52
            if x.kind == "ds" and self.lg_issued - self.lg_done >= 14:
                self.ins.append(Ins("s_waitcnt lgkmcnt(9)")); self.lg_done = self.lg_issued - 9
            self.ins.append(x)
            if x.kind == "vmem":
                self.vm_issued += 1; last = self.vm_issued
            elif x.kind == "ds":
                self.lg_issued += 1; last = self.lg_issued
            elif x.op == "s_waitcnt":
                m = re.search(r"vmcnt\((\d+)\)", line)
                if m: self.vm_done = max(self.vm_done, self.vm_issued - int(m.group(1)))
                m = re.search(r"lgkmcnt\((\d+)\)", line)
                if m: self.lg_done = max(self.lg_done, self.lg_issued - int(m.group(1)))
        return last
    def label(self, name=None):
        if name is None:
            self._lab += 1; name = f"L{self._lab}"
        self.ins.append(Ins(name + ":"))
        return name
    def newlabel(self, base="L"):
        self._lab += 1
        return f"{base}{self._lab}"
    def c(self, text):
        self.raw("    ; " + text)
    def wait_vm(self, tok):
        if tok is None or tok <= self.vm_done: return
        n = min(self.vm_issued - tok, 63)
        self(f"s_waitcnt vmcnt({n})")
    def wait_lg(self, tok):
        if tok is None or tok <= self.lg_done: return
        n = min(self.lg_issued - tok, 15)
        self(f"s_waitcnt lgkmcnt({n})")
    def wait_both(self, vtok, ltok):
        p = []
        if vtok is not None and vtok > self.vm_done: p.append(f"vmcnt({min(self.vm_issued - vtok, 63)})")
        if ltok is not None and ltok > self.lg_done: p.append(f"lgkmcnt({min(self.lg_issued - ltok, 15)})")
        if p: self("s_waitcnt " + " ".join(p))
    def state(self):
        return (self.vm_issued, self.vm_done, self.lg_issued, self.lg_done)
    def set_state(self, st):
        self.vm_issued, self.vm_done, self.lg_issued, self.lg_done = st

    def finish(self):
        W = 24
        out = []
        hist = []
        saved = {}
        nops = 0
        back = {}
        for it in range(2):
            out = []; hist = []; saved = {k: list(vv) for k, vv in back.items()}; nops = 0
            seen = set()
            for x in self.ins:
                if x.is_label:
                    name = x.text.strip()[:-1]
                    seen.add(name)
                    for h in saved.get(name, []):
                        hist = hist + h
                    out.append(x)
                    continue
                if x.kind == "none":
                    out.append(x); continue
                req = 0
                for p, d in hist:
                    r = need(p, x) - d
                    if r > req: req = r
                while req > 0:
                    n = min(req, 16)
                    nop = Ins(f"s_nop {n-1}")
                    out.append(nop); nops += 1
                    hist = [(p, d + n) for p, d in hist if d + n < W]
                    req -= n
                out.append(x)
                hist = [(p, d + x.states) for p, d in hist if d + x.states < W]
                hist.append((x, 0))
                if x.kind == "branch":
                    if x.target in seen:
                        back.setdefault(x.target, [])
                        if it == 0: back[x.target].append(list(hist))
                    else:
                        saved.setdefault(x.target, []).append(list(hist))
                    if x.op == "s_branch": hist = []
                if x.op == "s_endpgm": hist = []
        self.nops = nops
        lines = []
        for x in out:
            if x.is_label or x.kind == "none": lines.append(x.text)
            else: lines.append("    " + x.text)
        return "\n".join(lines) + "\n"
```

```python
import sys, math, struct
sys.path.insert(0, "gen")
from emit import *

NAME = "parallel_sum__ssm_conv_s5__mixer_channel_mlp__prompt_kernel"
WS_EPOCH = 0
WS_FB = 0x1000
WS_FA = 0x11000
WS_AGG = 0x31000
WS_STG = 0x59000
WS_WSG = 0x61000
WS_B2S = [0x70000, 0x200000]
WS_A2 = [0x400000, 0x900000]
WS_PART = 0xF00000
WS_TS = 0x1400000
WS_SIZE = 0x1500000
FLS = 64
S_W = 3
SRD_X, SRD_W, SRD_WS, SRD_OUT, SRD_T1, SRD_T2 = 4, 8, 12, 16, 20, 24
S_TAG, S_TAG2, S_I, S_J, S_PAT = 28, 29, 30, 31, 32
S_PW = 33
S_FLAG = 34
S_OUT = 35
S_XO = 36
S_WO = 40
S_MX, S_MW = 45, 46
S_B2 = 47
S_T = 48
P0 = 64
def ptr(n): return s(P0 + 2*n, 2)
S_PAT32 = P0 + 18
S_NM = P0 + 19
S_WRAP, S_ST1, S_ST2 = 2, 0, 1
S_TS = 98
S_ST1K, S_ST2K = P0 + 2, P0 + 3
LOG2E = 1.4426950408889634
EPS = 1e-5
def fbits(x): return "0x%08x" % struct.unpack("<I", struct.pack("<f", x))[0]
POLL_MAX = 100000
LDS_RED = 16384
RED_RS = 336
RED_W = 64 * RED_RS
L_R = 106496
WS4 = s(SRD_WS, 4)
NOP = lambda: None
PAD = object()
class W2(str):
    pass

ST = dict(E=200, CH=201, PUB=202, TB=203, GA=204, VA=205, QE=206, CW=207, CR=208, TW=209, TR=210, PAT=211,
          RD=212, ROW=236, C4=241, RW=246)
S_MK = 68
S_FAP, S_RECV, S_SEND = 95, 88, 96
ST_M = 240
S_AG1, S_AG4, S_A2B, S_RX, S_RL, S_RJ = 78, 79, 84, 85, 86, 87
class C5:
    def __init__(self, re, im=None, st=1):
        self.re = re; self.im = re + 1 if im is None else im; self.st = 2 if im is None else st
    def r(self, b): return self.re + self.st*b
    def i(self, b): return self.im + self.st*b

class G:
    def __init__(self, stop=None, ts=False, spin=0, seg=None, opt=()):
        self.k = Emit(); self.slow = []; self.stop = stop; self.ts = ts; self.spin = spin; self.seg = seg; self.opt = set(opt)

    def P(self, name, default):
        for o in self.opt:
            if o.startswith(name + "="): return float(o.split("=")[1])
        return default
    def stamp(self, idx):
        k = self.k
        if self.seg == idx:
            k("s_memrealtime s[98:99]\ns_waitcnt lgkmcnt(0)\ns_sub_u32 s101, s98, s100")
        if not self.ts: return
        k(f"{'s_memtime' if 'cyc' in self.opt else 's_memrealtime'} {s(S_TS,2)}")
        k("s_waitcnt lgkmcnt(0)")
        k(f"v_writelane_b32 v255, s{S_TS}, {idx}")
    def fine(self, idx):
        if 'fine' in self.opt: self.stamp(idx)
    def fine3(self):
        if 'fine3' in self.opt:
            self.stamp(16 + self.nf3); self.nf3 += 1
    def fine2(self):
        if 'fine2' in self.opt:
            self.stamp(16 + self.nf2); self.nf2 += 1
    def stamp_flush(self):
        if not self.ts: return
        self.k(f"""s_lshl_b32 s{S_T}, s99, 2
        v_readlane_b32 s{S_T}, v255, 63
        s_nop 3
        s_lshl_b32 s{S_T}, s{S_T}, 2
        s_add_u32 s{S_T}, s{S_T}, s{S_W}
        s_lshl_b32 s{S_T}, s{S_T}, 8
        s_add_u32 s{S_T}, s{S_T}, {WS_TS}
        v_mbcnt_lo_u32_b32 v254, -1, 0
        v_mbcnt_hi_u32_b32 v254, -1, v254
        v_lshlrev_b32 v254, 2, v254
        buffer_store_dword v255, v254, {WS4}, s{S_T} offen""")
    def early_stop(self, name):
        if self.stop != name: return False
        self.k("s_waitcnt vmcnt(0)"); self.stamp(13); self.stamp_flush(); self.k("s_endpgm")
        return True

    def srd(self, base, pn, size):
        self.k(f"""s_mov_b32 s{base}, s{P0+2*pn}
        s_and_b32 s{base+1}, s{P0+2*pn+1}, 0xffff
        s_mov_b32 s{base+2}, {size}
        s_mov_b32 s{base+3}, 0x20000""")
    def verify(self, check, reload, name, checked=False):
        k = self.k
        slow = k.newlabel(name); done = k.newlabel(name + "d")
        if not checked: check()
        k(f"s_cbranch_vccnz {slow}")
        k.label(done)
        self.slow.append((slow, done, check, reload))
    def flush_slow(self):
        k = self.k
        for slow, done, check, reload in self.slow:
            top = k.newlabel(slow + "t")
            k.label(slow)
            if self.ts:
                bit = {'pb': 1, 'pg': 2, 'ps': 2, 'pc': 4, 'va': 8, 'fa': 16, 'pp': 32, 'pe': 64}[slow[:2]]
                k(f"v_readlane_b32 s{S_T+15}, v255, 15\ns_nop 3\ns_or_b32 s{S_T+15}, s{S_T+15}, {bit}\nv_writelane_b32 v255, s{S_T+15}, 15")
            k(f"s_mov_b32 s{S_T+15}, {POLL_MAX}")
            k.label(top)
            reload()
            check()
            k(f"""s_cbranch_vccz {done}
            s_sub_u32 s{S_T+15}, s{S_T+15}, 1
            s_cmp_lg_u32 s{S_T+15}, 0
            s_cbranch_scc1 {top}
            s_branch {done}""")
        self.slow = []
    def set_flag(self, soff, vtmp, off=0):
        return self.k(f"""v_mov_b32 v{vtmp}, s{S_TAG}
        s_mov_b64 exec, 1
        buffer_store_dword v{vtmp}, off, {WS4}, s{soff} offset:{off} sc1
        s_mov_b64 exec, -1""")
    def capture(self, fn):
        real = self.k; rec = Emit(); rec._lab = real._lab
        self.k = rec
        try: fn(rec)
        finally: self.k = real
        L = [x.text for x in rec.ins]
        assert all(x.kind in ("salu", "valu", "trans") and not x.op.startswith("s_waitcnt") for x in rec.ins)
        out = []; i = 0
        while i < len(L):
            if L[i].startswith(("s_cmp", "s_bitcmp")):
                j = i + 1; last = i
                while j < len(L) and L[j].startswith(("s_cselect", "s_mov")):
                    if L[j].startswith("s_cselect"): last = j
                    j += 1
                out.append("\n".join(L[i:last+1])); i = last + 1
            else:
                out.append(L[i]); i += 1
        return out
    def emit(self, L):
        for x in L:
            x() if callable(x) else self.k(x)
    def sprinkle(self, work, q, lead=0):
        k = self.k; q = list(q); n0 = len(q); masked = False
        for i, w_ in enumerate(work):
            self.emit([w_])
            if isinstance(w_, str):
                if w_.startswith(("s_mov_b32 exec", "s_mov_b64 exec, s")) or "s_cselect_b64 exec" in w_: masked = True
                if w_.startswith("s_mov_b64 exec, -1"): masked = False
            while q and not masked and i >= lead and (n0 - len(q) + 1)*(len(work) - lead) <= (i - lead + 1)*(n0 + 1) + n0:
                q.pop(0)()
        for f in q: f()
    def cpow(self, dre, dim, n, zr, zi, t):
        return [f"v_mul_f32 v{t}, {n}, v{zi}", f"v_mul_f32 v{dre}, {n}, v{zr}", f"v_fract_f32 v{t}, v{t}",
                f"v_exp_f32 v{dre}, v{dre}", f"v_sin_f32 v{dim}, v{t}", f"v_cos_f32 v{t}, v{t}",
                f"v_mul_f32 v{dim}, v{dim}, v{dre}", f"v_mul_f32 v{dre}, v{t}, v{dre}"]
    def cmul5(self, d, x, y, c=None):
        L = []
        for b in range(5):
            L.append(f"v_mul_f32 v{d.r(b)}, v{x.r(b)}, v{y.r(b)}" if c is None else f"v_fma_f32 v{d.r(b)}, v{x.r(b)}, v{y.r(b)}, v{c.r(b)}")
            L.append(f"v_mul_f32 v{d.i(b)}, v{x.r(b)}, v{y.i(b)}" if c is None else f"v_fma_f32 v{d.i(b)}, v{x.r(b)}, v{y.i(b)}, v{c.i(b)}")
        for b in range(5):
            L.append(f"v_fma_f32 v{d.r(b)}, -v{x.i(b)}, v{y.i(b)}, v{d.r(b)}")
            L.append(f"v_fma_f32 v{d.i(b)}, v{x.i(b)}, v{y.r(b)}, v{d.i(b)}")
        return L
    def div20(self, q, r, x):
        return [f"v_mul_u32_u24 v{q}, 3277, v{x}", f"v_lshrrev_b32 v{q}, 16, v{q}", f"v_mul_u32_u24 v{r}, 20, v{q}", f"v_sub_u32 v{r}, v{x}, v{r}"]

    def prologue(self):
        k = self.k
        k(f"""s_cmp_ge_u32 s2, 256
        s_cbranch_scc1 L_end""")
        if self.spin: k("s_memrealtime s[100:101]")
        if 'align' in self.opt:
            k("""s_memrealtime s[98:99]
            s_waitcnt lgkmcnt(0)
            s_add_u32 s100, s98, 300
            s_and_b32 s100, s100, 0xfffffc00
            s_add_u32 s100, s100, 1024""")
            k.label("L_align")
            k("""s_memrealtime s[98:99]
            s_waitcnt lgkmcnt(0)
            s_cmp_lt_u32 s98, s100
            s_cbranch_scc1 L_align""")
        k(f"""s_load_dwordx16 {s(P0,16)}, s[0:1], 0
        s_load_dwordx16 {s(P0+16,16)}, s[0:1], 64
        s_load_dwordx2 {s(P0+32,2)}, s[0:1], 128""")
        if 'nopf' not in self.opt:
            k(f"""s_getpc_b64 {s(S_T,2)}""")
            k.label("L_pc")
            k(f"""s_bitcmp{0 if 'mfirst' in self.opt else 1}_b32 s2, 0
            s_cselect_b32 s{S_T+2}, L_second-L_pc, 0
            s_add_u32 s{S_T}, s{S_T}, s{S_T+2}
            s_addc_u32 s{S_T+1}, s{S_T+1}, 0
            s_lshr_b32 s{S_T+2}, s2, 3
            s_lshl_b32 s{S_T+2}, s{S_T+2}, 10
            v_lshl_add_u32 v254, v0, 2, s{S_T+2}
            v_min_u32 v254, L_end-L_second, v254
            global_load_dword v254, v254, {s(S_T,2)}""")
        k(f"s_bitcmp{0 if 'mfirst' in self.opt else 1}_b32 s2, 0\ns_cbranch_scc1 L_second")
        self.LV = 252; self.PV = 253

    def common_a(self):
        k = self.k
        if self.ts: k("v_mov_b32 v255, 0\nv_writelane_b32 v255, s2, 63")
        k(f"""v_lshrrev_b32 v1, 6, v0
        v_and_b32 v0, 63, v0
        v_readfirstlane_b32 s{S_W}, v1
        s_bfe_u32 s{S_T}, s2, 0x20001
        s_lshr_b32 s{S_T+1}, s2, 6           ; c = id>>6
        s_lshl_b32 s{S_I}, s{S_T+1}, 2
        s_add_u32 s{S_I}, s{S_I}, s{S_T}
        s_bfe_u32 s{S_J}, s2, 0x30003        ; j = (id>>3)&7
        s_lshl_b32 s{S_T}, s{S_I}, 3
        s_add_u32 s{S_T}, s{S_T}, s{S_J}
        s_lshl_b32 s{S_T}, s{S_T}, 2
        s_add_u32 s{S_PW}, s{S_T}, s{S_W}    ; (i*8+j)*4+w
        s_lshl_b32 s{S_FLAG}, s{S_PW}, 6
        s_lshl_b32 s{S_MX}, s{S_W}, 12
        s_lshl_b32 s{S_T+2}, s{S_I}, 7
        s_lshl_b32 s{S_T+3}, s{S_W}, 5
        s_add_u32 s{S_T+2}, s{S_T+2}, s{S_T+3}
        s_mul_i32 s{S_XO}, s{S_T+2}, 1280
        v_lshrrev_b32 v11, 4, v0                 ; g
        v_and_b32 v13, 7, v0
        v_xor_b32 v12, v13, v11
        v_lshlrev_b32 v12, 4, v12
        v_lshrrev_b32 v3, 3, v0
        v_mul_u32_u24 v3, 1280, v3
        v_lshl_add_u32 v253, v13, 4, v3          ; (l>>3)*1280 + (l&7)*16
        v_add_u32 v3, v3, v12                    ; (l>>3)*1280 + swz
        v_lshlrev_b32 v252, 4, v0
        """)
    def common_b(self):
        k = self.k
        k("s_waitcnt lgkmcnt(0)")
        if self.spin: k("s_mov_b32 s101, 0")
        k(f"s_load_dword s{S_TAG}, {ptr(16)}, {WS_EPOCH}")
        k(f"""s_mov_b32 s{SRD_X}, s{P0}
        s_mov_b32 s{SRD_X+1}, s{P0+1}
        s_mov_b32 s{SRD_X+2}, 2621440
        s_mov_b32 s{SRD_X+3}, 0x20000
        s_mov_b32 s{SRD_WS}, s{P0+32}
        s_mov_b32 s{SRD_WS+1}, s{P0+33}
        s_mov_b32 s{SRD_WS+2}, {WS_SIZE}
        s_mov_b32 s{SRD_WS+3}, 0x20000""")

    def make_tag(self):
        self.k(f"""s_waitcnt lgkmcnt(0)
        s_bitcmp1_b32 s{S_TAG}, 0
        s_cselect_b32 s{S_PAT}, 0x10000, 1        ; payload tag bits alternate from launch to launch
        s_cselect_b32 s{S_PAT32}, 2, 1
        s_mul_i32 s{S_TAG}, s{S_TAG}, 0x9E3779B1
        s_add_u32 s{S_TAG}, s{S_TAG}, 0x7F4A7C15
        s_and_b32 s{S_TAG}, s{S_TAG}, 0xfffefffc
        s_or_b32 s{S_TAG}, s{S_TAG}, s{S_PAT}
        s_or_b32 s{S_TAG}, s{S_TAG}, s{S_PAT32}
        s_xor_b32 s{S_TAG2}, s{S_TAG}, 0x5bd1e995
        s_brev_b32 s{S_TAG2}, s{S_TAG2}
        s_mov_b32 s{S_NM}, 0xfffefffe""")

    def rowstat_setup(self, s_row, s_cl, va, vr):
        self.k(f"""v_min_u32 v{vr}, s{s_cl}, v11
        v_mul_u32_u24 v{va}, 1280, v{vr}
        v_and_b32 v13, 15, v0
        v_lshl_add_u32 v{va}, v13, 4, v{va}
        v_lshlrev_b32 v{vr}, 4, v{vr}
        s_mul_i32 s{s_row}, s{s_row}, 1280""")
    def rowstat_loads(self, srd, s_row, va, R0):
        L = []
        for q in range(5):
            def f(q=q): self.rs_tok[q] = self.k(f"buffer_load_dwordx4 {v(R0+4*q,4)}, v{va}, {s(srd,4)}, s{s_row} offen offset:{256*q}")
            L.append(f)
        self.rs_tok = {}
        return L
    def rowstat_fill(self, R0, A0, T0, vr, s_dst, sq=True):
        k = self.k; L = []
        for q in range(20):
            if q % 4 == 0: L.append(lambda q=q: k.wait_vm(self.rs_tok[q//4]))
            t0, t1 = T0 + 2*(q % 2), T0 + 2*(q % 2) + 1
            L += [f"v_lshlrev_b32 v{t0}, 16, v{R0+q}", f"v_and_b32 v{t1}, 0xffff0000, v{R0+q}"]
            if q == 0: L += [f"v_add_f32 v{A0}, v{t0}, v{t1}", f"v_mul_f32 v{A0+2}, v{t0}, v{t0}", f"v_fmac_f32 v{A0+2}, v{t1}, v{t1}"]
            else: L += [f"v_add_f32 v{A0}, v{A0}, v{t0}", f"v_fmac_f32 v{A0+2}, v{t0}, v{t0}", f"v_add_f32 v{A0}, v{A0}, v{t1}", f"v_fmac_f32 v{A0+2}, v{t1}, v{t1}"]
        L += [f"v_mov_b32 v{A0+1}, s{S_TAG}", f"v_mov_b32 v{A0+3}, s{S_TAG2}"]
        for r in (8, 4, 2, 1):
            L += [f"v_add_f32_dpp v{A0}, v{A0}, v{A0} row_ror:{r} row_mask:0xf bank_mask:0xf", f"v_add_f32_dpp v{A0+2}, v{A0+2}, v{A0+2} row_ror:{r} row_mask:0xf bank_mask:0xf"]
        if not sq: L = [x for x in L if callable(x) or not x.split(",")[0].endswith((f"v{A0+2}", f"v{A0+3}"))]
        L.append(lambda: k(f"""s_mov_b32 exec_lo, 0x00010001
        s_mov_b32 exec_hi, 0x00010001
        buffer_store_dwordx{4 if sq else 2} {v(A0,4 if sq else 2)}, v{vr}, {WS4}, s{s_dst} offen sc1
        s_mov_b64 exec, -1"""))
        return L
    def rowstat_batch(self, R0, A0, vr, s_dst, sq=True):
        k = self.k
        k.wait_vm(self.rs_tok[4])
        k(f"s_mov_b32 s{S_T+4}, 0x3f803f80\nv_mov_b32 v{A0+1}, s{S_TAG}")
        if sq: k(f"v_mov_b32 v{A0+3}, s{S_TAG2}")
        for q in range(20):
            k(f"v_dot2_f32_bf16 v{A0}, v{R0+q}, s{S_T+4}, {'0' if q == 0 else v(A0)}")
            if sq: k(f"v_dot2_f32_bf16 v{A0+2}, v{R0+q}, v{R0+q}, {'0' if q == 0 else v(A0+2)}")
        for r in (8, 4, 2, 1):
            k(f"v_add_f32_dpp v{A0}, v{A0}, v{A0} row_ror:{r} row_mask:0xf bank_mask:0xf")
            if sq: k(f"v_add_f32_dpp v{A0+2}, v{A0+2}, v{A0+2} row_ror:{r} row_mask:0xf bank_mask:0xf")
        k(f"""s_mov_b32 exec_lo, 0x00010001
        s_mov_b32 exec_hi, 0x00010001
        buffer_store_dwordx{4 if sq else 2} {v(A0,4 if sq else 2)}, v{vr}, {WS4}, s{s_dst} offen sc1
        s_mov_b64 exec, -1""")
    @staticmethod
    def cost(x):
        if callable(x): return 1
        if x.startswith(("v_exp", "v_rcp", "v_rsq", "v_sin", "v_cos")): return 2
        return 1
    def take_fill(self, fq, n, cap):
        out = []
        while fq:
            x = fq[0]
            if isinstance(x, tuple):
                if x[0] == 'at':
                    if n < x[1]: break
                    fq.pop(0); continue
                if x[0] == 'mark':
                    self.marks[x[1]] = n; fq.pop(0); continue
            c = self.cost(x)
            if cap <= 0 or (c > cap and out): break
            cap -= c; out.append(fq.pop(0))
        return out
    def dma_reset(self):
        self.m0 = None; self.vstage = {}; self.sstage = 0
    def ropt(self):
        pre = 'm_' if self.has_w else 's_'
        own = {x[2:] for x in self.opt if x.startswith(pre)}
        return own or self.opt
    def tile_of(self, t, dst):
        o = self.ropt(); r = S_WRAP
        if 'blk4' in o:
            if t < 8: return f"s_add_u32 s{dst}, s{r}, {t}\ns_and_b32 s{dst}, s{dst}, 3\ns_or_b32 s{dst}, s{dst}, {t & ~3}"
            return f"s_and_b32 s{dst}, s{r}, 1\ns_xor_b32 s{dst}, s{dst}, {t}"
        if 'blk5' in o:
            return f"s_add_u32 s{dst}, s{r}, {t % 5}\ns_cmp_ge_u32 s{dst}, 5\ns_cselect_b32 s{S_ST2K}, 5, 0\ns_sub_u32 s{dst}, s{dst}, s{S_ST2K}\ns_add_u32 s{dst}, s{dst}, {t - t % 5}"
        if 'rotlat' in o:
            return f"s_add_u32 s{dst}, s{r}, {t}\ns_cmp_ge_u32 s{dst}, 10\ns_cselect_b32 s{S_ST2K}, 10, 0\ns_sub_u32 s{dst}, s{dst}, s{S_ST2K}"
        return f"s_xor_b32 s{dst}, s{r}, {t}"
    def rot_setup(self, regs128, regsW):
        k = self.k; o = self.ropt(); r = S_WRAP
        k(f"s_lshr_b32 s{S_T}, s{S_I}, 2")
        if 'rot0' in o: k(f"s_mov_b32 s{r}, 0")
        elif 'blk4' in o: k(f"s_add_u32 s{r}, s{S_T}, s{S_J}\ns_and_b32 s{r}, s{r}, 3")
        elif 'blk5' in o: k(f"s_add_u32 s{r}, s{S_T}, s{S_J}\ns_and_b32 s{r}, s{r}, 3")
        elif 'rotlat' in o: k(f"s_lshl_b32 s{S_T}, s{S_T}, 1\ns_add_u32 s{S_T}, s{S_T}, s{S_J}\ns_and_b32 s{S_T}, s{S_T}, 7\ns_mul_i32 s{S_T}, s{S_T}, 5\ns_lshr_b32 s{r}, s{S_T}, 2")
        else: k(f"s_add_u32 s{r}, s{S_T}, s{S_J}\ns_and_b32 s{r}, s{r}, 1")
        k(f"s_mov_b32 s{S_ST1}, s{r}\ns_lshl_b32 s{S_ST2}, s{r}, 7")
        for x in regs128: k(f"v_add_u32 v{x}, s{S_ST2}, v{x}")
        if regsW: k(f"s_mul_i32 s{S_ST2}, s{S_ST2}, 1536")
    def dma(self, m0, ld, vreg=None, t=0, step=0):
        k = self.k
        def pre():
            if self.m0 != m0:
                k(f"s_add_u32 m0, s{m0[0]}, {m0[1]}"); self.m0 = m0
            if vreg is not None and self.vstage.get(vreg, 0) != t:
                assert self.vstage.get(vreg, 0) == t - 1
                if self.sstage != t:
                    k(self.tile_of(t, S_ST2))
                    k(f"s_sub_u32 s{S_ST1K}, s{S_ST2}, s{S_ST1}\ns_mov_b32 s{S_ST1}, s{S_ST2}\ns_lshl_b32 s{S_ST1K}, s{S_ST1K}, 7")
                    if self.has_w: k(f"s_mul_i32 s{S_ST2K}, s{S_ST1K}, 1536")
                    self.sstage = t
                k(f"v_add_u32 v{vreg}, s{S_ST1K if step == 128 else S_ST2K}, v{vreg}"); self.vstage[vreg] = t
        return pre, ld

    def unit_decode(self, nunits, U):
        self.k(f"""s_sub_u32 s{S_T}, s{S_PW}, {nunits}
        s_cmp_lt_u32 s{S_PW}, {nunits}
        s_cselect_b32 s{U}, s{S_PW}, s{S_T}
        s_mul_i32 s{S_T+2}, s{U}, 6554
        s_lshr_b32 s{S_T+2}, s{S_T+2}, 16
        s_mul_i32 s{S_T}, s{S_T+2}, 10
        s_sub_u32 s{S_T}, s{U}, s{S_T}""")

    def b2_setup(self, side):
        k = self.k; vl = self.PV
        S = [40, 48][side]; KS = [10, 12][side]
        if side == 0:
            V = f"""v_min_u32 v{vl}, 14, v0
            v_mul_u32_u24 v{vl+1}, 86, v{vl}
            v_lshrrev_b32 v{vl+1}, 8, v{vl+1}
            v_mul_u32_u24 v{vl+1}, 7, v{vl+1}
            v_add_lshl_u32 v{vl}, v{vl}, v{vl+1}, 6"""
            L = f"""s_mul_i32 s{S_T+12}, s{S_W}, 10
            s_lshr_b32 s{S_T+12}, s{S_T+12}, 2
            s_mul_i32 s{S_T+3}, s{S_J}, 50"""
        else:
            V = f"""v_min_u32 v{vl}, 23, v0
            v_lshrrev_b32 v{vl+1}, 1, v{vl}
            v_lshlrev_b32 v{vl+1}, 3, v{vl+1}
            v_add_lshl_u32 v{vl}, v{vl}, v{vl+1}, 6"""
            L = f"""s_mul_i32 s{S_T+12}, s{S_W}, 120
            s_mul_i32 s{S_T+3}, s{S_J}, 5
            s_lshr_b32 s{S_T+3}, s{S_T+3}, 2"""
        k(L + f"""
        s_add_u32 s{S_T+12}, s{S_T+12}, s{S_T+3}
        s_lshl_b32 s{S_T+12}, s{S_T+12}, 6
        s_add_u32 s{S_T+12}, s{S_T+12}, {WS_FB + side*512*FLS}
        s_mul_i32 s{S_B2}, s{S_J}, {5*S}
        s_mul_i32 s{S_T+3}, s{S_W}, {KS}
        s_add_u32 s{S_B2}, s{S_B2}, s{S_T+3}
        s_lshl_b32 s{S_B2}, s{S_B2}, 10
        s_add_u32 s{S_B2}, s{S_B2}, {WS_B2S[side]}""")
        self.order = [[0, 5, 1, 6, 2, 7, 3, 8, 4, 9], [0, 3, 6, 9, 1, 4, 7, 10, 2, 5, 8, 11]][side]
        self.b2tok = {}; self.b2q = []
        for ss in self.order:
            for cc in range(5):
                def ld(ss=ss, cc=cc):
                    k = self.k
                    k(f"s_add_u32 s{P0+30}, s{S_B2}, {(cc*S + ss)*1024}")
                    self.b2tok[ss, cc] = k(f"buffer_load_dwordx4 {a((ss*5+cc)*4,4)}, v{self.LV}, {WS4}, s{P0+30} offen sc1")
                self.b2q.append(ld)
        return [x.strip() for x in V.split("\n")]
    def touch(self, side, vt):
        k = self.k
        nx = 20; nw = [25, 30][side]
        def f1():
            k(f"""s_add_u32 s{S_T}, s{S_PW}, {512*side}
            s_mul_i32 s{S_T}, s{S_T}, {nx*128}
            v_min_u32 v{vt}, {nx-1}, v0
            v_lshlrev_b32 v{vt}, 7, v{vt}
            buffer_load_dword v{vt}, v{vt}, {s(SRD_X,4)}, s{S_T} offen""")
        def f2():
            if side == 0: k(f"s_lshr_b32 s{S_T}, s{S_PW}, 2\ns_lshl_b32 s{S_T}, s{S_T}, 1\ns_and_b32 s{S_T+1}, s{S_W}, 1\ns_add_u32 s{S_T}, s{S_T}, s{S_T+1}")
            else: k(f"s_mov_b32 s{S_T}, s{S_PW}")
            k(f"""s_mul_i32 s{S_T}, s{S_T}, {nw*128}
            v_min_u32 v{vt+1}, {nw-1}, v0
            v_lshlrev_b32 v{vt+1}, 7, v{vt+1}
            buffer_load_dword v{vt+1}, v{vt+1}, {s(SRD_W,4)}, s{S_T} offen""")
        def f3():
            k(f"""v_min_u32 v{vt}, 9, v0
            v_lshlrev_b32 v{vt}, 21, v{vt}
            v_min_u32 v{vt+1}, 2, v0
            v_lshlrev_b32 v{vt+1}, 21, v{vt+1}
            buffer_load_dword v{vt}, v{vt}, {WS4}, 0 offen offset:2048
            global_load_dword v{vt+1}, v{vt+1}, {ptr(14)}""")
            if side == 0:
                k(f"""v_mov_b32 v{vt-2}, 0
                global_load_dword v{vt-1}, v{vt-2}, {ptr(8)}
                global_load_dword v{vt-2}, v{vt-2}, {ptr(13)}""")
        if 'tlb' in self.opt: return [f3]
        return [f1, f2] if 'touch' in self.opt else []
    def b2_take(self, n):
        out = self.b2q[:n]; self.b2q = self.b2q[n:]
        return out
    def b2_poll(self):
        self.pbtok = self.k(f"buffer_load_dword v254, v{self.PV}, {WS4}, s{S_T+12} offen sc1")
    def b2_check(self):
        k = self.k
        k.wait_vm(self.pbtok)
        def rl(): k(f"buffer_load_dword v254, v{self.PV}, {WS4}, s{S_T+12} offen sc1\ns_waitcnt vmcnt(0)")
        self.verify(lambda: k(f"v_cmp_ne_u32 vcc, s{S_TAG}, v254"), rl, "pb")

    TB_RS = 184
    def ssm(self):
        k = self.k
        ACC = 16; FR = [96, 144]
        XE, XO, WA, WB = 1, 2, 3, 4
        PV = self.PV; LV = self.LV; RS = self.TB_RS
        STG0, STGS = 16384, 36864
        S_RSROW, SW0, S_GW, S_GT, D2, S_RSDST, S_FB = S_T+5, S_T+6, S_T+8, S_T+9, S_T+10, S_T+13, S_T+14
        acc = lambda a_, tt: ACC + (a_*10 + tt)*4
        k.c("================ SSM side, phase 1")
        self.common_a()
        self.nf3 = 0; self.marks = {}
        k(f"""v_lshrrev_b32 v13, 3, v0
        v_and_b32 v13, 3, v13
        v_lshrrev_b32 v15, 5, v0
        v_lshl_add_u32 v13, v15, 3, v13
        v_mul_u32_u24 v{XE}, 1280, v13
        v_add_u32 v{XE}, v{XE}, v12
        v_xor_b32 v{XO}, 64, v{XE}
        s_and_b32 s{S_T+4}, s{S_W}, 1
        s_lshl_b32 s{S_T+1}, s{S_T+4}, 6
        v_xor_b32 v{WA}, s{S_T+1}, v{WA}
        v_xor_b32 v{WB}, 64, v{WA}
        s_add_u32 s{S_XO+1}, s{S_XO}, {16*1280 - 1024}
        s_add_u32 s{S_XO+2}, s{S_XO}, {4*1280 - 2048}
        s_add_u32 s{S_XO+3}, s{S_XO}, {20*1280 - 3072}""")
        stage_tok = {}; stage_cnt = {}
        self.dma_reset(); self.has_w = False
        self.rot_setup([XE, XO, WA, WB], False)
        self.common_b()
        self.stamp(0); self.fine3()
        def dma_list(t):
            base = STG0 + (t % 4)*STGS
            L = []
            def mk(ld):
                def f():
                    stage_tok[t] = k(ld); stage_cnt[t] = stage_cnt.get(t, 0) + 1
                return f
            for e in range(4):
                vr = XE if e % 2 == 0 else XO
                L.append(self.dma((S_MX, base), mk(f"buffer_load_dwordx4 v{vr}, {s(SRD_X,4)}, s{S_XO+e} offen offset:{e*1024} lds"), vr, t, 128))
            for e in range(5):
                vr = WA if e % 2 == 0 else WB
                L.append(self.dma((S_MW, base + 16384 + (e//4)*4096), mk(f"buffer_load_dwordx4 v{vr}, {s(SRD_W,4)}, s{S_WO+e} offen offset:{(e%4)*1024} lds"), vr, t, 128))
            return L
        d0 = dma_list(0)
        for p in d0[:4]: self.emit(p)
        k(f"""s_cmp_lt_u32 s{S_W}, 2
        s_cselect_b32 s{SRD_W}, s{P0+6}, s{P0+8}
        s_cselect_b32 s{SRD_W+1}, s{P0+7}, s{P0+9}
        s_mov_b32 s{SRD_W+2}, 819200
        s_mov_b32 s{SRD_W+3}, 0x20000
        s_mul_i32 s{S_T+7}, s{S_J}, 80
        s_mul_i32 s{S_T+3}, s{S_T+4}, 40
        s_add_u32 s{S_T+2}, s{S_T+7}, s{S_T+3}
        s_mul_i32 s{S_WO}, s{S_T+2}, 1280
        s_add_u32 s{S_WO+1}, s{S_WO}, {8*1280 - 1024}
        s_add_u32 s{S_WO+2}, s{S_WO}, {16*1280 - 2048}
        s_add_u32 s{S_WO+3}, s{S_WO}, {24*1280 - 3072}
        s_add_u32 s{S_WO+4}, s{S_WO}, {32*1280}
        s_mul_i32 s{S_MW}, s{S_W}, 5120""")
        self.emit(d0[4])
        VLR, VLI, VDT, ZR, ZI, VT, VP, TA, TB_ = 218, 219, 220, 221, 222, 223, 224, 225, 226
        self.emit(self.div20(VT, VP, 0))
        k(f"""s_mul_i32 s{S_T+1}, s{S_W}, 20
        v_add_u32 v{VP}, s{S_T+1}, v{VP}
        v_add_lshl_u32 v{VDT}, v{VP}, s{S_T+7}, 1""")
        def vec():
            k(f"global_load_ushort v{VLR}, v{VDT}, {ptr(1)}\nglobal_load_ushort v{VLI}, v{VDT}, {ptr(2)}")
            self.vec_tok = k(f"global_load_ushort v{VDT}, v{VDT}, {ptr(7)}")
        d1 = dma_list(1)
        R0, A0, T0 = 192, 212, 227
        rs = self.rowstat_loads(SRD_T1, S_RSROW, 15, R0)
        def setup(k):
            k(f"""s_cmp_lt_u32 s{S_I}, 8
            s_cselect_b32 s{SRD_T1}, s{P0+6}, s{P0+8}
            s_cselect_b32 s{SRD_T1+1}, s{P0+7}, s{P0+9}
            s_mov_b32 s{SRD_T1+2}, 819200
            s_mov_b32 s{SRD_T1+3}, 0x20000
            s_mul_i32 s{S_T+4}, s{S_W}, 3
            s_and_b32 s{S_T+2}, s{S_I}, 7
            s_mul_i32 s{S_T+2}, s{S_T+2}, 10
            s_add_u32 s{S_T+2}, s{S_T+2}, s{S_T+7}
            s_add_u32 s{S_RSROW}, s{S_T+2}, s{S_T+4}     ; rows 80j + 10(i%8) + 3w + ..
            s_mul_i32 s{S_T+3}, s{S_J}, 160
            s_mul_i32 s{S_T+6}, s{S_I}, 10
            s_add_u32 s{S_T+3}, s{S_T+3}, s{S_T+6}
            s_add_u32 s{S_T+3}, s{S_T+3}, s{S_T+4}
            s_lshl_b32 s{S_T+3}, s{S_T+3}, 4
            s_add_u32 s{S_RSDST}, s{S_T+3}, {WS_WSG}
            s_cmp_eq_u32 s{S_W}, 3
            s_cselect_b32 s{S_T+1}, 0, 2""")

            self.rowstat_setup(S_RSROW, S_T+1, 15, 14)

            self.unit_decode(400, S_FB)
            k(f"""s_mul_i32 s{S_T+1}, s{S_T+2}, {16*1280}
            s_lshl_b32 s{S_T+3}, s{S_T}, 7
            s_add_u32 s{SW0}, s{S_T+1}, s{S_T+3}
            s_add_u32 s{SW0+1}, s{SW0}, {8*1280 - 1024}
            s_mul_i32 s{S_T+3}, s{S_T+2}, 40
            s_lshl_b32 s{S_T+4}, s{S_T}, 2
            s_add_u32 s{S_T+3}, s{S_T+3}, s{S_T+4}
            s_lshl_b32 s{S_T+3}, s{S_T+3}, 10
            s_add_u32 s{D2}, s{S_T+3}, {WS_B2S[0]}
            s_lshl_b32 s{S_FB}, s{S_FB}, 6
            s_add_u32 s{S_FB}, s{S_FB}, {WS_FB}
            s_mul_i32 s{S_GW}, s{S_J}, 2560
            s_mul_i32 s{S_T}, s{S_W}, 640
            s_add_u32 s{S_GW}, s{S_GW}, s{S_T}
            s_add_u32 s{S_GW}, s{S_GW}, {WS_WSG}
            s_lshl_b32 s{S_GT}, s{S_I}, 11
            s_lshl_b32 s{S_T}, s{S_W}, 9
            s_add_u32 s{S_GT}, s{S_GT}, s{S_T}
            s_add_u32 s{S_GT}, s{S_GT}, {WS_STG}
            v_and_b32 v11, 15, v0
            v_lshrrev_b32 v12, 4, v0
            v_lshrrev_b32 v13, 1, v11
            v_xor_b32 v13, v13, v12
            v_lshlrev_b32 v13, 4, v13
            v_lshl_add_u32 v13, v11, 7, v13
            v_add_u32 v5, {STG0}, v13
            v_add_u32 v5, s{S_MX}, v5
            v_xor_b32 v6, 64, v5
            v_add_u32 v7, {STG0+16384}, v13
            v_xor_b32 v8, 64, v7
            v_add_u32 v9, {2*STGS}, v5
            v_add_u32 v10, {2*STGS}, v6
            v_add_u32 v250, {2*STGS}, v7
            v_add_u32 v251, {2*STGS}, v8
            v_lshlrev_b32 v13, 7, v11
            v_lshrrev_b32 v12, 5, v0
            v_lshl_add_u32 v13, v12, 11, v13
            v_bfe_u32 v12, v0, 4, 1
            v_lshl_add_u32 v13, v12, 4, v13
            v_add_u32 v13, s{S_MX}, v13
            v_mul_u32_u24 v11, {RS}, v11             ; table row of this lane's column
            v_mul_u32_u24 v{TA}, {RS}, v{VP}
            v_and_b32 v216, 31, v0
            v_lshlrev_b32 v216, 4, v216
            v_min_u32 v217, 39, v0
            v_lshlrev_b32 v217, 4, v217""")
            self.b2v = self.b2_setup(0)
            self.srd(SRD_T2, 5, 819200)
            self.srd(SRD_OUT, 6, 819200)
            if 'stashpre' in self.opt: self.ssm_stash(k, VT, VP)
        pre_mem = [(lambda p=p: self.emit(p)) for p in d0[5:]] + [vec] + [(lambda p=p: self.emit(p)) for p in d1[:7]]
        su = self.capture(setup)
        nA = ([i for i, x in enumerate(su) if x.startswith("v_and_b32 v230")] + [len(su)*7//12])[0]
        assert 'stashpre' not in self.opt
        stq_ = self.capture(lambda k_: self.ssm_stash(k_, VT, VP)) + self.p2_scalars(0)
        npre_ = int(self.P('spre', 0))
        su = su + stq_[:npre_]; stq_ = stq_[npre_:]
        sbat = [int(x) for x in str(int(self.P('sbat', 579)))]
        self.sprinkle(su[:nA], pre_mem[:int(self.P('npre', 7))])
        self.sprinkle(su[nA:], pre_mem[int(self.P('npre', 7)):] + [(lambda p=p: self.emit(p)) for p in d1[7:]])
        b2v = self.b2v; vec_tok = self.vec_tok
        tk = {}
        swq = []
        for e in range(4):
            def f(e=e): tk['d2'] = k(f"buffer_load_dwordx4 v{PV}, {s(SRD_T2 if e < 2 else SRD_OUT,4)}, s{SW0+e%2} offen offset:{(e%2)*1024} lds")
            swq.append(self.dma((S_MX, (e//2)*2048), f))
        self.make_tag()
        k(f"""v_and_b32 v16, 1, v0
        v_lshlrev_b32 v16, 4, v16
        v_lshrrev_b32_e64 v16, v16, s{S_PAT}
        v_and_b32 v16, 1, v16
        v_mul_u32_u24 v16, 0x10001, v16
        s_cmp_lt_u32 s{S_W}, 2
        s_cselect_b32 s{S_NM}, s{S_NM}, -1
        s_cselect_b32 s{S_T}, -1, 0
        v_and_b32 v16, s{S_T}, v16
        v_accvgpr_write_b32 a{ST['PAT']}, v16""")
        RXA = [[5, 6], [9, 10]]; RWA = [[7, 8], [250, 251]]
        rtok = {}
        def mkreads(n):
            st = FR[n % 2]; ks = n % 2; sl = (n//2) % 4; o = (sl % 2)*STGS
            R = [f"ds_read_b128 {v(st+4*a_,4)}, v{RXA[sl//2][ks]} offset:{o+a_*2048}" for a_ in range(2)]
            R += [f"ds_read_b128 {v(st+8+4*tt,4)}, v{RWA[sl//2][ks]} offset:{o+tt*2048}" for tt in range(10)]
            L = []
            for i, r in enumerate(R):
                def f(i=i, r=r): rtok[n, i] = k(r)
                L.append(f)
            return L
        self.fine3()
        k.wait_vm(stage_tok[0])
        self.fine3()
        k("s_barrier")
        self.fine3()
        self.stamp(1)
        k.label("L_ssm_code")
        self.emit(mkreads(0))
        LAM, LAM2, LAM4, WSUM = C5(192), C5(202), C5(212), C5(222)
        AT, BT, TG = 232, 240, 192
        L_AB = 14720
        mq = []
        def q_stage(t):
            for p_, l_ in dma_list(t): mq.append([max(2*(t-3), 0), 1, p_, l_])
        def sw_store(cc):
            def f():
                k.wait_lg(tk['r2'])
                tk['s2'] = k(f"buffer_store_dwordx4 {a(220+4*cc,4)}, v{LV}, {WS4}, s{D2} offen offset:{1024*cc} sc1")
            return f
        def gl1(): k(f"buffer_load_dwordx4 {v(TG,4)}, v216, {WS4}, s{S_GT} offen sc1")
        def gl2(): tk['gr'] = k(f"buffer_load_dwordx2 {v(TG+4,2)}, v217, {WS4}, s{S_GW} offen sc1")
        NSW, NFLAG, NGL, NGC, NPOLL, NCHK = [int(self.P(a_, b_)) for a_, b_ in (('snsw', 3), ('snfl', 9), ('sngl', 13), ('sngc', 16), ('snpo', 14), ('snck', 17))]
        prs, psw, pst = int(self.P('prs', 1)), int(self.P('psw', 2)), int(self.P('pst', 4))
        for t in range(1, 10):
            if t > 1: q_stage(t)
            if t == prs: mq += [[0, 1, None, f] for f in rs]
            if t == psw: mq += [[0, 1, p_, l_] for p_, l_ in swq]
            if t == pst: mq += [[NSW+1, 2, None, sw_store(cc)] for cc in range(4)]
        late = {NGL: [[NGL, 1, None, gl1], [NGL, 1, None, gl2]]}
        late[NPOLL] = late.get(NPOLL, []) + [[NPOLL, 0.5, None, self.b2_poll]]
        def swr():
            k.wait_vm(tk['d2'])
            for ss in range(4): tk['r2'] = k(f"ds_read_b128 {a(220+4*ss,4)}, v13 offset:{32*ss}")
        fq = [lambda: k.wait_vm(vec_tok)]
        fq += [x.strip() for x in f"""v_lshlrev_b32 v{VDT}, 16, v{VDT}
        v_mul_f32 v{VDT}, {fbits(LOG2E)}, v{VDT}
        v_exp_f32 v{VDT}, v{VDT}
        v_lshlrev_b32 v{VLR}, 16, v{VLR}
        v_lshlrev_b32 v{VLI}, 16, v{VLI}
        v_cvt_pk_bf16_f32 v{VDT}, v{VDT}, v{VDT}
        v_and_b32 v{VDT}, 0xffff0000, v{VDT}
        v_mul_f32 v{ZR}, v{VLR}, v{VDT}
        v_mul_f32 v{ZI}, v{VLI}, v{VDT}
        v_mul_f32 v{ZR}, {fbits(LOG2E)}, v{ZR}
        v_mul_f32 v{ZI}, 0.15915494, v{ZI}
        v_accvgpr_write_b32 a250, v{ZR}
        v_accvgpr_write_b32 a251, v{ZI}
        v_accvgpr_write_b32 a252, v{VLR}
        v_accvgpr_write_b32 a253, v{VLI}
        v_mov_b32 v232, {fbits(8.0)}""".split("\n")]
        LM = 240
        P = [self.cpow(LM, LM+1, "1.0", ZR, ZI, 233), self.cpow(248, 249, "v232", ZR, ZI, 235)]
        fq += [x[i] for i in range(8) for x in P]
        fq += [x.strip() for x in f"""v_accvgpr_write_b32 a254, v{LM}
        v_accvgpr_write_b32 a255, v{LM+1}
        v_mul_f32 v{LM+2}, v{LM}, v{LM}
        v_mul_f32 v{LM+3}, v{LM}, v{LM+1}
        v_fma_f32 v{LM+2}, -v{LM+1}, v{LM+1}, v{LM+2}
        v_add_f32 v{LM+3}, v{LM+3}, v{LM+3}
        v_mul_f32 v{LM+4}, v{LM+2}, v{LM+2}
        v_mul_f32 v{LM+5}, v{LM+2}, v{LM+3}
        v_fma_f32 v{LM+4}, -v{LM+3}, v{LM+3}, v{LM+4}
        v_add_f32 v{LM+5}, v{LM+5}, v{LM+5}""".split("\n")]
        rsf = self.rowstat_fill(R0, A0, T0, 14, S_RSDST, sq=False)
        fq += [('at', 3), ('mark', 'rs')]
        NRB = int(self.P('snrb', 3))
        fq += b2v + [('mark', 'gaddr')]
        fq += [('at', (NSW | 1) + 1 + (NSW & 1)*2)] + [f"ds_write_b64 v{TA}, {v(LM+2*q,2)} offset:{144+8*q}" for q in range(3)]
        fq += [('mark', 'table')]
        def flg():
            k.wait_vm(tk['s2']); self.set_flag(S_FB, 15)
        flags = {NFLAG: flg, NSW: swr}
        pre_st = [x.strip() for x in f"""s_lshl_b32 s{S_T}, s{S_W}, 7
        v_lshrrev_b32 v12, 2, v216
        v_add_u32 v12, s{S_T}, v12
        v_add_u32 v12, {L_AB}, v12
        v_lshrrev_b32 v14, 4, v0
        v_lshl_add_u32 v239, v14, 5, s{S_T}
        s_and_b32 s{S_T}, s{S_W}, 1
        s_mul_i32 s{S_T}, s{S_T}, 40
        v_lshrrev_b32 v13, 4, v217
        v_add_u32 v13, s{S_T}, v13
        v_mul_u32_u24 v13, {RS}, v13
        s_lshr_b32 s{S_T}, s{S_W}, 1
        s_lshl_b32 s{S_T}, s{S_T}, 2
        v_add_u32 v13, s{S_T}, v13
        s_mov_b32 s{S_T}, {fbits(1.0/640)}""".split("\n")]
        stq = [x.strip() for x in f"""ds_write_b32 v13, v{TG+4} offset:176
        v_mul_f32 v{TG}, s{S_T}, v{TG}
        v_mul_f32 v15, v{TG}, v{TG}
        v_fma_f32 v15, v{TG+2}, s{S_T}, -v15
        v_max_f32 v15, 0, v15
        v_add_f32 v15, {fbits(EPS)}, v15
        v_rsq_f32 v15, v15
        v_mul_f32_e64 v{TG}, v{TG}, -v15
        ds_write2st64_b32 v12, v15, v{TG} offset0:0 offset1:2""".split("\n")]
        fq += pre_st + [('at', 14)] + [f"ds_read_b64 {v(LAM2.r(b),2)}, v11 offset:{16*b*RS+152}" for b in range(5)]
        fq += [('at', NGC)] + stq + [('mark', 'stats')]
        fq += [f"ds_read_b64 {v(LAM4.r(b),2)}, v11 offset:{16*b*RS+160}" for b in range(5)]
        NRD = int(self.P('snrd', 18))
        fq += [('at', NRD)] + [f"ds_read_b64 {v(LAM.r(b),2)}, v11 offset:{16*b*RS+144}" for b in range(5)]
        fq += [f"ds_read_b128 {v(AT+4*q,4)}, v239 offset:{L_AB+16*(q%2)+512*(q//2)}" for q in (3, 2, 0, 1)]
        fq += [f"ds_read_b64 {v(WSUM.r(b),2)}, v11 offset:{16*b*RS+176}" for b in range(5)]
        credit = 0.0; b2on = False
        for n in range(20):
            st = FR[n % 2]
            k.c(f"---- ssm k-step {n}")
            self.fine(16 + n)
            if n == NGC:
                k.wait_vm(tk['gr'])
                def check():
                    k(f"""v_xor_b32 v15, s{S_TAG}, v{TG+1}
                    v_bitop3_b32 v15, s{S_TAG2}, v{TG+3}, v15 bitop3:0xbe
                    v_bitop3_b32 v15, s{S_TAG}, v{TG+5}, v15 bitop3:0xbe
                    v_cmp_ne_u32 vcc, 0, v15""")
                def rl():
                    gl1(); gl2(); k("s_waitcnt vmcnt(0)")
                self.verify(check, rl, "pg")
            if n == NCHK:
                self.b2_check(); b2on = True
            if n == NGL: assert self.marks['rs'] < n
            if n == NPOLL: assert self.marks['gaddr'] < n
            mq[0:0] = late.get(n, [])
            mem = []
            mmax = int(self.P('smax', 9)) if n < self.P('sfast', 2) else int(self.P('scap', 5))
            while len(mem) < mmax:
                if mq and mq[0][0] <= n: it_ = mq.pop(0)
                elif b2on and self.b2q and len(mem) < self.P('sb2', 5): it_ = [n, 1, None, self.b2q.pop(0)]
                else: break
                mem.append(it_)
            rd = mkreads(n+1) if n + 1 < 20 else []
            slots = [[] for _ in range(20)]
            if n % 2 == 0:
                rslots = [0, 1, 3, 4, 6, 7, 9, 10, 12, 13, 15, 16]; pref = [2, 8, 14, 19, 5, 11, 17, 18, 0, 6, 12, 3, 9, 15, 1, 4]
            else:
                rslots = [4, 5, 6, 8, 9, 10, 12, 13, 14, 16, 17, 18]; pref = [0, 7, 15, 2, 11, 19, 1, 5, 9, 13, 17, 4, 8, 12, 16, 6]
                if n + 1 < 20:
                    T_ = (n + 1)//2
                    def f(T_=T_):
                        assert stage_cnt[T_] == 9
                        if 2*T_ - 1 == NRB: self.rowstat_batch(R0, A0, 14, S_RSDST, sq=False)
                        if 2*T_ - 1 in sbat:
                            j_ = sbat.index(2*T_ - 1); m_ = -(-len(stq_)//len(sbat))
                            if j_ == len(sbat) - 1: assert not any(x[3] in [y[1] for y in swq] for x in mq + mem[sum(1 for z in mslots if z < 3):])
                            self.emit(stq_[j_*m_:(j_+1)*m_])
                        k.wait_both(stage_tok[T_], k.lg_issued)
                        k("s_barrier")
                    slots[3] += [f]
            mslots = sorted(pref[:len(mem)])
            cap = [2]*20
            for sl, r in zip(rslots, rd): slots[sl].append(r); cap[sl] = 1
            for sl, it_ in zip(mslots, mem):
                slots[sl] = [it_[3]] + slots[sl]; cap[sl] -= 1
            if n % 2 == 1 and n + 1 < 20: cap[3] = 0
            i = 0
            for tt in range(10):
                for a_ in range(2):
                    if i in mslots[:len(mem)] and i == 0 and mem[0][2]: mem[0][2]()
                    grp = {0: 1, 2: 9} if n % 2 == 1 else {0: tt, 1: tt, 2: tt, 3: tt, 4: tt, 5: tt, 6: tt, 7: tt, 8: tt, 9: tt} if n == 0 else {0: 3, 4: 6, 7: 9}
                    if a_ == 0 and tt in grp: k.wait_lg(rtok[n, 2+grp[tt]])
                    assert k.lg_done >= rtok[n, 2+tt]
                    c_ = "0" if n == 0 else v(acc(a_, tt), 4)
                    k(f"v_mfma_f32_16x16x32_bf16 {v(acc(a_,tt),4)}, {v(st+4*a_,4)}, {v(st+8+4*tt,4)}, {c_}")
                    self.emit(slots[i])
                    c0 = cap[i]
                    if i + 1 in mslots[:len(mem)]:
                        n0 = len(k.ins); pre_ = mem[mslots.index(i+1)][2]
                        if pre_: pre_()
                        c0 -= len(k.ins) - n0
                    if c0 > 0 and (cap[i] == 2 or i % int(self.P('sden', 1)) == 0): self.emit(self.take_fill(fq, n, c0))
                    if i == 19 and n in flags: flags[n]()
                    i += 1
        self.emit([x for x in fq if not isinstance(x, tuple)])
        assert not mq and self.marks['table'] <= 12 and self.marks['stats'] <= NRD - 2 + (NRD & 1), self.marks
        self.info += f"ssm b2 left {len(self.b2q)} marks {self.marks} tail {len(fq)}"
        k.c('loop end')
        self.stamp(2)
        if self.early_stop("loop"): return
        self.ssm_epilogue(ACC, AT, BT, LAM, LAM2, LAM4, WSUM, L_AB)

    def ssm_stash(self, k, VT, VP):
        RS = self.TB_RS; L_C = 102400
        t0, t1, t2, col, g, seg = 227, 228, 229, 230, 231, 234
        put = lambda n, r: k(f"v_accvgpr_write_b32 a{n}, v{r}")
        k(f"""v_and_b32 v{col}, 15, v0
        v_lshrrev_b32 v{g}, 4, v0
        s_lshl_b32 s{S_T+2}, s{S_W}, 2
        v_add_u32 v{seg}, s{S_T+2}, v{g}
        v_mul_u32_u24 v{t0}, 768, v{seg}
        v_mul_u32_u24 v{t1}, 48, v{col}
        v_add_u32 v{t0}, v{t0}, v{t1}""")
        put(ST['E'], t0)
        k(f"""v_and_b32 v{t0}, 15, v{VP}
        v_lshrrev_b32 v{t2}, 4, v{VP}
        v_mul_u32_u24 v{t1}, 48, v{t0}
        v_lshl_add_u32 v{t1}, v{t2}, 3, v{t1}""")
        put(ST['CH'], t1)
        k(f"""v_min_u32 v{VT}, 2, v{VT}
        v_mul_u32_u24 v{t0}, 160, v{t0}
        v_lshlrev_b32 v{t2}, 5, v{t2}
        v_lshl_add_u32 v{t2}, v{VT}, 3, v{t2}
        v_add3_u32 v{t0}, v{t0}, v{t2}, 0
        v_add_u32 v{t0}, {L_C}, v{t0}""")
        put(ST['CW'], t0)
        k(f"v_lshlrev_b32 v{t0}, 4, v{VP}"); put(ST['PUB'], t0)
        k(f"v_mul_u32_u24 v{t2}, 5, v{VT}\nv_mul_u32_u24 v{t1}, 1280, v{t2}\nv_add_u32 v{t0}, v{t0}, v{t1}"); put(ST['GA'], t0)
        k(f"""v_add_u32 v{t0}, 5, v{t2}
        v_min_u32 v{t0}, s{S_I}, v{t0}
        v_sub_u32 v{t0}, s{S_I}, v{t0}
        v_lshlrev_b32 v{t0}, 7, v{t0}
        v_cvt_f32_u32 v{t0}, v{t0}""")
        put(ST['QE'], t0)
        for q in range(5): k(f"v_add_u32 v{t0}, {q}, v{t2}\nv_cmp_gt_u32 {s(S_MK+2*q,2)}, s{S_I}, v{t0}")
        k(f"v_mul_u32_u24 v{t0}, {RS}, v{VP}"); put(ST['TB'], t0)
        k(f"v_mul_u32_u24 v{t0}, {RS}, v{col}\nv_lshl_add_u32 v{t0}, v{seg}, 3, v{t0}"); put(ST['VA'], t0)
        k(f"v_mul_u32_u24 v{t0}, 160, v{col}\nv_add_u32 v{t0}, {L_C}, v{t0}"); put(ST['CR'], t0)
        k(f"""s_mul_i32 s{S_T+2}, s{S_W}, {RED_W}
        s_add_u32 s{S_T+2}, s{S_T+2}, {LDS_RED}
        v_mul_u32_u24 v{t0}, 80, v{col}
        v_lshl_add_u32 v{t0}, v{g}, 4, v{t0}
        v_add_u32 v{t0}, s{S_T+2}, v{t0}""")
        put(ST['TW'], t0)
        k(f"""v_lshrrev_b32 v{t0}, 2, v{col}
        v_lshl_add_u32 v{t0}, v{g}, 3, v{t0}
        v_mul_u32_u24 v{t0}, 80, v{t0}
        v_and_b32 v{t1}, 3, v{col}
        v_lshl_add_u32 v{t0}, v{t1}, 3, v{t0}
        v_add_u32 v{t0}, s{S_T+2}, v{t0}""")
        put(ST['TR'], t0)
        k(f"""v_mul_u32_u24 v{t0}, {RED_RS}, v{col}
        v_lshl_add_u32 v{t0}, v{g}, 4, v{t0}
        v_add_u32 v{t0}, s{S_T+2}, v{t0}""")
        put(ST['RW'], t0)
        for it in range(5):
            k(f"""v_add_u32 v{t0}, {64*it}, v0
            v_mul_u32_u24 v{t1}, 6554, v{t0}
            v_lshrrev_b32 v{t1}, 16, v{t1}
            v_mul_u32_u24 v{t2}, 10, v{t1}
            v_sub_u32 v{t2}, v{t0}, v{t2}
            v_lshrrev_b32 v{seg}, 4, v{t1}
            v_mul_u32_u24 v{seg}, 48, v{seg}
            v_add_u32 v{t1}, v{t1}, v{seg}
            v_mul_u32_u24 v{t1}, 1280, v{t1}
            v_lshl_add_u32 v{t1}, v{t2}, 4, v{t1}""")
            put(ST['RD']+it, t1)
            for x in self.div20(t1, t2, t0): k(x)
            put(ST['ROW']+it, t1); put(ST['C4']+it, t2)
        k(f"""s_mul_i32 s{S_AG4}, s{S_J}, {16*1280}
        s_add_u32 s{S_AG4}, s{S_AG4}, {WS_AGG}
        s_mul_i32 s{S_AG1}, s{S_I}, 1280
        s_add_u32 s{S_AG1}, s{S_AG1}, s{S_AG4}
        s_lshl_b32 s{S_T+2}, s{S_I}, 3
        s_lshl_b32 s{S_T+3}, s{S_W}, 1
        s_add_u32 s{S_T+2}, s{S_T+2}, s{S_T+3}
        s_mul_i32 s{S_T+2}, s{S_T+2}, 40
        s_mul_i32 s{S_T+3}, s{S_J}, 5
        s_add_u32 s{S_T+2}, s{S_T+2}, s{S_T+3}
        s_lshl_b32 s{S_T+2}, s{S_T+2}, 10
        s_add_u32 s{S_A2B}, s{S_T+2}, {WS_A2[0]}
        s_lshl_b32 s{S_RX}, s{S_I}, 7
        s_lshl_b32 s{S_T+2}, s{S_W}, 4
        s_add_u32 s{S_RX}, s{S_RX}, s{S_T+2}
        s_mul_i32 s{S_RX}, s{S_RX}, 1280
        s_mul_i32 s{S_RJ}, s{S_J}, 160
        s_add_u32 s{S_RX}, s{S_RX}, s{S_RJ}
        s_mul_i32 s{S_RL}, s{S_W}, 5120
        s_add_u32 s{S_RL}, s{S_RL}, {L_R}""")

    def ssm_epilogue(self, ACC, AT, BT, LAM, LAM2, LAM4, WSUM, L_AB):
        k = self.k; RS = self.TB_RS; LV = self.LV
        acc = lambda a_, tt: ACC + (a_*10 + tt)*4
        tok = lambda r, tt: acc(r//4, tt) + r % 4
        L_E, L_C = 16384, 102400
        TM, SEG = 146, 15
        def bc(r): return v(r & ~1, 2), r & 1
        k.c("================ SSM epilogue")
        self.nf2 = 0; self.fine2()
        k(f"""v_accvgpr_read_b32 v13, a{ST['E']}
        v_accvgpr_read_b32 v10, a{ST['CH']}
        v_accvgpr_read_b32 v6, a{ST['PUB']}
        v_mov_b32 v1, s{S_TAG}
        s_waitcnt lgkmcnt(0)""")
        sec = []
        for tt in list(range(10)):
            ws = WSUM.r(tt % 5); hi = tt // 5
            for a_ in range(2):
                for h in range(2):
                    t_ = TM + 2*(a_*2 + h) + 8*(tt % 2)
                    sec.append(f"v_pk_mul_f32 {v(t_,2)}, {v(BT+4*a_+2*h,2)}, {v(ws,2)} op_sel:[0,{hi}] op_sel_hi:[1,{hi}]")
            for a_ in range(2):
                for h in range(2):
                    d = acc(a_, tt) + 2*h; t_ = TM + 2*(a_*2 + h) + 8*(tt % 2)
                    sec.append(f"v_pk_fma_f32 {v(d,2)}, {v(AT+4*a_+2*h,2)}, {v(d,2)}, {v(t_,2)}")
        V1 = 96; EE = C5(136)
        def pkc(dr, di, ar, ai, cr_, ci_, lr, li):
            (pr, sr), (pi, si) = bc(lr), bc(li)
            return [f"v_pk_fma_f32 {v(dr,2)}, {v(ar,2)}, {pr}, {v(cr_,2)} op_sel:[0,{sr},0] op_sel_hi:[1,{sr},1]",
                    f"v_pk_fma_f32 {v(di,2)}, {v(ai,2)}, {pr}, {v(ci_,2)} op_sel:[0,{sr},0] op_sel_hi:[1,{sr},1]",
                    f"v_pk_fma_f32 {v(dr,2)}, {v(ai,2)}, {pi}, {v(dr,2)} op_sel:[0,{si},0] op_sel_hi:[1,{si},1] neg_lo:[1,0,0] neg_hi:[1,0,0]",
                    f"v_pk_fma_f32 {v(di,2)}, {v(ar,2)}, {pi}, {v(di,2)} op_sel:[0,{si},0] op_sel_hi:[1,{si},1]"]
        LL = [pkc(V1+8*b+2*h, V1+8*b+4+2*h, acc(0,b)+2*h, acc(0,5+b)+2*h, acc(1,b)+2*h, acc(1,5+b)+2*h, LAM4.r(b), LAM4.i(b))
              for b in range(5) for h in range(2)]
        sec += [x[i] for i in range(4) for x in LL]
        LL = [pkc(V1+8*b+2, V1+8*b+6, V1+8*b, V1+8*b+4, V1+8*b+2, V1+8*b+6, LAM2.r(b), LAM2.i(b)) for b in range(5)]
        sec += [x[i] for i in range(4) for x in LL]
        sec += self.cmul5(EE, LAM, C5(V1+2, V1+6, 8), C5(V1+3, V1+7, 8))
        self.sprinkle(sec, self.b2_take(int(self.P('e1', 10))))
        k(f"""ds_write_b128 v13, {v(136,4)} offset:{L_E}
        ds_write_b128 v13, {v(140,4)} offset:{L_E+16}
        ds_write_b64 v13, {v(144,2)} offset:{L_E+32}
        v_mov_b32 v129, s{S_TAG}
        v_mov_b32 v131, s{S_TAG2}
        s_waitcnt lgkmcnt(0)
        s_barrier""")
        self.fine2()
        CH = 96; L8R, L8I = 248, 249
        ct = [k(f"ds_read_b64 {v(CH+2*q,2)}, v10 offset:{L_E+768*q}") for q in range(16)]
        for q in range(1, 16):
            k.wait_lg(ct[q])
            er, ei, pr, pi = CH+2*q, CH+2*q+1, CH+2*q-2, CH+2*q-1
            if q < 15:
                k(f"v_fmac_f32 v{er}, v{L8R}, v{pr}\nv_fmac_f32 v{ei}, v{L8R}, v{pi}\nv_fma_f32 v{er}, -v{L8I}, v{pi}, v{er}\nv_fmac_f32 v{ei}, v{L8I}, v{pr}")
            else:
                k(f"v_fmac_f32 v{er}, v{L8R}, v{pr}\nv_fmac_f32 v{ei}, v{L8R}, v{pi}\nv_fma_f32 v128, -v{L8I}, v{pi}, v{er}\nv_fma_f32 v130, v{L8I}, v{pr}, v{ei}")
        k(f"""s_mov_b64 exec, 0xfffff
        buffer_store_dwordx4 v[128:131], v6, {WS4}, s{S_AG1} offen sc1
        s_mov_b64 exec, -1""")
        self.stamp(3); self.fine2()
        KK, CS, VV, DD = C5(202), C5(136), C5(146), C5(156, 161)
        work = [f"ds_write_b64 v10, {v(CH+2*q,2)} offset:{L_E+768*q}" for q in range(1, 15)]
        KB = 166
        work += [x.strip() for x in f"""v_accvgpr_read_b32 v132, a252
        v_accvgpr_read_b32 v133, a253
        v_accvgpr_read_b32 v134, a254
        v_accvgpr_read_b32 v135, a255
        v_accvgpr_read_b32 v5, a{ST['TB']}
        v_mul_f32 v174, v132, v132
        v_fma_f32 v174, v133, v133, v174
        v_rcp_f32 v174, v174
        v_add_f32 v134, -1.0, v134
        v_mul_f32 v{KB}, v134, v132
        v_mul_f32 v{KB+1}, v135, v132
        v_add_f32 v174, v174, v174
        v_fma_f32 v{KB}, v135, v133, v{KB}
        v_fma_f32 v{KB+1}, -v134, v133, v{KB+1}
        v_mul_f32 v{KB}, v{KB}, v174
        v_mul_f32 v{KB+1}, v{KB+1}, v174""".split("\n")]
        for q in range(16):
            c_ = KB + 2*(q % 4); n_ = KB + 2*((q+1) % 4)
            work += [f"ds_write_b64 v5, {v(c_,2)} offset:{8*q}"]
            if q < 15: work += [f"v_mul_f32 v{n_}, v{L8R}, v{c_}", f"v_mul_f32 v{n_+1}, v{L8R}, v{c_+1}",
                                f"v_fma_f32 v{n_}, -v{L8I}, v{c_+1}, v{n_}", f"v_fmac_f32 v{n_+1}, v{L8I}, v{c_}"]
        GB = 96
        BZR, BZI, BLR, BLI, BQR, BQI, BT_ = 116, 117, 118, 119, 120, 121, 122
        MK = S_MK
        work += [f"v_accvgpr_read_b32 v6, a{ST['GA']}", f"s_add_u32 s{S_T+5}, s{S_AG4}, 3840", f"s_mov_b32 s{S_T+4}, s{S_AG4}", f"v_accvgpr_read_b32 v5, a{ST['VA']}",
                 "s_waitcnt lgkmcnt(0)", "s_barrier"]
        work += [f"ds_read_b64 {v(KK.r(b),2)}, v11 offset:{16*b*RS}" for b in range(5)]
        work += [f"ds_read_b128 {v(136,4)}, v13 offset:{L_E-768}", f"ds_read_b128 {v(140,4)}, v13 offset:{L_E-768+16}", f"ds_read_b64 {v(144,2)}, v13 offset:{L_E-768+32}"]
        work += [f"ds_read_b64 {v(VV.r(b),2)}, v5 offset:{16*b*RS}" for b in range(5)]
        work += [f"v_accvgpr_read_b32 v{BZR}, a250", f"v_accvgpr_read_b32 v{BZI}, a251", f"v_mov_b32 v123, {fbits(128.0)}",
                 f"v_accvgpr_read_b32 v10, a{ST['QE']}"]
        work += [y for x in zip(self.cpow(BQR, BQI, "v10", BZR, BZI, BT_), self.cpow(BLR, BLI, "v123", BZR, BZI, 124)) for y in x]
        ku = []
        for b in range(5):
            (kr, sr), (ki, si) = bc(KK.r(b)), bc(KK.i(b))
            for h in range(4):
                ur = tok(2*h, b); ui = tok(2*h, 5+b); t_ = 166 + 4*(h % 2)
                ku += [f"v_pk_mul_f32 {v(t_,2)}, {v(ur,2)}, {kr} op_sel:[0,{sr}] op_sel_hi:[1,{sr}]",
                       f"v_pk_mul_f32 {v(t_+2,2)}, {v(ur,2)}, {ki} op_sel:[0,{si}] op_sel_hi:[1,{si}]",
                       f"v_pk_fma_f32 {v(ur,2)}, {v(ui,2)}, {ki}, {v(t_,2)} op_sel:[0,{si},0] op_sel_hi:[1,{si},1] neg_lo:[1,0,0] neg_hi:[1,0,0]",
                       f"v_pk_fma_f32 {v(ui,2)}, {v(ui,2)}, {kr}, {v(t_+2,2)} op_sel:[0,{sr},0] op_sel_hi:[1,{sr},1]"]
        nku = int(self.P('nku', 40))
        work += ["s_waitcnt lgkmcnt(8)"] + ku[:nku]
        self.sprinkle(work, self.b2_take(int(self.P('e2', 6))))
        self.fine2()
        def gloads():
            for q in range(5):
                t = k(f"buffer_load_dwordx4 {v(GB+4*q,4)}, v6, {WS4}, s{S_T+4+(q//3)} offen offset:{1280*(q%3)} sc1")
            return t
        gt = {}
        def gl_(): gt['t'] = gloads()
        w2 = ku[nku:] + ["s_waitcnt lgkmcnt(0)", f"s_cmp_eq_u32 s{S_W}, 0\ns_cselect_b64 exec, 0xffff, 0"]
        w2 += [f"v_mov_b32 v{136+q}, 0" for q in range(10)] + ["s_mov_b64 exec, -1"]
        w2 += self.cmul5(DD, KK, CS)
        w2 += [f"v_accvgpr_read_b32 v5, a{ST['CW']}", f"v_accvgpr_read_b32 v12, a{ST['CR']}", f"v_accvgpr_read_b32 v13, a{ST['TW']}", f"v_accvgpr_read_b32 v4, a{ST['TR']}", f"v_accvgpr_read_b32 v3, a{ST['PAT']}",
               f"v_mov_b32 v{BZR}, 0", f"v_mov_b32 v{BZI}, 0",
               f"s_mov_b32 s{S_T+8}, s{S_A2B}", f"s_add_u32 s{S_T+9}, s{S_A2B}, 4096",
               f"s_add_u32 s{S_T+10}, s{S_A2B}, {40*1024}", f"s_add_u32 s{S_T+11}, s{S_A2B}, {40*1024+4096}"]
        rq = self.resid_loads()
        gpos = int(self.P('gpos', 0))
        if gpos == 0: gl_()
        self.sprinkle(w2, rq[:gpos] + ([gl_] if gpos else []) + rq[gpos:] + self.b2_take(int(self.P('e3', 8))))
        gtok = gt['t']
        self.stamp(4); self.fine2()
        k.wait_vm(gtok)
        def check():
            for q in range(5):
                k(f"v_xor_b32 v10, s{S_TAG}, v{GB+4*q+1}")
                k(f"v_bitop3_b32 v10, s{S_TAG2}, v{GB+4*q+3}, v10 bitop3:0xbe")
                k(f"v_cmp_ne_u32 {s(S_T+2,2)}, 0, v10")
                k(f"s_and_b64 {'vcc' if q == 0 else s(S_T+2,2)}, {s(S_T+2,2)}, {s(MK+2*q,2)}")
                if q: k(f"s_or_b64 vcc, vcc, {s(S_T+2,2)}")
        def reload():
            gloads(); k("s_waitcnt vmcnt(0)")
        self.verify(check, reload, "pc")
        self.stamp(5); self.fine2()
        for q in range(5):
            er, ei = GB+4*q, GB+4*q+2
            k(f"""s_mov_b64 exec, {s(MK+2*q,2)}
            v_fmac_f32 v{er}, v{BLR}, v{BZR}
            v_fmac_f32 v{ei}, v{BLR}, v{BZI}
            v_fmac_f32 v{ei}, v{BLI}, v{BZR}
            v_fma_f32 v{BZR}, -v{BLI}, v{BZI}, v{er}
            v_mov_b32 v{BZI}, v{ei}""")
        k(f"""s_mov_b64 exec, -1
        v_mul_f32 v126, v{BQR}, v{BZR}
        v_mul_f32 v127, v{BQR}, v{BZI}
        v_fma_f32 v126, -v{BQI}, v{BZI}, v126
        v_fmac_f32 v127, v{BQI}, v{BZR}
        ds_write_b64 v5, v[126:127]
        s_waitcnt lgkmcnt(0)
        s_barrier""")
        CB = 96
        ct = []
        for b in range(5):
            k(f"ds_read_b128 {v(CB+6*b,4)}, v12 offset:{32*b}")
            ct.append(k(f"ds_read_b64 {v(CB+6*b+4,2)}, v12 offset:{32*b+16}"))
        for b in range(5):
            k.wait_lg(ct[b])
            k(f"v_pk_add_f32 {v(CB+6*b,2)}, {v(CB+6*b,2)}, {v(CB+6*b+2,2)}")
        for b in range(5):
            k(f"v_pk_add_f32 {v(CB+6*b,2)}, {v(CB+6*b,2)}, {v(CB+6*b+4,2)}")
        self.sprinkle(self.cmul5(DD, VV, C5(CB, CB+1, 6), DD), self.b2_take(int(self.P('e4', 2))))
        self.fine2()
        PK = 96
        frg = lambda b, tt2: (136 + 4*(2*b + tt2)) if 2*b + tt2 < 5 else (202 + 4*(2*b + tt2 - 5))
        wt = {}; rt = {}
        def scan(bs):
            L = []
            for r in range(8):
                pr = lambda b: DD.r(b) if r == 0 else tok(r-1, b)
                pi = lambda b: DD.i(b) if r == 0 else tok(r-1, 5+b)
                for b in bs: L += [f"v_fmac_f32 v{tok(r,b)}, v{LAM.r(b)}, v{pr(b)}", f"v_fmac_f32 v{tok(r,5+b)}, v{LAM.r(b)}, v{pi(b)}"]
                for b in bs: L += [f"v_fma_f32 v{tok(r,b)}, -v{LAM.i(b)}, v{pi(b)}, v{tok(r,b)}", f"v_fmac_f32 v{tok(r,5+b)}, v{LAM.i(b)}, v{pr(b)}"]
            for b in bs:
                for comp in range(2):
                    d = PK + 4*(2*b + comp); ng = "-" if comp else ""
                    L += [f"v_cvt_pk_bf16_f32 v{d+h}, {ng}v{tok(2*h,5*comp+b)}, {ng}v{tok(2*h+1,5*comp+b)}" for h in range(4)]
                    L += [f"v_and_or_b32 v{d+h}, v{d+h}, s{S_NM}, v3" for h in range(4)]
                    def f(b=b, d=d, comp=comp): wt[b] = k(f"ds_write_b128 v13, {v(d,4)} offset:{(32*b+16*comp)*80}")
                    L.append(f)
            return L
        def outq(bs):
            L = []
            for b in bs:
                def trr(b=b):
                    k.wait_lg(wt[b])
                    for tt2 in range(2):
                        d = frg(b, tt2)
                        k(f"ds_read_b64_tr_b16 {v(d,2)}, v4 offset:{(32*b)*80+32*tt2}")
                        rt[b, tt2] = k(f"ds_read_b64_tr_b16 {v(d+2,2)}, v4 offset:{(32*b+4)*80+32*tt2}")
                L.append(trr)
            for b in bs:
                for tt2 in range(2):
                    def sto(b=b, tt2=tt2):
                        k.wait_lg(rt[b, tt2])
                        so = S_T + 8 + 2*tt2 + (1 if b == 4 else 0)
                        self.last_st = k(f"buffer_store_dwordx4 {v(frg(b,tt2),4)}, v{LV}, {WS4}, s{so} offen offset:{1024*(b%4)} sc1")
                    L.append(sto)
            return L
        self.sprinkle(scan([0, 1]), self.b2_take(int(self.P('e5', 4))))
        self.sprinkle(scan([2, 3]), outq([0, 1]), lead=4)
        self.sprinkle(scan([4]), outq([2, 3]), lead=4)
        self.emit(outq([4]))
        self.stamp(6); self.fine2()
        self.p2_addr(0)
        self.free_big = [r for r in self.free_big if not (202 <= r < 222)] + [r for r in self.free_big if 202 <= r < 222]
        self.resid_compute(L_AB, [self.p2_aload]*int(self.P('na0', 12)))
        self.fine2()
        self.stamp(7)
        self.phase2(0)

    def resid_loads(self):
        k = self.k
        self.srd(SRD_T1, 8, 1280)
        self.srd(SRD_T2, 13, 1280)
        L = []
        for it in range(5):
            def f(it=it):
                k(f"""v_accvgpr_read_b32 v1, a{ST['RD']+it}
                s_add_u32 m0, s{S_RL}, {1024*it}
                buffer_load_dwordx4 v1, {s(SRD_X,4)}, s{S_RX} offen lds""")
            L.append(f)
        def g():
            k(f"""v_lshlrev_b32 v1, 2, v0
            s_add_u32 m0, s{S_RL}, 20480
            buffer_load_dword v1, {s(SRD_T1,4)}, s{S_RJ} offen lds
            s_add_u32 m0, s{S_RL}, {20480+256}""")
            self.rl_tok = k(f"buffer_load_dword v1, {s(SRD_T2,4)}, s{S_RJ} offen lds")
        return L + [g]
    def resid_compute(self, L_AB, memq):
        k = self.k
        ST, XB, DB, BB, T = 16, 36, 56, 66, 166
        k.wait_vm(self.rl_tok)
        self.STROW, self.STC4 = globals()['ST']['ROW'], globals()['ST']['C4']
        W = [f"s_lshl_b32 s{S_T+4}, s{S_W}, 6", f"s_add_u32 s{S_T+4}, s{S_T+4}, {L_AB}", f"s_movk_i32 s{S_T+5}, 160"]
        for it in range(5):
            W += [f"v_accvgpr_read_b32 v{11+it}, a{self.STROW+it}", f"v_accvgpr_read_b32 v{6+it}, a{self.STC4+it}"]
            W += [f"v_lshl_add_u32 v1, v{11+it}, 2, s{S_T+4}", f"v_lshl_add_u32 v3, v{6+it}, 3, s{S_RL}", f"v_mad_u32_u24 v2, v{11+it}, s{S_T+5}, v3",
                  f"ds_read2st64_b32 {v(ST+2*it,2)}, v1 offset0:0 offset1:2", f"ds_read2st64_b32 {v(ST+10+2*it,2)}, v1 offset0:1 offset1:3",
                  f"ds_read_b64 {v(XB+2*it,2)}, v2", f"ds_read_b64 {v(XB+10+2*it,2)}, v2 offset:2560",
                  f"ds_read_b64 {v(DB+2*it,2)}, v3 offset:20480", f"ds_read_b64 {v(BB+2*it,2)}, v3 offset:{20480+256}"]
        W += [f"v_add_u32 v4, s{S_RL}, v{self.LV}", "s_waitcnt lgkmcnt(0)"]
        for it in range(5):
            dd, bb = [76, 100][it % 2], [76, 100][it % 2] + 4
            for (src, dst) in ((DB+2*it, dd), (BB+2*it, bb)):
                for h in range(2):
                    W += [f"v_lshlrev_b32 v{dst+2*h}, 16, v{src+h}", f"v_and_b32 v{dst+2*h+1}, 0xffff0000, v{src+h}"]
            for hf in range(2):
                xx = dd + 8 + 8*hf
                for h in range(2):
                    W += [f"v_lshlrev_b32 v{xx+2*h}, 16, v{XB+10*hf+2*it+h}", f"v_and_b32 v{xx+2*h+1}, 0xffff0000, v{XB+10*hf+2*it+h}"]
            for hf in range(2):
                xx = dd + 8 + 8*hf; rr = xx + 4; st = ST + 10*hf + 2*it
                for h in range(2):
                    W += [f"v_pk_add_f32 {v(rr+2*h,2)}, {v(bb+2*h,2)}, {v(xx+2*h,2)}",
                          f"v_pk_fma_f32 {v(xx+2*h,2)}, {v(xx+2*h,2)}, {v(st,2)}, {v(st,2)} op_sel:[0,0,1] op_sel_hi:[1,0,1]"]
            for hf in range(2):
                xx = dd + 8 + 8*hf; rr = xx + 4
                for h in range(2):
                    W += [f"v_pk_fma_f32 {v(rr+2*h,2)}, {v(xx+2*h,2)}, {v(dd+2*h,2)}, {v(rr+2*h,2)}"]
                W += [f"ds_write_b128 v4, {v(rr,4)} offset:{hf*20480+it*1024}"]
        self.sprinkle(W, memq, lead=int(self.P('rlead', 0)))

    def mlp(self):
        k = self.k
        ACC = 16; WSA = 112; ONE = 124; FR = [128, 148]
        B1R = 126; GS = 168
        XE, XO, W0 = 3, 2, 4
        RXB, AEB, AOB = 176, 180, 184
        PV = self.PV; LV = self.LV
        STGS = 40960
        S_MH, S_NH = 42, 43
        L_WS = 110592
        k.c("================ MLP side, phase 1")
        self.common_a()
        self.nf3 = 0
        self.marks = {}
        S_RSROW, SW0, S_GT, D1, S_RSDST, S_FB = S_T+5, S_T+6, S_T+9, S_T+10, S_T+8, S_T+14
        k(f"""v_xor_b32 v{XO}, 64, v{XE}
        s_add_u32 s{S_XO+1}, s{S_XO}, {8*1280 - 1024}
        s_add_u32 s{S_XO+2}, s{S_XO}, {16*1280 - 2048}
        s_add_u32 s{S_XO+3}, s{S_XO}, {24*1280 - 3072}""")
        stage_tok = {}; stage_cnt = {}
        self.dma_reset(); self.has_w = True
        self.rot_setup([XE, XO], True)
        for n in range(3):
            k(f"""v_add_u32 v10, {64*n}, v0
            v_mul_u32_u24 v12, 2731, v10
            v_lshrrev_b32 v12, 16, v12
            v_mul_u32_u24 v13, 24, v12
            v_sub_u32 v13, v10, v13
            v_bfe_u32 v40, v12, 1, 1
            v_lshlrev_b32 v40, 2, v40
            v_xor_b32 v13, v13, v40
            v_mul_u32_u24 v12, 3072, v12
            v_lshl_add_u32 v{W0+n}, v13, 4, v12""")
            if n: k(f"v_subrev_u32 v{W0+n}, {1024*n}, v{W0+n}")
            k(f"v_add_u32 v{W0+n}, s{S_ST2}, v{W0+n}")
        k(f"""s_mul_i32 s{S_MW}, s{S_W}, 6144
        s_mul_i32 s{S_WO}, s{S_W}, {16*3072}
        s_mul_i32 s{S_T}, s{S_J}, 384
        s_add_u32 s{S_WO}, s{S_WO}, s{S_T}
        s_add_u32 s{S_WO+1}, s{S_WO}, {24576 - 3072}
        s_add_u32 s{S_WO+4}, s{S_WO}, {24576 + 1024}""")
        self.common_b()
        self.stamp(0); self.fine3()
        WSO = [S_WO, S_WO, S_WO, S_WO+1, S_WO+4, S_WO+4]
        def dma_list(t):
            base = (t % 4)*STGS
            L = []
            def mk(ld):
                def f():
                    stage_tok[t] = k(ld); stage_cnt[t] = stage_cnt.get(t, 0) + 1
                return f
            for e in range(4):
                vr = XE if e % 2 == 0 else XO
                L.append(self.dma((S_MX, base + 24576), mk(f"buffer_load_dwordx4 v{vr}, {s(SRD_X,4)}, s{S_XO+e} offen offset:{e*1024} lds"), vr, t, 128))
            for n in range(6):
                L.append(self.dma((S_MW, base + (n//4)*4096), mk(f"buffer_load_dwordx4 v{W0+n%3}, {s(SRD_W,4)}, s{WSO[n]} offen offset:{(n%4)*1024} lds"), W0+n%3, t, 64*3072))
            return L
        d0 = dma_list(0)
        for p in d0[:4]: self.emit(p)
        self.srd(SRD_W, 10, 1966080)
        for p in d0[4:7]: self.emit(p)
        d1 = dma_list(1)
        R0, A0, T0 = 200, 220, 224
        TS = int(self.P('mts', 3))
        SCR = (TS % 4)*STGS + 24576
        rs = self.rowstat_loads(SRD_X, S_RSROW, 8, R0)
        def setup(k):
            k(f"""s_lshr_b32 s{S_MH}, s{S_W}, 1
            s_and_b32 s{S_NH}, s{S_W}, 1
            s_lshl_b32 s{S_T+2}, s{S_W}, 2
            s_lshl_b32 s{S_T}, s{S_I}, 7
            s_lshl_b32 s{S_T+1}, s{S_J}, 4
            s_add_u32 s{S_T}, s{S_T}, s{S_T+1}
            s_add_u32 s{S_RSROW}, s{S_T}, s{S_T+2}
            s_lshl_b32 s{S_RSDST}, s{S_RSROW}, 4
            s_add_u32 s{S_RSDST}, s{S_RSDST}, {WS_STG}
            s_mov_b32 s{S_T+1}, 3""")

            self.rowstat_setup(S_RSROW, S_T+1, 8, 9)

            self.srd(SRD_T2, 12, 1966080)
            self.unit_decode(480, S_FB)

            k(f"""s_mul_i32 s{S_T+1}, s{S_T+2}, {32*1280}
            s_lshl_b32 s{S_T+3}, s{S_T}, 7
            s_add_u32 s{SW0}, s{S_T+1}, s{S_T+3}
            s_mul_i32 s{S_T+3}, s{S_T}, {4*48}
            s_add_u32 s{S_T+3}, s{S_T+3}, s{S_T+2}
            s_lshl_b32 s{S_T+3}, s{S_T+3}, 10
            s_add_u32 s{D1}, s{S_T+3}, {WS_B2S[1]}
            s_lshl_b32 s{S_FB}, s{S_FB}, 6
            s_add_u32 s{S_FB}, s{S_FB}, {WS_FB + 512*FLS}
            s_lshl_b32 s{S_GT}, s{S_I}, 11
            s_lshl_b32 s{S_T}, s{S_MH}, 10
            s_add_u32 s{S_GT}, s{S_GT}, s{S_T}
            s_add_u32 s{S_GT}, s{S_GT}, {WS_STG}
            v_and_b32 v11, 31, v0
            v_lshrrev_b32 v12, 5, v0
            v_bfe_u32 v13, v0, 1, 3
            v_xor_b32 v13, v13, v12
            v_lshlrev_b32 v13, 4, v13
            v_lshl_add_u32 v13, v11, 7, v13
            s_lshl_b32 s{S_T}, s{S_MH}, 13
            s_add_u32 s{S_T}, s{S_T}, 24576
            v_add_u32 v10, s{S_T}, v13
            v_bfe_u32 v13, v0, 2, 2
            v_lshl_add_u32 v40, v12, 3, v13
            v_mul_u32_u24 v40, 384, v40
            v_bfe_u32 v15, v0, 4, 1
            v_lshl_add_u32 v40, v15, 5, v40
            v_and_b32 v41, 3, v0
            v_lshl_add_u32 v40, v41, 3, v40
            v_lshlrev_b32 v7, 4, v12
            v_lshl_add_u32 v7, v15, 2, v7
            v_add_u32 v7, v7, v13
            v_lshlrev_b32 v7, 7, v7
            v_lshl_add_u32 v7, v41, 3, v7
            v_add_u32 v7, s{S_MX}, v7
            v_add_u32 v7, {SCR}, v7
            s_mul_i32 s{S_T}, s{S_NH}, 192
            v_add_u32 v40, s{S_T}, v40
            v_bfe_u32 v13, v0, 3, 1
            v_lshlrev_b32 v13, 6, v13
            s_cmp_eq_u32 s{S_NH}, 0
            s_cselect_b32 s{S_T}, 1, -1
            v_mul_lo_u32 v13, v13, s{S_T}
            v_add_u32 v15, v40, v13
            v_sub_u32 v40, v40, v13
            v_mov_b32 v{ONE}, 0x3f803f80
            v_mov_b32 v{ONE+1}, 0x3f803f80""")
            for ls in range(4):
                k(f"""s_lshl_b32 s{S_T}, s{S_MH}, 1
                s_add_u32 s{S_T}, s{S_T}, {ls}
                s_and_b32 s{S_T}, s{S_T}, 3
                s_lshl_b32 s{S_T+1}, s{S_T}, 5
                s_mul_i32 s{S_T}, s{S_T}, 6144
                v_xor_b32 v{RXB+ls}, s{S_T+1}, v10
                v_add_u32 v{AEB+ls}, s{S_T}, v15
                v_add_u32 v{AOB+ls}, s{S_T}, v40""")
            for q in range(12): k(f"v_add_u32 v{RXB+12+q}, {2*STGS}, v{RXB+q}")
            k(f"""v_lshlrev_b32 v10, 4, v11
            v_min_u32 v11, 47, v0
            s_mul_i32 s{S_T}, s{S_J}, 192
            s_mul_i32 s{S_T+1}, s{S_W}, 48
            s_add_u32 s{S_T}, s{S_T}, s{S_T+1}
            v_add_lshl_u32 v12, v11, s{S_T}, 1
            v_add_lshl_u32 v11, v11, s{S_T+1}, 2
            v_add_u32 v11, {L_WS}, v11""")
            self.b2v = self.b2_setup(1)
        su = self.capture(setup)
        self.sprinkle(su[:20], [(lambda p=p: self.emit(p)) for p in d0[7:]])
        mprs = int(self.P('mprs', 0))
        n1 = 4 if mprs == 0 else 8
        self.sprinkle(su[20:], [(lambda p=p: self.emit(p)) for p in d1[:2]] + (rs if mprs == 0 else []) + [(lambda p=p: self.emit(p)) for p in d1[2:n1]])
        b2v = self.b2v
        tk = {}
        swq = []
        for e in range(4):
            def f(e=e):
                k(f"s_add_u32 s{S_T+2}, s{SW0}, {e*8*1280}")
                tk['d1'] = k(f"buffer_load_dwordx4 v{PV}, {s(SRD_T2,4)}, s{S_T+2} offen lds")
            swq.append(self.dma((S_MX, SCR + e*1024), f))
        self.make_tag()
        self.emit(self.touch(1, 246))
        rtok = {}
        def mkreads(n):
            st = FR[n % 2]; ls = n % 4; sl = (n//4) % 4; o = (sl % 2)*STGS; h_ = 12*(sl//2)
            ra, ae, ao = RXB+ls+h_, AEB+ls+h_, AOB+ls+h_
            R = [f"ds_read_b128 {v(st,4)}, v{ra} offset:{o}",
                 f"ds_read_b64_tr_b16 {v(st+8,2)}, v{ae} offset:{o}", f"ds_read_b64_tr_b16 {v(st+10,2)}, v{ae} offset:{o+1536}",
                 f"ds_read_b128 {v(st+4,4)}, v{ra} offset:{o+4096}",
                 f"ds_read_b64_tr_b16 {v(st+12,2)}, v{ao} offset:{o+64}", f"ds_read_b64_tr_b16 {v(st+14,2)}, v{ao} offset:{o+1600}",
                 f"ds_read_b64_tr_b16 {v(st+16,2)}, v{ae} offset:{o+128}", f"ds_read_b64_tr_b16 {v(st+18,2)}, v{ae} offset:{o+1664}"]
            L = []
            for i, r in enumerate(R):
                def f(i=i, r=r): rtok[n, i] = k(r)
                L.append(f)
            return L
        self.fine3()
        k.wait_vm(stage_tok[0])
        self.fine3()
        k("s_barrier")
        self.fine3()
        self.stamp(1)
        k.label("L_mlp_code")
        self.emit(mkreads(0))
        NSW, NFLAG, NPOLL, NCHK = [int(self.P(a_, b_)) for a_, b_ in (('mnsw', 4), ('mnfl', 12), ('mnpo', 21), ('mnck', 26))]
        mq = [[0, 1, p_, l_] for p_, l_ in d1[n1:]]
        def q_stage(t):
            L = [[max(4*(t-3), NSW+2 if (t == TS and j_ < 4) else 0), 1, p_, l_] for j_, (p_, l_) in enumerate(dma_list(t))]
            mq.extend(L[4:] + L[:4] if t == TS else L)
        def sw_store(cc):
            def f():
                k.wait_lg(tk['r1'])
                k(f"s_add_u32 s{S_T}, s{D1}, {cc*48*1024}")
                tk['s1'] = k(f"buffer_store_dwordx4 {a(240+4*cc,4)}, v{LV}, {WS4}, s{S_T} offen sc1")
            return f
        def b1l(): tk['b1'] = k(f"global_load_ushort v{B1R}, v12, {ptr(11)}")
        def gs1(): k(f"buffer_load_dwordx4 {v(GS,4)}, v10, {WS4}, s{S_GT} offen sc1")
        def gs2(): tk['gs'] = k(f"buffer_load_dwordx4 {v(GS+4,4)}, v10, {WS4}, s{S_GT} offen offset:512 sc1")
        mpsw, mpst = int(self.P('mpsw', 1)), int(self.P('mpst', 2))
        for t in range(1, 10):
            if t > 1: q_stage(t)
            if t == mprs: mq += [[0, 1, None, f] for f in rs]
            if t == mpsw: mq += [[4*(TS-3), 1, p_, l_] for p_, l_ in swq]
            if t == mpst: mq += [[NSW+1, 2, None, sw_store(cc)] for cc in range(4)]
            if t == 4: mq.append([0, 0.5, None, b1l])
        late = {NPOLL: [[NPOLL, 0.5, None, self.b2_poll]], 30: [[30, 1, None, gs1], [30, 1, None, gs2]]}
        def swr():
            k.wait_vm(tk['d1'])
            for cc in range(4):
                for e in range(2):
                    tk['r1'] = k(f"ds_read_b64_tr_b16 {a(240+4*cc+2*e,2)}, v7 offset:{e*1024+cc*32}")
        def flg():
            k.wait_vm(tk['s1']); self.set_flag(S_FB, 13)
        hooks = {NSW: swr, NFLAG: flg}
        rsf = self.rowstat_fill(R0, A0, T0, 9, S_RSDST)
        fq = [('at', NSW + 1)] + b2v + [('mark', 'b2s')]
        NRB = int(self.P('mnrb', 3))
        pa = [f"v_and_b32 v200, 15, v0", f"v_mul_u32_u24 v201, {RED_RS}, v200", f"v_lshrrev_b32 v200, 4, v0", f"v_lshl_add_u32 v201, v200, 4, v201",
              f"s_mul_i32 s{S_T+2}, s{S_W}, {RED_W}", f"s_add_u32 s{S_T+2}, s{S_T+2}, {LDS_RED}", f"v_add_u32 v201, s{S_T+2}, v201",
              f"v_accvgpr_write_b32 a{ST_M}, v201", f"s_mul_i32 s{S_T+2}, s{S_W}, {16*RED_RS}", f"s_add_u32 s{S_T+2}, s{S_T+2}, {LDS_RED}"]
        for it in range(5):
            pa += [f"v_add_u32 v200, {64*it}, v0"] + self.div20(201, 202, 200) + [f"v_lshlrev_b32 v202, 4, v202",
                   f"v_mul_u32_u24 v203, {RED_RS}, v201", f"v_add3_u32 v203, v203, v202, s{S_T+2}", f"v_accvgpr_write_b32 a{ST_M+1+it}, v203",
                   f"v_mul_u32_u24 v203, 2560, v201", f"v_add_u32 v203, v203, v202", f"v_accvgpr_write_b32 a{ST_M+6+it}, v203"]
        fq += [('at', NFLAG + 1)] + pa + self.p2_scalars(1) + [('mark', 'p2a')]
        fq += [('at', 28), lambda: k.wait_vm(tk['b1']), f"v_lshlrev_b32 v{B1R}, 16, v{B1R}", f"ds_write_b32 v11, v{B1R} offset:1536"]
        AT, BT, C1, PATV, TM = 250, 8, 6, 15, 200
        c1 = -2*LOG2E*math.sqrt(2/math.pi)
        NGS = int(self.P('mngs', 35))
        fq += [x.strip() for x in f"""v_and_b32 v11, 31, v0
        s_mul_i32 s{S_T+2}, s{S_MH}, 768
        s_mul_i32 s{S_T+3}, s{S_NH}, 384
        s_add_u32 s{S_T+2}, s{S_T+2}, s{S_T+3}
        v_lshl_add_u32 v13, v11, 2, s{S_T+2}
        v_add_u32 v13, {L_WS}, v13
        v_lshrrev_b32 v14, 5, v0
        v_lshl_add_u32 v12, v14, 4, s{S_T+3}
        v_add_u32 v12, {L_WS}, v12
        v_lshrrev_b32 v{PV}, 4, v11
        v_mul_u32_u24 v{PV}, {48*1024}, v{PV}
        v_and_b32 v15, 15, v0
        v_lshl_add_u32 v{PV}, v15, 4, v{PV}
        v_lshl_add_u32 v{PV}, v14, 8, v{PV}
        s_lshl_b32 s{S_T+2}, s{S_I}, 3
        s_lshl_b32 s{S_T+3}, s{S_MH}, 2
        s_add_u32 s{S_T+2}, s{S_T+2}, s{S_T+3}
        s_mul_i32 s{S_T+2}, s{S_T+2}, 48
        s_mul_i32 s{S_T+3}, s{S_J}, 6
        s_add_u32 s{S_T+2}, s{S_T+2}, s{S_T+3}
        s_mul_i32 s{S_T+3}, s{S_NH}, 3
        s_add_u32 s{S_T+2}, s{S_T+2}, s{S_T+3}
        s_lshl_b32 s{S_T+2}, s{S_T+2}, 10
        s_add_u32 s{S_T+6}, s{S_T+2}, {WS_A2[1]}
        s_add_u32 s{S_T+7}, s{S_T+6}, {96*1024}
        s_mov_b32 s{S_T+4}, {fbits(c1*0.044715)}
        s_mov_b32 s{S_T+5}, s{S_T+4}""".split("\n")]
        def c1set():
            assert stage_cnt[9] == 10
            k(f"v_mov_b32 v{C1}, {fbits(c1)}\nv_mov_b32 v{C1+1}, {fbits(c1)}")
        fq += [f"s_cmp_ge_u32 s{S_W}, 2\ns_cselect_b32 s{S_NM}, s{S_NM}, -1\ns_cselect_b32 s{S_T+2}, s{S_PAT}, 0", f"v_mov_b32 v{PATV}, s{S_T+2}",
               f"s_mov_b32 s{S_T+2}, {fbits(1.0/640)}", ('at', 32), c1set, ('at', NGS)]
        seqs = []
        for mt in range(2):
            g_ = GS + 4*mt; t_ = TM + mt
            seqs.append([f"v_mul_f32 v{g_}, s{S_T+2}, v{g_}", f"v_mul_f32 v{t_}, v{g_}, v{g_}", f"v_fma_f32 v{g_+2}, v{g_+2}, s{S_T+2}, -v{t_}",
                         f"v_max_f32 v{g_+2}, 0, v{g_+2}", f"v_add_f32 v{t_}, {fbits(EPS)}, v{g_+2}", f"v_rsq_f32 v{g_+1}, v{t_}",
                         f"v_mul_f32 v{t_}, v{g_+1}, v{g_+1}", f"v_mul_f32 v{t_}, v{t_}, v{g_+2}", f"v_add_f32 v{t_}, {fbits(EPS)}, v{t_}",
                         f"v_rsq_f32 v{t_}, v{t_}", f"v_mul_f32 v{AT+mt}, v{t_}, v{g_+1}", f"v_mul_f32_e64 v{BT+mt}, v{g_}, -v{AT+mt}"])
        fq += [y for x in zip(*seqs) for y in x]
        fq += [f"ds_read_b128 {v(218+4*q4,4)}, v12 offset:{1536+32*q4}" for q4 in range(4)]
        credit = 0.0; b2on = False
        for n in range(40):
            st = FR[n % 2]
            k.c(f"---- mlp k-step {n}")
            if n % 2 == 0: self.fine(16 + n//2)
            if n == NCHK:
                self.b2_check(); b2on = True
            if n == NSW + 2: k.wait_lg(tk['r1'])
            if n == NGS:
                k.wait_vm(tk['gs'])
                def check():
                    k(f"""v_xor_b32 v202, s{S_TAG}, v{GS+1}
                    v_bitop3_b32 v202, s{S_TAG2}, v{GS+3}, v202 bitop3:0xbe
                    v_bitop3_b32 v202, s{S_TAG}, v{GS+5}, v202 bitop3:0xbe
                    v_bitop3_b32 v202, s{S_TAG2}, v{GS+7}, v202 bitop3:0xbe
                    v_cmp_ne_u32 vcc, 0, v202""")
                def rl():
                    gs1(); gs2(); k("s_waitcnt vmcnt(0)")
                self.verify(check, rl, "ps")
            mq[0:0] = late.get(n, [])
            mem = []
            mmax = int(self.P('mtail', 4) + (0.5 if n % 4 < 2 else 0)) if n >= 28 else int(self.P('mmax', 5)) if n < self.P('mfast', 4) else int(self.P('mcap', 3.5)) + (1 if n % 4 < 2 and self.P('mcap', 3.5) % 1 else 0)
            while len(mem) < mmax:
                if mq and mq[0][0] <= n: it_ = mq.pop(0)
                elif b2on and self.b2q and len(mem) < self.P('mb2', 5) + (0.5 if n % 4 < 2 else -0.5): it_ = [n, 1, None, self.b2q.pop(0)]
                else: break
                mem.append(it_)
            rd = mkreads(n+1) if n + 1 < 40 else []
            small = []
            if n % 4 < 2:
                for hh in range(2):
                    for T in range(3):
                        c_ = "0" if (n == 0 and hh == 0) else v(WSA+4*T, 4)
                        small.append(f"v_mfma_f32_4x4x4_16b_bf16 {v(WSA+4*T,4)}, {v(ONE,2)}, {v(st+8+4*T+2*hh,2)}, {c_}")
            bar = n % 4 == 3 and n + 1 < 40
            cnt = [0, 3, 3, 2, 0, 0] if bar else [3, 3, 2, 0, 0, 0]
            pref = [4, 0, 5, 3, 2, 1] if bar else [4, 5, 2, 3, 0, 1]
            nper_ = [0]*6
            for j_ in range(len(mem)): nper_[pref[j_ % 6]] += 1
            dep = {0: 2, 1: 3, 2: 5, 4: 7}
            for i in range(6):
                T3, mt = i//2, i % 2
                if nper_[i] and mem[0][2]: mem[0][2]()
                if i in dep: k.wait_lg(rtok[n, dep[i]])
                d = ACC + 16*i
                k(f"v_mfma_f32_32x32x16_bf16 {v(d,16)}, {v(st+8+4*T3,4)}, {v(st+4*mt,4)}, {'0' if n == 0 else v(d,16)}")
                n0 = len(k.ins)
                for j_ in range(nper_[i]):
                    it_ = mem.pop(0)
                    if j_ and it_[2]: it_[2]()
                    it_[3]()
                if bar and i == 1:
                    assert stage_cnt[(n+1)//4] == 10
                    if n == NRB: self.rowstat_batch(R0, A0, 9, S_RSDST)
                    k.wait_both(stage_tok[(n+1)//4], k.lg_issued)
                    k("s_barrier")
                for _ in range(cnt[i]):
                    if rd: rd.pop(0)()
                self.emit(self.take_fill(fq, n, int(self.P('mden', 5)) - (len(k.ins) - n0)))
            if n in hooks: hooks[n]()
            self.emit(small)
            assert not rd and not mem
        assert not mq and not fq and self.marks['b2s'] < NPOLL
        self.info += f" mlp b2 left {len(self.b2q)} marks {self.marks}"
        k.c('loop end')
        self.stamp(2)
        if self.early_stop("loop"): return
        k.c("================ MLP epilogue")
        self.nf2 = 0
        for T in range(3): k(f"v_permlane32_swap_b32 v{WSA+4*T}, v{WSA+4*T+1}")
        for T in range(3):
            k(f"v_add_f32 v{WSA+4*T}, v{WSA+4*T}, v{WSA+4*T+1}\nds_write_b32 v13, v{WSA+4*T} offset:{128*T}")
        WB = [186, 112]
        Q = 160; PKO = [168, 172, 234, 238]
        def wreads(T3, parts=(0, 1, 2)):
            b = WB[T3 % 2]
            return [f"ds_read_b128 {v(b+16*a_+4*q4,4)}, v12 offset:{768*a_+(32*T3+8*q4)*4}" for q4 in range(4) for a_ in parts]
        def zb(Tl, prs):
            b = WB[(Tl//2) % 2]; mt = Tl % 2
            return [f"v_pk_fma_f32 {v(ACC+16*Tl+2*p,2)}, {v(AT,2)}, {v(ACC+16*Tl+2*p,2)}, {v(b+32+2*p,2)} op_sel:[{mt},0,0] op_sel_hi:[{mt},1,1]" for p in prs]
        k("s_waitcnt lgkmcnt(0)\ns_barrier")
        self.stamp(3)
        self.emit(wreads(0, (0, 1)))
        self.emit(zb(0, range(8)) + zb(1, range(8)))
        self.p2_addr(1)
        held = []
        for Tl in range(6):
            T3, mt = Tl//2, Tl % 2
            self.fine2()
            b = WB[T3 % 2]
            fill = []; body = []
            if mt == 0:
                k("s_waitcnt lgkmcnt(0)")
                body += [f"v_pk_add_f32 {v(b+2*p,2)}, {v(b+2*p,2)}, {v(b+16+2*p,2)}" for p in range(8)]
                if T3 < 2: fill = [lambda x=x: k(x) for x in wreads(T3+1)]
            for c in range(2):
                po = PKO[(2*Tl + c) % 4]; prs = range(4*c, 4*c+4)
                z = lambda p: ACC + 16*Tl + 2*p
                q = lambda p: Q + 2*(p % 4)
                if Tl >= 2: body += zb(Tl, prs)
                body += [f"v_pk_fma_f32 {v(z(p),2)}, {v(BT,2)}, {v(b+2*p,2)}, {v(z(p),2)} op_sel:[{mt},0,0] op_sel_hi:[{mt},1,1]" for p in prs]
                body += [f"v_pk_mul_f32 {v(q(p),2)}, {v(z(p),2)}, {v(z(p),2)}" for p in prs]
                body += [f"v_pk_fma_f32 {v(q(p),2)}, {v(q(p),2)}, {s(S_T+4,2)}, {v(C1,2)}" for p in prs]
                body += [f"v_pk_mul_f32 {v(q(p),2)}, {v(q(p),2)}, {v(z(p),2)}" for p in prs]
                for p in prs: body += [f"v_exp_f32 v{q(p)}, v{q(p)}", f"v_exp_f32 v{q(p)+1}, v{q(p)+1}"]
                body += [f"v_pk_add_f32 {v(q(p),2)}, {v(q(p),2)}, 1.0 op_sel_hi:[1,0]" for p in prs]
                for p in prs: body += [f"v_rcp_f32 v{q(p)}, v{q(p)}", f"v_rcp_f32 v{q(p)+1}, v{q(p)+1}"]
                body += [f"v_pk_mul_f32 {v(q(p),2)}, {v(q(p),2)}, {v(z(p),2)}" for p in prs]
                body += [f"v_cvt_pk_bf16_f32 v{po+p%4}, v{q(p)}, v{q(p)+1}" for p in prs]
                body += [f"v_and_or_b32 v{po+p%4}, v{po+p%4}, s{S_NM}, v{PATV}" for p in prs]
                def st_(T3=T3, mt=mt, c=c, po=po):
                    self.last_st = k(f"buffer_store_dwordx4 {v(po,4)}, v{PV}, {WS4}, s{S_T+6+mt} offen offset:{T3*1024+c*512} sc1")
                if Tl < 4: body.append(st_)
                else: held.append(st_)
            if Tl >= 4: fill = [self.p2_aload]*8
            if Tl < 4: fill = fill + self.b2_take(min(int(self.P('g1', 4)), -(-len(self.b2q)//(4 - Tl))))
            self.sprinkle(body, fill, lead=8)
        self.fine2()
        self.emit(held)
        self.fine2()
        self.stamp(6)
        self.phase2(1)

    RING, NR, ACS, ACO = 16, 19, 92, 172
    def p2_scalars(self, side):
        a_, b_ = S_T+2, S_T+3; hfO = 1 - side
        L = f"""s_lshl_b32 s{a_}, s{S_I}, 5
        s_lshl_b32 s{b_}, s{S_W}, 3
        s_add_u32 s{a_}, s{a_}, s{b_}
        s_lshl_b32 s{a_}, s{a_}, 6
        s_add_u32 s{S_FAP}, s{a_}, {WS_FA + side*512*FLS}
        s_lshr_b32 s{a_}, s{S_PW}, 2
        s_mul_i32 s{a_}, s{a_}, 20480
        s_mul_i32 s{b_}, s{S_W}, 5120
        s_add_u32 s{a_}, s{a_}, s{b_}
        s_add_u32 s{S_RECV}, s{a_}, {WS_PART + (1-side)*128*20480}
        s_add_u32 s{S_RECV+1}, s{S_RECV}, 4096
        s_add_u32 s{S_SEND}, s{a_}, {WS_PART + side*128*20480}
        s_add_u32 s{S_SEND+1}, s{S_SEND}, 4096
        s_lshl_b32 s{a_}, s{S_I}, 7
        s_lshl_b32 s{b_}, s{S_W}, 4
        s_add_u32 s{a_}, s{a_}, s{b_}
        s_add_u32 s{a_}, s{a_}, {64*hfO}
        s_mul_i32 s{a_}, s{a_}, 2560
        s_mul_i32 s{b_}, s{S_J}, 320
        s_add_u32 s{S_OUT}, s{a_}, s{b_}
        s_mov_b32 s{SRD_OUT}, s{P0+28}
        s_mov_b32 s{SRD_OUT+1}, s{P0+29}
        s_mov_b32 s{SRD_OUT+2}, 5242880
        s_mov_b32 s{SRD_OUT+3}, 0x20000"""
        return [x.strip() for x in L.split("\n")]
    def p2_addr(self, side):
        k = self.k
        S = [40, 48][side]; KS = [10, 12][side]
        self.side = side; self.KS = KS
        hfS = side; hfO = 1 - side
        k(f"""s_mul_i32 s45, s{S_I}, {8*S}
        s_mul_i32 s46, s{S_W}, {KS}
        s_add_u32 s45, s45, s46
        s_lshl_b32 s45, s45, 10
        s_add_u32 s45, s45, {WS_A2[side]}""")
        for t4 in range(4):
            k(f"s_add_u32 s{36+t4}, s45, {(4*hfS+t4)*S*1024}")
            k(f"s_add_u32 s{40+t4}, s45, {(4*hfO+t4)*S*1024}")
        self.seq = [(0, ss, t4) for ss in self.order for t4 in range(4)] + [(1, ss, t4) for t4 in range(4) for ss in range(KS)]
        self.atok = {}; self.areg = {}; self.nxt = 0
        self.free_ring = [self.RING + 4*i for i in range(self.NR)]
        self.free_big = [self.ACO + 4*i for i in range(20)] if side == 0 else []
    def a_instr(self, idx):
        p, ss, t4 = self.seq[idx]
        so = 36 + 4*p + t4; pre = ""
        if ss >= 4:
            pre = f"s_add_u32 s45, s{so}, {(ss//4)*4096}\n"; so = 45
        return pre + f"buffer_load_dwordx4 {v(self.areg[idx],4)}, v{self.LV}, {WS4}, s{so} offen offset:{(ss%4)*1024} sc1"
    def p2_can(self):
        if self.nxt >= len(self.seq): return False
        if self.seq[self.nxt][0] == 0 and self.free_big: return True
        return bool(self.free_ring)
    def p2_aload(self):
        idx = self.nxt
        if self.seq[idx][0] == 0 and self.free_big: r = self.free_big.pop(0)
        else: r = self.free_ring.pop(0)
        self.areg[idx] = r
        self.atok[idx] = self.k(self.a_instr(idx))
        self.nxt += 1

    def phase2(self, side):
        k = self.k
        if self.early_stop("p1"): return
        KS = self.KS; nper = 4*KS
        ACS, ACO, LV = self.ACS, self.ACO, self.LV
        hfS = side; hfO = 1 - side
        RW, RR, OO, VA, FV, T1 = 5, 6, 11, 1, 2, 253
        k.c(f"================ phase 2 (side {side})")
        if side == 1: self.free_big = [self.ACO + 4*i for i in range(20)]
        while self.nxt < 16: self.p2_aload()
        self.stamp(8)
        def vcheck(j, lst):
            regs = [self.areg[4*j+t]+e for t in range(4) for e in range(4)]
            L = []
            for q in range(0, 16, 2):
                L += [f"v_xor_b32 v{regs[q]}, s{S_PAT}, v{regs[q]}", f"v_xor_b32 v{regs[q+1]}, s{S_PAT}, v{regs[q+1]}",
                      f"v_or_b32 v{VA}, v{regs[0]}, v{regs[1]}" if q == 0 else f"v_or3_b32 v{VA}, v{regs[q]}, v{regs[q+1]}, v{VA}"]
            L += [f"v_and_b32 v{VA}, 0x10001, v{VA}", f"v_cmp_ne_u32 vcc, 0, v{VA}"]
            return L
        def vfinish(j):
            hi = min(self.nxt, nper)
            ins = [self.a_instr(i) for i in range(4*j, hi)]
            chk = vcheck(j, None)
            def reload():
                self.emit(ins); k("s_waitcnt vmcnt(0)")
            self.verify(lambda: self.emit(chk), reload, "va", checked=True)
        k(f"v_and_b32 v{FV}, 7, v0\nv_lshlrev_b32 v{FV}, 6, v{FV}")
        a1 = [f"v_mov_b32 v3, s{S_PAT32}\ns_mov_b32 s{S_NM}, -4"]
        if side == 1:
            regs_ = [RW] + [RR+it for it in range(5)] + [OO+it for it in range(5)]
            rd_ = [f"v_accvgpr_read_b32 v{r}, a{ST_M+q}" for q, r in enumerate(regs_)]
            a1 += ["\n".join(rd_[q:q+2]) for q in range(0, 11, 2)]
        else:
            a1 += [f"v_accvgpr_read_b32 v{RW}, a{ST['RW']}", f"s_movk_i32 s{S_T+1}, {RED_RS}", f"s_movk_i32 s{S_T+2}, 2560",
                   f"s_mul_i32 s{S_T}, s{S_W}, {16*RED_RS}", f"s_add_u32 s{S_T}, s{S_T}, {LDS_RED}"]
            for it in range(5):
                a1 += [f"v_lshlrev_b32 v{T1}, 4, v{RR+it}",
                       f"v_mad_u32_u24 v{RR+it}, v{OO+it}, s{S_T+1}, v{T1}", f"v_add_u32 v{RR+it}, s{S_T}, v{RR+it}",
                       f"v_mad_u32_u24 v{OO+it}, v{OO+it}, s{S_T+2}, v{T1}"]
            self.emit(a1); a1 = []
        tk = {}
        gate = [lambda j: nper, lambda j: 32 if j < 3 else nper][side]
        k.wait_vm(self.atok[3])
        self.emit(vcheck(0, None)); vfinish(0)
        o_ok = False
        if side == 0: k(f"v_add_u32 v254, s{S_RL}, v{LV}")
        swr_left = []
        sw_all = {t4: [x for cc in range(5) for x in [W2(f"ds_write_b128 v{RW}, {v(ACS+(t4*5+cc)*4,4)} offset:{t4*16*RED_RS+cc*64}")] + [PAD]*int(self.P('wpad', 1))] for t4 in range(4)}
        for j in range(KS):
            self.fine(36 + j)
            ss = self.order[j]
            while (ss, 4) not in self.b2tok: self.b2q.pop(0)()
            k.wait_vm(self.b2tok[ss, 4])
            vq = None
            misc = []
            if j == [0, int(self.P('jfl', 3))][side]:
                def f():
                    k.wait_vm(self.last_st)
                    k(f"s_add_u32 s{S_T+10}, s{S_FLAG}, {WS_FA + side*512*FLS}")
                    self.set_flag(S_T+10, 4)
                misc.append(f)
            if j == [int(self.P('jpo0', 5)), int(self.P('jpo', 7))][side]:
                def f(): tk['fa'] = k(f"buffer_load_dword v4, v{FV}, {WS4}, s{S_FAP} offen sc1")
                misc.append(f)
            if j == [int(self.P('jck0', 7)), int(self.P('jck', 9))][side]:
                k.wait_vm(tk['fa'])
                def rl(): k(f"buffer_load_dword v4, v{FV}, {WS4}, s{S_FAP} offen sc1\ns_waitcnt vmcnt(0)")
                self.verify(lambda: k(f"v_cmp_ne_u32 vcc, s{S_TAG}, v4"), rl, "fa")
                o_ok = True
            for t4 in range(4):
                idx = 4*j + t4
                for cc in range(5):
                    g_ = 5*t4 + cc
                    d = ACS + (t4*5 + cc)*4
                    k(f"v_mfma_f32_16x16x32_bf16 {v(d,4)}, {a((ss*5+cc)*4,4)}, {v(self.areg[idx],4)}, {'0' if j == 0 else v(d,4)}")
                    lim = gate(j) if not o_ok else 2*nper
                    if g_ % 3 == 0 and self.p2_can() and self.nxt < lim and self.nxt < idx + 22:
                        self.p2_aload()
                    elif g_ in (1, 10) and self.b2q and j >= [1, 3][side]:
                        self.b2q.pop(0)()
                    elif g_ >= 1 and j + 1 < KS:
                        if vq is None: vq = vcheck(j+1, None); vdone = 0
                        fr = vdone//6
                        if vq and (fr >= 4 or g_ >= 5*fr + int(self.P('vlead', 1)) - (2 if fr == 3 else 0)):
                            if fr < 4 and vdone % 6 == 0: k.wait_vm(self.atok[4*j+4+fr])
                            self.emit(vq[:2]); vq = vq[2:]; vdone += 2
                        elif misc or a1: self.emit([(misc or a1).pop(0)])
                    elif misc or a1:
                        self.emit([(misc or a1).pop(0)])
                    elif j == KS - 1 and swr_left:
                        x = swr_left.pop(0)
                        if x is PAD:
                            if swr_left and swr_left[0] is PAD: swr_left.pop(0)
                        else: k(x)
                    if j == KS - 1 and cc == 2 and t4 > 0: swr_left += sw_all[t4-1]
                r = self.areg[idx]
                (self.free_ring if r < ACS else self.free_big).append(r) if (r < ACS or self.nxt < nper - 8) else None
            self.emit(misc)
            if j + 1 < KS:
                k.wait_vm(self.atok[4*j+7])
                self.emit(vq); vfinish(j+1)
        assert not a1
        swr_left += [PAD]*4 + sw_all[3]
        self.stamp(9)
        fill = list(swr_left)
        fill += [PAD]*int(self.P('bpad', 4)) + [W2("s_waitcnt lgkmcnt(0)\ns_barrier")]
        rds = []
        for it in range(5):
            for sw in range(4):
                def f(it=it, sw=sw): tk['r', it] = k(f"ds_read_b128 {v(ACS+(it*4+sw)*4,4)}, v{RR+it} offset:{sw*RED_W}")
                rds.append(f)
        def tail(it):
            b = ACS + it*16; L = []
            if side == 0:
                L.append(lambda: k.wait_lg(tk['R', it]))
                L += [f"v_add_f32 v{b+e}, v{b+e}, v{b+4+e}" for e in range(4)]
            L += [f"v_and_or_b32 v{b+e}, v{b+e}, s{S_NM}, v3" for e in range(4)]
            L.append(f"buffer_store_dwordx4 {v(b,4)}, v{LV}, {WS4}, s{S_SEND+it//4} offen offset:{(it%4)*1024} sc1")
            return L
        for r_ in rds[:8]: fill += [r_, PAD]
        for it in range(5):
            b = ACS + it*16
            ad = [f"v_add_f32 v{b+e}, v{b+e}, v{b+4+e}" for e in range(4)]
            if side == 0:
                def f(it=it, b=b): tk['R', it] = k(f"ds_read_b128 {v(b+4,4)}, v254 offset:{hfS*20480+it*1024}")
                ad.append(f)
            ad += [f"v_add_f32 v{b+8+e}, v{b+8+e}, v{b+12+e}" for e in range(4)] + [f"v_add_f32 v{b+e}, v{b+e}, v{b+8+e}" for e in range(4)]
            if it > 0: ad += tail(it - 1)
            nx = rds[8+4*it:12+4*it]
            fill.append(lambda it=it: k.wait_lg(tk['r', it]))
            for q, x in enumerate(ad):
                if q % 3 == 0 and nx: fill.append(nx.pop(0))
                fill.append(x)
            if it == 3: pass
        fill += tail(4) + [W2("s_barrier")]
        owr = {t4: [f"ds_write_b128 v{RW}, {v(ACO+(t4*5+cc)*4,4)} offset:{t4*16*RED_RS+cc*64}" for cc in range(5)] for t4 in range(4)}
        oq = []
        def ploads():
            return [k(f"buffer_load_dwordx4 {v(ACS+it*16+12,4)}, v{LV}, {WS4}, s{S_RECV+it//4} offen offset:{(it%4)*1024} sc1") for it in range(5)]
        slot = 0
        for j in range(nper):
            idx = nper + j
            _, ss, t4 = self.seq[idx]
            if j % 4 == 0: self.fine(36 + KS + j//4)
            if ss == 1 and t4 > 0: oq += [x for w_ in owr[t4-1] for x in [W2(w_)] + [PAD]*int(self.P('opad', 2))]
            while idx not in self.atok: self.p2_aload()
            k.wait_vm(self.atok[idx])
            for cc in range(5):
                d = ACO + (t4*5 + cc)*4
                k(f"v_mfma_f32_16x16x32_bf16 {v(d,4)}, {a((ss*5+cc)*4,4)}, {v(self.areg[idx],4)}, {'0' if ss == 0 else v(d,4)}")
                cap = 2
                if cc == 0 and self.p2_can():
                    n0 = len(k.ins); self.p2_aload(); cap -= len(k.ins) - n0
                while cap > 0 and (fill or oq):
                    q_ = fill or oq
                    c_ = 2 if isinstance(q_[0], W2) else 1
                    if c_ > cap: break
                    x = q_.pop(0); cap -= c_
                    if x is not PAD: self.emit([x])
                if fill == [] and 'sent' not in tk: tk['sent'] = 5*j + cc
            self.free_ring.append(self.areg[idx])
            if side == 0 and j == nper - 6:
                assert self.nxt == len(self.seq)
                self.ereg = self.free_ring.pop(0); self.eadr = self.free_ring.pop(0)
                k(f"s_cmp_eq_u32 s{S_PW}, 0\ns_cbranch_scc1 L_ep0")
                k.label("L_ep1")
            if j == nper - 3: ptoks = ploads()
        assert not fill
        self.stamp(10)
        rest = [x for x in oq if x is not PAD] + owr[3]
        self.info += f" sent{side}@{tk['sent']}/{5*nper} rest{len(rest)}"
        if side == 0:
            for it in range(5): k(f"ds_read_b128 {v(ACS+it*16+4,4)}, v254 offset:{hfO*20480+it*1024}")
        self.emit(rest)
        def pcheck():
            regs = [ACS+it*16+12+e for it in range(5) for e in range(4)]
            for q in range(0, 20, 2):
                k(f"v_xor_b32 v{regs[q]}, s{S_PAT32}, v{regs[q]}\nv_xor_b32 v{regs[q+1]}, s{S_PAT32}, v{regs[q+1]}")
                k(f"v_or_b32 v{VA}, v{regs[0]}, v{regs[1]}" if q == 0 else f"v_or3_b32 v{VA}, v{regs[q]}, v{regs[q+1]}, v{VA}")
            k(f"v_and_b32 v{VA}, 3, v{VA}\nv_cmp_ne_u32 vcc, 0, v{VA}")
        k("s_waitcnt lgkmcnt(0)\ns_barrier")
        toks = []
        for it in range(5):
            for sw in range(4):
                toks.append(k(f"ds_read_b128 {v(ACO+(it*4+sw)*4,4)}, v{RR+it} offset:{sw*RED_W}"))
        k.wait_vm(ptoks[4])
        def rl():
            ploads(); k("s_waitcnt vmcnt(0)")
        self.verify(pcheck, rl, "pp")
        self.stamp(11)
        if side == 0:
            for it in range(5):
                for h in range(2):
                    k(f"v_pk_add_f32 {v(ACS+it*16+12+2*h,2)}, {v(ACS+it*16+12+2*h,2)}, {v(ACS+it*16+4+2*h,2)}")
        for it in range(5):
            b = ACO + it*16
            k.wait_lg(toks[4*it+3])
            for h in range(2):
                k(f"v_pk_add_f32 {v(b+2*h,2)}, {v(b+2*h,2)}, {v(b+4+2*h,2)}")
                k(f"v_pk_add_f32 {v(b+8+2*h,2)}, {v(b+8+2*h,2)}, {v(b+12+2*h,2)}")
            for h in range(2):
                k(f"v_pk_add_f32 {v(b+2*h,2)}, {v(b+2*h,2)}, {v(ACS+it*16+12+2*h,2)}")
            for h in range(2):
                k(f"v_pk_add_f32 {v(b+2*h,2)}, {v(b+2*h,2)}, {v(b+8+2*h,2)}")
            k(f"buffer_store_dwordx4 {v(b,4)}, v{OO+it}, {s(SRD_OUT,4)}, s{S_OUT} offen {'sc1' if 'outsc1' in self.opt else 'nt' if 'outnt' in self.opt else ''}")
        self.stamp(12)
        self.finish_wg(side)

    def epoch_loads(self):
        for q in range(4):
            self.k(f"s_mov_b32 s{S_T+1}, {WS_FA + q*64*4*FLS}")
            self.k(f"buffer_load_dword v{self.ereg+q}, v{self.eadr}, {WS4}, s{S_T+1} offen sc1")
    def finish_wg(self, side):
        k = self.k
        if side == 0:
            k(f"""s_cmp_lg_u32 s{S_PW}, 0
            s_cbranch_scc1 L_fin0""")
            e = self.ereg
            def loads():
                self.epoch_loads(); k("s_waitcnt vmcnt(0)")
            def check():
                k(f"v_xor_b32 v14, s{S_TAG}, v{e}")
                for q in range(1, 4): k(f"v_bitop3_b32 v14, s{S_TAG}, v{e+q}, v14 bitop3:0xbe")
                k("v_cmp_ne_u32 vcc, 0, v14")
            self.verify(check, loads, "pe")
            k(f"s_mov_b32 s{S_T}, {WS_EPOCH}")
            self.set_flag(S_T, 14)
            k.label("L_fin0")
        if self.spin:
            lb = k.newlabel("spin")
            k(f"s_add_u32 s101, s101, {self.spin}")
            k.label(lb)
            k(f"""s_memrealtime s[98:99]
            s_waitcnt lgkmcnt(0)
            s_sub_u32 s98, s98, s100
            s_cmp_lt_u32 s98, s101
            s_cbranch_scc1 {lb}""")
        if self.ts:
            k("s_waitcnt vmcnt(0)"); self.stamp(13); self.stamp_flush()
        k("s_endpgm")

    def build(self):
        k = self.k
        self.prologue()
        st = k.state()
        self.info = ""
        def do_ssm():
            self.ssm()
            if hasattr(self, 'ereg'):
                k.label("L_ep0")
                k(f"v_lshlrev_b32 v{self.eadr}, 8, v0")
                self.epoch_loads()
                k("s_branch L_ep1")
            self.flush_slow()
        def do_mlp():
            self.mlp()
            self.flush_slow()
        first, second = (do_mlp, do_ssm) if 'mfirst' in self.opt else (do_ssm, do_mlp)
        first()
        k.set_state(st)
        k.label("L_second")
        second()
        k.label("L_end")
        k("s_endpgm")
        if 'nob2' in self.opt:
            k.ins = [x for x in k.ins if not (x.op == 'buffer_load_dwordx4' and ' a[' in x.text)]
        if 'b2hot' in self.opt:
            for x in k.ins:
                if x.op == 's_add_u32' and x.text.startswith(f's_add_u32 s{P0+30},'): x.text = f's_add_u32 s{P0+30}, s{S_B2}, 0'
        if 'noa2' in self.opt:
            out = []; inp2 = False
            for x in k.ins:
                if 'phase 2 (side' in x.text: inp2 = True
                if x.op == 's_endpgm': inp2 = False
                if inp2 and (x.op == 's_cbranch_vccnz' or (x.op == 'buffer_load_dwordx4' and 'sc1' in x.text and ' a[' not in x.text)): continue
                out.append(x)
            k.ins = out
        if self.opt & {'nomfma', 'noread', 'nobar', 'nofill'}:
            out = []; inloop = False
            for x in k.ins:
                if 'k-step' in x.text: inloop = True
                if 'loop end' in x.text: inloop = False
                if inloop:
                    if 'nomfma' in self.opt and x.kind == 'mfma': continue
                    if 'noread' in self.opt and x.kind == 'ds': continue
                    if 'nobar' in self.opt and x.op == 's_barrier': continue
                    if 'nofill' in self.opt and (x.op == 's_cbranch_vccnz' or (x.kind == 'vmem' and not x.lds_dma) or 'v253' in x.text): continue
                out.append(x)
            k.ins = out
        body = k.finish()
        hdr = open("header.txt").read()
        hl = hdr.split("\n"); cut = [i for i, x in enumerate(hl) if x.startswith("; Override launch")][0]
        hdr = "\n".join(hl[:cut]) + "\n" + open("doc.txt").read() + "\n".join(hl[cut:])
        return (hdr + f"""; @launch grid=(256,1,1) block=(256,1,1) lds=163840
.amdgcn_target "amdgcn-amd-amdhsa--gfx950"
.text
.globl {NAME}
.p2align 8
.type {NAME},@function
{NAME}:
""" + body + f""".section .rodata,"a"
.p2align 6
.amdhsa_kernel {NAME}
  .amdhsa_next_free_vgpr 512
  .amdhsa_next_free_sgpr 102
  .amdhsa_accum_offset 256
  .amdhsa_group_segment_fixed_size 0
  .amdhsa_kernarg_size 136
  .amdhsa_user_sgpr_count 2
  .amdhsa_user_sgpr_kernarg_segment_ptr 1
  .amdhsa_system_sgpr_workgroup_id_x 1
.end_amdhsa_kernel
""")

if __name__ == "__main__":
    import argparse
    ap = argparse.ArgumentParser()
    ap.add_argument("-o", default="k4.s")
    ap.add_argument("--stop", default=None)
    ap.add_argument("--ts", action="store_true")
    ap.add_argument("--spin", type=int, default=0)
    ap.add_argument("--seg", type=int, default=None)
    ap.add_argument("--opt", default="")
    a_ = ap.parse_args()
    g = G(stop=a_.stop, ts=a_.ts, spin=a_.spin, seg=a_.seg, opt=a_.opt.split(","))
    txt = g.build()
    open(a_.o, "w").write(txt)
    print("written", a_.o, "nops inserted:", g.k.nops, "lines:", txt.count("\n"), g.info)
```
